```python
import torch

def _softmax(x, axis=-1):
    return torch.softmax(x, dim=axis)
def _gelu(x):
    return torch.nn.functional.gelu(x, approximate="tanh")
def _silu(x):
    return torch.nn.functional.silu(x)
def _sigmoid(x):
    return torch.sigmoid(x)
def _layernorm(x, axis=-1, eps=1e-5):
    m = x.mean(dim=axis, keepdim=True)
    v = x.var(dim=axis, keepdim=True, unbiased=False)
    return (x - m) / torch.sqrt(v + eps)
def _scatter_add(tgt, idx, src, axis=0):
    return tgt.clone().index_add_(axis, idx, src)
def _segment_sum(src, seg, n):
    out = torch.zeros((n,) + src.shape[1:], dtype=src.dtype)
    return out.index_add_(0, seg, src)
def _pad(x, pw):
    flat = tuple(v for pair in reversed(pw) for v in pair)
    return torch.nn.functional.pad(x, flat)

kernel_name = 'interleave_layers__sliding_block__glu_gated_glu__prompt'

def setup_inputs():

    _w = (lambda a: (lambda t: t.to(torch.bfloat16) if t.is_floating_point() else t)(torch.as_tensor(a)))
    def _A_setup():
        B, S, D = 1, 2048, 512
        return {
            "x": _w((lambda *s: torch.randn(*s, dtype=torch.bfloat16) * 0.05)(B, S, D)),
            "wqkv": _w((lambda *s: torch.randn(*s, dtype=torch.bfloat16) * 0.05)(D, 3 * D)),
            "wo": _w((lambda *s: torch.randn(*s, dtype=torch.bfloat16) * 0.05)(D, D)),
        }
    _A_in = _A_setup()

    def _B_setup():
        B, S, D, F = 1, 2048, 512, 1792
        return {
            "x": _w((lambda *s: torch.randn(*s, dtype=torch.bfloat16) * 0.05)(B, S, D)),
            "w_gate": _w((lambda *s: torch.randn(*s, dtype=torch.bfloat16) * 0.05)(D, F)),
            "w_up": _w((lambda *s: torch.randn(*s, dtype=torch.bfloat16) * 0.05)(D, F)),
            "w_down": _w((lambda *s: torch.randn(*s, dtype=torch.bfloat16) * 0.05)(F, D)),
        }
    _B_in = _B_setup()

    return {
        "A_x": _A_in["x"],
        "A_wqkv": _A_in["wqkv"],
        "A_wo": _A_in["wo"],
        "B_x": _B_in["x"],
        "B_w_gate": _B_in["w_gate"],
        "B_w_up": _B_in["w_up"],
        "B_w_down": _B_in["w_down"],
    }

def reference(A_x, A_wqkv, A_wo, B_x, B_w_gate, B_w_up, B_w_down):
    def _A_ref(x, wqkv, wo):
        B, S, D = x.shape
        H = 32; Dh = D // H; W = 256
        qkv = (lambda x, *d: x.permute(*d))((x @ wqkv).reshape(B, S, 3, H, Dh), 2, 0, 3, 1, 4)
        q, k, v = qkv[0], qkv[1], qkv[2]
        scores = torch.einsum("bhqd,bhkd->bhqk", q, k) * (Dh ** -0.5)
        idx = torch.arange(S)
        mask = (idx[:, None] - idx[None, :] >= 0) & (idx[:, None] - idx[None, :] < W)
        scores = torch.where(mask[None, None], scores, -1e9)
        p = _softmax(scores, axis=-1)
        o = torch.einsum("bhqk,bhkd->bhqd", p, v)
        return (lambda x, *d: x.permute(*d))(o, 0, 2, 1, 3).reshape(B, S, D) @ wo

    def _B_ref(x, w_gate, w_up, w_down):
        g = torch.einsum("bsd,df->bsf", x, w_gate)
        u = torch.einsum("bsd,df->bsf", x, w_up)
        h = _sigmoid(g) * u
        return torch.einsum("bsf,fd->bsd", h, w_down)

    x = A_x
    x = x + _A_ref(_layernorm(x, axis=-1), A_wqkv, A_wo)
    x = x + _B_ref(_layernorm(x, axis=-1), B_w_gate, B_w_up, B_w_down)
    x = x + _A_ref(_layernorm(x, axis=-1), A_wqkv, A_wo)
    x = x + _B_ref(_layernorm(x, axis=-1), B_w_gate, B_w_up, B_w_down)
    return x
```

```python
import re

def _regs(tok):
    tok = tok.strip()
    neg = tok.startswith("-")
    if neg: tok = tok[1:]
    m = re.fullmatch(r"abs\((.*)\)", tok)
    if m: tok = m.group(1)
    m = re.fullmatch(r"\|(.*)\|", tok)
    if m: tok = m.group(1)
    m = re.fullmatch(r"([vas])(\d+)", tok)
    if m: return [(m.group(1), int(m.group(2)))]
    m = re.fullmatch(r"([vas])\[(\d+):(\d+)\]", tok)
    if m: return [(m.group(1), i) for i in range(int(m.group(2)), int(m.group(3)) + 1)]
    if tok in ("vcc", "vcc_lo", "vcc_hi"): return [("x", "vcc")]
    if tok in ("exec", "exec_lo", "exec_hi"): return [("x", "exec")]
    if tok == "m0": return [("x", "m0")]
    return []

TRANS = ("v_exp_f32", "v_log_f32", "v_rcp_f32", "v_rsq_f32", "v_sqrt_f32", "v_sin_f32", "v_cos_f32")

class Ins:
    __slots__ = ("text", "op", "kind", "dst", "src", "srcc", "passes", "states", "lds", "wide_store", "dpp")
    def __init__(self, text):
        self.text = text
        t = text.split(";")[0].strip()
        parts = t.split(None, 1)
        op = parts[0]
        self.op = op
        rest = parts[1] if len(parts) > 1 else ""
        ops = [o.strip() for o in re.split(r",(?![^\[]*\])", rest)] if rest else []
        mods = ""
        if ops:
            sp = ops[-1].split(None, 1)
            ops[-1] = sp[0] if sp else ""
            mods = sp[1] if len(sp) > 1 else ""
        self.dst = []; self.src = []; self.srcc = []; self.passes = 0; self.states = 1
        self.lds = False; self.wide_store = False
        self.dpp = ("row_" in mods or "quad_perm" in mods or "wave_" in mods or "_dpp" in op)
        R = lambda i: _regs(ops[i]) if i < len(ops) else []
        if op.startswith("v_mfma"):
            self.kind = "mfma"
            self.dst = R(0); self.src = R(1) + R(2); self.srcc = R(3)
            self.passes = 8 if "32x32x16" in op else 4 if "16x16x32" in op else 16
        elif op.startswith("v_"):
            self.kind = "valu"
            if op.startswith("v_cmp"):
                self.dst = R(0) + ([("x", "exec")] if op.startswith("v_cmpx") else [])
                self.src = sum((R(i) for i in range(1, len(ops))), [])
            elif op.startswith("v_permlane") and "swap" in op:
                self.dst = R(0) + R(1); self.src = R(0) + R(1)
            elif op in ("v_add_co_u32", "v_sub_co_u32", "v_addc_co_u32", "v_subb_co_u32"):
                self.dst = R(0) + R(1); self.src = sum((R(i) for i in range(2, len(ops))), [])
            else:
                self.dst = R(0); self.src = sum((R(i) for i in range(1, len(ops))), [])
                if op.startswith(("v_fmac", "v_pk_fmac", "v_dot2c", "v_writelane")): self.src += R(0)
                if op.startswith("v_cndmask") and len(ops) == 3: self.src += [("x", "vcc")]
        elif op.startswith(("buffer_", "global_")):
            self.kind = "vmem"
            allm = mods.split()
            self.lds = "lds" in allm or "_lds_" in op
            if op.startswith("buffer_"):
                if self.lds:
                    self.src = R(0) + R(1) + R(2) + [("x", "m0")]
                elif "load" in op:
                    self.dst = R(0); self.src = R(1) + R(2) + R(3)
                elif op in ("buffer_wbl2", "buffer_inv"):
                    pass
                else:
                    self.src = R(0) + R(1) + R(2) + R(3)
                    self.wide_store = op.endswith(("x3", "x4"))
                    if "atomic" in op and "sc0" in allm: self.dst = R(0)
                    self.srcc = R(0)
            else:
                if "load" in op and not self.lds:
                    self.dst = R(0); self.src = R(1) + R(2)
                else:
                    self.src = sum((R(i) for i in range(len(ops))), [])
                    self.wide_store = op.endswith(("x3", "x4")) and "store" in op
                    self.srcc = R(1)
        elif op.startswith("ds_"):
            self.kind = "ds"
            if "read" in op or "permute" in op or "swizzle" in op:
                self.dst = R(0); self.src = sum((R(i) for i in range(1, len(ops))), [])
            else:
                self.src = sum((R(i) for i in range(len(ops))), [])
        elif op == "s_nop":
            self.kind = "nop"; self.states = int(ops[0], 0) + 1
        elif op.startswith("s_"):
            self.kind = "salu"
            nodst = op.startswith(("s_cmp", "s_cbranch", "s_branch", "s_waitcnt", "s_barrier", "s_endpgm", "s_setprio", "s_sleep", "s_bitcmp"))
            if not nodst:
                self.dst = R(0); self.src = sum((R(i) for i in range(1, len(ops))), [])
                if "saveexec" in op: self.dst += [("x", "exec")]
            else:
                self.src = sum((R(i) for i in range(len(ops))), [])
        else:
            raise ValueError("unknown instruction: " + text)

def need(prev, cur):
    n = 0
    pd = set(prev.dst)
    vs = lambda regs: {r for r in regs if r[0] in "va"}
    ss = lambda regs: {r for r in regs if r[0] in "sx"}
    if prev.kind == "valu":
        pv = vs(pd); ps = ss(pd)
        if cur.kind == "mfma" and pv & (set(cur.src) | set(cur.srcc)): n = max(n, 2)
        if cur.kind == "mfma" and ("x", "exec") in pd: n = max(n, 4)
        if cur.kind == "valu":
            if cur.op.startswith(("v_readlane", "v_readfirstlane")) and pv & set(cur.src): n = max(n, 1)
            if cur.op.startswith("v_permlane") and pv & set(cur.src): n = max(n, 2)
            if cur.dpp and pv & set(cur.src): n = max(n, 2)
            if cur.dpp and ("x", "exec") in pd: n = max(n, 5)
            if ps & set(cur.src):
                n = max(n, 4 if cur.op.startswith(("v_readlane", "v_writelane")) else 2)
            if ("x", "exec") in pd and cur.op.startswith(("v_readlane", "v_readfirstlane", "v_writelane", "v_permlane")): n = max(n, 4)
            if prev.op.startswith(TRANS) and pv & set(cur.src) and not cur.op.startswith(TRANS): n = max(n, 1)
            if prev.op.startswith(TRANS) and pv & set(cur.src): n = max(n, 1)
            if "op_sel" in prev.text or "sdwa" in prev.text:
                if pv & (set(cur.src) | set(cur.dst)): n = max(n, 1)
        if cur.kind == "vmem" and ps & set(cur.src): n = max(n, 5)
        if cur.kind == "salu" and ps & set(cur.src): n = max(n, 1)
    if prev.kind == "salu":
        if ("x", "m0") in pd and (cur.kind == "vmem" and cur.lds): n = max(n, 1)
    if prev.kind == "vmem" and prev.wide_store:
        if cur.kind in ("valu", "mfma") and set(prev.srcc) & set(cur.dst): n = max(n, 2)
        elif set(prev.srcc) & set(cur.dst): n = max(n, 1)
    if prev.kind == "mfma":
        P = prev.passes
        tab = {2: (4, 5, 1), 4: (6, 8, 3), 8: (10, 12, 7), 16: (18, 20, 15)}[P]
        if cur.kind == "mfma":
            if pd & set(cur.src): n = max(n, tab[1])
            if pd & set(cur.srcc):
                if not (cur.srcc == prev.dst and cur.passes == P): n = max(n, tab[0])
            elif pd & set(cur.dst): n = max(n, tab[0])
        elif cur.kind in ("valu", "vmem", "ds"):
            if pd & (set(cur.src) | set(cur.dst)): n = max(n, tab[1])
        if cur.kind == "valu" and set(prev.srcc) & set(cur.dst): n = max(n, tab[2])
        if cur.kind in ("ds", "vmem") and set(prev.srcc) & set(cur.dst): n = max(n, tab[2])
    return n

class Asm:
    def __init__(self):
        self.out = []
        self.win = []
        self.nops = 0
    def raw(self, s):
        self.out.append(s)
    def label(self, name, pad=True):
        self.out.append(name + ":")
    def fence(self):
        worst = 0; dist = 0
        for p in reversed(self.win):
            w = 0
            if p.kind == "mfma": w = {2: 5, 4: 8, 8: 12, 16: 20}[p.passes]
            elif p.kind == "valu": w = 5 if any(r[0] in "sx" for r in p.dst) else 2
            elif p.kind == "vmem" and p.wide_store: w = 2
            elif p.kind == "salu" and ("x", "m0") in p.dst: w = 1
            worst = max(worst, w - dist)
            dist += p.states
        self._nop(worst)
    def _nop(self, n):
        while n > 0:
            k = min(n, 16)
            self.out.append(f"    s_nop {k-1}")
            self.win.append(Ins(f"s_nop {k-1}"))
            self.nops += k
            n -= k
    def __call__(self, text):
        for line in text.strip().split("\n"):
            line = line.strip()
            if not line or line.startswith(";"):
                if line: self.out.append("    " + line)
                continue
            if line.endswith(":"):
                self.out.append(line); continue
            ins = Ins(line)
            worst = 0; dist = 0
            for p in reversed(self.win):
                if dist >= 20: break
                w = need(p, ins) - dist
                worst = max(worst, w)
                dist += p.states
            self._nop(worst)
            self.out.append("    " + line)
            self.win.append(ins)
            if len(self.win) > 24: self.win = self.win[-24:]
    def text(self):
        return "\n".join(self.out) + "\n"

def vr(a, n=1, k="v"):
    return f"{k}{a}" if n == 1 else f"{k}[{a}:{a+n-1}]"
def ar(a, n=1): return vr(a, n, "a")
def sr(a, n=1): return vr(a, n, "s")
```

```python
import sys
from asmlib import *

NAME = "interleave_layers__sliding_block__glu_gated_glu__prompt"
KB = 1024
WQKV = 0x0000000; WO = 0x0200000; WGU = 0x0300000; WD = 0x0700000
XF = [0x0900000, 0x0B00000, 0x0D00000, 0x0F00000]
QKV = 0x1100000; OF = 0x1700000; HF = 0x1900000
ST = [0x2000000 + i * 0x40000 for i in range(4)]
TS = 0x3000000
WS_BYTES = 0x10000000
LOG2E = 1.4426950408889634
import struct
def f32(x): return "0x%08x" % struct.unpack("<I", struct.pack("<f", x))[0]

STAMP = False

class Kern:
    def __init__(self, name, nwg, threads, lds, vgpr=256):
        self.name = name; self.nwg = nwg; self.threads = threads; self.lds = lds; self.vgpr = vgpr
        self.a = Asm()
    def begin(self):
        a = self.a
        a.raw(f".globl {self.name}"); a.raw(".p2align 8"); a.raw(f".type {self.name},@function"); a.raw(f"{self.name}:")
        a(f"s_cmp_ge_u32 s2, {self.nwg}")
        a(f"s_cbranch_scc1 L_{self.name}_end")
        if STAMP: a("s_memrealtime s[96:97]")
    def end(self, kidx=None):
        a = self.a
        a.fence()
        a.raw(f"L_{self.name}_fin:")
        if STAMP:
            a("s_waitcnt vmcnt(0)")
            a("s_memrealtime s[98:99]")
            a("s_load_dword s94, s[0:1], 64")
            a("s_waitcnt lgkmcnt(0)")
            a("s_lshr_b32 s94, s94, 9"); a("s_and_b32 s94, s94, 31"); a("s_lshl_b32 s94, s94, 16")
            a("s_lshl_b32 s95, s2, 7"); a("s_add_u32 s94, s94, s95"); a(f"s_add_u32 s94, s94, {TS}")
            a("v_mov_b32 v2, s96"); a("v_mov_b32 v3, s98")
            a("v_lshrrev_b32 v4, 6, v0"); a("v_lshlrev_b32 v4, 3, v4")
            a("v_and_b32 v5, 63, v0"); a("v_cmp_eq_u32 vcc, 0, v5"); a("s_and_saveexec_b64 s[92:93], vcc")
            a("buffer_store_dwordx2 v[2:3], v4, s[8:11], s94 offen")
        a.raw(f"L_{self.name}_end:")
        a("s_endpgm")
    def desc(self):
        return f""".amdhsa_kernel {self.name}
  .amdhsa_next_free_vgpr {self.vgpr}
  .amdhsa_next_free_sgpr 102
  .amdhsa_accum_offset {(self.vgpr + 3) // 4 * 4}
  .amdhsa_group_segment_fixed_size 0
  .amdhsa_kernarg_size 80
  .amdhsa_user_sgpr_count 2
  .amdhsa_user_sgpr_kernarg_segment_ptr 1
  .amdhsa_system_sgpr_workgroup_id_x 1
.end_amdhsa_kernel
"""

def ws_srd(a):
    a("s_load_dwordx2 s[8:9], s[0:1], 72")
    a(f"s_mov_b32 s10, {WS_BYTES}"); a("s_mov_b32 s11, 0x20000")

def stats_store(a, d0, tmp, voff, soff, imm=0):
    a(f"v_mov_b32 v{tmp}, 0"); a(f"v_mov_b32 v{tmp+1}, 0")
    for i in range(8):
        a(f"v_dot2_f32_bf16 v{tmp}, v{d0+i}, s20, v{tmp}")
        a(f"v_dot2_f32_bf16 v{tmp+1}, v{d0+i}, v{d0+i}, v{tmp+1}")
    a("s_nop 2")
    a(f"v_permlane32_swap_b32 v{tmp}, v{tmp+1}")
    a("s_nop 1")
    a(f"v_add_f32 v{tmp}, v{tmp}, v{tmp+1}")
    a(f"buffer_store_dword v{tmp}, v{voff}, s[8:11], {soff} offen offset:{imm}")

def k_prep():
    k = Kern("prep_kernel", 304, 256, 4096, vgpr=96)
    a = k.a; k.begin()
    ws_srd(a)
    a("v_lshrrev_b32 v1, 6, v0"); a("v_and_b32 v2, 63, v0")
    a("v_readfirstlane_b32 s3, v1")
    a("s_mov_b32 s20, 0x3f803f80")
    a("s_cmp_ge_u32 s2, 240"); a("s_cbranch_scc1 L_prep_x")
    def sel(lo, karg, size, pitch, dst_base, dst_mul, g1s, aug, nxt, wd=False):
        a(f"s_sub_u32 s30, s2, {lo}")
        a(f"s_load_dwordx2 s[12:13], s[0:1], {karg}")
        a(f"s_mov_b32 s14, {size}"); a(f"s_mov_b32 s23, {pitch}")
        if not wd:
            a("s_lshl_b32 s24, s30, 6")
            a(f"s_mul_i32 s25, s30, {dst_mul}"); a(f"s_add_u32 s25, s25, {dst_base}")
            a("s_mov_b32 s28, 0")
        else:
            a("s_and_b32 s31, s30, 15"); a("s_lshr_b32 s28, s30, 4")
            a("s_lshl_b32 s24, s31, 6"); a(f"s_mul_i32 s30, s28, {512*pitch}"); a("s_add_u32 s24, s24, s30")
            a(f"s_mul_i32 s25, s31, {dst_mul}"); a(f"s_add_u32 s25, s25, {dst_base}")
            a("s_lshl_b32 s30, s28, 15"); a("s_add_u32 s25, s25, s30")
        a(f"s_mov_b32 s26, {g1s}"); a(f"s_mov_b32 s27, {aug}")
        a("s_branch L_prep_w")
    a("s_cmp_ge_u32 s2, 48"); a("s_cbranch_scc1 L_p1")
    sel(0, 8, 512*3072, 3072, WQKV, 33*KB, 256, 1, None)
    a("L_p1:"); a("s_cmp_ge_u32 s2, 104"); a("s_cbranch_scc1 L_p2")
    sel(48, 32, 512*3584, 3584, WGU, 66*KB, 33*KB, 1, None)
    a("L_p2:"); a("s_cmp_ge_u32 s2, 160"); a("s_cbranch_scc1 L_p3")
    sel(104, 40, 512*3584, 3584, WGU + 256, 66*KB, 33*KB, 1, None)
    a("L_p3:"); a("s_cmp_ge_u32 s2, 176"); a("s_cbranch_scc1 L_p4")
    sel(160, 16, 512*1024, 1024, WO, 32*KB, 256, 0, None)
    a("L_p4:")
    sel(176, 48, 1792*1024, 1024, WD, 112*KB, 256, 0, None, wd=True)
    a("L_prep_w:")
    a("s_mov_b32 s15, 0x20000")
    a("s_lshl_b32 s30, s28, 2"); a("s_add_u32 s30, s30, s3"); a("s_cmp_ge_u32 s30, 14"); a("s_cbranch_scc1 L_prep_kernel_fin")
    a("v_and_b32 v3, 3, v2"); a("v_lshrrev_b32 v4, 2, v2")
    a("s_lshl_b32 s30, s23, 3")
    a("v_mul_lo_u32 v5, v4, s30")
    a("v_lshl_add_u32 v5, v3, 4, v5")
    a("s_lshl_b32 s30, s23, 7"); a("s_mul_i32 s30, s30, s3"); a("s_add_u32 s24, s24, s30")
    a("s_waitcnt lgkmcnt(0)")
    for j in range(8):
        a(f"buffer_load_dwordx4 v[{16+4*j}:{19+4*j}], v5, s[12:15], s24 offen")
        if j < 7: a("s_add_u32 s24, s24, s23")
    a("v_lshrrev_b32 v6, 1, v3"); a("v_mul_lo_u32 v6, v6, s26")
    a("v_and_b32 v7, 1, v3"); a("v_lshl_add_u32 v6, v7, 6, v6")
    a("v_lshl_add_u32 v7, v4, 9, v6")
    a("s_lshl_b32 s30, s3, 13"); a("s_add_u32 s30, s30, s25")
    a("s_mov_b32 s32, 0x05040100"); a("s_mov_b32 s33, 0x07060302")
    a("s_waitcnt vmcnt(0)")
    for c in range(8):
        for p in range(4):
            lo = 16 + 4 * (2 * p) + c // 2; hi = 16 + 4 * (2 * p + 1) + c // 2
            a(f"v_perm_b32 v{48+4*c+p}, v{hi}, v{lo}, s{32 + (c & 1)}")
        a(f"buffer_store_dwordx4 v[{48+4*c}:{51+4*c}], v7, s[8:11], s30 offen offset:{(c >> 2) * 128 + (c & 3) * 16}")
    a("s_cmp_eq_u32 s27, 0"); a("s_cbranch_scc1 L_prep_kernel_fin")
    for c in range(8): a(f"v_mov_b32 v{8+c}, 0")
    for p in range(4):
        for c in range(8):
            a(f"v_dot2_f32_bf16 v{8+c}, v{48+4*c+p}, s20, v{8+c}")
    a("s_nop 2")
    for sh in (4, 8):
        for c in range(8): a(f"v_add_f32_dpp v{16+c}, v{8+c}, v{8+c} row_ror:{sh} row_mask:0xf bank_mask:0xf")
        for c in range(8): a(f"v_mov_b32 v{8+c}, v{16+c}")
    a("v_lshrrev_b32 v24, 4, v0"); a("v_lshlrev_b32 v24, 7, v24"); a("v_lshl_add_u32 v24, v3, 5, v24")
    a("ds_write_b128 v24, v[8:11]"); a("ds_write_b128 v24, v[12:15] offset:16")
    a("s_waitcnt lgkmcnt(0)"); a("s_barrier")
    a("s_cmp_lg_u32 s3, 0"); a("s_cbranch_scc1 L_prep_kernel_fin")
    a("v_and_b32 v25, 31, v2"); a("v_lshlrev_b32 v24, 2, v25")
    for p in range(16): a(f"ds_read_b32 v{32+p}, v24 offset:{p*128}")
    a("s_waitcnt lgkmcnt(0)")
    for p in range(1, 16): a(f"v_add_f32 v32, v32, v{32+p}")
    a("v_cvt_pk_bf16_f32 v33, v32, v32"); a("v_and_b32 v33, 0xffff, v33")
    a("v_lshlrev_b32 v34, 16, v33"); a("v_sub_f32 v34, v32, v34")
    a("v_cvt_pk_bf16_f32 v36, v32, v34")
    a("v_mov_b32 v37, v33"); a("v_mov_b32 v38, 0"); a("v_mov_b32 v39, 0")
    a("v_cmp_gt_u32 vcc, 32, v2")
    a("v_cndmask_b32 v36, 0, v36, vcc"); a("v_cndmask_b32 v37, 0, v37, vcc")
    a("v_lshrrev_b32 v26, 4, v25"); a("v_mul_lo_u32 v26, v26, s26")
    a("v_bfe_u32 v27, v25, 3, 1"); a("v_lshl_add_u32 v26, v27, 6, v26")
    a("v_bfe_u32 v27, v25, 2, 1"); a("v_lshl_add_u32 v26, v27, 7, v26")
    a("v_and_b32 v27, 3, v25"); a("v_lshl_add_u32 v26, v27, 4, v26")
    a("v_lshrrev_b32 v27, 5, v2"); a("v_lshl_add_u32 v26, v27, 9, v26")
    a(f"s_add_u32 s30, s25, {32*KB}")
    a("buffer_store_dwordx4 v[36:39], v26, s[8:11], s30 offen")
    a("s_branch L_prep_kernel_fin")
    a("L_prep_x:")
    a("s_sub_u32 s30, s2, 240")
    a("s_load_dwordx2 s[12:13], s[0:1], 0"); a(f"s_mov_b32 s14, {2048*1024}"); a("s_mov_b32 s15, 0x20000")
    a("v_and_b32 v3, 31, v2"); a("v_lshrrev_b32 v4, 5, v2")
    a("v_lshlrev_b32 v5, 10, v3"); a("v_lshl_add_u32 v5, v4, 4, v5")
    a("s_lshl_b32 s24, s30, 15"); a("s_lshl_b32 s31, s3, 8"); a("s_add_u32 s24, s24, s31")
    a("s_waitcnt lgkmcnt(0)")
    for j in range(8): a(f"buffer_load_dwordx4 v[{16+4*j}:{19+4*j}], v5, s[12:15], s24 offen offset:{32*j}")
    a("v_lshlrev_b32 v6, 4, v2")
    a("s_lshl_b32 s25, s30, 15"); a("s_lshl_b32 s31, s3, 13"); a("s_add_u32 s25, s25, s31"); a(f"s_add_u32 s25, s25, {XF[0]}")
    a("s_add_u32 s26, s25, 4096")
    a("v_lshlrev_b32 v7, 11, v4"); a("v_lshl_add_u32 v7, v3, 6, v7")
    a("s_lshl_b32 s27, s30, 12"); a("s_lshl_b32 s31, s3, 4"); a("s_add_u32 s27, s27, s31"); a(f"s_add_u32 s27, s27, {ST[0]}")
    a("s_waitcnt vmcnt(0)")
    for j in range(8): a(f"buffer_store_dwordx4 v[{16+4*j}:{19+4*j}], v6, s[8:11], s{25 + j // 4} offen offset:{1024*(j%4)}")
    for c in range(4): stats_store(a, 16 + 8 * c, 48 + 2 * c, 7, "s27", 4 * c)
    k.end()
    return k

class Engine:
    def __init__(self, a, tag, groups, stages, RG):
        self.a = a; self.tag = tag; self.groups = groups; self.stages = stages; self.RG = RG
        assert sum(stages) == len(groups)
        self.lds = []; pos = 0
        self.ringidx = []
        for g in groups:
            if g[2] is None:
                self.lds.append((pos % RG) * 4096); self.ringidx.append(pos); pos += 1
            else:
                self.lds.append(g[2]); self.ringidx.append(None)
        self.stage_of = []
        for s, n in enumerate(stages): self.stage_of += [s] * n
        self.end = [sum(stages[:s + 1]) for s in range(len(stages))]
    def loader(self, vlane16, sj1024, flags=""):
        a = self.a; G = len(self.groups); issued = 0
        ring_to_group = {r: i for i, r in enumerate(self.ringidx) if r is not None}
        def can(i, free_stage):
            r = self.ringidx[i]
            if r is None or r < self.RG: return True
            return self.stage_of[ring_to_group[r - self.RG]] <= free_stage
        def issue(free_stage):
            nonlocal issued
            while issued < G and can(issued, free_stage):
                sb, c, _ = self.groups[issued]
                a(f"s_add_u32 s40, {sb}, {c}")
                a(f"s_add_u32 m0, {sj1024}, {self.lds[issued]}")
                a(f"buffer_load_dwordx4 v{vlane16}, s[8:11], s40 offen{flags} lds")
                issued += 1
        issue(-1)
        for k in range(len(self.stages)):
            n = issued - self.end[k]
            assert 0 <= n <= 63, n
            a(f"s_waitcnt vmcnt({n})")
            a("s_barrier")
            issue(k - 2)
        assert issued == G
    def compute(self, reads, mfmas, look=6, fill=None, hooks=None):
        a = self.a; nr = 0; bar = -1
        def issue_read():
            nonlocal nr, bar
            d, fam, off, st = reads[nr]
            while bar < st:
                a("s_barrier"); bar += 1
            a(f"ds_read_b128 v[{d}:{d+3}], v{fam[off >> 16]} offset:{off & 0xffff}")
            nr += 1
        waited = -1
        for i, (txt, needr) in enumerate(mfmas):
            while nr < len(reads) and nr <= needr + (look if i == 0 else 0): issue_read()
            if hooks and i in hooks: hooks[i]()
            if needr > waited:
                n = nr - 1 - needr
                assert n <= 15
                a(f"s_waitcnt lgkmcnt({n})"); waited = needr
            a(txt)
            nxt = mfmas[i + 1][1] if i + 1 < len(mfmas) else needr
            while nr < len(reads) and nr <= nxt + look: issue_read()
            if fill:
                for f in fill(i): a(f)
        while bar < len(self.stages) - 1:
            a("s_barrier"); bar += 1

def fam(a, base, src):
    a(f"v_mov_b32 v{base}, v{src}") if base != src else None
    a(f"v_add_u32 v{base+1}, 0x10000, v{src}"); a(f"v_add_u32 v{base+2}, 0x20000, v{src}")
    return [base, base + 1, base + 2]

def ln_stats_load(a, st_off, s_mt, d, vtmp):
    a(f"v_lshlrev_b32 v{vtmp}, 6, v2")
    a(f"s_lshl_b32 s41, {s_mt}, 12"); a(f"s_add_u32 s41, s41, {st_off}")
    for i in range(4): a(f"buffer_load_dwordx4 v[{d+4*i}:{d+4*i+3}], v{vtmp}, s[8:11], s41 offen offset:{16*i}")

def ln_stats_calc(a, d, vrstd, vstd, vaug):
    a("s_waitcnt vmcnt(0)")
    for n in (8, 4, 2, 1):
        for i in range(n): a(f"v_add_f32 v{d+i}, v{d+i}, v{d+i+n}")
    a(f"v_mov_b32 v{d+1}, v{d}")
    a(f"v_permlane32_swap_b32 v{d}, v{d+1}")
    a("s_nop 1")
    a(f"v_mul_f32 v{d}, {f32(-1.0/512)}, v{d}")
    a(f"v_mul_f32 v{d+1}, {f32(1.0/512)}, v{d+1}")
    a(f"v_fma_f32 v{d+1}, -v{d}, v{d}, v{d+1}")
    a(f"v_max_f32 v{d+1}, 0, v{d+1}")
    a(f"v_add_f32 v{d+1}, {f32(1e-5)}, v{d+1}")
    a(f"v_rsq_f32 v{vrstd}, v{d+1}")
    a(f"v_sqrt_f32 v{vstd}, v{d+1}")
    a(f"v_cvt_pk_bf16_f32 v{vaug}, v{d}, v{d}")
    a(f"v_and_b32 v{d+2}, 0xffff0000, v{vaug}"); a(f"v_sub_f32 v{d+2}, v{d}, v{d+2}")
    a(f"v_mov_b32 v{d+3}, 0")
    a(f"v_cvt_pk_bf16_f32 v{vaug+1}, v{d+2}, v{d+3}")
    a(f"v_mov_b32 v{vaug+2}, 0"); a(f"v_mov_b32 v{vaug+3}, 0")

def common(a):
    ws_srd(a)
    a("v_lshrrev_b32 v1, 6, v0"); a("v_and_b32 v2, 63, v0")
    a("v_readfirstlane_b32 s3, v1")
    a("v_lshlrev_b32 v3, 4, v2")
    a("s_and_b32 s4, s2, 7"); a("s_lshr_b32 s5, s2, 3")
    a("s_and_b32 s6, s3, 3")

MF = "v_mfma_f32_32x32x16_bf16"

def k_ln_gemm(name, kind, xin, stin):
    NT = 3 if kind == "qkv" else 7
    WB = WQKV if kind == "qkv" else WGU
    RG = 36; AUG = RG * 4096
    k = Kern(name, 256, 512, AUG + 8192)
    a = k.a; k.begin(); common(a)
    a("s_lshl_b32 s12, s4, 3"); a("s_lshr_b32 s13, s5, 4"); a("s_lshl_b32 s13, s13, 2"); a("s_add_u32 s12, s12, s13")
    a("s_add_u32 s12, s12, s6")
    a("s_and_b32 s13, s5, 15")
    groups = []; stages = []
    P1 = 3
    for s in range(8):
        for t in range(P1): groups.append(("s21", t * 33 * KB + s * 4 * KB, None))
        for q in range(4): groups.append(("s20", (4 * s + q) * KB, None))
        n = 7
        if s == 7:
            groups.append(("s22", 0, AUG)); n += 1
            if NT > 4: groups.append(("s23", 0, AUG + 4096)); n += 1
        stages.append(n)
    for t in range(P1, NT):
        for s in range(2):
            for q in range(4): groups.append(("s21", t * 33 * KB + (s * 16 + q * 4) * KB, None))
            stages.append(4)
    eng = Engine(a, name, groups, stages, RG)
    a("s_cmp_lt_u32 s3, 4"); a(f"s_cbranch_scc1 L_{name}_comp")
    a("s_lshl_b32 s20, s12, 15"); a(f"s_add_u32 s20, s20, {xin}")
    a(f"s_mul_i32 s21, s13, {NT*33*KB}"); a(f"s_add_u32 s21, s21, {WB}")
    a("s_lshl_b32 s24, s6, 10")
    a(f"s_min_u32 s25, s6, {NT-1}"); a(f"s_mul_i32 s22, s25, {33*KB}"); a("s_add_u32 s22, s22, s21"); a(f"s_add_u32 s22, s22, {32*KB}")
    a("s_add_u32 s25, s6, 4"); a(f"s_min_u32 s25, s25, {NT-1}"); a(f"s_mul_i32 s23, s25, {33*KB}"); a("s_add_u32 s23, s23, s21"); a(f"s_add_u32 s23, s23, {32*KB}")
    a("s_add_u32 s21, s21, s24")
    a("s_waitcnt lgkmcnt(0)")
    eng.loader(3, "s24")
    a(f"s_branch L_{name}_fin")
    a(f"L_{name}_comp:")
    famc = fam(a, 4, 3)
    a("s_lshl_b32 s24, s6, 10"); a("v_add_u32 v7, s24, v3")
    famo = fam(a, 7, 7)
    a("s_waitcnt lgkmcnt(0)")
    STD = 16; VR = 10; VS = 11; VAUG = 12
    ln_stats_load(a, stin, "s12", STD, 32)
    XR = 128
    WR = 96; NW = 8
    ACC = [48, 64, 80]
    reads = []; mf = []; wi = 0
    gi = 0
    hooks = {}
    def wreg():
        nonlocal wi
        r = WR + 4 * (wi % NW); wi += 1; return r
    for s in range(8):
        g0 = sum(stages[:s])
        for q in range(4):
            kc = 4 * s + q
            xr = XR + 4 * kc
            reads.append((xr, famo, eng.lds[g0 + P1 + q], s))
            for t in range(P1):
                w = wreg()
                reads.append((w, famc, eng.lds[g0 + t] + q * KB, s))
                c = "0" if kc == 0 else vr(ACC[t], 16)
                mf.append((f"{MF} {vr(ACC[t],16)}, {vr(w,4)}, {vr(xr,4)}, {c}", len(reads) - 1))
    hooks[len(mf) - 12] = lambda: ln_stats_calc(a, STD, VR, VS, VAUG)
    for t in range(P1):
        w = wreg(); reads.append((w, famc, AUG + t * KB, 7))
        mf.append((f"{MF} {vr(ACC[t],16)}, {vr(w,4)}, {vr(VAUG,4)}, {vr(ACC[t],16)}", len(reads) - 1))
    done_at = {t: len(mf) - P1 + t for t in range(P1)}
    if kind == "qkv":
        eng.compute(reads, mf, look=6, hooks=hooks)
        a("s_mul_i32 s26, s13, 3")
        a("s_lshl_b32 s27, s12, 10"); a(f"s_add_u32 s27, s27, {QKV}")
        for t in range(3):
            a(f"s_add_u32 s28, s26, {t}")
            a("s_cmp_lt_u32 s28, 16"); a(f"s_cselect_b32 s29, {f32(0.25*LOG2E)}, 1.0")
            a(f"v_mul_f32 v32, s29, v{VR}")
            a("s_lshl_b32 s28, s28, 17"); a("s_add_u32 s28, s28, s27"); a("s_add_u32 s30, s28, 0x10000")
            for r in range(16): a(f"v_mul_f32 v{ACC[t]+r}, v32, v{ACC[t]+r}")
            for r in range(8): a(f"v_cvt_pk_bf16_f32 v{ACC[t]+r}, v{ACC[t]+2*r}, v{ACC[t]+2*r+1}")
            a(f"buffer_store_dwordx4 {vr(ACC[t],4)}, v3, s[8:11], s28 offen")
            a(f"buffer_store_dwordx4 {vr(ACC[t]+4,4)}, v3, s[8:11], s30 offen")
    else:
        ACC4 = ACC + [32]
        accof = {0: 48, 1: 64, 2: 80, 3: 32, 4: 48, 5: 64, 6: 80}
        st = 8
        start_at = {}
        for t in range(P1, NT):
            start_at[t] = len(mf)
            for s in range(2):
                g0 = sum(stages[:st])
                for q in range(16):
                    kc = 16 * s + q
                    w = wreg(); reads.append((w, famc, eng.lds[g0 + q // 4] + (q % 4) * KB, st))
                    c = "0" if kc == 0 else vr(accof[t], 16)
                    mf.append((f"{MF} {vr(accof[t],16)}, {vr(w,4)}, {vr(XR+4*kc,4)}, {c}", len(reads) - 1))
                st += 1
            w = wreg(); reads.append((w, famc, AUG + t * KB, st - 1))
            mf.append((f"{MF} {vr(accof[t],16)}, {vr(w,4)}, {vr(VAUG,4)}, {vr(accof[t],16)}", len(reads) - 1))
            done_at[t] = len(mf) - 1
        VC = 16
        def epi(t):
            A0 = accof[t]; L = []
            if t == 0:
                L.append(f"v_mul_f32 v{VC}, {f32(-LOG2E)}, v{VR}")
                L.append(f"s_mul_i32 s27, s12, {112*KB}"); L.append(f"s_mul_i32 s26, s13, {7*KB}"); L.append("s_add_u32 s27, s27, s26"); L.append(f"s_add_u32 s27, s27, {HF}")
            for r in range(8): L.append(f"v_mul_f32 v{A0+r}, v{VC}, v{A0+r}")
            for r in range(8): L.append(f"v_exp_f32 v{A0+r}, v{A0+r}")
            for r in range(8): L.append(f"v_fma_f32 v{A0+r}, v{A0+r}, v{VS}, v{VS}")
            for r in range(8): L.append(f"v_rcp_f32 v{A0+r}, v{A0+r}")
            for r in range(8): L.append(f"v_mul_f32 v{A0+r}, v{A0+r}, v{A0+8+r}")
            o = 20 + 4 * (t % 2)
            for r in range(4): L.append(f"v_cvt_pk_bf16_f32 v{o+r}, v{A0+2*r}, v{A0+2*r+1}")
            L.append(f"s_add_u32 s28, s27, {t*KB}")
            L.append(f"buffer_store_dwordx4 {vr(o,4)}, v3, s[8:11], s28 offen")
            return L
        queue = []
        def fill(i):
            for t in range(NT):
                if done_at[t] + 1 == i: queue.extend((x, t) for x in epi(t))
            out = []
            n = 4
            for t2, sidx in start_at.items():
                if sidx == i + 1 and t2 >= 4:
                    while queue and queue[0][1] <= t2 - 4: out.append(queue.pop(0)[0])
            cost = 0
            while queue and cost < 5:
                x = queue.pop(0)[0]; out.append(x); cost += 2 if x.startswith(("v_exp", "v_rcp")) else 1
            return out
        eng.compute(reads, mf, look=6, fill=fill, hooks=hooks)
        for x, _ in queue: a(x)
        for x in epi(NT - 1): a(x)
    k.end()
    return k

def k_res_gemm(name, ain, KC, wb, xin, xout, stout, final=False):
    RG = 36
    k = Kern(name, 256, 512, RG * 4096)
    a = k.a; k.begin(); common(a)
    if final:
        a("s_load_dwordx2 s[16:17], s[0:1], 56"); a(f"s_mov_b32 s18, {2048*1024}"); a("s_mov_b32 s19, 0x20000")
    a("s_lshl_b32 s12, s4, 3"); a("s_lshr_b32 s13, s5, 3"); a("s_lshl_b32 s13, s13, 1"); a("s_add_u32 s12, s12, s13")
    a("s_and_b32 s13, s5, 7"); a("s_lshl_b32 s13, s13, 1")
    groups = [("s21", kc * KB, None) for kc in range(KC)]
    stages = [4] * (KC // 4)
    eng = Engine(a, name, groups, stages, RG)
    a("s_cmp_lt_u32 s3, 4"); a(f"s_cbranch_scc1 L_{name}_comp")
    a("s_and_b32 s22, s6, 1")
    a("s_add_u32 s23, s12, s22"); a(f"s_mul_i32 s23, s23, {KC*KB}"); a(f"s_add_u32 s23, s23, {ain}")
    a("s_add_u32 s25, s13, s22"); a(f"s_mul_i32 s25, s25, {KC*KB}"); a(f"s_add_u32 s25, s25, {wb}")
    a("s_cmp_lt_u32 s6, 2"); a("s_cselect_b32 s21, s23, s25")
    a("s_lshl_b32 s24, s6, 10")
    a("s_waitcnt lgkmcnt(0)")
    eng.loader(3, "s24")
    a(f"s_branch L_{name}_fin")
    a(f"L_{name}_comp:")
    a("s_lshr_b32 s22, s6, 1"); a("s_and_b32 s23, s6, 1")
    a("s_add_u32 s12, s12, s22"); a("s_add_u32 s13, s13, s23")
    a("s_lshl_b32 s24, s22, 10"); a("v_add_u32 v4, s24, v3"); fa = fam(a, 4, 4)
    a("s_lshl_b32 s24, s23, 10"); a("s_add_u32 s24, s24, 2048"); a("v_add_u32 v7, s24, v3"); fw = fam(a, 7, 7)
    a("s_lshl_b32 s26, s12, 15"); a("s_lshl_b32 s27, s13, 11"); a("s_add_u32 s26, s26, s27")
    a(f"s_add_u32 s27, s26, {xin}")
    a("s_mov_b32 s20, 0x3f803f80")
    a("s_waitcnt lgkmcnt(0)")
    a("buffer_load_dwordx4 v[16:19], v3, s[8:11], s27 offen")
    a("buffer_load_dwordx4 v[20:23], v3, s[8:11], s27 offen offset:1024")
    ACC = 32
    a("s_waitcnt vmcnt(0)")
    for i in range(8):
        a(f"v_lshlrev_b32 v{ACC+2*i}, 16, v{16+i}"); a(f"v_and_b32 v{ACC+2*i+1}, 0xffff0000, v{16+i}")
    reads = []; mf = []
    for kc in range(KC):
        ra = 64 + 8 * (kc % 8); rw = ra + 4
        reads.append((ra, fa, eng.lds[kc], kc // 4)); reads.append((rw, fw, eng.lds[kc], kc // 4))
        mf.append((f"{MF} {vr(ACC,16)}, {vr(rw,4)}, {vr(ra,4)}, {vr(ACC,16)}", len(reads) - 1))
    eng.compute(reads, mf, look=8)
    for r in range(8): a(f"v_cvt_pk_bf16_f32 v{16+r}, v{ACC+2*r}, v{ACC+2*r+1}")
    if not final:
        a(f"s_add_u32 s27, s26, {xout}")
        a("buffer_store_dwordx4 v[16:19], v3, s[8:11], s27 offen")
        a("buffer_store_dwordx4 v[20:23], v3, s[8:11], s27 offen offset:1024")
        a("v_lshlrev_b32 v10, 6, v2")
        a("s_lshl_b32 s28, s12, 12"); a("s_lshl_b32 s29, s13, 2"); a("s_add_u32 s28, s28, s29"); a(f"s_add_u32 s28, s28, {stout}")
        stats_store(a, 16, 24, 10, "s28")
    else:
        a("v_and_b32 v10, 31, v2"); a("v_lshlrev_b32 v10, 10, v10"); a("v_lshrrev_b32 v11, 5, v2"); a("v_lshl_add_u32 v10, v11, 4, v10")
        a("s_lshl_b32 s28, s12, 15"); a("s_lshl_b32 s29, s13, 6"); a("s_add_u32 s28, s28, s29")
        a("buffer_store_dwordx4 v[16:19], v10, s[16:19], s28 offen")
        a("buffer_store_dwordx4 v[20:23], v10, s[16:19], s28 offen offset:32")
    k.end()
    return k

def k_attn(name):
    k = Kern(name, 256, 512, 33 * KB)
    a = k.a; k.begin(); common(a)
    KL = 0; VL = 16 * KB; ONES = 32 * KB
    a("s_lshl_b32 s12, s4, 3"); a("s_add_u32 s13, s12, s3")
    a("s_lshl_b32 s14, s5, 16"); a(f"s_add_u32 s14, s14, {QKV}")
    a("s_lshl_b32 s15, s13, 10"); a("s_add_u32 s15, s15, s14")
    a(f"s_add_u32 s16, s15, {32*64*KB}"); a(f"s_add_u32 s17, s15, {64*64*KB}")
    a("v_and_b32 v4, 1, v2"); a("v_lshlrev_b32 v4, 9, v4"); a("v_lshrrev_b32 v5, 1, v2"); a("v_lshl_add_u32 v4, v5, 4, v4")
    a("s_lshl_b32 s18, s3, 10")
    a("s_waitcnt lgkmcnt(0)")
    a("buffer_load_dwordx4 v[8:11], v3, s[8:11], s15 offen")
    a(f"s_add_u32 m0, s18, {KL + 8*KB}"); a("buffer_load_dwordx4 v3, s[8:11], s16 offen lds")
    a(f"s_add_u32 m0, s18, {VL + 8*KB}"); a("buffer_load_dwordx4 v4, s[8:11], s17 offen lds")
    a("s_cmp_eq_u32 s4, 0"); a(f"s_cbranch_scc1 L_{name}_nohalo")
    a(f"s_sub_u32 s16, s16, {8*KB}"); a(f"s_sub_u32 s17, s17, {8*KB}")
    a(f"s_add_u32 m0, s18, {KL}"); a("buffer_load_dwordx4 v3, s[8:11], s16 offen lds")
    a(f"s_add_u32 m0, s18, {VL}"); a("buffer_load_dwordx4 v4, s[8:11], s17 offen lds")
    a(f"L_{name}_nohalo:")
    a("v_mov_b32 v12, 0x3f803f80"); a("v_lshlrev_b32 v13, 2, v2")
    a(f"ds_write_b32 v13, v12 offset:{ONES}")
    a("v_and_b32 v14, 31, v2")
    a("v_lshrrev_b32 v15, 5, v2")
    a("v_and_b32 v5, 0x13, v14"); a("v_bfe_u32 v6, v14, 2, 1"); a("v_lshl_add_u32 v5, v6, 3, v5")
    a("v_bfe_u32 v6, v14, 3, 1"); a("v_lshl_add_u32 v5, v6, 2, v5")
    a("v_lshlrev_b32 v5, 4, v5"); a("v_lshl_add_u32 v5, v15, 9, v5"); a("v_add_u32 v5, s18, v5")
    a("v_bfe_u32 v6, v2, 2, 2"); a("v_lshl_add_u32 v6, v15, 3, v6"); a("v_lshlrev_b32 v6, 5, v6")
    a("v_and_b32 v7, 1, v2"); a("v_lshl_add_u32 v6, v7, 4, v6")
    a("v_bfe_u32 v7, v2, 1, 1"); a("v_lshl_add_u32 v6, v7, 3, v6")
    a(f"v_add_u32 v6, s18, v6")
    a("v_bfe_u32 v7, v2, 4, 1"); a("v_cmp_eq_u32 s[22:23], 1, v7")
    MD = 16; MO = 32; BM = 48
    a("v_lshlrev_b32 v7, 3, v15"); a("v_sub_u32 v7, v14, v7")
    a(f"v_mov_b32 v13, {f32(-1e30)}")
    for r in range(16):
        kk = 16 * (r >> 3) + (r & 7)
        a(f"v_cmp_le_i32 vcc, {kk}, v7")
        a(f"v_cndmask_b32 v{MD+r}, v13, 0, vcc") if False else None
        a(f"v_cndmask_b32_e64 v{MD+r}, v13, 0, vcc"); a(f"v_cndmask_b32_e64 v{MO+r}, 0, v13, vcc")
    a("s_waitcnt vmcnt(0) lgkmcnt(0)")
    a("s_barrier")
    a("s_sub_i32 s24, 8, s13")
    KF = 64
    for i in range(9): a(f"ds_read_b128 {vr(KF+4*i,4)}, v5 offset:{KL + i*KB}")
    S = [112, 128]
    MX = 12
    a("s_waitcnt lgkmcnt(0)")
    order = [8] + list(range(8))
    first = True
    for n, i in enumerate(order):
        sb = S[n % 2]
        if i != 8:
            a.fence()
            a(f"s_cmp_gt_i32 s24, {i}"); a(f"s_cbranch_scc1 L_{name}_p1_{i}")
        c = vr(MD, 16) if i == 8 else vr(MO, 16) if i == 0 else "0"
        a(f"{MF} {vr(sb,16)}, {vr(KF+4*i,4)}, v[8:11], {c}")
        if first:
            a(f"v_max3_f32 v{MX}, v{sb}, v{sb+1}, v{sb+2}"); a(f"v_max_f32 v{MX}, v{MX}, v{sb+3}"); rr = 4; first = False
        else: rr = 0
        for r in range(rr, 16, 2): a(f"v_max3_f32 v{MX}, v{MX}, v{sb+r}, v{sb+r+1}")
        if i != 8:
            a.fence()
            a(f"L_{name}_p1_{i}:")
    a(f"v_mov_b32 v13, v{MX}")
    a(f"v_permlane32_swap_b32 v{MX}, v13"); a("s_nop 1")
    a(f"v_max_f32 v{MX}, v{MX}, v13")
    NM = 144
    for r in range(16): a(f"v_sub_f32 v{NM+r}, 0, v{MX}")
    for r in range(16): a(f"v_sub_f32 v{MD+r}, v{MD+r}, v{MX}"); a(f"v_sub_f32 v{MO+r}, v{MO+r}, v{MX}")
    O = 160
    for r in range(16): a(f"v_mov_b32 v{O+r}, 0")
    VF = 176; P = 184
    a("v_mov_b32 v13, 0x3f803f80")
    for n, i in enumerate(order):
        sb = S[n % 2]
        if i != 8:
            a.fence()
            a(f"s_cmp_gt_i32 s24, {i}"); a(f"s_cbranch_scc1 L_{name}_p2_{i}")
        for t in range(2):
            for u in range(2):
                a(f"ds_read_b64_tr_b16 {vr(VF+4*t+2*u,2)}, v6 offset:{VL + i*KB + t*512 + u*128}")
        c = vr(MD, 16) if i == 8 else vr(MO, 16) if i == 0 else vr(NM, 16)
        a(f"{MF} {vr(sb,16)}, {vr(KF+4*i,4)}, v[8:11], {c}")
        for r in range(16): a(f"v_exp_f32 v{sb+r}, v{sb+r}")
        for r in range(8): a(f"v_cvt_pk_bf16_f32 v{P+r}, v{sb+2*r}, v{sb+2*r+1}")
        a("s_waitcnt lgkmcnt(0)")
        for r in range(8): a(f"v_cndmask_b32_e64 v{VF+r}, v{VF+r}, v13, s[22:23]")
        for t in range(2):
            a(f"{MF} {vr(O,16)}, {vr(VF+4*t,4)}, {vr(P+4*t,4)}, {vr(O,16)}")
        if i != 8:
            a.fence()
            a(f"L_{name}_p2_{i}:")
    a(f"v_rcp_f32 v12, v{O+8}")
    for r in range(8): a(f"v_mul_f32 v{O+r}, v12, v{O+r}")
    for r in range(4): a(f"v_cvt_pk_bf16_f32 v{O+r}, v{O+2*r}, v{O+2*r+1}")
    a("s_lshl_b32 s26, s13, 15"); a("s_lshl_b32 s27, s5, 10"); a("s_add_u32 s26, s26, s27"); a(f"s_add_u32 s26, s26, {OF}")
    a(f"buffer_store_dwordx4 {vr(O,4)}, v3, s[8:11], s26 offen")
    k.end()
    return k

def build(extra_dummy=0):
    ks = {}
    seq = []
    def add(k):
        ks[k.name] = k; seq.append(k)
    add(k_prep())
    add(k_ln_gemm("qkv0_kernel", "qkv", XF[0], ST[0]))
    at = k_attn("attn_kernel"); add(at)
    add(k_res_gemm("wo0_kernel", OF, 32, WO, XF[0], XF[1], ST[1]))
    add(k_ln_gemm("gu0_kernel", "gu", XF[1], ST[1]))
    add(k_res_gemm("dn0_kernel", HF, 112, WD, XF[1], XF[2], ST[2]))
    add(k_ln_gemm("qkv1_kernel", "qkv", XF[2], ST[2]))
    seq.append(at)
    add(k_res_gemm("wo1_kernel", OF, 32, WO, XF[2], XF[3], ST[3]))
    add(k_ln_gemm("gu1_kernel", "gu", XF[3], ST[3]))
    add(k_res_gemm("dn1_kernel", HF, 112, WD, XF[3], None, None, final=True))
    if extra_dummy:
        d = Kern("dummy_kernel", 256, 64, 0, vgpr=8); d.begin(); ws_srd(d.a); d.a("s_waitcnt lgkmcnt(0)"); d.end()
        ks[d.name] = d
        seq += [d] * extra_dummy
    out = []
    for k in seq:
        out.append(f"; @launch kernel={k.name} grid=({k.nwg},1,1) block=({k.threads},1,1) lds={k.lds}")
    out.append('.amdgcn_target "amdgcn-amd-amdhsa--gfx950"'); out.append(".text")
    for k in ks.values(): out.append(k.a.text())
    out.append('.section .rodata,"a"')
    for k in ks.values(): out.append(".p2align 6"); out.append(k.desc())
    return "\n".join(out)

if __name__ == "__main__":
    outp = sys.argv[1]
    STAMP = "stamp" in sys.argv[2:]
    nd = [int(x[5:]) for x in sys.argv[2:] if x.startswith("dummy")]
    open(outp, "w").write(build(nd[0] if nd else 0))
```

```python
import sys, struct
from asmlib import *

KB = 1024
WQKV = 0x0000000
WO   = 0x0200000
WGU  = 0x0300000
WD   = 0x0700000
AUGQ = 0x0900000
AUGG = 0x0904000
FL   = 0x0910000
KVFL = 0x0914000
X0   = 0x0A00000; ST0 = 0x0C00000
XA   = 0x1000000
XB   = 0x1200000
STA  = 0x1400000; STB = 0x1440000
OF   = 0x1500000
HF   = 0x1700000
KV   = 0x1E00000
ITS  = 0x1400000
TS   = 0x6000000
WS_BYTES = 0x10000000
LOG2E = 1.4426950408889634
def f32(x): return "0x%08x" % struct.unpack("<I", struct.pack("<f", x))[0]
MF = "v_mfma_f32_32x32x16_bf16"
OPT = dict(stamp=False, force_slow=False, spin=200000, pre=10, cprio=2, hprio=0, nt=0, late_touch=0, fine=0)

class Kern:
    def __init__(self, name, nwg, threads, lds, vgpr=256):
        self.name = name; self.nwg = nwg; self.threads = threads; self.lds = lds; self.vgpr = vgpr
        self.a = Asm(); self.nl = 0
    def lab(self, p="L"):
        self.nl += 1; return f"{p}_{self.name}_{self.nl}"
    def begin(self):
        a = self.a
        a.raw(f".globl {self.name}"); a.raw(".p2align 8"); a.raw(f".type {self.name},@function"); a.raw(f"{self.name}:")
        a(f"s_cmp_ge_u32 s2, {self.nwg}")
        a(f"s_cbranch_scc1 L_{self.name}_end")
    def end(self):
        a = self.a
        a.raw(f"L_{self.name}_end:")
        a("s_endpgm")
    def desc(self):
        return f""".amdhsa_kernel {self.name}
  .amdhsa_next_free_vgpr {self.vgpr}
  .amdhsa_next_free_sgpr 102
  .amdhsa_accum_offset {(self.vgpr + 3) // 4 * 4}
  .amdhsa_group_segment_fixed_size 0
  .amdhsa_kernarg_size 80
  .amdhsa_user_sgpr_count 2
  .amdhsa_user_sgpr_kernarg_segment_ptr 1
  .amdhsa_system_sgpr_workgroup_id_x 1
.end_amdhsa_kernel
"""

def ws_srd(a):
    a("s_load_dwordx2 s[8:9], s[0:1], 72")
    a(f"s_mov_b32 s10, {WS_BYTES}"); a("s_mov_b32 s11, 0x20000")

def stats_calc_list(d0, tmp):
    L = [f"v_mov_b32 v{tmp}, 0", f"v_mov_b32 v{tmp+1}, 0"]
    for i in range(8):
        L.append(f"v_dot2_f32_bf16 v{tmp}, v{d0+i}, s20, v{tmp}")
        L.append(f"v_dot2_f32_bf16 v{tmp+1}, v{d0+i}, v{d0+i}, v{tmp+1}")
    L += ["s_nop 2", f"v_permlane32_swap_b32 v{tmp}, v{tmp+1}", "s_nop 1", f"v_add_f32 v{tmp}, v{tmp}, v{tmp+1}"]
    return L

def k_prep():
    k = Kern("prep_kernel", 304, 256, 4096, vgpr=96)
    a = k.a; k.begin()
    ws_srd(a)
    a("v_lshrrev_b32 v1, 6, v0"); a("v_and_b32 v2, 63, v0")
    a("v_readfirstlane_b32 s3, v1")
    a("s_mov_b32 s20, 0x3f803f80")
    a("v_and_b32 v3, 3, v2"); a("v_lshrrev_b32 v4, 2, v2")
    a("s_cmp_ge_u32 s2, 240"); a("s_cbranch_scc1 L_prep_x")
    a("v_lshrrev_b32 v9, 1, v4"); a("s_lshl_b32 s30, s3, 3"); a("v_add_u32 v9, s30, v9")
    a("v_and_b32 v10, 1, v4"); a("v_lshlrev_b32 v10, 9, v10")
    def plain(lo, karg, size, pitch, dst_base, dst_mul, g1s, aug, augmul, augg1):
        a(f"s_sub_u32 s30, s2, {lo}")
        a(f"s_load_dwordx2 s[12:13], s[0:1], {karg}")
        a(f"s_mov_b32 s14, {size}"); a(f"s_mov_b32 s23, {pitch}")
        a("s_lshl_b32 s24, s30, 6")
        a(f"s_mul_i32 s25, s30, {dst_mul}"); a(f"s_add_u32 s25, s25, {dst_base}")
        a(f"s_mov_b32 s26, {g1s}")
        a(f"s_mul_i32 s27, s30, {augmul}"); a(f"s_add_u32 s27, s27, {aug}"); a(f"s_mov_b32 s29, {augg1}")
        a("v_lshl_add_u32 v8, v9, 10, v10")
        a("s_branch L_prep_w")
    a("s_cmp_ge_u32 s2, 48"); a("s_cbranch_scc1 L_p1")
    plain(0, 8, 512*3072, 3072, WQKV, 32*KB, 256, AUGQ, 256, 128)
    a("L_p1:"); a("s_cmp_ge_u32 s2, 104"); a("s_cbranch_scc1 L_p2")
    plain(48, 32, 512*3584, 3584, WGU, 64*KB, 32*KB, AUGG, 512, 256)
    a("L_p2:"); a("s_cmp_ge_u32 s2, 160"); a("s_cbranch_scc1 L_p3")
    plain(104, 40, 512*3584, 3584, WGU + 256, 64*KB, 32*KB, AUGG + 128, 512, 256)
    a("L_p3:"); a("s_cmp_ge_u32 s2, 176"); a("s_cbranch_scc1 L_p4")
    a("s_sub_u32 s30, s2, 160")
    a("s_load_dwordx2 s[12:13], s[0:1], 16"); a(f"s_mov_b32 s14, {512*1024}"); a("s_mov_b32 s23, 1024")
    a("s_lshl_b32 s24, s30, 6")
    a("s_lshr_b32 s25, s30, 1"); a("s_lshl_b32 s25, s25, 16"); a("s_and_b32 s31, s30, 1"); a("s_lshl_b32 s31, s31, 10"); a("s_add_u32 s25, s25, s31"); a(f"s_add_u32 s25, s25, {WO}")
    a("s_mov_b32 s26, 256"); a("s_mov_b32 s27, 0")
    a("v_and_b32 v8, 15, v9"); a("v_lshl_add_u32 v8, v8, 12, v10"); a("v_lshrrev_b32 v11, 4, v9"); a("v_lshl_add_u32 v8, v11, 11, v8")
    a("s_branch L_prep_w")
    a("L_p4:")
    a("s_sub_u32 s30, s2, 176")
    a("s_load_dwordx2 s[12:13], s[0:1], 48"); a(f"s_mov_b32 s14, {1792*1024}"); a("s_mov_b32 s23, 1024")
    a("s_and_b32 s31, s30, 15"); a("s_lshr_b32 s28, s30, 4")
    a("s_lshl_b32 s30, s28, 2"); a("s_add_u32 s30, s30, s3"); a("s_cmp_ge_u32 s30, 14"); a("s_cbranch_scc1 L_prep_kernel_end")
    a("s_lshl_b32 s24, s31, 6"); a("s_lshl_b32 s30, s28, 19"); a("s_add_u32 s24, s24, s30")
    a("s_lshr_b32 s25, s31, 1"); a(f"s_mul_i32 s25, s25, {224*KB}"); a("s_and_b32 s31, s31, 1"); a("s_lshl_b32 s31, s31, 10"); a("s_add_u32 s25, s25, s31"); a(f"s_add_u32 s25, s25, {WD}")
    a("s_mov_b32 s26, 256"); a("s_mov_b32 s27, 0")
    a("s_lshl_b32 s30, s28, 5"); a("v_add_u32 v9, s30, v9")
    a("v_mul_u32_u24 v11, 37, v9"); a("v_lshrrev_b32 v11, 8, v11")
    a("v_mul_u32_u24 v12, 7, v11"); a("v_sub_u32 v12, v9, v12")
    a("v_cmp_gt_i32 vcc, 0, v12"); a("v_subbrev_co_u32 v11, vcc, 0, v11, vcc")
    a("v_mul_u32_u24 v12, 7, v11"); a("v_sub_u32 v12, v9, v12")
    a("v_and_b32 v13, 7, v11"); a("v_lshl_add_u32 v13, v12, 3, v13")
    a("v_lshl_add_u32 v8, v13, 12, v10"); a("v_lshrrev_b32 v11, 3, v11"); a("v_lshl_add_u32 v8, v11, 11, v8")
    a("L_prep_w:")
    a("s_mov_b32 s15, 0x20000")
    a("s_lshl_b32 s30, s23, 3")
    a("v_mul_lo_u32 v5, v4, s30")
    a("v_lshl_add_u32 v5, v3, 4, v5")
    a("s_lshl_b32 s30, s23, 7"); a("s_mul_i32 s30, s30, s3"); a("s_add_u32 s24, s24, s30")
    a("s_waitcnt lgkmcnt(0)")
    for j in range(8):
        a(f"buffer_load_dwordx4 v[{16+4*j}:{19+4*j}], v5, s[12:15], s24 offen")
        if j < 7: a("s_add_u32 s24, s24, s23")
    a("v_lshrrev_b32 v6, 1, v3"); a("v_mul_lo_u32 v6, v6, s26")
    a("v_and_b32 v7, 1, v3"); a("v_lshl_add_u32 v6, v7, 6, v6")
    a("v_add_u32 v7, v8, v6")
    a("s_mov_b32 s32, 0x05040100"); a("s_mov_b32 s33, 0x07060302")
    a("s_waitcnt vmcnt(0)")
    for c in range(8):
        for p in range(4):
            lo = 16 + 4 * (2 * p) + c // 2; hi = 16 + 4 * (2 * p + 1) + c // 2
            a(f"v_perm_b32 v{48+4*c+p}, v{hi}, v{lo}, s{32 + (c & 1)}")
        a(f"buffer_store_dwordx4 v[{48+4*c}:{51+4*c}], v7, s[8:11], s25 offen offset:{(c >> 2) * 128 + (c & 3) * 16}")
    a("s_cmp_eq_u32 s27, 0"); a("s_cbranch_scc1 L_prep_kernel_end")
    for c in range(8): a(f"v_mov_b32 v{8+c}, 0")
    for p in range(4):
        for c in range(8):
            a(f"v_dot2_f32_bf16 v{8+c}, v{48+4*c+p}, s20, v{8+c}")
    a("s_nop 2")
    for sh in (4, 8):
        for c in range(8): a(f"v_add_f32_dpp v{16+c}, v{8+c}, v{8+c} row_ror:{sh} row_mask:0xf bank_mask:0xf")
        for c in range(8): a(f"v_mov_b32 v{8+c}, v{16+c}")
    a("v_lshrrev_b32 v24, 4, v0"); a("v_lshlrev_b32 v24, 7, v24"); a("v_lshl_add_u32 v24, v3, 5, v24")
    a("ds_write_b128 v24, v[8:11]"); a("ds_write_b128 v24, v[12:15] offset:16")
    a("s_waitcnt lgkmcnt(0)"); a("s_barrier")
    a("s_cmp_lg_u32 s3, 0"); a("s_cbranch_scc1 L_prep_kernel_end")
    a("v_and_b32 v25, 31, v2"); a("v_lshlrev_b32 v24, 2, v25")
    for p in range(16): a(f"ds_read_b32 v{32+p}, v24 offset:{p*128}")
    a("s_waitcnt lgkmcnt(0)")
    for p in range(1, 16): a(f"v_add_f32 v32, v32, v{32+p}")
    a("v_cvt_pk_bf16_f32 v33, v32, v32"); a("v_and_b32 v37, 0xffff, v33")
    a("v_lshlrev_b32 v34, 16, v33"); a("v_sub_f32 v34, v32, v34")
    a("v_cvt_pk_bf16_f32 v36, v32, v34")
    a("v_lshrrev_b32 v26, 4, v25"); a("v_mul_lo_u32 v26, v26, s29")
    a("v_bfe_u32 v27, v25, 3, 1"); a("v_lshl_add_u32 v26, v27, 5, v26")
    a("v_bfe_u32 v27, v25, 2, 1"); a("v_lshl_add_u32 v26, v27, 6, v26")
    a("v_and_b32 v27, 3, v25"); a("v_lshl_add_u32 v26, v27, 3, v26")
    a("buffer_store_dwordx2 v[36:37], v26, s[8:11], s27 offen")
    a("s_branch L_prep_kernel_end")
    a("L_prep_x:")
    a("s_sub_u32 s30, s2, 240")
    a("s_load_dwordx2 s[12:13], s[0:1], 0"); a(f"s_mov_b32 s14, {2048*1024}"); a("s_mov_b32 s15, 0x20000")
    a("v_and_b32 v3, 31, v2"); a("v_lshrrev_b32 v4, 5, v2")
    a("v_lshlrev_b32 v5, 10, v3"); a("v_lshl_add_u32 v5, v4, 4, v5")
    a("s_lshl_b32 s24, s30, 15"); a("s_lshl_b32 s31, s3, 8"); a("s_add_u32 s24, s24, s31")
    a("s_waitcnt lgkmcnt(0)")
    for j in range(8): a(f"buffer_load_dwordx4 v[{16+4*j}:{19+4*j}], v5, s[12:15], s24 offen offset:{32*j}")
    a("v_lshlrev_b32 v6, 2, v0"); a("v_mov_b32 v8, 0"); a("s_lshl_b32 s31, s30, 10"); a(f"s_add_u32 s31, s31, {FL}")
    a("buffer_store_dword v8, v6, s[8:11], s31 offen")
    a("v_lshlrev_b32 v6, 4, v2")
    a("s_lshl_b32 s25, s30, 15"); a("s_lshl_b32 s31, s3, 13"); a("s_add_u32 s25, s25, s31"); a(f"s_add_u32 s25, s25, {X0}")
    a("s_add_u32 s26, s25, 4096")
    a("v_lshlrev_b32 v7, 4, v2")
    a("s_lshl_b32 s27, s30, 12"); a("s_lshl_b32 s31, s3, 10"); a("s_add_u32 s27, s27, s31"); a(f"s_add_u32 s27, s27, {ST0}")
    a("s_waitcnt vmcnt(0)")
    for j in range(8): a(f"buffer_store_dwordx4 v[{16+4*j}:{19+4*j}], v6, s[8:11], s{25 + j // 4} offen offset:{1024*(j%4)}")
    for c in range(4):
        for x in stats_calc_list(16 + 8 * c, 48 + 2 * c): a(x)
        a(f"v_mov_b32 v{60+c}, v{48+2*c}")
    a("buffer_store_dwordx4 v[60:63], v7, s[8:11], s27 offen")
    k.end()
    return k

P1, P2, P3, P4, PE, MISC = 0, 32*KB, 64*KB, 96*KB, 128*KB, 156*KB
LK = 108*KB; LV = LK + 24*KB
L_AUG = MISC; L_ONES = MISC + 2560; L_MODE = MISC + 3328
XCH_WO = PE; XCH_DN = P4 + 16*KB
def wd_slot(s):
    s %= 15
    return PE + s*4*KB if s < 7 else P4 + (s-7)*4*KB
GU_REG = [P3, P4, P1, P2, P3, P4, P3]
STASH = 32

V_LANE16 = 3; V_F0 = 4
V_FW = 7
V_RSTD = 10; V_STD = 11; V_C1 = 12; V_TMP = 13; V_TS = 14; V_TS2 = 15
V_XAUG = 16; V_WAUG = 20
V_RES = 24
V_PX = 32; V_PO = 33; V_PH = 34; V_L64 = 35; V_AUGA = 36; V_T128 = 37; V_OUT = 38; V_KVW = 39
V_EP = 40
ACC = [48, 64, 80]
WR = 96; NW = 8
XR = 128

class Main:
    def __init__(self):
        self.k = Kern("main_kernel", 256, 512, 160*KB)
        self.a = self.k.a
        self.nbar = {"C": 0, "H": 0}
        self.role = None
    def bar(self, name=""):
        self.a(f"s_barrier ; {name}"); self.nbar[self.role] += 1
    def stamp(self, i):
        if not OPT["stamp"]: return
        a = self.a
        a("s_memrealtime s[96:97]"); a("s_memtime s[98:99]"); a("s_waitcnt lgkmcnt(0)")
        a(f"s_add_u32 s97, s23, {i}")
        a(f"s_add_u32 m0, s97, s23")
        a("s_nop 3")
        a(f"v_writelane_b32 v{V_TS}, s96, m0"); a(f"v_writelane_b32 v{V_TS2}, s98, m0")
    def store(self, instr):
        a = self.a; l1 = self.k.lab(); l2 = self.k.lab()
        a(instr.replace("buffer_store", ";chk buffer_store")) if False else None
        a("s_cmp_lg_u32 s21, 0"); a(f"s_cbranch_scc1 {l1}")
        a(instr); a(f"s_branch {l2}")
        a(f"{l1}:"); a(instr + " sc1"); a(f"{l2}:")
    def store_list(self, instr):
        l1 = self.k.lab(); l2 = self.k.lab()
        return ["\n".join(["s_cmp_lg_u32 s21, 0", f"s_cbranch_scc1 {l1}", instr, f"s_branch {l2}", f"{l1}:", instr + " sc1", f"{l2}:"])]
    def flag_list(self, val):
        return [f"s_add_u32 s40, s23, {val}", f"v_mov_b32 v{V_TMP}, s40", "s_waitcnt vmcnt(0)", "s_mov_b64 exec, 1"] + \
               self.store_list(f"buffer_store_dword v{V_TMP}, off, s[8:11], s24") + ["s_mov_b64 exec, -1"]
    def poll(self, voff, sbase, sval):
        a = self.a; l = self.k.lab(); d = self.k.lab()
        a("s_mov_b32 s41, 0")
        a(f"{l}:")
        a(f"buffer_load_dword v{V_TMP}, v{voff}, s[8:11], {sbase} offen sc1")
        a("s_add_u32 s41, s41, 1"); a(f"s_cmp_gt_u32 s41, {OPT['spin']}"); a(f"s_cbranch_scc1 {d}")
        a("s_waitcnt vmcnt(0)")
        a(f"v_cmp_gt_u32 vcc, {sval}, v{V_TMP}")
        a(f"s_cbranch_vccnz {l}")
        a(f"{d}:")
    def dma(self, sbase, const, lds, sl="s25", voff=V_LANE16, fl=""):
        a = self.a
        a(f"s_add_u32 s40, {sbase}, {const}")
        a(f"s_add_u32 m0, {sl}, {lds}")
        a(f"buffer_load_dwordx4 v{voff}, s[8:11], s40 offen{fl} lds")
    def touch_list(self, items):
        l = self.k.lab()
        L = ["s_cmp_lg_u32 s21, 0", f"s_cbranch_scc1 {l}"]
        for sal, n in items:
            L += sal
            L += [f"v_min_u32 v{V_OUT}, {(n-1)*128}, v{V_T128}", f"buffer_load_dword v1, v{V_OUT}, s[8:11], s43 offen sc1"]
        L.append(f"{l}:")
        return "\n".join(L)
    def stream(self, steps, look, fill=None):
        a = self.a
        reads = []; need = []
        for s in steps:
            reads += s["reads"]; need.append(len(reads) - 1)
        nr = 0; waited = -1
        def issue():
            nonlocal nr
            d, n, fm, off, bn = reads[nr]
            if bn: self.bar(bn)
            op = {4: "ds_read_b128", 2: "ds_read_b64"}[n]
            reg = fm[off >> 16] if isinstance(fm, list) else fm
            a(f"{op} {vr(d, n)}, v{reg} offset:{off & 0xffff}")
            nr += 1
        for i, s in enumerate(steps):
            while nr < len(reads) and nr <= need[i] + (look if i == 0 else 0): issue()
            for x in s.get("pre", []): a(x)
            if need[i] > waited:
                n = nr - 1 - need[i]; assert n <= 15
                a(f"s_waitcnt lgkmcnt({n})"); waited = need[i]
            a(s["mf"])
            nxt = need[i + 1] if i + 1 < len(steps) else need[i]
            while nr < len(reads) and nr <= nxt + look: issue()
            for x in s.get("post", []): a(x)
            if fill:
                for f in fill(i): a(f)
            if getattr(self, "pend_stamp", None): self.stamp(self.pend_stamp); self.pend_stamp = None

    def prologue(self):
        a = self.a; k = self.k
        k.begin()
        ws_srd(a)
        a("s_load_dwordx2 s[12:13], s[0:1], 56"); a(f"s_mov_b32 s14, {2048*1024}"); a("s_mov_b32 s15, 0x20000")
        a("s_load_dwordx2 s[44:45], s[0:1], 64"); a("s_mov_b32 s46, 256"); a("s_mov_b32 s47, 0x20000")
        a("v_lshrrev_b32 v1, 6, v0"); a("v_and_b32 v2, 63, v0")
        a("v_readfirstlane_b32 s3, v1")
        a(f"v_lshlrev_b32 v{V_LANE16}, 4, v2")
        a("s_and_b32 s4, s2, 7"); a("s_lshr_b32 s5, s2, 3"); a("s_and_b32 s6, s3, 3")
        a("s_lshl_b32 s16, s4, 1"); a("s_lshr_b32 s40, s5, 4"); a("s_add_u32 s16, s16, s40")
        a("s_and_b32 s17, s5, 15")
        a("s_lshr_b32 s18, s17, 3"); a("s_and_b32 s19, s17, 7")
        a("s_mov_b32 s20, 0x3f803f80"); a("s_mov_b32 s21, 0"); a("s_mov_b32 s22, 0"); a("s_mov_b32 s23, 0")
        a("s_lshl_b32 s26, s16, 9"); a(f"s_add_u32 s26, s26, {FL}")
        a("s_lshl_b32 s24, s17, 5"); a("s_lshl_b32 s40, s3, 2"); a("s_add_u32 s24, s24, s40"); a("s_add_u32 s24, s24, s26")
        a("s_lshl_b32 s25, s6, 10")
        a("s_lshl_b32 s27, s16, 2"); a("s_add_u32 s27, s27, s6")
        a(f"v_mov_b32 v{V_F0}, v{V_LANE16}"); a(f"v_add_u32 v{V_F0+1}, 0x10000, v{V_LANE16}"); a(f"v_add_u32 v{V_F0+2}, 0x20000, v{V_LANE16}")
        a(f"v_lshlrev_b32 v{V_T128}, 7, v2"); a(f"v_lshlrev_b32 v{V_L64}, 6, v2")
        a(f"v_mov_b32 v{V_TS}, 0"); a(f"v_mov_b32 v{V_TS2}, 0")
        a("v_and_b32 v40, 31, v2"); a("v_lshrrev_b32 v41, 5, v2")
        a("v_lshlrev_b32 v42, 3, v41"); a("v_sub_u32 v42, v40, v42")
        for r in range(16):
            a(f"v_cmp_le_i32 s[{64+2*r}:{65+2*r}], {16*(r>>3) + (r&7)}, v42")
        a("s_lshl_b32 s28, s17, 15"); a(f"s_add_u32 s28, s28, {WQKV}")
        a(f"s_mul_i32 s29, s17, {7*32*KB}"); a(f"s_add_u32 s29, s29, {WGU}")
        a("s_lshl_b32 s30, s19, 16"); a(f"s_add_u32 s30, s30, {WO}")
        a(f"s_mul_i32 s31, s19, {224*KB}"); a(f"s_add_u32 s31, s31, {WD}")
        a("s_lshl_b32 s34, s3, 10"); a("s_add_u32 s32, s30, s34"); a("s_add_u32 s33, s29, s34")
        for r in (28, 29, 30, 31): a(f"s_add_u32 s{r}, s{r}, s25")
        a("s_mov_b32 s35, 0")
        a("s_mov_b32 s36, 0")
        a("s_waitcnt lgkmcnt(0)")

    def attention(self):
        a = self.a
        KF = XR + 8; S = [XR + 44, XR + 60, XR + 76]; M = XR + 92; NM = XR + 108; MX = [XR + 124, XR + 125]; T = XR + 126
        O = ACC[0]; VA = ACC[1]; KA = VA + 9
        VF = [WR, WR + 8]; P = [WR + 16, WR + 24]; BM = ACC[2]; PM = ACC[2] + 8
        a("v_and_b32 v40, 31, v2"); a("v_lshrrev_b32 v41, 5, v2")
        a(f"v_and_b32 v{KA}, 0x13, v40"); a("v_bfe_u32 v42, v40, 2, 1"); a(f"v_lshl_add_u32 v{KA}, v42, 3, v{KA}")
        a("v_bfe_u32 v42, v40, 3, 1"); a(f"v_lshl_add_u32 v{KA}, v42, 2, v{KA}")
        a(f"v_lshlrev_b32 v{KA}, 4, v{KA}"); a(f"v_lshl_add_u32 v{KA}, v41, 9, v{KA}")
        a(f"s_add_u32 s41, s25, {LK}"); a(f"v_add_u32 v{KA}, s41, v{KA}")
        a("v_bfe_u32 v42, v2, 2, 2"); a("v_lshl_add_u32 v42, v41, 3, v42"); a("v_lshlrev_b32 v42, 5, v42")
        a("v_and_b32 v43, 1, v2"); a("v_lshl_add_u32 v42, v43, 4, v42")
        a("v_bfe_u32 v43, v2, 1, 1"); a("v_lshl_add_u32 v42, v43, 3, v42")
        a(f"s_add_u32 s41, s25, {LV}"); a("v_add_u32 v42, s41, v42")
        a("v_bfe_u32 v43, v2, 4, 1"); a("v_cmp_eq_u32 vcc, 1, v43")
        a(f"v_mov_b32 v45, {12*KB}"); a(f"v_cndmask_b32_e64 v{KA+1}, v45, 0, vcc")
        a("s_sub_i32 s42, 8, s27")
        for i in range(9):
            a(f"s_cmp_gt_i32 s42, {i}"); a("s_cselect_b32 s41, 8, 0"); a(f"s_add_u32 s41, s41, {L_ONES}")
            a(f"v_mov_b32 v43, s41"); a(f"v_add_u32 v44, {i*KB}, v42")
            a(f"v_cndmask_b32 v{VA+i}, v44, v43, vcc")
        a("v_mov_b32 v43, 0xffff"); a("v_mov_b32 v44, 0xffff0000")
        for p in range(8):
            a(f"v_cndmask_b32_e64 v45, 0, v43, s[{64+4*p}:{65+4*p}]"); a(f"v_cndmask_b32_e64 v46, 0, v44, s[{66+4*p}:{67+4*p}]")
            a(f"v_or_b32 v{BM+p}, v45, v46")
        return dict(KF=KF, S=S, M=M, NM=NM, O=O, VA=VA, VF=VF, P=P, BM=BM, PM=PM, MX=MX, T=T, KA=KA)

    def attention_run(self, r):
        a = self.a
        KF, S0, M, NM, O, VA, VF, P, BM, PM, MX, T, KA = (r[x] for x in "KF S M NM O VA VF P BM PM MX T KA".split())
        def kread(hh, i): a(f"ds_read_b128 {vr(KF+4*i,4)}, v{KA} offset:{hh*12*KB + i*KB}")
        def vread(hh, i, vf):
            for t in range(2):
                for u in range(2): a(f"ds_read_b64_tr_b16 {vr(vf+4*t+2*u,2)}, v{VA+i} offset:{t*512 + u*128}")
            if hh == 0: a(f"v_add_u32 v{VA+i}, v{KA+1}, v{VA+i}")
        def qk(hh, dst, i, c): a(f"{MF} {vr(dst,16)}, {vr(KF+4*i,4)}, {vr(XR+4*hh,4)}, {c}")
        def pv(vf, p, t, c): a(f"{MF} {vr(O,16)}, {vr(vf+4*t,4)}, {vr(p+4*t,4)}, {c}")
        def mx(b, lo, hi, first=False):
            if first:
                a(f"v_max3_f32 v{MX[0]}, v{b}, v{b+1}, v{b+2}"); a(f"v_max3_f32 v{MX[1]}, v{b+3}, v{b+4}, v{b+5}"); lo = 6
            for n, q in enumerate(range(lo, hi, 2)): a(f"v_max3_f32 v{MX[n%2]}, v{MX[n%2]}, v{b+q}, v{b+q+1}")
        def ex(b, lo, hi):
            for q in range(lo, hi): a(f"v_exp_f32 v{b+q}, v{b+q}")
        def cv(p, b, lo, hi):
            for q in range(lo, hi): a(f"v_cvt_pk_bf16_f32 v{p+q}, v{b+2*q}, v{b+2*q+1}")
        def fin(hh):
            a(f"v_rcp_f32 v{T}, v{O+8}")
            for q in range(8): a(f"v_mul_f32 v{O+q}, v{T}, v{O+q}")
            for q in range(4): a(f"v_cvt_pk_bf16_f32 v{V_EP+q}, v{O+2*q}, v{O+2*q+1}")
            self.store(f"buffer_store_dwordx4 {vr(V_EP,4)}, v{V_LANE16}, s[8:11], s37 offen offset:{hh*KB}")
        for i in (8, 0, 1, 2, 3, 4, 5, 6, 7): kread(0, i)
        a("s_waitcnt lgkmcnt(8)"); qk(0, M, 8, "0")
        a("s_waitcnt lgkmcnt(7)"); qk(0, S0[0], 0, "0")
        a("s_waitcnt lgkmcnt(6)"); qk(0, S0[1], 1, "0")
        for hh in range(2):
            S = S0 if hh == 0 else [S0[2], S0[0], S0[1]]
            a("s_waitcnt lgkmcnt(0)")
            qk(hh, S[2], 2, "0")
            vread(hh, 8, VF[0]); vread(hh, 0, VF[1])
            for q in range(16): a(f"v_cndmask_b32_e64 v{M+q}, v{S[0]+q}, v{M+q}, s[{64+2*q}:{65+2*q}]")
            qk(hh, S[0], 3, "0")
            mx(M, 0, 16, True)
            if hh == 1: fin(0)
            for i in range(1, 8):
                b = S[i % 3]
                mx(b, 0, 16)
                if i + 3 <= 7: qk(hh, b, i + 3, "0")
            a(f"v_max_f32 v{MX[0]}, v{MX[0]}, v{MX[1]}"); a(f"v_mov_b32 v{MX[1]}, v{MX[0]}")
            a(f"v_permlane32_swap_b32 v{MX[0]}, v{MX[1]}"); a("s_nop 1")
            a(f"v_max_f32 v{MX[0]}, v{MX[0]}, v{MX[1]}")
            for q in range(16): a(f"v_sub_f32 v{NM+q}, 0, v{MX[0]}")
            qk(hh, S[1], 1, vr(NM, 16))
            for q in range(16): a(f"v_sub_f32 v{M+q}, v{M+q}, v{MX[0]}")
            qk(hh, S[2], 2, vr(NM, 16))
            ex(M, 0, 16)
            if hh == 0: kread(1, 8); kread(1, 0); kread(1, 1); kread(1, 2)
            cv(PM, M, 0, 8)
            for q in range(8): a(f"v_and_b32 v{P[0]+q}, v{BM+q}, v{PM+q}")
            a("s_waitcnt lgkmcnt(4)" if hh == 0 else "s_waitcnt lgkmcnt(0)")
            pv(VF[0], P[0], 0, "0")
            for q in range(8): a(f"v_xor_b32 v{P[1]+q}, v{P[0]+q}, v{PM+q}")
            pv(VF[0], P[0], 1, vr(O, 16))
            pend = [(VF[1], P[1], 0), (VF[1], P[1], 1)]
            for i in range(1, 8):
                b = S[i % 3]; vf = VF[(i + 1) % 2]; p = P[(i + 1) % 2]
                ex(b, 0, 4)
                vread(hh, i, vf)
                x = pend.pop(0); pv(*x, vr(O, 16))
                ex(b, 4, 8)
                if pend: x = pend.pop(0); pv(*x, vr(O, 16))
                ex(b, 8, 12)
                if i + 2 <= 7:
                    qk(hh, S[(i + 2) % 3], i + 2, vr(NM, 16))
                    if hh == 0: kread(1, i + 2)
                elif hh == 0:
                    if i == 6: qk(1, M, 8, "0")
                    else: qk(1, S0[0], 1, "0")
                ex(b, 12, 16)
                if hh == 0 and i == 6: qk(1, S0[2], 0, "0")
                cv(p, b, 0, 8)
                a("s_waitcnt lgkmcnt(1)" if (hh == 0 and i + 2 <= 7) else "s_waitcnt lgkmcnt(0)")
                pv(vf, p, 0, vr(O, 16))
                pend.append((vf, p, 1))
            x = pend.pop(0); pv(*x, vr(O, 16))
        fin(1)
        for x in self.flag_list(1): a(x)

    def o_addr(self):
        a = self.a
        a("s_lshl_b32 s37, s27, 15"); a("s_lshl_b32 s40, s17, 11")
        a("s_add_u32 s37, s37, s40"); a(f"s_add_u32 s37, s37, {OF}"); a("s_add_u32 s37, s37, s35")

    def ln_stats(self, d):
        L = []
        for n in (8, 4, 2, 1):
            for i in range(n): L.append(f"v_add_f32 v{d+i}, v{d+i}, v{d+i+n}")
        L += [f"v_mov_b32 v{d+1}, v{d}", f"v_permlane32_swap_b32 v{d}, v{d+1}", "s_nop 1",
              f"v_mul_f32 v{d}, {f32(-1.0/512)}, v{d}", f"v_mul_f32 v{d+1}, {f32(1.0/512)}, v{d+1}",
              f"v_fma_f32 v{d+1}, -v{d}, v{d}, v{d+1}", f"v_max_f32 v{d+1}, 0, v{d+1}", f"v_add_f32 v{d+1}, {f32(1e-5)}, v{d+1}",
              f"v_rsq_f32 v{V_RSTD}, v{d+1}", f"v_sqrt_f32 v{V_STD}, v{d+1}",
              f"v_cvt_pk_bf16_f32 v{V_XAUG}, v{d}, v{d}",
              f"v_and_b32 v{d+2}, 0xffff0000, v{V_XAUG}", f"v_sub_f32 v{d+2}, v{d}, v{d+2}", f"v_mov_b32 v{d+3}, 0",
              f"v_cvt_pk_bf16_f32 v{V_XAUG+1}, v{d+2}, v{d+3}",
              f"v_cndmask_b32_e64 v{V_XAUG}, 0, v{V_XAUG}, s[62:63]", f"v_cndmask_b32_e64 v{V_XAUG+1}, 0, v{V_XAUG+1}, s[62:63]",
              f"v_mul_f32 v{V_C1}, {f32(-LOG2E)}, v{V_RSTD}"]
        return L

    def x_pass1(self, sx, sst, regs, augs, firstbar, wctr, midbars=None):
        a = self.a
        PRE = OPT['pre']
        STD = ACC[2]
        for i in range(4): a(f"buffer_load_dwordx4 {vr(STD+4*i,4)}, v{V_LANE16}, s[8:11], {sst} offen offset:{1024*i} sc1")
        def xl(kc):
            L = []
            if kc % 4 == 0: L.append(f"s_add_u32 s43, {sx}, {kc*KB}")
            L.append(f"buffer_load_dwordx4 {vr(XR+4*kc,4)}, v{V_LANE16}, s[8:11], s43 offen offset:{(kc%4)*KB} sc1")
            return L
        for kc in range(PRE):
            for x in xl(kc): a(x)
        steps = []
        fam = [V_F0, V_F0 + 1, V_F0 + 2]
        st = self.ln_stats(STD)
        for kc in range(32):
            for t in range(2):
                w = WR + 4 * (wctr[0] % NW); wctr[0] += 1
                bn = firstbar if (kc == 0 and t == 0) else (midbars or {}).get(kc) if t == 0 else None
                s = dict(reads=[(w, 4, fam, regs[t] + kc * KB, bn)],
                         mf=f"{MF} {vr(ACC[t],16)}, {vr(w,4)}, {vr(XR+4*kc,4)}, {'0' if kc == 0 else vr(ACC[t],16)}")
                if t == 0:
                    issued = min(32, kc + PRE)
                    s["pre"] = [f"s_waitcnt vmcnt({issued - 1 - kc})"]
                    if kc + PRE < 32: s["post"] = xl(kc + PRE)
                elif kc >= 2:
                    s["post"] = st[:3]; st = st[3:]
                steps.append(s)
        assert not st
        for t in range(2):
            steps.append(self.aug_step(ACC[t], augs[t]))
        return steps
    def aug_step(self, acc, augidx):
        self.augflip = getattr(self, "augflip", 0) ^ 1
        w = V_WAUG if self.augflip else V_EP + 4
        w = V_WAUG if self.augflip else 44
        return dict(reads=[(w, 2, V_AUGA, augidx * 256, None)], mf=f"{MF} {vr(acc,16)}, {vr(w,4)}, {vr(V_XAUG,4)}, {vr(acc,16)}")

    def res_gemm(self, nsteps, slot, aload, bars, xch, xchbar, polls):
        a = self.a
        PRE = OPT['pre']
        for i in range(8):
            a(f"v_lshlrev_b32 v{ACC[0]+2*i}, 16, v{V_RES+i}"); a(f"v_and_b32 v{ACC[0]+2*i+1}, 0xffff0000, v{V_RES+i}")
        polls.pop(0)()
        for s in range(min(PRE, nsteps)):
            for x in aload(s): a(x)
        steps = []; wc = 0
        fo = [V_FW, V_FW + 1, V_FW + 2]
        ft = [V_EP, V_EP + 1, V_EP + 2]
        for s in range(nsteps):
            ar_ = XR + 4 * (s % 32)
            for t in range(2):
                w = WR + 4 * (wc % NW); wc += 1
                c = vr(ACC[t], 16) if (t == 0 or s > 0) else "0"
                st = dict(reads=[(w, 4, fo if t == 0 else ft, slot(s), bars.get(s) if t == 0 else None)],
                          mf=f"{MF} {vr(ACC[t],16)}, {vr(w,4)}, {vr(ar_,4)}, {c}")
                if t == 0:
                    issued = min(nsteps, s + PRE)
                    st["pre"] = [f"s_waitcnt vmcnt({issued - 1 - s})"]
                else:
                    if s + PRE < nsteps: st["post"] = aload(s + PRE)
                steps.append(st)
        self.stream(steps, look=6)
        a(f"s_xor_b32 s40, s6, 1"); a("s_lshl_b32 s40, s40, 12"); a(f"s_add_u32 s40, s40, {xch}"); a(f"v_add_u32 v{V_TMP}, s40, v{V_LANE16}")
        for i in range(4): a(f"ds_write_b128 v{V_TMP}, {vr(ACC[1]+4*i,4)} offset:{i*KB}")
        a("s_lshl_b32 s40, s6, 12"); a(f"s_add_u32 s40, s40, {xch}"); a(f"v_add_u32 v{V_TMP}, s40, v{V_LANE16}")
        a("s_waitcnt lgkmcnt(0)")
        self.bar(xchbar)
        for i in range(4): a(f"ds_read_b128 {vr(ACC[1]+4*i,4)}, v{V_TMP} offset:{i*KB}")
        for i in range(4):
            a(f"s_waitcnt lgkmcnt({3-i})")
            for q in range(4): a(f"v_add_f32 v{ACC[0]+4*i+q}, v{ACC[0]+4*i+q}, v{ACC[1]+4*i+q}")
            for q in range(2): a(f"v_cvt_pk_bf16_f32 v{V_RES+2*i+q}, v{ACC[0]+4*i+2*q}, v{ACC[0]+4*i+2*q+1}")

    def x_store(self, sx, sst, flagval):
        a = self.a
        self.store(f"buffer_store_dwordx4 {vr(V_RES,4)}, v{V_LANE16}, s[8:11], {sx} offen")
        self.store(f"buffer_store_dwordx4 {vr(V_RES+4,4)}, v{V_LANE16}, s[8:11], {sx} offen offset:1024")
        for x in stats_calc_list(V_RES, ACC[1]): a(x)
        self.store(f"buffer_store_dword v{ACC[1]}, v{V_LANE16}, s[8:11], {sst} offen")
        self.bar("stores issued")
        for x in self.flag_list(flagval): a(x)

    def compute(self):
        a = self.a; self.role = "C"
        a(f"s_setprio {OPT['cprio']}")
        a("s_lshr_b32 s50, s6, 1"); a("s_and_b32 s51, s6, 1")
        a("s_lshl_b32 s48, s18, 1"); a("s_add_u32 s48, s48, s50"); a("s_mov_b32 s52, s48")
        a("s_lshl_b32 s40, s16, 2"); a("s_add_u32 s48, s48, s40")
        a("s_lshl_b32 s49, s19, 1"); a("s_add_u32 s49, s49, s51")
        a("s_mul_i32 s40, s51, 3072"); a(f"v_add_u32 v{V_FW}, s40, v{V_LANE16}")
        a(f"v_add_u32 v{V_FW+1}, 0x10000, v{V_FW}"); a(f"v_add_u32 v{V_FW+2}, 0x20000, v{V_FW}")
        a("s_lshl_b32 s53, s48, 15"); a("s_lshl_b32 s40, s49, 11"); a("s_add_u32 s53, s53, s40")
        a("s_lshl_b32 s54, s48, 12"); a("s_lshr_b32 s40, s49, 2"); a("s_lshl_b32 s40, s40, 10"); a("s_add_u32 s54, s54, s40")
        a("s_and_b32 s40, s49, 3"); a("s_lshl_b32 s40, s40, 2"); a("s_add_u32 s54, s54, s40")
        a(f"s_add_u32 s40, s53, {X0}")
        a(f"buffer_load_dwordx4 {vr(V_RES,4)}, v{V_LANE16}, s[8:11], s40 offen")
        a(f"buffer_load_dwordx4 {vr(V_RES+4,4)}, v{V_LANE16}, s[8:11], s40 offen offset:1024")
        a("v_bfe_u32 v40, v2, 1, 3"); a("v_and_b32 v41, 1, v2"); a("v_and_b32 v42, 7, v2")
        a("s_lshl_b32 s40, s50, 8"); a("s_lshl_b32 s41, s51, 3"); a("s_add_u32 s40, s40, s41")
        a(f"v_lshlrev_b32 v{V_PX}, 5, v40"); a(f"v_lshl_add_u32 v{V_PX}, v41, 2, v{V_PX}"); a(f"v_add_u32 v{V_PX}, s40, v{V_PX}")
        a("s_lshl_b32 s40, s51, 8"); a("s_lshl_b32 s41, s52, 2"); a("s_add_u32 s40, s40, s41")
        a(f"v_lshlrev_b32 v{V_PO}, 5, v40"); a(f"v_lshl_add_u32 v{V_PO}, v41, 4, v{V_PO}"); a(f"v_add_u32 v{V_PO}, s40, v{V_PO}")
        a(f"v_lshlrev_b32 v{V_PH}, 5, v42"); a(f"v_add_u32 v{V_PH}, s40, v{V_PH}")
        a("v_and_b32 v40, 31, v2"); a(f"v_lshlrev_b32 v{V_AUGA}, 3, v40"); a(f"v_add_u32 v{V_AUGA}, {L_AUG}, v{V_AUGA}")
        a(f"v_mov_b32 v{V_XAUG+2}, 0"); a(f"v_mov_b32 v{V_XAUG+3}, 0"); a(f"v_mov_b32 v{V_WAUG+2}, 0"); a(f"v_mov_b32 v{V_WAUG+3}, 0")
        a("v_cmp_gt_u32 s[62:63], 32, v2")
        a("v_lshrrev_b32 v41, 5, v2"); a(f"v_lshlrev_b32 v{V_KVW}, 5, v40"); a(f"v_lshl_add_u32 v{V_KVW}, v41, 4, v{V_KVW}")
        a(f"s_add_u32 s40, s25, {LV + 8*KB}"); a(f"v_add_u32 v{V_KVW}, s40, v{V_KVW}")
        a("s_lshl_b32 s55, s27, 15"); a(f"s_add_u32 s55, s55, {X0}")
        a("s_lshl_b32 s56, s27, 12"); a(f"s_add_u32 s56, s56, {ST0}")
        a("s_mov_b32 s57, 0")
        a("L_c_loop:")
        self.stamp(0)
        a("v_mov_b32 v46, 0"); a("v_mov_b32 v47, 0")
        self.poll(V_PX, "s26", "s57")
        self.stamp(1)
        wctr = [0]
        steps = self.x_pass1("s55", "s56", [P1, P2], [1, 2], "B1 wk,wv landed", wctr)
        n1 = len(steps)
        fam = [V_F0, V_F0 + 1, V_F0 + 2]
        for kc in range(32):
            w = WR + 4 * (wctr[0] % NW); wctr[0] += 1
            steps.append(dict(reads=[(w, 4, fam, P3 + kc * KB, "B2 wq landed" if kc == 0 else None)],
                              mf=f"{MF} {vr(ACC[2],16)}, {vr(w,4)}, {vr(XR+4*kc,4)}, {'0' if kc == 0 else vr(ACC[2],16)}"))
        steps.append(self.aug_step(ACC[2], 0))
        q = []
        q += ["s_lshl_b32 s58, s17, 17", "s_lshl_b32 s40, s27, 10", "s_add_u32 s58, s58, s40", f"s_add_u32 s58, s58, {KV}", "s_add_u32 s58, s58, s36",
              f"s_add_u32 s40, s25, {LK + 8*KB}", f"v_add_u32 v{V_OUT}, s40, v{V_LANE16}"]
        for t in range(2):
            A0 = ACC[t]
            for hh in range(2):
                q += [f"v_mul_f32 v{A0+r}, v{V_RSTD}, v{A0+r}" for r in range(8*hh, 8*hh + 8)]
                q += [f"v_cvt_pk_bf16_f32 v{A0+r}, v{A0+2*r}, v{A0+2*r+1}" for r in range(4*hh, 4*hh + 4)]
                q += [f"s_add_u32 s59, s58, {t*32*64*KB + hh*64*KB}", f"buffer_store_dwordx4 {vr(A0+4*hh,4)}, v{V_LANE16}, s[8:11], s59 offen sc1"]
        kvq = list(q)
        def fill(i):
            out = []
            if OPT["fine"] and i == n1 - 1: self.pend_stamp = 14
            if i >= n1 - 1:
                for _ in range(7 if i == n1 - 1 else 14):
                    if kvq: out.append(kvq.pop(0))
            return out
        self.stream(steps, look=6, fill=fill)
        assert not kvq
        a("s_lshl_b32 s40, s16, 11"); a("s_lshl_b32 s41, s17, 7"); a("s_add_u32 s40, s40, s41"); a("s_lshl_b32 s41, s6, 2"); a("s_add_u32 s40, s40, s41"); a(f"s_add_u32 s40, s40, {KVFL}")
        a("s_add_u32 s41, s22, 1"); a(f"v_mov_b32 v{V_TMP}, s41")
        a("s_waitcnt vmcnt(0)")
        a("s_mov_b64 exec, 1"); a(f"buffer_store_dword v{V_TMP}, off, s[8:11], s40 sc1"); a("s_mov_b64 exec, -1")
        self.bar("B2b kv flag sent")
        for hh in range(2):
            a(f"ds_write_b128 v{V_OUT}, {vr(ACC[0]+4*hh,4)} offset:{hh*12*KB}")
            a(f"ds_write_b128 v{V_KVW}, {vr(ACC[1]+4*hh,4)} offset:{hh*12*KB}")
        a(f"v_mul_f32 v{V_C1}, {f32(0.25*LOG2E)}, v{V_RSTD}")
        for r in range(16): a(f"v_mul_f32 v{ACC[2]+r}, v{V_C1}, v{ACC[2]+r}")
        for r in range(8): a(f"v_cvt_pk_bf16_f32 v{XR+r}, v{ACC[2]+2*r}, v{ACC[2]+2*r+1}")
        self.stamp(2)
        r = self.attention()
        self.read_mode()
        self.o_addr()
        self.bar("B3 attention inputs")
        a(self.touch_list([(["s_mov_b32 s43, s37"], 16), ([f"s_add_u32 s43, s53, {XA}"], 16), ([f"s_add_u32 s43, s54, {STA}"], 8),
                           ([f"s_mul_i32 s43, s27, {112*KB}", f"s_mul_i32 s40, s17, {7*KB}", "s_add_u32 s43, s43, s40", f"s_add_u32 s43, s43, {HF}"], 56)][:3 if OPT["late_touch"] == 2 else 4]))
        self.stamp(3)
        self.attention_run(r)
        self.stamp(4)
        self.bar("B4 wo landed")
        a(f"s_add_u32 s58, s53, {XA}"); a("s_add_u32 s58, s58, s35"); a(f"s_add_u32 s59, s54, {STA}"); a("s_add_u32 s59, s59, s35")
        a(f"v_xor_b32 v{V_EP}, 1024, v{V_FW}"); a(f"v_add_u32 v{V_EP+1}, 0x10000, v{V_EP}"); a(f"v_add_u32 v{V_EP+2}, 0x20000, v{V_EP}")
        a("s_lshl_b32 s60, s48, 15"); a("s_lshl_b32 s40, s51, 14"); a("s_add_u32 s60, s60, s40"); a(f"s_add_u32 s60, s60, {OF}"); a("s_add_u32 s60, s60, s35")
        a("s_add_u32 s61, s23, 1")
        def al_o(s):
            L = []
            if s % 4 == 0: L.append(f"s_add_u32 s43, s60, {s*KB}")
            L.append(f"buffer_load_dwordx4 {vr(XR+4*(s%32),4)}, v{V_LANE16}, s[8:11], s43 offen offset:{(s%4)*KB} sc1")
            return L
        def p_o():
            self.poll(V_PH, "s26", "s61"); self.stamp(5)
        self.res_gemm(16, lambda s: P1 + s*4*KB, al_o, {}, XCH_WO, "B5 xch wo", [p_o])
        self.x_store("s58", "s59", 2)
        self.stamp(6)
        a(f"s_mul_i32 s60, s27, {112*KB}"); a(f"s_mul_i32 s40, s17, {7*KB}"); a("s_add_u32 s60, s60, s40"); a(f"s_add_u32 s60, s60, {HF}"); a("s_add_u32 s60, s60, s35")
        a("s_lshl_b32 s58, s27, 15"); a(f"s_add_u32 s58, s58, {XA}"); a("s_add_u32 s58, s58, s35")
        a("s_lshl_b32 s59, s27, 12"); a(f"s_add_u32 s59, s59, {STA}"); a("s_add_u32 s59, s59, s35")
        a("s_add_u32 s61, s23, 2")
        a("v_mov_b32 v46, 0"); a("v_mov_b32 v47, 0")
        self.poll(V_PX, "s26", "s61")
        self.stamp(7)
        wctr = [0]
        steps = self.x_pass1("s58", "s59", GU_REG[:2], [3, 4], "B6 t0,t1 landed", wctr, midbars={16: "G1m"})
        done = {0: len(steps) - 2, 1: len(steps) - 1}; start = {}
        accof = {0: ACC[0], 1: ACC[1], 2: ACC[2], 3: ACC[0], 4: ACC[1], 5: ACC[2], 6: ACC[0]}
        for t in range(2, 7):
            start[t] = len(steps)
            for kc in range(32):
                w = WR + 4 * (wctr[0] % NW); wctr[0] += 1
                bn = f"G{t}a" if kc == 0 else f"G{t}m" if kc == 16 else None
                steps.append(dict(reads=[(w, 4, fam, GU_REG[t] + kc * KB, bn)],
                                  mf=f"{MF} {vr(accof[t],16)}, {vr(w,4)}, {vr(XR+4*kc,4)}, {'0' if kc == 0 else vr(accof[t],16)}"))
            steps.append(self.aug_step(accof[t], 3 + t))
            done[t] = len(steps) - 1
        def epi(t):
            A0 = accof[t]; L = []
            L += [f"v_mul_f32 v{A0+r}, v{V_C1}, v{A0+r}" for r in range(8)]
            L += [f"v_exp_f32 v{A0+r}, v{A0+r}" for r in range(8)]
            L += [f"v_fma_f32 v{A0+r}, v{A0+r}, v{V_STD}, v{V_STD}" for r in range(8)]
            L += [f"v_rcp_f32 v{A0+r}, v{A0+r}" for r in range(8)]
            L += [f"v_mul_f32 v{A0+r}, v{A0+r}, v{A0+8+r}" for r in range(8)]
            L += [f"v_cvt_pk_bf16_f32 v{V_EP+r}, v{A0+2*r}, v{A0+2*r+1}" for r in range(4)]
            L += [f"s_add_u32 s43, s60, {t*KB}"]
            L += self.store_list(f"buffer_store_dwordx4 {vr(V_EP,4)}, v{V_LANE16}, s[8:11], s43 offen")
            return L
        queue = []; flag_at = {}
        def fill2(i):
            for t in range(7):
                if done[t] + 2 == i: queue.extend((x, t) for x in epi(t))
            out = []
            if i == 63 and OPT["late_touch"]: out.append(self.touch_list([(["s_mov_b32 s43, s60"], 56)]))
            if OPT["fine"] and i == done[1]: self.pend_stamp = 12
            if OPT["fine"] and i == done[3]: self.pend_stamp = 13
            if i == done[4]: out.append(self.touch_list([([f"s_add_u32 s43, s53, {XB}"], 16), ([f"s_add_u32 s43, s54, {STB}"], 8)]))
            for t2, sidx in start.items():
                if sidx == i + 1 and t2 >= 3:
                    while queue and queue[0][1] <= t2 - 3: out.append(queue.pop(0)[0])
            cost = 0
            while queue and cost < 4:
                x, t = queue.pop(0); out.append(x); cost += 2 if x.startswith(("v_exp", "v_rcp")) else 1
                if "buffer_store" in x and t in (4,): flag_at[i + 14] = t
            if i in flag_at: out += self.flag_list(3 + flag_at[i])
            return out
        self.stream(steps, look=6, fill=fill2)
        for x, _ in queue: a(x)
        for x in epi(6): a(x)
        for x in self.flag_list(9): a(x)
        self.stamp(8)
        a(f"s_add_u32 s58, s53, {XB}"); a("s_add_u32 s58, s58, s35"); a(f"s_add_u32 s59, s54, {STB}"); a("s_add_u32 s59, s59, s35")
        a(f"v_xor_b32 v{V_EP}, 1024, v{V_FW}"); a(f"v_add_u32 v{V_EP+1}, 0x10000, v{V_EP}"); a(f"v_add_u32 v{V_EP+2}, 0x20000, v{V_EP}")
        a(f"s_mul_i32 s60, s48, {112*KB}"); a(f"s_mul_i32 s40, s51, {56*KB}"); a("s_add_u32 s60, s60, s40"); a(f"s_add_u32 s60, s60, {HF}"); a("s_add_u32 s60, s60, s35")
        a("s_add_u32 s61, s23, 7"); a("s_add_u32 s42, s23, 9")
        def al_h(s):
            t, i = s // 8, s % 8
            L = []
            if s == 40:
                l = self.k.lab(); d = self.k.lab()
                L.append("\n".join(["s_mov_b32 s41, 0", f"{l}:", f"buffer_load_dword v{V_TMP}, v{V_PH}, s[8:11], s26 offen sc1",
                          "s_add_u32 s41, s41, 1", f"s_cmp_gt_u32 s41, {OPT['spin']}", f"s_cbranch_scc1 {d}", "s_waitcnt vmcnt(0)",
                          f"v_cmp_gt_u32 vcc, s42, v{V_TMP}", f"s_cbranch_vccnz {l}", f"{d}:"]))
            L += [f"s_add_u32 s43, s60, {(7*i + t)*KB}", f"buffer_load_dwordx4 {vr(XR+4*(s%32),4)}, v{V_LANE16}, s[8:11], s43 offen sc1"]
            return L
        def p_h():
            self.poll(V_PH, "s26", "s61"); self.stamp(9)
        bars = {s: f"D{s}" for s in self.DBARS}
        self.res_gemm(56, wd_slot, al_h, bars, XCH_DN, "B9 xch dn", [p_h])
        self.stamp(10)
        a("s_cmp_lg_u32 s22, 0"); a("s_cbranch_scc1 L_c_final")
        self.x_store("s58", "s59", 10)
        a("s_lshl_b32 s55, s27, 15"); a(f"s_add_u32 s55, s55, {XB}"); a("s_add_u32 s55, s55, s35")
        a("s_lshl_b32 s56, s27, 12"); a(f"s_add_u32 s56, s56, {STB}"); a("s_add_u32 s56, s56, s35")
        a("s_mov_b32 s57, 10")
        self.next_iter()
        a.fence()
        a("s_branch L_c_loop")
        a("L_c_final:")
        a("v_and_b32 v40, 31, v2"); a("v_lshlrev_b32 v40, 10, v40"); a("v_lshrrev_b32 v41, 5, v2"); a("v_lshl_add_u32 v40, v41, 4, v40")
        a("s_lshl_b32 s40, s48, 15"); a("s_lshl_b32 s41, s49, 6"); a("s_add_u32 s40, s40, s41")
        a(f"buffer_store_dwordx4 {vr(V_RES,4)}, v40, s[12:15], s40 offen")
        a(f"buffer_store_dwordx4 {vr(V_RES+4,4)}, v40, s[12:15], s40 offen offset:32")
        self.finish()

    DBARS = list(range(0, 56, 5))

    def read_mode(self):
        a = self.a
        a(f"v_mov_b32 v{V_TMP}, {L_MODE}"); a(f"ds_read_b32 v{V_TMP}, v{V_TMP}"); a("s_waitcnt lgkmcnt(0)")
        a(f"v_readfirstlane_b32 s21, v{V_TMP}")
    def next_iter(self):
        a = self.a
        a("s_mov_b32 s22, 1"); a("s_mov_b32 s23, 16")
        a(f"s_mov_b32 s36, {ITS}"); a(f"s_mul_i32 s35, s21, {ITS}")
    def finish(self):
        a = self.a
        if OPT["stamp"]:
            a("s_waitcnt vmcnt(0)")
            self.stamp(11)
            a("s_lshl_b32 s40, s2, 12"); a("s_lshl_b32 s41, s3, 9"); a("s_add_u32 s40, s40, s41"); a(f"s_add_u32 s40, s40, {TS}")
            a("v_lshlrev_b32 v40, 2, v2")
            a(f"buffer_store_dword v{V_TS}, v40, s[8:11], s40 offen"); a(f"buffer_store_dword v{V_TS2}, v40, s[8:11], s40 offen offset:256")
        a("s_endpgm")

    def helper(self):
        a = self.a; self.role = "H"
        a(f"s_setprio {OPT['hprio']}")
        HV_PERM = 16; HV_ROW0 = 17; HV_OOB = 18; HV_PK = 19; HV_W = 20
        out = []
        def D(sb, c, l, tag, **kw):
            if OPT["nt"]: kw["fl"] = " nt"
            self.dma(sb, c, l, **kw); out.append(tag)
        def W(tag):
            idx = max((i for i, t in enumerate(out) if t == tag), default=-1)
            if idx < 0: return
            n = len(out) - 1 - idx; assert n <= 63
            a(f"s_waitcnt vmcnt({n})"); del out[:idx + 1]
        def tile(sb, c, reg, tag, gs=range(8)):
            for g in gs: D(sb, c + g*4*KB, reg + g*4*KB, tag)
        st_next = [0]
        def stash(n):
            if st_next[0] >= 56: return
            l = self.k.lab()
            a("s_cmp_lg_u32 s22, 0"); a(f"s_cbranch_scc1 {l}")
            for _ in range(n):
                s_ = st_next[0]
                if s_ >= 56: break
                a(f"s_add_u32 s40, s31, {s_*4*KB}")
                a(f"buffer_load_dwordx4 {vr(STASH+4*s_,4)}, v{V_LANE16}, s[8:11], s40 offen")
                st_next[0] += 1
            a(f"{l}:")
        def wdw(steps):
            for s_ in steps:
                if s_ >= 56: break
                o = wd_slot(s_)
                a(f"ds_write_b128 v{HV_W + (o >> 16)}, {vr(STASH+4*s_,4)} offset:{o & 0xffff}")
        def kv_groups(gs):
            for g in gs:
                D("s28", 16*32*KB + g*4*KB, P1 + g*4*KB, "wk"); D("s28", 32*32*KB + g*4*KB, P2 + g*4*KB, "wv")
        kv_groups(range(8))
        a("s_cmp_lg_u32 s6, 0"); a("s_cbranch_scc1 L_h_skip0")
        a("s_getreg_b32 s40, hwreg(HW_REG_XCC_ID)"); a("s_and_b32 s40, s40, 7"); a("s_lshl_b32 s40, s40, 3")
        a("s_mov_b64 s[42:43], 1"); a("s_lshl_b64 s[42:43], s[42:43], s40")
        a("v_mov_b32 v40, s42"); a("v_mov_b32 v41, s43"); a("s_lshl_b32 s58, s16, 3")
        a("s_mov_b64 exec, 1")
        a("buffer_atomic_add_x2 v[40:41], off, s[44:47], s58 sc1")
        a("s_mov_b64 exec, -1")
        a("s_lshl_b64 s[60:61], s[42:43], 4")
        a("v_lshrrev_b32 v40, 4, v2"); a("v_and_b32 v41, 15, v2"); a("v_lshlrev_b32 v41, 4, v41")
        a("v_min_u32 v40, 2, v40"); a("v_lshl_add_u32 v42, v40, 12, v41")
        a("s_lshl_b32 s40, s17, 8"); a(f"s_add_u32 s40, s40, {AUGQ}")
        a("buffer_load_dwordx4 v[44:47], v42, s[8:11], s40 offen")
        a(f"s_mul_i32 s40, s17, {7*256}"); a(f"s_add_u32 s40, s40, {AUGG}")
        a(f"buffer_load_dwordx4 v[48:51], v{V_LANE16}, s[8:11], s40 offen"); a(f"buffer_load_dwordx4 v[52:55], v{V_LANE16}, s[8:11], s40 offen offset:1024")
        a(f"v_add_u32 v43, {L_AUG}, v{V_LANE16}")
        a("s_waitcnt vmcnt(0)")
        a("ds_write_b128 v43, v[44:47]"); a("s_waitcnt lgkmcnt(0)")
        a("ds_write_b128 v43, v[48:51] offset:768"); a("s_waitcnt lgkmcnt(0)")
        a("s_mov_b32 exec_hi, 0xffff"); a("ds_write_b128 v43, v[52:55] offset:1792"); a("s_mov_b64 exec, -1")
        a("v_mov_b32 v44, 0x3f803f80"); a("v_mov_b32 v45, 0x3f803f80"); a("v_mov_b32 v46, 0"); a("v_mov_b32 v47, 0")
        a(f"v_mov_b32 v43, {L_ONES}")
        for o in (0, 128, 512, 640): a(f"ds_write_b128 v43, v[44:47] offset:{o}")
        a("s_waitcnt lgkmcnt(0)")
        a("L_h_skip0:")
        tile("s28", 0, P3, "wq")
        a("v_and_b32 v24, 1, v2"); a(f"v_lshlrev_b32 v{HV_PERM}, 9, v24"); a("v_lshrrev_b32 v24, 1, v2"); a(f"v_lshl_add_u32 v{HV_PERM}, v24, 4, v{HV_PERM}")
        a("v_lshrrev_b32 v24, 5, v2"); a(f"v_lshlrev_b32 v{HV_ROW0}, 9, v24")
        a(f"v_mov_b32 v{HV_OOB}, 0x7ff00000")
        a("v_and_b32 v24, 1, v2"); a("s_sub_i32 s40, s16, 1"); a("v_sub_u32 v24, s40, v24")
        a("v_lshlrev_b32 v25, 11, v24"); a("s_lshl_b32 s40, s6, 2"); a("v_add_u32 v25, s40, v25")
        a("v_cmp_gt_i32 vcc, 0, v24"); a(f"v_cndmask_b32_e64 v{HV_PK}, v25, 0, vcc")
        a("s_lshl_b32 s59, s17, 7"); a(f"s_add_u32 s59, s59, {KVFL}")
        a(f"v_add_u32 v{HV_W}, s25, v{V_LANE16}"); a(f"v_add_u32 v{HV_W+1}, 0x10000, v{HV_W}"); a(f"v_add_u32 v{HV_W+2}, 0x20000, v{HV_W}")
        a("L_h_loop:")
        W("wv"); self.bar("B1")
        W("wq"); self.bar("B2")
        assert not out
        a("s_or_b32 s40, s6, s22"); a("s_cbranch_scc1 L_h_skip1")
        a("s_mov_b32 s41, 0")
        a("L_h_mode:")
        a("buffer_load_dwordx2 v[24:25], off, s[44:47], s58 sc1"); a("s_waitcnt vmcnt(0)")
        a("v_readfirstlane_b32 s42, v24"); a("v_readfirstlane_b32 s43, v25")
        a("s_add_u32 s41, s41, 1"); a(f"s_cmp_gt_u32 s41, {OPT['spin']}"); a("s_cbranch_scc1 L_h_mode_done")
        a("s_add_u32 s40, s42, s43"); a("s_mul_i32 s40, s40, 0x01010101"); a("s_lshr_b32 s40, s40, 24")
        a("s_cmp_lg_u32 s40, 16"); a("s_cbranch_scc1 L_h_mode")
        a("L_h_mode_done:")
        a("s_cmp_lg_u64 s[42:43], s[60:61]"); a("s_cselect_b32 s40, 1, 0")
        if OPT["force_slow"]: a("s_mov_b32 s40, 1")
        a("v_mov_b32 v24, s40"); a(f"v_mov_b32 v25, {L_MODE}"); a("ds_write_b32 v25, v24"); a("s_waitcnt lgkmcnt(0)")
        a("L_h_skip1:")
        a("s_add_u32 s42, s22, 1")
        a("s_lshl_b32 s48, s17, 17"); a(f"s_add_u32 s48, s48, {KV}"); a("s_add_u32 s48, s48, s36")
        self.bar("B2b")
        a("s_mov_b64 exec, 3")
        self.poll(HV_PK, "s59", "s42")
        a("s_mov_b64 exec, -1")
        self.stamp(2)
        for d in (1, 2):
            l1 = self.k.lab(); l2 = self.k.lab()
            a(f"s_cmp_lt_u32 s16, {d}"); a(f"s_cbranch_scc1 {l1}")
            a(f"s_sub_u32 s49, s27, {4*d}"); a("s_lshl_b32 s49, s49, 10"); a("s_add_u32 s49, s49, s48")
            for hh in range(2): self.dma("s49", hh*64*KB, LK + hh*12*KB + (8-4*d)*KB, fl=" sc1")
            for hh in range(2): self.dma("s49", 32*64*KB + hh*64*KB, LV + hh*12*KB + (8-4*d)*KB, voff=HV_PERM, fl=" sc1")
            a(f"s_branch {l2}")
            a(f"{l1}:")
            for hh in range(2):
                self.dma("s48", hh*64*KB, LK + hh*12*KB + (8-4*d)*KB, voff=HV_ROW0, fl=" sc1")
                self.dma("s48", 0, LV + hh*12*KB + (8-4*d)*KB, voff=HV_OOB)
            a(f"{l2}:")
        a("s_waitcnt vmcnt(0)")
        self.bar("B3")
        self.stamp(3)
        for g in range(16): D("s30", g*4*KB, P1 + g*4*KB, "wo")
        tile("s29", 0, GU_REG[0], "t0")
        tile("s29", 1*32*KB, GU_REG[1], "t1", range(0, 3))
        stash(OPT.get("st_a", 14))
        W("t1")
        self.stamp(4)
        self.bar("B4")
        tile("s29", 1*32*KB, GU_REG[1], "t1", range(3, 8))
        self.bar("B5")
        self.bar("stores")
        tile("s29", 2*32*KB, GU_REG[2], "t2")
        W("t1"); self.bar("B6")
        self.bar("G1m")
        tile("s29", 3*32*KB, GU_REG[3], "t3", range(0, 3))
        W("t2"); self.bar("G2a")
        tile("s29", 3*32*KB, GU_REG[3], "t3", range(3, 8))
        self.bar("G2m")
        tile("s29", 4*32*KB, GU_REG[4], "t4", range(0, 5)); stash(3)
        W("t3"); self.bar("G3a")
        tile("s29", 4*32*KB, GU_REG[4], "t4", range(5, 8)); tile("s29", 5*32*KB, GU_REG[5], "t5", range(0, 2)); stash(3)
        self.bar("G3m")
        tile("s29", 5*32*KB, GU_REG[5], "t5", range(2, 7)); stash(3)
        wdw(range(0, 7))
        W("t4"); self.bar("G4a")
        tile("s29", 5*32*KB, GU_REG[5], "t5", range(7, 8))
        L_last = []
        def nxt_iter_only(fn):
            fn()
        tile("s28", 16*32*KB, P1, "wk", range(0, 4)); stash(3)
        self.bar("G4m")
        tile("s29", 6*32*KB, GU_REG[6], "t6", range(0, 2)); tile("s28", 16*32*KB, P1, "wk", range(4, 7)); stash(3)
        W("t5"); self.bar("G5a")
        tile("s29", 6*32*KB, GU_REG[6], "t6", range(2, 6)); stash(3)
        self.bar("G5m")
        tile("s29", 6*32*KB, GU_REG[6], "t6", range(6, 8)); tile("s28", 16*32*KB, P1, "wk", range(7, 8)); tile("s28", 32*32*KB, P2, "wv", range(0, 2)); stash(3)
        W("t6"); self.bar("G6a")
        tile("s28", 32*32*KB, P2, "wv", range(2, 8)); stash(56)
        self.bar("G6m")
        a("s_waitcnt vmcnt(0)"); out.clear()
        wdw(range(7, 15))
        nw = 15
        for n, s_ in enumerate(self.DBARS):
            a("s_waitcnt lgkmcnt(0)")
            assert nw >= min(56, s_ + 5)
            self.bar(f"D{s_}")
            hi = s_ - 4 + 15 + 1
            if hi > nw: wdw(range(nw, hi)); nw = min(56, hi)
            if s_ == 45: tile("s28", 0, P3, "wq", range(0, 4))
        self.bar("B9")
        a("s_cmp_lg_u32 s22, 0"); a("s_cbranch_scc1 L_h_last")
        self.bar("stores")
        tile("s28", 0, P3, "wq", range(4, 8))
        self.next_iter()
        a("s_branch L_h_loop")
        a("L_h_last:")
        a("s_waitcnt vmcnt(0)")
        self.finish()

    def build(self):
        a = self.a
        self.prologue()
        a("s_cmp_ge_u32 s3, 4"); a("s_cbranch_scc1 L_helper")
        self.compute()
        a("L_helper:")
        self.helper()
        assert self.nbar["C"] == self.nbar["H"], self.nbar
        self.k.end()
        return self.k

def build():
    seq = [k_prep(), Main().build()]
    out = []
    for k in seq: out.append(f"; @launch kernel={k.name} grid=({k.nwg},1,1) block=({k.threads},1,1) lds={k.lds}")
    out.append('.amdgcn_target "amdgcn-amd-amdhsa--gfx950"'); out.append(".text")
    for k in seq: out.append(k.a.text())
    out.append('.section .rodata,"a"')
    for k in seq: out.append(".p2align 6"); out.append(k.desc())
    return "\n".join(out)

if __name__ == "__main__":
    for x in sys.argv[2:]:
        if "=" in x: kk, v = x.split("="); OPT[kk] = int(v)
        else: OPT[x] = True
    open(sys.argv[1], "w").write(build())
```

```python
import re

def _regs(tok):
    tok = tok.strip()
    neg = tok.startswith("-")
    if neg: tok = tok[1:]
    m = re.fullmatch(r"abs\((.*)\)", tok)
    if m: tok = m.group(1)
    m = re.fullmatch(r"\|(.*)\|", tok)
    if m: tok = m.group(1)
    m = re.fullmatch(r"([vas])(\d+)", tok)
    if m: return [(m.group(1), int(m.group(2)))]
    m = re.fullmatch(r"([vas])\[(\d+):(\d+)\]", tok)
    if m: return [(m.group(1), i) for i in range(int(m.group(2)), int(m.group(3)) + 1)]
    if tok in ("vcc", "vcc_lo", "vcc_hi"): return [("x", "vcc")]
    if tok in ("exec", "exec_lo", "exec_hi"): return [("x", "exec")]
    if tok == "m0": return [("x", "m0")]
    return []

TRANS = ("v_exp_f32", "v_log_f32", "v_rcp_f32", "v_rsq_f32", "v_sqrt_f32", "v_sin_f32", "v_cos_f32")

class Ins:
    __slots__ = ("text", "op", "kind", "dst", "src", "srcc", "passes", "states", "lds", "wide_store", "dpp")
    def __init__(self, text):
        self.text = text
        t = text.split(";")[0].strip()
        parts = t.split(None, 1)
        op = parts[0]
        self.op = op
        rest = parts[1] if len(parts) > 1 else ""
        ops = [o.strip() for o in re.split(r",(?![^\[]*\])", rest)] if rest else []
        mods = ""
        if ops:
            sp = ops[-1].split(None, 1)
            ops[-1] = sp[0] if sp else ""
            mods = sp[1] if len(sp) > 1 else ""
        self.dst = []; self.src = []; self.srcc = []; self.passes = 0; self.states = 1
        self.lds = False; self.wide_store = False
        self.dpp = ("row_" in mods or "quad_perm" in mods or "wave_" in mods or "_dpp" in op)
        R = lambda i: _regs(ops[i]) if i < len(ops) else []
        if op.startswith("v_mfma"):
            self.kind = "mfma"
            self.dst = R(0); self.src = R(1) + R(2); self.srcc = R(3)
            self.passes = 8 if "32x32x16" in op else 4 if "16x16x32" in op else 16
        elif op.startswith("v_"):
            self.kind = "valu"
            if op.startswith("v_cmp"):
                self.dst = R(0) + ([("x", "exec")] if op.startswith("v_cmpx") else [])
                self.src = sum((R(i) for i in range(1, len(ops))), [])
            elif op.startswith("v_permlane") and "swap" in op:
                self.dst = R(0) + R(1); self.src = R(0) + R(1)
            elif op in ("v_add_co_u32", "v_sub_co_u32", "v_addc_co_u32", "v_subb_co_u32"):
                self.dst = R(0) + R(1); self.src = sum((R(i) for i in range(2, len(ops))), [])
            else:
                self.dst = R(0); self.src = sum((R(i) for i in range(1, len(ops))), [])
                if op.startswith(("v_fmac", "v_pk_fmac", "v_dot2c", "v_writelane")): self.src += R(0)
                if op.startswith("v_cndmask") and len(ops) == 3: self.src += [("x", "vcc")]
        elif op.startswith(("buffer_", "global_")):
            self.kind = "vmem"
            allm = mods.split()
            self.lds = "lds" in allm or "_lds_" in op
            if op.startswith("buffer_"):
                if self.lds:
                    self.src = R(0) + R(1) + R(2) + [("x", "m0")]
                elif "load" in op:
                    self.dst = R(0); self.src = R(1) + R(2) + R(3)
                elif op in ("buffer_wbl2", "buffer_inv"):
                    pass
                else:
                    self.src = R(0) + R(1) + R(2) + R(3)
                    self.wide_store = op.endswith(("x3", "x4"))
                    if "atomic" in op and "sc0" in allm: self.dst = R(0)
                    self.srcc = R(0)
            else:
                if "load" in op and not self.lds:
                    self.dst = R(0); self.src = R(1) + R(2)
                else:
                    self.src = sum((R(i) for i in range(len(ops))), [])
                    self.wide_store = op.endswith(("x3", "x4")) and "store" in op
                    self.srcc = R(1)
        elif op.startswith("ds_"):
            self.kind = "ds"
            if "read" in op or "permute" in op or "swizzle" in op:
                self.dst = R(0); self.src = sum((R(i) for i in range(1, len(ops))), [])
            else:
                self.src = sum((R(i) for i in range(len(ops))), [])
        elif op == "s_nop":
            self.kind = "nop"; self.states = int(ops[0], 0) + 1
        elif op.startswith("s_"):
            self.kind = "salu"
            nodst = op.startswith(("s_cmp", "s_cbranch", "s_branch", "s_waitcnt", "s_barrier", "s_endpgm", "s_setprio", "s_sleep", "s_bitcmp"))
            if not nodst:
                self.dst = R(0); self.src = sum((R(i) for i in range(1, len(ops))), [])
                if "saveexec" in op: self.dst += [("x", "exec")]
            else:
                self.src = sum((R(i) for i in range(len(ops))), [])
        else:
            raise ValueError("unknown instruction: " + text)

def need(prev, cur):
    n = 0
    pd = set(prev.dst)
    vs = lambda regs: {r for r in regs if r[0] in "va"}
    ss = lambda regs: {r for r in regs if r[0] in "sx"}
    if prev.kind == "valu":
        pv = vs(pd); ps = ss(pd)
        if cur.kind == "mfma" and pv & (set(cur.src) | set(cur.srcc)): n = max(n, 2)
        if cur.kind == "mfma" and ("x", "exec") in pd: n = max(n, 4)
        if cur.kind == "valu":
            if cur.op.startswith(("v_readlane", "v_readfirstlane")) and pv & set(cur.src): n = max(n, 1)
            if cur.op.startswith("v_permlane") and pv & set(cur.src): n = max(n, 2)
            if cur.dpp and pv & set(cur.src): n = max(n, 2)
            if cur.dpp and ("x", "exec") in pd: n = max(n, 5)
            if ps & set(cur.src):
                n = max(n, 4 if cur.op.startswith(("v_readlane", "v_writelane")) else 2)
            if ("x", "exec") in pd and cur.op.startswith(("v_readlane", "v_readfirstlane", "v_writelane", "v_permlane")): n = max(n, 4)
            if prev.op.startswith(TRANS) and pv & set(cur.src) and not cur.op.startswith(TRANS): n = max(n, 1)
            if prev.op.startswith(TRANS) and pv & set(cur.src): n = max(n, 1)
            if "op_sel" in prev.text or "sdwa" in prev.text:
                if pv & (set(cur.src) | set(cur.dst)): n = max(n, 1)
        if prev.op.startswith("v_dot") and cur.kind != "salu" and pv & (set(cur.src) | set(cur.dst) | set(cur.srcc)):
            same_c = cur.op == prev.op and cur.src and not (pv & set(cur.src[:-1]))
            if not same_c: n = max(n, 3)
        if cur.kind == "vmem" and ps & set(cur.src): n = max(n, 5)
        if cur.kind == "salu" and ps & set(cur.src): n = max(n, 1)
    if prev.kind == "salu":
        if ("x", "m0") in pd and (cur.kind == "vmem" and cur.lds): n = max(n, 1)
    if prev.kind == "vmem" and prev.wide_store:
        if cur.kind in ("valu", "mfma") and set(prev.srcc) & set(cur.dst): n = max(n, 2)
        elif set(prev.srcc) & set(cur.dst): n = max(n, 1)
    if prev.kind == "mfma":
        P = prev.passes
        tab = {2: (4, 5, 1), 4: (6, 8, 3), 8: (10, 12, 7), 16: (18, 20, 15)}[P]
        if cur.kind == "mfma":
            if pd & set(cur.src): n = max(n, tab[1])
            if pd & set(cur.srcc):
                if not (cur.srcc == prev.dst and cur.passes == P): n = max(n, tab[0])
            elif pd & set(cur.dst): n = max(n, tab[0])
        elif cur.kind in ("valu", "vmem", "ds"):
            if pd & (set(cur.src) | set(cur.dst)): n = max(n, tab[1])
        if cur.kind == "valu" and set(prev.srcc) & set(cur.dst): n = max(n, tab[2])
        if cur.kind in ("ds", "vmem") and set(prev.srcc) & set(cur.dst): n = max(n, tab[2])
    return n

class Asm:
    def __init__(self):
        self.out = []
        self.win = []
        self.nops = 0
        self.pending = {}
        self.alts = []
    def fork(self):
        return [list(self.win)] + [list(w) for w in self.alts]
    def join(self, tok):
        self.alts += tok
    def raw(self, s):
        self.out.append(s)
    def label(self, name, pad=True):
        self.out.append(name + ":")
    def fence(self):
        worst = 0
        for win in [self.win] + self.alts:
            dist = 0
            for p in reversed(win):
                w = 0
                if p.kind == "mfma": w = {2: 5, 4: 8, 8: 12, 16: 20}[p.passes]
                elif p.kind == "valu": w = 5 if any(r[0] in "sx" for r in p.dst) else 3
                elif p.kind == "vmem" and p.wide_store: w = 2
                elif p.kind == "salu" and ("x", "m0") in p.dst: w = 1
                worst = max(worst, w - dist)
                dist += p.states
        self._nop(worst)
    def _nop(self, n):
        while n > 0:
            k = min(n, 16)
            self.out.append(f"    s_nop {k-1}")
            self._push(Ins(f"s_nop {k-1}"))
            self.nops += k
            n -= k
    def _push(self, ins):
        self.win.append(ins)
        if len(self.win) > 24: self.win = self.win[-24:]
        keep = []
        for w in self.alts:
            w.append(ins)
            if not (len(w) >= 22 and len(self.win) >= 22 and all(x is y for x, y in zip(w[-22:], self.win[-22:]))): keep.append(w[-24:])
        self.alts = keep
    def __call__(self, text):
        for line in text.strip().split("\n"):
            line = line.strip()
            if not line or line.startswith(";"):
                if line: self.out.append("    " + line)
                continue
            if line.endswith(":"):
                self.out.append(line)
                self.join(self.pending.pop(line[:-1], []))
                continue
            ins = Ins(line)
            worst = 0
            for win in [self.win] + self.alts:
                dist = 0
                for p in reversed(win):
                    if dist >= 20: break
                    w = need(p, ins) - dist
                    worst = max(worst, w)
                    dist += p.states
            self._nop(worst)
            self.out.append("    " + line)
            self._push(ins)
            if ins.op.startswith(("s_cbranch", "s_branch")):
                tgt = line.split(";")[0].split()[-1]
                self.pending.setdefault(tgt, []).extend(self.fork())
    def text(self):
        return "\n".join(self.out) + "\n"

def vr(a, n=1, k="v"):
    return f"{k}{a}" if n == 1 else f"{k}[{a}:{a+n-1}]"
def ar(a, n=1): return vr(a, n, "a")
def sr(a, n=1): return vr(a, n, "s")
```

```python
import sys, struct
from asmlib import *

NAME = "interleave_layers__sliding_block__glu_gated_glu__prompt_kernel"
KB = 1024
WQP  = 0x0000000
WGU  = 0x0300000
CS   = 0x0900000
FL   = 0x0920000
KVFL = 0x0924000
RF   = 0x092C000
PFL  = RF + 2048
XA   = 0x1000000; XB = 0x1200000
STA  = 0x1400000; STB = 0x1440000
OF   = 0x1500000; HF = 0x1700000
KV   = 0x1E00000
ITS  = 0x1400000
TS   = 0x6000000
WS_BYTES = 0x10000000
LOG2E = 1.4426950408889634
def f32(x): return "0x%08x" % struct.unpack("<I", struct.pack("<f", x))[0]
MF = "v_mfma_f32_32x32x16_bf16"
OPT = dict(stamp=False, force_slow=False, spin=400000, pre=10, cprio=2, fine=0, pf=0, st_a=14, kvflag=22, rot=1)

P1, P2, P3, P4, PE, MISC = 0, 32*KB, 64*KB, 96*KB, 128*KB, 156*KB
LK = 108*KB; LV = LK + 24*KB
L_AUG = MISC; L_ONES = MISC + 2560; L_MODE = MISC + 3328
XCH_WO = PE; XCH_DN = P4 + 16*KB
L_X0 = P4
L_REL = PE
def wd_slot(s):
    s %= 15
    return PE + s*4*KB if s < 7 else P4 + (s-7)*4*KB
GU_REG = [P3, P4, P1, P2, P3, P4, P3]
STASH = 32

V_LANE16 = 3; V_F0 = 4
V_TQ = 6
V_XOFF = 8
V_T128 = 9
V_RSTD = 10; V_STD = 11; V_C1 = 12; V_TMP = 13; V_TS = 14; V_TS2 = 15
V_XAUG = 16; V_WAUG = 20
V_RES = 24
V_PX = 32; V_PH = 33; V_AUGA = 34; V_OUT = 35
V_FW = 36
V_EP = 40
ACC = [48, 64, 80]
WR = 96; NW = 8
XR = 128

class VM:
    def __init__(self, a): self.a = a; self.q = []
    def issue(self, tag): self.q.append(tag)
    def wait(self, tag):
        idx = max((i for i, t in enumerate(self.q) if t == tag), default=-1)
        if idx < 0: return
        n = len(self.q) - 1 - idx; assert n <= 63
        self.a(f"s_waitcnt vmcnt({n})"); del self.q[:idx + 1]
    def drain(self):
        self.a("s_waitcnt vmcnt(0)"); self.q = []

def stats_calc_list(d0, tmp):
    L = [f"v_mov_b32 v{tmp}, 0", f"v_mov_b32 v{tmp+1}, 0"]
    for i in range(8):
        L.append(f"v_dot2_f32_bf16 v{tmp}, v{d0+i}, s20, v{tmp}")
        L.append(f"v_dot2_f32_bf16 v{tmp+1}, v{d0+i}, v{d0+i}, v{tmp+1}")
    L += ["s_nop 2", f"v_permlane32_swap_b32 v{tmp}, v{tmp+1}", "s_nop 1", f"v_add_f32 v{tmp}, v{tmp}, v{tmp+1}"]
    return L

class Main:
    DBARS = list(range(0, 56, 5))
    def __init__(self):
        self.a = Asm(); self.nl = 0
        self.bars = {"C": [], "H": []}
        self.role = None; self.pend_stamp = None; self.augflip = 0
    def lab(self): self.nl += 1; return f"L{self.nl}"
    def emit(self, x):
        if callable(x): x()
        else: self.a(x)
    def bar(self, name):
        self.a(f"s_barrier ; {name}"); self.bars[self.role].append(name)
    def stamp(self, i):
        if not OPT["stamp"]: return
        a = self.a
        a("s_memrealtime s[96:97]"); a("s_memtime s[98:99]"); a("s_waitcnt lgkmcnt(0)")
        a(f"s_add_u32 s97, s23, {i}"); a(f"s_add_u32 m0, s97, s23"); a("s_nop 3")
        a(f"v_writelane_b32 v{V_TS}, s96, m0"); a(f"v_writelane_b32 v{V_TS2}, s98, m0")
    def store_txt(self, instr):
        l1 = self.lab(); l2 = self.lab()
        return "\n".join(["s_cmp_lg_u32 s21, 0", f"s_cbranch_scc1 {l1}", instr, f"s_branch {l2}", f"{l1}:", instr + " sc1", f"{l2}:"])
    def store(self, instr): self.a(self.store_txt(instr))
    def flag(self, val):
        a = self.a
        a(f"s_add_u32 s40, s23, {val}"); a(f"v_mov_b32 v{V_TMP}, s40"); a("s_waitcnt vmcnt(0)"); a("s_mov_b64 exec, 1")
        self.store(f"buffer_store_dword v{V_TMP}, off, s[8:11], s24"); a("s_mov_b64 exec, -1")
    def acquire(self):
        a = self.a; l = self.lab()
        a("s_cmp_eq_u32 s21, 0"); a(f"s_cbranch_scc1 {l}"); a("buffer_inv sc1"); a("s_waitcnt vmcnt(0)"); a(f"{l}:")
    def poll(self, voff, sbase, sval, srd="s[8:11]", sleep=0):
        a = self.a; l = self.lab(); d = self.lab()
        a("s_mov_b32 s41, 0")
        if sleep:
            l0 = self.lab(); a(f"s_branch {l0}"); a(f"{l}:"); a(f"s_sleep {sleep}"); a(f"{l0}:")
        else: a(f"{l}:")
        a(f"buffer_load_dword v{V_TMP}, v{voff}, {srd}, {sbase} offen sc1")
        a("s_add_u32 s41, s41, 1"); a(f"s_cmp_gt_u32 s41, {OPT['spin']}"); a(f"s_cbranch_scc1 {d}")
        a("s_waitcnt vmcnt(0)")
        a(f"v_cmp_gt_u32 vcc, {sval}, v{V_TMP}")
        a(f"s_cbranch_vccnz {l}")
        a(f"{d}:")
    def dma(self, sbase, const, lds, voff=V_LANE16, fl="", srd="s[8:11]", sl="s25"):
        a = self.a
        a(f"s_add_u32 s40, {sbase}, {const}")
        a(f"s_add_u32 m0, {sl}, {lds}")
        a(f"buffer_load_dwordx4 v{voff}, {srd}, s40 offen{fl} lds")
    def touch_txt(self, items):
        l = self.lab()
        L = ["s_cmp_lg_u32 s21, 0", f"s_cbranch_scc1 {l}"]
        for sal, n in items:
            L += sal
            m = (1 << n) - 1
            L += [f"s_mov_b32 exec_lo, {m & 0xffffffff:#x}", f"s_mov_b32 exec_hi, {m >> 32:#x}", f"buffer_load_dword v1, v{V_T128}, s[8:11], s43 offen sc1"]
        L += ["s_mov_b64 exec, -1", f"{l}:"]
        return "\n".join(L)
    def stream(self, steps, look, fill=None):
        a = self.a
        reads = []; need = []
        for s in steps:
            reads += s["reads"]; need.append(len(reads) - 1)
        nr = 0; waited = -1
        def issue():
            nonlocal nr
            op, d, fm, off, bn = reads[nr]
            if bn: self.bar(bn)
            n = 4 if op == "ds_read_b128" else 2
            reg = fm[off >> 16] if isinstance(fm, list) else fm
            a(f"{op} {vr(d, n)}, v{reg} offset:{off & 0xffff}")
            nr += 1
        def lk(i): return steps[min(i, len(steps) - 1)].get("look", look)
        for i, s in enumerate(steps):
            while nr < len(reads) and nr <= need[i] + (lk(i) if i == 0 else 0): issue()
            for x in s.get("pre", []): self.emit(x)
            if need[i] > waited:
                n = nr - 1 - need[i]; assert n <= 15, n
                a(f"s_waitcnt lgkmcnt({n})"); waited = need[i]
            a(s["mf"])
            nxt = need[i + 1] if i + 1 < len(steps) else need[i]
            while nr < len(reads) and nr <= nxt + lk(i + 1): issue()
            for x in s.get("post", []): self.emit(x)
            if fill:
                for f in fill(i): self.emit(f)
            if self.pend_stamp: self.stamp(self.pend_stamp); self.pend_stamp = None
    def rd128(self, w, off, bn=None): return [("ds_read_b128", w, [V_F0, V_F0 + 1], off, bn)]
    def rdtr(self, w, fam, off, d2, bn=None):
        return [("ds_read_b64_tr_b16", w, fam, off, bn), ("ds_read_b64_tr_b16", w + 2, fam, off + d2, None)]
    def tr_addr16(self, dst, t0, t1):
        a = self.a
        a(f"v_lshrrev_b32 v{t0}, 5, v2"); a(f"v_lshlrev_b32 v{dst}, 9, v{t0}")
        a(f"v_bfe_u32 v{t0}, v2, 2, 2"); a(f"v_lshl_add_u32 v{dst}, v{t0}, 6, v{dst}")
        a(f"v_bfe_u32 v{t0}, v2, 4, 1"); a(f"v_lshl_add_u32 v{dst}, v{t0}, 5, v{dst}")
        a(f"v_and_b32 v{t0}, 1, v2"); a(f"v_lshl_add_u32 v{dst}, v{t0}, 4, v{dst}")
        a(f"v_bfe_u32 v{t0}, v2, 1, 1"); a(f"v_lshl_add_u32 v{dst}, v{t0}, 3, v{dst}")

    def prologue(self):
        a = self.a
        a.raw(f".globl {NAME}"); a.raw(".p2align 8"); a.raw(f".type {NAME},@function"); a.raw(f"{NAME}:")
        a("s_cmp_ge_u32 s2, 256"); a("s_cbranch_scc1 L_end")
        if OPT["stamp"]: a("s_memrealtime s[100:101]")
        a("s_load_dwordx4 s[64:67], s[0:1], 0")
        a("s_load_dwordx2 s[8:9], s[0:1], 72")
        a("s_load_dwordx2 s[68:69], s[0:1], 16")
        a("s_load_dwordx8 s[72:79], s[0:1], 32")
        a("s_load_dwordx2 s[70:71], s[0:1], 64")
        a(f"s_mov_b32 s10, {WS_BYTES}"); a("s_mov_b32 s11, 0x20000")
        a("v_lshrrev_b32 v1, 6, v0"); a("v_and_b32 v2, 63, v0")
        a("v_readfirstlane_b32 s3, v1")
        a(f"v_lshlrev_b32 v{V_LANE16}, 4, v2")
        a("s_and_b32 s4, s2, 7"); a("s_lshr_b32 s5, s2, 3"); a("s_and_b32 s6, s3, 3")
        a("s_lshl_b32 s16, s4, 1"); a("s_lshr_b32 s40, s5, 4"); a("s_add_u32 s16, s16, s40")
        a("s_and_b32 s17, s5, 15")
        a("s_lshr_b32 s18, s17, 3"); a("s_and_b32 s19, s17, 7")
        a("s_mov_b32 s20, 0x3f803f80"); a("s_mov_b32 s21, 0"); a("s_mov_b32 s22, 0"); a("s_mov_b32 s23, 0")
        a("s_lshl_b32 s26, s16, 9"); a(f"s_add_u32 s26, s26, {FL}")
        a("s_lshl_b32 s24, s17, 5"); a("s_lshl_b32 s40, s3, 2"); a("s_add_u32 s24, s24, s40"); a("s_add_u32 s24, s24, s26")
        a("s_lshl_b32 s25, s6, 10")
        a("s_lshl_b32 s27, s16, 2"); a("s_add_u32 s27, s27, s6")
        if OPT["rot"]: a("s_add_u32 s28, s16, s17"); a("s_lshl_b32 s28, s28, 2"); a("s_and_b32 s28, s28, 31")
        else: a("s_mov_b32 s28, 0")
        a("s_mov_b32 s35, 0"); a("s_mov_b32 s36, 0")
        a(f"v_mov_b32 v{V_TS}, 0"); a(f"v_mov_b32 v{V_TS2}, 0")

    def attention(self):
        a = self.a
        KF = XR + 8; S = [XR + 44, XR + 60, XR + 76]; M = XR + 92; NM = XR + 108; MX = [XR + 124, XR + 125]; T = XR + 126
        O = ACC[0]; VA = ACC[1]; KA = VA + 9
        VF = [WR, WR + 8]; P = [WR + 16, WR + 24]; BM = ACC[2]; PM = ACC[2] + 8
        a("v_and_b32 v40, 31, v2"); a("v_lshrrev_b32 v41, 5, v2")
        a(f"v_and_b32 v{KA}, 0x13, v40"); a("v_bfe_u32 v42, v40, 2, 1"); a(f"v_lshl_add_u32 v{KA}, v42, 3, v{KA}")
        a("v_bfe_u32 v42, v40, 3, 1"); a(f"v_lshl_add_u32 v{KA}, v42, 2, v{KA}")
        a(f"v_lshlrev_b32 v{KA}, 4, v{KA}"); a(f"v_lshl_add_u32 v{KA}, v41, 9, v{KA}")
        a(f"s_add_u32 s41, s25, {LK}"); a(f"v_add_u32 v{KA}, s41, v{KA}")
        a("v_bfe_u32 v42, v2, 2, 2"); a("v_lshl_add_u32 v42, v41, 3, v42"); a("v_lshlrev_b32 v42, 4, v42")
        a("v_and_b32 v43, 1, v2"); a("v_lshl_add_u32 v42, v43, 9, v42")
        a("v_bfe_u32 v43, v2, 1, 1"); a("v_lshl_add_u32 v42, v43, 3, v42")
        a(f"s_add_u32 s41, s25, {LV}"); a("v_add_u32 v42, s41, v42")
        a("v_bfe_u32 v43, v2, 4, 1"); a("v_cmp_eq_u32 vcc, 1, v43")
        a(f"v_mov_b32 v45, {12*KB}"); a(f"v_cndmask_b32_e64 v{KA+1}, v45, 0, vcc")
        a("s_sub_i32 s42, 8, s27")
        for i in range(9):
            a(f"s_cmp_gt_i32 s42, {i}"); a("s_cselect_b32 s41, 8, 0"); a(f"s_add_u32 s41, s41, {L_ONES}")
            a(f"v_mov_b32 v43, s41"); a(f"v_add_u32 v44, {i*KB}, v42")
            a(f"v_cndmask_b32 v{VA+i}, v44, v43, vcc")
        a("v_mov_b32 v43, 0xffff"); a("v_mov_b32 v44, 0xffff0000")
        for p in range(8):
            a(f"v_cndmask_b32_e64 v45, 0, v43, s[{64+4*p}:{65+4*p}]"); a(f"v_cndmask_b32_e64 v46, 0, v44, s[{66+4*p}:{67+4*p}]")
            a(f"v_or_b32 v{BM+p}, v45, v46")
        return dict(KF=KF, S=S, M=M, NM=NM, O=O, VA=VA, VF=VF, P=P, BM=BM, PM=PM, MX=MX, T=T, KA=KA)

    def attention_run(self, r, after_k):
        a = self.a
        KF, S0, M, NM, O, VA, VF, P, BM, PM, MX, T, KA = (r[x] for x in "KF S M NM O VA VF P BM PM MX T KA".split())
        def kread(hh, i): a(f"ds_read_b128 {vr(KF+4*i,4)}, v{KA} offset:{hh*12*KB + i*KB}")
        def vread(hh, i, vf):
            for t in range(2):
                for u in range(2): a(f"ds_read_b64_tr_b16 {vr(vf+4*t+2*u,2)}, v{VA+i} offset:{t*256 + u*64}")
            if hh == 0: a(f"v_add_u32 v{VA+i}, v{KA+1}, v{VA+i}")
        def qk(hh, dst, i, c): a(f"{MF} {vr(dst,16)}, {vr(KF+4*i,4)}, {vr(XR+4*hh,4)}, {c}")
        def pv(vf, p, t, c): a(f"{MF} {vr(O,16)}, {vr(vf+4*t,4)}, {vr(p+4*t,4)}, {c}")
        def mx(b, first=False):
            lo = 0
            if first:
                a(f"v_max3_f32 v{MX[0]}, v{b}, v{b+1}, v{b+2}"); a(f"v_max3_f32 v{MX[1]}, v{b+3}, v{b+4}, v{b+5}"); lo = 6
            for n, q in enumerate(range(lo, 16, 2)): a(f"v_max3_f32 v{MX[n%2]}, v{MX[n%2]}, v{b+q}, v{b+q+1}")
        def ex(b, lo, hi):
            for q in range(lo, hi): a(f"v_exp_f32 v{b+q}, v{b+q}")
        def cv(p, b, lo, hi):
            for q in range(lo, hi): a(f"v_cvt_pk_bf16_f32 v{p+q}, v{b+2*q}, v{b+2*q+1}")
        def fin(hh):
            a(f"v_rcp_f32 v{T}, v{O+8}")
            for q in range(8): a(f"v_mul_f32 v{O+q}, v{T}, v{O+q}")
            for q in range(4): a(f"v_cvt_pk_bf16_f32 v{V_EP+q}, v{O+2*q}, v{O+2*q+1}")
            self.store(f"buffer_store_dwordx4 {vr(V_EP,4)}, v{V_LANE16}, s[8:11], s37 offen offset:{hh*KB}")
        for i in (8, 0, 1, 2, 3, 4, 5, 6, 7): kread(0, i)
        a("s_waitcnt lgkmcnt(8)"); qk(0, M, 8, "0")
        a("s_waitcnt lgkmcnt(7)"); qk(0, S0[0], 0, "0")
        a("s_waitcnt lgkmcnt(6)"); qk(0, S0[1], 1, "0")
        for hh in range(2):
            S = S0 if hh == 0 else [S0[2], S0[0], S0[1]]
            a("s_waitcnt lgkmcnt(0)")
            qk(hh, S[2], 2, "0")
            for q in range(16): a(f"v_cndmask_b32_e64 v{M+q}, v{S[0]+q}, v{M+q}, s[{64+2*q}:{65+2*q}]")
            qk(hh, S[0], 3, "0")
            mx(M, True)
            if hh == 1: fin(0)
            for i in range(1, 8):
                b = S[i % 3]
                mx(b)
                if i + 3 <= 7: qk(hh, b, i + 3, "0")
            a(f"v_max_f32 v{MX[0]}, v{MX[0]}, v{MX[1]}"); a(f"v_mov_b32 v{MX[1]}, v{MX[0]}")
            if hh == 0: after_k()
            vread(hh, 8, VF[0])
            a(f"v_permlane32_swap_b32 v{MX[0]}, v{MX[1]}")
            vread(hh, 0, VF[1])
            a(f"v_max_f32 v{MX[0]}, v{MX[0]}, v{MX[1]}")
            for q in range(16): a(f"v_sub_f32 v{NM+q}, 0, v{MX[0]}")
            qk(hh, S[1], 1, vr(NM, 16))
            for q in range(16): a(f"v_sub_f32 v{M+q}, v{M+q}, v{MX[0]}")
            qk(hh, S[2], 2, vr(NM, 16))
            ex(M, 0, 16)
            if hh == 0: kread(1, 8); kread(1, 0); kread(1, 1); kread(1, 2)
            cv(PM, M, 0, 8)
            for q in range(8): a(f"v_and_b32 v{P[0]+q}, v{BM+q}, v{PM+q}")
            a("s_waitcnt lgkmcnt(4)" if hh == 0 else "s_waitcnt lgkmcnt(0)")
            pv(VF[0], P[0], 0, "0")
            for q in range(8): a(f"v_xor_b32 v{P[1]+q}, v{P[0]+q}, v{PM+q}")
            pv(VF[0], P[0], 1, vr(O, 16))
            pend = [(VF[1], P[1], 0), (VF[1], P[1], 1)]
            for i in range(1, 8):
                b = S[i % 3]; vf = VF[(i + 1) % 2]; p = P[(i + 1) % 2]
                ex(b, 0, 4)
                vread(hh, i, vf)
                x = pend.pop(0); pv(*x, vr(O, 16))
                ex(b, 4, 8)
                if pend: x = pend.pop(0); pv(*x, vr(O, 16))
                ex(b, 8, 12)
                if i + 2 <= 7:
                    qk(hh, S[(i + 2) % 3], i + 2, vr(NM, 16))
                    if hh == 0: kread(1, i + 2)
                elif hh == 0:
                    if i == 6: qk(1, M, 8, "0")
                    else: qk(1, S0[0], 1, "0")
                ex(b, 12, 16)
                if hh == 0 and i == 6: qk(1, S0[2], 0, "0")
                cv(p, b, 0, 8)
                a("s_waitcnt lgkmcnt(1)" if (hh == 0 and i + 2 <= 7) else "s_waitcnt lgkmcnt(0)")
                pv(vf, p, 0, vr(O, 16))
                pend.append((vf, p, 1))
            x = pend.pop(0); pv(*x, vr(O, 16))
        fin(1)
        self.flag(1)

    def ln_stats(self, d):
        L = []
        for n in (8, 4, 2, 1):
            for i in range(n): L.append(f"v_add_f32 v{d+i}, v{d+i}, v{d+i+n}")
        L += [f"v_mov_b32 v{d+1}, v{d}", f"v_permlane32_swap_b32 v{d}, v{d+1}", "s_nop 1",
              f"v_mul_f32 v{d}, {f32(-1.0/512)}, v{d}", f"v_mul_f32 v{d+1}, {f32(1.0/512)}, v{d+1}",
              f"v_fma_f32 v{d+1}, -v{d}, v{d}, v{d+1}", f"v_max_f32 v{d+1}, 0, v{d+1}", f"v_add_f32 v{d+1}, {f32(1e-5)}, v{d+1}",
              f"v_rsq_f32 v{V_RSTD}, v{d+1}", f"v_sqrt_f32 v{V_STD}, v{d+1}",
              f"v_cvt_pk_bf16_f32 v{V_XAUG}, v{d}, v{d}",
              f"v_and_b32 v{d+2}, 0xffff0000, v{V_XAUG}", f"v_sub_f32 v{d+2}, v{d}, v{d+2}", f"v_mov_b32 v{d+3}, 0",
              f"v_cvt_pk_bf16_f32 v{V_XAUG+1}, v{d+2}, v{d+3}",
              f"v_cndmask_b32_e64 v{V_XAUG}, 0, v{V_XAUG}, s[62:63]", f"v_cndmask_b32_e64 v{V_XAUG+1}, 0, v{V_XAUG+1}, s[62:63]",
              f"v_mul_f32 v{V_C1}, {f32(-LOG2E)}, v{V_RSTD}"]
        return L
    def wreg(self):
        w = WR + 4 * (self.wc % NW); self.wc += 1; return w
    def aug_step(self, acc, augidx, bn=None, look=None):
        self.augflip ^= 1
        w = V_WAUG if self.augflip else 44
        s = dict(reads=[("ds_read_b64", w, V_AUGA, augidx * 256, bn)], mf=f"{MF} {vr(acc,16)}, {vr(w,4)}, {vr(V_XAUG,4)}, {vr(acc,16)}")
        return s
    def x_pass1(self, xl, sst, local, wread, augs, augbar):
        a = self.a; vm = self.vm
        PRE = OPT["pre"]; STD = ACC[2]
        def X(kc):
            def f(): xl(kc); vm.issue(f"x{kc}")
            return f
        XS = STD + 4
        def piece(p):
            a(f"s_add_u32 s41, s28, {4*p}"); a("s_and_b32 s41, s41, 31"); a("s_lshl_b32 s41, s41, 5"); a("s_add_u32 s41, s41, s55")
            for i in range(4): self.dma("s41", i*8*KB, L_X0 + (p%3)*16*KB + i*KB, voff=XS + i%2, srd="s[44:47]", sl="s42")
        def dots(lo, hi):
            for kc in range(lo, hi):
                for i in range(4):
                    r = XR + 4 * kc + i
                    a(f"v_dot2c_f32_bf16 v{STD + 2*(i%2)}, s20, v{r}"); a(f"v_dot2c_f32_bf16 v{STD + 1 + 2*(i%2)}, v{r}, v{r}")
        def get0(p):
            a(f"s_waitcnt vmcnt({4 * min(2, 7 - p)})")
            for q in range(4): a(f"ds_read_b128 {vr(XR+16*p+4*q,4)}, v{XS+2+q} offset:{(p%3)*16*KB}")
            if p: dots(4*p - 4, 4*p)
            a("s_waitcnt lgkmcnt(0)")
            if OPT["fine"] > 1: self.stamp(16 + p)
            if p + 3 < 8: piece(p + 3)
        def fin0():
            dots(28, 32)
            a(f"v_add_f32 v{STD}, v{STD}, v{STD+2}"); a(f"v_add_f32 v{STD+1}, v{STD+1}, v{STD+3}")
            a(f"v_permlane32_swap_b32 v{STD}, v{STD+1}"); a("s_nop 1"); a(f"v_add_f32 v{STD}, v{STD}, v{STD+1}")
            for x in self.ln_stats(STD)[15:]: a(x)
        if local == "start":
            a(f"v_lshrrev_b32 v{XS+3}, 4, v2"); a(f"v_and_b32 v{XS}, 7, v2"); a(f"v_xor_b32 v{XS}, v{XS+3}, v{XS}"); a(f"v_lshlrev_b32 v{XS}, 4, v{XS}")
            a(f"v_lshrrev_b32 v{XS+3}, 3, v2"); a(f"v_lshl_add_u32 v{XS}, v{XS+3}, 10, v{XS}"); a(f"v_xor_b32 v{XS+1}, 64, v{XS}")
            a("s_lshl_b32 s42, s6, 12")
            a("s_waitcnt lgkmcnt(0)"); a("s_mov_b64 s[44:45], s[64:65]")
            piece(0); piece(1); piece(2)
            return
        if local:
            for i in range(4): a(f"v_mov_b32 v{STD+i}, 0")
            a(f"v_bfe_u32 v{XS+2}, v2, 1, 3"); a(f"v_lshrrev_b32 v{XS+3}, 5, v2"); a(f"v_xor_b32 v{XS+2}, v{XS+3}, v{XS+2}"); a(f"v_lshlrev_b32 v{XS+2}, 4, v{XS+2}")
            a(f"v_and_b32 v{XS+3}, 31, v2"); a(f"v_lshl_add_u32 v{XS+2}, v{XS+3}, 7, v{XS+2}")
            a(f"s_add_u32 s41, s42, {L_X0}"); a(f"v_add_u32 v{XS+2}, s41, v{XS+2}")
            for q in range(1, 4): a(f"v_xor_b32 v{XS+2+q}, {32*q}, v{XS+2}")
        else:
            for i in range(4): a(f"buffer_load_dwordx4 {vr(STD+4*i,4)}, v{V_LANE16}, s[8:11], {sst} offen offset:{1024*i} sc1")
            for kc in range(PRE): X(kc)()
        steps = []
        st = self.ln_stats(STD)
        for kc in range(32):
            for t in range(2):
                w = self.wreg()
                s = dict(reads=wread(w, t, kc), mf=f"{MF} {vr(ACC[t],16)}, {vr(w,4)}, {vr(XR+4*kc,4)}, {'0' if kc == 0 else vr(ACC[t],16)}", post=[])
                if local:
                    if t == 0 and kc % 4 == 0: s["pre"] = [lambda kc=kc: get0(kc // 4)]
                    if t == 1 and kc == 31: s["post"].append(fin0)
                elif t == 0:
                    s["pre"] = [lambda kc=kc: vm.wait(f"x{kc}")]
                    if kc + PRE < 32: s["post"].append(X(kc + PRE))
                elif kc >= 2:
                    s["post"] += st[:3]; st = st[3:]
                steps.append(s)
        for t in range(2): steps.append(self.aug_step(ACC[t], augs[t], augbar if t == 0 else None))
        return steps

    def res_gemm(self, nsteps, slot, aload, bars, xch, xchbar, poll):
        a = self.a; vm = self.vm
        PRE = OPT["pre"]
        for i in range(8):
            a(f"v_lshlrev_b32 v{ACC[0]+2*i}, 16, v{V_RES+i}"); a(f"v_and_b32 v{ACC[0]+2*i+1}, 0xffff0000, v{V_RES+i}")
        a(f"v_xor_b32 v{V_EP}, 64, v{V_FW}"); a(f"v_add_u32 v{V_EP+1}, 0x10000, v{V_EP}"); a(f"v_add_u32 v{V_EP+2}, 0x20000, v{V_EP}")
        poll(); vm.q = []
        def A(s):
            def f(): aload(s); vm.issue(f"a{s}")
            return f
        for s in range(min(PRE, nsteps)): A(s)()
        steps = []; self.wc = 0
        fo = [V_FW, V_FW + 1, V_FW + 2]; ft = [V_EP, V_EP + 1, V_EP + 2]
        for s in range(nsteps):
            ar_ = XR + 4 * (s % 32)
            for t in range(2):
                w = self.wreg()
                c = vr(ACC[t], 16) if (t == 0 or s > 0) else "0"
                st = dict(reads=self.rdtr(w, fo if t == 0 else ft, slot(s), 512, bars.get(s) if t == 0 else None),
                          mf=f"{MF} {vr(ACC[t],16)}, {vr(w,4)}, {vr(ar_,4)}, {c}")
                if t == 0: st["pre"] = [lambda s=s: vm.wait(f"a{s}")]
                elif s + PRE < nsteps: st["post"] = [A(s + PRE)]
                steps.append(st)
        self.stream(steps, look=12)
        a(f"s_xor_b32 s40, s6, 1"); a("s_lshl_b32 s40, s40, 12"); a(f"s_add_u32 s40, s40, {xch}"); a(f"v_add_u32 v{V_TMP}, s40, v{V_LANE16}")
        for i in range(4): a(f"ds_write_b128 v{V_TMP}, {vr(ACC[1]+4*i,4)} offset:{i*KB}")
        a("s_lshl_b32 s40, s6, 12"); a(f"s_add_u32 s40, s40, {xch}"); a(f"v_add_u32 v{V_TMP}, s40, v{V_LANE16}")
        a("s_waitcnt lgkmcnt(0)")
        self.bar(xchbar)
        for i in range(4): a(f"ds_read_b128 {vr(ACC[1]+4*i,4)}, v{V_TMP} offset:{i*KB}")
        for i in range(4):
            a(f"s_waitcnt lgkmcnt({3-i})")
            for q in range(4): a(f"v_add_f32 v{ACC[0]+4*i+q}, v{ACC[0]+4*i+q}, v{ACC[1]+4*i+q}")
            for q in range(2): a(f"v_cvt_pk_bf16_f32 v{V_RES+2*i+q}, v{ACC[0]+4*i+2*q}, v{ACC[0]+4*i+2*q+1}")

    def x_store(self, sx, sst, flagval):
        a = self.a
        self.store(f"buffer_store_dwordx4 {vr(V_RES,4)}, v{V_LANE16}, s[8:11], {sx} offen")
        self.store(f"buffer_store_dwordx4 {vr(V_RES+4,4)}, v{V_LANE16}, s[8:11], {sx} offen offset:1024")
        for x in stats_calc_list(V_RES, ACC[1]): a(x)
        self.store(f"buffer_store_dword v{ACC[1]}, v{V_LANE16}, s[8:11], {sst} offen")
        self.bar("stores")
        self.flag(flagval)

    def compute(self):
        a = self.a; self.role = "C"; self.vm = vm = VM(a)
        a(f"s_setprio {OPT['cprio']}")
        a("v_and_b32 v40, 31, v2"); a("v_lshrrev_b32 v41, 5, v2")
        a(f"v_lshlrev_b32 v{V_XOFF}, 10, v40"); a(f"v_lshl_add_u32 v{V_XOFF}, v41, 4, v{V_XOFF}")
        a("s_lshl_b32 s55, s27, 15")
        a(f"s_mov_b32 s46, {2048*1024}"); a("s_mov_b32 s47, 0x20000")
        self.x_pass1(None, None, "start", None, None, None)
        a(f"s_mov_b32 s14, {2048*1024}"); a("s_mov_b32 s15, 0x20000")
        a("s_lshr_b32 s50, s6, 1"); a("s_and_b32 s51, s6, 1")
        a("s_lshl_b32 s48, s18, 1"); a("s_add_u32 s48, s48, s50"); a("s_mov_b32 s52, s48")
        a("s_lshl_b32 s40, s16, 2"); a("s_add_u32 s48, s48, s40")
        a("s_lshl_b32 s49, s19, 1"); a("s_add_u32 s49, s49, s51")
        a("s_lshl_b32 s53, s48, 15"); a("s_lshl_b32 s40, s49, 11"); a("s_add_u32 s53, s53, s40")
        a("s_lshl_b32 s54, s48, 12"); a("s_lshr_b32 s40, s49, 2"); a("s_lshl_b32 s40, s40, 10"); a("s_add_u32 s54, s54, s40")
        a("s_and_b32 s40, s49, 3"); a("s_lshl_b32 s40, s40, 2"); a("s_add_u32 s54, s54, s40")
        a(f"v_mov_b32 v{V_F0}, v{V_LANE16}"); a(f"v_add_u32 v{V_F0+1}, 0x10000, v{V_LANE16}")
        a(f"v_lshlrev_b32 v{V_T128}, 7, v2")
        self.tr_addr16(V_TQ, 42, 43); a(f"v_add_u32 v{V_TQ+1}, 0x10000, v{V_TQ}")
        a(f"v_lshlrev_b32 v{V_FW}, 10, v41"); a("v_bfe_u32 v42, v2, 2, 2"); a(f"v_lshl_add_u32 v{V_FW}, v42, 7, v{V_FW}")
        a("v_bfe_u32 v42, v2, 3, 1"); a("v_xor_b32 v42, s51, v42"); a(f"v_lshl_add_u32 v{V_FW}, v42, 6, v{V_FW}")
        a(f"v_and_b32 v42, 63, v{V_TQ}"); a(f"v_add_u32 v{V_FW}, v42, v{V_FW}")
        a("s_lshl_b32 s40, s51, 11"); a(f"v_add_u32 v{V_FW}, s40, v{V_FW}")
        a(f"v_add_u32 v{V_FW+1}, 0x10000, v{V_FW}"); a(f"v_add_u32 v{V_FW+2}, 0x20000, v{V_FW}")
        a("v_bfe_u32 v42, v2, 1, 3"); a("v_and_b32 v43, 1, v2"); a("v_and_b32 v44, 7, v2")
        a("s_lshl_b32 s40, s50, 8"); a("s_lshl_b32 s41, s51, 3"); a("s_add_u32 s40, s40, s41")
        a(f"v_lshlrev_b32 v{V_PX}, 5, v42"); a(f"v_lshl_add_u32 v{V_PX}, v43, 2, v{V_PX}"); a(f"v_add_u32 v{V_PX}, s40, v{V_PX}")
        a("s_lshl_b32 s40, s51, 8"); a("s_lshl_b32 s41, s52, 2"); a("s_add_u32 s40, s40, s41")
        a(f"v_lshlrev_b32 v{V_PH}, 5, v44"); a(f"v_add_u32 v{V_PH}, s40, v{V_PH}")
        a(f"v_lshlrev_b32 v{V_AUGA}, 3, v40"); a(f"v_add_u32 v{V_AUGA}, {L_AUG}, v{V_AUGA}")
        a(f"v_mov_b32 v{V_XAUG+2}, 0"); a(f"v_mov_b32 v{V_XAUG+3}, 0"); a(f"v_mov_b32 v{V_WAUG+2}, 0"); a(f"v_mov_b32 v{V_WAUG+3}, 0")
        a("v_cmp_gt_u32 s[62:63], 32, v2")
        a("v_lshlrev_b32 v42, 3, v41"); a("v_sub_u32 v42, v40, v42")
        a("s_mov_b64 s[12:13], s[78:79]")
        if OPT["stamp"]: a(f"v_writelane_b32 v{V_TS}, s100, 31")
        for r in range(16): a(f"v_cmp_le_i32 s[{64+2*r}:{65+2*r}], {16*(r>>3) + (r&7)}, v42")
        self.stamp(0)
        ftq = [V_TQ, V_TQ + 1]
        a("v_mov_b32 v46, 0"); a("v_mov_b32 v47, 0")
        self.wc = 0; fl0 = self.augflip
        steps = self.x_pass1(None, None, True, lambda w, t, kc: self.rdtr(w, ftq, (P1, P2)[t] + kc*KB, 256, f"B1_{kc}" if (t == 0 and kc % 8 == 0) else None), [1, 2], "B2")
        self.stream(steps, look=8)
        a("s_branch L_c_go")
        a("L_c_loop:")
        self.stamp(0)
        a("v_mov_b32 v46, 0"); a("v_mov_b32 v47, 0")
        self.poll(V_PX, "s26", "s57"); vm.q = []
        self.stamp(1)
        def xl(kc):
            if kc % 4 == 0: a(f"s_add_u32 s43, s55, {kc*KB}")
            a(f"buffer_load_dwordx4 {vr(XR+4*kc,4)}, v{V_LANE16}, s[8:11], s43 offen offset:{(kc%4)*KB} sc1")
        self.wc = 0; self.augflip = fl0
        steps = self.x_pass1(xl, "s56", False, lambda w, t, kc: self.rdtr(w, ftq, (P1, P2)[t] + kc*KB, 256), [1, 2], "B2x")
        self.stream(steps, look=12)
        self.bars["C"].remove("B2x")
        a("L_c_go:")
        if OPT["fine"]: self.stamp(14)
        steps = []
        for kc in range(32):
            w = self.wreg()
            steps.append(dict(reads=self.rdtr(w, ftq, P3 + kc*KB, 256),
                              mf=f"{MF} {vr(ACC[2],16)}, {vr(w,4)}, {vr(XR+4*kc,4)}, {'0' if kc == 0 else vr(ACC[2],16)}"))
        steps.append(self.aug_step(ACC[2], 0, "B2c"))
        q = ["s_lshl_b32 s58, s17, 17", "s_lshl_b32 s40, s27, 10", "s_add_u32 s58, s58, s40", f"s_add_u32 s58, s58, {KV}", "s_add_u32 s58, s58, s36",
             f"s_add_u32 s40, s25, {LK + 8*KB}", f"v_add_u32 v{V_OUT}, s40, v{V_LANE16}"]
        for t in range(2):
            A0 = ACC[t]
            for hh in range(2):
                q += [f"v_mul_f32 v{A0+r}, v{V_RSTD}, v{A0+r}" for r in range(8*hh, 8*hh + 8)]
                q += [f"v_cvt_pk_bf16_f32 v{A0+r}, v{A0+2*r}, v{A0+2*r+1}" for r in range(4*hh, 4*hh + 4)]
                q += [f"s_add_u32 s59, s58, {t*32*64*KB + hh*64*KB}", f"buffer_store_dwordx4 {vr(A0+4*hh,4)}, v{V_LANE16}, s[8:11], s59 offen sc1"]
        def kvflag():
            a("s_lshl_b32 s40, s16, 11"); a("s_lshl_b32 s41, s17, 7"); a("s_add_u32 s40, s40, s41"); a("s_lshl_b32 s41, s6, 2"); a("s_add_u32 s40, s40, s41"); a(f"s_add_u32 s40, s40, {KVFL}")
            a("s_add_u32 s41, s22, 1"); a(f"v_mov_b32 v{V_TMP}, s41")
            vm.drain()
            a("s_mov_b64 exec, 1"); a(f"buffer_store_dword v{V_TMP}, off, s[8:11], s40 sc1"); a("s_mov_b64 exec, -1")
            self.bar("B2b")
        steps[0]["pre"] = q[:7 + 14]; q = q[7 + 14:]
        def fill(i):
            out = []
            for _ in range(14):
                if q: out.append(q.pop(0))
            if i == OPT["kvflag"]: out.append(kvflag)
            return out
        self.stream(steps[:-1], look=12, fill=fill)
        self.stream(steps[-1:], look=0)
        assert not q
        for hh in range(2):
            a(f"ds_write_b128 v{V_OUT}, {vr(ACC[0]+4*hh,4)} offset:{hh*12*KB}")
            a(f"ds_write_b128 v{V_OUT}, {vr(ACC[1]+4*hh,4)} offset:{24*KB + hh*12*KB}")
        a(f"v_mul_f32 v{V_C1}, {f32(0.25*LOG2E)}, v{V_RSTD}")
        for r in range(16): a(f"v_mul_f32 v{ACC[2]+r}, v{V_C1}, v{ACC[2]+r}")
        for r in range(8): a(f"v_cvt_pk_bf16_f32 v{XR+r}, v{ACC[2]+2*r}, v{ACC[2]+2*r+1}")
        self.stamp(2)
        r = self.attention()
        a(f"v_mov_b32 v{V_TMP}, {L_MODE}"); a(f"ds_read_b32 v{V_TMP}, v{V_TMP}"); a("s_waitcnt lgkmcnt(0)")
        a(f"v_readfirstlane_b32 s21, v{V_TMP}")
        a("s_lshl_b32 s37, s27, 15"); a("s_lshl_b32 s40, s17, 11"); a("s_add_u32 s37, s37, s40"); a(f"s_add_u32 s37, s37, {OF}"); a("s_add_u32 s37, s37, s35")
        self.bar("B3")
        self.stamp(3)
        def after_k():
            self.bar("B3v")
            l = self.lab()
            a("s_cmp_lg_u32 s22, 0"); a(f"s_cbranch_scc1 {l}")
            a("s_lshl_b32 s40, s48, 15"); a("s_lshl_b32 s41, s49, 6"); a("s_add_u32 s40, s40, s41")
            a(f"buffer_load_dwordx4 {vr(V_RES,4)}, v{V_XOFF}, s[44:47], s40 offen")
            a(f"buffer_load_dwordx4 {vr(V_RES+4,4)}, v{V_XOFF}, s[44:47], s40 offen offset:32")
            a(f"{l}:")
            a(self.touch_txt([(["s_mov_b32 s43, s37"], 16), ([f"s_add_u32 s43, s53, {XA}"], 16), ([f"s_add_u32 s43, s54, {STA}"], 8),
                              ([f"s_mul_i32 s43, s27, {112*KB}", f"s_mul_i32 s40, s17, {7*KB}", "s_add_u32 s43, s43, s40", f"s_add_u32 s43, s43, {HF}"], 56)]))
        self.attention_run(r, after_k)
        self.stamp(4)
        self.bar("B4")
        a(f"s_add_u32 s58, s53, {XA}"); a("s_add_u32 s58, s58, s35"); a(f"s_add_u32 s59, s54, {STA}"); a("s_add_u32 s59, s59, s35")
        a("s_lshl_b32 s60, s48, 15"); a("s_lshl_b32 s40, s51, 14"); a("s_add_u32 s60, s60, s40"); a(f"s_add_u32 s60, s60, {OF}"); a("s_add_u32 s60, s60, s35")
        a("s_add_u32 s61, s23, 1")
        def al_o(s):
            if s % 4 == 0: a(f"s_add_u32 s43, s60, {s*KB}")
            a(f"buffer_load_dwordx4 {vr(XR+4*(s%32),4)}, v{V_LANE16}, s[8:11], s43 offen offset:{(s%4)*KB} sc1")
        def p_o(): self.poll(V_PH, "s26", "s61"); self.stamp(5)
        self.res_gemm(16, lambda s: P1 + s*4*KB, al_o, {}, XCH_WO, "B5", p_o)
        self.x_store("s58", "s59", 2)
        self.stamp(6)
        a(f"s_mul_i32 s60, s27, {112*KB}"); a(f"s_mul_i32 s40, s17, {7*KB}"); a("s_add_u32 s60, s60, s40"); a(f"s_add_u32 s60, s60, {HF}"); a("s_add_u32 s60, s60, s35")
        a("s_lshl_b32 s58, s27, 15"); a(f"s_add_u32 s58, s58, {XA}"); a("s_add_u32 s58, s58, s35")
        a("s_lshl_b32 s59, s27, 12"); a(f"s_add_u32 s59, s59, {STA}"); a("s_add_u32 s59, s59, s35")
        a("s_add_u32 s61, s23, 2")
        a("v_mov_b32 v46, 0"); a("v_mov_b32 v47, 0")
        self.poll(V_PX, "s26", "s61"); vm.q = []
        self.stamp(7)
        def xl2(kc):
            if kc % 4 == 0: a(f"s_add_u32 s43, s58, {kc*KB}")
            a(f"buffer_load_dwordx4 {vr(XR+4*kc,4)}, v{V_LANE16}, s[8:11], s43 offen offset:{(kc%4)*KB} sc1")
        self.wc = 0
        steps = self.x_pass1(xl2, "s59", False, lambda w, t, kc: self.rd128(w, GU_REG[t] + kc*KB, {0: "B6", 16: "G1m"}.get(kc) if t == 0 else None), [3, 4], None)
        done = {0: len(steps) - 2, 1: len(steps) - 1}; start = {}
        accof = {t: ACC[t % 3] for t in range(7)}
        for t in range(2, 7):
            start[t] = len(steps)
            for kc in range(32):
                w = self.wreg()
                bn = f"G{t}a" if kc == 0 else f"G{t}m" if kc == 16 else None
                steps.append(dict(reads=self.rd128(w, GU_REG[t] + kc*KB, bn),
                                  mf=f"{MF} {vr(accof[t],16)}, {vr(w,4)}, {vr(XR+4*kc,4)}, {'0' if kc == 0 else vr(accof[t],16)}"))
            steps.append(self.aug_step(accof[t], 3 + t))
            done[t] = len(steps) - 1
        def epi(t):
            A0 = accof[t]; L = []
            L += [f"v_mul_f32 v{A0+r}, v{V_C1}, v{A0+r}" for r in range(8)]
            L += [f"v_exp_f32 v{A0+r}, v{A0+r}" for r in range(8)]
            L += [f"v_fma_f32 v{A0+r}, v{A0+r}, v{V_STD}, v{V_STD}" for r in range(8)]
            L += [f"v_rcp_f32 v{A0+r}, v{A0+r}" for r in range(8)]
            L += [f"v_mul_f32 v{A0+r}, v{A0+r}, v{A0+8+r}" for r in range(8)]
            L += [f"v_cvt_pk_bf16_f32 v{V_EP+r}, v{A0+2*r}, v{A0+2*r+1}" for r in range(4)]
            L += [f"s_add_u32 s43, s60, {t*KB}", self.store_txt(f"buffer_store_dwordx4 {vr(V_EP,4)}, v{V_LANE16}, s[8:11], s43 offen")]
            return L
        queue = []; flag_at = {}
        def fill2(i):
            for t in range(7):
                if done[t] + 2 == i: queue.extend((x, t) for x in epi(t))
            out = []
            if OPT["fine"] and i == done[1]: self.pend_stamp = 12
            if OPT["fine"] and i == done[3]: self.pend_stamp = 13
            if i == done[2]: out.append(self.touch_txt([([f"s_add_u32 s43, s53, {XB}"], 16), ([f"s_add_u32 s43, s54, {STB}"], 8)]))
            for t2, sidx in start.items():
                if sidx == i + 1 and t2 >= 3:
                    while queue and queue[0][1] <= t2 - 3: out.append(queue.pop(0)[0])
            cost = 0; lim = OPT.get("fillc", 4) if len(queue) > 46 or i < done[2] else OPT.get("fillc2", 3)
            while queue and cost < lim:
                x, t = queue.pop(0); out.append(x); cost += 2 if x.startswith(("v_exp", "v_rcp")) else 1
                if "buffer_store" in x and t == 4: flag_at[min(i + 12, done[5] + 1)] = t
            if i in flag_at: out.append(lambda: self.flag(7))
            return out
        self.stream(steps, look=6, fill=fill2)
        for x, _ in queue: a(x)
        for x in epi(6): a(x)
        self.flag(9)
        self.stamp(8)
        a(f"s_add_u32 s58, s53, {XB}"); a("s_add_u32 s58, s58, s35"); a(f"s_add_u32 s59, s54, {STB}"); a("s_add_u32 s59, s59, s35")
        a(f"s_mul_i32 s60, s48, {112*KB}"); a(f"s_mul_i32 s40, s51, {56*KB}"); a("s_add_u32 s60, s60, s40"); a(f"s_add_u32 s60, s60, {HF}"); a("s_add_u32 s60, s60, s35")
        a("s_add_u32 s61, s23, 7"); a("s_add_u32 s42, s23, 9")
        def al_h(s):
            t, i = s // 8, s % 8
            if s == 40 - OPT["pre"]:
                a(f"buffer_load_dword v{V_OUT}, v{V_PH}, s[8:11], s26 offen sc1"); vm.issue("fl")
            if s == 40:
                vm.wait("fl")
                d = self.lab()
                a(f"v_cmp_gt_u32 vcc, s42, v{V_OUT}"); a(f"s_cbranch_vccz {d}")
                self.poll(V_PH, "s26", "s42")
                a(f"{d}:")
            a(f"s_add_u32 s43, s60, {(7*i + t)*KB}"); a(f"buffer_load_dwordx4 {vr(XR+4*(s%32),4)}, v{V_LANE16}, s[8:11], s43 offen sc1")
        def p_h(): self.poll(V_PH, "s26", "s61"); self.stamp(9)
        self.res_gemm(56, wd_slot, al_h, {s: f"D{s}" for s in self.DBARS}, XCH_DN, "B9", p_h)
        self.stamp(10)
        a("s_cmp_lg_u32 s22, 0"); a("s_cbranch_scc1 L_c_final")
        self.x_store("s58", "s59", 10)
        a("s_lshl_b32 s55, s27, 15"); a(f"s_add_u32 s55, s55, {XB}"); a("s_add_u32 s55, s55, s35")
        a("s_lshl_b32 s56, s27, 12"); a(f"s_add_u32 s56, s56, {STB}"); a("s_add_u32 s56, s56, s35")
        a("s_mov_b32 s57, 10")
        self.next_iter()
        a.fence()
        a("s_branch L_c_loop")
        a("L_c_final:")
        a("s_lshl_b32 s40, s48, 15"); a("s_lshl_b32 s41, s49, 6"); a("s_add_u32 s40, s40, s41")
        a(f"buffer_store_dwordx4 {vr(V_RES,4)}, v{V_XOFF}, s[12:15], s40 offen")
        a(f"buffer_store_dwordx4 {vr(V_RES+4,4)}, v{V_XOFF}, s[12:15], s40 offen offset:32")
        self.finish()

    def next_iter(self):
        a = self.a
        a("s_mov_b32 s22, 1"); a("s_mov_b32 s23, 16")
        a(f"s_mov_b32 s36, {ITS}"); a(f"s_mul_i32 s35, s21, {ITS}")
    def finish(self):
        a = self.a
        if OPT["stamp"]:
            a("s_waitcnt vmcnt(0)")
            self.stamp(11)
            a("s_lshl_b32 s40, s2, 12"); a("s_lshl_b32 s41, s3, 9"); a("s_add_u32 s40, s40, s41"); a(f"s_add_u32 s40, s40, {TS}")
            a("v_lshlrev_b32 v40, 2, v2")
            a(f"buffer_store_dword v{V_TS}, v40, s[8:11], s40 offen"); a(f"buffer_store_dword v{V_TS2}, v40, s[8:11], s40 offen offset:256")
        a("s_endpgm")

    def helper(self):
        a = self.a; self.role = "H"; vm = VM(a)
        HV_QKV = 16; HV_ROW0 = 17; HV_OOB = 18; HV_PK = 19; HV_W = 20; HV_R128 = 23; HV_TQ = 24; HT = 26
        SQ, SO, SD, SG, SX, SDBG = "s[44:47]", "s[48:51]", "s[52:55]", "s[56:59]", "s[60:63]", "s[12:15]"
        def it0(fn):
            l = self.lab()
            a("s_cmp_lg_u32 s22, 0"); a(f"s_cbranch_scc1 {l}"); fn(); a(f"{l}:")
        def tile(t, gs=range(8)):
            for g in gs: self.dma("s29", t*32*KB + g*4*KB, GU_REG[t] + g*4*KB, fl=" sc1"); vm.issue(f"t{t}")
        def wqkv(which, gs):
            for g in gs:
                a(f"s_add_u32 s41, s30, {4*g}"); a("s_and_b32 s41, s41, 31"); a("s_mul_i32 s41, s41, 49152"); a("s_add_u32 s41, s41, s31")
                for ci, reg, tag in which:
                    self.dma("s41", ci*1024, reg + g*4*KB, voff=HV_QKV, srd=SQ); vm.issue(f"{tag}{g//2}")
        def wqp(which, gs):
            for g in gs:
                for ci, reg, tag in which:
                    self.dma("s34", ci*32*KB + g*4*KB, reg + g*4*KB, fl=" sc1"); vm.issue(tag)
        WK = (1, P1, "kv"); WV = (2, P2, "kv"); WQ = (0, P3, "wq")
        st_next = [0]
        def stash(n):
            if st_next[0] >= 56: return
            def f():
                for _ in range(n):
                    s_ = st_next[0]
                    if s_ >= 56: break
                    t, i = s_ // 8, s_ % 8
                    a(f"s_add_u32 s40, s33, {(7*i + t)*16*KB}")
                    a(f"buffer_load_dwordx4 {vr(STASH+4*s_,4)}, v{HV_R128}, {SD}, s40 offen")
                    st_next[0] += 1
            it0(f)
        def wdw(steps):
            for s_ in steps:
                if s_ >= 56: break
                o = wd_slot(s_)
                a(f"ds_write_b128 v{HV_W + (o >> 16)}, {vr(STASH+4*s_,4)} offset:{o & 0xffff}")
        a("s_lshl_b32 s80, s16, 7"); a("s_lshl_b32 s40, s17, 3"); a("s_add_u32 s80, s80, s40"); a("s_lshl_b32 s40, s6, 1"); a("s_add_u32 s80, s80, s40")
        a(f"v_lshrrev_b32 v{HT}, 2, v2"); a(f"v_mul_u32_u24 v{HV_QKV}, 3072, v{HT}"); a(f"v_and_b32 v{HT}, 3, v2"); a(f"v_lshl_add_u32 v{HV_QKV}, v{HT}, 4, v{HV_QKV}")
        a("s_add_u32 s30, s28, s6"); a("s_lshl_b32 s31, s17, 6")
        a(f"s_mov_b32 s46, {512*3072}"); a("s_mov_b32 s47, 0x20000"); a(f"s_mov_b32 s62, {2048*1024}"); a("s_mov_b32 s63, 0x20000")
        a("s_lshl_b32 s42, s80, 10")
        a("s_waitcnt lgkmcnt(0)")
        a("s_mov_b64 s[44:45], s[66:67]"); a("s_mov_b64 s[60:61], s[64:65]")
        if OPT["stamp"]: a(f"v_writelane_b32 v{V_TS}, s100, 31")
        a("s_mov_b64 s[12:13], s[70:71]"); a("s_mov_b32 s14, 256"); a("s_mov_b32 s15, 0x20000")
        wqkv([WK, WV], range(0, 4))
        a("s_mov_b64 s[48:49], s[68:69]"); a(f"s_mov_b32 s50, {512*1024}"); a("s_mov_b32 s51, 0x20000")
        a("s_mov_b64 s[52:53], s[76:77]"); a(f"s_mov_b32 s54, {1792*1024}"); a("s_mov_b32 s55, 0x20000")
        a(f"v_lshrrev_b32 v{HT}, 3, v2"); a(f"v_bfe_u32 v{HT+1}, v2, 4, 1"); a(f"v_lshlrev_b32 v{HT+1}, 2, v{HT+1}")
        a(f"v_and_b32 v{HT+2}, 7, v2"); a(f"v_xor_b32 v{HT+2}, v{HT+1}, v{HT+2}"); a(f"v_lshlrev_b32 v{HT+2}, 4, v{HT+2}")
        a(f"v_lshl_add_u32 v{HV_R128}, v{HT}, 10, v{HT+2}")
        a(f"v_mul_u32_u24 v{HT+3}, 3584, v{HT}"); a(f"v_add_u32 v{HT+3}, v{HT+3}, v{HT+2}")
        a("s_lshl_b32 s32, s19, 7"); a("s_and_b32 s40, s6, 1"); a("s_lshl_b32 s40, s40, 13"); a("s_add_u32 s32, s32, s40")
        a("s_lshr_b32 s40, s6, 1"); a(f"s_mul_i32 s33, s40, {56*16*KB}"); a("s_add_u32 s33, s33, s32"); a("s_lshl_b32 s40, s40, 18"); a("s_add_u32 s32, s32, s40")
        a(f"s_mul_i32 s34, s17, {96*KB}"); a(f"s_add_u32 s34, s34, {WQP}"); a("s_add_u32 s34, s34, s25")
        a(f"s_mul_i32 s29, s17, {7*32*KB}"); a(f"s_add_u32 s29, s29, {WGU}"); a("s_add_u32 s29, s29, s25")
        a(f"v_lshrrev_b32 v{HT}, 5, v2"); a(f"v_lshlrev_b32 v{HV_ROW0}, 9, v{HT}")
        a(f"v_mov_b32 v{HV_OOB}, 0x7ff00000")
        a(f"v_and_b32 v{HT}, 1, v2"); a("s_sub_i32 s40, s16, 1"); a(f"v_sub_u32 v{HT}, s40, v{HT}")
        a(f"v_lshlrev_b32 v{HT+1}, 11, v{HT}"); a("s_lshl_b32 s40, s6, 2"); a(f"v_add_u32 v{HT+1}, s40, v{HT+1}")
        a(f"v_cmp_gt_i32 vcc, 0, v{HT}"); a(f"v_cndmask_b32_e64 v{HV_PK}, v{HT+1}, 0, vcc")
        a("s_lshl_b32 s82, s17, 7"); a(f"s_add_u32 s82, s82, {KVFL}")
        a(f"v_add_u32 v{HV_W}, s25, v{V_LANE16}"); a(f"v_add_u32 v{HV_W+1}, 0x10000, v{HV_W}"); a(f"v_add_u32 v{HV_W+2}, 0x20000, v{HV_W}")
        self.tr_addr16(HV_TQ, HT, HT + 1)
        a(f"v_lshlrev_b32 v{V_T128}, 7, v2")
        a("s_lshl_b32 s40, s6, 15"); a(f"v_add_u32 v{HV_TQ}, s40, v{HV_TQ}")
        for r in range(4): a(f"v_mov_b32 v{64+r}, s20")
        a("v_mov_b32 v48, s20"); a("v_mov_b32 v49, s20"); a("v_mov_b32 v50, 0"); a("v_mov_b32 v51, 0"); a(f"v_mov_b32 v52, {L_ONES}")
        for o in (0, 64, 256, 320): a(f"ds_write_b128 v52, v[48:51] offset:{o}")
        a("s_mul_i32 s83, s2, 9363"); a("s_lshr_b32 s83, s83, 18")
        a("s_mul_i32 s40, s83, 28"); a("s_sub_u32 s84, s2, s40")
        a("s_and_b32 s85, s83, 1"); a("s_lshr_b32 s86, s83, 1")
        a("s_lshl_b32 s86, s86, 1"); a("s_add_u32 s86, s86, s6")
        a("s_cmp_eq_u32 s85, 0"); a("s_cselect_b64 s[56:57], s[72:73], s[74:75]"); a(f"s_mov_b32 s58, {512*3584}"); a("s_mov_b32 s59, 0x20000")
        a("s_cmp_lt_u32 s2, 224"); a("s_cselect_b32 s87, 1, 0"); a("s_cmp_lt_u32 s6, 2"); a("s_cselect_b32 s87, s87, 0")
        def colsum(lo, hi, first):
            def rd(kc):
                w = 72 + 4 * (kc % 8)
                a(f"ds_read_b64_tr_b16 {vr(w,2)}, v{HV_TQ} offset:{kc*KB}"); a(f"ds_read_b64_tr_b16 {vr(w+2,2)}, v{HV_TQ} offset:{kc*KB+256}")
            for kc in range(lo, min(hi, lo + 6)): rd(kc)
            for kc in range(lo, hi):
                a(f"s_waitcnt lgkmcnt({2 * (min(hi, kc + 6) - kc - 1)})")
                a(f"{MF} v[112:127], v[64:67], {vr(72+4*(kc%8),4)}, {'0' if (first and kc == lo) else 'v[112:127]'}")
                if kc + 6 < hi: rd(kc + 6)
        def augfin():
            a("v_cvt_pk_bf16_f32 v104, v112, v112"); a("v_and_b32 v107, 0xffff, v104")
            a("v_lshlrev_b32 v105, 16, v104"); a("v_sub_f32 v105, v112, v105"); a("v_cvt_pk_bf16_f32 v106, v112, v105")
            a("s_add_u32 s40, s6, 1"); a("s_cmp_eq_u32 s40, 3"); a("s_cselect_b32 s40, 0, s40"); a("s_lshl_b32 s40, s40, 8"); a(f"s_add_u32 s40, s40, {L_AUG}")
            a("v_and_b32 v108, 31, v2"); a("v_lshlrev_b32 v108, 3, v108"); a("v_add_u32 v108, s40, v108")
            a("ds_write_b64 v108, v[106:107]"); a("s_waitcnt lgkmcnt(0)")
        def only(cond_lines, fn):
            l = self.lab()
            for c in cond_lines: a(c)
            a(f"s_cbranch_scc0 {l}"); fn(); a(f"{l}:")
        kvw = ["s_cmp_lt_u32 s6, 2"]
        qw  = ["s_lshl_b32 s40, s22, 2", "s_add_u32 s40, s40, s6", "s_cmp_eq_u32 s40, 2"]
        w3  = ["s_lshl_b32 s40, s22, 2", "s_add_u32 s40, s40, s6", "s_cmp_eq_u32 s40, 3"]
        a("s_mul_i32 s40, s84, 37"); a("s_lshr_b32 s40, s40, 8"); a("s_mul_i32 s41, s40, 7"); a("s_sub_u32 s41, s84, s41")
        a("s_lshl_b32 s41, s41, 3"); a("s_add_u32 s41, s41, s83"); a("s_lshl_b32 s40, s40, 6"); a("s_add_u32 s40, s40, s41"); a("s_lshl_b32 s40, s40, 3"); a(f"s_add_u32 s88, s40, {RF}")
        a("s_cmp_lt_u32 s2, 224"); a("s_cselect_b32 s88, s88, 0x7ff00000")
        a("s_lshl_b32 s89, s17, 8"); a("s_lshl_b32 s40, s16, 4"); a("s_add_u32 s89, s89, s40"); a(f"s_add_u32 s89, s89, {PFL}")
        def zero():
            for r in range(4): a(f"v_mov_b32 v{40+r}, 0")
            a("s_sub_u32 s40, s24, 28")
            a("s_lshl_b32 s81, s16, 11"); a("s_lshl_b32 s41, s17, 7"); a("s_add_u32 s81, s81, s41"); a(f"s_add_u32 s81, s81, {KVFL}")
            a("s_mov_b64 exec, 1")
            a("buffer_store_dwordx4 v[40:43], off, s[8:11], s40 sc1"); a("buffer_store_dwordx4 v[40:43], off, s[8:11], s81 sc1")
            a("buffer_store_dwordx2 v[40:41], off, s[8:11], s88 sc1"); a("buffer_store_dwordx4 v[40:43], off, s[8:11], s89 sc1")
            a("s_mov_b64 exec, -1")
        def arrive():
            a("s_getreg_b32 s40, hwreg(HW_REG_XCC_ID)"); a("s_and_b32 s40, s40, 7"); a("s_or_b32 s40, s40, 0x80"); a("s_mul_i32 s92, s40, 0x01010101")
            a(f"v_mov_b32 v{HT}, s40"); a("s_lshl_b32 s91, s16, 4"); a("s_add_u32 s91, s91, s17")
            a("s_mov_b64 exec, 1"); a(f"buffer_store_byte v{HT}, off, {SDBG}, s91 sc1"); a("s_mov_b64 exec, -1")
        a("s_waitcnt lgkmcnt(0)")
        only(w3, zero)
        self.stamp(7); vm.wait("kv0"); self.stamp(8); self.bar("B1_0")
        wqkv([WK, WV], range(4, 8))
        only(kvw, lambda: colsum(0, 8, True))
        vm.wait("kv1"); self.stamp(9); self.bar("B1_8")
        only(w3, arrive)
        wqkv([WQ], range(0, 8))
        only(kvw, lambda: colsum(8, 16, False))
        vm.wait("kv2"); self.stamp(10); self.bar("B1_16")
        a(f"s_mul_i32 s41, s86, {64*3584}"); a("s_lshl_b32 s40, s84, 7"); a("s_add_u32 s41, s41, s40"); a(f"s_mov_b32 s42, {8*3584}")
        a("s_cmp_eq_u32 s87, 0"); a("s_cselect_b32 s41, 0x7ff00000, s41")
        def coop():
            a("s_cmp_eq_u32 s6, 2"); a("s_cselect_b64 s[56:57], s[52:53], s[48:49]"); a("s_cselect_b32 s58, s54, s50")
            a("s_sub_u32 s40, 255, s2"); a("s_cmp_eq_u32 s6, 2"); a("s_cselect_b32 s41, s2, s40"); a("s_lshl_b32 s41, s41, 13"); a("s_movk_i32 s42, 1024")
            a(f"v_mov_b32 v{HT+3}, v{V_LANE16}")
        only(["s_cmp_ge_u32 s6, 2"], coop)
        for o in range(8):
            a(f"buffer_load_dwordx4 {vr(128+4*o,4)}, v{HT+3}, {SG}, s41 offen"); vm.issue("rel")
            if o < 7: a("s_add_u32 s41, s41, s42")
        only(kvw, lambda: colsum(16, 24, False))
        vm.wait("kv3"); self.stamp(12); self.bar("B1_24")
        only(kvw, lambda: (colsum(24, 32, False), augfin()))
        def arrived(local):
            l = self.lab(); d = self.lab(); l0 = self.lab()
            a(f"v_lshlrev_b32 v{HT+1}, 2, v2"); a("s_mov_b32 s41, 0"); a("s_mov_b32 s93, 0x80808080")
            if local:
                a("s_mov_b64 s[42:43], 0xfff"); a("s_lshl_b32 s40, s16, 2"); a("s_lshl_b64 s[42:43], s[42:43], s40")
                a("s_add_u32 s40, s40, 4"); a("s_sub_u32 s40, 64, s40")
                a("s_mov_b64 s[42:43], -1"); a("s_lshr_b64 s[42:43], s[42:43], s40")
                a("s_lshl_b32 s40, s16, 2"); a("s_sub_i32 s40, s40, 8"); a("s_max_i32 s40, s40, 0")
                a("s_lshr_b64 s[42:43], s[42:43], s40"); a("s_lshl_b64 exec, s[42:43], s40")
            a(f"s_branch {l0}"); a(f"{l}:"); a("s_sleep 8"); a(f"{l0}:")
            a(f"buffer_load_dword v{HT}, v{HT+1}, {SDBG}, 0 offen sc1")
            a("s_add_u32 s41, s41, 1"); a(f"s_cmp_gt_u32 s41, {OPT['spin']}"); a(f"s_cbranch_scc1 {d}")
            a("s_waitcnt vmcnt(0)")
            a(f"v_and_b32 v{HT+2}, s93, v{HT}"); a(f"v_cmp_ne_u32 vcc, s93, v{HT+2}"); a(f"s_cbranch_vccnz {l}")
            a(f"{d}:")
            a("s_mov_b64 exec, -1")
        def nbr():
            arrived(True)
            a(f"v_cmp_ne_u32 vcc, s92, v{HT}"); a("s_lshl_b32 s40, s16, 2"); a("s_lshr_b64 s[42:43], vcc, s40"); a("s_and_b32 s40, s42, 15"); a("s_cselect_b32 s40, 1, 0")
            if OPT["force_slow"]: a("s_mov_b32 s40, 1")
            a(f"v_mov_b32 v{HT}, s40"); a(f"v_mov_b32 v{HT+1}, {L_MODE}"); a(f"ds_write_b32 v{HT+1}, v{HT}"); a("s_waitcnt lgkmcnt(0)")
        vm.wait("wq3"); vm.q = []; self.stamp(13)
        a("s_branch L_h_b2")
        a("L_h_loop:")
        a("s_waitcnt vmcnt(0)")
        a("L_h_b2:")
        self.bar("B2")
        only(w3, nbr)
        only(qw, lambda: colsum(0, 16, True))
        def rel_do():
            a("s_lshl_b32 s40, s6, 13"); a(f"s_add_u32 s40, s40, {L_REL}"); a(f"v_add_u32 v40, s40, v{V_LANE16}")
            a("s_waitcnt vmcnt(0)")
            for o in range(8): a(f"ds_write_b128 v40, {vr(128+4*o,4)} offset:{o*KB}")
            a(f"v_bfe_u32 v40, v2, 2, 2"); a("v_lshlrev_b32 v41, 7, v40"); a("v_lshrrev_b32 v40, 1, v40"); a("v_lshrrev_b32 v42, 5, v2"); a("v_xor_b32 v40, v40, v42")
            a("v_lshl_add_u32 v41, v40, 6, v41"); a(f"v_and_b32 v40, 63, v{HV_TQ}"); a("v_add_u32 v41, v41, v40")
            a("s_lshl_b32 s40, s6, 13"); a(f"s_add_u32 s40, s40, {L_REL}"); a("v_add_u32 v41, s40, v41")
            a("s_waitcnt lgkmcnt(0)")
            for o in range(8):
                a(f"ds_read_b64_tr_b16 {vr(72+4*o,2)}, v41 offset:{o*KB}"); a(f"ds_read_b64_tr_b16 {vr(74+4*o,2)}, v41 offset:{o*KB+512}")
                if o == 6: a("s_waitcnt lgkmcnt(8)")
            a("v_lshrrev_b32 v40, 4, v2"); a("v_lshlrev_b32 v40, 15, v40"); a("v_and_b32 v42, 15, v2"); a("v_lshl_add_u32 v40, v42, 4, v40")
            a("s_lshl_b32 s40, s84, 17"); a("s_lshl_b32 s41, s86, 12"); a("s_add_u32 s40, s40, s41"); a("s_lshl_b32 s41, s85, 8"); a("s_add_u32 s40, s40, s41"); a(f"s_add_u32 s40, s40, {WGU}")
            a("v_mov_b32 v43, 0"); a("v_mov_b32 v44, 0")
            a("s_waitcnt lgkmcnt(0)")
            for o in range(8): a(f"buffer_store_dwordx4 {vr(72+4*o,4)}, v40, s[8:11], s40 offen offset:{o*512} sc1")
            for i in range(32): a(f"v_dot2_f32_bf16 v{43+i%2}, v{72+i}, s20, v{43+i%2}")
            a("s_nop 2"); a("v_add_f32 v43, v43, v44")
            a("s_lshl_b32 s40, s86, 1"); a("s_add_u32 s40, s40, s85"); a(f"s_mul_i32 s40, s40, {1792*4}"); a("s_lshl_b32 s41, s84, 8"); a("s_add_u32 s40, s40, s41"); a(f"s_add_u32 s40, s40, {CS}")
            a("v_lshlrev_b32 v42, 2, v2")
            a("buffer_store_dword v43, v42, s[8:11], s40 offen sc1")
        only(["s_cmp_gt_u32 s87, s22"], rel_do)
        a("s_add_u32 s42, s22, 1")
        a("s_lshl_b32 s94, s17, 17"); a(f"s_add_u32 s94, s94, {KV}"); a("s_add_u32 s94, s94, s36")
        self.stamp(14)
        self.bar("B2b")
        self.stamp(15)
        a("s_mov_b64 exec, 3")
        self.poll(HV_PK, "s82", "s42")
        a("s_mov_b64 exec, -1")
        self.stamp(2)
        for kv in range(2):
            for d in (1, 2):
                l1 = self.lab(); l2 = self.lab()
                a(f"s_cmp_lt_u32 s16, {d}"); a(f"s_cbranch_scc1 {l1}")
                a(f"s_sub_u32 s95, s27, {4*d}"); a("s_lshl_b32 s95, s95, 10"); a("s_add_u32 s95, s95, s94")
                for hh in range(2): self.dma("s95", kv*32*64*KB + hh*64*KB, LK + kv*24*KB + hh*12*KB + (8-4*d)*KB, fl=" sc1")
                a(f"s_branch {l2}")
                a(f"{l1}:")
                for hh in range(2): self.dma("s94", hh*64*KB, LK + kv*24*KB + hh*12*KB + (8-4*d)*KB, voff=(HV_ROW0, HV_OOB)[kv], fl=" sc1")
                a(f"{l2}:")
        only(qw, lambda: (colsum(16, 32, False), augfin()))
        self.bar("B2c")
        a("s_waitcnt vmcnt(4)")
        def pack():
            a("s_lshl_b32 s40, s16, 1"); a("s_sub_u32 s41, s40, s28"); a("s_and_b32 s41, s41, 31"); a("s_lshl_b32 s41, s41, 10"); a("s_lshl_b32 s42, s6, 15"); a("s_add_u32 s41, s41, s42")
            a(f"v_add_u32 v160, s41, v{V_LANE16}")
            a("ds_read_b128 v[164:167], v160"); a("ds_read_b128 v[168:171], v160 offset:1024")
            a("s_add_u32 s41, s6, 1"); a("s_cmp_eq_u32 s41, 3"); a("s_cselect_b32 s41, 0, s41"); a("s_lshl_b32 s41, s41, 15"); a("s_lshl_b32 s40, s40, 10"); a("s_add_u32 s41, s41, s40")
            a("s_add_u32 s41, s41, s34"); a("s_sub_u32 s41, s41, s25")
            a("s_mov_b32 s90, s41")
            a("s_waitcnt lgkmcnt(0)")
        def pack_st():
            a(f"buffer_store_dwordx4 v[164:167], v{V_LANE16}, s[8:11], s90 offen sc1"); a(f"buffer_store_dwordx4 v[168:171], v{V_LANE16}, s[8:11], s90 offen offset:1024 sc1")
        self.bar("B3")
        only(["s_lshl_b32 s40, s22, 2", "s_add_u32 s40, s40, s6", "s_cmp_lt_u32 s40, 3"], pack)
        self.stamp(3)
        def rel_sig():
            a("s_lshl_b32 s40, s6, 2"); a("s_add_u32 s40, s40, s88")
            a(f"v_mov_b32 v{HT}, 1"); a("s_mov_b64 exec, 1"); a(f"buffer_store_dword v{HT}, off, s[8:11], s40 sc1"); a("s_mov_b64 exec, -1")
        a("s_waitcnt vmcnt(0)")
        self.bar("B3v")
        only(["s_cmp_gt_u32 s87, s22"], rel_sig)
        only(["s_lshl_b32 s40, s22, 2", "s_add_u32 s40, s40, s6", "s_cmp_lt_u32 s40, 3"], pack_st)
        for g in range(16): self.dma("s32", g*16*KB, P1 + g*4*KB, voff=HV_R128, srd=SO); vm.issue("wo")
        stash(OPT["st_a"])
        def gu_ready():
            arrived(False)
            a("s_lshr_b32 s40, s17, 2"); a("s_lshl_b32 s40, s40, 9"); a(f"s_add_u32 s42, s40, {RF}"); a("s_mov_b32 s43, 1")
            a(f"v_lshlrev_b32 v{HT}, 2, v2"); self.poll(HT, "s42", "s43", sleep=8)
            a(f"v_min_u32 v{HT}, 47, v2"); a(f"v_lshlrev_b32 v{HT}, 2, v{HT}"); a("s_add_u32 s42, s42, 256"); self.poll(HT, "s42", "s43", sleep=8)
            a("s_lshl_b32 s40, s6, 2"); a("s_add_u32 s40, s40, s89")
            a(f"v_mov_b32 v{HT}, 1"); a("s_mov_b64 exec, 1"); a(f"buffer_store_dword v{HT}, off, s[8:11], s40 sc1"); a("s_mov_b64 exec, -1")
        self.stamp(5)
        it0(gu_ready)
        self.stamp(6)
        tile(0); tile(1, range(0, 3))
        def gu_aug():
            a("v_lshrrev_b32 v240, 5, v2"); a(f"v_mul_u32_u24 v241, {1792*4}, v240"); a("v_and_b32 v242, 31, v2"); a("v_min_u32 v242, 27, v242"); a("v_lshl_add_u32 v241, v242, 4, v241")
            a(f"s_mul_i32 s40, s17, {112*4}"); a(f"s_add_u32 s40, s40, {CS}")
            for p in range(8):
                a(f"buffer_load_dwordx4 {vr(208+4*p,4)}, v241, s[8:11], s40 offen sc1")
                if p < 7: a(f"s_add_u32 s40, s40, {2*1792*4}")
            a("v_lshrrev_b32 v243, 2, v242"); a("v_lshlrev_b32 v243, 8, v243"); a("v_lshl_add_u32 v243, v240, 7, v243"); a("v_and_b32 v244, 3, v242"); a("v_lshl_add_u32 v243, v244, 5, v243")
            a(f"v_add_u32 v243, {L_AUG + 768}, v243")
            a("s_waitcnt vmcnt(0)")
            for p in range(1, 8):
                for c in range(4): a(f"v_add_f32 v{208+c}, v{208+c}, v{208+4*p+c}")
            for c in range(4):
                a(f"v_cvt_pk_bf16_f32 v245, v{208+c}, v{208+c}"); a(f"v_and_b32 v{217+2*c}, 0xffff, v245")
                a("v_lshlrev_b32 v245, 16, v245"); a(f"v_sub_f32 v245, v{208+c}, v245"); a(f"v_cvt_pk_bf16_f32 v{216+2*c}, v{208+c}, v245")
            a("ds_write_b128 v243, v[216:219]"); a("ds_write_b128 v243, v[220:223] offset:16"); a("s_waitcnt lgkmcnt(0)")
        only(w3, gu_aug)
        vm.wait("t1")
        for n in range(OPT["pf"]):
            pass
        if OPT["pf"]:
            a("s_and_b32 s40, s16, 1"); a("s_lshl_b32 s40, s40, 2"); a("s_add_u32 s40, s40, s6"); a("s_lshl_b32 s40, s40, 13")
            a("s_sub_u32 s41, s29, s25"); a("s_add_u32 s41, s41, s40"); a(f"s_add_u32 s41, s41, {44*KB}")
            for n in range(OPT["pf"]):
                a(f"buffer_load_dword v1, v{V_T128}, s[8:11], s41 offen"); a("s_waitcnt vmcnt(0)")
                a(f"s_add_u32 s41, s41, {64*KB}")
        self.stamp(4)
        self.bar("B4")
        def pack_ready():
            a("s_lshl_b32 s42, s17, 8"); a(f"s_add_u32 s42, s42, {PFL}"); a("s_mov_b32 s43, 1")
            a(f"v_lshlrev_b32 v{HT}, 2, v2"); self.poll(HT, "s42", "s43", sleep=8)
        tile(1, range(3, 8))
        self.bar("B5")
        self.bar("stores")
        tile(2)
        vm.wait("t1"); self.bar("B6")
        only(w3, pack_ready)
        self.bar("G1m")
        tile(3, range(0, 3))
        vm.wait("t2"); self.bar("G2a")
        tile(3, range(3, 8))
        self.bar("G2m")
        tile(4, range(0, 5)); stash(3)
        vm.wait("t3"); self.bar("G3a")
        tile(4, range(5, 8)); tile(5, range(0, 2)); stash(3)
        self.bar("G3m")
        tile(5, range(2, 7)); stash(3)
        wdw(range(0, 7))
        vm.wait("t4"); self.bar("G4a")
        tile(5, range(7, 8)); wqp([WK], range(0, 4)); stash(3)
        self.bar("G4m")
        tile(6, range(0, 2)); wqp([WK], range(4, 7)); stash(3)
        vm.wait("t5"); self.bar("G5a")
        tile(6, range(2, 6)); stash(3)
        self.bar("G5m")
        tile(6, range(6, 8)); wqp([WK], range(7, 8)); wqp([WV], range(0, 2)); stash(3)
        vm.wait("t6"); self.bar("G6a")
        wqp([WV], range(2, 8)); stash(56)
        self.bar("G6m")
        vm.drain()
        wdw(range(7, 15))
        nw = 15
        for s_ in self.DBARS:
            a("s_waitcnt lgkmcnt(0)")
            assert nw >= min(56, s_ + 5)
            self.bar(f"D{s_}")
            hi = s_ - 4 + 15 + 1
            if hi > nw: wdw(range(nw, hi)); nw = min(56, hi)
            if s_ == 45: wqp([WQ], range(0, 4))
        self.bar("B9")
        a("s_cmp_lg_u32 s22, 0"); a("s_cbranch_scc1 L_h_last")
        self.bar("stores")
        wqp([WQ], range(4, 8))
        a("s_nop 0")
        self.next_iter()
        a("s_branch L_h_loop")
        a("L_h_last:")
        a("s_waitcnt vmcnt(0)")
        self.finish()

    def count_poll(self, soff, T):
        a = self.a; l = self.lab(); d = self.lab()
        a("s_mov_b32 s41, 0")
        l0 = self.lab(); a(f"s_branch {l0}"); a(f"{l}:"); a("s_sleep 8"); a(f"{l0}:")
        a(f"buffer_load_dwordx2 {vr(T,2)}, off, s[12:15], {soff} sc1"); a("s_waitcnt vmcnt(0)")
        a(f"v_readfirstlane_b32 s42, v{T}"); a(f"v_readfirstlane_b32 s43, v{T+1}")
        a("s_add_u32 s41, s41, 1"); a(f"s_cmp_gt_u32 s41, {OPT['spin']}"); a(f"s_cbranch_scc1 {d}")
        a("s_add_u32 s40, s42, s43"); a("s_mul_i32 s40, s40, 0x01010101"); a("s_lshr_b32 s40, s40, 24")
        a("s_cmp_lg_u32 s40, 16"); a(f"s_cbranch_scc1 {l}")
        a(f"{d}:")

    def build(self):
        a = self.a
        self.prologue()
        a("s_cmp_ge_u32 s3, 4"); a("s_cbranch_scc1 L_helper")
        self.compute()
        a("L_helper:")
        self.helper()
        assert self.bars["C"] == self.bars["H"], (self.bars["C"], self.bars["H"])
        a("L_end:"); a("s_endpgm")
        return a.text()

def build():
    body = Main().build()
    return f"""; generated by dev/gen4.py
; @launch grid=(256,1,1) block=(512,1,1) lds={160*KB}
.amdgcn_target "amdgcn-amd-amdhsa--gfx950"
.text
{body}
.section .rodata,"a"
.p2align 6
.amdhsa_kernel {NAME}
  .amdhsa_next_free_vgpr 256
  .amdhsa_next_free_sgpr 102
  .amdhsa_accum_offset 256
  .amdhsa_group_segment_fixed_size 0
  .amdhsa_kernarg_size 80
  .amdhsa_user_sgpr_count 2
  .amdhsa_user_sgpr_kernarg_segment_ptr 1
  .amdhsa_system_sgpr_workgroup_id_x 1
.end_amdhsa_kernel
"""

if __name__ == "__main__":
    for x in sys.argv[2:]:
        if "=" in x: kk, v = x.split("="); OPT[kk] = int(v)
        else: OPT[x] = True
    open(sys.argv[1], "w").write(build())
```

```python
import sys, struct
from asmlib import *

NAME = "interleave_layers__sliding_block__glu_gated_glu__prompt_kernel"
KB = 1024
WQP  = 0x0000000
WGU  = 0x0300000
CS   = 0x0900000
FL   = 0x0920000
KVFL = 0x0924000
RF   = 0x092C000
PFL  = RF + 2048
XA   = 0x1000000; XB = 0x1200000
STA  = 0x1400000; STB = 0x1440000
OF   = 0x1500000; HF = 0x1700000
KV   = 0x1E00000
ITS  = 0x1400000
TS   = 0x6000000
WS_BYTES = 0x10000000
LOG2E = 1.4426950408889634
def f32(x): return "0x%08x" % struct.unpack("<I", struct.pack("<f", x))[0]
MF = "v_mfma_f32_32x32x16_bf16"
OPT = dict(stamp=False, force_slow=False, spin=400000, pre=10, cprio=2, fine=0, pf=0, st_a=14, kvflag=24, rot=1)

P1, P2, P3, P4, PE, MISC = 0, 32*KB, 64*KB, 96*KB, 128*KB, 156*KB
LK = 108*KB; LV = LK + 12*KB; HS = 24*KB
L_AUG = MISC; L_ONES = MISC + 2560; L_HL = MISC + 2944; L_CP = L_HL + 16; L_MODE = L_HL + 32; L_DUMMY = MISC + 3072
DG = [0, 23, 31, 39, 46, 54]
DP = [7, 15, 23, 31, 39, 45]
CSEQ = ["x", "kv", "kvf", "q", "h0", "att", "wo1", "wo", "xch", "g8", "g16", "g24", "g32", "t3", "t4", "t5", "t6"] + [f"d{s}" for s in DP] + ["dx"]
HSEQ = ["kv0", "kv1", "kv2", "kv3", "augkv", "wq", "augq", "hk", "hv", "wo", "t2_0", "t2_1", "t2_2", "t2_3", "t3", "t4", "t5", "t6"] + [f"w{s}" for s in DG] + ["nkv"]
CV = {n: i + 1 for i, n in enumerate(CSEQ)}; HV = {n: i + 1 for i, n in enumerate(HSEQ)}
assert max(len(CSEQ), len(HSEQ)) < 64
XCH_WO = PE; XCH_DN = PE
L_X0 = P4
L_REL = 144*KB
def wd_slot(s):
    for lo, hi, reg in ((0, 7, PE), (7, 15, P3), (15, 23, P2), (23, 31, P4), (31, 39, P1), (39, 46, PE), (46, 54, P4), (54, 56, PE + 16*KB)):
        if lo <= s < hi: return reg + (s - lo)*4*KB
GU_REG = [P1, P4, P2, P3, P2, P4, P1]
RQ, RK, RV = P1, P2, P3
F_O1, F_O2, F_X1, F_H1, F_H2, F_X2 = 1, 2, 3, 7, 9, 10
STASH = 32

V_LANE16 = 3; V_F0 = 4
V_TQ = 6
V_XOFF = 8
V_RSTD = 10; V_STD = 11; V_C1 = 12; V_TMP = 13; V_TS = 14; V_TS2 = 15
V_XAUG = 16
V_PX = 20; V_PH = 21; V_AUGA = 22; V_OUT = 23
V_RES = 24
V_PUBA = 0; V_FA = 35; V_FLG = 1; V_BASE = 9
V_FW = 32
V_EP = 36
ACC = [40, 56, 72, 88]
WR = 96; NW = 8
XR = 128
T0 = 104

class VM:
    def __init__(self, a): self.a = a; self.q = []
    def issue(self, tag): self.q.append(tag)
    def wait(self, tag):
        idx = max((i for i, t in enumerate(self.q) if t == tag), default=-1)
        if idx < 0: return
        n = len(self.q) - 1 - idx; assert n <= 63
        self.a(f"s_waitcnt vmcnt({n})"); del self.q[:idx + 1]
    def drain(self):
        self.a("s_waitcnt vmcnt(0)"); self.q = []

def stats_calc_list(d0, tmp):
    L = [f"v_mov_b32 v{tmp}, 0", f"v_mov_b32 v{tmp+1}, 0"]
    for i in range(8):
        L.append(f"v_dot2_f32_bf16 v{tmp}, v{d0+i}, s20, v{tmp}")
        L.append(f"v_dot2_f32_bf16 v{tmp+1}, v{d0+i}, v{d0+i}, v{tmp+1}")
    L += ["s_nop 2", f"v_permlane32_swap_b32 v{tmp}, v{tmp+1}", "s_nop 1", f"v_add_f32 v{tmp}, v{tmp}, v{tmp+1}"]
    return L

class Main:
    DBARS = list(range(0, 56, 7))
    def __init__(self):
        self.a = Asm(); self.nl = 0
        self.seen = set(); self.used = set()
        self.role = None; self.pend_stamp = None; self.ool = []; self.nw = NW; self.wr = WR
    def lab(self): self.nl += 1; return f"L{self.nl}"
    def emit(self, x):
        if callable(x): x()
        else: self.a(x)
    def pub(self, name):
        self.a(f"v_add_u32 v{V_TMP}, {CV[name]}, v{V_BASE}"); self.a(f"ds_write_b32 v{V_PUBA}, v{V_TMP}")
        self.seen.add(("C", name))
    def gate_rd(self, src): self.a(f"ds_read_b32 v{V_FLG}, v{V_FA} offset:{0 if src == 'H' else 16}")
    def gate_cmp(self, name, src="H", absval=None):
        a = self.a
        n = (HV if src == "H" else CV)[name]
        if absval is not None: a(f"s_movk_i32 s39, {absval}")
        else: a(f"s_add_u32 s39, s7, {n}")
        a(f"v_cmp_gt_u32 s[30:31], s39, v{V_FLG}")
        self.used.add((src, name))
    def gate_br(self, src="H", redo=[]):
        a = self.a; l1 = self.lab(); l2 = self.lab()
        a("s_cmp_lg_u64 s[30:31], 0"); a(f"s_cbranch_scc1 {l1}"); a(f"{l2}:")
        a.pending.pop(l1, None)
        self.ool += [f"{l1}:", "    s_add_u32 s38, s38, 1", f"    s_cmp_gt_u32 s38, {OPT['spin']*16}", f"    s_cbranch_scc1 {l2}",
                     f"    ds_read_b32 v{V_FLG}, v{V_FA} offset:{0 if src == 'H' else 16}"] + ["    " + x for x in redo] + ["    s_waitcnt lgkmcnt(0)",
                     f"    v_cmp_gt_u32 vcc, s39, v{V_FLG}", f"    s_cbranch_vccnz {l1}", f"    s_branch {l2}"]
    def gate_chk(self, name, src="H", absval=None):
        self.gate_cmp(name, src, absval); self.gate_br(src)
    def gate(self, name, src="H", absval=None):
        self.gate_rd(src); self.a("s_waitcnt lgkmcnt(0)"); self.gate_chk(name, src, absval)
    def stamp(self, i):
        if not OPT["stamp"]: return
        a = self.a
        a("s_memrealtime s[96:97]"); a("s_memtime s[98:99]"); a("s_waitcnt lgkmcnt(0)")
        if OPT.get("cnt"): a("s_lshl_b32 s98, s38, 12"); a("s_add_u32 s98, s98, s5")
        a(f"s_add_u32 s97, s23, {i}"); a(f"s_add_u32 m0, s97, s23"); a("s_nop 3")
        a(f"v_writelane_b32 v{V_TS}, s96, m0"); a(f"v_writelane_b32 v{V_TS2}, s98, m0")
    def store(self, instr, tag="st"):
        l1 = self.lab(); l2 = self.lab(); a = self.a
        a("s_cmp_lg_u32 s21, 0"); a(f"s_cbranch_scc1 {l1}"); a(instr); a(f"{l2}:")
        a.pending.pop(l1, None)
        self.ool += [f"{l1}:", "    " + instr + " sc1", f"    s_branch {l2}"]
        self.vm.issue(tag)
    def flag(self, val, tag="st"):
        a = self.a
        a(f"s_add_u32 s40, s23, {val}"); a(f"v_mov_b32 v{V_TMP}, s40"); self.vm.wait(tag); a("s_mov_b64 exec, 1")
        self.store(f"buffer_store_dword v{V_TMP}, off, s[8:11], s24", "fl_st"); a("s_mov_b64 exec, -1")
    def peek(self, voff):
        self.a(f"buffer_load_dword v{V_OUT}, v{voff}, s[8:11], s26 offen sc1"); self.vm.issue("pk")
    def check(self, voff, val):
        a = self.a; d = self.lab()
        a(f"s_add_u32 s61, s23, {val}")
        self.vm.wait("pk")
        a(f"v_cmp_gt_u32 vcc, s61, v{V_OUT}"); a(f"s_cbranch_vccz {d}")
        self.poll(voff, "s26", "s61")
        a(f"{d}:")
    def acquire(self):
        a = self.a; l = self.lab()
        a("s_cmp_eq_u32 s21, 0"); a(f"s_cbranch_scc1 {l}"); a("buffer_inv sc1"); a("s_waitcnt vmcnt(0)"); a(f"{l}:")
    def poll(self, voff, sbase, sval, srd="s[8:11]", sleep=0):
        a = self.a; l = self.lab(); d = self.lab()
        a("s_mov_b32 s41, 0")
        if sleep:
            l0 = self.lab(); a(f"s_branch {l0}"); a(f"{l}:"); a(f"s_sleep {sleep}"); a(f"{l0}:")
        else: a(f"{l}:")
        a(f"buffer_load_dword v{V_TMP}, v{voff}, {srd}, {sbase} offen sc1")
        if OPT.get("cnt"): a("s_add_u32 s5, s5, 1")
        a("s_add_u32 s41, s41, 1"); a(f"s_cmp_gt_u32 s41, {OPT['spin']}"); a(f"s_cbranch_scc1 {d}")
        a("s_waitcnt vmcnt(0)")
        a(f"v_cmp_gt_u32 vcc, {sval}, v{V_TMP}")
        a(f"s_cbranch_vccnz {l}")
        a(f"{d}:")
    def dma(self, sbase, const, lds, voff=V_LANE16, fl="", srd="s[8:11]", sl="s25"):
        a = self.a
        a(f"s_add_u32 s40, {sbase}, {const}")
        a(f"s_add_u32 m0, {sl}, {lds}")
        a(f"buffer_load_dwordx4 v{voff}, {srd}, s40 offen{fl} lds")
    def touch_txt(self, items):
        l = self.lab()
        L = ["s_cmp_lg_u32 s21, 0", f"s_cbranch_scc1 {l}", f"v_lshlrev_b32 v{V_TMP}, 7, v2"]
        for sal, n in items:
            L += sal
            m = (1 << n) - 1
            L += [f"s_mov_b32 exec_lo, {m & 0xffffffff:#x}", f"s_mov_b32 exec_hi, {m >> 32:#x}", f"buffer_load_dword v{V_OUT}, v{V_TMP}, s[8:11], s43 offen sc1"]
        L += ["s_mov_b64 exec, -1", f"{l}:"]
        return "\n".join(L)
    def stream(self, steps, look, fill=None):
        a = self.a
        reads = []; need = []
        for s in steps:
            reads += s["reads"]; need.append(len(reads) - 1)
        per = 2 if any(r["op"].endswith("tr_b16") for r in reads) else 1
        pre_rd = {}; pre_cmp = {}
        for i, r in enumerate(reads):
            if r.get("gate"):
                pre_rd[max(0, i - look - per)] = i; pre_cmp[max(0, i - per)] = i
        ng = sum(1 for r in reads if r.get("gate"))
        assert len(pre_rd) == ng and len(pre_cmp) == ng
        gi = sorted(pre_rd.values())
        assert all(b - a_ > look + per for a_, b in zip(gi, gi[1:])), gi
        nr = 0; q = []; done = [0]
        def wait(tag):
            idx = q.index(tag)
            if idx < done[0]: return
            n = len(q) - 1 - idx; assert n <= 15, n
            a(f"s_waitcnt lgkmcnt({n})"); done[0] = idx + 1
        def issue():
            nonlocal nr
            r = reads[nr]
            if nr in pre_rd: self.gate_rd(reads[pre_rd[nr]].get("gsrc", "H")); q.append(("g", pre_rd[nr]))
            if nr in pre_cmp:
                g = reads[pre_cmp[nr]]
                wait(("g", pre_cmp[nr])); self.gate_cmp(g["gate"], g.get("gsrc", "H"), g.get("absval"))
            if r.get("gate"): self.gate_br(r.get("gsrc", "H"))
            if r.get("vm") is not None: self.vm.wait(r["vm"])
            n = 4 if r["op"] == "ds_read_b128" else 2
            fm = r["fam"]; off = r["off"]
            reg = fm[off >> 16] if isinstance(fm, list) else fm
            a(f"{r['op']} {vr(r['d'], n)}, v{reg} offset:{off & 0xffff}"); q.append(nr)
            if r.get("pub"): self.pub(r["pub"]); q.append(("p", nr))
            nr += 1
        for i, s in enumerate(steps):
            while nr < len(reads) and nr <= need[i] + (look if i == 0 else 0): issue()
            for x in s.get("pre", []): self.emit(x)
            wait(need[i + 1] if (s.get("pair") and i + 1 < len(steps)) else need[i])
            a(s["mf"])
            nxt = need[i + 1] if i + 1 < len(steps) else need[i]
            while nr < len(reads) and nr <= nxt + look: issue()
            for x in s.get("post", []): self.emit(x)
            if fill:
                for f in fill(i): self.emit(f)
            if self.pend_stamp: self.stamp(self.pend_stamp); self.pend_stamp = None
    def rd128(self, w, off, gate=None, pub=None): return [dict(op="ds_read_b128", d=w, fam=[V_F0, V_F0 + 1], off=off, gate=gate, pub=pub)]
    def rdtr(self, w, fam, off, d2, gate=None, pub=None, absval=None):
        return [dict(op="ds_read_b64_tr_b16", d=w, fam=fam, off=off, gate=gate, absval=absval), dict(op="ds_read_b64_tr_b16", d=w + 2, fam=fam, off=off + d2, pub=pub)]
    def tr_addr16(self, dst, t0, t1):
        a = self.a
        a(f"v_lshrrev_b32 v{t0}, 5, v2"); a(f"v_lshlrev_b32 v{dst}, 9, v{t0}")
        a(f"v_bfe_u32 v{t0}, v2, 2, 2"); a(f"v_lshl_add_u32 v{dst}, v{t0}, 6, v{dst}")
        a(f"v_bfe_u32 v{t0}, v2, 4, 1"); a(f"v_lshl_add_u32 v{dst}, v{t0}, 5, v{dst}")
        a(f"v_and_b32 v{t0}, 1, v2"); a(f"v_lshl_add_u32 v{dst}, v{t0}, 4, v{dst}")
        a(f"v_bfe_u32 v{t0}, v2, 1, 1"); a(f"v_lshl_add_u32 v{dst}, v{t0}, 3, v{dst}")

    def prologue(self):
        a = self.a
        a.raw(f".globl {NAME}"); a.raw(".p2align 8"); a.raw(f".type {NAME},@function"); a.raw(f"{NAME}:")
        a(f"s_cmp_ge_u32 s2, {0 if OPT.get('empty') else 256}"); a("s_cbranch_scc1 L_end")
        if OPT["stamp"]: a("s_memrealtime s[100:101]")
        a("s_load_dwordx4 s[64:67], s[0:1], 0")
        a("s_load_dwordx2 s[8:9], s[0:1], 72")
        a("s_load_dwordx2 s[68:69], s[0:1], 16")
        a("s_load_dwordx8 s[72:79], s[0:1], 32")
        a("s_load_dwordx2 s[70:71], s[0:1], 64")
        a(f"s_mov_b32 s10, {WS_BYTES}"); a("s_mov_b32 s11, 0x20000")
        a("v_lshrrev_b32 v1, 6, v0"); a("v_and_b32 v2, 63, v0")
        a("v_readfirstlane_b32 s3, v1")
        a(f"v_lshlrev_b32 v{V_LANE16}, 4, v2")
        a("s_and_b32 s4, s2, 7"); a("s_lshr_b32 s5, s2, 3"); a("s_and_b32 s6, s3, 3")
        a("s_lshl_b32 s16, s4, 1"); a("s_lshr_b32 s40, s5, 4"); a("s_add_u32 s16, s16, s40")
        a("s_and_b32 s17, s5, 15")
        a("s_lshr_b32 s18, s17, 3"); a("s_and_b32 s19, s17, 7")
        a("s_mov_b32 s20, 0x3f803f80"); a("s_mov_b32 s21, 0"); a("s_mov_b32 s22, 0"); a("s_mov_b32 s23, 0")
        a("s_lshl_b32 s26, s16, 9"); a(f"s_add_u32 s26, s26, {FL}")
        a("s_lshl_b32 s24, s17, 5"); a("s_lshl_b32 s40, s3, 2"); a("s_add_u32 s24, s24, s40"); a("s_add_u32 s24, s24, s26")
        a("s_lshl_b32 s25, s6, 10")
        a("s_lshl_b32 s27, s16, 2"); a("s_add_u32 s27, s27, s6")
        if OPT["rot"]: a("s_add_u32 s28, s16, s17"); a("s_lshl_b32 s28, s28, 2"); a("s_and_b32 s28, s28, 31")
        else: a("s_mov_b32 s28, 0")
        a("s_mov_b32 s35, 0"); a("s_mov_b32 s36, 0")
        a(f"v_mov_b32 v{V_TS}, 0"); a(f"v_mov_b32 v{V_TS2}, 0")
        a("s_xor_b32 s40, s3, 4"); a("s_lshl_b32 s40, s40, 2"); a(f"s_add_u32 s40, s40, {L_HL}")
        a(f"v_lshlrev_b32 v{V_PUBA}, 2, v2"); a(f"v_add_u32 v{V_PUBA}, {L_DUMMY}, v{V_PUBA}"); a(f"v_writelane_b32 v{V_PUBA}, s40, 0")
        a(f"v_mov_b32 v{V_BASE}, 0"); a("s_mov_b32 s7, 0"); a("s_mov_b32 s38, 0")
        a(f"ds_write_b32 v{V_PUBA}, v{V_BASE}")
        a("s_waitcnt lgkmcnt(0)"); a("s_barrier")

    def attention(self):
        a = self.a
        KF = XR + 8; S = [XR + 44, XR + 60, XR + 76]; M = XR + 92; NM = XR + 108; MX = [XR + 124, XR + 125]; T = XR + 126
        O = ACC[2]; VA = ACC[1]; KA = VA + 9
        VF = [WR, WR + 8]; P = [WR + 16, WR + 24]; BM = ACC[0]; PM = ACC[0] + 8
        a("v_and_b32 v104, 31, v2"); a("v_lshrrev_b32 v105, 5, v2")
        a(f"v_and_b32 v{KA}, 0x13, v104"); a("v_bfe_u32 v106, v104, 2, 1"); a(f"v_lshl_add_u32 v{KA}, v106, 3, v{KA}")
        a("v_bfe_u32 v106, v104, 3, 1"); a(f"v_lshl_add_u32 v{KA}, v106, 2, v{KA}")
        a(f"v_lshlrev_b32 v{KA}, 4, v{KA}"); a(f"v_lshl_add_u32 v{KA}, v105, 9, v{KA}")
        a(f"s_add_u32 s41, s25, {LK}"); a(f"v_add_u32 v{KA}, s41, v{KA}")
        a("v_bfe_u32 v106, v2, 2, 2"); a("v_lshl_add_u32 v106, v105, 3, v106"); a("v_lshlrev_b32 v106, 4, v106")
        a("v_and_b32 v107, 1, v2"); a("v_lshl_add_u32 v106, v107, 9, v106")
        a("v_bfe_u32 v107, v2, 1, 1"); a("v_lshl_add_u32 v106, v107, 3, v106")
        a(f"s_add_u32 s41, s25, {LV}"); a("v_add_u32 v106, s41, v106")
        a("v_bfe_u32 v107, v2, 4, 1"); a("v_cmp_eq_u32 vcc, 1, v107")
        a(f"v_mov_b32 v109, {HS}"); a(f"v_cndmask_b32_e64 v{KA+1}, v109, 0, vcc")
        a("s_sub_i32 s42, 8, s27")
        for i in range(9):
            a(f"s_cmp_gt_i32 s42, {i}"); a("s_cselect_b32 s41, 8, 0"); a(f"s_add_u32 s41, s41, {L_ONES}")
            a(f"v_mov_b32 v107, s41"); a(f"v_add_u32 v108, {i*KB}, v106")
            a(f"v_cndmask_b32 v{VA+i}, v108, v107, vcc")
        a("v_mov_b32 v107, 0xffff"); a("v_mov_b32 v108, 0xffff0000")
        for p in range(8):
            a(f"v_cndmask_b32_e64 v109, 0, v107, s[{64+4*p}:{65+4*p}]"); a(f"v_cndmask_b32_e64 v110, 0, v108, s[{66+4*p}:{67+4*p}]")
            a(f"v_or_b32 v{BM+p}, v109, v110")
        return dict(KF=KF, S=S, M=M, NM=NM, O=O, VA=VA, VF=VF, P=P, BM=BM, PM=PM, MX=MX, T=T, KA=KA)

    def attention_run(self, r, after_k, early_a):
        a = self.a
        KF, S0, M, NM, O, VA, VF, P, BM, PM, MX, T, KA = (r[x] for x in "KF S M NM O VA VF P BM PM MX T KA".split())
        def kread(hh, i): a(f"ds_read_b128 {vr(KF+4*i,4)}, v{KA} offset:{hh*HS + i*KB}")
        def vread(hh, i, vf):
            for t in range(2):
                for u in range(2): a(f"ds_read_b64_tr_b16 {vr(vf+4*t+2*u,2)}, v{VA+i} offset:{t*256 + u*64}")
            if hh == 0: a(f"v_add_u32 v{VA+i}, v{KA+1}, v{VA+i}")
        def qk(hh, dst, i, c): a(f"{MF} {vr(dst,16)}, {vr(KF+4*i,4)}, {vr(XR+4*hh,4)}, {c}")
        def pv(vf, p, t, c): a(f"{MF} {vr(O,16)}, {vr(vf+4*t,4)}, {vr(p+4*t,4)}, {c}")
        def mx(b, first=False):
            lo = 0
            if first:
                a(f"v_max3_f32 v{MX[0]}, v{b}, v{b+1}, v{b+2}"); a(f"v_max3_f32 v{MX[1]}, v{b+3}, v{b+4}, v{b+5}"); lo = 6
            for n, q in enumerate(range(lo, 16, 2)): a(f"v_max3_f32 v{MX[n%2]}, v{MX[n%2]}, v{b+q}, v{b+q+1}")
        def ex(b, lo, hi):
            for q in range(lo, hi): a(f"v_exp_f32 v{b+q}, v{b+q}")
        def cv(p, b, lo, hi):
            for q in range(lo, hi): a(f"v_cvt_pk_bf16_f32 v{p+q}, v{b+2*q}, v{b+2*q+1}")
        def fin(hh):
            a(f"v_rcp_f32 v{T}, v{O+8}")
            for q in range(8): a(f"v_mul_f32 v{O+q}, v{T}, v{O+q}")
            for q in range(4): a(f"v_cvt_pk_bf16_f32 v{V_EP+q}, v{O+2*q}, v{O+2*q+1}")
            self.store(f"buffer_store_dwordx4 {vr(V_EP,4)}, v{V_LANE16}, s[8:11], s37 offen offset:{hh*KB}")
        for i in (8, 0, 1, 2, 3, 4, 5, 6, 7): kread(0, i)
        a("s_waitcnt lgkmcnt(8)"); qk(0, M, 8, "0")
        a("s_waitcnt lgkmcnt(7)"); qk(0, S0[0], 0, "0")
        a("s_waitcnt lgkmcnt(6)"); qk(0, S0[1], 1, "0")
        for hh in range(2):
            S = S0 if hh == 0 else [S0[2], S0[0], S0[1]]
            a("s_waitcnt lgkmcnt(0)")
            qk(hh, S[2], 2, "0")
            for q in range(16): a(f"v_cndmask_b32_e64 v{M+q}, v{S[0]+q}, v{M+q}, s[{64+2*q}:{65+2*q}]")
            qk(hh, S[0], 3, "0")
            mx(M, True)
            if hh == 1: self.pub("h0"); fin(0)
            for i in range(1, 8):
                b = S[i % 3]
                mx(b)
                if i + 3 <= 7: qk(hh, b, i + 3, "0")
            a(f"v_max_f32 v{MX[0]}, v{MX[0]}, v{MX[1]}"); a(f"v_mov_b32 v{MX[1]}, v{MX[0]}")
            if OPT["fine"] > 2: self.stamp(16 + 5*hh)
            if hh == 0: after_k()
            if OPT["fine"] > 2: self.stamp(17 + 5*hh)
            vread(hh, 8, VF[0])
            a(f"v_permlane32_swap_b32 v{MX[0]}, v{MX[1]}")
            vread(hh, 0, VF[1])
            a(f"v_max_f32 v{MX[0]}, v{MX[0]}, v{MX[1]}")
            for q in range(16): a(f"v_sub_f32 v{NM+q}, 0, v{MX[0]}")
            qk(hh, S[1], 1, vr(NM, 16))
            for q in range(16): a(f"v_sub_f32 v{M+q}, v{M+q}, v{MX[0]}")
            qk(hh, S[2], 2, vr(NM, 16))
            ex(M, 0, 16)
            if OPT["fine"] > 2: self.stamp(18 + 5*hh)
            if hh == 1: self.flag(F_O1)
            if OPT["fine"] > 2: self.stamp(19 + 5*hh)
            if hh == 0: kread(1, 8); kread(1, 0); kread(1, 1); kread(1, 2)
            cv(PM, M, 0, 8)
            for q in range(8): a(f"v_and_b32 v{P[0]+q}, v{BM+q}, v{PM+q}")
            a("s_waitcnt lgkmcnt(4)" if hh == 0 else "s_waitcnt lgkmcnt(0)")
            pv(VF[0], P[0], 0, "0")
            for q in range(8): a(f"v_xor_b32 v{P[1]+q}, v{P[0]+q}, v{PM+q}")
            pv(VF[0], P[0], 1, vr(O, 16))
            pend = [(VF[1], P[1], 0), (VF[1], P[1], 1)]
            for i in range(1, 8):
                b = S[i % 3]; vf = VF[(i + 1) % 2]; p = P[(i + 1) % 2]
                ex(b, 0, 4)
                vread(hh, i, vf)
                if hh == 1 and i == 7: self.pub("att")
                x = pend.pop(0); pv(*x, vr(O, 16))
                ex(b, 4, 8)
                if pend: x = pend.pop(0); pv(*x, vr(O, 16))
                ex(b, 8, 12)
                if i + 2 <= 7:
                    qk(hh, S[(i + 2) % 3], i + 2, vr(NM, 16))
                    if hh == 0: kread(1, i + 2)
                elif hh == 0:
                    if i == 6: qk(1, M, 8, "0")
                    else: qk(1, S0[0], 1, "0")
                if hh == 1 and i == 5: self.peek(V_PH)
                if OPT["fine"] > 2 and i == 7: self.stamp(20 + 5*hh)
                if hh == 1 and i == 7: early_a()
                if OPT["fine"] > 2 and i == 7 and hh == 1: self.stamp(26)
                ex(b, 12, 16)
                if hh == 0 and i == 6: qk(1, S0[2], 0, "0")
                cv(p, b, 0, 8)
                a("s_waitcnt lgkmcnt(1)" if (hh == 0 and i + 2 <= 7) else "s_waitcnt lgkmcnt(0)")
                pv(vf, p, 0, vr(O, 16))
                pend.append((vf, p, 1))
            x = pend.pop(0); pv(*x, vr(O, 16))
        fin(1)
        if OPT["fine"] > 2: self.stamp(27)
        self.flag(F_O2)

    def ln_stats(self, d):
        L = []
        for n in (8, 4, 2, 1):
            for i in range(n): L.append(f"v_add_f32 v{d+i}, v{d+i}, v{d+i+n}")
        L += [f"v_mov_b32 v{d+1}, v{d}", f"v_permlane32_swap_b32 v{d}, v{d+1}", "s_nop 1",
              f"v_mul_f32 v{d}, {f32(-1.0/512)}, v{d}", f"v_mul_f32 v{d+1}, {f32(1.0/512)}, v{d+1}",
              f"v_fma_f32 v{d+1}, -v{d}, v{d}, v{d+1}", f"v_max_f32 v{d+1}, 0, v{d+1}", f"v_add_f32 v{d+1}, {f32(1e-5)}, v{d+1}",
              f"v_rsq_f32 v{V_RSTD}, v{d+1}", f"v_sqrt_f32 v{V_STD}, v{d+1}",
              f"v_cvt_pk_bf16_f32 v{V_XAUG}, v{d}, v{d}",
              f"v_and_b32 v{d+2}, 0xffff0000, v{V_XAUG}", f"v_sub_f32 v{d+2}, v{d}, v{d+2}", f"v_mov_b32 v{d+3}, 0",
              f"v_cvt_pk_bf16_f32 v{V_XAUG+1}, v{d+2}, v{d+3}",
              f"v_cndmask_b32_e64 v{V_XAUG}, 0, v{V_XAUG}, s[62:63]", f"v_cndmask_b32_e64 v{V_XAUG+1}, 0, v{V_XAUG+1}, s[62:63]",
              f"v_mul_f32 v{V_C1}, {f32(-LOG2E)}, v{V_RSTD}"]
        return L
    def wreg(self):
        w = self.wr + 4 * (self.wc % self.nw); self.wc += 1; return w
    def aug_step(self, acc, augidx, bn=None, look=None):
        w = self.wreg()
        s = dict(reads=[dict(op="ds_read_b64", d=w, fam=V_AUGA, off=augidx * 256, gate=bn)], mf=f"{MF} {vr(acc,16)}, {vr(w,4)}, {vr(V_XAUG,4)}, {vr(acc,16)}")
        return s
    def x_pass1(self, xl, sst, local, wread, augs, augbar, NT=2):
        a = self.a; vm = self.vm
        PRE = OPT["pre"] if NT == 2 else OPT.get("pre3", OPT["pre"]); STD = ACC[NT]
        def X(kc):
            def f(): xl(kc); vm.issue(f"x{kc}")
            return f
        XS = STD + 4
        def piece(p):
            a(f"s_add_u32 s41, s28, {4*p}"); a("s_and_b32 s41, s41, 31"); a("s_lshl_b32 s41, s41, 5"); a("s_add_u32 s41, s41, s55")
            for i in range(4): self.dma("s41", i*8*KB, L_X0 + (p%3)*16*KB + i*KB, voff=XS + i%2, srd="s[44:47]", sl="s42"); vm.issue(f"pc{p}")
        def dots(lo, hi):
            for kc in range(lo, hi):
                for i in range(4):
                    r = XR + 4 * kc + i
                    a(f"v_dot2c_f32_bf16 v{STD + 2*(i%2)}, s20, v{r}"); a(f"v_dot2c_f32_bf16 v{STD + 1 + 2*(i%2)}, v{r}, v{r}")
        def xrd(p): return [dict(op="ds_read_b128", d=XR+16*p+4*q, fam=XS+2+q, off=(p%3)*16*KB, vm=(f"pc{p}" if q == 0 else None)) for q in range(4)]
        def piece_part(p, i):
            if i == 0: a(f"s_add_u32 s33, s28, {4*p}"); a("s_and_b32 s33, s33, 31"); a("s_lshl_b32 s33, s33, 5"); a("s_add_u32 s33, s33, s55")
            self.dma("s33", i*8*KB, L_X0 + (p%3)*16*KB + i*KB, voff=XS + i%2, srd="s[44:47]", sl="s42"); vm.issue(f"pc{p}")
        def fin0():
            dots(28, 32)
            a(f"v_add_f32 v{STD}, v{STD}, v{STD+2}"); a(f"v_add_f32 v{STD+1}, v{STD+1}, v{STD+3}")
            a(f"v_permlane32_swap_b32 v{STD}, v{STD+1}"); a("s_nop 1"); a(f"v_add_f32 v{STD}, v{STD}, v{STD+1}")
            for x in self.ln_stats(STD)[15:]: a(x)
        if local == "start":
            a(f"v_lshrrev_b32 v{XS+3}, 4, v2"); a(f"v_and_b32 v{XS}, 7, v2"); a(f"v_xor_b32 v{XS}, v{XS+3}, v{XS}"); a(f"v_lshlrev_b32 v{XS}, 4, v{XS}")
            a(f"v_lshrrev_b32 v{XS+3}, 3, v2"); a(f"v_lshl_add_u32 v{XS}, v{XS+3}, 10, v{XS}"); a(f"v_xor_b32 v{XS+1}, 64, v{XS}")
            a("s_lshl_b32 s42, s6, 12")
            a("s_waitcnt lgkmcnt(0)"); a("s_mov_b64 s[44:45], s[64:65]")
            piece(0)
            return
        if local:
            piece(1); piece(2)
            for i in range(4): a(f"v_mov_b32 v{STD+i}, 0")
            a(f"v_bfe_u32 v{XS+2}, v2, 1, 3"); a(f"v_lshrrev_b32 v{XS+3}, 5, v2"); a(f"v_xor_b32 v{XS+2}, v{XS+3}, v{XS+2}"); a(f"v_lshlrev_b32 v{XS+2}, 4, v{XS+2}")
            a(f"v_and_b32 v{XS+3}, 31, v2"); a(f"v_lshl_add_u32 v{XS+2}, v{XS+3}, 7, v{XS+2}")
            a(f"s_add_u32 s41, s42, {L_X0}"); a(f"v_add_u32 v{XS+2}, s41, v{XS+2}")
            for q in range(1, 4): a(f"v_xor_b32 v{XS+2+q}, {32*q}, v{XS+2}")
        else:
            for i in range(4): a(f"buffer_load_dwordx4 {vr(STD+4*i,4)}, v{V_LANE16}, s[8:11], {sst} offen offset:{1024*i} sc1")
            for kc in range(PRE): X(kc)()
        steps = []
        st = self.ln_stats(STD)
        for kc in range(32):
            for t in range(NT):
                w = self.wreg()
                s = dict(reads=wread(w, t, kc), mf=f"{MF} {vr(ACC[t],16)}, {vr(w,4)}, {vr(XR+4*kc,4)}, {'0' if kc == 0 else vr(ACC[t],16)}", post=[])
                if local:
                    p = kc // 4
                    if t == 0 and kc % 4 == 0:
                        s["reads"] = xrd(p) + s["reads"]
                        if p: s["pre"] = [lambda p=p: dots(4*p - 4, 4*p)]
                        if OPT["fine"] == 2: s["post"].append(lambda p=p: self.stamp(16 + p))
                    n8 = 2 * (kc % 4) + t
                    if n8 < 4 and p + 3 < 8: s["post"].append(lambda p=p, n8=n8: piece_part(p + 3, n8))
                    if n8 == 4 and p == 4: s["post"].append(lambda: self.pub("x"))
                    if t == 1 and kc == 31: s["post"].append(fin0)
                elif t == 0:
                    s["pre"] = [lambda kc=kc: vm.wait(f"x{kc}")]
                    if kc + PRE < 32: s["post"].append(X(kc + PRE))
                elif kc >= 2:
                    s["post"] += st[:3]; st = st[3:]
                steps.append(s)
        for t in range(NT): steps.append(self.aug_step(ACC[t], augs[t], augbar if t == 0 else None))
        return steps

    def res_gemm(self, nsteps, slot, areg, aload, pre_issued, PRE, gates, pubs, xch, xpub, pre_x, hooks={}):
        a = self.a; vm = self.vm
        for i in range(8):
            a(f"v_lshlrev_b32 v{ACC[0]+2*i}, 16, v{V_RES+i}"); a(f"v_and_b32 v{ACC[0]+2*i+1}, 0xffff0000, v{V_RES+i}")
        a(f"v_xor_b32 v{V_EP}, 64, v{V_FW}"); a(f"v_add_u32 v{V_EP+1}, 0x10000, v{V_EP}"); a(f"v_add_u32 v{V_EP+2}, 0x20000, v{V_EP}")
        nxt = [pre_issued]
        def upto(n):
            while nxt[0] < min(n, nsteps): aload(nxt[0]); nxt[0] += 1
        steps = []; self.wc = 0; self.wr = WR; self.nw = NW
        fo = [V_FW, V_FW + 1, V_FW + 2]; ft = [V_EP, V_EP + 1, V_EP + 2]
        order = [(s, t) for s in range(nsteps - 2) for t in range(2)] + [(nsteps - 2, 1), (nsteps - 1, 1), (nsteps - 2, 0), (nsteps - 1, 0)]
        first = {}; last = {}
        for n, (s, t) in enumerate(order): first.setdefault(s, n); last[s] = n
        for n, (s, t) in enumerate(order):
            w = self.wreg()
            c = vr(ACC[t], 16) if (t == 0 or s > 0) else "0"
            st = dict(reads=self.rdtr(w, fo if t == 0 else ft, slot(s), 512, gates.get(s) if first[s] == n else None, pubs.get(s) if last[s] == n else None),
                      mf=f"{MF} {vr(ACC[t],16)}, {vr(w,4)}, {vr(areg(s),4)}, {c}")
            if first[s] == n and s == pre_x[0]: st["reads"][0].update(gate=pre_x[1], gsrc="C")
            if first[s] == n: st["pre"] = ([lambda s=s: hooks[s](upto)] if s in hooks else []) + [lambda s=s: vm.wait(f"a{s}")]
            elif PRE: st["post"] = [lambda s=s: upto(s + 1 + PRE)]
            steps.append(st)
        a(f"s_xor_b32 s40, s6, 1"); a("s_lshl_b32 s40, s40, 12"); a(f"s_add_u32 s40, s40, {xch}"); a(f"v_add_u32 v{V_EP+3}, s40, v{V_LANE16}")
        self.stream(steps, look=10)
        if OPT["fine"] and nsteps == 56: self.stamp(9)
        for i in range(4): a(f"ds_write_b128 v{V_EP+3}, {vr(ACC[1]+4*i,4)} offset:{i*KB}")
        self.pub(xpub)
        a(f"v_xor_b32 v{V_EP+3}, 4096, v{V_EP+3}")
        rds = [f"ds_read_b128 {vr(ACC[2]+4*i,4)}, v{V_EP+3} offset:{i*KB}" for i in range(4)]
        self.gate_rd("C")
        for x in rds: a(x)
        a("s_waitcnt lgkmcnt(4)")
        self.gate_cmp(xpub, "C"); self.gate_br("C", redo=rds)
        for i in range(4):
            a(f"s_waitcnt lgkmcnt({3-i})")
            for q in range(4): a(f"v_add_f32 v{ACC[0]+4*i+q}, v{ACC[0]+4*i+q}, v{ACC[2]+4*i+q}")
            for q in range(2): a(f"v_cvt_pk_bf16_f32 v{V_RES+2*i+q}, v{ACC[0]+4*i+2*q}, v{ACC[0]+4*i+2*q+1}")

    def x_store(self, sx, sst, flagval):
        a = self.a
        self.store(f"buffer_store_dwordx4 {vr(V_RES,4)}, v{V_LANE16}, s[8:11], {sx} offen")
        self.store(f"buffer_store_dwordx4 {vr(V_RES+4,4)}, v{V_LANE16}, s[8:11], {sx} offen offset:1024")
        for x in stats_calc_list(V_RES, ACC[1]): a(x)
        self.store(f"buffer_store_dword v{ACC[1]}, v{V_LANE16}, s[8:11], {sst} offen")
        self.flag(flagval)

    def compute(self):
        a = self.a; self.role = "C"; self.vm = vm = VM(a)
        a(f"s_setprio {OPT['cprio']}")
        a("v_and_b32 v104, 31, v2"); a("v_lshrrev_b32 v105, 5, v2")
        a(f"v_lshlrev_b32 v{V_XOFF}, 10, v104"); a(f"v_lshl_add_u32 v{V_XOFF}, v105, 4, v{V_XOFF}")
        a("s_lshl_b32 s55, s27, 15")
        a(f"s_mov_b32 s46, {2048*1024}"); a("s_mov_b32 s47, 0x20000")
        self.x_pass1(None, None, "start", None, None, None)
        a(f"s_mov_b32 s14, {2048*1024}"); a("s_mov_b32 s15, 0x20000")
        a("s_lshr_b32 s50, s6, 1"); a("s_and_b32 s51, s6, 1")
        a("s_lshl_b32 s48, s18, 1"); a("s_add_u32 s48, s48, s50"); a("s_mov_b32 s52, s48")
        a("s_lshl_b32 s40, s16, 2"); a("s_add_u32 s48, s48, s40")
        a("s_lshl_b32 s49, s19, 1"); a("s_add_u32 s49, s49, s51")
        a("s_lshl_b32 s53, s48, 15"); a("s_lshl_b32 s40, s49, 11"); a("s_add_u32 s53, s53, s40")
        a("s_lshl_b32 s54, s48, 12"); a("s_lshr_b32 s40, s49, 2"); a("s_lshl_b32 s40, s40, 10"); a("s_add_u32 s54, s54, s40")
        a("s_and_b32 s40, s49, 3"); a("s_lshl_b32 s40, s40, 2"); a("s_add_u32 s54, s54, s40")
        a(f"v_mov_b32 v{V_F0}, v{V_LANE16}"); a(f"v_add_u32 v{V_F0+1}, 0x10000, v{V_LANE16}")
        self.tr_addr16(V_TQ, 106, 107); a(f"v_add_u32 v{V_TQ+1}, 0x10000, v{V_TQ}")
        a(f"v_lshlrev_b32 v{V_FW}, 10, v105"); a("v_bfe_u32 v106, v2, 2, 2"); a(f"v_lshl_add_u32 v{V_FW}, v106, 7, v{V_FW}")
        a("v_bfe_u32 v106, v2, 3, 1"); a("v_xor_b32 v106, s51, v106"); a(f"v_lshl_add_u32 v{V_FW}, v106, 6, v{V_FW}")
        a(f"v_and_b32 v106, 63, v{V_TQ}"); a(f"v_add_u32 v{V_FW}, v106, v{V_FW}")
        a("s_lshl_b32 s40, s51, 11"); a(f"v_add_u32 v{V_FW}, s40, v{V_FW}")
        a(f"v_add_u32 v{V_FW+1}, 0x10000, v{V_FW}"); a(f"v_add_u32 v{V_FW+2}, 0x20000, v{V_FW}")
        a("v_bfe_u32 v106, v2, 1, 3"); a("v_and_b32 v107, 1, v2"); a("v_and_b32 v108, 7, v2")
        a("s_lshl_b32 s40, s50, 8"); a("s_lshl_b32 s41, s51, 3"); a("s_add_u32 s40, s40, s41")
        a(f"v_lshlrev_b32 v{V_PX}, 5, v106"); a(f"v_lshl_add_u32 v{V_PX}, v107, 2, v{V_PX}"); a(f"v_add_u32 v{V_PX}, s40, v{V_PX}")
        a("s_lshl_b32 s40, s51, 8"); a("s_lshl_b32 s41, s52, 2"); a("s_add_u32 s40, s40, s41")
        a(f"v_lshlrev_b32 v{V_PH}, 5, v108"); a(f"v_add_u32 v{V_PH}, s40, v{V_PH}")
        a(f"v_lshlrev_b32 v{V_AUGA}, 3, v104"); a(f"v_add_u32 v{V_AUGA}, {L_AUG}, v{V_AUGA}")
        a(f"v_mov_b32 v{V_XAUG+2}, 0"); a(f"v_mov_b32 v{V_XAUG+3}, 0")
        for r in range(WR, WR + 32, 4): a(f"v_mov_b32 v{r+2}, 0") if False else None
        a("v_cmp_gt_u32 s[62:63], 32, v2")
        a("v_lshlrev_b32 v106, 3, v105"); a("v_sub_u32 v106, v104, v106")
        a("s_mov_b64 s[12:13], s[78:79]")
        if OPT["stamp"]: a(f"v_writelane_b32 v{V_TS}, s100, 31")
        for r in range(16): a(f"v_cmp_le_i32 s[{64+2*r}:{65+2*r}], {16*(r>>3) + (r&7)}, v106")
        a(f"v_and_b32 v{V_FA}, 3, v2"); a(f"v_lshlrev_b32 v{V_FA}, 2, v{V_FA}"); a(f"v_add_u32 v{V_FA}, {L_HL}, v{V_FA}")
        self.stamp(0)
        ftq = [V_TQ, V_TQ + 1]
        self.wc = 0
        steps = self.x_pass1(None, None, True, lambda w, t, kc: self.rdtr(w, ftq, (RK, RV)[t] + kc*KB, 256, f"kv{kc//8}" if (t == 0 and kc % 8 == 0) else None, "kv" if (t == 1 and kc == 31) else None), [1, 2], "augkv")
        self.stream(steps, look=8)
        a("s_branch L_c_go")
        a("L_c_loop:")
        self.stamp(0)
        self.poll(V_PX, "s26", "s57"); vm.q = []
        self.stamp(1)
        def xl(kc):
            if kc % 4 == 0: a(f"s_add_u32 s43, s55, {kc*KB}")
            a(f"buffer_load_dwordx4 {vr(XR+4*kc,4)}, v{V_LANE16}, s[8:11], s43 offen offset:{(kc%4)*KB} sc1")
        self.wc = 0
        steps = self.x_pass1(xl, "s56", False, lambda w, t, kc: self.rdtr(w, ftq, (RK, RV)[t] + kc*KB, 256, "nkv" if (t == 0 and kc == 0) else None,
                                                                          {(1, OPT.get("b1x", 22)): "x", (1, 31): "kv"}.get((t, kc)), HV["nkv"]), [1, 2], None)
        self.stream(steps, look=10)
        a("L_c_go:")
        if OPT["fine"]: self.stamp(14)
        steps = []
        for kc in range(32):
            w = self.wreg()
            steps.append(dict(reads=self.rdtr(w, ftq, RQ + kc*KB, 256, "wq" if kc == 0 else None),
                              mf=f"{MF} {vr(ACC[2],16)}, {vr(w,4)}, {vr(XR+4*kc,4)}, {'0' if kc == 0 else vr(ACC[2],16)}"))
        steps.append(None)
        q = ["s_lshl_b32 s58, s17, 17", "s_lshl_b32 s40, s27, 10", "s_add_u32 s58, s58, s40", f"s_add_u32 s58, s58, {KV}", "s_add_u32 s58, s58, s36",
             f"s_add_u32 s40, s25, {LK + 8*KB}", f"v_add_u32 v{V_OUT}, s40, v{V_LANE16}"]
        for t in range(2):
            A0 = ACC[t]
            for hh in range(2):
                q += [f"v_mul_f32 v{A0+r}, v{V_RSTD}, v{A0+r}" for r in range(8*hh, 8*hh + 8)]
                q += [f"v_cvt_pk_bf16_f32 v{A0+r}, v{A0+2*r}, v{A0+2*r+1}" for r in range(4*hh, 4*hh + 4)]
                q += [f"s_add_u32 s59, s58, {t*32*64*KB + hh*64*KB}", f"buffer_store_dwordx4 {vr(A0+4*hh,4)}, v{V_LANE16}, s[8:11], s59 offen sc1"]
        def kvflag():
            a("s_lshl_b32 s40, s16, 11"); a("s_lshl_b32 s41, s17, 7"); a("s_add_u32 s40, s40, s41"); a("s_lshl_b32 s41, s6, 2"); a("s_add_u32 s40, s40, s41"); a(f"s_add_u32 s40, s40, {KVFL}")
            a("s_add_u32 s41, s22, 1"); a(f"v_mov_b32 v{V_TMP}, s41")
            vm.drain()
            a("s_mov_b64 exec, 1"); a(f"buffer_store_dword v{V_TMP}, off, s[8:11], s40 sc1"); a("s_mov_b64 exec, -1")
            self.pub("kvf")
        for x in q: a(x)
        q = []
        def kvf_if(it):
            l = self.lab()
            a(f"s_cmp_lg_u32 s22, {it}"); a(f"s_cbranch_scc1 {l}"); kvflag(); a(f"{l}:")
        kvf_if(0)
        def fill(i):
            out = []
            if i == OPT["kvflag"]: out.append(lambda: kvf_if(1))
            return out
        self.stream(steps[:-1], look=10, fill=fill)
        assert not q
        self.gate("augq")
        for hh in range(2):
            a(f"ds_write_b128 v{V_OUT}, {vr(ACC[0]+4*hh,4)} offset:{hh*HS}")
            a(f"ds_write_b128 v{V_OUT}, {vr(ACC[1]+4*hh,4)} offset:{12*KB + hh*HS}")
        self.pub("q")
        a(f"v_mul_f32 v{V_C1}, {f32(0.25*LOG2E)}, v{V_RSTD}")
        r = self.attention()
        a(f"v_mov_b32 v{V_TMP}, {L_MODE}"); a(f"ds_read_b32 v{V_TMP}, v{V_TMP}"); a("s_waitcnt lgkmcnt(0)")
        a(f"v_readfirstlane_b32 s21, v{V_TMP}")
        a("s_lshl_b32 s37, s27, 15"); a("s_lshl_b32 s40, s17, 11"); a("s_add_u32 s37, s37, s40"); a(f"s_add_u32 s37, s37, {OF}"); a("s_add_u32 s37, s37, s35")
        a("s_lshl_b32 s60, s48, 15"); a("s_lshl_b32 s40, s51, 14"); a("s_add_u32 s60, s60, s40"); a(f"s_add_u32 s60, s60, {OF}"); a("s_add_u32 s60, s60, s35")
        self.stamp(2)
        self.wc = 0
        self.stream([self.aug_step(ACC[2], 0)], look=0)
        for r_ in range(16): a(f"v_mul_f32 v{ACC[2]+r_}, v{V_C1}, v{ACC[2]+r_}")
        for r_ in range(8): a(f"v_cvt_pk_bf16_f32 v{XR+r_}, v{ACC[2]+2*r_}, v{ACC[2]+2*r_+1}")
        self.gate("q", "C"); self.gate("hk")
        self.stamp(3)
        def after_k():
            self.gate("hv")
            l = self.lab()
            a("s_cmp_lg_u32 s22, 0"); a(f"s_cbranch_scc1 {l}")
            a("s_lshl_b32 s40, s48, 15"); a("s_lshl_b32 s41, s49, 6"); a("s_add_u32 s40, s40, s41")
            a(f"buffer_load_dwordx4 {vr(V_RES,4)}, v{V_XOFF}, s[44:47], s40 offen")
            a(f"buffer_load_dwordx4 {vr(V_RES+4,4)}, v{V_XOFF}, s[44:47], s40 offen offset:32")
            a(f"{l}:")
            a(self.touch_txt([(["s_mov_b32 s43, s37"], 16), ([f"s_add_u32 s43, s53, {XA}"], 16), ([f"s_add_u32 s43, s54, {STA}"], 8),
                              ([f"s_mul_i32 s43, s27, {112*KB}", f"s_mul_i32 s40, s17, {7*KB}", "s_add_u32 s43, s43, s40", f"s_add_u32 s43, s43, {HF}"], 56)][:3 if OPT.get("x_notouch") else 4]))
        oreg = lambda s: XR + 8 + 4 * s
        def al_o(s):
            g = 2 * (s % 8) + (s >> 3)
            if s % 2 == 0: a(f"s_add_u32 s43, s60, {(g & ~3)*KB}")
            a(f"buffer_load_dwordx4 {vr(oreg(s),4)}, v{V_LANE16}, s[8:11], s43 offen offset:{(g & 3)*KB} sc1"); vm.issue(f"a{s}")
        def early_a():
            self.check(V_PH, F_O1)
            for s_ in range(8): al_o(s_)
        self.attention_run(r, after_k, early_a)
        self.stamp(4)
        a(f"s_add_u32 s58, s53, {XA}"); a("s_add_u32 s58, s58, s35"); a(f"s_add_u32 s59, s54, {STA}"); a("s_add_u32 s59, s59, s35")
        def h_o(upto):
            self.check(V_PH, F_O2); self.stamp(5); upto(16)
        self.res_gemm(16, lambda s: RK + s*4*KB, oreg, al_o, 8, 0, {0: "wo"}, {7: "wo1"}, XCH_WO, "wo", (10, "att"),
                      hooks={OPT.get("opeek", 2): lambda u: self.peek(V_PH), 8: h_o})
        self.x_store("s58", "s59", F_X1)
        self.stamp(6)
        a(f"s_mul_i32 s60, s27, {112*KB}"); a(f"s_mul_i32 s40, s17, {7*KB}"); a("s_add_u32 s60, s60, s40"); a(f"s_add_u32 s60, s60, {HF}"); a("s_add_u32 s60, s60, s35")
        a("s_lshl_b32 s58, s27, 15"); a(f"s_add_u32 s58, s58, {XA}"); a("s_add_u32 s58, s58, s35")
        a("s_lshl_b32 s59, s27, 12"); a(f"s_add_u32 s59, s59, {STA}"); a("s_add_u32 s59, s59, s35")
        a(f"s_mul_i32 s29, s48, {112*KB}"); a(f"s_mul_i32 s40, s51, {56*KB}"); a("s_add_u32 s29, s29, s40"); a(f"s_add_u32 s29, s29, {HF}"); a("s_add_u32 s29, s29, s35")
        a(f"s_add_u32 s61, s23, {F_X1}")
        self.poll(V_PX, "s26", "s61"); vm.q = []
        self.stamp(7)
        def xl2(kc):
            if kc % 4 == 0: a(f"s_add_u32 s43, s58, {kc*KB}")
            a(f"buffer_load_dwordx4 {vr(XR+4*kc,4)}, v{V_LANE16}, s[8:11], s43 offen offset:{(kc%4)*KB} sc1")
        self.wc = 0; self.wr = 104; self.nw = 6
        steps = self.x_pass1(xl2, "s59", False, lambda w, t, kc: self.rd128(w, GU_REG[t] + kc*KB, f"t2_{kc//8}" if (t == 0 and kc % 8 == 0 and (kc == 0 or not OPT.get("t2e", 1))) else None, f"g{kc+1}" if (t == 2 and kc % 8 == 7) else None), [3, 4, 5], None, NT=3)
        self.pub("xch")
        done = {t: len(steps) - 3 + t for t in range(3)}; start = {}
        accof = {t: ACC[t % 4] for t in range(7)}
        for t in range(3, 7):
            start[t] = len(steps)
            for kc in range(32):
                w = self.wreg()
                steps.append(dict(reads=self.rd128(w, GU_REG[t] + kc*KB, f"t{t}" if kc == 0 else None, f"t{t}" if kc == 31 else None),
                                  mf=f"{MF} {vr(accof[t],16)}, {vr(w,4)}, {vr(XR+4*kc,4)}, {'0' if kc == 0 else vr(accof[t],16)}", pair=(kc % 2 == 0 and OPT.get("pair", 1))))
            steps.append(self.aug_step(accof[t], 3 + t))
            done[t] = len(steps) - 1
        def epi(t):
            A0 = accof[t]; L = []
            if OPT.get("x_nofill"): return [lambda: (a(f"s_add_u32 s43, s60, {t*KB}"), self.store(f"buffer_store_dwordx4 {vr(V_EP,4)}, v{V_LANE16}, s[8:11], s43 offen", f"h{t}"))]
            L += [f"v_mul_f32 v{A0+r}, v{V_C1}, v{A0+r}" for r in range(8)]
            L += [f"v_exp_f32 v{A0+r}, v{A0+r}" for r in range(8)]
            L += [f"v_fma_f32 v{A0+r}, v{A0+r}, v{V_STD}, v{V_STD}" for r in range(8)]
            L += [f"v_rcp_f32 v{A0+r}, v{A0+r}" for r in range(8)]
            L += [f"v_mul_f32 v{A0+r}, v{A0+r}, v{A0+8+r}" for r in range(8)]
            L += [f"v_cvt_pk_bf16_f32 v{V_EP+r}, v{A0+2*r}, v{A0+2*r+1}" for r in range(4)]
            L += [lambda: (a(f"s_add_u32 s43, s60, {t*KB}"), self.store(f"buffer_store_dwordx4 {vr(V_EP,4)}, v{V_LANE16}, s[8:11], s43 offen", f"h{t}"))]
            return L
        hreg = lambda s: XR + 4 * (s % 32)
        def al_h(s):
            t, i = s // 8, s % 8
            if OPT.get("x_noh") and s >= 16: return
            if OPT.get("x_sameh"): t, i = 0, s % 2
            a(f"s_add_u32 s43, s29, {(7*i + t)*KB}"); a(f"buffer_load_dwordx4 {vr(hreg(s),4)}, v{V_LANE16}, s[8:11], s43 offen sc1"); vm.issue(f"a{s}")
        NP = OPT.get("np", 16)
        queue = []; flag_at = {}
        def fill2(i):
            for t in range(7):
                if done[t] + 2 == i: queue.extend((x, t) for x in epi(t))
            out = []
            if OPT["fine"] and i == done[2]: self.pend_stamp = 12
            if OPT["fine"] and i == done[4]: self.pend_stamp = 13
            if i == done[2] + 1: out.append(self.touch_txt([([f"s_add_u32 s43, s53, {XB}"], 16), ([f"s_add_u32 s43, s54, {STB}"], 8)]))
            for t2, sidx in start.items():
                if sidx == i + 1 and t2 >= 4:
                    while queue and queue[0][1] <= t2 - 4: out.append(queue.pop(0)[0])
            cost = 0; lim = OPT.get("fillc", 3)
            while queue and cost < lim:
                x, t = queue.pop(0); out.append(x)
                cost += 3 if callable(x) else 2 if x.startswith(("v_exp", "v_rcp")) else 1
                if callable(x) and t == 3: flag_at[i + 10] = t
            if i in flag_at: out.append(lambda: self.flag(F_H1, "h3"))
            k6 = i - start[6]
            if k6 == 31 - NP - 14: out.append(lambda: self.peek(V_PH))
            if k6 == 31 - NP: out.append(lambda: self.check(V_PH, F_H1))
            if 31 - NP < k6 <= 31: out.append(lambda s_=k6 - (32 - NP): al_h(s_))
            return out
        self.stream(steps, look=4, fill=fill2)
        assert flag_at and max(flag_at) < start[6], (flag_at, start)
        for x, _ in queue: self.emit(x)
        for x in epi(6): self.emit(x)
        self.stamp(8)
        a(f"s_add_u32 s58, s53, {XB}"); a("s_add_u32 s58, s58, s35"); a(f"s_add_u32 s59, s54, {STB}"); a("s_add_u32 s59, s59, s35")
        PD = OPT.get("pd", 14)
        hooks = {OPT.get("hflag", 5): lambda u: self.flag(F_H2, "h6"), 32 - PD - 8: lambda u: self.peek(V_PH), 32 - PD - 1: lambda u: self.check(V_PH, F_H2)}
        self.res_gemm(56, wd_slot, hreg, al_h, NP, PD, {s: f"w{s}" for s in DG}, {s - 1: f"d{s}" for s in DP},
                      XCH_DN, "dx", (50, "d45"), hooks=hooks)
        self.stamp(10)
        a("s_cmp_lg_u32 s22, 0"); a("s_cbranch_scc1 L_c_final")
        self.x_store("s58", "s59", F_X2)
        a("s_lshl_b32 s55, s27, 15"); a(f"s_add_u32 s55, s55, {XB}"); a("s_add_u32 s55, s55, s35")
        a("s_lshl_b32 s56, s27, 12"); a(f"s_add_u32 s56, s56, {STB}"); a("s_add_u32 s56, s56, s35")
        a(f"s_mov_b32 s57, {F_X2}")
        self.next_iter()
        a.fence()
        a("s_branch L_c_loop")
        a("L_c_final:")
        a("s_lshl_b32 s40, s48, 15"); a("s_lshl_b32 s41, s49, 6"); a("s_add_u32 s40, s40, s41")
        a(f"buffer_store_dwordx4 {vr(V_RES,4)}, v{V_XOFF}, s[12:15], s40 offen")
        a(f"buffer_store_dwordx4 {vr(V_RES+4,4)}, v{V_XOFF}, s[12:15], s40 offen offset:32")
        self.finish()

    def next_iter(self):
        a = self.a
        a("s_mov_b32 s22, 1"); a("s_mov_b32 s23, 16"); a("s_mov_b32 s7, 64"); a(f"v_mov_b32 v{V_BASE}, 64")
        a(f"s_mov_b32 s36, {ITS}"); a(f"s_mul_i32 s35, s21, {ITS}")
    def finish(self):
        a = self.a
        if OPT["stamp"]:
            a("s_waitcnt vmcnt(0)")
            self.stamp(11)
            a("s_lshl_b32 s40, s2, 12"); a("s_lshl_b32 s41, s3, 9"); a("s_add_u32 s40, s40, s41"); a(f"s_add_u32 s40, s40, {TS}")
            a("v_lshlrev_b32 v40, 2, v2")
            a(f"buffer_store_dword v{V_TS}, v40, s[8:11], s40 offen"); a(f"buffer_store_dword v{V_TS2}, v40, s[8:11], s40 offen offset:256")
        a("s_endpgm")

    def helper(self):
        a = self.a; self.role = "H"; vm = VM(a)
        HV_QKV = 16; HV_ROW0 = 17; HV_OOB = 18; HV_PK = 19; HV_W = 20; HV_R128 = 23; HV_TQ = 24; HT = 26
        SQ, SO, SD, SG, SX, SDBG = "s[44:47]", "s[48:51]", "s[52:55]", "s[56:59]", "s[60:63]", "s[12:15]"
        HF_ = 25
        W = OPT.get("win", 8)
        st = dict(it=0); outq = []; sigs = []
        cnt = dict(issued=0, done=0)
        def hpub_txt(name):
            self.seen.add(("H", name))
            return [f"v_mov_b32 v{V_TMP}, {64*st['it'] + HV[name]}", f"ds_max_u32 v{V_PUBA}, v{V_TMP}"]
        def hpub(name):
            for x in hpub_txt(name): a(x)
        def retire(n):
            if n > cnt["done"]:
                k = cnt["issued"] - n; assert 0 <= k <= 63
                if cnt.get("ghost") and n <= cnt["ghost"][0]:
                    l = self.lab()
                    a(f"s_waitcnt vmcnt({k + cnt['ghost'][1]})"); a("s_cmp_lg_u32 s87, 0"); a(f"s_cbranch_scc1 {l}"); a(f"s_waitcnt vmcnt({k})"); a(f"{l}:")
                else: a(f"s_waitcnt vmcnt({k})")
                cnt["done"] = n
            last = None
            while sigs and sigs[0][1] <= cnt["done"]: last = sigs.pop(0)[0]; self.seen.add(("H", last))
            if last: hpub(last)
        def op(win=None):
            cnt["issued"] += 1
            retire(max(cnt["done"], cnt["issued"] - (W if win is None else win)))
        def sig(name):
            sigs.append((name, cnt["issued"])); retire(cnt["done"])
        def flush():
            while sigs: retire(sigs[0][1])
        def drain():
            retire(cnt["issued"])
        def need(name, src="C", it=None):
            l1 = self.lab(); l2 = self.lab(); l3 = self.lab()
            val = 64 * (st["it"] if it is None else it) + (CV if src == "C" else HV)[name]
            rd = f"ds_read_b32 v{V_FLG}, v{HF_} offset:{16 if src == 'C' else 0}"
            a(rd); a("s_waitcnt lgkmcnt(0)"); a(f"s_movk_i32 s39, {val}"); a(f"v_cmp_gt_u32 vcc, s39, v{V_FLG}"); a(f"s_cbranch_vccnz {l1}"); a(f"{l2}:")
            a.pending.pop(l1, None)
            o = [f"{l1}:"]
            for nm, n in sigs: o += [f"    s_waitcnt vmcnt({cnt['issued'] - n})"] + ["    " + x for x in hpub_txt(nm)]
            o += [f"{l3}:", "    s_sleep 1", "    s_add_u32 s38, s38, 1", f"    s_cmp_gt_u32 s38, {OPT['spin']*16}", f"    s_cbranch_scc1 {l2}", "    " + rd, "    s_waitcnt lgkmcnt(0)", f"    v_cmp_gt_u32 vcc, s39, v{V_FLG}", f"    s_cbranch_vccnz {l3}", f"    s_branch {l2}"]
            self.ool += o
            self.used.add((src, name))
        def tile(t, gs=range(8)):
            for g in gs: self.dma("s29", t*32*KB + g*4*KB, GU_REG[t] + g*4*KB, fl=" sc1"); op()
        def wqkv(which, gs, win=None):
            for g in gs:
                a(f"s_add_u32 s41, s30, {4*g}"); a("s_and_b32 s41, s41, 31"); a("s_mul_i32 s41, s41, 49152"); a("s_add_u32 s41, s41, s31")
                for ci, reg in which:
                    self.dma("s41", ci*1024, reg + g*4*KB, voff=HV_QKV, srd=SQ); op(win)
                if len(which) == 2 and g % 2 == 1: sig(f"kv{g//2}")
        def wqp(which, gs):
            for g in gs:
                for ci, reg in which: self.dma("s34", ci*32*KB + g*4*KB, reg + g*4*KB, fl=" sc1"); op()
        WK = (1, RK); WV = (2, RV); WQ = (0, RQ)
        st_next = [0]; st_idx = {}
        def stash(n):
            for _ in range(n):
                s_ = st_next[0]
                if s_ >= 56: break
                t, i = s_ // 8, s_ % 8
                a(f"s_add_u32 s40, s33, {(7*i + t)*16*KB}")
                a(f"buffer_load_dwordx4 {vr(STASH+4*s_,4)}, v{HV_R128}, {SD}, s40 offen"); op(); st_idx[s_] = cnt["issued"]
                st_next[0] += 1
        def wdw(steps):
            for s_ in steps:
                if s_ >= 56: break
                retire(max(cnt["done"], st_idx[s_]))
                if OPT.get("x_nowdw"): continue
                o = wd_slot(s_)
                a(f"ds_write_b128 v{HV_W + (o >> 16)}, {vr(STASH+4*s_,4)} offset:{o & 0xffff}")
        def only(cond_lines, fn):
            l = self.lab()
            for c in cond_lines: a(c)
            a(f"s_cbranch_scc0 {l}"); fn(); a(f"{l}:")
        a(f"v_lshrrev_b32 v{HT}, 2, v2"); a(f"v_mul_u32_u24 v{HV_QKV}, 3072, v{HT}"); a(f"v_and_b32 v{HT}, 3, v2"); a(f"v_lshl_add_u32 v{HV_QKV}, v{HT}, 4, v{HV_QKV}")
        a("s_add_u32 s30, s28, s6"); a("s_lshl_b32 s31, s17, 6")
        a(f"s_mov_b32 s46, {512*3072}"); a("s_mov_b32 s47, 0x20000")
        a("s_mov_b64 s[44:45], s[66:67]")
        if OPT["stamp"]: a(f"v_writelane_b32 v{V_TS}, s100, 31")
        a("s_mul_i32 s83, s2, 9363"); a("s_lshr_b32 s83, s83, 18")
        a("s_mul_i32 s40, s83, 28"); a("s_sub_u32 s84, s2, s40")
        a("s_mul_i32 s40, s84, 37"); a("s_lshr_b32 s40, s40, 8"); a("s_mul_i32 s41, s40, 7"); a("s_sub_u32 s41, s84, s41")
        a("s_lshl_b32 s41, s41, 3"); a("s_add_u32 s41, s41, s83"); a("s_lshl_b32 s40, s40, 6"); a("s_add_u32 s40, s40, s41"); a("s_lshl_b32 s40, s40, 3"); a(f"s_add_u32 s88, s40, {RF}")
        a("s_cmp_lt_u32 s2, 224"); a("s_cselect_b32 s88, s88, 0x7ff00000")
        a("s_lshl_b32 s89, s17, 8"); a("s_lshl_b32 s40, s16, 4"); a("s_add_u32 s89, s89, s40"); a(f"s_add_u32 s89, s89, {PFL}")
        def zero():
            for r in range(4): a(f"v_mov_b32 v{40+r}, 0")
            a("s_sub_u32 s40, s24, 28")
            a("s_lshl_b32 s81, s16, 11"); a("s_lshl_b32 s41, s17, 7"); a("s_add_u32 s81, s81, s41"); a(f"s_add_u32 s81, s81, {KVFL}")
            a("s_mov_b64 exec, 1")
            a("buffer_store_dwordx4 v[40:43], off, s[8:11], s40 sc1"); a("buffer_store_dwordx4 v[40:43], off, s[8:11], s81 sc1")
            a("buffer_store_dwordx2 v[40:41], off, s[8:11], s88 sc1"); a("buffer_store_dwordx4 v[40:43], off, s[8:11], s89 sc1")
            a("s_mov_b64 exec, -1")
        only(["s_cmp_eq_u32 s6, 3"], zero)
        def codepf():
            a("s_getpc_b64 s[42:43]")
            a.raw("L_pc:")
            a(f"s_sub_u32 s42, s42, L_pc-{NAME}"); a("s_subb_u32 s43, s43, 0")
            a("s_lshr_b32 s40, s2, 3"); a("s_lshl_b32 s40, s40, 11")
            a("v_lshlrev_b32 v40, 7, v2"); a("v_add_u32 v40, s40, v40"); a(f"v_min_u32 v40, L_code_end-{NAME}-4, v40")
            a("v_mov_b32 v41, s43"); a("v_add_co_u32 v40, vcc, s42, v40"); a("v_addc_co_u32 v41, vcc, 0, v41, vcc")
            a("s_mov_b64 exec, 0xffff"); a("global_load_dword v162, v[40:41], off"); a("s_mov_b64 exec, -1")
        if OPT.get("codepf", 1): only(["s_cmp_eq_u32 s6, 2"], codepf)
        self.stamp(6)
        wqkv([WK, WV], range(0, 2), win=63)
        a("s_mov_b64 s[12:13], s[70:71]"); a("s_mov_b32 s14, 256"); a("s_mov_b32 s15, 0x20000")
        a("s_mov_b64 s[48:49], s[68:69]"); a(f"s_mov_b32 s50, {512*1024}"); a("s_mov_b32 s51, 0x20000")
        a("s_mov_b64 s[52:53], s[76:77]"); a(f"s_mov_b32 s54, {1792*1024}"); a("s_mov_b32 s55, 0x20000")
        a(f"v_lshrrev_b32 v{HT}, 3, v2"); a(f"v_bfe_u32 v{HT+1}, v2, 4, 1"); a(f"v_lshlrev_b32 v{HT+1}, 2, v{HT+1}")
        a(f"v_and_b32 v{HT+2}, 7, v2"); a(f"v_xor_b32 v{HT+2}, v{HT+1}, v{HT+2}"); a(f"v_lshlrev_b32 v{HT+2}, 4, v{HT+2}")
        a(f"v_lshl_add_u32 v{HV_R128}, v{HT}, 10, v{HT+2}")
        a(f"v_mul_u32_u24 v{HT+3}, 3584, v{HT}"); a(f"v_add_u32 v{HT+3}, v{HT+3}, v{HT+2}")
        a("s_and_b32 s85, s83, 1"); a("s_lshr_b32 s86, s83, 1")
        a("s_add_u32 s80, s6, 1"); a("s_cmp_eq_u32 s6, 0"); a("s_cselect_b32 s80, 0, s80"); a("s_cmp_eq_u32 s6, 3"); a("s_cselect_b32 s80, 1, s80")
        a("s_lshl_b32 s86, s86, 1"); a("s_add_u32 s86, s86, s80")
        a("s_cmp_eq_u32 s85, 0"); a("s_cselect_b64 s[56:57], s[72:73], s[74:75]"); a(f"s_mov_b32 s58, {512*3584}"); a("s_mov_b32 s59, 0x20000")
        a("s_cmp_lt_u32 s2, 224"); a("s_cselect_b32 s87, 1, 0"); a("s_cmp_lt_u32 s80, 2"); a("s_cselect_b32 s87, s87, 0")
        def rel_ld():
            a(f"s_mul_i32 s41, s86, {64*3584}"); a("s_lshl_b32 s40, s84, 7"); a("s_add_u32 s41, s41, s40")
            for o in range(8):
                a(f"buffer_load_dwordx4 {vr(128+4*o,4)}, v{HT+3}, {SG}, s41 offen")
                if o < 7: a(f"s_add_u32 s41, s41, {8*3584}")
        wqkv([WK, WV], range(2, 4), win=63)
        if OPT.get("rel0", 1): only(["s_cmp_gt_u32 s87, 0"], rel_ld); cnt["ghost"] = (cnt["issued"], 8)
        def qtouch():
            a(f"v_lshrrev_b32 v{HT}, 3, v2"); a(f"v_mul_u32_u24 v{HT}, 3072, v{HT}"); a(f"v_and_b32 v{HT+1}, 7, v2"); a(f"v_lshl_add_u32 v{HT}, v{HT+1}, 7, v{HT}")
            a("s_mul_i32 s41, s2, 6144"); a("s_mov_b64 exec, 0xffff"); a(f"buffer_load_dword v161, v{HT}, {SQ}, s41 offen"); a("s_mov_b64 exec, -1")
        def coop():
            a(f"v_lshlrev_b32 v{HT}, 7, v2"); a("s_lshl_b32 s41, s2, 13")
            only(["s_cmp_eq_u32 s6, 1"], lambda: a(f"buffer_load_dword v161, v{HT}, {SD}, s41 offen"))
            a("s_sub_u32 s41, 255, s2"); a("s_lshl_b32 s41, s41, 13")
            only(["s_cmp_eq_u32 s6, 2"], lambda: a(f"buffer_load_dword v161, v{HT}, {SO}, s41 offen"))
        a("s_lshl_b32 s32, s19, 7"); a("s_and_b32 s40, s6, 1"); a("s_lshl_b32 s40, s40, 13"); a("s_add_u32 s32, s32, s40")
        a("s_lshr_b32 s40, s6, 1"); a(f"s_mul_i32 s33, s40, {56*16*KB}"); a("s_add_u32 s33, s33, s32"); a("s_lshl_b32 s40, s40, 18"); a("s_add_u32 s32, s32, s40")
        a(f"s_mul_i32 s34, s17, {96*KB}"); a(f"s_add_u32 s34, s34, {WQP}"); a("s_add_u32 s34, s34, s25")
        a(f"s_mul_i32 s29, s17, {7*32*KB}"); a(f"s_add_u32 s29, s29, {WGU}"); a("s_add_u32 s29, s29, s25")
        a(f"v_lshrrev_b32 v{HT}, 5, v2"); a(f"v_lshlrev_b32 v{HV_ROW0}, 9, v{HT}")
        a(f"v_mov_b32 v{HV_OOB}, 0x7ff00000")
        a(f"v_and_b32 v{HT}, 1, v2"); a("s_sub_i32 s40, s16, 1"); a(f"v_sub_u32 v{HT}, s40, v{HT}")
        a(f"v_lshlrev_b32 v{HT+1}, 11, v{HT}"); a("s_lshl_b32 s40, s6, 2"); a(f"v_add_u32 v{HT+1}, s40, v{HT+1}")
        a(f"v_cmp_gt_i32 vcc, 0, v{HT}"); a(f"v_cndmask_b32_e64 v{HV_PK}, v{HT+1}, 0, vcc")
        a("s_lshl_b32 s82, s17, 7"); a(f"s_add_u32 s82, s82, {KVFL}")
        a(f"v_add_u32 v{HV_W}, s25, v{V_LANE16}"); a(f"v_add_u32 v{HV_W+1}, 0x10000, v{HV_W}"); a(f"v_add_u32 v{HV_W+2}, 0x20000, v{HV_W}")
        self.tr_addr16(HV_TQ, HT, HT + 1)
        a("s_lshl_b32 s40, s6, 15"); a(f"v_add_u32 v{HV_TQ}, s40, v{HV_TQ}")
        for r in range(4): a(f"v_mov_b32 v{64+r}, s20")
        a("v_mov_b32 v48, s20"); a("v_mov_b32 v49, s20"); a("v_mov_b32 v50, 0"); a("v_mov_b32 v51, 0"); a(f"v_mov_b32 v52, {L_ONES}")
        for o in (0, 64, 256, 320): a(f"ds_write_b128 v52, v[48:51] offset:{o}")
        def colsum(lo, hi, first):
            def rd(kc):
                w = 72 + 4 * (kc % 8)
                a(f"ds_read_b64_tr_b16 {vr(w,2)}, v{HV_TQ} offset:{kc*KB}"); a(f"ds_read_b64_tr_b16 {vr(w+2,2)}, v{HV_TQ} offset:{kc*KB+256}")
            for kc in range(lo, min(hi, lo + 6)): rd(kc)
            for kc in range(lo, hi):
                a(f"s_waitcnt lgkmcnt({2 * (min(hi, kc + 6) - kc - 1)})")
                a(f"{MF} v[112:127], v[64:67], {vr(72+4*(kc%8),4)}, {'0' if (first and kc == lo) else 'v[112:127]'}")
                if kc + 6 < hi: rd(kc + 6)
        def augfin():
            a("v_cvt_pk_bf16_f32 v104, v112, v112"); a("v_and_b32 v107, 0xffff, v104")
            a("v_lshlrev_b32 v105, 16, v104"); a("v_sub_f32 v105, v112, v105"); a("v_cvt_pk_bf16_f32 v106, v112, v105")
            a("s_lshl_b32 s40, s6, 8"); a(f"s_add_u32 s40, s40, {L_AUG}")
            a("v_and_b32 v108, 31, v2"); a("v_lshlrev_b32 v108, 3, v108"); a("v_add_u32 v108, s40, v108")
            a("ds_write_b64 v108, v[106:107]"); a("s_waitcnt lgkmcnt(0)")
        kvw = ["s_sub_u32 s40, s6, 1", "s_cmp_lt_u32 s40, 2"]
        qw  = ["s_cmp_eq_u32 s6, 0"]
        w3  = ["s_cmp_eq_u32 s6, 3"]
        def arrive():
            a("s_getreg_b32 s40, hwreg(HW_REG_XCC_ID)"); a("s_and_b32 s40, s40, 7"); a("s_or_b32 s40, s40, 0x80"); a("s_mul_i32 s92, s40, 0x01010101")
            a(f"v_mov_b32 v{HT}, s40"); a("s_lshl_b32 s91, s16, 4"); a("s_add_u32 s91, s91, s17")
            a("s_mov_b64 exec, 1"); a(f"buffer_store_byte v{HT}, off, {SDBG}, s91 sc1"); a("s_mov_b64 exec, -1")
        a("s_waitcnt lgkmcnt(0)")
        def arrived(local):
            l = self.lab(); d = self.lab(); l0 = self.lab()
            a(f"v_lshlrev_b32 v{HT+1}, 2, v2"); a("s_mov_b32 s41, 0"); a("s_mov_b32 s93, 0x80808080")
            if local:
                a("s_mov_b64 s[42:43], 0xfff"); a("s_lshl_b32 s40, s16, 2"); a("s_lshl_b64 s[42:43], s[42:43], s40")
                a("s_add_u32 s40, s40, 4"); a("s_sub_u32 s40, 64, s40")
                a("s_mov_b64 s[42:43], -1"); a("s_lshr_b64 s[42:43], s[42:43], s40")
                a("s_lshl_b32 s40, s16, 2"); a("s_sub_i32 s40, s40, 8"); a("s_max_i32 s40, s40, 0")
                a("s_lshr_b64 s[42:43], s[42:43], s40"); a("s_lshl_b64 exec, s[42:43], s40")
            a(f"s_branch {l0}"); a(f"{l}:"); a("s_sleep 8"); a(f"{l0}:")
            a(f"buffer_load_dword v{HT}, v{HT+1}, {SDBG}, 0 offen sc1")
            a("s_add_u32 s41, s41, 1"); a(f"s_cmp_gt_u32 s41, {OPT['spin']}"); a(f"s_cbranch_scc1 {d}")
            a("s_waitcnt vmcnt(0)")
            a(f"v_and_b32 v{HT+2}, s93, v{HT}"); a(f"v_cmp_ne_u32 vcc, s93, v{HT+2}"); a(f"s_cbranch_vccnz {l}")
            a(f"{d}:")
            a("s_mov_b64 exec, -1")
        def nbr():
            arrived(True)
            a(f"v_cmp_ne_u32 vcc, s92, v{HT}"); a("s_lshl_b32 s40, s16, 2"); a("s_lshr_b64 s[42:43], vcc, s40"); a("s_and_b32 s40, s42, 15"); a("s_cselect_b32 s40, 1, 0")
            if OPT["force_slow"]: a("s_mov_b32 s40, 1")
            a(f"v_mov_b32 v{HT}, s40"); a(f"v_mov_b32 v{HT+1}, {L_MODE}"); a(f"ds_write_b32 v{HT+1}, v{HT}"); a("s_waitcnt lgkmcnt(0)")
        def rel_do():
            a("s_lshl_b32 s40, s80, 12"); a(f"s_add_u32 s40, s40, {L_REL}"); a(f"v_add_u32 v45, s40, v{V_LANE16}")
            a(f"v_bfe_u32 v40, v2, 2, 2"); a("v_lshlrev_b32 v41, 7, v40"); a("v_lshrrev_b32 v40, 1, v40"); a("v_lshrrev_b32 v42, 5, v2"); a("v_xor_b32 v40, v40, v42")
            a("v_lshl_add_u32 v41, v40, 6, v41"); a(f"v_and_b32 v40, 63, v{HV_TQ}"); a("v_add_u32 v41, v41, v40"); a("v_add_u32 v41, s40, v41")
            for hf in range(2):
                for o in range(4): a(f"ds_write_b128 v45, {vr(128+16*hf+4*o,4)} offset:{o*KB}")
                for o in range(4):
                    a(f"ds_read_b64_tr_b16 {vr(72+16*hf+4*o,2)}, v41 offset:{o*KB}"); a(f"ds_read_b64_tr_b16 {vr(74+16*hf+4*o,2)}, v41 offset:{o*KB+512}")
                a("s_waitcnt lgkmcnt(0)")
            a("v_lshrrev_b32 v40, 4, v2"); a("v_lshlrev_b32 v40, 15, v40"); a("v_and_b32 v42, 15, v2"); a("v_lshl_add_u32 v40, v42, 4, v40")
            a("s_lshl_b32 s40, s84, 17"); a("s_lshl_b32 s41, s86, 12"); a("s_add_u32 s40, s40, s41"); a("s_lshl_b32 s41, s85, 8"); a("s_add_u32 s40, s40, s41"); a(f"s_add_u32 s40, s40, {WGU}")
            a("v_mov_b32 v43, 0"); a("v_mov_b32 v44, 0")
            a("s_waitcnt lgkmcnt(0)")
            for o in range(8): a(f"buffer_store_dwordx4 {vr(72+4*o,4)}, v40, s[8:11], s40 offen offset:{o*512} sc1")
            for i in range(32): a(f"v_dot2_f32_bf16 v{43+i%2}, v{72+i}, s20, v{43+i%2}")
            a("s_nop 2"); a("v_add_f32 v43, v43, v44")
            a("s_lshl_b32 s40, s86, 1"); a("s_add_u32 s40, s40, s85"); a(f"s_mul_i32 s40, s40, {1792*4}"); a("s_lshl_b32 s41, s84, 8"); a("s_add_u32 s40, s40, s41"); a(f"s_add_u32 s40, s40, {CS}")
            a("v_lshlrev_b32 v42, 2, v2")
            a("buffer_store_dword v43, v42, s[8:11], s40 offen sc1")
        def halo():
            for kv in range(2):
                for d in (1, 2):
                    l1 = self.lab(); l2 = self.lab()
                    a(f"s_cmp_lt_u32 s16, {d}"); a(f"s_cbranch_scc1 {l1}")
                    a(f"s_sub_u32 s95, s27, {4*d}"); a("s_lshl_b32 s95, s95, 10"); a("s_add_u32 s95, s95, s94")
                    for hh in range(2): self.dma("s95", kv*32*64*KB + hh*64*KB, LK + kv*12*KB + hh*HS + (8-4*d)*KB, fl=" sc1")
                    a(f"s_branch {l2}")
                    a(f"{l1}:")
                    for hh in range(2): self.dma("s94", hh*64*KB, LK + kv*12*KB + hh*HS + (8-4*d)*KB, voff=(HV_ROW0, HV_OOB)[kv], fl=" sc1")
                    a(f"{l2}:")
                    op(63); op(63)
                sig(("hk", "hv")[kv])
        def pack():
            a("s_lshl_b32 s40, s16, 1"); a("s_sub_u32 s41, s40, s28"); a("s_and_b32 s41, s41, 31"); a("s_lshl_b32 s41, s41, 10"); a("s_lshl_b32 s42, s6, 15"); a("s_add_u32 s41, s41, s42")
            a(f"v_add_u32 v160, s41, v{V_LANE16}")
            a("ds_read_b128 v[164:167], v160"); a("ds_read_b128 v[168:171], v160 offset:1024")
            a("s_lshl_b32 s41, s6, 15"); a("s_lshl_b32 s40, s40, 10"); a("s_add_u32 s41, s41, s40")
            a("s_add_u32 s41, s41, s34"); a("s_sub_u32 s41, s41, s25")
            a("s_mov_b32 s90, s41")
            a("s_waitcnt lgkmcnt(0)")
        def pack_st():
            a(f"buffer_store_dwordx4 v[164:167], v{V_LANE16}, s[8:11], s90 offen sc1"); a(f"buffer_store_dwordx4 v[168:171], v{V_LANE16}, s[8:11], s90 offen offset:1024 sc1")
        def rel_sig():
            a("s_lshl_b32 s40, s80, 2"); a("s_add_u32 s40, s40, s88")
            a(f"v_mov_b32 v{HT}, 1"); a("s_mov_b64 exec, 1"); a(f"buffer_store_dword v{HT}, off, s[8:11], s40 sc1"); a("s_mov_b64 exec, -1")
        def gu_ready():
            arrived(False)
            a("s_lshr_b32 s40, s17, 2"); a("s_lshl_b32 s40, s40, 9"); a(f"s_add_u32 s42, s40, {RF}"); a("s_mov_b32 s43, 1")
            a(f"v_lshlrev_b32 v{HT}, 2, v2"); self.poll(HT, "s42", "s43", sleep=8)
            a(f"v_min_u32 v{HT}, 47, v2"); a(f"v_lshlrev_b32 v{HT}, 2, v{HT}"); a("s_add_u32 s42, s42, 256"); self.poll(HT, "s42", "s43", sleep=8)
            a("s_lshl_b32 s40, s6, 2"); a("s_add_u32 s40, s40, s89")
            a(f"v_mov_b32 v{HT}, 1"); a("s_mov_b64 exec, 1"); a(f"buffer_store_dword v{HT}, off, s[8:11], s40 sc1"); a("s_mov_b64 exec, -1")
        def gu_aug():
            a("v_lshrrev_b32 v240, 5, v2"); a(f"v_mul_u32_u24 v241, {1792*4}, v240"); a("v_and_b32 v242, 31, v2"); a("v_min_u32 v242, 27, v242"); a("v_lshl_add_u32 v241, v242, 4, v241")
            a(f"s_mul_i32 s40, s17, {112*4}"); a(f"s_add_u32 s40, s40, {CS}")
            for p in range(8):
                a(f"buffer_load_dwordx4 {vr(208+4*p,4)}, v241, s[8:11], s40 offen sc1")
                if p < 7: a(f"s_add_u32 s40, s40, {2*1792*4}")
            a("v_lshrrev_b32 v243, 2, v242"); a("v_lshlrev_b32 v243, 8, v243"); a("v_lshl_add_u32 v243, v240, 7, v243"); a("v_and_b32 v244, 3, v242"); a("v_lshl_add_u32 v243, v244, 5, v243")
            a(f"v_add_u32 v243, {L_AUG + 768}, v243")
            a("s_waitcnt vmcnt(0)")
            for p in range(1, 8):
                for c in range(4): a(f"v_add_f32 v{208+c}, v{208+c}, v{208+4*p+c}")
            for c in range(4):
                a(f"v_cvt_pk_bf16_f32 v245, v{208+c}, v{208+c}"); a(f"v_and_b32 v{217+2*c}, 0xffff, v245")
                a("v_lshlrev_b32 v245, 16, v245"); a(f"v_sub_f32 v245, v{208+c}, v245"); a(f"v_cvt_pk_bf16_f32 v{216+2*c}, v{208+c}, v245")
            a("ds_write_b128 v243, v[216:219]"); a("ds_write_b128 v243, v[220:223] offset:16"); a("s_waitcnt lgkmcnt(0)")
        def pack_ready():
            a("s_lshl_b32 s42, s17, 8"); a(f"s_add_u32 s42, s42, {PFL}"); a("s_mov_b32 s43, 1")
            a(f"v_lshlrev_b32 v{HT}, 2, v2"); self.poll(HT, "s42", "s43", sleep=8)
        a(f"v_and_b32 v{HF_}, 3, v2"); a(f"v_lshlrev_b32 v{HF_}, 2, v{HF_}"); a(f"v_add_u32 v{HF_}, {L_HL}, v{HF_}")
        def ext():
            pass
        for it in range(2):
            st["it"] = it
            if it == 0:
                self.stamp(7)
                retire(4)
                self.stamp(8)
                only(w3, arrive)
                only(["s_cmp_eq_u32 s6, 1"], qtouch)
                wqkv([WK, WV], range(4, 8), win=8)
                only(kvw, lambda: (need("kv1", "H"), colsum(0, 16, True)))
                flush()
                self.stamp(9)
                only(kvw, lambda: (need("kv3", "H"), colsum(16, 32, False), augfin(), pack()))
                hpub("augkv")
                if OPT.get("rel0", 1): only(["s_cmp_gt_u32 s87, 0"], rel_do)
                self.stamp(10)
                need("x")
                wqkv([WQ], range(0, 8), win=63)
                only(w3, nbr)
                drain(); hpub("wq")
                need("wq", "H")
                if OPT.get("rel0", 1): only(["s_cmp_gt_u32 s87, 0"], rel_sig)
                only(qw, lambda: (colsum(0, 32, True), augfin(), pack()))
                hpub("augq")
                self.stamp(12)
            else:
                hpub("wq"); need("x"); hpub("augq")
            a(f"s_mov_b32 s42, {it + 1}")
            a("s_lshl_b32 s94, s17, 17"); a(f"s_add_u32 s94, s94, {KV + it*ITS}")
            self.stamp(14)
            need("kvf")
            self.stamp(15)
            a("s_mov_b64 exec, 3")
            self.poll(HV_PK, "s82", "s42")
            a("s_mov_b64 exec, -1")
            cnt["done"] = cnt["issued"]; retire(cnt["done"])
            self.stamp(2)
            halo()
            flush()
            if it == 0: coop(); only(["s_cmp_lt_u32 s6, 3"], pack_st)
            self.stamp(3)
            for g in range(16):
                self.dma("s32", (2*(g%8) + g//8)*16*KB, RK + g*4*KB, voff=HV_R128, srd=SO); op()
            sig("wo")
            if it == 0:
                stash(OPT["st_a"]); flush(); gu_ready(); cnt["done"] = cnt["issued"]
                only(w3, gu_aug)
            self.stamp(5)
            need("q"); tile(0)
            if it == 0: need("wo", "H")
            tile(1, range(0, 3))
            need("h0"); tile(1, range(3, 8))
            if it == 0: stash(OPT.get("st_b", 8)); only(w3, pack_ready)
            self.stamp(4)
            if OPT.get("t2e", 1):
                need("wo1"); tile(2); sig("t2_3")
                for p in range(3): self.seen.add(("H", f"t2_{p}"))
                need("xch")
            else:
                need("wo"); tile(2, range(0, 2)); sig("t2_0")
                need("xch")
                for p in range(1, 4): tile(2, range(2*p, 2*p + 2)); sig(f"t2_{p}")
            if OPT.get("t3g"): need(f"g{OPT['t3g']}")
            tile(3); sig("t3")
            wdw(range(0, 7))
            for p, nm in enumerate(("g8", "g16", "g24", "g32")):
                need(nm); tile(4, range(2*p, 2*p + 2))
            sig("t4")
            tile(5); sig("t5"); tile(6); sig("t6")
            if it == 0: stash(9)
            need("t3"); wdw(range(7, 15))
            if it == 0: stash(8)
            need("t4"); wdw(range(15, 23))
            flush(); hpub("w0")
            if it == 0: stash(56)
            need("t5"); wdw(range(23, 31)); hpub("w23")
            need("t6"); wdw(range(31, 39)); hpub("w31")
            need("d7"); wdw(range(39, 46)); hpub("w39")
            if it == 0:
                need("d15"); wqp([WV], range(8))
                need("d23"); wqp([WK], range(4))
            need("d31"); wdw(range(46, 54)); hpub("w46")
            if it == 0:
                wqp([WK], range(4, 8))
                need("d39"); wqp([WQ], range(4))
            need("d45"); wdw(range(54, 56)); hpub("w54")
            if it == 0: wqp([WQ], range(4, 8))
            if it == 0:
                drain(); hpub("nkv")
                a("s_mov_b32 s23, 16")
        self.finish()

    def count_poll(self, soff, T):
        a = self.a; l = self.lab(); d = self.lab()
        a("s_mov_b32 s41, 0")
        l0 = self.lab(); a(f"s_branch {l0}"); a(f"{l}:"); a("s_sleep 8"); a(f"{l0}:")
        a(f"buffer_load_dwordx2 {vr(T,2)}, off, s[12:15], {soff} sc1"); a("s_waitcnt vmcnt(0)")
        a(f"v_readfirstlane_b32 s42, v{T}"); a(f"v_readfirstlane_b32 s43, v{T+1}")
        a("s_add_u32 s41, s41, 1"); a(f"s_cmp_gt_u32 s41, {OPT['spin']}"); a(f"s_cbranch_scc1 {d}")
        a("s_add_u32 s40, s42, s43"); a("s_mul_i32 s40, s40, 0x01010101"); a("s_lshr_b32 s40, s40, 24")
        a("s_cmp_lg_u32 s40, 16"); a(f"s_cbranch_scc1 {l}")
        a(f"{d}:")

    def build(self):
        a = self.a
        self.prologue()
        a("s_cmp_ge_u32 s3, 4"); a("s_cbranch_scc1 L_helper")
        self.compute()
        a("L_helper:")
        self.helper()
        assert self.used <= self.seen, self.used - self.seen
        a("L_end:"); a("s_endpgm")
        for x in self.ool: a.raw(x)
        a.raw("L_code_end:"); a.raw("    s_endpgm")
        return a.text()

def build():
    body = Main().build()
    return f"""; generated by dev/gen7.py
; @launch grid=(256,1,1) block=(512,1,1) lds={160*KB}
.amdgcn_target "amdgcn-amd-amdhsa--gfx950"
.text
{body}
.section .rodata,"a"
.p2align 6
.amdhsa_kernel {NAME}
  .amdhsa_next_free_vgpr 256
  .amdhsa_next_free_sgpr 102
  .amdhsa_accum_offset 256
  .amdhsa_group_segment_fixed_size 0
  .amdhsa_kernarg_size 80
  .amdhsa_user_sgpr_count 2
  .amdhsa_user_sgpr_kernarg_segment_ptr 1
  .amdhsa_system_sgpr_workgroup_id_x 1
.end_amdhsa_kernel
"""

if __name__ == "__main__":
    for x in sys.argv[2:]:
        if "=" in x: kk, v = x.split("="); OPT[kk] = int(v)
        else: OPT[x] = True
    open(sys.argv[1], "w").write(build())
```

```python
import sys, struct
from asmlib import *

NAME = "interleave_layers__sliding_block__glu_gated_glu__prompt_kernel"
KB = 1024
WQP  = 0x0000000
WGU  = 0x0300000
CS   = 0x0900000
FL   = 0x0920000
KVFL = 0x0924000
RF   = 0x092C000
PFL  = RF + 2048
XA   = 0x1000000; XB = 0x1200000
STA  = 0x1400000; STB = 0x1440000
OF   = 0x1500000; HF = 0x1700000
KV   = 0x1E00000
ITS  = 0x1400000
TS   = 0x6000000
WS_BYTES = 0x10000000
LOG2E = 1.4426950408889634
def f32(x): return "0x%08x" % struct.unpack("<I", struct.pack("<f", x))[0]
MF = "v_mfma_f32_32x32x16_bf16"
OPT = dict(stamp=False, force_slow=False, spin=400000, pre=10, cprio=2, fine=0, pf=0, st_a=14, kvflag=24, rot=1)

P1, P2, P3, P4, PE, MISC = 0, 32*KB, 64*KB, 96*KB, 128*KB, 156*KB
LK = 108*KB; LV = LK + 12*KB; HS = 24*KB
L_AUG = MISC; L_ONES = MISC + 2560; L_HL = MISC + 2944; L_CP = L_HL + 16; L_MODE = L_HL + 32; L_DUMMY = MISC + 3072
DG = [0, 23, 31, 39, 46, 54]
DP = [7, 15, 23, 31, 39, 45]
CSEQ = ["x", "kv", "kvf", "q", "h0", "att", "wo1", "wo", "xch", "g8", "g16", "g24", "g32", "t3", "t4", "t5", "t6"] + [f"d{s}" for s in DP] + ["dx"]
HSEQ = ["kv0", "kv1", "kv2", "kv3", "augkv", "wq", "augq", "hk", "hv", "wo", "t2_0", "t2_1", "t2_2", "t2_3", "t3", "t4", "t5", "t6"] + [f"w{s}" for s in DG] + ["nkv"]
CV = {n: i + 1 for i, n in enumerate(CSEQ)}; HV = {n: i + 1 for i, n in enumerate(HSEQ)}
assert max(len(CSEQ), len(HSEQ)) < 64
XCH_WO = PE; XCH_DN = PE
L_X0 = P4
L_REL = PE
def wd_slot(s):
    for lo, hi, reg in ((0, 7, PE), (7, 15, P3), (15, 23, P2), (23, 31, P4), (31, 39, P1), (39, 46, PE), (46, 54, P4), (54, 56, PE + 16*KB)):
        if lo <= s < hi: return reg + (s - lo)*4*KB
GU_REG = [P1, P4, P2, P3, P2, P4, P1]
RQ, RK, RV = P1, P2, P3
F_O1, F_O2, F_X1, F_H1, F_H2, F_X2 = 1, 2, 3, 7, 9, 10
STASH = 32

V_LANE16 = 3; V_F0 = 4
V_TQ = 6
V_XOFF = 8
V_RSTD = 10; V_STD = 11; V_C1 = 12; V_TMP = 13; V_TS = 14; V_TS2 = 15
V_XAUG = 16
V_PX = 20; V_PH = 21; V_AUGA = 22; V_OUT = 23
V_RES = 24
V_PUBA = 0; V_FA = 35; V_FLG = 1; V_BASE = 9
V_FW = 32
V_EP = 36
ACC = [40, 56, 72, 88]
WR = 96; NW = 8
XR = 128
T0 = 104

class VM:
    def __init__(self, a): self.a = a; self.q = []
    def issue(self, tag): self.q.append(tag)
    def wait(self, tag):
        idx = max((i for i, t in enumerate(self.q) if t == tag), default=-1)
        if idx < 0: return
        n = len(self.q) - 1 - idx; assert n <= 63
        self.a(f"s_waitcnt vmcnt({n})"); del self.q[:idx + 1]
    def drain(self):
        self.a("s_waitcnt vmcnt(0)"); self.q = []

def stats_calc_list(d0, tmp):
    L = [f"v_mov_b32 v{tmp}, 0", f"v_mov_b32 v{tmp+1}, 0"]
    for i in range(8):
        L.append(f"v_dot2_f32_bf16 v{tmp}, v{d0+i}, s20, v{tmp}")
        L.append(f"v_dot2_f32_bf16 v{tmp+1}, v{d0+i}, v{d0+i}, v{tmp+1}")
    L += ["s_nop 2", f"v_permlane32_swap_b32 v{tmp}, v{tmp+1}", "s_nop 1", f"v_add_f32 v{tmp}, v{tmp}, v{tmp+1}"]
    return L

class Main:
    DBARS = list(range(0, 56, 7))
    def __init__(self):
        self.a = Asm(); self.nl = 0
        self.seen = set(); self.used = set()
        self.role = None; self.pend_stamp = None; self.ool = []; self.nw = NW; self.wr = WR
    def lab(self): self.nl += 1; return f"L{self.nl}"
    def emit(self, x):
        if callable(x): x()
        else: self.a(x)
    def pub(self, name):
        self.a(f"v_add_u32 v{V_TMP}, {CV[name]}, v{V_BASE}"); self.a(f"ds_write_b32 v{V_PUBA}, v{V_TMP}")
        self.seen.add(("C", name))
    def gate_rd(self, src): self.a(f"ds_read_b32 v{V_FLG}, v{V_FA} offset:{0 if src == 'H' else 16}")
    def gate_cmp(self, name, src="H", absval=None):
        a = self.a
        n = (HV if src == "H" else CV)[name]
        if absval is not None: a(f"s_movk_i32 s39, {absval}")
        else: a(f"s_add_u32 s39, s7, {n}")
        a(f"v_cmp_gt_u32 s[30:31], s39, v{V_FLG}")
        self.used.add((src, name))
    def gate_br(self, src="H", redo=[]):
        a = self.a; l1 = self.lab(); l2 = self.lab()
        a("s_cmp_lg_u64 s[30:31], 0"); a(f"s_cbranch_scc1 {l1}"); a(f"{l2}:")
        a.pending.pop(l1, None)
        self.ool += [f"{l1}:", "    s_add_u32 s38, s38, 1", f"    s_cmp_gt_u32 s38, {OPT['spin']*16}", f"    s_cbranch_scc1 {l2}",
                     f"    ds_read_b32 v{V_FLG}, v{V_FA} offset:{0 if src == 'H' else 16}"] + ["    " + x for x in redo] + ["    s_waitcnt lgkmcnt(0)",
                     f"    v_cmp_gt_u32 vcc, s39, v{V_FLG}", f"    s_cbranch_vccnz {l1}", f"    s_branch {l2}"]
    def gate_chk(self, name, src="H", absval=None):
        self.gate_cmp(name, src, absval); self.gate_br(src)
    def gate(self, name, src="H", absval=None):
        self.gate_rd(src); self.a("s_waitcnt lgkmcnt(0)"); self.gate_chk(name, src, absval)
    def stamp(self, i):
        if not OPT["stamp"]: return
        a = self.a
        a("s_memrealtime s[96:97]"); a("s_memtime s[98:99]"); a("s_waitcnt lgkmcnt(0)")
        if OPT.get("cnt"): a("s_lshl_b32 s98, s38, 12"); a("s_add_u32 s98, s98, s5")
        a(f"s_add_u32 s97, s23, {i}"); a(f"s_add_u32 m0, s97, s23"); a("s_nop 3")
        a(f"v_writelane_b32 v{V_TS}, s96, m0"); a(f"v_writelane_b32 v{V_TS2}, s98, m0")
    def store(self, instr, tag="st"):
        l1 = self.lab(); l2 = self.lab(); a = self.a
        a("s_cmp_lg_u32 s21, 0"); a(f"s_cbranch_scc1 {l1}"); a(instr); a(f"{l2}:")
        a.pending.pop(l1, None)
        self.ool += [f"{l1}:", "    " + instr + " sc1", f"    s_branch {l2}"]
        self.vm.issue(tag)
    def flag(self, val, tag="st"):
        a = self.a
        a(f"s_add_u32 s40, s23, {val}"); a(f"v_mov_b32 v{V_TMP}, s40"); self.vm.wait(tag); a("s_mov_b64 exec, 1")
        self.store(f"buffer_store_dword v{V_TMP}, off, s[8:11], s24", "fl_st"); a("s_mov_b64 exec, -1")
    def peek(self, voff):
        self.a(f"buffer_load_dword v{V_OUT}, v{voff}, s[8:11], s26 offen sc1"); self.vm.issue("pk")
    def check(self, voff, val):
        a = self.a; d = self.lab()
        a(f"s_add_u32 s61, s23, {val}")
        self.vm.wait("pk")
        a(f"v_cmp_gt_u32 vcc, s61, v{V_OUT}"); a(f"s_cbranch_vccz {d}")
        self.poll(voff, "s26", "s61")
        a(f"{d}:")
    def acquire(self):
        a = self.a; l = self.lab()
        a("s_cmp_eq_u32 s21, 0"); a(f"s_cbranch_scc1 {l}"); a("buffer_inv sc1"); a("s_waitcnt vmcnt(0)"); a(f"{l}:")
    def poll(self, voff, sbase, sval, srd="s[8:11]", sleep=0):
        a = self.a; l = self.lab(); d = self.lab()
        a("s_mov_b32 s41, 0")
        if sleep:
            l0 = self.lab(); a(f"s_branch {l0}"); a(f"{l}:"); a(f"s_sleep {sleep}"); a(f"{l0}:")
        else: a(f"{l}:")
        a(f"buffer_load_dword v{V_TMP}, v{voff}, {srd}, {sbase} offen sc1")
        if OPT.get("cnt"): a("s_add_u32 s5, s5, 1")
        a("s_add_u32 s41, s41, 1"); a(f"s_cmp_gt_u32 s41, {OPT['spin']}"); a(f"s_cbranch_scc1 {d}")
        a("s_waitcnt vmcnt(0)")
        a(f"v_cmp_gt_u32 vcc, {sval}, v{V_TMP}")
        a(f"s_cbranch_vccnz {l}")
        a(f"{d}:")
    def dma(self, sbase, const, lds, voff=V_LANE16, fl="", srd="s[8:11]", sl="s25"):
        a = self.a
        a(f"s_add_u32 s40, {sbase}, {const}")
        a(f"s_add_u32 m0, {sl}, {lds}")
        a(f"buffer_load_dwordx4 v{voff}, {srd}, s40 offen{fl} lds")
    def touch_txt(self, items):
        l = self.lab()
        L = ["s_cmp_lg_u32 s21, 0", f"s_cbranch_scc1 {l}", f"v_lshlrev_b32 v{V_TMP}, 7, v2"]
        for sal, n in items:
            L += sal
            m = (1 << n) - 1
            L += [f"s_mov_b32 exec_lo, {m & 0xffffffff:#x}", f"s_mov_b32 exec_hi, {m >> 32:#x}", f"buffer_load_dword v{V_OUT}, v{V_TMP}, s[8:11], s43 offen sc1"]
        L += ["s_mov_b64 exec, -1", f"{l}:"]
        return "\n".join(L)
    def stream(self, steps, look, fill=None):
        a = self.a
        reads = []; need = []
        for s in steps:
            reads += s["reads"]; need.append(len(reads) - 1)
        per = 2 if reads[0]["op"].endswith("tr_b16") else 1
        pre_rd = {}; pre_cmp = {}
        for i, r in enumerate(reads):
            if r.get("gate"):
                pre_rd[max(0, i - look - per)] = i; pre_cmp[max(0, i - per)] = i
        ng = sum(1 for r in reads if r.get("gate"))
        assert len(pre_rd) == ng and len(pre_cmp) == ng
        gi = sorted(pre_rd.values())
        assert all(b - a_ > look + per for a_, b in zip(gi, gi[1:])), gi
        nr = 0; q = []; done = [0]
        def wait(tag):
            idx = q.index(tag)
            if idx < done[0]: return
            n = len(q) - 1 - idx; assert n <= 15, n
            a(f"s_waitcnt lgkmcnt({n})"); done[0] = idx + 1
        def issue():
            nonlocal nr
            r = reads[nr]
            if nr in pre_rd: self.gate_rd(reads[pre_rd[nr]].get("gsrc", "H")); q.append(("g", pre_rd[nr]))
            if nr in pre_cmp:
                g = reads[pre_cmp[nr]]
                wait(("g", pre_cmp[nr])); self.gate_cmp(g["gate"], g.get("gsrc", "H"), g.get("absval"))
            if r.get("gate"): self.gate_br(r.get("gsrc", "H"))
            n = 4 if r["op"] == "ds_read_b128" else 2
            fm = r["fam"]; off = r["off"]
            reg = fm[off >> 16] if isinstance(fm, list) else fm
            a(f"{r['op']} {vr(r['d'], n)}, v{reg} offset:{off & 0xffff}"); q.append(nr)
            if r.get("pub"): self.pub(r["pub"]); q.append(("p", nr))
            nr += 1
        for i, s in enumerate(steps):
            while nr < len(reads) and nr <= need[i] + (look if i == 0 else 0): issue()
            for x in s.get("pre", []): self.emit(x)
            wait(need[i + 1] if (s.get("pair") and i + 1 < len(steps)) else need[i])
            a(s["mf"])
            nxt = need[i + 1] if i + 1 < len(steps) else need[i]
            while nr < len(reads) and nr <= nxt + look: issue()
            for x in s.get("post", []): self.emit(x)
            if fill:
                for f in fill(i): self.emit(f)
            if self.pend_stamp: self.stamp(self.pend_stamp); self.pend_stamp = None
    def rd128(self, w, off, gate=None, pub=None): return [dict(op="ds_read_b128", d=w, fam=[V_F0, V_F0 + 1], off=off, gate=gate, pub=pub)]
    def rdtr(self, w, fam, off, d2, gate=None, pub=None, absval=None):
        return [dict(op="ds_read_b64_tr_b16", d=w, fam=fam, off=off, gate=gate, absval=absval), dict(op="ds_read_b64_tr_b16", d=w + 2, fam=fam, off=off + d2, pub=pub)]
    def tr_addr16(self, dst, t0, t1):
        a = self.a
        a(f"v_lshrrev_b32 v{t0}, 5, v2"); a(f"v_lshlrev_b32 v{dst}, 9, v{t0}")
        a(f"v_bfe_u32 v{t0}, v2, 2, 2"); a(f"v_lshl_add_u32 v{dst}, v{t0}, 6, v{dst}")
        a(f"v_bfe_u32 v{t0}, v2, 4, 1"); a(f"v_lshl_add_u32 v{dst}, v{t0}, 5, v{dst}")
        a(f"v_and_b32 v{t0}, 1, v2"); a(f"v_lshl_add_u32 v{dst}, v{t0}, 4, v{dst}")
        a(f"v_bfe_u32 v{t0}, v2, 1, 1"); a(f"v_lshl_add_u32 v{dst}, v{t0}, 3, v{dst}")

    def prologue(self):
        a = self.a
        a.raw(f".globl {NAME}"); a.raw(".p2align 8"); a.raw(f".type {NAME},@function"); a.raw(f"{NAME}:")
        a(f"s_cmp_ge_u32 s2, {0 if OPT.get('empty') else 256}"); a("s_cbranch_scc1 L_end")
        if OPT["stamp"]: a("s_memrealtime s[100:101]")
        a("s_load_dwordx4 s[64:67], s[0:1], 0")
        a("s_load_dwordx2 s[8:9], s[0:1], 72")
        a("s_load_dwordx2 s[68:69], s[0:1], 16")
        a("s_load_dwordx8 s[72:79], s[0:1], 32")
        a("s_load_dwordx2 s[70:71], s[0:1], 64")
        a(f"s_mov_b32 s10, {WS_BYTES}"); a("s_mov_b32 s11, 0x20000")
        a("v_lshrrev_b32 v1, 6, v0"); a("v_and_b32 v2, 63, v0")
        a("v_readfirstlane_b32 s3, v1")
        a(f"v_lshlrev_b32 v{V_LANE16}, 4, v2")
        a("s_and_b32 s4, s2, 7"); a("s_lshr_b32 s5, s2, 3"); a("s_and_b32 s6, s3, 3")
        a("s_lshl_b32 s16, s4, 1"); a("s_lshr_b32 s40, s5, 4"); a("s_add_u32 s16, s16, s40")
        a("s_and_b32 s17, s5, 15")
        a("s_lshr_b32 s18, s17, 3"); a("s_and_b32 s19, s17, 7")
        a("s_mov_b32 s20, 0x3f803f80"); a("s_mov_b32 s21, 0"); a("s_mov_b32 s22, 0"); a("s_mov_b32 s23, 0")
        a("s_lshl_b32 s26, s16, 9"); a(f"s_add_u32 s26, s26, {FL}")
        a("s_lshl_b32 s24, s17, 5"); a("s_lshl_b32 s40, s3, 2"); a("s_add_u32 s24, s24, s40"); a("s_add_u32 s24, s24, s26")
        a("s_lshl_b32 s25, s6, 10")
        a("s_lshl_b32 s27, s16, 2"); a("s_add_u32 s27, s27, s6")
        if OPT["rot"]: a("s_add_u32 s28, s16, s17"); a("s_lshl_b32 s28, s28, 2"); a("s_and_b32 s28, s28, 31")
        else: a("s_mov_b32 s28, 0")
        a("s_mov_b32 s35, 0"); a("s_mov_b32 s36, 0")
        a(f"v_mov_b32 v{V_TS}, 0"); a(f"v_mov_b32 v{V_TS2}, 0")
        a("s_xor_b32 s40, s3, 4"); a("s_lshl_b32 s40, s40, 2"); a(f"s_add_u32 s40, s40, {L_HL}")
        a(f"v_lshlrev_b32 v{V_PUBA}, 2, v2"); a(f"v_add_u32 v{V_PUBA}, {L_DUMMY}, v{V_PUBA}"); a(f"v_writelane_b32 v{V_PUBA}, s40, 0")
        a(f"v_mov_b32 v{V_BASE}, 0"); a("s_mov_b32 s7, 0"); a("s_mov_b32 s38, 0")
        a(f"ds_write_b32 v{V_PUBA}, v{V_BASE}")

    def attention(self):
        a = self.a
        KF = XR + 8; S = [XR + 44, XR + 60, XR + 76]; M = XR + 92; NM = XR + 108; MX = [XR + 124, XR + 125]; T = XR + 126
        O = ACC[2]; VA = ACC[1]; KA = VA + 9
        VF = [WR, WR + 8]; P = [WR + 16, WR + 24]; BM = ACC[0]; PM = ACC[0] + 8
        a("v_and_b32 v104, 31, v2"); a("v_lshrrev_b32 v105, 5, v2")
        a(f"v_and_b32 v{KA}, 0x13, v104"); a("v_bfe_u32 v106, v104, 2, 1"); a(f"v_lshl_add_u32 v{KA}, v106, 3, v{KA}")
        a("v_bfe_u32 v106, v104, 3, 1"); a(f"v_lshl_add_u32 v{KA}, v106, 2, v{KA}")
        a(f"v_lshlrev_b32 v{KA}, 4, v{KA}"); a(f"v_lshl_add_u32 v{KA}, v105, 9, v{KA}")
        a(f"s_add_u32 s41, s25, {LK}"); a(f"v_add_u32 v{KA}, s41, v{KA}")
        a("v_bfe_u32 v106, v2, 2, 2"); a("v_lshl_add_u32 v106, v105, 3, v106"); a("v_lshlrev_b32 v106, 4, v106")
        a("v_and_b32 v107, 1, v2"); a("v_lshl_add_u32 v106, v107, 9, v106")
        a("v_bfe_u32 v107, v2, 1, 1"); a("v_lshl_add_u32 v106, v107, 3, v106")
        a(f"s_add_u32 s41, s25, {LV}"); a("v_add_u32 v106, s41, v106")
        a("v_bfe_u32 v107, v2, 4, 1"); a("v_cmp_eq_u32 vcc, 1, v107")
        a(f"v_mov_b32 v109, {HS}"); a(f"v_cndmask_b32_e64 v{KA+1}, v109, 0, vcc")
        a("s_sub_i32 s42, 8, s27")
        for i in range(9):
            a(f"s_cmp_gt_i32 s42, {i}"); a("s_cselect_b32 s41, 8, 0"); a(f"s_add_u32 s41, s41, {L_ONES}")
            a(f"v_mov_b32 v107, s41"); a(f"v_add_u32 v108, {i*KB}, v106")
            a(f"v_cndmask_b32 v{VA+i}, v108, v107, vcc")
        a("v_mov_b32 v107, 0xffff"); a("v_mov_b32 v108, 0xffff0000")
        for p in range(8):
            a(f"v_cndmask_b32_e64 v109, 0, v107, s[{64+4*p}:{65+4*p}]"); a(f"v_cndmask_b32_e64 v110, 0, v108, s[{66+4*p}:{67+4*p}]")
            a(f"v_or_b32 v{BM+p}, v109, v110")
        return dict(KF=KF, S=S, M=M, NM=NM, O=O, VA=VA, VF=VF, P=P, BM=BM, PM=PM, MX=MX, T=T, KA=KA)

    def attention_run(self, r, after_k, early_a):
        a = self.a
        KF, S0, M, NM, O, VA, VF, P, BM, PM, MX, T, KA = (r[x] for x in "KF S M NM O VA VF P BM PM MX T KA".split())
        def kread(hh, i): a(f"ds_read_b128 {vr(KF+4*i,4)}, v{KA} offset:{hh*HS + i*KB}")
        def vread(hh, i, vf):
            for t in range(2):
                for u in range(2): a(f"ds_read_b64_tr_b16 {vr(vf+4*t+2*u,2)}, v{VA+i} offset:{t*256 + u*64}")
            if hh == 0: a(f"v_add_u32 v{VA+i}, v{KA+1}, v{VA+i}")
        def qk(hh, dst, i, c): a(f"{MF} {vr(dst,16)}, {vr(KF+4*i,4)}, {vr(XR+4*hh,4)}, {c}")
        def pv(vf, p, t, c): a(f"{MF} {vr(O,16)}, {vr(vf+4*t,4)}, {vr(p+4*t,4)}, {c}")
        def mx(b, first=False):
            lo = 0
            if first:
                a(f"v_max3_f32 v{MX[0]}, v{b}, v{b+1}, v{b+2}"); a(f"v_max3_f32 v{MX[1]}, v{b+3}, v{b+4}, v{b+5}"); lo = 6
            for n, q in enumerate(range(lo, 16, 2)): a(f"v_max3_f32 v{MX[n%2]}, v{MX[n%2]}, v{b+q}, v{b+q+1}")
        def ex(b, lo, hi):
            for q in range(lo, hi): a(f"v_exp_f32 v{b+q}, v{b+q}")
        def cv(p, b, lo, hi):
            for q in range(lo, hi): a(f"v_cvt_pk_bf16_f32 v{p+q}, v{b+2*q}, v{b+2*q+1}")
        def fin(hh):
            a(f"v_rcp_f32 v{T}, v{O+8}")
            for q in range(8): a(f"v_mul_f32 v{O+q}, v{T}, v{O+q}")
            for q in range(4): a(f"v_cvt_pk_bf16_f32 v{V_EP+q}, v{O+2*q}, v{O+2*q+1}")
            self.store(f"buffer_store_dwordx4 {vr(V_EP,4)}, v{V_LANE16}, s[8:11], s37 offen offset:{hh*KB}")
        for i in (8, 0, 1, 2, 3, 4, 5, 6, 7): kread(0, i)
        a("s_waitcnt lgkmcnt(8)"); qk(0, M, 8, "0")
        a("s_waitcnt lgkmcnt(7)"); qk(0, S0[0], 0, "0")
        a("s_waitcnt lgkmcnt(6)"); qk(0, S0[1], 1, "0")
        for hh in range(2):
            S = S0 if hh == 0 else [S0[2], S0[0], S0[1]]
            a("s_waitcnt lgkmcnt(0)")
            qk(hh, S[2], 2, "0")
            for q in range(16): a(f"v_cndmask_b32_e64 v{M+q}, v{S[0]+q}, v{M+q}, s[{64+2*q}:{65+2*q}]")
            qk(hh, S[0], 3, "0")
            mx(M, True)
            if hh == 1: self.pub("h0"); fin(0)
            for i in range(1, 8):
                b = S[i % 3]
                mx(b)
                if i + 3 <= 7: qk(hh, b, i + 3, "0")
            a(f"v_max_f32 v{MX[0]}, v{MX[0]}, v{MX[1]}"); a(f"v_mov_b32 v{MX[1]}, v{MX[0]}")
            if OPT["fine"] > 2: self.stamp(16 + 5*hh)
            if hh == 0: after_k()
            if OPT["fine"] > 2: self.stamp(17 + 5*hh)
            vread(hh, 8, VF[0])
            a(f"v_permlane32_swap_b32 v{MX[0]}, v{MX[1]}")
            vread(hh, 0, VF[1])
            a(f"v_max_f32 v{MX[0]}, v{MX[0]}, v{MX[1]}")
            for q in range(16): a(f"v_sub_f32 v{NM+q}, 0, v{MX[0]}")
            qk(hh, S[1], 1, vr(NM, 16))
            for q in range(16): a(f"v_sub_f32 v{M+q}, v{M+q}, v{MX[0]}")
            qk(hh, S[2], 2, vr(NM, 16))
            ex(M, 0, 16)
            if OPT["fine"] > 2: self.stamp(18 + 5*hh)
            if hh == 1: self.flag(F_O1)
            if OPT["fine"] > 2: self.stamp(19 + 5*hh)
            if hh == 0: kread(1, 8); kread(1, 0); kread(1, 1); kread(1, 2)
            cv(PM, M, 0, 8)
            for q in range(8): a(f"v_and_b32 v{P[0]+q}, v{BM+q}, v{PM+q}")
            a("s_waitcnt lgkmcnt(4)" if hh == 0 else "s_waitcnt lgkmcnt(0)")
            pv(VF[0], P[0], 0, "0")
            for q in range(8): a(f"v_xor_b32 v{P[1]+q}, v{P[0]+q}, v{PM+q}")
            pv(VF[0], P[0], 1, vr(O, 16))
            pend = [(VF[1], P[1], 0), (VF[1], P[1], 1)]
            for i in range(1, 8):
                b = S[i % 3]; vf = VF[(i + 1) % 2]; p = P[(i + 1) % 2]
                ex(b, 0, 4)
                vread(hh, i, vf)
                if hh == 1 and i == 7: self.pub("att")
                x = pend.pop(0); pv(*x, vr(O, 16))
                ex(b, 4, 8)
                if pend: x = pend.pop(0); pv(*x, vr(O, 16))
                ex(b, 8, 12)
                if i + 2 <= 7:
                    qk(hh, S[(i + 2) % 3], i + 2, vr(NM, 16))
                    if hh == 0: kread(1, i + 2)
                elif hh == 0:
                    if i == 6: qk(1, M, 8, "0")
                    else: qk(1, S0[0], 1, "0")
                if hh == 1 and i == 5: self.peek(V_PH)
                if OPT["fine"] > 2 and i == 7: self.stamp(20 + 5*hh)
                if hh == 1 and i == 7: early_a()
                if OPT["fine"] > 2 and i == 7 and hh == 1: self.stamp(26)
                ex(b, 12, 16)
                if hh == 0 and i == 6: qk(1, S0[2], 0, "0")
                cv(p, b, 0, 8)
                a("s_waitcnt lgkmcnt(1)" if (hh == 0 and i + 2 <= 7) else "s_waitcnt lgkmcnt(0)")
                pv(vf, p, 0, vr(O, 16))
                pend.append((vf, p, 1))
            x = pend.pop(0); pv(*x, vr(O, 16))
        fin(1)
        if OPT["fine"] > 2: self.stamp(27)
        self.flag(F_O2)

    def ln_stats(self, d):
        L = []
        for n in (8, 4, 2, 1):
            for i in range(n): L.append(f"v_add_f32 v{d+i}, v{d+i}, v{d+i+n}")
        L += [f"v_mov_b32 v{d+1}, v{d}", f"v_permlane32_swap_b32 v{d}, v{d+1}", "s_nop 1",
              f"v_mul_f32 v{d}, {f32(-1.0/512)}, v{d}", f"v_mul_f32 v{d+1}, {f32(1.0/512)}, v{d+1}",
              f"v_fma_f32 v{d+1}, -v{d}, v{d}, v{d+1}", f"v_max_f32 v{d+1}, 0, v{d+1}", f"v_add_f32 v{d+1}, {f32(1e-5)}, v{d+1}",
              f"v_rsq_f32 v{V_RSTD}, v{d+1}", f"v_sqrt_f32 v{V_STD}, v{d+1}",
              f"v_cvt_pk_bf16_f32 v{V_XAUG}, v{d}, v{d}",
              f"v_and_b32 v{d+2}, 0xffff0000, v{V_XAUG}", f"v_sub_f32 v{d+2}, v{d}, v{d+2}", f"v_mov_b32 v{d+3}, 0",
              f"v_cvt_pk_bf16_f32 v{V_XAUG+1}, v{d+2}, v{d+3}",
              f"v_cndmask_b32_e64 v{V_XAUG}, 0, v{V_XAUG}, s[62:63]", f"v_cndmask_b32_e64 v{V_XAUG+1}, 0, v{V_XAUG+1}, s[62:63]",
              f"v_mul_f32 v{V_C1}, {f32(-LOG2E)}, v{V_RSTD}"]
        return L
    def wreg(self):
        w = self.wr + 4 * (self.wc % self.nw); self.wc += 1; return w
    def aug_step(self, acc, augidx, bn=None, look=None):
        w = self.wreg()
        s = dict(reads=[dict(op="ds_read_b64", d=w, fam=V_AUGA, off=augidx * 256, gate=bn)], mf=f"{MF} {vr(acc,16)}, {vr(w,4)}, {vr(V_XAUG,4)}, {vr(acc,16)}")
        return s
    def x_pass1(self, xl, sst, local, wread, augs, augbar, NT=2):
        a = self.a; vm = self.vm
        PRE = OPT["pre"] if NT == 2 else OPT.get("pre3", OPT["pre"]); STD = ACC[NT]
        def X(kc):
            def f(): xl(kc); vm.issue(f"x{kc}")
            return f
        XS = STD + 4
        def piece(p):
            a(f"s_add_u32 s41, s28, {4*p}"); a("s_and_b32 s41, s41, 31"); a("s_lshl_b32 s41, s41, 5"); a("s_add_u32 s41, s41, s55")
            for i in range(4): self.dma("s41", i*8*KB, L_X0 + (p%3)*16*KB + i*KB, voff=XS + i%2, srd="s[44:47]", sl="s42")
        def dots(lo, hi):
            for kc in range(lo, hi):
                for i in range(4):
                    r = XR + 4 * kc + i
                    a(f"v_dot2c_f32_bf16 v{STD + 2*(i%2)}, s20, v{r}"); a(f"v_dot2c_f32_bf16 v{STD + 1 + 2*(i%2)}, v{r}, v{r}")
        def get0(p):
            a(f"s_waitcnt vmcnt({4 * min(2, 7 - p)})")
            for q in range(4): a(f"ds_read_b128 {vr(XR+16*p+4*q,4)}, v{XS+2+q} offset:{(p%3)*16*KB}")
            if p: dots(4*p - 4, 4*p)
            a("s_waitcnt lgkmcnt(0)")
            if OPT["fine"] == 2: self.stamp(16 + p)
            if p == 5: self.pub("x")
            if p + 3 < 8: piece(p + 3)
        def fin0():
            dots(28, 32)
            a(f"v_add_f32 v{STD}, v{STD}, v{STD+2}"); a(f"v_add_f32 v{STD+1}, v{STD+1}, v{STD+3}")
            a(f"v_permlane32_swap_b32 v{STD}, v{STD+1}"); a("s_nop 1"); a(f"v_add_f32 v{STD}, v{STD}, v{STD+1}")
            for x in self.ln_stats(STD)[15:]: a(x)
        if local == "start":
            a(f"v_lshrrev_b32 v{XS+3}, 4, v2"); a(f"v_and_b32 v{XS}, 7, v2"); a(f"v_xor_b32 v{XS}, v{XS+3}, v{XS}"); a(f"v_lshlrev_b32 v{XS}, 4, v{XS}")
            a(f"v_lshrrev_b32 v{XS+3}, 3, v2"); a(f"v_lshl_add_u32 v{XS}, v{XS+3}, 10, v{XS}"); a(f"v_xor_b32 v{XS+1}, 64, v{XS}")
            a("s_lshl_b32 s42, s6, 12")
            a("s_waitcnt lgkmcnt(0)"); a("s_mov_b64 s[44:45], s[64:65]")
            piece(0); piece(1); piece(2)
            return
        if local:
            for i in range(4): a(f"v_mov_b32 v{STD+i}, 0")
            a(f"v_bfe_u32 v{XS+2}, v2, 1, 3"); a(f"v_lshrrev_b32 v{XS+3}, 5, v2"); a(f"v_xor_b32 v{XS+2}, v{XS+3}, v{XS+2}"); a(f"v_lshlrev_b32 v{XS+2}, 4, v{XS+2}")
            a(f"v_and_b32 v{XS+3}, 31, v2"); a(f"v_lshl_add_u32 v{XS+2}, v{XS+3}, 7, v{XS+2}")
            a(f"s_add_u32 s41, s42, {L_X0}"); a(f"v_add_u32 v{XS+2}, s41, v{XS+2}")
            for q in range(1, 4): a(f"v_xor_b32 v{XS+2+q}, {32*q}, v{XS+2}")
        else:
            for i in range(4): a(f"buffer_load_dwordx4 {vr(STD+4*i,4)}, v{V_LANE16}, s[8:11], {sst} offen offset:{1024*i} sc1")
            for kc in range(PRE): X(kc)()
        steps = []
        st = self.ln_stats(STD)
        for kc in range(32):
            for t in range(NT):
                w = self.wreg()
                s = dict(reads=wread(w, t, kc), mf=f"{MF} {vr(ACC[t],16)}, {vr(w,4)}, {vr(XR+4*kc,4)}, {'0' if kc == 0 else vr(ACC[t],16)}", post=[])
                if local:
                    if t == 0 and kc % 4 == 0: s["pre"] = [lambda kc=kc: get0(kc // 4)]
                    if t == 1 and kc == 31: s["post"].append(fin0)
                elif t == 0:
                    s["pre"] = [lambda kc=kc: vm.wait(f"x{kc}")]
                    if kc + PRE < 32: s["post"].append(X(kc + PRE))
                elif kc >= 2:
                    s["post"] += st[:3]; st = st[3:]
                steps.append(s)
        for t in range(NT): steps.append(self.aug_step(ACC[t], augs[t], augbar if t == 0 else None))
        return steps

    def res_gemm(self, nsteps, slot, areg, aload, pre_issued, PRE, gates, pubs, xch, xpub, pre_x, hooks={}):
        a = self.a; vm = self.vm
        for i in range(8):
            a(f"v_lshlrev_b32 v{ACC[0]+2*i}, 16, v{V_RES+i}"); a(f"v_and_b32 v{ACC[0]+2*i+1}, 0xffff0000, v{V_RES+i}")
        a(f"v_xor_b32 v{V_EP}, 64, v{V_FW}"); a(f"v_add_u32 v{V_EP+1}, 0x10000, v{V_EP}"); a(f"v_add_u32 v{V_EP+2}, 0x20000, v{V_EP}")
        nxt = [pre_issued]
        def upto(n):
            while nxt[0] < min(n, nsteps): aload(nxt[0]); nxt[0] += 1
        steps = []; self.wc = 0; self.wr = WR; self.nw = NW
        fo = [V_FW, V_FW + 1, V_FW + 2]; ft = [V_EP, V_EP + 1, V_EP + 2]
        order = [(s, t) for s in range(nsteps - 2) for t in range(2)] + [(nsteps - 2, 1), (nsteps - 1, 1), (nsteps - 2, 0), (nsteps - 1, 0)]
        first = {}; last = {}
        for n, (s, t) in enumerate(order): first.setdefault(s, n); last[s] = n
        for n, (s, t) in enumerate(order):
            w = self.wreg()
            c = vr(ACC[t], 16) if (t == 0 or s > 0) else "0"
            st = dict(reads=self.rdtr(w, fo if t == 0 else ft, slot(s), 512, gates.get(s) if first[s] == n else None, pubs.get(s) if last[s] == n else None),
                      mf=f"{MF} {vr(ACC[t],16)}, {vr(w,4)}, {vr(areg(s),4)}, {c}")
            if first[s] == n and s == pre_x[0]: st["reads"][0].update(gate=pre_x[1], gsrc="C")
            if first[s] == n: st["pre"] = ([lambda s=s: hooks[s](upto)] if s in hooks else []) + [lambda s=s: vm.wait(f"a{s}")]
            elif PRE: st["post"] = [lambda s=s: upto(s + 1 + PRE)]
            steps.append(st)
        a(f"s_xor_b32 s40, s6, 1"); a("s_lshl_b32 s40, s40, 12"); a(f"s_add_u32 s40, s40, {xch}"); a(f"v_add_u32 v{V_EP+3}, s40, v{V_LANE16}")
        self.stream(steps, look=10)
        if OPT["fine"] and nsteps == 56: self.stamp(9)
        for i in range(4): a(f"ds_write_b128 v{V_EP+3}, {vr(ACC[1]+4*i,4)} offset:{i*KB}")
        self.pub(xpub)
        a(f"v_xor_b32 v{V_EP+3}, 4096, v{V_EP+3}")
        rds = [f"ds_read_b128 {vr(ACC[2]+4*i,4)}, v{V_EP+3} offset:{i*KB}" for i in range(4)]
        self.gate_rd("C")
        for x in rds: a(x)
        a("s_waitcnt lgkmcnt(4)")
        self.gate_cmp(xpub, "C"); self.gate_br("C", redo=rds)
        for i in range(4):
            a(f"s_waitcnt lgkmcnt({3-i})")
            for q in range(4): a(f"v_add_f32 v{ACC[0]+4*i+q}, v{ACC[0]+4*i+q}, v{ACC[2]+4*i+q}")
            for q in range(2): a(f"v_cvt_pk_bf16_f32 v{V_RES+2*i+q}, v{ACC[0]+4*i+2*q}, v{ACC[0]+4*i+2*q+1}")

    def x_store(self, sx, sst, flagval):
        a = self.a
        self.store(f"buffer_store_dwordx4 {vr(V_RES,4)}, v{V_LANE16}, s[8:11], {sx} offen")
        self.store(f"buffer_store_dwordx4 {vr(V_RES+4,4)}, v{V_LANE16}, s[8:11], {sx} offen offset:1024")
        for x in stats_calc_list(V_RES, ACC[1]): a(x)
        self.store(f"buffer_store_dword v{ACC[1]}, v{V_LANE16}, s[8:11], {sst} offen")
        self.flag(flagval)

    def compute(self):
        a = self.a; self.role = "C"; self.vm = vm = VM(a)
        a(f"s_setprio {OPT['cprio']}")
        a("v_and_b32 v104, 31, v2"); a("v_lshrrev_b32 v105, 5, v2")
        a(f"v_lshlrev_b32 v{V_XOFF}, 10, v104"); a(f"v_lshl_add_u32 v{V_XOFF}, v105, 4, v{V_XOFF}")
        a("s_lshl_b32 s55, s27, 15")
        a(f"s_mov_b32 s46, {2048*1024}"); a("s_mov_b32 s47, 0x20000")
        self.x_pass1(None, None, "start", None, None, None)
        a(f"s_mov_b32 s14, {2048*1024}"); a("s_mov_b32 s15, 0x20000")
        a("s_lshr_b32 s50, s6, 1"); a("s_and_b32 s51, s6, 1")
        a("s_lshl_b32 s48, s18, 1"); a("s_add_u32 s48, s48, s50"); a("s_mov_b32 s52, s48")
        a("s_lshl_b32 s40, s16, 2"); a("s_add_u32 s48, s48, s40")
        a("s_lshl_b32 s49, s19, 1"); a("s_add_u32 s49, s49, s51")
        a("s_lshl_b32 s53, s48, 15"); a("s_lshl_b32 s40, s49, 11"); a("s_add_u32 s53, s53, s40")
        a("s_lshl_b32 s54, s48, 12"); a("s_lshr_b32 s40, s49, 2"); a("s_lshl_b32 s40, s40, 10"); a("s_add_u32 s54, s54, s40")
        a("s_and_b32 s40, s49, 3"); a("s_lshl_b32 s40, s40, 2"); a("s_add_u32 s54, s54, s40")
        a(f"v_mov_b32 v{V_F0}, v{V_LANE16}"); a(f"v_add_u32 v{V_F0+1}, 0x10000, v{V_LANE16}")
        self.tr_addr16(V_TQ, 106, 107); a(f"v_add_u32 v{V_TQ+1}, 0x10000, v{V_TQ}")
        a(f"v_lshlrev_b32 v{V_FW}, 10, v105"); a("v_bfe_u32 v106, v2, 2, 2"); a(f"v_lshl_add_u32 v{V_FW}, v106, 7, v{V_FW}")
        a("v_bfe_u32 v106, v2, 3, 1"); a("v_xor_b32 v106, s51, v106"); a(f"v_lshl_add_u32 v{V_FW}, v106, 6, v{V_FW}")
        a(f"v_and_b32 v106, 63, v{V_TQ}"); a(f"v_add_u32 v{V_FW}, v106, v{V_FW}")
        a("s_lshl_b32 s40, s51, 11"); a(f"v_add_u32 v{V_FW}, s40, v{V_FW}")
        a(f"v_add_u32 v{V_FW+1}, 0x10000, v{V_FW}"); a(f"v_add_u32 v{V_FW+2}, 0x20000, v{V_FW}")
        a("v_bfe_u32 v106, v2, 1, 3"); a("v_and_b32 v107, 1, v2"); a("v_and_b32 v108, 7, v2")
        a("s_lshl_b32 s40, s50, 8"); a("s_lshl_b32 s41, s51, 3"); a("s_add_u32 s40, s40, s41")
        a(f"v_lshlrev_b32 v{V_PX}, 5, v106"); a(f"v_lshl_add_u32 v{V_PX}, v107, 2, v{V_PX}"); a(f"v_add_u32 v{V_PX}, s40, v{V_PX}")
        a("s_lshl_b32 s40, s51, 8"); a("s_lshl_b32 s41, s52, 2"); a("s_add_u32 s40, s40, s41")
        a(f"v_lshlrev_b32 v{V_PH}, 5, v108"); a(f"v_add_u32 v{V_PH}, s40, v{V_PH}")
        a(f"v_lshlrev_b32 v{V_AUGA}, 3, v104"); a(f"v_add_u32 v{V_AUGA}, {L_AUG}, v{V_AUGA}")
        a(f"v_mov_b32 v{V_XAUG+2}, 0"); a(f"v_mov_b32 v{V_XAUG+3}, 0")
        for r in range(WR, WR + 32, 4): a(f"v_mov_b32 v{r+2}, 0") if False else None
        a("v_cmp_gt_u32 s[62:63], 32, v2")
        a("v_lshlrev_b32 v106, 3, v105"); a("v_sub_u32 v106, v104, v106")
        a("s_mov_b64 s[12:13], s[78:79]")
        if OPT["stamp"]: a(f"v_writelane_b32 v{V_TS}, s100, 31")
        for r in range(16): a(f"v_cmp_le_i32 s[{64+2*r}:{65+2*r}], {16*(r>>3) + (r&7)}, v106")
        a(f"v_and_b32 v{V_FA}, 3, v2"); a(f"v_lshlrev_b32 v{V_FA}, 2, v{V_FA}"); a(f"v_add_u32 v{V_FA}, {L_HL}, v{V_FA}")
        a("s_waitcnt lgkmcnt(0)"); a("s_barrier")
        self.stamp(0)
        ftq = [V_TQ, V_TQ + 1]
        self.wc = 0
        steps = self.x_pass1(None, None, True, lambda w, t, kc: self.rdtr(w, ftq, (RK, RV)[t] + kc*KB, 256, f"kv{kc//8}" if (t == 0 and kc % 8 == 0) else None, "kv" if (t == 1 and kc == 31) else None), [1, 2], "augkv")
        self.stream(steps, look=8)
        a("s_branch L_c_go")
        a("L_c_loop:")
        self.stamp(0)
        self.poll(V_PX, "s26", "s57"); vm.q = []
        self.stamp(1)
        def xl(kc):
            if kc % 4 == 0: a(f"s_add_u32 s43, s55, {kc*KB}")
            a(f"buffer_load_dwordx4 {vr(XR+4*kc,4)}, v{V_LANE16}, s[8:11], s43 offen offset:{(kc%4)*KB} sc1")
        self.wc = 0
        steps = self.x_pass1(xl, "s56", False, lambda w, t, kc: self.rdtr(w, ftq, (RK, RV)[t] + kc*KB, 256, "nkv" if (t == 0 and kc == 0) else None,
                                                                          {(1, OPT.get("b1x", 22)): "x", (1, 31): "kv"}.get((t, kc)), HV["nkv"]), [1, 2], None)
        self.stream(steps, look=10)
        a("L_c_go:")
        if OPT["fine"]: self.stamp(14)
        steps = []
        for kc in range(32):
            w = self.wreg()
            steps.append(dict(reads=self.rdtr(w, ftq, RQ + kc*KB, 256, "wq" if kc == 0 else None),
                              mf=f"{MF} {vr(ACC[2],16)}, {vr(w,4)}, {vr(XR+4*kc,4)}, {'0' if kc == 0 else vr(ACC[2],16)}"))
        steps.append(None)
        q = ["s_lshl_b32 s58, s17, 17", "s_lshl_b32 s40, s27, 10", "s_add_u32 s58, s58, s40", f"s_add_u32 s58, s58, {KV}", "s_add_u32 s58, s58, s36",
             f"s_add_u32 s40, s25, {LK + 8*KB}", f"v_add_u32 v{V_OUT}, s40, v{V_LANE16}"]
        for t in range(2):
            A0 = ACC[t]
            for hh in range(2):
                q += [f"v_mul_f32 v{A0+r}, v{V_RSTD}, v{A0+r}" for r in range(8*hh, 8*hh + 8)]
                q += [f"v_cvt_pk_bf16_f32 v{A0+r}, v{A0+2*r}, v{A0+2*r+1}" for r in range(4*hh, 4*hh + 4)]
                q += [f"s_add_u32 s59, s58, {t*32*64*KB + hh*64*KB}", f"buffer_store_dwordx4 {vr(A0+4*hh,4)}, v{V_LANE16}, s[8:11], s59 offen sc1"]
        def kvflag():
            a("s_lshl_b32 s40, s16, 11"); a("s_lshl_b32 s41, s17, 7"); a("s_add_u32 s40, s40, s41"); a("s_lshl_b32 s41, s6, 2"); a("s_add_u32 s40, s40, s41"); a(f"s_add_u32 s40, s40, {KVFL}")
            a("s_add_u32 s41, s22, 1"); a(f"v_mov_b32 v{V_TMP}, s41")
            vm.drain()
            a("s_mov_b64 exec, 1"); a(f"buffer_store_dword v{V_TMP}, off, s[8:11], s40 sc1"); a("s_mov_b64 exec, -1")
            self.pub("kvf")
        for x in q: a(x)
        q = []
        def fill(i):
            out = []
            if i == OPT["kvflag"]: out.append(kvflag)
            return out
        self.stream(steps[:-1], look=10, fill=fill)
        assert not q
        self.gate("augq")
        for hh in range(2):
            a(f"ds_write_b128 v{V_OUT}, {vr(ACC[0]+4*hh,4)} offset:{hh*HS}")
            a(f"ds_write_b128 v{V_OUT}, {vr(ACC[1]+4*hh,4)} offset:{12*KB + hh*HS}")
        self.pub("q")
        a(f"v_mul_f32 v{V_C1}, {f32(0.25*LOG2E)}, v{V_RSTD}")
        r = self.attention()
        a(f"v_mov_b32 v{V_TMP}, {L_MODE}"); a(f"ds_read_b32 v{V_TMP}, v{V_TMP}"); a("s_waitcnt lgkmcnt(0)")
        a(f"v_readfirstlane_b32 s21, v{V_TMP}")
        a("s_lshl_b32 s37, s27, 15"); a("s_lshl_b32 s40, s17, 11"); a("s_add_u32 s37, s37, s40"); a(f"s_add_u32 s37, s37, {OF}"); a("s_add_u32 s37, s37, s35")
        a("s_lshl_b32 s60, s48, 15"); a("s_lshl_b32 s40, s51, 14"); a("s_add_u32 s60, s60, s40"); a(f"s_add_u32 s60, s60, {OF}"); a("s_add_u32 s60, s60, s35")
        self.stamp(2)
        self.wc = 0
        self.stream([self.aug_step(ACC[2], 0)], look=0)
        for r_ in range(16): a(f"v_mul_f32 v{ACC[2]+r_}, v{V_C1}, v{ACC[2]+r_}")
        for r_ in range(8): a(f"v_cvt_pk_bf16_f32 v{XR+r_}, v{ACC[2]+2*r_}, v{ACC[2]+2*r_+1}")
        self.gate("q", "C"); self.gate("hk")
        self.stamp(3)
        def after_k():
            self.gate("hv")
            l = self.lab()
            a("s_cmp_lg_u32 s22, 0"); a(f"s_cbranch_scc1 {l}")
            a("s_lshl_b32 s40, s48, 15"); a("s_lshl_b32 s41, s49, 6"); a("s_add_u32 s40, s40, s41")
            a(f"buffer_load_dwordx4 {vr(V_RES,4)}, v{V_XOFF}, s[44:47], s40 offen")
            a(f"buffer_load_dwordx4 {vr(V_RES+4,4)}, v{V_XOFF}, s[44:47], s40 offen offset:32")
            a(f"{l}:")
            a(self.touch_txt([(["s_mov_b32 s43, s37"], 16), ([f"s_add_u32 s43, s53, {XA}"], 16), ([f"s_add_u32 s43, s54, {STA}"], 8),
                              ([f"s_mul_i32 s43, s27, {112*KB}", f"s_mul_i32 s40, s17, {7*KB}", "s_add_u32 s43, s43, s40", f"s_add_u32 s43, s43, {HF}"], 56)][:3 if OPT.get("x_notouch") else 4]))
        oreg = lambda s: XR + 8 + 4 * s
        def al_o(s):
            g = 2 * (s % 8) + (s >> 3)
            if s % 2 == 0: a(f"s_add_u32 s43, s60, {(g & ~3)*KB}")
            a(f"buffer_load_dwordx4 {vr(oreg(s),4)}, v{V_LANE16}, s[8:11], s43 offen offset:{(g & 3)*KB} sc1"); vm.issue(f"a{s}")
        def early_a():
            self.check(V_PH, F_O1)
            for s_ in range(8): al_o(s_)
        self.attention_run(r, after_k, early_a)
        self.stamp(4)
        a(f"s_add_u32 s58, s53, {XA}"); a("s_add_u32 s58, s58, s35"); a(f"s_add_u32 s59, s54, {STA}"); a("s_add_u32 s59, s59, s35")
        def h_o(upto):
            self.check(V_PH, F_O2); self.stamp(5); upto(16)
        self.res_gemm(16, lambda s: RK + s*4*KB, oreg, al_o, 8, 0, {0: "wo"}, {7: "wo1"}, XCH_WO, "wo", (10, "att"),
                      hooks={OPT.get("opeek", 2): lambda u: self.peek(V_PH), 8: h_o})
        self.x_store("s58", "s59", F_X1)
        self.stamp(6)
        a(f"s_mul_i32 s60, s27, {112*KB}"); a(f"s_mul_i32 s40, s17, {7*KB}"); a("s_add_u32 s60, s60, s40"); a(f"s_add_u32 s60, s60, {HF}"); a("s_add_u32 s60, s60, s35")
        a("s_lshl_b32 s58, s27, 15"); a(f"s_add_u32 s58, s58, {XA}"); a("s_add_u32 s58, s58, s35")
        a("s_lshl_b32 s59, s27, 12"); a(f"s_add_u32 s59, s59, {STA}"); a("s_add_u32 s59, s59, s35")
        a(f"s_mul_i32 s29, s48, {112*KB}"); a(f"s_mul_i32 s40, s51, {56*KB}"); a("s_add_u32 s29, s29, s40"); a(f"s_add_u32 s29, s29, {HF}"); a("s_add_u32 s29, s29, s35")
        a(f"s_add_u32 s61, s23, {F_X1}")
        self.poll(V_PX, "s26", "s61"); vm.q = []
        self.stamp(7)
        def xl2(kc):
            if kc % 4 == 0: a(f"s_add_u32 s43, s58, {kc*KB}")
            a(f"buffer_load_dwordx4 {vr(XR+4*kc,4)}, v{V_LANE16}, s[8:11], s43 offen offset:{(kc%4)*KB} sc1")
        self.wc = 0; self.wr = 104; self.nw = 6
        steps = self.x_pass1(xl2, "s59", False, lambda w, t, kc: self.rd128(w, GU_REG[t] + kc*KB, f"t2_{kc//8}" if (t == 0 and kc % 8 == 0 and (kc == 0 or not OPT.get("t2e", 1))) else None, f"g{kc+1}" if (t == 2 and kc % 8 == 7) else None), [3, 4, 5], None, NT=3)
        self.pub("xch")
        done = {t: len(steps) - 3 + t for t in range(3)}; start = {}
        accof = {t: ACC[t % 4] for t in range(7)}
        for t in range(3, 7):
            start[t] = len(steps)
            for kc in range(32):
                w = self.wreg()
                steps.append(dict(reads=self.rd128(w, GU_REG[t] + kc*KB, f"t{t}" if kc == 0 else None, f"t{t}" if kc == 31 else None),
                                  mf=f"{MF} {vr(accof[t],16)}, {vr(w,4)}, {vr(XR+4*kc,4)}, {'0' if kc == 0 else vr(accof[t],16)}", pair=(kc % 2 == 0 and OPT.get("pair", 1))))
            steps.append(self.aug_step(accof[t], 3 + t))
            done[t] = len(steps) - 1
        def epi(t):
            A0 = accof[t]; L = []
            if OPT.get("x_nofill"): return [lambda: (a(f"s_add_u32 s43, s60, {t*KB}"), self.store(f"buffer_store_dwordx4 {vr(V_EP,4)}, v{V_LANE16}, s[8:11], s43 offen", f"h{t}"))]
            L += [f"v_mul_f32 v{A0+r}, v{V_C1}, v{A0+r}" for r in range(8)]
            L += [f"v_exp_f32 v{A0+r}, v{A0+r}" for r in range(8)]
            L += [f"v_fma_f32 v{A0+r}, v{A0+r}, v{V_STD}, v{V_STD}" for r in range(8)]
            L += [f"v_rcp_f32 v{A0+r}, v{A0+r}" for r in range(8)]
            L += [f"v_mul_f32 v{A0+r}, v{A0+r}, v{A0+8+r}" for r in range(8)]
            L += [f"v_cvt_pk_bf16_f32 v{V_EP+r}, v{A0+2*r}, v{A0+2*r+1}" for r in range(4)]
            L += [lambda: (a(f"s_add_u32 s43, s60, {t*KB}"), self.store(f"buffer_store_dwordx4 {vr(V_EP,4)}, v{V_LANE16}, s[8:11], s43 offen", f"h{t}"))]
            return L
        hreg = lambda s: XR + 4 * (s % 32)
        def al_h(s):
            t, i = s // 8, s % 8
            if OPT.get("x_noh") and s >= 16: return
            if OPT.get("x_sameh"): t, i = 0, s % 2
            a(f"s_add_u32 s43, s29, {(7*i + t)*KB}"); a(f"buffer_load_dwordx4 {vr(hreg(s),4)}, v{V_LANE16}, s[8:11], s43 offen sc1"); vm.issue(f"a{s}")
        NP = OPT.get("np", 16)
        queue = []; flag_at = {}
        def fill2(i):
            for t in range(7):
                if done[t] + 2 == i: queue.extend((x, t) for x in epi(t))
            out = []
            if OPT["fine"] and i == done[2]: self.pend_stamp = 12
            if OPT["fine"] and i == done[4]: self.pend_stamp = 13
            if i == done[2] + 1: out.append(self.touch_txt([([f"s_add_u32 s43, s53, {XB}"], 16), ([f"s_add_u32 s43, s54, {STB}"], 8)]))
            for t2, sidx in start.items():
                if sidx == i + 1 and t2 >= 4:
                    while queue and queue[0][1] <= t2 - 4: out.append(queue.pop(0)[0])
            cost = 0; lim = OPT.get("fillc", 3)
            while queue and cost < lim:
                x, t = queue.pop(0); out.append(x)
                cost += 3 if callable(x) else 2 if x.startswith(("v_exp", "v_rcp")) else 1
                if callable(x) and t == 3: flag_at[i + 10] = t
            if i in flag_at: out.append(lambda: self.flag(F_H1, "h3"))
            k6 = i - start[6]
            if k6 == 31 - NP - 14: out.append(lambda: self.peek(V_PH))
            if k6 == 31 - NP: out.append(lambda: self.check(V_PH, F_H1))
            if 31 - NP < k6 <= 31: out.append(lambda s_=k6 - (32 - NP): al_h(s_))
            return out
        self.stream(steps, look=4, fill=fill2)
        assert flag_at and max(flag_at) < start[6], (flag_at, start)
        for x, _ in queue: self.emit(x)
        for x in epi(6): self.emit(x)
        self.stamp(8)
        a(f"s_add_u32 s58, s53, {XB}"); a("s_add_u32 s58, s58, s35"); a(f"s_add_u32 s59, s54, {STB}"); a("s_add_u32 s59, s59, s35")
        PD = OPT.get("pd", 14)
        hooks = {OPT.get("hflag", 5): lambda u: self.flag(F_H2, "h6"), 32 - PD - 8: lambda u: self.peek(V_PH), 32 - PD - 1: lambda u: self.check(V_PH, F_H2)}
        self.res_gemm(56, wd_slot, hreg, al_h, NP, PD, {s: f"w{s}" for s in DG}, {s - 1: f"d{s}" for s in DP},
                      XCH_DN, "dx", (50, "d45"), hooks=hooks)
        self.stamp(10)
        a("s_cmp_lg_u32 s22, 0"); a("s_cbranch_scc1 L_c_final")
        self.x_store("s58", "s59", F_X2)
        a("s_lshl_b32 s55, s27, 15"); a(f"s_add_u32 s55, s55, {XB}"); a("s_add_u32 s55, s55, s35")
        a("s_lshl_b32 s56, s27, 12"); a(f"s_add_u32 s56, s56, {STB}"); a("s_add_u32 s56, s56, s35")
        a(f"s_mov_b32 s57, {F_X2}")
        self.next_iter()
        a.fence()
        a("s_branch L_c_loop")
        a("L_c_final:")
        a("s_lshl_b32 s40, s48, 15"); a("s_lshl_b32 s41, s49, 6"); a("s_add_u32 s40, s40, s41")
        a(f"buffer_store_dwordx4 {vr(V_RES,4)}, v{V_XOFF}, s[12:15], s40 offen")
        a(f"buffer_store_dwordx4 {vr(V_RES+4,4)}, v{V_XOFF}, s[12:15], s40 offen offset:32")
        self.finish()

    def next_iter(self):
        a = self.a
        a("s_mov_b32 s22, 1"); a("s_mov_b32 s23, 16"); a("s_mov_b32 s7, 64"); a(f"v_mov_b32 v{V_BASE}, 64")
        a(f"s_mov_b32 s36, {ITS}"); a(f"s_mul_i32 s35, s21, {ITS}")
    def finish(self):
        a = self.a
        if OPT["stamp"]:
            a("s_waitcnt vmcnt(0)")
            self.stamp(11)
            a("s_lshl_b32 s40, s2, 12"); a("s_lshl_b32 s41, s3, 9"); a("s_add_u32 s40, s40, s41"); a(f"s_add_u32 s40, s40, {TS}")
            a("v_lshlrev_b32 v40, 2, v2")
            a(f"buffer_store_dword v{V_TS}, v40, s[8:11], s40 offen"); a(f"buffer_store_dword v{V_TS2}, v40, s[8:11], s40 offen offset:256")
        a("s_endpgm")

    def helper(self):
        a = self.a; self.role = "H"; vm = VM(a)
        HV_QKV = 16; HV_ROW0 = 17; HV_OOB = 18; HV_PK = 19; HV_W = 20; HV_R128 = 23; HV_TQ = 24; HT = 26
        SQ, SO, SD, SG, SX, SDBG = "s[44:47]", "s[48:51]", "s[52:55]", "s[56:59]", "s[60:63]", "s[12:15]"
        HF_ = 25
        W = OPT.get("win", 8)
        st = dict(it=0); outq = []; sigs = []
        cnt = dict(issued=0, done=0)
        def hpub_txt(name):
            self.seen.add(("H", name))
            return [f"v_mov_b32 v{V_TMP}, {64*st['it'] + HV[name]}", f"ds_max_u32 v{V_PUBA}, v{V_TMP}"]
        def hpub(name):
            for x in hpub_txt(name): a(x)
        def retire(n):
            if n > cnt["done"]:
                k = cnt["issued"] - n; assert 0 <= k <= 63
                a(f"s_waitcnt vmcnt({k})"); cnt["done"] = n
            last = None
            while sigs and sigs[0][1] <= cnt["done"]: last = sigs.pop(0)[0]; self.seen.add(("H", last))
            if last: hpub(last)
        def op(win=None):
            cnt["issued"] += 1
            retire(max(cnt["done"], cnt["issued"] - (W if win is None else win)))
        def sig(name):
            sigs.append((name, cnt["issued"])); retire(cnt["done"])
        def flush():
            while sigs: retire(sigs[0][1])
        def drain():
            retire(cnt["issued"])
        def need(name, src="C", it=None):
            l1 = self.lab(); l2 = self.lab(); l3 = self.lab()
            val = 64 * (st["it"] if it is None else it) + (CV if src == "C" else HV)[name]
            rd = f"ds_read_b32 v{V_FLG}, v{HF_} offset:{16 if src == 'C' else 0}"
            a(rd); a("s_waitcnt lgkmcnt(0)"); a(f"s_movk_i32 s39, {val}"); a(f"v_cmp_gt_u32 vcc, s39, v{V_FLG}"); a(f"s_cbranch_vccnz {l1}"); a(f"{l2}:")
            a.pending.pop(l1, None)
            o = [f"{l1}:"]
            for nm, n in sigs: o += [f"    s_waitcnt vmcnt({cnt['issued'] - n})"] + ["    " + x for x in hpub_txt(nm)]
            o += [f"{l3}:", "    s_sleep 1", "    s_add_u32 s38, s38, 1", f"    s_cmp_gt_u32 s38, {OPT['spin']*16}", f"    s_cbranch_scc1 {l2}", "    " + rd, "    s_waitcnt lgkmcnt(0)", f"    v_cmp_gt_u32 vcc, s39, v{V_FLG}", f"    s_cbranch_vccnz {l3}", f"    s_branch {l2}"]
            self.ool += o
            self.used.add((src, name))
        def tile(t, gs=range(8)):
            for g in gs: self.dma("s29", t*32*KB + g*4*KB, GU_REG[t] + g*4*KB, fl=" sc1"); op()
        def wqkv(which, gs, win=None):
            for g in gs:
                a(f"s_add_u32 s41, s30, {4*g}"); a("s_and_b32 s41, s41, 31"); a("s_mul_i32 s41, s41, 49152"); a("s_add_u32 s41, s41, s31")
                for ci, reg in which:
                    self.dma("s41", ci*1024, reg + g*4*KB, voff=HV_QKV, srd=SQ); op(win)
                if len(which) == 2 and g % 2 == 1: sig(f"kv{g//2}")
        def wqp(which, gs):
            for g in gs:
                for ci, reg in which: self.dma("s34", ci*32*KB + g*4*KB, reg + g*4*KB, fl=" sc1"); op()
        WK = (1, RK); WV = (2, RV); WQ = (0, RQ)
        st_next = [0]; st_idx = {}
        def stash(n):
            for _ in range(n):
                s_ = st_next[0]
                if s_ >= 56: break
                t, i = s_ // 8, s_ % 8
                a(f"s_add_u32 s40, s33, {(7*i + t)*16*KB}")
                a(f"buffer_load_dwordx4 {vr(STASH+4*s_,4)}, v{HV_R128}, {SD}, s40 offen"); op(); st_idx[s_] = cnt["issued"]
                st_next[0] += 1
        def wdw(steps):
            for s_ in steps:
                if s_ >= 56: break
                retire(max(cnt["done"], st_idx[s_]))
                if OPT.get("x_nowdw"): continue
                o = wd_slot(s_)
                a(f"ds_write_b128 v{HV_W + (o >> 16)}, {vr(STASH+4*s_,4)} offset:{o & 0xffff}")
        a(f"v_lshrrev_b32 v{HT}, 2, v2"); a(f"v_mul_u32_u24 v{HV_QKV}, 3072, v{HT}"); a(f"v_and_b32 v{HT}, 3, v2"); a(f"v_lshl_add_u32 v{HV_QKV}, v{HT}, 4, v{HV_QKV}")
        a("s_add_u32 s30, s28, s6"); a("s_lshl_b32 s31, s17, 6")
        a(f"s_mov_b32 s46, {512*3072}"); a("s_mov_b32 s47, 0x20000"); a(f"s_mov_b32 s62, {2048*1024}"); a("s_mov_b32 s63, 0x20000")
        a("s_waitcnt lgkmcnt(0)")
        a("s_mov_b64 s[44:45], s[66:67]"); a("s_mov_b64 s[60:61], s[64:65]")
        if OPT["stamp"]: a(f"v_writelane_b32 v{V_TS}, s100, 31")
        a("s_mov_b64 s[12:13], s[70:71]"); a("s_mov_b32 s14, 256"); a("s_mov_b32 s15, 0x20000")
        wqkv([WK, WV], range(0, 4), win=63)
        a("s_mov_b64 s[48:49], s[68:69]"); a(f"s_mov_b32 s50, {512*1024}"); a("s_mov_b32 s51, 0x20000")
        a("s_mov_b64 s[52:53], s[76:77]"); a(f"s_mov_b32 s54, {1792*1024}"); a("s_mov_b32 s55, 0x20000")
        a(f"v_lshrrev_b32 v{HT}, 3, v2"); a(f"v_bfe_u32 v{HT+1}, v2, 4, 1"); a(f"v_lshlrev_b32 v{HT+1}, 2, v{HT+1}")
        a(f"v_and_b32 v{HT+2}, 7, v2"); a(f"v_xor_b32 v{HT+2}, v{HT+1}, v{HT+2}"); a(f"v_lshlrev_b32 v{HT+2}, 4, v{HT+2}")
        a(f"v_lshl_add_u32 v{HV_R128}, v{HT}, 10, v{HT+2}")
        a(f"v_mul_u32_u24 v{HT+3}, 3584, v{HT}"); a(f"v_add_u32 v{HT+3}, v{HT+3}, v{HT+2}")
        a("s_lshl_b32 s32, s19, 7"); a("s_and_b32 s40, s6, 1"); a("s_lshl_b32 s40, s40, 13"); a("s_add_u32 s32, s32, s40")
        a("s_lshr_b32 s40, s6, 1"); a(f"s_mul_i32 s33, s40, {56*16*KB}"); a("s_add_u32 s33, s33, s32"); a("s_lshl_b32 s40, s40, 18"); a("s_add_u32 s32, s32, s40")
        a(f"s_mul_i32 s34, s17, {96*KB}"); a(f"s_add_u32 s34, s34, {WQP}"); a("s_add_u32 s34, s34, s25")
        a(f"s_mul_i32 s29, s17, {7*32*KB}"); a(f"s_add_u32 s29, s29, {WGU}"); a("s_add_u32 s29, s29, s25")
        a(f"v_lshrrev_b32 v{HT}, 5, v2"); a(f"v_lshlrev_b32 v{HV_ROW0}, 9, v{HT}")
        a(f"v_mov_b32 v{HV_OOB}, 0x7ff00000")
        a(f"v_and_b32 v{HT}, 1, v2"); a("s_sub_i32 s40, s16, 1"); a(f"v_sub_u32 v{HT}, s40, v{HT}")
        a(f"v_lshlrev_b32 v{HT+1}, 11, v{HT}"); a("s_lshl_b32 s40, s6, 2"); a(f"v_add_u32 v{HT+1}, s40, v{HT+1}")
        a(f"v_cmp_gt_i32 vcc, 0, v{HT}"); a(f"v_cndmask_b32_e64 v{HV_PK}, v{HT+1}, 0, vcc")
        a("s_lshl_b32 s82, s17, 7"); a(f"s_add_u32 s82, s82, {KVFL}")
        a(f"v_add_u32 v{HV_W}, s25, v{V_LANE16}"); a(f"v_add_u32 v{HV_W+1}, 0x10000, v{HV_W}"); a(f"v_add_u32 v{HV_W+2}, 0x20000, v{HV_W}")
        self.tr_addr16(HV_TQ, HT, HT + 1)
        a("s_lshl_b32 s40, s6, 15"); a(f"v_add_u32 v{HV_TQ}, s40, v{HV_TQ}")
        for r in range(4): a(f"v_mov_b32 v{64+r}, s20")
        a("v_mov_b32 v48, s20"); a("v_mov_b32 v49, s20"); a("v_mov_b32 v50, 0"); a("v_mov_b32 v51, 0"); a(f"v_mov_b32 v52, {L_ONES}")
        for o in (0, 64, 256, 320): a(f"ds_write_b128 v52, v[48:51] offset:{o}")
        a("s_mul_i32 s83, s2, 9363"); a("s_lshr_b32 s83, s83, 18")
        a("s_mul_i32 s40, s83, 28"); a("s_sub_u32 s84, s2, s40")
        a("s_and_b32 s85, s83, 1"); a("s_lshr_b32 s86, s83, 1")
        a("s_sub_u32 s80, s6, 1"); a("s_lshl_b32 s86, s86, 1"); a("s_add_u32 s86, s86, s80")
        a("s_cmp_eq_u32 s85, 0"); a("s_cselect_b64 s[56:57], s[72:73], s[74:75]"); a(f"s_mov_b32 s58, {512*3584}"); a("s_mov_b32 s59, 0x20000")
        a("s_cmp_lt_u32 s2, 224"); a("s_cselect_b32 s87, 1, 0"); a("s_cmp_lt_u32 s80, 2"); a("s_cselect_b32 s87, s87, 0")
        def colsum(lo, hi, first):
            def rd(kc):
                w = 72 + 4 * (kc % 8)
                a(f"ds_read_b64_tr_b16 {vr(w,2)}, v{HV_TQ} offset:{kc*KB}"); a(f"ds_read_b64_tr_b16 {vr(w+2,2)}, v{HV_TQ} offset:{kc*KB+256}")
            for kc in range(lo, min(hi, lo + 6)): rd(kc)
            for kc in range(lo, hi):
                a(f"s_waitcnt lgkmcnt({2 * (min(hi, kc + 6) - kc - 1)})")
                a(f"{MF} v[112:127], v[64:67], {vr(72+4*(kc%8),4)}, {'0' if (first and kc == lo) else 'v[112:127]'}")
                if kc + 6 < hi: rd(kc + 6)
        def augfin():
            a("v_cvt_pk_bf16_f32 v104, v112, v112"); a("v_and_b32 v107, 0xffff, v104")
            a("v_lshlrev_b32 v105, 16, v104"); a("v_sub_f32 v105, v112, v105"); a("v_cvt_pk_bf16_f32 v106, v112, v105")
            a("s_lshl_b32 s40, s6, 8"); a(f"s_add_u32 s40, s40, {L_AUG}")
            a("v_and_b32 v108, 31, v2"); a("v_lshlrev_b32 v108, 3, v108"); a("v_add_u32 v108, s40, v108")
            a("ds_write_b64 v108, v[106:107]"); a("s_waitcnt lgkmcnt(0)")
        def only(cond_lines, fn):
            l = self.lab()
            for c in cond_lines: a(c)
            a(f"s_cbranch_scc0 {l}"); fn(); a(f"{l}:")
        kvw = ["s_sub_u32 s40, s6, 1", "s_cmp_lt_u32 s40, 2"]
        qw  = ["s_cmp_eq_u32 s6, 0"]
        w3  = ["s_cmp_eq_u32 s6, 3"]
        a("s_mul_i32 s40, s84, 37"); a("s_lshr_b32 s40, s40, 8"); a("s_mul_i32 s41, s40, 7"); a("s_sub_u32 s41, s84, s41")
        a("s_lshl_b32 s41, s41, 3"); a("s_add_u32 s41, s41, s83"); a("s_lshl_b32 s40, s40, 6"); a("s_add_u32 s40, s40, s41"); a("s_lshl_b32 s40, s40, 3"); a(f"s_add_u32 s88, s40, {RF}")
        a("s_cmp_lt_u32 s2, 224"); a("s_cselect_b32 s88, s88, 0x7ff00000")
        a("s_lshl_b32 s89, s17, 8"); a("s_lshl_b32 s40, s16, 4"); a("s_add_u32 s89, s89, s40"); a(f"s_add_u32 s89, s89, {PFL}")
        def zero():
            for r in range(4): a(f"v_mov_b32 v{40+r}, 0")
            a("s_sub_u32 s40, s24, 28")
            a("s_lshl_b32 s81, s16, 11"); a("s_lshl_b32 s41, s17, 7"); a("s_add_u32 s81, s81, s41"); a(f"s_add_u32 s81, s81, {KVFL}")
            a("s_mov_b64 exec, 1")
            a("buffer_store_dwordx4 v[40:43], off, s[8:11], s40 sc1"); a("buffer_store_dwordx4 v[40:43], off, s[8:11], s81 sc1")
            a("buffer_store_dwordx2 v[40:41], off, s[8:11], s88 sc1"); a("buffer_store_dwordx4 v[40:43], off, s[8:11], s89 sc1")
            a("s_mov_b64 exec, -1")
        def arrive():
            a("s_getreg_b32 s40, hwreg(HW_REG_XCC_ID)"); a("s_and_b32 s40, s40, 7"); a("s_or_b32 s40, s40, 0x80"); a("s_mul_i32 s92, s40, 0x01010101")
            a(f"v_mov_b32 v{HT}, s40"); a("s_lshl_b32 s91, s16, 4"); a("s_add_u32 s91, s91, s17")
            a("s_mov_b64 exec, 1"); a(f"buffer_store_byte v{HT}, off, {SDBG}, s91 sc1"); a("s_mov_b64 exec, -1")
        a("s_waitcnt lgkmcnt(0)")
        def arrived(local):
            l = self.lab(); d = self.lab(); l0 = self.lab()
            a(f"v_lshlrev_b32 v{HT+1}, 2, v2"); a("s_mov_b32 s41, 0"); a("s_mov_b32 s93, 0x80808080")
            if local:
                a("s_mov_b64 s[42:43], 0xfff"); a("s_lshl_b32 s40, s16, 2"); a("s_lshl_b64 s[42:43], s[42:43], s40")
                a("s_add_u32 s40, s40, 4"); a("s_sub_u32 s40, 64, s40")
                a("s_mov_b64 s[42:43], -1"); a("s_lshr_b64 s[42:43], s[42:43], s40")
                a("s_lshl_b32 s40, s16, 2"); a("s_sub_i32 s40, s40, 8"); a("s_max_i32 s40, s40, 0")
                a("s_lshr_b64 s[42:43], s[42:43], s40"); a("s_lshl_b64 exec, s[42:43], s40")
            a(f"s_branch {l0}"); a(f"{l}:"); a("s_sleep 8"); a(f"{l0}:")
            a(f"buffer_load_dword v{HT}, v{HT+1}, {SDBG}, 0 offen sc1")
            a("s_add_u32 s41, s41, 1"); a(f"s_cmp_gt_u32 s41, {OPT['spin']}"); a(f"s_cbranch_scc1 {d}")
            a("s_waitcnt vmcnt(0)")
            a(f"v_and_b32 v{HT+2}, s93, v{HT}"); a(f"v_cmp_ne_u32 vcc, s93, v{HT+2}"); a(f"s_cbranch_vccnz {l}")
            a(f"{d}:")
            a("s_mov_b64 exec, -1")
        def nbr():
            arrived(True)
            a(f"v_cmp_ne_u32 vcc, s92, v{HT}"); a("s_lshl_b32 s40, s16, 2"); a("s_lshr_b64 s[42:43], vcc, s40"); a("s_and_b32 s40, s42, 15"); a("s_cselect_b32 s40, 1, 0")
            if OPT["force_slow"]: a("s_mov_b32 s40, 1")
            a(f"v_mov_b32 v{HT}, s40"); a(f"v_mov_b32 v{HT+1}, {L_MODE}"); a(f"ds_write_b32 v{HT+1}, v{HT}"); a("s_waitcnt lgkmcnt(0)")
        def rel_do():
            a("s_lshl_b32 s40, s80, 13"); a(f"s_add_u32 s40, s40, {L_REL}"); a(f"v_add_u32 v40, s40, v{V_LANE16}")
            a("s_waitcnt vmcnt(0)")
            for o in range(8): a(f"ds_write_b128 v40, {vr(128+4*o,4)} offset:{o*KB}")
            a(f"v_bfe_u32 v40, v2, 2, 2"); a("v_lshlrev_b32 v41, 7, v40"); a("v_lshrrev_b32 v40, 1, v40"); a("v_lshrrev_b32 v42, 5, v2"); a("v_xor_b32 v40, v40, v42")
            a("v_lshl_add_u32 v41, v40, 6, v41"); a(f"v_and_b32 v40, 63, v{HV_TQ}"); a("v_add_u32 v41, v41, v40")
            a("s_lshl_b32 s40, s80, 13"); a(f"s_add_u32 s40, s40, {L_REL}"); a("v_add_u32 v41, s40, v41")
            a("s_waitcnt lgkmcnt(0)")
            for o in range(8):
                a(f"ds_read_b64_tr_b16 {vr(72+4*o,2)}, v41 offset:{o*KB}"); a(f"ds_read_b64_tr_b16 {vr(74+4*o,2)}, v41 offset:{o*KB+512}")
                if o == 6: a("s_waitcnt lgkmcnt(8)")
            a("v_lshrrev_b32 v40, 4, v2"); a("v_lshlrev_b32 v40, 15, v40"); a("v_and_b32 v42, 15, v2"); a("v_lshl_add_u32 v40, v42, 4, v40")
            a("s_lshl_b32 s40, s84, 17"); a("s_lshl_b32 s41, s86, 12"); a("s_add_u32 s40, s40, s41"); a("s_lshl_b32 s41, s85, 8"); a("s_add_u32 s40, s40, s41"); a(f"s_add_u32 s40, s40, {WGU}")
            a("v_mov_b32 v43, 0"); a("v_mov_b32 v44, 0")
            a("s_waitcnt lgkmcnt(0)")
            for o in range(8): a(f"buffer_store_dwordx4 {vr(72+4*o,4)}, v40, s[8:11], s40 offen offset:{o*512} sc1")
            for i in range(32): a(f"v_dot2_f32_bf16 v{43+i%2}, v{72+i}, s20, v{43+i%2}")
            a("s_nop 2"); a("v_add_f32 v43, v43, v44")
            a("s_lshl_b32 s40, s86, 1"); a("s_add_u32 s40, s40, s85"); a(f"s_mul_i32 s40, s40, {1792*4}"); a("s_lshl_b32 s41, s84, 8"); a("s_add_u32 s40, s40, s41"); a(f"s_add_u32 s40, s40, {CS}")
            a("v_lshlrev_b32 v42, 2, v2")
            a("buffer_store_dword v43, v42, s[8:11], s40 offen sc1")
        def halo():
            for kv in range(2):
                for d in (1, 2):
                    l1 = self.lab(); l2 = self.lab()
                    a(f"s_cmp_lt_u32 s16, {d}"); a(f"s_cbranch_scc1 {l1}")
                    a(f"s_sub_u32 s95, s27, {4*d}"); a("s_lshl_b32 s95, s95, 10"); a("s_add_u32 s95, s95, s94")
                    for hh in range(2): self.dma("s95", kv*32*64*KB + hh*64*KB, LK + kv*12*KB + hh*HS + (8-4*d)*KB, fl=" sc1")
                    a(f"s_branch {l2}")
                    a(f"{l1}:")
                    for hh in range(2): self.dma("s94", hh*64*KB, LK + kv*12*KB + hh*HS + (8-4*d)*KB, voff=(HV_ROW0, HV_OOB)[kv], fl=" sc1")
                    a(f"{l2}:")
                    op(63); op(63)
                sig(("hk", "hv")[kv])
        def pack():
            a("s_lshl_b32 s40, s16, 1"); a("s_sub_u32 s41, s40, s28"); a("s_and_b32 s41, s41, 31"); a("s_lshl_b32 s41, s41, 10"); a("s_lshl_b32 s42, s6, 15"); a("s_add_u32 s41, s41, s42")
            a(f"v_add_u32 v160, s41, v{V_LANE16}")
            a("ds_read_b128 v[164:167], v160"); a("ds_read_b128 v[168:171], v160 offset:1024")
            a("s_lshl_b32 s41, s6, 15"); a("s_lshl_b32 s40, s40, 10"); a("s_add_u32 s41, s41, s40")
            a("s_add_u32 s41, s41, s34"); a("s_sub_u32 s41, s41, s25")
            a("s_mov_b32 s90, s41")
            a("s_waitcnt lgkmcnt(0)")
        def pack_st():
            a(f"buffer_store_dwordx4 v[164:167], v{V_LANE16}, s[8:11], s90 offen sc1"); a(f"buffer_store_dwordx4 v[168:171], v{V_LANE16}, s[8:11], s90 offen offset:1024 sc1")
        def rel_sig():
            a("s_lshl_b32 s40, s80, 2"); a("s_add_u32 s40, s40, s88")
            a(f"v_mov_b32 v{HT}, 1"); a("s_mov_b64 exec, 1"); a(f"buffer_store_dword v{HT}, off, s[8:11], s40 sc1"); a("s_mov_b64 exec, -1")
        def gu_ready():
            arrived(False)
            a("s_lshr_b32 s40, s17, 2"); a("s_lshl_b32 s40, s40, 9"); a(f"s_add_u32 s42, s40, {RF}"); a("s_mov_b32 s43, 1")
            a(f"v_lshlrev_b32 v{HT}, 2, v2"); self.poll(HT, "s42", "s43", sleep=8)
            a(f"v_min_u32 v{HT}, 47, v2"); a(f"v_lshlrev_b32 v{HT}, 2, v{HT}"); a("s_add_u32 s42, s42, 256"); self.poll(HT, "s42", "s43", sleep=8)
            a("s_lshl_b32 s40, s6, 2"); a("s_add_u32 s40, s40, s89")
            a(f"v_mov_b32 v{HT}, 1"); a("s_mov_b64 exec, 1"); a(f"buffer_store_dword v{HT}, off, s[8:11], s40 sc1"); a("s_mov_b64 exec, -1")
        def gu_aug():
            a("v_lshrrev_b32 v240, 5, v2"); a(f"v_mul_u32_u24 v241, {1792*4}, v240"); a("v_and_b32 v242, 31, v2"); a("v_min_u32 v242, 27, v242"); a("v_lshl_add_u32 v241, v242, 4, v241")
            a(f"s_mul_i32 s40, s17, {112*4}"); a(f"s_add_u32 s40, s40, {CS}")
            for p in range(8):
                a(f"buffer_load_dwordx4 {vr(208+4*p,4)}, v241, s[8:11], s40 offen sc1")
                if p < 7: a(f"s_add_u32 s40, s40, {2*1792*4}")
            a("v_lshrrev_b32 v243, 2, v242"); a("v_lshlrev_b32 v243, 8, v243"); a("v_lshl_add_u32 v243, v240, 7, v243"); a("v_and_b32 v244, 3, v242"); a("v_lshl_add_u32 v243, v244, 5, v243")
            a(f"v_add_u32 v243, {L_AUG + 768}, v243")
            a("s_waitcnt vmcnt(0)")
            for p in range(1, 8):
                for c in range(4): a(f"v_add_f32 v{208+c}, v{208+c}, v{208+4*p+c}")
            for c in range(4):
                a(f"v_cvt_pk_bf16_f32 v245, v{208+c}, v{208+c}"); a(f"v_and_b32 v{217+2*c}, 0xffff, v245")
                a("v_lshlrev_b32 v245, 16, v245"); a(f"v_sub_f32 v245, v{208+c}, v245"); a(f"v_cvt_pk_bf16_f32 v{216+2*c}, v{208+c}, v245")
            a("ds_write_b128 v243, v[216:219]"); a("ds_write_b128 v243, v[220:223] offset:16"); a("s_waitcnt lgkmcnt(0)")
        def pack_ready():
            a("s_lshl_b32 s42, s17, 8"); a(f"s_add_u32 s42, s42, {PFL}"); a("s_mov_b32 s43, 1")
            a(f"v_lshlrev_b32 v{HT}, 2, v2"); self.poll(HT, "s42", "s43", sleep=8)
        a(f"v_and_b32 v{HF_}, 3, v2"); a(f"v_lshlrev_b32 v{HF_}, 2, v{HF_}"); a(f"v_add_u32 v{HF_}, {L_HL}, v{HF_}")
        a("s_barrier")
        def ext():
            pass
        for it in range(2):
            st["it"] = it
            if it == 0:
                only(w3, zero)
                retire(4)
                wqkv([WK, WV], range(4, 8))
                only(w3, arrive)
                only(kvw, lambda: (need("kv1", "H"), colsum(0, 16, True)))
                retire(12)
                only(kvw, lambda: (need("kv2", "H"), colsum(16, 24, False)))
                retire(16)
                wqkv([WQ], range(0, 4), win=63)
                only(kvw, lambda: (need("kv3", "H"), colsum(24, 32, False), augfin()))
                hpub("augkv")
                wqkv([WQ], range(4, 8), win=63)
                a(f"s_mul_i32 s41, s86, {64*3584}"); a("s_lshl_b32 s40, s84, 7"); a("s_add_u32 s41, s41, s40"); a(f"s_mov_b32 s42, {8*3584}")
                a("s_cmp_eq_u32 s87, 0"); a("s_cselect_b32 s41, 0x7ff00000, s41")
                def coop():
                    a("s_cmp_eq_u32 s6, 0"); a("s_cselect_b64 s[56:57], s[52:53], s[48:49]"); a("s_cselect_b32 s58, s54, s50")
                    a("s_sub_u32 s40, 255, s2"); a("s_cmp_eq_u32 s6, 0"); a("s_cselect_b32 s41, s2, s40"); a("s_lshl_b32 s41, s41, 13"); a("s_movk_i32 s42, 1024")
                    a(f"v_mov_b32 v{HT+3}, v{V_LANE16}")
                only(["s_cmp_ge_u32 s80, 2"], coop)
                for o in range(8):
                    a(f"buffer_load_dwordx4 {vr(128+4*o,4)}, v{HT+3}, {SG}, s41 offen"); op(63)
                    if o < 7: a("s_add_u32 s41, s41, s42")
                retire(cnt["issued"] - 8); hpub("wq")
                only(w3, nbr)
                only(qw, lambda: (need("wq", "H"), colsum(0, 32, True), augfin()))
                only(["s_cmp_gt_u32 s87, 0"], lambda: (need("x"), rel_do()))
                only(["s_cmp_lt_u32 s6, 3"], lambda: (need("wq", "H"), pack()))
                hpub("augq")
                need("augq", "H")
            else:
                hpub("wq"); need("x"); hpub("augq")
            a(f"s_mov_b32 s42, {it + 1}")
            a("s_lshl_b32 s94, s17, 17"); a(f"s_add_u32 s94, s94, {KV + it*ITS}")
            self.stamp(14)
            need("kvf")
            self.stamp(15)
            a("s_mov_b64 exec, 3")
            self.poll(HV_PK, "s82", "s42")
            a("s_mov_b64 exec, -1")
            cnt["done"] = cnt["issued"]
            self.stamp(2)
            halo()
            flush()
            if it == 0:
                only(["s_cmp_gt_u32 s87, 0"], rel_sig)
                only(["s_cmp_lt_u32 s6, 3"], pack_st)
            self.stamp(3)
            for g in range(16): self.dma("s32", (2*(g%8) + g//8)*16*KB, RK + g*4*KB, voff=HV_R128, srd=SO); op()
            sig("wo")
            if it == 0:
                stash(OPT["st_a"]); flush(); gu_ready(); cnt["done"] = cnt["issued"]
                only(w3, gu_aug)
            self.stamp(5)
            need("q"); tile(0); tile(1, range(0, 3))
            need("h0"); tile(1, range(3, 8))
            if it == 0: stash(OPT.get("st_b", 8)); only(w3, pack_ready)
            self.stamp(4)
            if OPT.get("t2e", 1):
                need("wo1"); tile(2); sig("t2_3")
                for p in range(3): self.seen.add(("H", f"t2_{p}"))
                need("xch")
            else:
                need("wo"); tile(2, range(0, 2)); sig("t2_0")
                need("xch")
                for p in range(1, 4): tile(2, range(2*p, 2*p + 2)); sig(f"t2_{p}")
            if OPT.get("t3g"): need(f"g{OPT['t3g']}")
            tile(3); sig("t3")
            wdw(range(0, 7))
            for p, nm in enumerate(("g8", "g16", "g24", "g32")):
                need(nm); tile(4, range(2*p, 2*p + 2))
            sig("t4")
            tile(5); sig("t5"); tile(6); sig("t6")
            if it == 0: stash(9)
            need("t3"); wdw(range(7, 15))
            if it == 0: stash(8)
            need("t4"); wdw(range(15, 23))
            flush(); hpub("w0")
            if it == 0: stash(56)
            need("t5"); wdw(range(23, 31)); hpub("w23")
            need("t6"); wdw(range(31, 39)); hpub("w31")
            need("d7"); wdw(range(39, 46)); hpub("w39")
            if it == 0:
                need("d15"); wqp([WV], range(8))
                need("d23"); wqp([WK], range(4))
            need("d31"); wdw(range(46, 54)); hpub("w46")
            if it == 0:
                wqp([WK], range(4, 8))
                need("d39"); wqp([WQ], range(4))
            need("d45"); wdw(range(54, 56)); hpub("w54")
            if it == 0: wqp([WQ], range(4, 8))
            if it == 0:
                drain(); hpub("nkv")
                a("s_mov_b32 s23, 16")
        self.finish()

    def count_poll(self, soff, T):
        a = self.a; l = self.lab(); d = self.lab()
        a("s_mov_b32 s41, 0")
        l0 = self.lab(); a(f"s_branch {l0}"); a(f"{l}:"); a("s_sleep 8"); a(f"{l0}:")
        a(f"buffer_load_dwordx2 {vr(T,2)}, off, s[12:15], {soff} sc1"); a("s_waitcnt vmcnt(0)")
        a(f"v_readfirstlane_b32 s42, v{T}"); a(f"v_readfirstlane_b32 s43, v{T+1}")
        a("s_add_u32 s41, s41, 1"); a(f"s_cmp_gt_u32 s41, {OPT['spin']}"); a(f"s_cbranch_scc1 {d}")
        a("s_add_u32 s40, s42, s43"); a("s_mul_i32 s40, s40, 0x01010101"); a("s_lshr_b32 s40, s40, 24")
        a("s_cmp_lg_u32 s40, 16"); a(f"s_cbranch_scc1 {l}")
        a(f"{d}:")

    def build(self):
        a = self.a
        self.prologue()
        a("s_cmp_ge_u32 s3, 4"); a("s_cbranch_scc1 L_helper")
        self.compute()
        a("L_helper:")
        self.helper()
        assert self.used <= self.seen, self.used - self.seen
        a("L_end:"); a("s_endpgm")
        for x in self.ool: a.raw(x)
        return a.text()

def build():
    body = Main().build()
    return f"""; generated by dev/gen6.py
; @launch grid=(256,1,1) block=(512,1,1) lds={160*KB}
.amdgcn_target "amdgcn-amd-amdhsa--gfx950"
.text
{body}
.section .rodata,"a"
.p2align 6
.amdhsa_kernel {NAME}
  .amdhsa_next_free_vgpr 256
  .amdhsa_next_free_sgpr 102
  .amdhsa_accum_offset 256
  .amdhsa_group_segment_fixed_size 0
  .amdhsa_kernarg_size 80
  .amdhsa_user_sgpr_count 2
  .amdhsa_user_sgpr_kernarg_segment_ptr 1
  .amdhsa_system_sgpr_workgroup_id_x 1
.end_amdhsa_kernel
"""

if __name__ == "__main__":
    for x in sys.argv[2:]:
        if "=" in x: kk, v = x.split("="); OPT[kk] = int(v)
        else: OPT[x] = True
    open(sys.argv[1], "w").write(build())
```

```python
import sys, struct
from asmlib import *

NAME = "interleave_layers__sliding_block__glu_gated_glu__prompt_kernel"
KB = 1024
MB = 1 << 20
WQP  = 0
CS   = 0x180000
FL   = 0x1A0000
KVFL = 0x1A4000
RF   = 0x1AC000
PFL  = RF + 2048
AR   = RF + 8192
WGU  = 2*MB
STA  = WGU + 3584*KB; STB = STA + 256*KB
XA   = 6*MB; XB = 8*MB; OF = 10*MB
KV   = 12*MB
KVS  = 4*MB
HF   = 20*MB
WS_USED = 28*MB
ITS  = 32*MB
TS   = 0x6000000
WS_BYTES = 0x10000000
LOG2E = 1.4426950408889634
def f32(x): return "0x%08x" % struct.unpack("<I", struct.pack("<f", x))[0]
MF = "v_mfma_f32_32x32x16_bf16"
OPT = dict(stamp=False, force_slow=False, spin=400000, pre=10, cprio=2, fine=0, pf=0, st_a=14, kvflag=24, rot=1, win=6, hsc1=1)

P1, P2, P3, P4, PE, MISC = 0, 32*KB, 64*KB, 96*KB, 128*KB, 156*KB
LK = 108*KB; LV = LK + 12*KB; HS = 24*KB
L_AUG = MISC; L_ONES = MISC + 2560; L_HL = MISC + 2944; L_CP = L_HL + 16; L_MODE = L_HL + 32; L_DUMMY = MISC + 3072
DG = [0, 23, 31, 39, 46, 54]
DP = [7, 15, 23, 31, 39, 45]
CSEQ = ["x", "kv", "kvf", "q", "h0", "att", "wo1", "wo", "xr", "xch", "g8", "g16", "g24", "g32", "t3", "t4", "t5", "t6"] + [f"d{s}" for s in DP] + ["dx"]
HSEQ = ["kv0", "kv1", "kv2", "kv3", "augkv", "wq", "augq", "hk", "hv", "wo", "t2_0", "t2_1", "t2_2", "t2_3", "t3", "t4", "t5", "t6"] + [f"w{s}" for s in DG] + ["nkv"]
CV = {n: i + 1 for i, n in enumerate(CSEQ)}; HV = {n: i + 1 for i, n in enumerate(HSEQ)}
assert max(len(CSEQ), len(HSEQ)) < 64
XCH_WO = PE; XCH_DN = PE
L_X0 = P4
L_REL_ = 0
def wd_slot(s):
    for lo, hi, reg in ((0, 7, PE), (7, 15, P3), (15, 23, P2), (23, 31, P4), (31, 39, P1), (39, 46, PE), (46, 54, P4), (54, 56, PE + 16*KB)):
        if lo <= s < hi: return reg + (s - lo)*4*KB
GU_REG = [P1, P4, P2, P3, P2, P4, P1]
RQ, RK, RV = P1, P2, P3
F_O1, F_O2, F_X1, F_H1, F_H2, F_X2 = 1, 2, 3, 7, 9, 10
STASH = 32

V_LANE16 = 3; V_F0 = 4
V_TQ = 6
V_XOFF = 8
V_RSTD = 10; V_STD = 11; V_C1 = 12; V_TMP = 13; V_TS = 14; V_TS2 = 15
V_XAUG = 16
V_PX = 20; V_PH = 21; V_AUGA = 22; V_OUT = 23
V_RES = 24
V_PUBA = 0; V_FA = 35; V_FLG = 1; V_BASE = 9
V_FW = 32
V_EP = 36
ACC = [40, 56, 72, 88]
WR = 96; NW = 8
XR = 128
T0 = 104

class VM:
    def __init__(self, a): self.a = a; self.q = []
    def issue(self, tag): self.q.append(tag)
    def wait(self, tag):
        idx = max((i for i, t in enumerate(self.q) if t == tag), default=-1)
        if idx < 0: return
        n = len(self.q) - 1 - idx; assert n <= 63
        self.a(f"s_waitcnt vmcnt({n})"); del self.q[:idx + 1]
    def drain(self):
        self.a("s_waitcnt vmcnt(0)"); self.q = []

def stats_calc_list(d0, tmp):
    L = [f"v_mov_b32 v{tmp}, 0", f"v_mov_b32 v{tmp+1}, 0"]
    for i in range(8):
        L.append(f"v_dot2_f32_bf16 v{tmp}, v{d0+i}, s20, v{tmp}")
        L.append(f"v_dot2_f32_bf16 v{tmp+1}, v{d0+i}, v{d0+i}, v{tmp+1}")
    L += ["s_nop 2", f"v_permlane32_swap_b32 v{tmp}, v{tmp+1}", "s_nop 1", f"v_add_f32 v{tmp}, v{tmp}, v{tmp+1}"]
    return L

class Main:
    DBARS = list(range(0, 56, 7))
    def __init__(self):
        self.a = Asm(); self.nl = 0
        self.seen = set(); self.used = set()
        self.role = None; self.pend_stamp = None; self.ool = []; self.nw = NW; self.wr = WR
    def lab(self): self.nl += 1; return f"L{self.nl}"
    def emit(self, x):
        if callable(x): x()
        else: self.a(x)
    def pub(self, name):
        self.a(f"v_add_u32 v{V_TMP}, {CV[name]}, v{V_BASE}"); self.a(f"ds_write_b32 v{V_PUBA}, v{V_TMP}")
        self.seen.add(("C", name))
    def gate_rd(self, src): self.a(f"ds_read_b32 v{V_FLG}, v{V_FA} offset:{0 if src == 'H' else 16}")
    def gate_cmp(self, name, src="H", absval=None):
        a = self.a
        n = (HV if src == "H" else CV)[name]
        if absval is not None: a(f"s_movk_i32 s39, {absval}")
        else: a(f"s_add_u32 s39, s7, {n}")
        a(f"v_cmp_gt_u32 s[30:31], s39, v{V_FLG}")
        self.used.add((src, name))
    def gate_br(self, src="H", redo=[]):
        a = self.a; l1 = self.lab(); l2 = self.lab()
        a("s_cmp_eq_u64 s[30:31], 0"); a(f"s_cbranch_scc1 {l2}")
        a(f"{l1}:"); a("s_add_u32 s38, s38, 1"); a(f"s_cmp_gt_u32 s38, {OPT['spin']*16}"); a(f"s_cbranch_scc1 {l2}")
        a(f"ds_read_b32 v{V_FLG}, v{V_FA} offset:{0 if src == 'H' else 16}")
        for x in redo: a(x)
        a("s_waitcnt lgkmcnt(0)"); a(f"v_cmp_gt_u32 vcc, s39, v{V_FLG}"); a(f"s_cbranch_vccnz {l1}")
        a.pending.pop(l1, None)
        a(f"{l2}:")
    def gate_chk(self, name, src="H", absval=None):
        self.gate_cmp(name, src, absval); self.gate_br(src)
    def gate(self, name, src="H", absval=None):
        self.gate_rd(src); self.a("s_waitcnt lgkmcnt(0)"); self.gate_chk(name, src, absval)
    def stamp(self, i):
        if not OPT["stamp"]: return
        a = self.a
        a("s_memrealtime s[96:97]"); a("s_memtime s[98:99]"); a("s_waitcnt lgkmcnt(0)")
        if OPT.get("cnt"): a("s_lshl_b32 s98, s38, 12"); a("s_add_u32 s98, s98, s5")
        a(f"s_add_u32 s97, s23, {i}"); a(f"s_add_u32 m0, s97, s23"); a("s_nop 3")
        a(f"v_writelane_b32 v{V_TS}, s96, m0"); a(f"v_writelane_b32 v{V_TS2}, s98, m0")
    def store(self, instr, tag="st"):
        l1 = self.lab(); l2 = self.lab(); a = self.a
        if tag[0] == "h" and OPT.get("hsc1"):
            a(instr + " sc1"); self.vm.issue(tag); return
        a("s_cmp_lg_u32 s21, 0"); a(f"s_cbranch_scc1 {l1}"); a(instr); a(f"{l2}:")
        a.pending.pop(l1, None)
        self.ool += [f"{l1}:", "    " + instr + " sc1", f"    s_branch {l2}"]
        self.vm.issue(tag)
    def flag(self, val, tag="st"):
        a = self.a
        a(f"s_add_u32 s40, s23, {val}"); a(f"v_mov_b32 v{V_TMP}, s40"); self.vm.wait(tag); a("s_mov_b64 exec, 1")
        self.store(f"buffer_store_dword v{V_TMP}, off, s[8:11], s24", "fl_st"); a("s_mov_b64 exec, -1")
    def peek(self, voff):
        self.a(f"buffer_load_dword v{V_OUT}, v{voff}, s[8:11], s26 offen sc1"); self.vm.issue("pk")
    def check(self, voff, val):
        a = self.a; d = self.lab()
        a(f"s_add_u32 s61, s23, {val}")
        self.vm.wait("pk")
        a(f"v_cmp_gt_u32 vcc, s61, v{V_OUT}"); a(f"s_cbranch_vccz {d}")
        self.poll(voff, "s26", "s61")
        a(f"{d}:")
    def acquire(self):
        a = self.a; l = self.lab()
        a("s_cmp_eq_u32 s21, 0"); a(f"s_cbranch_scc1 {l}"); a("buffer_inv sc1"); a("s_waitcnt vmcnt(0)"); a(f"{l}:")
    def poll(self, voff, sbase, sval, srd="s[8:11]", sleep=0):
        a = self.a; l = self.lab(); d = self.lab()
        a("s_mov_b32 s41, 0")
        if sleep and OPT.get("pplain", 1):
            l0 = self.lab(); a(f"buffer_load_dword v{V_TMP}, v{voff}, {srd}, {sbase} offen"); a(f"s_branch {l0}"); a(f"{l}:"); a(f"s_sleep {sleep}")
            a(f"buffer_load_dword v{V_TMP}, v{voff}, {srd}, {sbase} offen sc1"); a(f"{l0}:")
        else:
            if sleep:
                l0 = self.lab(); a(f"s_branch {l0}"); a(f"{l}:"); a(f"s_sleep {sleep}"); a(f"{l0}:")
            else: a(f"{l}:")
            a(f"buffer_load_dword v{V_TMP}, v{voff}, {srd}, {sbase} offen sc1")
        if OPT.get("cnt"): a("s_add_u32 s5, s5, 1")
        a("s_add_u32 s41, s41, 1"); a(f"s_cmp_gt_u32 s41, {OPT['spin']}"); a(f"s_cbranch_scc1 {d}")
        a("s_waitcnt vmcnt(0)")
        a(f"v_cmp_gt_u32 vcc, {sval}, v{V_TMP}")
        a(f"s_cbranch_vccnz {l}")
        a(f"{d}:")
    def dma(self, sbase, const, lds, voff=V_LANE16, fl="", srd="s[8:11]", sl="s25"):
        a = self.a
        a(f"s_add_u32 s40, {sbase}, {const}")
        a(f"s_add_u32 m0, {sl}, {lds}")
        a(f"buffer_load_dwordx4 v{voff}, {srd}, s40 offen{fl} lds")
    def touch_txt(self, items):
        l = self.lab()
        L = ["s_cmp_lg_u32 s21, 0", f"s_cbranch_scc1 {l}", f"v_lshlrev_b32 v{V_TMP}, 7, v2"]
        for sal, n in items:
            L += sal
            m = (1 << n) - 1
            L += [f"s_mov_b32 exec_lo, {m & 0xffffffff:#x}", f"s_mov_b32 exec_hi, {m >> 32:#x}", f"buffer_load_dword v{V_OUT}, v{V_TMP}, s[8:11], s43 offen sc1"]
        L += ["s_mov_b64 exec, -1", f"{l}:"]
        return "\n".join(L)
    def stream(self, steps, look, fill=None):
        a = self.a
        reads = []; need = []
        for s in steps:
            reads += s["reads"]; need.append(len(reads) - 1)
        per = 2 if any(r["op"].endswith("tr_b16") for r in reads) else 1
        pre_rd = {}; pre_cmp = {}
        for i, r in enumerate(reads):
            if r.get("gate"):
                pre_rd[max(0, i - look - per)] = i; pre_cmp[max(0, i - per)] = i
        ng = sum(1 for r in reads if r.get("gate"))
        assert len(pre_rd) == ng and len(pre_cmp) == ng
        gi = sorted(pre_rd.values())
        assert all(b - a_ > look + per for a_, b in zip(gi, gi[1:])), gi
        nr = 0; q = []; done = [0]
        def wait(tag):
            idx = q.index(tag)
            if idx < done[0]: return
            n = len(q) - 1 - idx; assert n <= 15, n
            a(f"s_waitcnt lgkmcnt({n})"); done[0] = idx + 1
        def issue():
            nonlocal nr
            r = reads[nr]
            if nr in pre_rd: self.gate_rd(reads[pre_rd[nr]].get("gsrc", "H")); q.append(("g", pre_rd[nr]))
            if nr in pre_cmp:
                g = reads[pre_cmp[nr]]
                wait(("g", pre_cmp[nr])); self.gate_cmp(g["gate"], g.get("gsrc", "H"), g.get("absval"))
            if r.get("gate"): self.gate_br(r.get("gsrc", "H"))
            if r.get("vm") is not None: self.vm.wait(r["vm"])
            n = 4 if r["op"] == "ds_read_b128" else 2
            fm = r["fam"]; off = r["off"]
            reg = fm[off >> 16] if isinstance(fm, list) else fm
            a(f"{r['op']} {vr(r['d'], n)}, v{reg} offset:{off & 0xffff}"); q.append(nr)
            if r.get("pub"): self.pub(r["pub"]); q.append(("p", nr))
            nr += 1
        for i, s in enumerate(steps):
            while nr < len(reads) and nr <= need[i] + (look if i == 0 else 0): issue()
            for x in s.get("pre", []): self.emit(x)
            wait(need[i + 1] if (s.get("pair") and i + 1 < len(steps)) else need[i])
            a(s["mf"])
            nxt = need[i + 1] if i + 1 < len(steps) else need[i]
            while nr < len(reads) and nr <= nxt + look: issue()
            for x in s.get("post", []): self.emit(x)
            if fill:
                for f in fill(i): self.emit(f)
            if self.pend_stamp: self.stamp(self.pend_stamp); self.pend_stamp = None
    def rd128(self, w, off, gate=None, pub=None): return [dict(op="ds_read_b128", d=w, fam=[V_F0, V_F0 + 1], off=off, gate=gate, pub=pub)]
    def rdtr(self, w, fam, off, d2, gate=None, pub=None, absval=None):
        return [dict(op="ds_read_b64_tr_b16", d=w, fam=fam, off=off, gate=gate, absval=absval), dict(op="ds_read_b64_tr_b16", d=w + 2, fam=fam, off=off + d2, pub=pub)]
    def tr_addr16(self, dst, t0, t1):
        a = self.a
        a(f"v_lshrrev_b32 v{t0}, 5, v2"); a(f"v_lshlrev_b32 v{dst}, 9, v{t0}")
        a(f"v_bfe_u32 v{t0}, v2, 2, 2"); a(f"v_lshl_add_u32 v{dst}, v{t0}, 6, v{dst}")
        a(f"v_bfe_u32 v{t0}, v2, 4, 1"); a(f"v_lshl_add_u32 v{dst}, v{t0}, 5, v{dst}")
        a(f"v_and_b32 v{t0}, 1, v2"); a(f"v_lshl_add_u32 v{dst}, v{t0}, 4, v{dst}")
        a(f"v_bfe_u32 v{t0}, v2, 1, 1"); a(f"v_lshl_add_u32 v{dst}, v{t0}, 3, v{dst}")

    def prologue(self):
        a = self.a
        a.raw(f".globl {NAME}"); a.raw(".p2align 8"); a.raw(f".type {NAME},@function"); a.raw(f"{NAME}:")
        a(f"s_cmp_ge_u32 s2, {0 if OPT.get('empty') else 256}"); a("s_cbranch_scc1 L_end")
        if OPT["stamp"]: a("s_memrealtime s[100:101]")
        a("s_load_dwordx4 s[64:67], s[0:1], 0")
        a("s_load_dwordx2 s[8:9], s[0:1], 72")
        a("s_load_dwordx2 s[68:69], s[0:1], 16")
        a("s_load_dwordx8 s[72:79], s[0:1], 32")
        a("s_load_dwordx2 s[70:71], s[0:1], 64")
        a(f"s_mov_b32 s10, {WS_BYTES}"); a("s_mov_b32 s11, 0x20000")
        a("v_lshrrev_b32 v1, 6, v0"); a("v_and_b32 v2, 63, v0")
        a("v_readfirstlane_b32 s3, v1")
        a(f"v_lshlrev_b32 v{V_LANE16}, 4, v2")
        a("s_and_b32 s4, s2, 7"); a("s_lshr_b32 s5, s2, 3"); a("s_and_b32 s6, s3, 3")
        a("s_lshl_b32 s16, s4, 1"); a("s_lshr_b32 s40, s5, 4"); a("s_add_u32 s16, s16, s40")
        a("s_and_b32 s17, s5, 15")
        a("s_lshr_b32 s18, s17, 3"); a("s_and_b32 s19, s17, 7")
        a("s_mov_b32 s20, 0x3f803f80"); a("s_mov_b32 s21, 0"); a("s_mov_b32 s22, 0"); a("s_mov_b32 s23, 0")
        a("s_lshl_b32 s26, s16, 9"); a(f"s_add_u32 s26, s26, {FL}")
        a("s_lshl_b32 s24, s17, 5"); a("s_lshl_b32 s40, s3, 2"); a("s_add_u32 s24, s24, s40"); a("s_add_u32 s24, s24, s26")
        a("s_lshl_b32 s25, s6, 10")
        a("s_lshl_b32 s27, s16, 2"); a("s_add_u32 s27, s27, s6")
        if OPT["rot"]: a("s_add_u32 s28, s16, s17"); a("s_lshl_b32 s28, s28, 2"); a("s_and_b32 s28, s28, 31")
        else: a("s_mov_b32 s28, 0")
        a("s_mov_b32 s35, 0"); a("s_mov_b32 s36, 0")
        a(f"v_mov_b32 v{V_TS}, 0"); a(f"v_mov_b32 v{V_TS2}, 0")
        a("s_xor_b32 s40, s3, 4"); a("s_lshl_b32 s40, s40, 2"); a(f"s_add_u32 s40, s40, {L_HL}")
        a(f"v_lshlrev_b32 v{V_PUBA}, 2, v2"); a(f"v_add_u32 v{V_PUBA}, {L_DUMMY}, v{V_PUBA}"); a(f"v_writelane_b32 v{V_PUBA}, s40, 0")
        a(f"v_mov_b32 v{V_BASE}, 0"); a("s_mov_b32 s7, 0"); a("s_mov_b32 s38, 0")
        a(f"ds_write_b32 v{V_PUBA}, v{V_BASE}")
        a("s_waitcnt lgkmcnt(0)"); a("s_barrier")

    def attention(self):
        a = self.a
        KF = XR + 8; S = [XR + 44, XR + 60, XR + 76]; NM = [XR + 92, XR + 108]; MX = [XR + 124, XR + 125]; T = XR + 126
        O = [ACC[2], ACC[3]]; VA = ACC[1]; KA = VA + 9
        VF = [104, 112]; P = [120, ACC[0] + 8]; BM = ACC[0]; NEG = KA + 2
        a("v_and_b32 v104, 31, v2"); a("v_lshrrev_b32 v105, 5, v2")
        a(f"v_and_b32 v{KA}, 0x13, v104"); a("v_bfe_u32 v106, v104, 2, 1"); a(f"v_lshl_add_u32 v{KA}, v106, 3, v{KA}")
        a("v_bfe_u32 v106, v104, 3, 1"); a(f"v_lshl_add_u32 v{KA}, v106, 2, v{KA}")
        a(f"v_lshlrev_b32 v{KA}, 4, v{KA}"); a(f"v_lshl_add_u32 v{KA}, v105, 9, v{KA}")
        a(f"s_add_u32 s41, s25, {LK}"); a(f"v_add_u32 v{KA}, s41, v{KA}")
        a("v_bfe_u32 v106, v2, 2, 2"); a("v_lshl_add_u32 v106, v105, 3, v106"); a("v_lshlrev_b32 v106, 4, v106")
        a("v_and_b32 v107, 1, v2"); a("v_lshl_add_u32 v106, v107, 9, v106")
        a("v_bfe_u32 v107, v2, 1, 1"); a("v_lshl_add_u32 v106, v107, 3, v106")
        a(f"s_add_u32 s41, s25, {LV}"); a("v_add_u32 v106, s41, v106")
        a("v_bfe_u32 v107, v2, 4, 1"); a("v_cmp_eq_u32 vcc, 1, v107")
        a(f"v_mov_b32 v109, {HS}"); a(f"v_cndmask_b32_e64 v{KA+1}, v109, 0, vcc")
        a("s_sub_i32 s42, 8, s27")
        for i in range(9):
            a(f"s_cmp_gt_i32 s42, {i}"); a("s_cselect_b32 s41, 8, 0"); a(f"s_add_u32 s41, s41, {L_ONES}")
            a(f"v_mov_b32 v107, s41"); a(f"v_add_u32 v108, {i*KB}, v106")
            a(f"v_cndmask_b32 v{VA+i}, v108, v107, vcc")
        a("v_mov_b32 v107, 0xffff"); a("v_mov_b32 v108, 0xffff0000")
        for p in range(8):
            a(f"v_cndmask_b32_e64 v109, v107, 0, s[{64+4*p}:{65+4*p}]"); a(f"v_cndmask_b32_e64 v110, v108, 0, s[{66+4*p}:{67+4*p}]")
            a(f"v_or_b32 v{BM+p}, v109, v110")
        a(f"v_mov_b32 v{NEG}, {f32(-1e30)}")
        return dict(KF=KF, S=S, NM=NM, O=O, VA=VA, VF=VF, P=P, BM=BM, MX=MX, T=T, KA=KA, NEG=NEG)

    def attention_run(self, r, halo_k, halo_v, early_a, redo_a):
        a = self.a
        KF, S, NM, O, VA, VF, P, BM, MX, T, KA, NEG = (r[x] for x in "KF S NM O VA VF P BM MX T KA NEG".split())
        def kread(hh, i, d=None): a(f"ds_read_b128 {vr(KF+4*(i if d is None else d),4)}, v{KA} offset:{hh*HS + i*KB}")
        def vrd(reg, vf):
            for t in range(2):
                for u in range(2): a(f"ds_read_b64_tr_b16 {vr(vf+4*t+2*u,2)}, v{reg} offset:{t*256 + u*64}")
        def vread(hh, i, vf):
            vrd(VA + i, vf)
            if hh == 0: a(f"v_add_u32 v{VA+i}, v{KA+1}, v{VA+i}")
        def qk(hh, dst, i, c): a(f"{MF} {vr(dst,16)}, {vr(KF+4*i,4)}, {vr(XR+4*hh,4)}, {c}")
        def pv(hh, vf, p, t, first=False): a(f"{MF} {vr(O[hh],16)}, {vr(vf+4*t,4)}, {vr(p+4*t,4)}, {'0' if first else vr(O[hh],16)}")
        def mx(b, first=False):
            lo = 0
            if first:
                a(f"v_max3_f32 v{MX[0]}, v{b}, v{b+1}, v{b+2}"); a(f"v_max3_f32 v{MX[1]}, v{b+3}, v{b+4}, v{b+5}"); lo = 6
            for n, q in enumerate(range(lo, 16, 2)): a(f"v_max3_f32 v{MX[n%2]}, v{MX[n%2]}, v{b+q}, v{b+q+1}")
        def mxfin(hh):
            a(f"v_max_f32 v{MX[0]}, v{MX[0]}, v{MX[1]}"); a(f"v_mov_b32 v{MX[1]}, v{MX[0]}")
            a(f"v_permlane32_swap_b32 v{MX[0]}, v{MX[1]}"); a("s_nop 1"); a(f"v_max_f32 v{MX[0]}, v{MX[0]}, v{MX[1]}")
            for q in range(16): a(f"v_sub_f32 v{NM[hh]+q}, 0, v{MX[0]}")
        def mask(b, diag):
            for q in range(16):
                a(f"v_cndmask_b32_e64 v{b+q}, v{NEG}, v{b+q}, s[{64+2*q}:{65+2*q}]" if diag else f"v_cndmask_b32_e64 v{b+q}, v{b+q}, v{NEG}, s[{64+2*q}:{65+2*q}]")
        def ex(b, lo, hi):
            for q in range(lo, hi): a(f"v_exp_f32 v{b+q}, v{b+q}")
        def cv(p, b, lo, hi):
            for q in range(lo, hi): a(f"v_cvt_pk_bf16_f32 v{p+q}, v{b+2*q}, v{b+2*q+1}")
        def fin(hh, bad=None):
            a(f"v_rcp_f32 v{T}, v{O[hh]+8}")
            if bad:
                a(f"v_cmp_nle_f32 vcc, v{O[hh]+8}, v{NEG+1}")
            for q in range(8): a(f"v_mul_f32 v{O[hh]+q}, v{T}, v{O[hh]+q}")
            if bad: a(f"s_cbranch_vccnz {bad}"); a.pending.pop(bad, None)
            for q in range(4): a(f"v_cvt_pk_bf16_f32 v{V_EP+q}, v{O[hh]+2*q}, v{O[hh]+2*q+1}")
            self.store(f"buffer_store_dwordx4 {vr(V_EP,4)}, v{V_LANE16}, s[8:11], s37 offen offset:{hh*KB}")
        a(f"v_mov_b32 v{NEG+1}, {f32(2.0**OPT.get('thr', 40))}")
        kread(0, 8); kread(1, 8, 7); vread(0, 8, VF[0]); vread(1, 8, VF[1])
        a("s_waitcnt lgkmcnt(9)"); qk(0, S[0], 8, "0")
        a("s_waitcnt lgkmcnt(8)"); qk(1, S[1], 7, "0")
        for hh in range(2):
            b = S[hh]
            mask(b, True); mx(b, True); mxfin(hh)
            for q in range(16): a(f"v_sub_f32 v{b+q}, v{b+q}, v{MX[0]}")
            ex(b, 0, 16); cv(P[hh], b, 0, 8)
            a("s_waitcnt lgkmcnt(0)")
            pv(hh, VF[hh], P[hh], 0, True); pv(hh, VF[hh], P[hh], 1)
        if OPT["fine"] > 2: self.stamp(15)
        halo_k()
        order = [7, 6, 5, 4, 3, 2, 1, 0]
        blocks = [(hh, i) for hh in range(2) for i in order]
        for i in order: kread(0, i)
        a("s_waitcnt lgkmcnt(7)"); qk(0, S[0], 7, vr(NM[0], 16))
        a("s_waitcnt lgkmcnt(6)"); qk(0, S[1], 6, vr(NM[0], 16))
        halo_v()
        F3 = (lambda i: self.stamp(i)) if OPT["fine"] > 2 else (lambda i: None)
        F3(16)
        kread(1, 7); kread(1, 6)
        pend = None
        for n, (hh, i) in enumerate(blocks):
            b = S[n % 3]; vf = VF[n % 2]; p = P[n % 2]
            ex(b, 0, 4)
            vread(hh, i, vf)
            if pend: pv(*pend)
            ex(b, 4, 10)
            kr = False
            if n + 2 < 16:
                h2, i2 = blocks[n + 2]
                qk(h2, S[(n + 2) % 3], i2, vr(NM[h2], 16))
                if h2 == 0: kread(1, i2); kr = True
            if n == OPT.get("pk", 15): self.peek(V_PH)
            ex(b, 10, 16)
            if n == 8: F3(17); fin(0, "L_redo0"); self.pub("h0"); F3(18)
            if n == OPT.get("fo1", 11): F3(19); self.flag(F_O1); F3(20)
            cv(p, b, 0, 8)
            if i == 0:
                for q in range(8): a(f"v_and_b32 v{p+q}, v{BM+q}, v{p+q}")
            a("s_waitcnt lgkmcnt(1)" if (kr or n == 8) else "s_waitcnt lgkmcnt(0)")
            pv(hh, vf, p, 0)
            pend = (hh, vf, p, 1)
        pv(*pend)
        fin(1, "L_redo1")
        self.pub("att")
        lb = self.lab(); lj = self.lab()
        a(f"s_add_u32 s61, s23, {F_O1}"); self.vm.wait("pk")
        a(f"v_cmp_gt_u32 vcc, s61, v{V_OUT}"); a(f"s_cbranch_vccz {lb}")
        qs = list(self.vm.q)
        a("L_att_late:")
        self.flag(F_O2); redo_a(a); a("s_waitcnt vmcnt(0)"); a(f"s_branch {lj}")
        a(f"{lb}:")
        self.vm.q = qs
        early_a()
        self.flag(F_O2)
        a(f"{lj}:")
        main = self.a; saved_q = list(self.vm.q)
        self.a = a = Asm(); self.vm.a = a
        def redo(hh):
            a("s_nop 15"); a("s_waitcnt vmcnt(0) lgkmcnt(0)")
            for i in range(9): kread(hh, i)
            a("s_waitcnt lgkmcnt(0)")
            for i in (8, 0, 1, 2, 3, 4, 5, 6, 7):
                qk(hh, S[0], i, "0")
                if i in (0, 8): mask(S[0], i == 8)
                mx(S[0], i == 8)
            mxfin(hh)
            for i in range(9):
                if hh == 0: a(f"v_sub_u32 v{T}, v{VA+i}, v{KA+1}")
                vrd(T if hh == 0 else VA + i, VF[0])
                qk(hh, S[0], i, vr(NM[hh], 16))
                if i in (0, 8): mask(S[0], i == 8)
                ex(S[0], 0, 16); cv(P[0], S[0], 0, 8)
                a("s_waitcnt lgkmcnt(0)")
                pv(hh, VF[0], P[0], 0, i == 0); pv(hh, VF[0], P[0], 1)
            fin(hh)
        a("L_redo0:")
        redo(0); self.pub("h0"); self.vm.q = ["st"]; self.flag(F_O1)
        a("L_redo1:")
        redo(1); self.pub("att")
        a("s_waitcnt vmcnt(0)"); a("s_branch L_att_late")
        self.ool += a.out
        self.a = main; self.vm.a = main; self.vm.q = saved_q

    def ln_stats(self, d):
        L = []
        for n in (8, 4, 2, 1):
            for i in range(n): L.append(f"v_add_f32 v{d+i}, v{d+i}, v{d+i+n}")
        L += [f"v_mov_b32 v{d+1}, v{d}", f"v_permlane32_swap_b32 v{d}, v{d+1}", "s_nop 1",
              f"v_mul_f32 v{d}, {f32(-1.0/512)}, v{d}", f"v_mul_f32 v{d+1}, {f32(1.0/512)}, v{d+1}",
              f"v_fma_f32 v{d+1}, -v{d}, v{d}, v{d+1}", f"v_max_f32 v{d+1}, 0, v{d+1}", f"v_add_f32 v{d+1}, {f32(1e-5)}, v{d+1}",
              f"v_rsq_f32 v{V_RSTD}, v{d+1}", f"v_sqrt_f32 v{V_STD}, v{d+1}",
              f"v_cvt_pk_bf16_f32 v{V_XAUG}, v{d}, v{d}",
              f"v_and_b32 v{d+2}, 0xffff0000, v{V_XAUG}", f"v_sub_f32 v{d+2}, v{d}, v{d+2}", f"v_mov_b32 v{d+3}, 0",
              f"v_cvt_pk_bf16_f32 v{V_XAUG+1}, v{d+2}, v{d+3}",
              f"v_cndmask_b32_e64 v{V_XAUG}, 0, v{V_XAUG}, s[62:63]", f"v_cndmask_b32_e64 v{V_XAUG+1}, 0, v{V_XAUG+1}, s[62:63]",
              f"v_mul_f32 v{V_C1}, {f32(-LOG2E)}, v{V_RSTD}"]
        return L
    def wreg(self):
        w = self.wr + 4 * (self.wc % self.nw); self.wc += 1; return w
    def aug_step(self, acc, augidx, bn=None, look=None):
        w = self.wreg()
        s = dict(reads=[dict(op="ds_read_b64", d=w, fam=V_AUGA, off=augidx * 256, gate=bn)], mf=f"{MF} {vr(acc,16)}, {vr(w,4)}, {vr(V_XAUG,4)}, {vr(acc,16)}")
        return s
    def x_pass1(self, xl, sst, local, wread, augs, augbar, NT=2):
        a = self.a; vm = self.vm
        PRE = OPT["pre"] if NT == 2 else OPT.get("pre3", OPT["pre"]); STD = ACC[NT]
        def X(kc):
            def f(): xl(kc); vm.issue(f"x{kc}")
            return f
        XS = STD + 4
        def piece(p):
            a(f"s_add_u32 s41, s28, {4*p}"); a("s_and_b32 s41, s41, 31"); a("s_lshl_b32 s41, s41, 5"); a("s_add_u32 s41, s41, s55")
            for i in range(4): self.dma("s41", i*8*KB, L_X0 + (p%3)*16*KB + i*KB, voff=XS + i%2, srd="s[44:47]", sl="s42"); vm.issue(f"pc{p}")
        def dots(lo, hi):
            for kc in range(lo, hi):
                for i in range(4):
                    r = XR + 4 * kc + i
                    a(f"v_dot2c_f32_bf16 v{STD + 2*(i%2)}, s20, v{r}"); a(f"v_dot2c_f32_bf16 v{STD + 1 + 2*(i%2)}, v{r}, v{r}")
        def xrd(p): return [dict(op="ds_read_b128", d=XR+16*p+4*q, fam=XS+2+q, off=(p%3)*16*KB, vm=(f"pc{p}" if q == 0 else None)) for q in range(4)]
        def piece_part(p, i):
            if i == 0: a(f"s_add_u32 s33, s28, {4*p}"); a("s_and_b32 s33, s33, 31"); a("s_lshl_b32 s33, s33, 5"); a("s_add_u32 s33, s33, s55")
            self.dma("s33", i*8*KB, L_X0 + (p%3)*16*KB + i*KB, voff=XS + i%2, srd="s[44:47]", sl="s42"); vm.issue(f"pc{p}")
        def fin0():
            dots(28, 32)
            a(f"v_add_f32 v{STD}, v{STD}, v{STD+2}"); a(f"v_add_f32 v{STD+1}, v{STD+1}, v{STD+3}")
            a(f"v_permlane32_swap_b32 v{STD}, v{STD+1}"); a("s_nop 1"); a(f"v_add_f32 v{STD}, v{STD}, v{STD+1}")
            for x in self.ln_stats(STD)[15:]: a(x)
        if local == "start":
            a(f"v_lshrrev_b32 v{XS+3}, 4, v2"); a(f"v_and_b32 v{XS}, 7, v2"); a(f"v_xor_b32 v{XS}, v{XS+3}, v{XS}"); a(f"v_lshlrev_b32 v{XS}, 4, v{XS}")
            a(f"v_lshrrev_b32 v{XS+3}, 3, v2"); a(f"v_lshl_add_u32 v{XS}, v{XS+3}, 10, v{XS}"); a(f"v_xor_b32 v{XS+1}, 64, v{XS}")
            a("s_lshl_b32 s42, s6, 12")
            a("s_waitcnt lgkmcnt(0)"); a("s_mov_b64 s[44:45], s[64:65]")
            piece(0)
            return
        if local:
            piece(1); piece(2)
            for i in range(4): a(f"v_mov_b32 v{STD+i}, 0")
            a(f"v_bfe_u32 v{XS+2}, v2, 1, 3"); a(f"v_lshrrev_b32 v{XS+3}, 5, v2"); a(f"v_xor_b32 v{XS+2}, v{XS+3}, v{XS+2}"); a(f"v_lshlrev_b32 v{XS+2}, 4, v{XS+2}")
            a(f"v_and_b32 v{XS+3}, 31, v2"); a(f"v_lshl_add_u32 v{XS+2}, v{XS+3}, 7, v{XS+2}")
            a(f"s_add_u32 s41, s42, {L_X0}"); a(f"v_add_u32 v{XS+2}, s41, v{XS+2}")
            for q in range(1, 4): a(f"v_xor_b32 v{XS+2+q}, {32*q}, v{XS+2}")
        else:
            for i in range(4): a(f"buffer_load_dwordx4 {vr(STD+4*i,4)}, v{V_LANE16}, s[8:11], {sst} offen offset:{1024*i} sc1")
            for kc in range(PRE): X(kc)()
        steps = []
        st = self.ln_stats(STD)
        for kc in range(32):
            for t in range(NT):
                w = self.wreg()
                s = dict(reads=wread(w, t, kc), mf=f"{MF} {vr(ACC[t],16)}, {vr(w,4)}, {vr(XR+4*kc,4)}, {'0' if kc == 0 else vr(ACC[t],16)}", post=[])
                if local:
                    p = kc // 4
                    if t == 0 and kc % 4 == 0:
                        s["reads"] = xrd(p) + s["reads"]
                        if p: s["pre"] = [lambda p=p: dots(4*p - 4, 4*p)]
                        if OPT["fine"] == 2: s["post"].append(lambda p=p: self.stamp(16 + p))
                    n8 = 2 * (kc % 4) + t
                    if n8 < 4 and p + 3 < 8: s["post"].append(lambda p=p, n8=n8: piece_part(p + 3, n8))
                    if n8 == 4 and p == 4: s["post"].append(lambda: self.pub("x"))
                    if t == 1 and kc == 31: s["post"].append(fin0)
                elif t == 0:
                    s["pre"] = [lambda kc=kc: vm.wait(f"x{kc}")]
                    if kc + PRE < 32: s["post"].append(X(kc + PRE))
                elif kc >= 2:
                    s["post"] += st[:3]; st = st[3:]
                steps.append(s)
        for t in range(NT): steps.append(self.aug_step(ACC[t], augs[t], augbar if t == 0 else None))
        return steps

    def res_gemm(self, nsteps, slot, areg, aload, pre_issued, PRE, gates, pubs, xch, xpub, pre_x, hooks={}):
        a = self.a; vm = self.vm
        for i in range(8):
            a(f"v_lshlrev_b32 v{ACC[0]+2*i}, 16, v{V_RES+i}"); a(f"v_and_b32 v{ACC[0]+2*i+1}, 0xffff0000, v{V_RES+i}")
        a(f"v_xor_b32 v{V_EP}, 64, v{V_FW}"); a(f"v_add_u32 v{V_EP+1}, 0x10000, v{V_EP}"); a(f"v_add_u32 v{V_EP+2}, 0x20000, v{V_EP}")
        nxt = [pre_issued]
        def upto(n):
            while nxt[0] < min(n, nsteps): aload(nxt[0]); nxt[0] += 1
        steps = []; self.wc = 0; self.wr = WR; self.nw = NW
        fo = [V_FW, V_FW + 1, V_FW + 2]; ft = [V_EP, V_EP + 1, V_EP + 2]
        order = [(s, t) for s in range(nsteps - 2) for t in range(2)] + [(nsteps - 2, 1), (nsteps - 1, 1), (nsteps - 2, 0), (nsteps - 1, 0)]
        first = {}; last = {}
        for n, (s, t) in enumerate(order): first.setdefault(s, n); last[s] = n
        for n, (s, t) in enumerate(order):
            w = self.wreg()
            c = vr(ACC[t], 16) if (t == 0 or s > 0) else "0"
            st = dict(reads=self.rdtr(w, fo if t == 0 else ft, slot(s), 512, gates.get(s) if first[s] == n else None, pubs.get(s) if last[s] == n else None),
                      mf=f"{MF} {vr(ACC[t],16)}, {vr(w,4)}, {vr(areg(s),4)}, {c}")
            if first[s] == n and s == pre_x[0]: st["reads"][0].update(gate=pre_x[1], gsrc="C")
            if first[s] == n: st["pre"] = ([lambda s=s: hooks[s](upto)] if s in hooks else []) + [lambda s=s: vm.wait(f"a{s}")]
            elif PRE: st["post"] = [lambda s=s: upto(s + 1 + PRE)]
            steps.append(st)
        a(f"s_xor_b32 s40, s6, 1"); a("s_lshl_b32 s40, s40, 12"); a(f"s_add_u32 s40, s40, {xch}"); a(f"v_add_u32 v{V_EP+3}, s40, v{V_LANE16}")
        self.stream(steps, look=10)
        if OPT["fine"] and nsteps == 56: self.stamp(9)
        for i in range(4): a(f"ds_write_b128 v{V_EP+3}, {vr(ACC[1]+4*i,4)} offset:{i*KB}")
        self.pub(xpub)
        a(f"v_xor_b32 v{V_EP+3}, 4096, v{V_EP+3}")
        rds = [f"ds_read_b128 {vr(ACC[2]+4*i,4)}, v{V_EP+3} offset:{i*KB}" for i in range(4)]
        self.gate_rd("C")
        for x in rds: a(x)
        a("s_waitcnt lgkmcnt(4)")
        self.gate_cmp(xpub, "C"); self.gate_br("C", redo=rds)
        for i in range(4):
            a(f"s_waitcnt lgkmcnt({3-i})")
            for q in range(4): a(f"v_add_f32 v{ACC[0]+4*i+q}, v{ACC[0]+4*i+q}, v{ACC[2]+4*i+q}")
            for q in range(2): a(f"v_cvt_pk_bf16_f32 v{V_RES+2*i+q}, v{ACC[0]+4*i+2*q}, v{ACC[0]+4*i+2*q+1}")

    def x_store(self, sx, sst, flagval):
        a = self.a
        self.store(f"buffer_store_dwordx4 {vr(V_RES,4)}, v{V_LANE16}, s[8:11], {sx} offen")
        self.store(f"buffer_store_dwordx4 {vr(V_RES+4,4)}, v{V_LANE16}, s[8:11], {sx} offen offset:1024")
        for x in stats_calc_list(V_RES, ACC[1]): a(x)
        self.store(f"buffer_store_dword v{ACC[1]}, v{V_LANE16}, s[8:11], {sst} offen")
        self.flag(flagval)

    def compute(self):
        a = self.a; self.role = "C"; self.vm = vm = VM(a)
        a(f"s_setprio {OPT['cprio']}")
        a("v_and_b32 v104, 31, v2"); a("v_lshrrev_b32 v105, 5, v2")
        a(f"v_lshlrev_b32 v{V_XOFF}, 10, v104"); a(f"v_lshl_add_u32 v{V_XOFF}, v105, 4, v{V_XOFF}")
        a("s_lshl_b32 s55, s27, 15")
        a(f"s_mov_b32 s46, {2048*1024}"); a("s_mov_b32 s47, 0x20000")
        self.x_pass1(None, None, "start", None, None, None)
        a(f"s_mov_b32 s14, {2048*1024}"); a("s_mov_b32 s15, 0x20000")
        a("s_lshr_b32 s50, s6, 1"); a("s_and_b32 s51, s6, 1")
        a("s_lshl_b32 s48, s18, 1"); a("s_add_u32 s48, s48, s50"); a("s_mov_b32 s52, s48")
        a("s_lshl_b32 s40, s16, 2"); a("s_add_u32 s48, s48, s40")
        a("s_lshl_b32 s49, s19, 1"); a("s_add_u32 s49, s49, s51")
        a("s_lshl_b32 s53, s48, 15"); a("s_lshl_b32 s40, s49, 11"); a("s_add_u32 s53, s53, s40")
        a("s_lshl_b32 s54, s48, 12"); a("s_lshr_b32 s40, s49, 2"); a("s_lshl_b32 s40, s40, 10"); a("s_add_u32 s54, s54, s40")
        a("s_and_b32 s40, s49, 3"); a("s_lshl_b32 s40, s40, 2"); a("s_add_u32 s54, s54, s40")
        a(f"v_mov_b32 v{V_F0}, v{V_LANE16}"); a(f"v_add_u32 v{V_F0+1}, 0x10000, v{V_LANE16}")
        self.tr_addr16(V_TQ, 106, 107); a(f"v_add_u32 v{V_TQ+1}, 0x10000, v{V_TQ}")
        a(f"v_lshlrev_b32 v{V_FW}, 10, v105"); a("v_bfe_u32 v106, v2, 2, 2"); a(f"v_lshl_add_u32 v{V_FW}, v106, 7, v{V_FW}")
        a("v_bfe_u32 v106, v2, 3, 1"); a("v_xor_b32 v106, s51, v106"); a(f"v_lshl_add_u32 v{V_FW}, v106, 6, v{V_FW}")
        a(f"v_and_b32 v106, 63, v{V_TQ}"); a(f"v_add_u32 v{V_FW}, v106, v{V_FW}")
        a("s_lshl_b32 s40, s51, 11"); a(f"v_add_u32 v{V_FW}, s40, v{V_FW}")
        a(f"v_add_u32 v{V_FW+1}, 0x10000, v{V_FW}"); a(f"v_add_u32 v{V_FW+2}, 0x20000, v{V_FW}")
        a("v_bfe_u32 v106, v2, 1, 3"); a("v_and_b32 v107, 1, v2"); a("v_and_b32 v108, 7, v2")
        a("s_lshl_b32 s40, s50, 8"); a("s_lshl_b32 s41, s51, 3"); a("s_add_u32 s40, s40, s41")
        a(f"v_lshlrev_b32 v{V_PX}, 5, v106"); a(f"v_lshl_add_u32 v{V_PX}, v107, 2, v{V_PX}"); a(f"v_add_u32 v{V_PX}, s40, v{V_PX}")
        a("s_lshl_b32 s40, s51, 8"); a("s_lshl_b32 s41, s52, 2"); a("s_add_u32 s40, s40, s41")
        a(f"v_lshlrev_b32 v{V_PH}, 5, v108"); a(f"v_add_u32 v{V_PH}, s40, v{V_PH}")
        a(f"v_lshlrev_b32 v{V_AUGA}, 3, v104"); a(f"v_add_u32 v{V_AUGA}, {L_AUG}, v{V_AUGA}")
        a(f"v_mov_b32 v{V_XAUG+2}, 0"); a(f"v_mov_b32 v{V_XAUG+3}, 0")
        for r in range(WR, WR + 32, 4): a(f"v_mov_b32 v{r+2}, 0") if False else None
        a("v_cmp_gt_u32 s[62:63], 32, v2")
        a("v_lshlrev_b32 v106, 3, v105"); a("v_sub_u32 v106, v104, v106")
        a("s_mov_b64 s[12:13], s[78:79]")
        if OPT["stamp"]: a(f"v_writelane_b32 v{V_TS}, s100, 31")
        for r in range(16): a(f"v_cmp_le_i32 s[{64+2*r}:{65+2*r}], {16*(r>>3) + (r&7)}, v106")
        a(f"v_and_b32 v{V_FA}, 3, v2"); a(f"v_lshlrev_b32 v{V_FA}, 2, v{V_FA}"); a(f"v_add_u32 v{V_FA}, {L_HL}, v{V_FA}")
        self.stamp(0)
        ftq = [V_TQ, V_TQ + 1]
        self.wc = 0
        steps = self.x_pass1(None, None, True, lambda w, t, kc: self.rdtr(w, ftq, (RK, RV)[t] + kc*KB, 256, f"kv{kc//8}" if (t == 0 and kc % 8 == 0) else None, "kv" if (t == 1 and kc == 31) else None), [1, 2], "augkv")
        self.stream(steps, look=8)
        a("s_branch L_c_go")
        a("L_c_loop:")
        self.stamp(0)
        self.poll(V_PX, "s26", "s57"); vm.q = []
        self.stamp(1)
        def xl(kc):
            if kc % 4 == 0: a(f"s_add_u32 s43, s55, {kc*KB}")
            a(f"buffer_load_dwordx4 {vr(XR+4*kc,4)}, v{V_LANE16}, s[8:11], s43 offen offset:{(kc%4)*KB} sc1")
        self.wc = 0
        steps = self.x_pass1(xl, "s56", False, lambda w, t, kc: self.rdtr(w, ftq, (RK, RV)[t] + kc*KB, 256, "nkv" if (t == 0 and kc == 0) else None,
                                                                          {(1, OPT.get("b1x", 22)): "x", (1, 31): "kv"}.get((t, kc)), HV["nkv"]), [1, 2], None)
        self.stream(steps, look=10)
        a("L_c_go:")
        if OPT["fine"]: self.stamp(14)
        steps = []
        for kc in range(32):
            w = self.wreg()
            steps.append(dict(reads=self.rdtr(w, ftq, RQ + kc*KB, 256, "wq" if kc == 0 else None),
                              mf=f"{MF} {vr(ACC[2],16)}, {vr(w,4)}, {vr(XR+4*kc,4)}, {'0' if kc == 0 else vr(ACC[2],16)}"))
        steps.append(None)
        q = ["s_lshl_b32 s58, s17, 17", "s_lshl_b32 s40, s27, 10", "s_add_u32 s58, s58, s40", f"s_add_u32 s58, s58, {KV}", "s_add_u32 s58, s58, s36",
             f"s_add_u32 s40, s25, {LK + 8*KB}", f"v_add_u32 v{V_OUT}, s40, v{V_LANE16}"]
        for t in range(2):
            A0 = ACC[t]
            for hh in range(2):
                q += [f"v_mul_f32 v{A0+r}, v{V_RSTD}, v{A0+r}" for r in range(8*hh, 8*hh + 8)]
                q += [f"v_cvt_pk_bf16_f32 v{A0+r}, v{A0+2*r}, v{A0+2*r+1}" for r in range(4*hh, 4*hh + 4)]
                q += [f"s_add_u32 s59, s58, {t*32*64*KB + hh*64*KB}", f"buffer_store_dwordx4 {vr(A0+4*hh,4)}, v{V_LANE16}, s[8:11], s59 offen sc1"]
        def kvflag():
            a("s_lshl_b32 s40, s16, 11"); a("s_lshl_b32 s41, s17, 7"); a("s_add_u32 s40, s40, s41"); a("s_lshl_b32 s41, s6, 2"); a("s_add_u32 s40, s40, s41"); a(f"s_add_u32 s40, s40, {KVFL}")
            a("s_add_u32 s41, s22, 1"); a(f"v_mov_b32 v{V_TMP}, s41")
            vm.drain()
            a("s_mov_b64 exec, 1"); a(f"buffer_store_dword v{V_TMP}, off, s[8:11], s40 sc1"); a("s_mov_b64 exec, -1")
            self.pub("kvf")
        for x in q: a(x)
        q = []
        def kvf_if(it):
            l = self.lab()
            a(f"s_cmp_lg_u32 s22, {it}"); a(f"s_cbranch_scc1 {l}"); kvflag(); a(f"{l}:")
        kvf_if(0)
        def fill(i):
            out = []
            if i == OPT["kvflag"]: out.append(lambda: kvf_if(1))
            return out
        self.stream(steps[:-1], look=10, fill=fill)
        assert not q
        for hh in range(2):
            a(f"ds_write_b128 v{V_OUT}, {vr(ACC[0]+4*hh,4)} offset:{hh*HS}")
            a(f"ds_write_b128 v{V_OUT}, {vr(ACC[1]+4*hh,4)} offset:{12*KB + hh*HS}")
        self.pub("q")
        a(f"v_mul_f32 v{V_C1}, {f32(0.25*LOG2E)}, v{V_RSTD}")
        r = self.attention()
        a(f"v_mov_b32 v{V_TMP}, {L_MODE}"); a(f"ds_read_b32 v{V_TMP}, v{V_TMP}"); a("s_waitcnt lgkmcnt(0)")
        a(f"v_readfirstlane_b32 s21, v{V_TMP}")
        a("s_lshl_b32 s37, s27, 15"); a("s_lshl_b32 s40, s17, 11"); a("s_add_u32 s37, s37, s40"); a(f"s_add_u32 s37, s37, {OF}"); a("s_add_u32 s37, s37, s35")
        a("s_lshl_b32 s60, s48, 15"); a("s_lshl_b32 s40, s51, 14"); a("s_add_u32 s60, s60, s40"); a(f"s_add_u32 s60, s60, {OF}"); a("s_add_u32 s60, s60, s35")
        self.stamp(2)
        self.wc = 0
        self.stream([self.aug_step(ACC[2], 0, "augq")], look=0)
        for r_ in range(16): a(f"v_mul_f32 v{ACC[2]+r_}, v{V_C1}, v{ACC[2]+r_}")
        for r_ in range(8): a(f"v_cvt_pk_bf16_f32 v{XR+r_}, v{ACC[2]+2*r_}, v{ACC[2]+2*r_+1}")
        def halo_k():
            self.gate("q", "C"); self.gate("hk")
            self.stamp(3)
        def after_k():
            self.gate("hv")
            l = self.lab()
            a("s_cmp_lg_u32 s22, 0"); a(f"s_cbranch_scc1 {l}")
            a("s_lshl_b32 s40, s48, 15"); a("s_lshl_b32 s41, s49, 6"); a("s_add_u32 s40, s40, s41")
            a(f"buffer_load_dwordx4 {vr(V_RES,4)}, v{V_XOFF}, s[44:47], s40 offen")
            a(f"buffer_load_dwordx4 {vr(V_RES+4,4)}, v{V_XOFF}, s[44:47], s40 offen offset:32")
            a(f"{l}:")
        oreg = lambda s: XR + 8 + 4 * s
        def al_o(s):
            a = self.a
            g = 2 * (s % 8) + (s >> 3)
            if s % 2 == 0: a(f"s_add_u32 s43, s60, {(g & ~3)*KB}")
            a(f"buffer_load_dwordx4 {vr(oreg(s),4)}, v{V_LANE16}, s[8:11], s43 offen offset:{(g & 3)*KB} sc1"); vm.issue(f"a{s}")
        def early_a():
            for s_ in range(8): al_o(s_)
        def redo_a(a2):
            a2(f"s_add_u32 s61, s23, {F_O1}"); self.poll(V_PH, "s26", "s61")
            for s_ in range(8): al_o(s_)
        self.attention_run(r, halo_k, after_k, early_a, redo_a)
        self.stamp(4)
        a(f"s_add_u32 s58, s53, {XA}"); a("s_add_u32 s58, s58, s35"); a(f"s_add_u32 s59, s54, {STA}"); a("s_add_u32 s59, s59, s35")
        def h_o(upto):
            self.check(V_PH, F_O2); self.stamp(5); upto(16)
        self.res_gemm(16, lambda s: RK + s*4*KB, oreg, al_o, 8, 0, {0: "wo"}, {7: "wo1"}, XCH_WO, "wo", (10, "att"),
                      hooks={OPT.get("opeek", 2): lambda u: self.peek(V_PH), 8: h_o})
        self.pub("xr")
        self.x_store("s58", "s59", F_X1)
        self.stamp(6)
        a(f"s_mul_i32 s60, s27, {112*KB}"); a(f"s_mul_i32 s40, s17, {7*KB}"); a("s_add_u32 s60, s60, s40"); a(f"s_add_u32 s60, s60, {HF}"); a("s_add_u32 s60, s60, s35")
        a("s_lshl_b32 s58, s27, 15"); a(f"s_add_u32 s58, s58, {XA}"); a("s_add_u32 s58, s58, s35")
        a("s_lshl_b32 s59, s27, 12"); a(f"s_add_u32 s59, s59, {STA}"); a("s_add_u32 s59, s59, s35")
        a(f"s_mul_i32 s29, s48, {112*KB}"); a(f"s_mul_i32 s40, s51, {56*KB}"); a("s_add_u32 s29, s29, s40"); a(f"s_add_u32 s29, s29, {HF}"); a("s_add_u32 s29, s29, s35")
        a(f"s_add_u32 s61, s23, {F_X1}")
        self.poll(V_PX, "s26", "s61"); vm.q = []
        self.stamp(7)
        def xl2(kc):
            if kc % 4 == 0: a(f"s_add_u32 s43, s58, {kc*KB}")
            a(f"buffer_load_dwordx4 {vr(XR+4*kc,4)}, v{V_LANE16}, s[8:11], s43 offen offset:{(kc%4)*KB} sc1")
        self.wc = 0; self.wr = 104; self.nw = 6
        steps = self.x_pass1(xl2, "s59", False, lambda w, t, kc: self.rd128(w, GU_REG[t] + kc*KB, f"t2_{kc//8}" if (t == 0 and kc % 8 == 0 and (kc == 0 or not OPT.get("t2e", 1))) else None, f"g{kc+1}" if (t == 2 and kc % 8 == 7) else None), [3, 4, 5], None, NT=3)
        self.pub("xch")
        done = {t: len(steps) - 3 + t for t in range(3)}; start = {}
        accof = {t: ACC[t % 4] for t in range(7)}
        for t in range(3, 7):
            start[t] = len(steps)
            for kc in range(32):
                w = self.wreg()
                steps.append(dict(reads=self.rd128(w, GU_REG[t] + kc*KB, f"t{t}" if kc == 0 else None, f"t{t}" if kc == 31 else None),
                                  mf=f"{MF} {vr(accof[t],16)}, {vr(w,4)}, {vr(XR+4*kc,4)}, {'0' if kc == 0 else vr(accof[t],16)}", pair=(kc % 2 == 0 and OPT.get("pair", 1))))
            steps.append(self.aug_step(accof[t], 3 + t))
            done[t] = len(steps) - 1
        def epi(t):
            A0 = accof[t]; L = []
            if OPT.get("x_nofill"): return [lambda: (a(f"s_add_u32 s43, s60, {t*KB}"), self.store(f"buffer_store_dwordx4 {vr(V_EP,4)}, v{V_LANE16}, s[8:11], s43 offen", f"h{t}"))]
            L += [f"v_mul_f32 v{A0+r}, v{V_C1}, v{A0+r}" for r in range(8)]
            L += [f"v_exp_f32 v{A0+r}, v{A0+r}" for r in range(8)]
            L += [f"v_fma_f32 v{A0+r}, v{A0+r}, v{V_STD}, v{V_STD}" for r in range(8)]
            L += [f"v_rcp_f32 v{A0+r}, v{A0+r}" for r in range(8)]
            L += [f"v_mul_f32 v{A0+r}, v{A0+r}, v{A0+8+r}" for r in range(8)]
            L += [f"v_cvt_pk_bf16_f32 v{V_EP+r}, v{A0+2*r}, v{A0+2*r+1}" for r in range(4)]
            L += [lambda: (a(f"s_add_u32 s43, s60, {t*KB}"), self.store(f"buffer_store_dwordx4 {vr(V_EP,4)}, v{V_LANE16}, s[8:11], s43 offen", f"h{t}"))]
            return L
        hreg = lambda s: XR + 4 * (s % 32)
        def al_h(s):
            t, i = s // 8, s % 8
            if OPT.get("x_noh") and s >= 16: return
            if OPT.get("x_sameh"): t, i = 0, s % 2
            a(f"s_add_u32 s43, s29, {(7*i + t)*KB}"); a(f"buffer_load_dwordx4 {vr(hreg(s),4)}, v{V_LANE16}, s[8:11], s43 offen sc1"); vm.issue(f"a{s}")
        NP = OPT.get("np", 16)
        queue = []; flag_at = {}
        def fill2(i):
            for t in range(7):
                if done[t] + 2 == i: queue.extend((x, t) for x in epi(t))
            out = []
            if OPT["fine"] and i == done[2]: self.pend_stamp = 12
            if OPT["fine"] and i == done[4]: self.pend_stamp = 13
            for t2, sidx in start.items():
                if sidx == i + 1 and t2 >= 4:
                    while queue and queue[0][1] <= t2 - 4: out.append(queue.pop(0)[0])
            cost = 0; lim = OPT.get("fillc", 3)
            while queue and cost < lim:
                x, t = queue.pop(0); out.append(x)
                cost += 3 if callable(x) else 2 if x.startswith(("v_exp", "v_rcp")) else 1
                if callable(x) and t == 3: flag_at[i + 10] = t
            if i in flag_at: out.append(lambda: self.flag(F_H1, "h3"))
            k6 = i - start[6]
            if k6 == 31 - NP - 14: out.append(lambda: self.peek(V_PH))
            if k6 == 31 - NP: out.append(lambda: self.check(V_PH, F_H1))
            if 31 - NP < k6 <= 31: out.append(lambda s_=k6 - (32 - NP): al_h(s_))
            return out
        self.stream(steps, look=4, fill=fill2)
        assert flag_at and max(flag_at) < start[6], (flag_at, start)
        for x, _ in queue: self.emit(x)
        for x in epi(6): self.emit(x)
        self.stamp(8)
        a(f"s_add_u32 s58, s53, {XB}"); a("s_add_u32 s58, s58, s35"); a(f"s_add_u32 s59, s54, {STB}"); a("s_add_u32 s59, s59, s35")
        PD = OPT.get("pd", 14)
        hooks = {OPT.get("hflag", 5): lambda u: self.flag(F_H2, "h6"), 32 - PD - 8: lambda u: self.peek(V_PH), 32 - PD - 1: lambda u: self.check(V_PH, F_H2)}
        self.res_gemm(56, wd_slot, hreg, al_h, NP, PD, {s: f"w{s}" for s in DG}, {s - 1: f"d{s}" for s in DP},
                      XCH_DN, "dx", (50, "d45"), hooks=hooks)
        self.stamp(10)
        a("s_cmp_lg_u32 s22, 0"); a("s_cbranch_scc1 L_c_final")
        self.x_store("s58", "s59", F_X2)
        a("s_lshl_b32 s55, s27, 15"); a(f"s_add_u32 s55, s55, {XB}"); a("s_add_u32 s55, s55, s35")
        a("s_lshl_b32 s56, s27, 12"); a(f"s_add_u32 s56, s56, {STB}"); a("s_add_u32 s56, s56, s35")
        a(f"s_mov_b32 s57, {F_X2}")
        self.next_iter()
        a.fence()
        a("s_branch L_c_loop")
        a("L_c_final:")
        a("s_lshl_b32 s40, s48, 15"); a("s_lshl_b32 s41, s49, 6"); a("s_add_u32 s40, s40, s41")
        a(f"buffer_store_dwordx4 {vr(V_RES,4)}, v{V_XOFF}, s[12:15], s40 offen")
        a(f"buffer_store_dwordx4 {vr(V_RES+4,4)}, v{V_XOFF}, s[12:15], s40 offen offset:32")
        self.finish()

    def next_iter(self):
        a = self.a
        a("s_mov_b32 s22, 1"); a("s_mov_b32 s23, 16"); a("s_mov_b32 s7, 64"); a(f"v_mov_b32 v{V_BASE}, 64")
        a(f"s_mov_b32 s36, {KVS}"); a(f"s_mul_i32 s35, s21, {ITS}")
    def finish(self):
        a = self.a
        if OPT["stamp"]:
            a("s_waitcnt vmcnt(0)")
            self.stamp(11)
            a("s_lshl_b32 s40, s2, 12"); a("s_lshl_b32 s41, s3, 9"); a("s_add_u32 s40, s40, s41"); a(f"s_add_u32 s40, s40, {TS}")
            a("v_lshlrev_b32 v40, 2, v2")
            a(f"buffer_store_dword v{V_TS}, v40, s[8:11], s40 offen"); a(f"buffer_store_dword v{V_TS2}, v40, s[8:11], s40 offen offset:256")
        a("s_endpgm")

    def helper(self):
        a = self.a; self.role = "H"; vm = VM(a)
        HV_QKV = 16; HV_ROW0 = 17; HV_OOB = 18; HV_PK = 19; HV_W = 20; HV_R128 = 23; HV_TQ = 24; HT = 26
        SQ, SO, SD, SG, SX, SDBG = "s[44:47]", "s[48:51]", "s[52:55]", "s[56:59]", "s[60:63]", "s[12:15]"
        HF_ = 25
        W = OPT.get("win", 8)
        st = dict(it=0); outq = []; sigs = []
        cnt = dict(issued=0, done=0)
        def hpub_txt(name):
            self.seen.add(("H", name))
            return [f"v_mov_b32 v{V_TMP}, {64*st['it'] + HV[name]}", f"ds_max_u32 v{V_PUBA}, v{V_TMP}"]
        def hpub(name):
            for x in hpub_txt(name): a(x)
        def retire(n):
            if n > cnt["done"]:
                k = cnt["issued"] - n; assert 0 <= k <= 63
                if cnt.get("ghost") and n <= cnt["ghost"][0]:
                    l = self.lab()
                    a(f"s_waitcnt vmcnt({k + cnt['ghost'][1]})"); a("s_cmp_lg_u32 s87, 0"); a(f"s_cbranch_scc1 {l}"); a(f"s_waitcnt vmcnt({k})"); a(f"{l}:")
                else: a(f"s_waitcnt vmcnt({k})")
                cnt["done"] = n
            last = None
            while sigs and sigs[0][1] <= cnt["done"]: last = sigs.pop(0)[0]; self.seen.add(("H", last))
            if last: hpub(last)
        def op(win=None):
            cnt["issued"] += 1
            retire(max(cnt["done"], cnt["issued"] - (W if win is None else win)))
        def sig(name):
            sigs.append((name, cnt["issued"])); retire(cnt["done"])
        def flush():
            while sigs: retire(sigs[0][1])
        def drain():
            retire(cnt["issued"])
        def need(name, src="C", it=None):
            l1 = self.lab(); l2 = self.lab(); l3 = self.lab()
            val = 64 * (st["it"] if it is None else it) + (CV if src == "C" else HV)[name]
            rd = f"ds_read_b32 v{V_FLG}, v{HF_} offset:{16 if src == 'C' else 0}"
            a(rd); a("s_waitcnt lgkmcnt(0)"); a(f"s_movk_i32 s39, {val}"); a(f"v_cmp_gt_u32 vcc, s39, v{V_FLG}"); a(f"s_cbranch_vccz {l2}")
            for nm, n in sigs:
                a(f"s_waitcnt vmcnt({cnt['issued'] - n})")
                for x in hpub_txt(nm): a(x)
            a(f"{l3}:"); a("s_sleep 1"); a("s_add_u32 s38, s38, 1"); a(f"s_cmp_gt_u32 s38, {OPT['spin']*16}"); a(f"s_cbranch_scc1 {l2}")
            a(rd); a("s_waitcnt lgkmcnt(0)"); a(f"v_cmp_gt_u32 vcc, s39, v{V_FLG}"); a(f"s_cbranch_vccnz {l3}")
            a.pending.pop(l3, None)
            a(f"{l2}:")
            self.used.add((src, name))
        def tile(t, gs=range(8)):
            for g in gs: self.dma("s29", t*32*KB + g*4*KB, GU_REG[t] + g*4*KB, fl="" if OPT.get("wplain") else " sc1"); op()
        def wqkv(which, gs, win=None):
            for g in gs:
                a(f"s_add_u32 s41, s30, {4*g}"); a("s_and_b32 s41, s41, 31"); a("s_mul_i32 s41, s41, 49152"); a("s_add_u32 s41, s41, s31")
                for ci, reg in which:
                    self.dma("s41", ci*1024, reg + g*4*KB, voff=HV_QKV, srd=SQ); op(win)
                if len(which) == 2 and g % 2 == 1: sig(f"kv{g//2}")
        def wqp(which, gs):
            for g in gs:
                for ci, reg in which: self.dma("s34", ci*32*KB + g*4*KB, reg + g*4*KB, fl="" if OPT.get("wplain") else " sc1"); op()
        WK = (1, RK); WV = (2, RV); WQ = (0, RQ)
        st_next = [0]; st_idx = {}
        def stash(n):
            for _ in range(n):
                s_ = st_next[0]
                if s_ >= 56: break
                t, i = s_ // 8, s_ % 8
                a(f"s_add_u32 s40, s33, {(7*i + t)*16*KB}")
                a(f"buffer_load_dwordx4 {vr(STASH+4*s_,4)}, v{HV_R128}, {SD}, s40 offen"); op(); st_idx[s_] = cnt["issued"]
                st_next[0] += 1
        def wdw(steps):
            for s_ in steps:
                if s_ >= 56: break
                retire(max(cnt["done"], st_idx[s_]))
                if OPT.get("x_nowdw"): continue
                o = wd_slot(s_)
                a(f"ds_write_b128 v{HV_W + (o >> 16)}, {vr(STASH+4*s_,4)} offset:{o & 0xffff}")
                if OPT.get("wpace"): a("s_waitcnt lgkmcnt(0)")
        def only(cond_lines, fn):
            l = self.lab()
            for c in cond_lines: a(c)
            a(f"s_cbranch_scc0 {l}"); fn(); a(f"{l}:")
        a(f"v_lshrrev_b32 v{HT}, 2, v2"); a(f"v_mul_u32_u24 v{HV_QKV}, 3072, v{HT}"); a(f"v_and_b32 v{HT}, 3, v2"); a(f"v_lshl_add_u32 v{HV_QKV}, v{HT}, 4, v{HV_QKV}")
        a("s_add_u32 s30, s28, s6"); a("s_lshl_b32 s31, s17, 6")
        a(f"s_mov_b32 s46, {512*3072}"); a("s_mov_b32 s47, 0x20000")
        a("s_mov_b64 s[44:45], s[66:67]")
        if OPT["stamp"]: a(f"v_writelane_b32 v{V_TS}, s100, 31")
        a("s_mul_i32 s83, s2, 9363"); a("s_lshr_b32 s83, s83, 18")
        a("s_mul_i32 s40, s83, 28"); a("s_sub_u32 s84, s2, s40")
        a("s_mul_i32 s40, s84, 37"); a("s_lshr_b32 s40, s40, 8"); a("s_mul_i32 s41, s40, 7"); a("s_sub_u32 s41, s84, s41")
        a("s_lshl_b32 s41, s41, 3"); a("s_add_u32 s41, s41, s83"); a("s_lshl_b32 s40, s40, 6"); a("s_add_u32 s40, s40, s41"); a("s_lshl_b32 s40, s40, 3"); a(f"s_add_u32 s88, s40, {RF}")
        a("s_cmp_lt_u32 s2, 224"); a("s_cselect_b32 s88, s88, 0x7ff00000")
        a("s_lshl_b32 s89, s17, 8"); a("s_lshl_b32 s40, s16, 4"); a("s_add_u32 s89, s89, s40"); a(f"s_add_u32 s89, s89, {PFL}")
        def zero():
            def nonce():
                a("s_memrealtime s[42:43]"); a("s_mov_b64 s[12:13], s[70:71]"); a("s_mov_b32 s14, 256"); a("s_mov_b32 s15, 0x20000"); a("s_waitcnt lgkmcnt(0)")
                a("s_lshl_b64 s[42:43], s[42:43], 3"); a("s_or_b32 s43, s43, 0x80000000")
                a("v_mov_b32 v44, s42"); a("v_mov_b32 v45, s43")
                a("s_mov_b64 exec, 1"); a(f"buffer_store_dwordx2 v[44:45], off, {SDBG}, 0 sc1"); a("s_mov_b64 exec, -1")
            only(["s_cmp_eq_u32 s2, 0"], nonce)
            for r in range(4): a(f"v_mov_b32 v{40+r}, 0")
            a("s_sub_u32 s40, s24, 28")
            a("s_lshl_b32 s81, s16, 11"); a("s_lshl_b32 s41, s17, 7"); a("s_add_u32 s81, s81, s41"); a(f"s_add_u32 s81, s81, {KVFL}")
            a("s_mov_b64 exec, 1")
            a("buffer_store_dwordx4 v[40:43], off, s[8:11], s40 sc1"); a("buffer_store_dwordx4 v[40:43], off, s[8:11], s81 sc1")
            a("buffer_store_dwordx2 v[40:41], off, s[8:11], s88 sc1"); a("buffer_store_dwordx4 v[40:43], off, s[8:11], s89 sc1")
            a("s_mov_b64 exec, -1")
        only(["s_cmp_eq_u32 s6, 3"], zero)
        def codepf():
            a("s_getpc_b64 s[42:43]")
            a.raw("L_pc:")
            a(f"s_sub_u32 s42, s42, L_pc-{NAME}"); a("s_subb_u32 s43, s43, 0")
            a("s_lshr_b32 s40, s2, 3"); a("s_lshl_b32 s40, s40, 11")
            a("v_lshlrev_b32 v40, 7, v2"); a("v_add_u32 v40, s40, v40"); a(f"v_min_u32 v40, L_code_end-{NAME}-4, v40")
            a("v_mov_b32 v41, s43"); a("v_add_co_u32 v40, vcc, s42, v40"); a("v_addc_co_u32 v41, vcc, 0, v41, vcc")
            a("s_mov_b64 exec, 0xffff"); a("global_load_dword v162, v[40:41], off"); a("s_mov_b64 exec, -1")
        if OPT.get("codepf", 1): only(["s_cmp_eq_u32 s6, 2"], codepf)
        def qtouch():
            a(f"v_lshrrev_b32 v{HT}, 3, v2"); a(f"v_mul_u32_u24 v{HT}, 3072, v{HT}"); a(f"v_and_b32 v{HT+1}, 7, v2"); a(f"v_lshl_add_u32 v{HT}, v{HT+1}, 7, v{HT}")
            a("s_mul_i32 s41, s2, 6144"); a("s_mov_b64 exec, 0xffff"); a(f"buffer_load_dword v161, v{HT}, {SQ}, s41 offen"); a("s_mov_b64 exec, -1")
        only(["s_cmp_eq_u32 s6, 1"], qtouch)
        def tlb():
            st_ = OPT.get("tlbs", 2) * MB // 2
            a("s_mov_b64 s[42:43], s[8:9]")
            for p in range(WS_USED // st_):
                a("s_load_dword s94, s[42:43], 0"); a(f"s_add_u32 s42, s42, {st_}"); a("s_addc_u32 s43, s43, 0")
            for r in (68, 76, 78): a(f"s_load_dword s94, s[{r}:{r+1}], 0")
            a("s_load_dword s94, s[76:77], 0xffff0"); a("s_load_dword s94, s[78:79], 0xffff0")
        wqkv([WK, WV], range(0, 2), win=63)
        if OPT.get("tlb", 0): only(["s_cmp_eq_u32 s6, 0"], tlb)
        a("s_mov_b64 s[12:13], s[70:71]"); a("s_mov_b32 s14, 256"); a("s_mov_b32 s15, 0x20000")
        a("s_mov_b64 s[48:49], s[68:69]"); a(f"s_mov_b32 s50, {512*1024}"); a("s_mov_b32 s51, 0x20000")
        a("s_mov_b64 s[52:53], s[76:77]"); a(f"s_mov_b32 s54, {1792*1024}"); a("s_mov_b32 s55, 0x20000")
        a(f"v_lshrrev_b32 v{HT}, 3, v2"); a(f"v_bfe_u32 v{HT+1}, v2, 4, 1"); a(f"v_lshlrev_b32 v{HT+1}, 2, v{HT+1}")
        a(f"v_and_b32 v{HT+2}, 7, v2"); a(f"v_xor_b32 v{HT+2}, v{HT+1}, v{HT+2}"); a(f"v_lshlrev_b32 v{HT+2}, 4, v{HT+2}")
        a(f"v_lshl_add_u32 v{HV_R128}, v{HT}, 10, v{HT+2}")
        a(f"v_mul_u32_u24 v{HT+3}, 3584, v{HT}"); a(f"v_add_u32 v{HT+3}, v{HT+3}, v{HT+2}")
        a("s_and_b32 s85, s83, 1"); a("s_lshr_b32 s86, s83, 1")
        a("s_add_u32 s80, s6, 1"); a("s_cmp_eq_u32 s6, 0"); a("s_cselect_b32 s80, 0, s80"); a("s_cmp_eq_u32 s6, 3"); a("s_cselect_b32 s80, 1, s80")
        a("s_lshl_b32 s86, s86, 1"); a("s_add_u32 s86, s86, s80")
        a("s_cmp_eq_u32 s85, 0"); a("s_cselect_b64 s[56:57], s[72:73], s[74:75]"); a(f"s_mov_b32 s58, {512*3584}"); a("s_mov_b32 s59, 0x20000")
        a("s_cmp_lt_u32 s2, 224"); a("s_cselect_b32 s87, 1, 0"); a("s_cmp_lt_u32 s80, 2"); a("s_cselect_b32 s87, s87, 0")
        def rel_ld():
            a(f"s_mul_i32 s41, s86, {64*3584}"); a("s_lshl_b32 s40, s84, 7"); a("s_add_u32 s41, s41, s40")
            for o in range(8):
                a(f"buffer_load_dwordx4 {vr(128+4*o,4)}, v{HT+3}, {SG}, s41 offen")
                if o < 7: a(f"s_add_u32 s41, s41, {8*3584}")
        def coop():
            a(f"v_lshlrev_b32 v{HT}, 7, v2"); a("s_lshl_b32 s41, s2, 13")
            only(["s_cmp_eq_u32 s6, 1"], lambda: a(f"buffer_load_dword v161, v{HT}, {SD}, s41 offen"))
            a("s_sub_u32 s41, 255, s2"); a("s_lshl_b32 s41, s41, 13")
            only(["s_cmp_eq_u32 s6, 2"], lambda: a(f"buffer_load_dword v161, v{HT}, {SO}, s41 offen"))
        a("s_lshl_b32 s32, s19, 7"); a("s_and_b32 s40, s6, 1"); a("s_lshl_b32 s40, s40, 13"); a("s_add_u32 s32, s32, s40")
        a("s_lshr_b32 s40, s6, 1"); a(f"s_mul_i32 s33, s40, {56*16*KB}"); a("s_add_u32 s33, s33, s32"); a("s_lshl_b32 s40, s40, 18"); a("s_add_u32 s32, s32, s40")
        a(f"s_mul_i32 s34, s17, {96*KB}"); a(f"s_add_u32 s34, s34, {WQP}"); a("s_add_u32 s34, s34, s25")
        a(f"s_mul_i32 s29, s17, {0 if OPT.get('x_samew') else 7*32*KB}"); a(f"s_add_u32 s29, s29, {WGU}"); a("s_add_u32 s29, s29, s25")
        a(f"v_lshrrev_b32 v{HT}, 5, v2"); a(f"v_lshlrev_b32 v{HV_ROW0}, 9, v{HT}")
        a(f"v_mov_b32 v{HV_OOB}, 0x7ff00000")
        a(f"v_and_b32 v{HT}, 1, v2"); a("s_sub_i32 s40, s16, 1"); a(f"v_sub_u32 v{HT}, s40, v{HT}")
        a(f"v_lshlrev_b32 v{HT+1}, 11, v{HT}"); a("s_lshl_b32 s40, s6, 2"); a(f"v_add_u32 v{HT+1}, s40, v{HT+1}")
        a(f"v_cmp_gt_i32 vcc, 0, v{HT}"); a(f"v_cndmask_b32_e64 v{HV_PK}, v{HT+1}, 0, vcc")
        a("s_lshl_b32 s82, s17, 7"); a(f"s_add_u32 s82, s82, {KVFL}")
        a(f"v_add_u32 v{HV_W}, s25, v{V_LANE16}"); a(f"v_add_u32 v{HV_W+1}, 0x10000, v{HV_W}"); a(f"v_add_u32 v{HV_W+2}, 0x20000, v{HV_W}")
        self.tr_addr16(HV_TQ, HT, HT + 1)
        a("s_lshl_b32 s40, s6, 15"); a(f"v_add_u32 v{HV_TQ}, s40, v{HV_TQ}")
        for r in range(4): a(f"v_mov_b32 v{64+r}, s20")
        a("v_mov_b32 v48, s20"); a("v_mov_b32 v49, s20"); a("v_mov_b32 v50, 0"); a("v_mov_b32 v51, 0"); a(f"v_mov_b32 v52, {L_ONES}")
        for o in (0, 64, 256, 320): a(f"ds_write_b128 v52, v[48:51] offset:{o}")
        def colsum(lo, hi, first):
            def rd(kc):
                w = 72 + 4 * (kc % 8)
                a(f"ds_read_b64_tr_b16 {vr(w,2)}, v{HV_TQ} offset:{kc*KB}"); a(f"ds_read_b64_tr_b16 {vr(w+2,2)}, v{HV_TQ} offset:{kc*KB+256}")
            for kc in range(lo, min(hi, lo + 6)): rd(kc)
            for kc in range(lo, hi):
                a(f"s_waitcnt lgkmcnt({2 * (min(hi, kc + 6) - kc - 1)})")
                a(f"{MF} v[112:127], v[64:67], {vr(72+4*(kc%8),4)}, {'0' if (first and kc == lo) else 'v[112:127]'}")
                if kc + 6 < hi: rd(kc + 6)
        def augfin():
            a("v_cvt_pk_bf16_f32 v104, v112, v112"); a("v_and_b32 v107, 0xffff, v104")
            a("v_lshlrev_b32 v105, 16, v104"); a("v_sub_f32 v105, v112, v105"); a("v_cvt_pk_bf16_f32 v106, v112, v105")
            a("s_lshl_b32 s40, s6, 8"); a(f"s_add_u32 s40, s40, {L_AUG}")
            a("v_and_b32 v108, 31, v2"); a("v_lshlrev_b32 v108, 3, v108"); a("v_add_u32 v108, s40, v108")
            a("ds_write_b64 v108, v[106:107]"); a("s_waitcnt lgkmcnt(0)")
        kvw = ["s_sub_u32 s40, s6, 1", "s_cmp_lt_u32 s40, 2"]
        qw  = ["s_cmp_eq_u32 s6, 0"]
        w3  = ["s_cmp_eq_u32 s6, 3"]
        def spin_head(loads):
            l = self.lab(); d = self.lab(); l0 = self.lab()
            a("s_mov_b32 s41, 0")
            for x in loads: a(x + ("" if OPT.get("pplain", 1) else " sc1"))
            a(f"s_branch {l0}"); a(f"{l}:"); a("s_sleep 4")
            for x in loads: a(x + " sc1")
            a(f"{l0}:")
            a("s_add_u32 s41, s41, 1"); a(f"s_cmp_gt_u32 s41, {OPT['spin']}"); a(f"s_cbranch_scc1 {d}")
            a("s_waitcnt vmcnt(0)")
            return l, d
        def get_nonce():
            l, d = spin_head([f"buffer_load_dwordx2 {vr(HT,2)}, off, {SDBG}, 0"])
            a(f"v_readfirstlane_b32 s92, v{HT}"); a(f"v_readfirstlane_b32 s93, v{HT+1}")
            a("s_cmp_eq_u32 s93, 0"); a(f"s_cbranch_scc1 {l}"); a(f"{d}:")
        def arrive():
            a("s_waitcnt lgkmcnt(0)")
            only(["s_cmp_eq_u32 s93, 0"], get_nonce)
            a("s_getreg_b32 s40, hwreg(HW_REG_XCC_ID)"); a("s_and_b32 s40, s40, 7"); a("s_or_b32 s91, s40, s92")
            a(f"v_mov_b32 v{HT}, s91"); a(f"v_mov_b32 v{HT+1}, s93")
            a("s_lshl_b32 s40, s16, 7"); a("s_lshl_b32 s41, s17, 3"); a("s_add_u32 s40, s40, s41"); a(f"s_add_u32 s40, s40, {AR}")
            a("s_mov_b64 exec, 1"); a(f"buffer_store_dwordx2 {vr(HT,2)}, off, s[8:11], s40 sc1"); a("s_mov_b64 exec, -1")
        def arrived_all():
            a("v_lshlrev_b32 v248, 5, v2"); a(f"s_mov_b32 s42, {AR}")
            l, d = spin_head(["buffer_load_dwordx4 v[240:243], v248, s[8:11], s42 offen", "buffer_load_dwordx4 v[244:247], v248, s[8:11], s42 offen offset:16"])
            for q in range(4): a(f"v_and_b32 v{240+2*q}, -8, v{240+2*q}"); a(f"v_xor_b32 v{240+2*q}, s92, v{240+2*q}"); a(f"v_xor_b32 v{241+2*q}, s93, v{241+2*q}")
            a("v_or3_b32 v240, v240, v241, v242"); a("v_or3_b32 v243, v243, v244, v245"); a("v_or3_b32 v240, v240, v246, v247"); a("v_or_b32 v240, v240, v243")
            a("v_cmp_ne_u32 vcc, 0, v240"); a(f"s_cbranch_vccnz {l}"); a(f"{d}:")
        def nbr():
            a(f"v_lshrrev_b32 v{HT+2}, 4, v2"); a(f"v_min_u32 v{HT+2}, 2, v{HT+2}"); a("s_sub_i32 s40, s16, 2"); a(f"v_add_u32 v{HT+2}, s40, v{HT+2}"); a(f"v_max_i32 v{HT+2}, 0, v{HT+2}")
            a(f"v_lshlrev_b32 v{HT+2}, 7, v{HT+2}"); a(f"v_and_b32 v{HT}, 15, v2"); a(f"v_lshl_add_u32 v{HT+2}, v{HT}, 3, v{HT+2}"); a(f"s_mov_b32 s42, {AR}")
            l, d = spin_head([f"buffer_load_dwordx2 {vr(HT,2)}, v{HT+2}, s[8:11], s42 offen"])
            a(f"v_and_b32 v{HT+4}, -8, v{HT}"); a(f"v_xor_b32 v{HT+4}, s92, v{HT+4}"); a(f"v_xor_b32 v{HT+1}, s93, v{HT+1}"); a(f"v_or_b32 v{HT+4}, v{HT+4}, v{HT+1}")
            a(f"v_cmp_ne_u32 vcc, 0, v{HT+4}"); a(f"s_cbranch_vccnz {l}"); a(f"{d}:")
            a(f"v_cmp_ne_u32 vcc, s91, v{HT}"); a("s_nop 1"); a("s_cmp_lg_u32 vcc_hi, 0"); a("s_cselect_b32 s40, 1, 0")
            if OPT["force_slow"]: a("s_mov_b32 s40, 1")
            a(f"v_mov_b32 v{HT}, s40"); a(f"v_mov_b32 v{HT+1}, {L_MODE}"); a(f"ds_write_b32 v{HT+1}, v{HT}"); a("s_waitcnt lgkmcnt(0)")
        def rel_do():
            a("s_lshl_b32 s40, s80, 12"); a(f"s_add_u32 s40, s40, {144*KB if OPT.get('rel0', 1) else P4}"); a(f"v_add_u32 v45, s40, v{V_LANE16}")
            a(f"v_bfe_u32 v40, v2, 2, 2"); a("v_lshlrev_b32 v41, 7, v40"); a("v_lshrrev_b32 v40, 1, v40"); a("v_lshrrev_b32 v42, 5, v2"); a("v_xor_b32 v40, v40, v42")
            a("v_lshl_add_u32 v41, v40, 6, v41"); a(f"v_and_b32 v40, 63, v{HV_TQ}"); a("v_add_u32 v41, v41, v40"); a("v_add_u32 v41, s40, v41")
            for hf in range(2):
                for o in range(4): a(f"ds_write_b128 v45, {vr(128+16*hf+4*o,4)} offset:{o*KB}")
                for o in range(4):
                    a(f"ds_read_b64_tr_b16 {vr(72+16*hf+4*o,2)}, v41 offset:{o*KB}"); a(f"ds_read_b64_tr_b16 {vr(74+16*hf+4*o,2)}, v41 offset:{o*KB+512}")
                a("s_waitcnt lgkmcnt(0)")
            a("v_lshrrev_b32 v40, 4, v2"); a("v_lshlrev_b32 v40, 15, v40"); a("v_and_b32 v42, 15, v2"); a("v_lshl_add_u32 v40, v42, 4, v40")
            a("s_lshl_b32 s40, s84, 17"); a("s_lshl_b32 s41, s86, 12"); a("s_add_u32 s40, s40, s41"); a("s_lshl_b32 s41, s85, 8"); a("s_add_u32 s40, s40, s41"); a(f"s_add_u32 s40, s40, {WGU}")
            a("v_mov_b32 v43, 0"); a("v_mov_b32 v44, 0")
            a("s_waitcnt lgkmcnt(0)")
            for o in range(8): a(f"buffer_store_dwordx4 {vr(72+4*o,4)}, v40, s[8:11], s40 offen offset:{o*512} sc1")
            for i in range(32): a(f"v_dot2_f32_bf16 v{43+i%2}, v{72+i}, s20, v{43+i%2}")
            a("s_nop 2"); a("v_add_f32 v43, v43, v44")
            a("s_lshl_b32 s40, s86, 1"); a("s_add_u32 s40, s40, s85"); a(f"s_mul_i32 s40, s40, {1792*4}"); a("s_lshl_b32 s41, s84, 8"); a("s_add_u32 s40, s40, s41"); a(f"s_add_u32 s40, s40, {CS}")
            a("v_lshlrev_b32 v42, 2, v2")
            a("buffer_store_dword v43, v42, s[8:11], s40 offen sc1")
        def halo():
            for kv in range(2):
                for d in (1, 2):
                    l1 = self.lab(); l2 = self.lab()
                    a(f"s_cmp_lt_u32 s16, {d}"); a(f"s_cbranch_scc1 {l1}")
                    a(f"s_sub_u32 s95, s27, {4*d}"); a("s_lshl_b32 s95, s95, 10"); a("s_add_u32 s95, s95, s94")
                    for hh in range(2): self.dma("s95", kv*32*64*KB + hh*64*KB, LK + kv*12*KB + hh*HS + (8-4*d)*KB, fl=" sc1")
                    a(f"s_branch {l2}")
                    a(f"{l1}:")
                    for hh in range(2): self.dma("s94", hh*64*KB, LK + kv*12*KB + hh*HS + (8-4*d)*KB, voff=(HV_ROW0, HV_OOB)[kv], fl=" sc1")
                    a(f"{l2}:")
                    op(63); op(63)
                sig(("hk", "hv")[kv])
        def pack():
            a("s_lshl_b32 s40, s16, 1"); a("s_sub_u32 s41, s40, s28"); a("s_and_b32 s41, s41, 31"); a("s_lshl_b32 s41, s41, 10"); a("s_lshl_b32 s42, s6, 15"); a("s_add_u32 s41, s41, s42")
            a(f"v_add_u32 v160, s41, v{V_LANE16}")
            a("ds_read_b128 v[164:167], v160"); a("ds_read_b128 v[168:171], v160 offset:1024")
            a("s_lshl_b32 s41, s6, 15"); a("s_lshl_b32 s40, s40, 10"); a("s_add_u32 s41, s41, s40")
            a("s_add_u32 s41, s41, s34"); a("s_sub_u32 s41, s41, s25")
            a("s_mov_b32 s90, s41")
            a("s_waitcnt lgkmcnt(0)")
        def pack_st():
            a(f"buffer_store_dwordx4 v[164:167], v{V_LANE16}, s[8:11], s90 offen sc1"); a(f"buffer_store_dwordx4 v[168:171], v{V_LANE16}, s[8:11], s90 offen offset:1024 sc1")
        def rel_sig():
            a("s_lshl_b32 s40, s80, 2"); a("s_add_u32 s40, s40, s88")
            a(f"v_mov_b32 v{HT}, 1"); a("s_mov_b64 exec, 1"); a(f"buffer_store_dword v{HT}, off, s[8:11], s40 sc1"); a("s_mov_b64 exec, -1")
        def gu_ready():
            a("s_lshr_b32 s40, s17, 2"); a("s_lshl_b32 s40, s40, 9"); a(f"s_add_u32 s42, s40, {RF}"); a("s_mov_b32 s43, 1")
            a(f"v_lshlrev_b32 v{HT}, 2, v2"); self.poll(HT, "s42", "s43", sleep=8)
            a(f"v_min_u32 v{HT}, 47, v2"); a(f"v_lshlrev_b32 v{HT}, 2, v{HT}"); a("s_add_u32 s42, s42, 256"); self.poll(HT, "s42", "s43", sleep=8)
            a("s_lshl_b32 s40, s6, 2"); a("s_add_u32 s40, s40, s89")
            a(f"v_mov_b32 v{HT}, 1"); a("s_mov_b64 exec, 1"); a(f"buffer_store_dword v{HT}, off, s[8:11], s40 sc1"); a("s_mov_b64 exec, -1")
        def gu_aug():
            a("v_lshrrev_b32 v240, 5, v2"); a(f"v_mul_u32_u24 v241, {1792*4}, v240"); a("v_and_b32 v242, 31, v2"); a("v_min_u32 v242, 27, v242"); a("v_lshl_add_u32 v241, v242, 4, v241")
            a(f"s_mul_i32 s40, s17, {112*4}"); a(f"s_add_u32 s40, s40, {CS}")
            for p in range(8):
                a(f"buffer_load_dwordx4 {vr(208+4*p,4)}, v241, s[8:11], s40 offen sc1")
                if p < 7: a(f"s_add_u32 s40, s40, {2*1792*4}")
            a("v_lshrrev_b32 v243, 2, v242"); a("v_lshlrev_b32 v243, 8, v243"); a("v_lshl_add_u32 v243, v240, 7, v243"); a("v_and_b32 v244, 3, v242"); a("v_lshl_add_u32 v243, v244, 5, v243")
            a(f"v_add_u32 v243, {L_AUG + 768}, v243")
            a("s_waitcnt vmcnt(0)")
            for p in range(1, 8):
                for c in range(4): a(f"v_add_f32 v{208+c}, v{208+c}, v{208+4*p+c}")
            for c in range(4):
                a(f"v_cvt_pk_bf16_f32 v245, v{208+c}, v{208+c}"); a(f"v_and_b32 v{217+2*c}, 0xffff, v245")
                a("v_lshlrev_b32 v245, 16, v245"); a(f"v_sub_f32 v245, v{208+c}, v245"); a(f"v_cvt_pk_bf16_f32 v{216+2*c}, v{208+c}, v245")
            a("ds_write_b128 v243, v[216:219]"); a("ds_write_b128 v243, v[220:223] offset:16"); a("s_waitcnt lgkmcnt(0)")
        def pack_ready():
            a("s_lshl_b32 s42, s17, 8"); a(f"s_add_u32 s42, s42, {PFL}"); a("s_mov_b32 s43, 1")
            a(f"v_lshlrev_b32 v{HT}, 2, v2"); self.poll(HT, "s42", "s43", sleep=8)
        a(f"v_and_b32 v{HF_}, 3, v2"); a(f"v_lshlrev_b32 v{HF_}, 2, v{HF_}"); a(f"v_add_u32 v{HF_}, {L_HL}, v{HF_}")
        a("s_lshr_b32 s40, s6, 1"); a("s_lshl_b32 s41, s18, 1"); a("s_add_u32 s40, s40, s41"); a("s_lshl_b32 s41, s16, 2"); a("s_add_u32 s40, s40, s41")
        a("s_and_b32 s41, s6, 1"); a("s_lshl_b32 s42, s19, 1"); a("s_add_u32 s41, s41, s42")
        a("s_lshl_b32 s60, s40, 15"); a("s_lshl_b32 s42, s41, 11"); a("s_add_u32 s60, s60, s42")
        a("s_lshl_b32 s61, s40, 12"); a("s_lshr_b32 s42, s41, 2"); a("s_lshl_b32 s42, s42, 10"); a("s_add_u32 s61, s61, s42")
        a("s_lshl_b32 s62, s27, 15"); a("s_lshl_b32 s42, s17, 11"); a("s_add_u32 s62, s62, s42")
        a(f"s_mul_i32 s63, s27, {112*KB}"); a(f"s_mul_i32 s42, s17, {7*KB}"); a("s_add_u32 s63, s63, s42")
        def touch(items):
            a(self.touch_txt([([f"s_add_u32 s43, {r}, {b}"], n) for r, b, n in items]).replace(f"v{V_OUT},", "v31,"))
        def ext():
            pass
        for it in range(2):
            st["it"] = it
            if it == 0:
                KW = OPT.get("kw", 4); RP = OPT.get("rp", 8)
                wqkv([WK, WV], range(2, 4), win=KW)
                retire(max(4, cnt["done"]))
                only(w3, lambda: a("s_load_dwordx2 s[92:93], s[70:71], 0"))
                wqkv([WK, WV], range(4, 6), win=KW)
                only(w3, arrive)
                wqkv([WK, WV], range(6, RP), win=KW)
                only(["s_cmp_gt_u32 s87, 0"], rel_ld); cnt["ghost"] = (cnt["issued"], 8)
                wqkv([WK, WV], range(RP, 8), win=KW)
                only(kvw, lambda: (need("kv1", "H"), colsum(0, 16, True)))
                flush()
                self.stamp(9)
                only(kvw, lambda: (need("kv3", "H"), colsum(16, 32, False), augfin(), pack()))
                hpub("augkv")
                if OPT.get("rel0", 1): only(["s_cmp_gt_u32 s87, 0"], lambda: (a(f"s_setprio {OPT.get('rprio', 3)}"), a("s_waitcnt vmcnt(0)"), rel_do(), a("s_setprio 0")))
                self.stamp(10)
                need("x")
                wqkv([WQ], range(0, 8), win=63)
                only(w3, lambda: (nbr(), arrived_all() if OPT.get("aa", 0) else None))
                drain(); hpub("wq")
                need("wq", "H")
                if OPT.get("rel0", 1): only(["s_cmp_gt_u32 s87, 0"], rel_sig)
                QS = OPT.get("qs", 32)
                only(qw, lambda: (a("s_setprio 3"), colsum(0, QS, True), augfin() if QS == 32 else None))
                if QS == 32: hpub("augq")
                self.stamp(12)
            else:
                need("x"); hpub("augq")
            a(f"s_mov_b32 s42, {it + 1}")
            a("s_lshl_b32 s94, s17, 17"); a(f"s_add_u32 s94, s94, {KV + it*KVS}")
            self.stamp(14)
            need("kvf")
            self.stamp(15)
            a("s_mov_b64 exec, 3")
            self.poll(HV_PK, "s82", "s42")
            a("s_mov_b64 exec, -1")
            cnt["done"] = cnt["issued"]; retire(cnt["done"])
            self.stamp(2)
            halo()
            if it == 0:
                hold = list(sigs); sigs.clear()
                only(qw, lambda: ((colsum(QS, 32, False), augfin()) if QS < 32 else None, pack(), a("s_setprio 0")))
                hpub("augq"); sigs.extend(hold)
            if it == 0 and not OPT.get("rel0", 1): only(["s_cmp_gt_u32 s87, 0"], rel_ld); cnt["ghost"] = (cnt["issued"], 8)
            flush()
            if it == 0:
                a(f"v_mov_b32 v{V_TMP}, {L_MODE}"); a(f"ds_read_b32 v{V_TMP}, v{V_TMP}"); a("s_waitcnt lgkmcnt(0)"); a(f"v_readfirstlane_b32 s21, v{V_TMP}")
            if it == 0 and not OPT.get("aa", 0): only(w3, arrived_all)
            touch([("s62", OF, 16), ("s60", XA, 16), ("s61", STA, 8)])
            if it == 0: coop(); only(["s_cmp_lt_u32 s6, 3"], pack_st)
            self.stamp(3)
            for g in range(16):
                self.dma("s32", (2*(g%8) + g//8)*16*KB, RK + g*4*KB, voff=HV_R128, srd=SO); op()
                if it == 0 and not OPT.get("rel0", 1):
                    if g == 2: only(["s_cmp_gt_u32 s87, 0"], lambda: (a("s_waitcnt vmcnt(3)"), rel_do()))
                    if g == 3 + W: only(["s_cmp_gt_u32 s87, 0"], rel_sig)
            sig("wo")
            if it == 0:
                stash(OPT["st_a"]); flush()
                need("wo", "H")
                gu_ready(); cnt["done"] = cnt["issued"]
                only(w3, gu_aug)
            self.stamp(5)
            need("q"); tile(0)
            if it == 0: need("wo", "H")
            tile(1, range(0, 3))
            need("h0"); tile(1, range(3, 8))
            if it == 0: stash(OPT.get("st_b", 8)); only(w3, pack_ready)
            if OPT.get("htouch", 0) > it: touch([("s63", HF, 56)])
            if it == 0: touch([("s60", XB, 16), ("s61", STB, 8)])
            self.stamp(4)
            if OPT.get("t2e", 1):
                need("wo1"); tile(2); sig("t2_3")
                for p in range(3): self.seen.add(("H", f"t2_{p}"))
                need("xr"); flush(); wdw(range(0, 7))
                need("xch")
            else:
                need("wo"); tile(2, range(0, 2)); sig("t2_0")
                need("xch")
                for p in range(1, 4): tile(2, range(2*p, 2*p + 2)); sig(f"t2_{p}")
            if OPT.get("t3g"): need(f"g{OPT['t3g']}")
            tile(3); sig("t3")
            for p, nm in enumerate(("g8", "g16", "g24", "g32")):
                need(nm); tile(4, range(2*p, 2*p + 2))
            sig("t4")
            tile(5); sig("t5"); tile(6); sig("t6")
            if it == 0: stash(9)
            if OPT.get("wlate", 1): flush()
            need("t3"); wdw(range(7, 15))
            if it == 0: stash(8)
            need("t4"); wdw(range(15, 23))
            flush(); hpub("w0")
            if it == 0: stash(56)
            need("t5"); wdw(range(23, 31)); hpub("w23")
            need("t6"); wdw(range(31, 39)); hpub("w31")
            need("d7"); wdw(range(39, 46)); hpub("w39")
            if it == 0:
                need("d15"); wqp([WV], range(8))
                need("d23"); wqp([WK], range(4))
            need("d31"); wdw(range(46, 54)); hpub("w46")
            if it == 0:
                wqp([WK], range(4, 8))
                need("d39"); wqp([WQ], range(4))
            need("d45"); wdw(range(54, 56)); hpub("w54")
            if it == 0: wqp([WQ], range(4, 8))
            if it == 0:
                drain(); hpub("nkv")
                a("s_mov_b32 s23, 16")
        self.finish()

    def count_poll(self, soff, T):
        a = self.a; l = self.lab(); d = self.lab()
        a("s_mov_b32 s41, 0")
        l0 = self.lab(); a(f"s_branch {l0}"); a(f"{l}:"); a("s_sleep 8"); a(f"{l0}:")
        a(f"buffer_load_dwordx2 {vr(T,2)}, off, s[12:15], {soff} sc1"); a("s_waitcnt vmcnt(0)")
        a(f"v_readfirstlane_b32 s42, v{T}"); a(f"v_readfirstlane_b32 s43, v{T+1}")
        a("s_add_u32 s41, s41, 1"); a(f"s_cmp_gt_u32 s41, {OPT['spin']}"); a(f"s_cbranch_scc1 {d}")
        a("s_add_u32 s40, s42, s43"); a("s_mul_i32 s40, s40, 0x01010101"); a("s_lshr_b32 s40, s40, 24")
        a("s_cmp_lg_u32 s40, 16"); a(f"s_cbranch_scc1 {l}")
        a(f"{d}:")

    def build(self):
        a = self.a
        self.prologue()
        a("s_cmp_ge_u32 s3, 4"); a("s_cbranch_scc1 L_helper")
        self.compute()
        a("L_helper:")
        self.helper()
        assert self.used <= self.seen, self.used - self.seen
        a("L_end:"); a("s_endpgm")
        for x in self.ool: a.raw(x)
        a.raw("L_code_end:"); a.raw("    s_endpgm")
        return a.text()

def build():
    body = Main().build()
    return f"""; generated by dev/gen8.py
; @launch grid=(256,1,1) block=(512,1,1) lds={160*KB}
.amdgcn_target "amdgcn-amd-amdhsa--gfx950"
.text
{body}
.section .rodata,"a"
.p2align 6
.amdhsa_kernel {NAME}
  .amdhsa_next_free_vgpr 256
  .amdhsa_next_free_sgpr 102
  .amdhsa_accum_offset 256
  .amdhsa_group_segment_fixed_size 0
  .amdhsa_kernarg_size 80
  .amdhsa_user_sgpr_count 2
  .amdhsa_user_sgpr_kernarg_segment_ptr 1
  .amdhsa_system_sgpr_workgroup_id_x 1
.end_amdhsa_kernel
"""

if __name__ == "__main__":
    for x in sys.argv[2:]:
        if "=" in x: kk, v = x.split("="); OPT[kk] = int(v)
        else: OPT[x] = True
    open(sys.argv[1], "w").write(build())
```

```python
import sys, struct
from asmlib import *

NAME = "interleave_layers__sliding_block__glu_gated_glu__prompt_kernel"
KB = 1024
MB = 1 << 20
WQP  = 0
CS   = 0x180000
FL   = 0x1A0000
KVFL = 0x1A4000
RF   = 0x1AC000
PFL  = RF + 2048
AR   = RF + 8192
WGU  = 2*MB
STA  = WGU + 3584*KB; STB = STA + 256*KB
XA   = 6*MB; XB = 8*MB; OF = 10*MB
KV   = 12*MB
KVS  = 4*MB
HF   = 20*MB
WS_USED = 28*MB
ITS  = 32*MB
TS   = 0x6000000
WS_BYTES = 0x10000000
LOG2E = 1.4426950408889634
def f32(x): return "0x%08x" % struct.unpack("<I", struct.pack("<f", x))[0]
MF = "v_mfma_f32_32x32x16_bf16"
OPT = dict(stamp=False, force_slow=False, spin=400000, pre=10, cprio=2, fine=0, pf=0, st_a=14, kvflag=24, rot=1, win=6, hsc1=1)

P1, P2, P3, P4, PE, MISC = 0, 32*KB, 64*KB, 96*KB, 128*KB, 156*KB
LK = 108*KB; LV = LK + 12*KB; HS = 24*KB
L_AUG = MISC; L_ONES = MISC + 2560; L_HL = MISC + 2944; L_CP = L_HL + 16; L_MODE = L_HL + 32; L_DUMMY = MISC + 3072
DG = [0, 23, 31, 39, 46, 54]
DP = [7, 15, 23, 31, 39, 45]
CSEQ = ["x", "kv", "kvf", "q", "h0", "att", "wo1", "wo", "xr", "xch", "g8", "g16", "g24", "g32", "t3", "t4", "t5", "t6"] + [f"d{s}" for s in DP] + ["dx"]
HSEQ = ["kv0", "kv1", "kv2", "kv3", "augkv", "wq", "augq", "hk", "hv", "wo", "t2_0", "t2_1", "t2_2", "t2_3", "t3", "t4", "t5", "t6"] + [f"w{s}" for s in DG] + ["nkv"]
CV = {n: i + 1 for i, n in enumerate(CSEQ)}; HV = {n: i + 1 for i, n in enumerate(HSEQ)}
assert max(len(CSEQ), len(HSEQ)) < 64
XCH_WO = PE; XCH_DN = PE
L_X0 = P4
L_REL_ = 0
def wd_slot(s):
    for lo, hi, reg in ((0, 7, PE), (7, 15, P3), (15, 23, P2), (23, 31, P4), (31, 39, P1), (39, 46, PE), (46, 54, P4), (54, 56, PE + 16*KB)):
        if lo <= s < hi: return reg + (s - lo)*4*KB
GU_REG = [P1, P4, P2, P3, P2, P4, P1]
RQ, RK, RV = P1, P2, P3
F_O1, F_O2, F_X1, F_H1, F_H2, F_X2 = 1, 2, 3, 7, 9, 10
STASH = 32

V_LANE16 = 3; V_F0 = 4
V_TQ = 6
V_XOFF = 8
V_RSTD = 10; V_STD = 11; V_C1 = 12; V_TMP = 13; V_TS = 14; V_TS2 = 15
V_XAUG = 16
V_PX = 20; V_PH = 21; V_AUGA = 22; V_OUT = 23
V_RES = 24
V_PUBA = 0; V_FA = 35; V_FLG = 1; V_BASE = 9
V_FW = 32
V_EP = 36
ACC = [40, 56, 72, 88]
WR = 96; NW = 8
XR = 128
T0 = 104

class VM:
    def __init__(self, a): self.a = a; self.q = []
    def issue(self, tag): self.q.append(tag)
    def wait(self, tag):
        idx = max((i for i, t in enumerate(self.q) if t == tag), default=-1)
        if idx < 0: return
        n = len(self.q) - 1 - idx; assert n <= 63
        self.a(f"s_waitcnt vmcnt({n})"); del self.q[:idx + 1]
    def drain(self):
        self.a("s_waitcnt vmcnt(0)"); self.q = []

def stats_calc_list(d0, tmp):
    L = [f"v_mov_b32 v{tmp}, 0", f"v_mov_b32 v{tmp+1}, 0"]
    for i in range(8):
        L.append(f"v_dot2_f32_bf16 v{tmp}, v{d0+i}, s20, v{tmp}")
        L.append(f"v_dot2_f32_bf16 v{tmp+1}, v{d0+i}, v{d0+i}, v{tmp+1}")
    L += ["s_nop 2", f"v_permlane32_swap_b32 v{tmp}, v{tmp+1}", "s_nop 1", f"v_add_f32 v{tmp}, v{tmp}, v{tmp+1}"]
    return L

class Main:
    DBARS = list(range(0, 56, 7))
    def __init__(self):
        self.a = Asm(); self.nl = 0
        self.seen = set(); self.used = set()
        self.role = None; self.pend_stamp = None; self.ool = []; self.nw = NW; self.wr = WR
    def lab(self): self.nl += 1; return f"L{self.nl}"
    def emit(self, x):
        if callable(x): x()
        else: self.a(x)
    def pub(self, name):
        self.a(f"v_add_u32 v{V_TMP}, {CV[name]}, v{V_BASE}"); self.a(f"ds_write_b32 v{V_PUBA}, v{V_TMP}")
        self.seen.add(("C", name))
    def gate_rd(self, src): self.a(f"ds_read_b32 v{V_FLG}, v{V_FA} offset:{0 if src == 'H' else 16}")
    def gate_cmp(self, name, src="H", absval=None):
        a = self.a
        n = (HV if src == "H" else CV)[name]
        if absval is not None: a(f"s_movk_i32 s39, {absval}")
        else: a(f"s_add_u32 s39, s7, {n}")
        a(f"v_cmp_gt_u32 s[30:31], s39, v{V_FLG}")
        self.used.add((src, name))
    def gate_br(self, src="H", redo=[]):
        a = self.a; l1 = self.lab(); l2 = self.lab()
        a("s_cmp_eq_u64 s[30:31], 0"); a(f"s_cbranch_scc1 {l2}")
        a(f"{l1}:"); a("s_add_u32 s38, s38, 1"); a(f"s_cmp_gt_u32 s38, {OPT['spin']*16}"); a(f"s_cbranch_scc1 {l2}")
        a(f"ds_read_b32 v{V_FLG}, v{V_FA} offset:{0 if src == 'H' else 16}")
        for x in redo: a(x)
        a("s_waitcnt lgkmcnt(0)"); a(f"v_cmp_gt_u32 vcc, s39, v{V_FLG}"); a(f"s_cbranch_vccnz {l1}")
        a.pending.pop(l1, None)
        a(f"{l2}:")
    def gate_chk(self, name, src="H", absval=None):
        self.gate_cmp(name, src, absval); self.gate_br(src)
    def gate(self, name, src="H", absval=None):
        self.gate_rd(src); self.a("s_waitcnt lgkmcnt(0)"); self.gate_chk(name, src, absval)
    def stamp(self, i):
        if not OPT["stamp"]: return
        a = self.a
        a("s_memrealtime s[96:97]"); a("s_memtime s[98:99]"); a("s_waitcnt lgkmcnt(0)")
        if OPT.get("cnt"): a("s_lshl_b32 s98, s38, 12"); a("s_add_u32 s98, s98, s5")
        a(f"s_add_u32 s97, s23, {i}"); a(f"s_add_u32 m0, s97, s23"); a("s_nop 3")
        a(f"v_writelane_b32 v{V_TS}, s96, m0"); a(f"v_writelane_b32 v{V_TS2}, s98, m0")
    def store(self, instr, tag="st"):
        l1 = self.lab(); l2 = self.lab(); a = self.a
        if tag[0] == "h" and OPT.get("hsc1"):
            a(instr + " sc1"); self.vm.issue(tag); return
        a("s_cmp_lg_u32 s21, 0"); a(f"s_cbranch_scc1 {l1}"); a(instr); a(f"{l2}:")
        a.pending.pop(l1, None)
        self.ool += [f"{l1}:", "    " + instr + " sc1", f"    s_branch {l2}"]
        self.vm.issue(tag)
    def flag(self, val, tag="st"):
        a = self.a
        a(f"s_add_u32 s40, s23, {val}"); a(f"v_mov_b32 v{V_TMP}, s40"); self.vm.wait(tag); a("s_mov_b64 exec, 1")
        self.store(f"buffer_store_dword v{V_TMP}, off, s[8:11], s24", "fl_st"); a("s_mov_b64 exec, -1")
    def peek(self, voff):
        self.a(f"buffer_load_dword v{V_OUT}, v{voff}, s[8:11], s26 offen sc1"); self.vm.issue("pk")
    def check(self, voff, val):
        a = self.a; d = self.lab()
        a(f"s_add_u32 s61, s23, {val}")
        self.vm.wait("pk")
        a(f"v_cmp_gt_u32 vcc, s61, v{V_OUT}"); a(f"s_cbranch_vccz {d}")
        self.poll(voff, "s26", "s61")
        a(f"{d}:")
    def acquire(self):
        a = self.a; l = self.lab()
        a("s_cmp_eq_u32 s21, 0"); a(f"s_cbranch_scc1 {l}"); a("buffer_inv sc1"); a("s_waitcnt vmcnt(0)"); a(f"{l}:")
    def poll(self, voff, sbase, sval, srd="s[8:11]", sleep=0):
        a = self.a; l = self.lab(); d = self.lab()
        a("s_mov_b32 s41, 0")
        if sleep and OPT.get("pplain", 1):
            l0 = self.lab(); a(f"buffer_load_dword v{V_TMP}, v{voff}, {srd}, {sbase} offen"); a(f"s_branch {l0}"); a(f"{l}:"); a(f"s_sleep {sleep}")
            a(f"buffer_load_dword v{V_TMP}, v{voff}, {srd}, {sbase} offen sc1"); a(f"{l0}:")
        else:
            if sleep:
                l0 = self.lab(); a(f"s_branch {l0}"); a(f"{l}:"); a(f"s_sleep {sleep}"); a(f"{l0}:")
            else: a(f"{l}:")
            a(f"buffer_load_dword v{V_TMP}, v{voff}, {srd}, {sbase} offen sc1")
        if OPT.get("cnt"): a("s_add_u32 s5, s5, 1")
        a("s_add_u32 s41, s41, 1"); a(f"s_cmp_gt_u32 s41, {OPT['spin']}"); a(f"s_cbranch_scc1 {d}")
        a("s_waitcnt vmcnt(0)")
        a(f"v_cmp_gt_u32 vcc, {sval}, v{V_TMP}")
        a(f"s_cbranch_vccnz {l}")
        a(f"{d}:")
    def dma(self, sbase, const, lds, voff=V_LANE16, fl="", srd="s[8:11]", sl="s25"):
        a = self.a
        a(f"s_add_u32 s40, {sbase}, {const}")
        a(f"s_add_u32 m0, {sl}, {lds}")
        a(f"buffer_load_dwordx4 v{voff}, {srd}, s40 offen{fl} lds")
    def touch_txt(self, items):
        l = self.lab()
        L = ["s_cmp_lg_u32 s21, 0", f"s_cbranch_scc1 {l}", f"v_lshlrev_b32 v{V_TMP}, 7, v2"]
        for sal, n in items:
            L += sal
            m = (1 << n) - 1
            L += [f"s_mov_b32 exec_lo, {m & 0xffffffff:#x}", f"s_mov_b32 exec_hi, {m >> 32:#x}", f"buffer_load_dword v{V_OUT}, v{V_TMP}, s[8:11], s43 offen sc1"]
        L += ["s_mov_b64 exec, -1", f"{l}:"]
        return "\n".join(L)
    def stream(self, steps, look, fill=None):
        a = self.a
        reads = []; need = []
        for s in steps:
            reads += s["reads"]; need.append(len(reads) - 1)
        per = 2 if any(r["op"].endswith("tr_b16") for r in reads) else 1
        pre_rd = {}; pre_cmp = {}
        for i, r in enumerate(reads):
            if r.get("gate"):
                pre_rd[max(0, i - look - per)] = i; pre_cmp[max(0, i - per)] = i
        ng = sum(1 for r in reads if r.get("gate"))
        assert len(pre_rd) == ng and len(pre_cmp) == ng
        gi = sorted(pre_rd.values())
        assert all(b - a_ > look + per for a_, b in zip(gi, gi[1:])), gi
        nr = 0; q = []; done = [0]
        def wait(tag):
            idx = q.index(tag)
            if idx < done[0]: return
            n = len(q) - 1 - idx; assert n <= 15, n
            a(f"s_waitcnt lgkmcnt({n})"); done[0] = idx + 1
        def issue():
            nonlocal nr
            r = reads[nr]
            if nr in pre_rd: self.gate_rd(reads[pre_rd[nr]].get("gsrc", "H")); q.append(("g", pre_rd[nr]))
            if nr in pre_cmp:
                g = reads[pre_cmp[nr]]
                wait(("g", pre_cmp[nr])); self.gate_cmp(g["gate"], g.get("gsrc", "H"), g.get("absval"))
            if r.get("gate"): self.gate_br(r.get("gsrc", "H"))
            if r.get("vm") is not None: self.vm.wait(r["vm"])
            n = 4 if r["op"] == "ds_read_b128" else 2
            fm = r["fam"]; off = r["off"]
            reg = fm[off >> 16] if isinstance(fm, list) else fm
            a(f"{r['op']} {vr(r['d'], n)}, v{reg} offset:{off & 0xffff}"); q.append(nr)
            if r.get("pub"): self.pub(r["pub"]); q.append(("p", nr))
            nr += 1
        for i, s in enumerate(steps):
            while nr < len(reads) and nr <= need[i] + (look if i == 0 else 0): issue()
            for x in s.get("pre", []): self.emit(x)
            wait(need[i + 1] if (s.get("pair") and i + 1 < len(steps)) else need[i])
            a(s["mf"])
            nxt = need[i + 1] if i + 1 < len(steps) else need[i]
            while nr < len(reads) and nr <= nxt + look: issue()
            for x in s.get("post", []): self.emit(x)
            if fill:
                for f in fill(i): self.emit(f)
            if self.pend_stamp: self.stamp(self.pend_stamp); self.pend_stamp = None
    def rd128(self, w, off, gate=None, pub=None): return [dict(op="ds_read_b128", d=w, fam=[V_F0, V_F0 + 1], off=off, gate=gate, pub=pub)]
    def rdtr(self, w, fam, off, d2, gate=None, pub=None, absval=None):
        return [dict(op="ds_read_b64_tr_b16", d=w, fam=fam, off=off, gate=gate, absval=absval), dict(op="ds_read_b64_tr_b16", d=w + 2, fam=fam, off=off + d2, pub=pub)]
    def tr_addr16(self, dst, t0, t1):
        a = self.a
        a(f"v_lshrrev_b32 v{t0}, 5, v2"); a(f"v_lshlrev_b32 v{dst}, 9, v{t0}")
        a(f"v_bfe_u32 v{t0}, v2, 2, 2"); a(f"v_lshl_add_u32 v{dst}, v{t0}, 6, v{dst}")
        a(f"v_bfe_u32 v{t0}, v2, 4, 1"); a(f"v_lshl_add_u32 v{dst}, v{t0}, 5, v{dst}")
        a(f"v_and_b32 v{t0}, 1, v2"); a(f"v_lshl_add_u32 v{dst}, v{t0}, 4, v{dst}")
        a(f"v_bfe_u32 v{t0}, v2, 1, 1"); a(f"v_lshl_add_u32 v{dst}, v{t0}, 3, v{dst}")

    def prologue(self):
        a = self.a
        a.raw(f".globl {NAME}"); a.raw(".p2align 8"); a.raw(f".type {NAME},@function"); a.raw(f"{NAME}:")
        a(f"s_cmp_ge_u32 s2, {0 if OPT.get('empty') else 256}"); a("s_cbranch_scc1 L_end")
        if OPT["stamp"]: a("s_memrealtime s[100:101]")
        a("s_load_dwordx4 s[64:67], s[0:1], 0")
        a("s_load_dwordx2 s[8:9], s[0:1], 72")
        a("s_load_dwordx2 s[68:69], s[0:1], 16")
        a("s_load_dwordx8 s[72:79], s[0:1], 32")
        a("s_load_dwordx2 s[70:71], s[0:1], 64")
        a(f"s_mov_b32 s10, {WS_BYTES}"); a("s_mov_b32 s11, 0x20000")
        a("v_lshrrev_b32 v1, 6, v0"); a("v_and_b32 v2, 63, v0")
        a("v_readfirstlane_b32 s3, v1")
        a(f"v_lshlrev_b32 v{V_LANE16}, 4, v2")
        a("s_and_b32 s4, s2, 7"); a("s_lshr_b32 s5, s2, 3"); a("s_and_b32 s6, s3, 3")
        a("s_lshl_b32 s16, s4, 1"); a("s_lshr_b32 s40, s5, 4"); a("s_add_u32 s16, s16, s40")
        a("s_and_b32 s17, s5, 15")
        a("s_lshr_b32 s18, s17, 3"); a("s_and_b32 s19, s17, 7")
        a("s_mov_b32 s20, 0x3f803f80"); a("s_mov_b32 s21, 0"); a("s_mov_b32 s22, 0"); a("s_mov_b32 s23, 0")
        a("s_lshl_b32 s26, s16, 9"); a(f"s_add_u32 s26, s26, {FL}")
        a("s_lshl_b32 s24, s17, 5"); a("s_lshl_b32 s40, s3, 2"); a("s_add_u32 s24, s24, s40"); a("s_add_u32 s24, s24, s26")
        a("s_lshl_b32 s25, s6, 10")
        a("s_lshl_b32 s27, s16, 2"); a("s_add_u32 s27, s27, s6")
        if OPT["rot"]: a("s_add_u32 s28, s16, s17"); a("s_lshl_b32 s28, s28, 2"); a("s_and_b32 s28, s28, 31")
        else: a("s_mov_b32 s28, 0")
        a("s_mov_b32 s35, 0"); a("s_mov_b32 s36, 0")
        a(f"v_mov_b32 v{V_TS}, 0"); a(f"v_mov_b32 v{V_TS2}, 0")
        a("s_xor_b32 s40, s3, 4"); a("s_lshl_b32 s40, s40, 2"); a(f"s_add_u32 s40, s40, {L_HL}")
        a(f"v_lshlrev_b32 v{V_PUBA}, 2, v2"); a(f"v_add_u32 v{V_PUBA}, {L_DUMMY}, v{V_PUBA}"); a(f"v_writelane_b32 v{V_PUBA}, s40, 0")
        a(f"v_mov_b32 v{V_BASE}, 0"); a("s_mov_b32 s7, 0"); a("s_mov_b32 s38, 0")
        a(f"ds_write_b32 v{V_PUBA}, v{V_BASE}")
        a("s_waitcnt lgkmcnt(0)"); a("s_barrier")

    def attention(self):
        a = self.a
        KF = XR + 8; S = [XR + 44, XR + 60, XR + 76]; NM = [XR + 92, XR + 108]; MX = [XR + 124, XR + 125]; T = XR + 126
        O = [ACC[2], ACC[3]]; VA = ACC[1]; KA = VA + 9
        VF = [104, 112]; P = [120, ACC[0] + 8]; BM = ACC[0]; NEG = KA + 2
        a("v_and_b32 v104, 31, v2"); a("v_lshrrev_b32 v105, 5, v2")
        a(f"v_and_b32 v{KA}, 0x13, v104"); a("v_bfe_u32 v106, v104, 2, 1"); a(f"v_lshl_add_u32 v{KA}, v106, 3, v{KA}")
        a("v_bfe_u32 v106, v104, 3, 1"); a(f"v_lshl_add_u32 v{KA}, v106, 2, v{KA}")
        a(f"v_lshlrev_b32 v{KA}, 4, v{KA}"); a(f"v_lshl_add_u32 v{KA}, v105, 9, v{KA}")
        a(f"s_add_u32 s41, s25, {LK}"); a(f"v_add_u32 v{KA}, s41, v{KA}")
        a("v_bfe_u32 v106, v2, 2, 2"); a("v_lshl_add_u32 v106, v105, 3, v106"); a("v_lshlrev_b32 v106, 4, v106")
        a("v_and_b32 v107, 1, v2"); a("v_lshl_add_u32 v106, v107, 9, v106")
        a("v_bfe_u32 v107, v2, 1, 1"); a("v_lshl_add_u32 v106, v107, 3, v106")
        a(f"s_add_u32 s41, s25, {LV}"); a("v_add_u32 v106, s41, v106")
        a("v_bfe_u32 v107, v2, 4, 1"); a("v_cmp_eq_u32 vcc, 1, v107")
        a(f"v_mov_b32 v109, {HS}"); a(f"v_cndmask_b32_e64 v{KA+1}, v109, 0, vcc")
        a("s_sub_i32 s42, 8, s27")
        for i in range(9):
            a(f"s_cmp_gt_i32 s42, {i}"); a("s_cselect_b32 s41, 8, 0"); a(f"s_add_u32 s41, s41, {L_ONES}")
            a(f"v_mov_b32 v107, s41"); a(f"v_add_u32 v108, {i*KB}, v106")
            a(f"v_cndmask_b32 v{VA+i}, v108, v107, vcc")
        a("v_mov_b32 v107, 0xffff"); a("v_mov_b32 v108, 0xffff0000")
        for p in range(8):
            a(f"v_cndmask_b32_e64 v109, v107, 0, s[{64+4*p}:{65+4*p}]"); a(f"v_cndmask_b32_e64 v110, v108, 0, s[{66+4*p}:{67+4*p}]")
            a(f"v_or_b32 v{BM+p}, v109, v110")
        a(f"v_mov_b32 v{NEG}, {f32(-1e30)}")
        return dict(KF=KF, S=S, NM=NM, O=O, VA=VA, VF=VF, P=P, BM=BM, MX=MX, T=T, KA=KA, NEG=NEG)

    def attention_run(self, r, halo_k, halo_v, early_a, redo_a):
        a = self.a
        KF, S, NM, O, VA, VF, P, BM, MX, T, KA, NEG = (r[x] for x in "KF S NM O VA VF P BM MX T KA NEG".split())
        def kread(hh, i, d=None): a(f"ds_read_b128 {vr(KF+4*(i if d is None else d),4)}, v{KA} offset:{hh*HS + i*KB}")
        def vrd(reg, vf):
            for t in range(2):
                for u in range(2): a(f"ds_read_b64_tr_b16 {vr(vf+4*t+2*u,2)}, v{reg} offset:{t*256 + u*64}")
        def vread(hh, i, vf):
            vrd(VA + i, vf)
            if hh == 0: a(f"v_add_u32 v{VA+i}, v{KA+1}, v{VA+i}")
        def qk(hh, dst, i, c): a(f"{MF} {vr(dst,16)}, {vr(KF+4*i,4)}, {vr(XR+4*hh,4)}, {c}")
        def pv(hh, vf, p, t, first=False): a(f"{MF} {vr(O[hh],16)}, {vr(vf+4*t,4)}, {vr(p+4*t,4)}, {'0' if first else vr(O[hh],16)}")
        def mx(b, first=False):
            lo = 0
            if first:
                a(f"v_max3_f32 v{MX[0]}, v{b}, v{b+1}, v{b+2}"); a(f"v_max3_f32 v{MX[1]}, v{b+3}, v{b+4}, v{b+5}"); lo = 6
            for n, q in enumerate(range(lo, 16, 2)): a(f"v_max3_f32 v{MX[n%2]}, v{MX[n%2]}, v{b+q}, v{b+q+1}")
        def mxfin(hh):
            a(f"v_max_f32 v{MX[0]}, v{MX[0]}, v{MX[1]}"); a(f"v_mov_b32 v{MX[1]}, v{MX[0]}")
            a(f"v_permlane32_swap_b32 v{MX[0]}, v{MX[1]}"); a("s_nop 1"); a(f"v_max_f32 v{MX[0]}, v{MX[0]}, v{MX[1]}")
            for q in range(16): a(f"v_sub_f32 v{NM[hh]+q}, 0, v{MX[0]}")
        def mask(b, diag):
            for q in range(16):
                a(f"v_cndmask_b32_e64 v{b+q}, v{NEG}, v{b+q}, s[{64+2*q}:{65+2*q}]" if diag else f"v_cndmask_b32_e64 v{b+q}, v{b+q}, v{NEG}, s[{64+2*q}:{65+2*q}]")
        def ex(b, lo, hi):
            for q in range(lo, hi): a(f"v_exp_f32 v{b+q}, v{b+q}")
        def cv(p, b, lo, hi):
            for q in range(lo, hi): a(f"v_cvt_pk_bf16_f32 v{p+q}, v{b+2*q}, v{b+2*q+1}")
        def fin(hh, bad=None):
            a(f"v_rcp_f32 v{T}, v{O[hh]+8}")
            if bad:
                a(f"v_cmp_nle_f32 vcc, v{O[hh]+8}, v{NEG+1}")
            for q in range(8): a(f"v_mul_f32 v{O[hh]+q}, v{T}, v{O[hh]+q}")
            if bad: a(f"s_cbranch_vccnz {bad}"); a.pending.pop(bad, None)
            for q in range(4): a(f"v_cvt_pk_bf16_f32 v{V_EP+q}, v{O[hh]+2*q}, v{O[hh]+2*q+1}")
            self.store(f"buffer_store_dwordx4 {vr(V_EP,4)}, v{V_LANE16}, s[8:11], s37 offen offset:{hh*KB}")
        a(f"v_mov_b32 v{NEG+1}, {f32(2.0**OPT.get('thr', 40))}")
        kread(0, 8); kread(1, 8, 7); vread(0, 8, VF[0]); vread(1, 8, VF[1])
        a("s_waitcnt lgkmcnt(9)"); qk(0, S[0], 8, "0")
        a("s_waitcnt lgkmcnt(8)"); qk(1, S[1], 7, "0")
        for hh in range(2):
            b = S[hh]
            mask(b, True); mx(b, True); mxfin(hh)
            for q in range(16): a(f"v_sub_f32 v{b+q}, v{b+q}, v{MX[0]}")
            ex(b, 0, 16); cv(P[hh], b, 0, 8)
            a("s_waitcnt lgkmcnt(0)")
            pv(hh, VF[hh], P[hh], 0, True); pv(hh, VF[hh], P[hh], 1)
        if OPT["fine"] > 2: self.stamp(15)
        halo_k()
        order = [7, 6, 5, 4, 3, 2, 1, 0]
        blocks = [(hh, i) for hh in range(2) for i in order]
        for i in order: kread(0, i)
        a("s_waitcnt lgkmcnt(7)"); qk(0, S[0], 7, vr(NM[0], 16))
        a("s_waitcnt lgkmcnt(6)"); qk(0, S[1], 6, vr(NM[0], 16))
        halo_v()
        F3 = (lambda i: self.stamp(i)) if OPT["fine"] > 2 else (lambda i: None)
        F3(16)
        kread(1, 7); kread(1, 6)
        pend = None
        for n, (hh, i) in enumerate(blocks):
            b = S[n % 3]; vf = VF[n % 2]; p = P[n % 2]
            ex(b, 0, 4)
            vread(hh, i, vf)
            if pend: pv(*pend)
            ex(b, 4, 10)
            kr = False
            if n + 2 < 16:
                h2, i2 = blocks[n + 2]
                qk(h2, S[(n + 2) % 3], i2, vr(NM[h2], 16))
                if h2 == 0: kread(1, i2); kr = True
            if n == OPT.get("pk", 15): self.peek(V_PH)
            ex(b, 10, 16)
            if n == 8: F3(17); fin(0, "L_redo0"); self.pub("h0"); F3(18)
            if n == OPT.get("fo1", 11): F3(19); self.flag(F_O1); F3(20)
            cv(p, b, 0, 8)
            if i == 0:
                for q in range(8): a(f"v_and_b32 v{p+q}, v{BM+q}, v{p+q}")
            a("s_waitcnt lgkmcnt(1)" if (kr or n == 8) else "s_waitcnt lgkmcnt(0)")
            pv(hh, vf, p, 0)
            pend = (hh, vf, p, 1)
        pv(*pend)
        fin(1, "L_redo1")
        self.pub("att")
        lb = self.lab(); lj = self.lab()
        a(f"s_add_u32 s61, s23, {F_O1}"); self.vm.wait("pk")
        a(f"v_cmp_gt_u32 vcc, s61, v{V_OUT}"); a(f"s_cbranch_vccz {lb}")
        qs = list(self.vm.q)
        a("L_att_late:")
        self.flag(F_O2); redo_a(a); a("s_waitcnt vmcnt(0)"); a(f"s_branch {lj}")
        a(f"{lb}:")
        self.vm.q = qs
        early_a()
        self.flag(F_O2)
        a(f"{lj}:")
        main = self.a; saved_q = list(self.vm.q)
        self.a = a = Asm(); self.vm.a = a
        def redo(hh):
            a("s_nop 15"); a("s_waitcnt vmcnt(0) lgkmcnt(0)")
            for i in range(9): kread(hh, i)
            a("s_waitcnt lgkmcnt(0)")
            for i in (8, 0, 1, 2, 3, 4, 5, 6, 7):
                qk(hh, S[0], i, "0")
                if i in (0, 8): mask(S[0], i == 8)
                mx(S[0], i == 8)
            mxfin(hh)
            for i in range(9):
                if hh == 0: a(f"v_sub_u32 v{T}, v{VA+i}, v{KA+1}")
                vrd(T if hh == 0 else VA + i, VF[0])
                qk(hh, S[0], i, vr(NM[hh], 16))
                if i in (0, 8): mask(S[0], i == 8)
                ex(S[0], 0, 16); cv(P[0], S[0], 0, 8)
                a("s_waitcnt lgkmcnt(0)")
                pv(hh, VF[0], P[0], 0, i == 0); pv(hh, VF[0], P[0], 1)
            fin(hh)
        a("L_redo0:")
        redo(0); self.pub("h0"); self.vm.q = ["st"]; self.flag(F_O1)
        a("L_redo1:")
        redo(1); self.pub("att")
        a("s_waitcnt vmcnt(0)"); a("s_branch L_att_late")
        self.ool += a.out
        self.a = main; self.vm.a = main; self.vm.q = saved_q

    def ln_stats(self, d):
        L = []
        for n in (8, 4, 2, 1):
            for i in range(n): L.append(f"v_add_f32 v{d+i}, v{d+i}, v{d+i+n}")
        L += [f"v_mov_b32 v{d+1}, v{d}", f"v_permlane32_swap_b32 v{d}, v{d+1}", "s_nop 1",
              f"v_mul_f32 v{d}, {f32(-1.0/512)}, v{d}", f"v_mul_f32 v{d+1}, {f32(1.0/512)}, v{d+1}",
              f"v_fma_f32 v{d+1}, -v{d}, v{d}, v{d+1}", f"v_max_f32 v{d+1}, 0, v{d+1}", f"v_add_f32 v{d+1}, {f32(1e-5)}, v{d+1}",
              f"v_rsq_f32 v{V_RSTD}, v{d+1}", f"v_sqrt_f32 v{V_STD}, v{d+1}",
              f"v_cvt_pk_bf16_f32 v{V_XAUG}, v{d}, v{d}",
              f"v_and_b32 v{d+2}, 0xffff0000, v{V_XAUG}", f"v_sub_f32 v{d+2}, v{d}, v{d+2}", f"v_mov_b32 v{d+3}, 0",
              f"v_cvt_pk_bf16_f32 v{V_XAUG+1}, v{d+2}, v{d+3}",
              f"v_cndmask_b32_e64 v{V_XAUG}, 0, v{V_XAUG}, s[62:63]", f"v_cndmask_b32_e64 v{V_XAUG+1}, 0, v{V_XAUG+1}, s[62:63]",
              f"v_mul_f32 v{V_C1}, {f32(-LOG2E)}, v{V_RSTD}"]
        return L
    def wreg(self):
        w = self.wr + 4 * (self.wc % self.nw); self.wc += 1; return w
    def aug_step(self, acc, augidx, bn=None, look=None):
        w = self.wreg()
        s = dict(reads=[dict(op="ds_read_b64", d=w, fam=V_AUGA, off=augidx * 256, gate=bn)], mf=f"{MF} {vr(acc,16)}, {vr(w,4)}, {vr(V_XAUG,4)}, {vr(acc,16)}")
        return s
    def x_pass1(self, xl, sst, local, wread, augs, augbar, NT=2):
        a = self.a; vm = self.vm
        PRE = OPT["pre"] if NT == 2 else OPT.get("pre3", OPT["pre"]); STD = ACC[NT]
        def X(kc):
            def f(): xl(kc); vm.issue(f"x{kc}")
            return f
        XS = STD + 4
        def piece(p):
            a(f"s_add_u32 s41, s28, {4*p}"); a("s_and_b32 s41, s41, 31"); a("s_lshl_b32 s41, s41, 5"); a("s_add_u32 s41, s41, s55")
            for i in range(4): self.dma("s41", i*8*KB, L_X0 + (p%3)*16*KB + i*KB, voff=XS + i%2, srd="s[44:47]", sl="s42"); vm.issue(f"pc{p}")
        def dots(lo, hi):
            for kc in range(lo, hi):
                for i in range(4):
                    r = XR + 4 * kc + i
                    a(f"v_dot2c_f32_bf16 v{STD + 2*(i%2)}, s20, v{r}"); a(f"v_dot2c_f32_bf16 v{STD + 1 + 2*(i%2)}, v{r}, v{r}")
        def xrd(p): return [dict(op="ds_read_b128", d=XR+16*p+4*q, fam=XS+2+q, off=(p%3)*16*KB, vm=(f"pc{p}" if q == 0 else None)) for q in range(4)]
        def piece_part(p, i):
            if i == 0: a(f"s_add_u32 s33, s28, {4*p}"); a("s_and_b32 s33, s33, 31"); a("s_lshl_b32 s33, s33, 5"); a("s_add_u32 s33, s33, s55")
            self.dma("s33", i*8*KB, L_X0 + (p%3)*16*KB + i*KB, voff=XS + i%2, srd="s[44:47]", sl="s42"); vm.issue(f"pc{p}")
        def fin0():
            dots(28, 32)
            a(f"v_add_f32 v{STD}, v{STD}, v{STD+2}"); a(f"v_add_f32 v{STD+1}, v{STD+1}, v{STD+3}")
            a(f"v_permlane32_swap_b32 v{STD}, v{STD+1}"); a("s_nop 1"); a(f"v_add_f32 v{STD}, v{STD}, v{STD+1}")
            for x in self.ln_stats(STD)[15:]: a(x)
        if local == "start":
            a(f"v_lshrrev_b32 v{XS+3}, 4, v2"); a(f"v_and_b32 v{XS}, 7, v2"); a(f"v_xor_b32 v{XS}, v{XS+3}, v{XS}"); a(f"v_lshlrev_b32 v{XS}, 4, v{XS}")
            a(f"v_lshrrev_b32 v{XS+3}, 3, v2"); a(f"v_lshl_add_u32 v{XS}, v{XS+3}, 10, v{XS}"); a(f"v_xor_b32 v{XS+1}, 64, v{XS}")
            a("s_lshl_b32 s42, s6, 12")
            a("s_waitcnt lgkmcnt(0)"); a("s_mov_b64 s[44:45], s[64:65]")
            piece(0)
            return
        if local:
            piece(1); piece(2)
            for i in range(4): a(f"v_mov_b32 v{STD+i}, 0")
            a(f"v_bfe_u32 v{XS+2}, v2, 1, 3"); a(f"v_lshrrev_b32 v{XS+3}, 5, v2"); a(f"v_xor_b32 v{XS+2}, v{XS+3}, v{XS+2}"); a(f"v_lshlrev_b32 v{XS+2}, 4, v{XS+2}")
            a(f"v_and_b32 v{XS+3}, 31, v2"); a(f"v_lshl_add_u32 v{XS+2}, v{XS+3}, 7, v{XS+2}")
            a(f"s_add_u32 s41, s42, {L_X0}"); a(f"v_add_u32 v{XS+2}, s41, v{XS+2}")
            for q in range(1, 4): a(f"v_xor_b32 v{XS+2+q}, {32*q}, v{XS+2}")
        else:
            for i in range(4): a(f"buffer_load_dwordx4 {vr(STD+4*i,4)}, v{V_LANE16}, s[8:11], {sst} offen offset:{1024*i} sc1")
            for kc in range(PRE): X(kc)()
        steps = []
        st = self.ln_stats(STD)
        for kc in range(32):
            for t in range(NT):
                w = self.wreg()
                s = dict(reads=wread(w, t, kc), mf=f"{MF} {vr(ACC[t],16)}, {vr(w,4)}, {vr(XR+4*kc,4)}, {'0' if kc == 0 else vr(ACC[t],16)}", post=[])
                if local:
                    p = kc // 4
                    if t == 0 and kc % 4 == 0:
                        s["reads"] = xrd(p) + s["reads"]
                        if p: s["pre"] = [lambda p=p: dots(4*p - 4, 4*p)]
                        if OPT["fine"] == 2: s["post"].append(lambda p=p: self.stamp(16 + p))
                    n8 = 2 * (kc % 4) + t
                    if n8 < 4 and p + 3 < 8: s["post"].append(lambda p=p, n8=n8: piece_part(p + 3, n8))
                    if n8 == 4 and p == 4: s["post"].append(lambda: self.pub("x"))
                    if t == 1 and kc == 31: s["post"].append(fin0)
                elif t == 0:
                    s["pre"] = [lambda kc=kc: vm.wait(f"x{kc}")]
                    if kc + PRE < 32: s["post"].append(X(kc + PRE))
                elif kc >= 2:
                    s["post"] += st[:3]; st = st[3:]
                steps.append(s)
        for t in range(NT): steps.append(self.aug_step(ACC[t], augs[t], augbar if t == 0 else None))
        return steps

    def res_gemm(self, nsteps, slot, areg, aload, pre_issued, PRE, gates, pubs, xch, xpub, pre_x, hooks={}):
        a = self.a; vm = self.vm
        for i in range(8):
            a(f"v_lshlrev_b32 v{ACC[0]+2*i}, 16, v{V_RES+i}"); a(f"v_and_b32 v{ACC[0]+2*i+1}, 0xffff0000, v{V_RES+i}")
        a(f"v_xor_b32 v{V_EP}, 64, v{V_FW}"); a(f"v_add_u32 v{V_EP+1}, 0x10000, v{V_EP}"); a(f"v_add_u32 v{V_EP+2}, 0x20000, v{V_EP}")
        nxt = [pre_issued]
        def upto(n):
            while nxt[0] < min(n, nsteps): aload(nxt[0]); nxt[0] += 1
        steps = []; self.wc = 0; self.wr = WR; self.nw = NW
        fo = [V_FW, V_FW + 1, V_FW + 2]; ft = [V_EP, V_EP + 1, V_EP + 2]
        order = [(s, t) for s in range(nsteps - 2) for t in range(2)] + [(nsteps - 2, 1), (nsteps - 1, 1), (nsteps - 2, 0), (nsteps - 1, 0)]
        first = {}; last = {}
        for n, (s, t) in enumerate(order): first.setdefault(s, n); last[s] = n
        for n, (s, t) in enumerate(order):
            w = self.wreg()
            c = vr(ACC[t], 16) if (t == 0 or s > 0) else "0"
            st = dict(reads=self.rdtr(w, fo if t == 0 else ft, slot(s), 512, gates.get(s) if first[s] == n else None, pubs.get(s) if last[s] == n else None),
                      mf=f"{MF} {vr(ACC[t],16)}, {vr(w,4)}, {vr(areg(s),4)}, {c}")
            if first[s] == n and s == pre_x[0]: st["reads"][0].update(gate=pre_x[1], gsrc="C")
            if first[s] == n: st["pre"] = ([lambda s=s: hooks[s](upto)] if s in hooks else []) + [lambda s=s: vm.wait(f"a{s}")]
            elif PRE: st["post"] = [lambda s=s: upto(s + 1 + PRE)]
            steps.append(st)
        a(f"s_xor_b32 s40, s6, 1"); a("s_lshl_b32 s40, s40, 12"); a(f"s_add_u32 s40, s40, {xch}"); a(f"v_add_u32 v{V_EP+3}, s40, v{V_LANE16}")
        self.stream(steps, look=10)
        if OPT["fine"] and nsteps == 56: self.stamp(9)
        for i in range(4): a(f"ds_write_b128 v{V_EP+3}, {vr(ACC[1]+4*i,4)} offset:{i*KB}")
        self.pub(xpub)
        a(f"v_xor_b32 v{V_EP+3}, 4096, v{V_EP+3}")
        rds = [f"ds_read_b128 {vr(ACC[2]+4*i,4)}, v{V_EP+3} offset:{i*KB}" for i in range(4)]
        self.gate_rd("C")
        for x in rds: a(x)
        a("s_waitcnt lgkmcnt(4)")
        self.gate_cmp(xpub, "C"); self.gate_br("C", redo=rds)
        for i in range(4):
            a(f"s_waitcnt lgkmcnt({3-i})")
            for q in range(4): a(f"v_add_f32 v{ACC[0]+4*i+q}, v{ACC[0]+4*i+q}, v{ACC[2]+4*i+q}")
            for q in range(2): a(f"v_cvt_pk_bf16_f32 v{V_RES+2*i+q}, v{ACC[0]+4*i+2*q}, v{ACC[0]+4*i+2*q+1}")

    def x_store(self, sx, sst, flagval):
        a = self.a
        self.store(f"buffer_store_dwordx4 {vr(V_RES,4)}, v{V_LANE16}, s[8:11], {sx} offen")
        self.store(f"buffer_store_dwordx4 {vr(V_RES+4,4)}, v{V_LANE16}, s[8:11], {sx} offen offset:1024")
        for x in stats_calc_list(V_RES, ACC[1]): a(x)
        self.store(f"buffer_store_dword v{ACC[1]}, v{V_LANE16}, s[8:11], {sst} offen")
        self.flag(flagval)

    def compute(self):
        a = self.a; self.role = "C"; self.vm = vm = VM(a)
        a(f"s_setprio {OPT['cprio']}")
        a("v_and_b32 v104, 31, v2"); a("v_lshrrev_b32 v105, 5, v2")
        a(f"v_lshlrev_b32 v{V_XOFF}, 10, v104"); a(f"v_lshl_add_u32 v{V_XOFF}, v105, 4, v{V_XOFF}")
        a("s_lshl_b32 s55, s27, 15")
        a(f"s_mov_b32 s46, {2048*1024}"); a("s_mov_b32 s47, 0x20000")
        self.x_pass1(None, None, "start", None, None, None)
        a(f"s_mov_b32 s14, {2048*1024}"); a("s_mov_b32 s15, 0x20000")
        a("s_lshr_b32 s50, s6, 1"); a("s_and_b32 s51, s6, 1")
        a("s_lshl_b32 s48, s18, 1"); a("s_add_u32 s48, s48, s50"); a("s_mov_b32 s52, s48")
        a("s_lshl_b32 s40, s16, 2"); a("s_add_u32 s48, s48, s40")
        a("s_lshl_b32 s49, s19, 1"); a("s_add_u32 s49, s49, s51")
        a("s_lshl_b32 s53, s48, 15"); a("s_lshl_b32 s40, s49, 11"); a("s_add_u32 s53, s53, s40")
        a("s_lshl_b32 s54, s48, 12"); a("s_lshr_b32 s40, s49, 2"); a("s_lshl_b32 s40, s40, 10"); a("s_add_u32 s54, s54, s40")
        a("s_and_b32 s40, s49, 3"); a("s_lshl_b32 s40, s40, 2"); a("s_add_u32 s54, s54, s40")
        a(f"v_mov_b32 v{V_F0}, v{V_LANE16}"); a(f"v_add_u32 v{V_F0+1}, 0x10000, v{V_LANE16}")
        self.tr_addr16(V_TQ, 106, 107); a(f"v_add_u32 v{V_TQ+1}, 0x10000, v{V_TQ}")
        a(f"v_lshlrev_b32 v{V_FW}, 10, v105"); a("v_bfe_u32 v106, v2, 2, 2"); a(f"v_lshl_add_u32 v{V_FW}, v106, 7, v{V_FW}")
        a("v_bfe_u32 v106, v2, 3, 1"); a("v_xor_b32 v106, s51, v106"); a(f"v_lshl_add_u32 v{V_FW}, v106, 6, v{V_FW}")
        a(f"v_and_b32 v106, 63, v{V_TQ}"); a(f"v_add_u32 v{V_FW}, v106, v{V_FW}")
        a("s_lshl_b32 s40, s51, 11"); a(f"v_add_u32 v{V_FW}, s40, v{V_FW}")
        a(f"v_add_u32 v{V_FW+1}, 0x10000, v{V_FW}"); a(f"v_add_u32 v{V_FW+2}, 0x20000, v{V_FW}")
        a("v_bfe_u32 v106, v2, 1, 3"); a("v_and_b32 v107, 1, v2"); a("v_and_b32 v108, 7, v2")
        a("s_lshl_b32 s40, s50, 8"); a("s_lshl_b32 s41, s51, 3"); a("s_add_u32 s40, s40, s41")
        a(f"v_lshlrev_b32 v{V_PX}, 5, v106"); a(f"v_lshl_add_u32 v{V_PX}, v107, 2, v{V_PX}"); a(f"v_add_u32 v{V_PX}, s40, v{V_PX}")
        a("s_lshl_b32 s40, s51, 8"); a("s_lshl_b32 s41, s52, 2"); a("s_add_u32 s40, s40, s41")
        a(f"v_lshlrev_b32 v{V_PH}, 5, v108"); a(f"v_add_u32 v{V_PH}, s40, v{V_PH}")
        a(f"v_lshlrev_b32 v{V_AUGA}, 3, v104"); a(f"v_add_u32 v{V_AUGA}, {L_AUG}, v{V_AUGA}")
        a(f"v_mov_b32 v{V_XAUG+2}, 0"); a(f"v_mov_b32 v{V_XAUG+3}, 0")
        for r in range(WR, WR + 32, 4): a(f"v_mov_b32 v{r+2}, 0") if False else None
        a("v_cmp_gt_u32 s[62:63], 32, v2")
        a("v_lshlrev_b32 v106, 3, v105"); a("v_sub_u32 v106, v104, v106")
        a("s_mov_b64 s[12:13], s[78:79]")
        if OPT["stamp"]: a(f"v_writelane_b32 v{V_TS}, s100, 31")
        for r in range(16): a(f"v_cmp_le_i32 s[{64+2*r}:{65+2*r}], {16*(r>>3) + (r&7)}, v106")
        a(f"v_and_b32 v{V_FA}, 3, v2"); a(f"v_lshlrev_b32 v{V_FA}, 2, v{V_FA}"); a(f"v_add_u32 v{V_FA}, {L_HL}, v{V_FA}")
        self.stamp(0)
        ftq = [V_TQ, V_TQ + 1]
        self.wc = 0
        steps = self.x_pass1(None, None, True, lambda w, t, kc: self.rdtr(w, ftq, (RK, RV)[t] + kc*KB, 256, f"kv{kc//8}" if (t == 0 and kc % 8 == 0) else None, "kv" if (t == 1 and kc == 31) else None), [1, 2], "augkv")
        self.stream(steps, look=8)
        a("s_branch L_c_go")
        a("L_c_loop:")
        self.stamp(0)
        self.poll(V_PX, "s26", "s57"); vm.q = []
        self.stamp(1)
        def xl(kc):
            if kc % 4 == 0: a(f"s_add_u32 s43, s55, {kc*KB}")
            a(f"buffer_load_dwordx4 {vr(XR+4*kc,4)}, v{V_LANE16}, s[8:11], s43 offen offset:{(kc%4)*KB} sc1")
        self.wc = 0
        steps = self.x_pass1(xl, "s56", False, lambda w, t, kc: self.rdtr(w, ftq, (RK, RV)[t] + kc*KB, 256, "nkv" if (t == 0 and kc == 0) else None,
                                                                          {(1, OPT.get("b1x", 22)): "x", (1, 31): "kv"}.get((t, kc)), HV["nkv"]), [1, 2], None)
        self.stream(steps, look=10)
        a("L_c_go:")
        if OPT["fine"]: self.stamp(14)
        steps = []
        for kc in range(32):
            w = self.wreg()
            steps.append(dict(reads=self.rdtr(w, ftq, RQ + kc*KB, 256, "wq" if kc == 0 else None),
                              mf=f"{MF} {vr(ACC[2],16)}, {vr(w,4)}, {vr(XR+4*kc,4)}, {'0' if kc == 0 else vr(ACC[2],16)}"))
        steps.append(None)
        q = ["s_lshl_b32 s58, s17, 17", "s_lshl_b32 s40, s27, 10", "s_add_u32 s58, s58, s40", f"s_add_u32 s58, s58, {KV}", "s_add_u32 s58, s58, s36",
             f"s_add_u32 s40, s25, {LK + 8*KB}", f"v_add_u32 v{V_OUT}, s40, v{V_LANE16}"]
        for t in range(2):
            A0 = ACC[t]
            for hh in range(2):
                q += [f"v_mul_f32 v{A0+r}, v{V_RSTD}, v{A0+r}" for r in range(8*hh, 8*hh + 8)]
                q += [f"v_cvt_pk_bf16_f32 v{A0+r}, v{A0+2*r}, v{A0+2*r+1}" for r in range(4*hh, 4*hh + 4)]
                q += [f"s_add_u32 s59, s58, {t*32*64*KB + hh*64*KB}", f"buffer_store_dwordx4 {vr(A0+4*hh,4)}, v{V_LANE16}, s[8:11], s59 offen sc1"]
        def kvflag():
            a("s_lshl_b32 s40, s16, 11"); a("s_lshl_b32 s41, s17, 7"); a("s_add_u32 s40, s40, s41"); a("s_lshl_b32 s41, s6, 2"); a("s_add_u32 s40, s40, s41"); a(f"s_add_u32 s40, s40, {KVFL}")
            a("s_add_u32 s41, s22, 1"); a(f"v_mov_b32 v{V_TMP}, s41")
            vm.drain()
            a("s_mov_b64 exec, 1"); a(f"buffer_store_dword v{V_TMP}, off, s[8:11], s40 sc1"); a("s_mov_b64 exec, -1")
            self.pub("kvf")
        for x in q: a(x)
        q = []
        def kvf_if(it):
            l = self.lab()
            a(f"s_cmp_lg_u32 s22, {it}"); a(f"s_cbranch_scc1 {l}"); kvflag(); a(f"{l}:")
        kvf_if(0)
        def fill(i):
            out = []
            if i == OPT["kvflag"]: out.append(lambda: kvf_if(1))
            return out
        self.stream(steps[:-1], look=10, fill=fill)
        assert not q
        for hh in range(2):
            a(f"ds_write_b128 v{V_OUT}, {vr(ACC[0]+4*hh,4)} offset:{hh*HS}")
            a(f"ds_write_b128 v{V_OUT}, {vr(ACC[1]+4*hh,4)} offset:{12*KB + hh*HS}")
        self.pub("q")
        a(f"v_mul_f32 v{V_C1}, {f32(0.25*LOG2E)}, v{V_RSTD}")
        r = self.attention()
        a(f"v_mov_b32 v{V_TMP}, {L_MODE}"); a(f"ds_read_b32 v{V_TMP}, v{V_TMP}"); a("s_waitcnt lgkmcnt(0)")
        a(f"v_readfirstlane_b32 s21, v{V_TMP}")
        a("s_lshl_b32 s37, s27, 15"); a("s_lshl_b32 s40, s17, 11"); a("s_add_u32 s37, s37, s40"); a(f"s_add_u32 s37, s37, {OF}"); a("s_add_u32 s37, s37, s35")
        a("s_lshl_b32 s60, s48, 15"); a("s_lshl_b32 s40, s51, 14"); a("s_add_u32 s60, s60, s40"); a(f"s_add_u32 s60, s60, {OF}"); a("s_add_u32 s60, s60, s35")
        self.stamp(2)
        self.wc = 0
        self.stream([self.aug_step(ACC[2], 0, "augq")], look=0)
        for r_ in range(16): a(f"v_mul_f32 v{ACC[2]+r_}, v{V_C1}, v{ACC[2]+r_}")
        for r_ in range(8): a(f"v_cvt_pk_bf16_f32 v{XR+r_}, v{ACC[2]+2*r_}, v{ACC[2]+2*r_+1}")
        def halo_k():
            self.gate("q", "C"); self.gate("hk")
            self.stamp(3)
        def after_k():
            self.gate("hv")
            l = self.lab()
            a("s_cmp_lg_u32 s22, 0"); a(f"s_cbranch_scc1 {l}")
            a("s_lshl_b32 s40, s48, 15"); a("s_lshl_b32 s41, s49, 6"); a("s_add_u32 s40, s40, s41")
            a(f"buffer_load_dwordx4 {vr(V_RES,4)}, v{V_XOFF}, s[44:47], s40 offen")
            a(f"buffer_load_dwordx4 {vr(V_RES+4,4)}, v{V_XOFF}, s[44:47], s40 offen offset:32")
            a(f"{l}:")
        oreg = lambda s: XR + 8 + 4 * s
        def al_o(s):
            a = self.a
            g = 2 * (s % 8) + (s >> 3)
            if s % 2 == 0: a(f"s_add_u32 s43, s60, {(g & ~3)*KB}")
            a(f"buffer_load_dwordx4 {vr(oreg(s),4)}, v{V_LANE16}, s[8:11], s43 offen offset:{(g & 3)*KB} sc1"); vm.issue(f"a{s}")
        def early_a():
            for s_ in range(8): al_o(s_)
        def redo_a(a2):
            a2(f"s_add_u32 s61, s23, {F_O1}"); self.poll(V_PH, "s26", "s61")
            for s_ in range(8): al_o(s_)
        self.attention_run(r, halo_k, after_k, early_a, redo_a)
        self.stamp(4)
        a(f"s_add_u32 s58, s53, {XA}"); a("s_add_u32 s58, s58, s35"); a(f"s_add_u32 s59, s54, {STA}"); a("s_add_u32 s59, s59, s35")
        def h_o(upto):
            self.check(V_PH, F_O2); self.stamp(5); upto(16)
        self.res_gemm(16, lambda s: RK + s*4*KB, oreg, al_o, 8, 0, {0: "wo"}, {7: "wo1"}, XCH_WO, "wo", (10, "att"),
                      hooks={OPT.get("opeek", 2): lambda u: self.peek(V_PH), 8: h_o})
        self.pub("xr")
        self.x_store("s58", "s59", F_X1)
        self.stamp(6)
        a(f"s_mul_i32 s60, s27, {112*KB}"); a(f"s_mul_i32 s40, s17, {7*KB}"); a("s_add_u32 s60, s60, s40"); a(f"s_add_u32 s60, s60, {HF}"); a("s_add_u32 s60, s60, s35")
        a("s_lshl_b32 s58, s27, 15"); a(f"s_add_u32 s58, s58, {XA}"); a("s_add_u32 s58, s58, s35")
        a("s_lshl_b32 s59, s27, 12"); a(f"s_add_u32 s59, s59, {STA}"); a("s_add_u32 s59, s59, s35")
        a(f"s_mul_i32 s29, s48, {112*KB}"); a(f"s_mul_i32 s40, s51, {56*KB}"); a("s_add_u32 s29, s29, s40"); a(f"s_add_u32 s29, s29, {HF}"); a("s_add_u32 s29, s29, s35")
        a(f"s_add_u32 s61, s23, {F_X1}")
        self.poll(V_PX, "s26", "s61"); vm.q = []
        self.stamp(7)
        def xl2(kc):
            if kc % 4 == 0: a(f"s_add_u32 s43, s58, {kc*KB}")
            a(f"buffer_load_dwordx4 {vr(XR+4*kc,4)}, v{V_LANE16}, s[8:11], s43 offen offset:{(kc%4)*KB} sc1")
        self.wc = 0; self.wr = 104; self.nw = 6
        steps = self.x_pass1(xl2, "s59", False, lambda w, t, kc: self.rd128(w, GU_REG[t] + kc*KB, f"t2_{kc//8}" if (t == 0 and kc % 8 == 0 and (kc == 0 or not OPT.get("t2e", 1))) else None, f"g{kc+1}" if (t == 2 and kc % 8 == 7) else None), [3, 4, 5], None, NT=3)
        self.pub("xch")
        done = {t: len(steps) - 3 + t for t in range(3)}; start = {}
        accof = {t: ACC[t % 4] for t in range(7)}
        for t in range(3, 7):
            start[t] = len(steps)
            for kc in range(32):
                w = self.wreg()
                steps.append(dict(reads=self.rd128(w, GU_REG[t] + kc*KB, f"t{t}" if kc == 0 else None, f"t{t}" if kc == 31 else None),
                                  mf=f"{MF} {vr(accof[t],16)}, {vr(w,4)}, {vr(XR+4*kc,4)}, {'0' if kc == 0 else vr(accof[t],16)}", pair=(kc % 2 == 0 and OPT.get("pair", 1))))
            steps.append(self.aug_step(accof[t], 3 + t))
            done[t] = len(steps) - 1
        def epi(t):
            A0 = accof[t]; L = []
            if OPT.get("x_nofill"): return [lambda: (a(f"s_add_u32 s43, s60, {t*KB}"), self.store(f"buffer_store_dwordx4 {vr(V_EP,4)}, v{V_LANE16}, s[8:11], s43 offen", f"h{t}"))]
            L += [f"v_mul_f32 v{A0+r}, v{V_C1}, v{A0+r}" for r in range(8)]
            L += [f"v_exp_f32 v{A0+r}, v{A0+r}" for r in range(8)]
            L += [f"v_fma_f32 v{A0+r}, v{A0+r}, v{V_STD}, v{V_STD}" for r in range(8)]
            L += [f"v_rcp_f32 v{A0+r}, v{A0+r}" for r in range(8)]
            L += [f"v_mul_f32 v{A0+r}, v{A0+r}, v{A0+8+r}" for r in range(8)]
            L += [f"v_cvt_pk_bf16_f32 v{V_EP+r}, v{A0+2*r}, v{A0+2*r+1}" for r in range(4)]
            L += [lambda: (a(f"s_add_u32 s43, s60, {t*KB}"), self.store(f"buffer_store_dwordx4 {vr(V_EP,4)}, v{V_LANE16}, s[8:11], s43 offen", f"h{t}"))]
            return L
        hreg = lambda s: XR + 4 * (s % 32)
        def al_h(s):
            t, i = s // 8, s % 8
            if OPT.get("x_noh") and s >= 16: return
            if OPT.get("x_sameh"): t, i = 0, s % 2
            a(f"s_add_u32 s43, s29, {(7*i + t)*KB}"); a(f"buffer_load_dwordx4 {vr(hreg(s),4)}, v{V_LANE16}, s[8:11], s43 offen sc1"); vm.issue(f"a{s}")
        NP = OPT.get("np", 16)
        queue = []; flag_at = {}
        def fill2(i):
            for t in range(7):
                if done[t] + 2 == i: queue.extend((x, t) for x in epi(t))
            out = []
            if OPT["fine"] and i == done[2]: self.pend_stamp = 12
            if OPT["fine"] and i == done[4]: self.pend_stamp = 13
            for t2, sidx in start.items():
                if sidx == i + 1 and t2 >= 4:
                    while queue and queue[0][1] <= t2 - 4: out.append(queue.pop(0)[0])
            cost = 0; lim = OPT.get("fillc", 3)
            while queue and cost < lim:
                x, t = queue.pop(0); out.append(x)
                cost += 3 if callable(x) else 2 if x.startswith(("v_exp", "v_rcp")) else 1
                if callable(x) and t == 3: flag_at[i + 10] = t
            if i in flag_at: out.append(lambda: self.flag(F_H1, "h3"))
            k6 = i - start[6]
            if k6 == 31 - NP - 14: out.append(lambda: self.peek(V_PH))
            if k6 == 31 - NP: out.append(lambda: self.check(V_PH, F_H1))
            if 31 - NP < k6 <= 31: out.append(lambda s_=k6 - (32 - NP): al_h(s_))
            return out
        self.stream(steps, look=4, fill=fill2)
        assert flag_at and max(flag_at) < start[6], (flag_at, start)
        for x, _ in queue: self.emit(x)
        for x in epi(6): self.emit(x)
        self.stamp(8)
        a(f"s_add_u32 s58, s53, {XB}"); a("s_add_u32 s58, s58, s35"); a(f"s_add_u32 s59, s54, {STB}"); a("s_add_u32 s59, s59, s35")
        PD = OPT.get("pd", 14)
        hooks = {OPT.get("hflag", 5): lambda u: self.flag(F_H2, "h6"), 32 - PD - 8: lambda u: self.peek(V_PH), 32 - PD - 1: lambda u: self.check(V_PH, F_H2)}
        self.res_gemm(56, wd_slot, hreg, al_h, NP, PD, {s: f"w{s}" for s in DG}, {s - 1: f"d{s}" for s in DP},
                      XCH_DN, "dx", (50, "d45"), hooks=hooks)
        self.stamp(10)
        a("s_cmp_lg_u32 s22, 0"); a("s_cbranch_scc1 L_c_final")
        self.x_store("s58", "s59", F_X2)
        a("s_lshl_b32 s55, s27, 15"); a(f"s_add_u32 s55, s55, {XB}"); a("s_add_u32 s55, s55, s35")
        a("s_lshl_b32 s56, s27, 12"); a(f"s_add_u32 s56, s56, {STB}"); a("s_add_u32 s56, s56, s35")
        a(f"s_mov_b32 s57, {F_X2}")
        self.next_iter()
        a.fence()
        a("s_branch L_c_loop")
        a("L_c_final:")
        a("s_lshl_b32 s40, s48, 15"); a("s_lshl_b32 s41, s49, 6"); a("s_add_u32 s40, s40, s41")
        a(f"buffer_store_dwordx4 {vr(V_RES,4)}, v{V_XOFF}, s[12:15], s40 offen")
        a(f"buffer_store_dwordx4 {vr(V_RES+4,4)}, v{V_XOFF}, s[12:15], s40 offen offset:32")
        self.finish()

    def next_iter(self):
        a = self.a
        a("s_mov_b32 s22, 1"); a("s_mov_b32 s23, 16"); a("s_mov_b32 s7, 64"); a(f"v_mov_b32 v{V_BASE}, 64")
        a(f"s_mov_b32 s36, {KVS}"); a(f"s_mul_i32 s35, s21, {ITS}")
    def finish(self):
        a = self.a
        if OPT["stamp"]:
            a("s_waitcnt vmcnt(0)")
            self.stamp(11)
            a("s_lshl_b32 s40, s2, 12"); a("s_lshl_b32 s41, s3, 9"); a("s_add_u32 s40, s40, s41"); a(f"s_add_u32 s40, s40, {TS}")
            if OPT.get("dbgout") and self.role == "C":
                l = self.lab()
                a("s_lshl_b32 s41, s2, 3"); a("s_add_u32 s41, s41, s3"); a(f"s_cmp_lg_u32 s41, {OPT['dbgout']*8}"); a(f"s_cbranch_scc1 {l}")
                a("s_load_dwordx2 s[44:45], s[0:1], 64"); a("s_mov_b32 s46, 256"); a("s_mov_b32 s47, 0x20000")
                a(f"v_readlane_b32 s42, v{V_TS}, 31"); a("v_mov_b32 v41, 0")
                for n, idx in enumerate([0, 14, 3, 4, 7, 8, 10, 32+1, 32+14, 32+3, 32+4, 32+7, 32+8, 32+11]):
                    a(f"v_readlane_b32 s43, v{V_TS}, {idx}"); a("s_sub_u32 s43, s43, s42"); a("s_nop 3"); a(f"v_writelane_b32 v41, s43, {n}")
                a("v_lshlrev_b32 v40, 2, v2"); a("s_waitcnt lgkmcnt(0)"); a("s_mov_b64 exec, 0x3fff")
                a("buffer_store_dword v41, v40, s[44:47], 0 offen offset:8"); a("s_mov_b64 exec, -1")
                a(f"{l}:")
            a("v_lshlrev_b32 v40, 2, v2")
            a(f"buffer_store_dword v{V_TS}, v40, s[8:11], s40 offen"); a(f"buffer_store_dword v{V_TS2}, v40, s[8:11], s40 offen offset:256")
        a("s_endpgm")

    def helper(self):
        a = self.a; self.role = "H"; vm = VM(a)
        HV_QKV = 16; HV_ROW0 = 17; HV_OOB = 18; HV_PK = 19; HV_W = 20; HV_R128 = 23; HV_TQ = 24; HT = 26
        SQ, SO, SD, SG, SX, SDBG = "s[44:47]", "s[48:51]", "s[52:55]", "s[56:59]", "s[60:63]", "s[12:15]"
        HF_ = 25
        W = OPT.get("win", 8)
        st = dict(it=0); outq = []; sigs = []
        cnt = dict(issued=0, done=0)
        def hpub_txt(name):
            self.seen.add(("H", name))
            return [f"v_mov_b32 v{V_TMP}, {64*st['it'] + HV[name]}", f"ds_max_u32 v{V_PUBA}, v{V_TMP}"]
        def hpub(name):
            for x in hpub_txt(name): a(x)
        def retire(n):
            if n > cnt["done"]:
                k = cnt["issued"] - n; assert 0 <= k <= 63
                if cnt.get("ghost") and n <= cnt["ghost"][0]:
                    l = self.lab()
                    a(f"s_waitcnt vmcnt({k + cnt['ghost'][1]})"); a("s_cmp_lg_u32 s87, 0"); a(f"s_cbranch_scc1 {l}"); a(f"s_waitcnt vmcnt({k})"); a(f"{l}:")
                else: a(f"s_waitcnt vmcnt({k})")
                cnt["done"] = n
            last = None
            while sigs and sigs[0][1] <= cnt["done"]: last = sigs.pop(0)[0]; self.seen.add(("H", last))
            if last: hpub(last)
        def op(win=None):
            cnt["issued"] += 1
            retire(max(cnt["done"], cnt["issued"] - (W if win is None else win)))
        def sig(name):
            sigs.append((name, cnt["issued"])); retire(cnt["done"])
        def flush():
            while sigs: retire(sigs[0][1])
        def drain():
            retire(cnt["issued"])
        def need(name, src="C", it=None):
            l1 = self.lab(); l2 = self.lab(); l3 = self.lab()
            val = 64 * (st["it"] if it is None else it) + (CV if src == "C" else HV)[name]
            rd = f"ds_read_b32 v{V_FLG}, v{HF_} offset:{16 if src == 'C' else 0}"
            a(rd); a("s_waitcnt lgkmcnt(0)"); a(f"s_movk_i32 s39, {val}"); a(f"v_cmp_gt_u32 vcc, s39, v{V_FLG}"); a(f"s_cbranch_vccz {l2}")
            for nm, n in sigs:
                a(f"s_waitcnt vmcnt({cnt['issued'] - n})")
                for x in hpub_txt(nm): a(x)
            a(f"{l3}:"); a("s_sleep 1"); a("s_add_u32 s38, s38, 1"); a(f"s_cmp_gt_u32 s38, {OPT['spin']*16}"); a(f"s_cbranch_scc1 {l2}")
            a(rd); a("s_waitcnt lgkmcnt(0)"); a(f"v_cmp_gt_u32 vcc, s39, v{V_FLG}"); a(f"s_cbranch_vccnz {l3}")
            a.pending.pop(l3, None)
            a(f"{l2}:")
            self.used.add((src, name))
        def tile(t, gs=range(8)):
            for g in gs: self.dma("s29", t*32*KB + g*4*KB, GU_REG[t] + g*4*KB, fl="" if OPT.get("wplain") else " sc1"); op()
        def wqkv(which, gs, win=None):
            for g in gs:
                a(f"s_add_u32 s41, s30, {4*g}"); a("s_and_b32 s41, s41, 31"); a("s_mul_i32 s41, s41, 49152"); a("s_add_u32 s41, s41, s31")
                for ci, reg in which:
                    self.dma("s41", ci*1024, reg + g*4*KB, voff=HV_QKV, srd=SQ); op(win)
                if len(which) == 2 and g % 2 == 1: sig(f"kv{g//2}")
        def wqp(which, gs):
            for g in gs:
                for ci, reg in which: self.dma("s34", ci*32*KB + g*4*KB, reg + g*4*KB, fl="" if OPT.get("wplain") else " sc1"); op()
        WK = (1, RK); WV = (2, RV); WQ = (0, RQ)
        st_next = [0]; st_idx = {}
        def stash(n):
            for _ in range(n):
                s_ = st_next[0]
                if s_ >= 56: break
                t, i = s_ // 8, s_ % 8
                a(f"s_add_u32 s40, s33, {(7*i + t)*16*KB}")
                a(f"buffer_load_dwordx4 {vr(STASH+4*s_,4)}, v{HV_R128}, {SD}, s40 offen"); op(); st_idx[s_] = cnt["issued"]
                st_next[0] += 1
        def wdw(steps):
            for s_ in steps:
                if s_ >= 56: break
                retire(max(cnt["done"], st_idx[s_]))
                if OPT.get("x_nowdw"): continue
                o = wd_slot(s_)
                a(f"ds_write_b128 v{HV_W + (o >> 16)}, {vr(STASH+4*s_,4)} offset:{o & 0xffff}")
                if OPT.get("wpace"): a("s_waitcnt lgkmcnt(0)")
        def only(cond_lines, fn):
            l = self.lab()
            for c in cond_lines: a(c)
            a(f"s_cbranch_scc0 {l}"); fn(); a(f"{l}:")
        a(f"v_lshrrev_b32 v{HT}, 2, v2"); a(f"v_mul_u32_u24 v{HV_QKV}, 3072, v{HT}"); a(f"v_and_b32 v{HT}, 3, v2"); a(f"v_lshl_add_u32 v{HV_QKV}, v{HT}, 4, v{HV_QKV}")
        a("s_add_u32 s30, s28, s6"); a("s_lshl_b32 s31, s17, 6")
        a(f"s_mov_b32 s46, {512*3072}"); a("s_mov_b32 s47, 0x20000")
        a("s_mov_b64 s[44:45], s[66:67]")
        if OPT["stamp"]: a(f"v_writelane_b32 v{V_TS}, s100, 31")
        a("s_mul_i32 s83, s2, 9363"); a("s_lshr_b32 s83, s83, 18")
        a("s_mul_i32 s40, s83, 28"); a("s_sub_u32 s84, s2, s40")
        a("s_mul_i32 s40, s84, 37"); a("s_lshr_b32 s40, s40, 8"); a("s_mul_i32 s41, s40, 7"); a("s_sub_u32 s41, s84, s41")
        a("s_lshl_b32 s41, s41, 3"); a("s_add_u32 s41, s41, s83"); a("s_lshl_b32 s40, s40, 6"); a("s_add_u32 s40, s40, s41"); a("s_lshl_b32 s40, s40, 3"); a(f"s_add_u32 s88, s40, {RF}")
        a("s_cmp_lt_u32 s2, 224"); a("s_cselect_b32 s88, s88, 0x7ff00000")
        a("s_lshl_b32 s89, s17, 8"); a("s_lshl_b32 s40, s16, 4"); a("s_add_u32 s89, s89, s40"); a(f"s_add_u32 s89, s89, {PFL}")
        def zero():
            def nonce():
                a("s_memrealtime s[42:43]"); a("s_mov_b64 s[12:13], s[70:71]"); a("s_mov_b32 s14, 256"); a("s_mov_b32 s15, 0x20000"); a("s_waitcnt lgkmcnt(0)")
                a("s_lshl_b64 s[42:43], s[42:43], 3"); a("s_or_b32 s43, s43, 0x80000000")
                a("v_mov_b32 v44, s42"); a("v_mov_b32 v45, s43")
                a("s_mov_b64 exec, 1"); a(f"buffer_store_dwordx2 v[44:45], off, {SDBG}, 0 sc1"); a("s_mov_b64 exec, -1")
            only(["s_cmp_eq_u32 s2, 0"], nonce)
            for r in range(4): a(f"v_mov_b32 v{40+r}, 0")
            a("s_sub_u32 s40, s24, 28")
            a("s_lshl_b32 s81, s16, 11"); a("s_lshl_b32 s41, s17, 7"); a("s_add_u32 s81, s81, s41"); a(f"s_add_u32 s81, s81, {KVFL}")
            a("s_mov_b64 exec, 1")
            a("buffer_store_dwordx4 v[40:43], off, s[8:11], s40 sc1"); a("buffer_store_dwordx4 v[40:43], off, s[8:11], s81 sc1")
            a("buffer_store_dwordx2 v[40:41], off, s[8:11], s88 sc1"); a("buffer_store_dwordx4 v[40:43], off, s[8:11], s89 sc1")
            a("s_mov_b64 exec, -1")
        only(["s_cmp_eq_u32 s6, 3"], zero)
        def codepf():
            a("s_getpc_b64 s[42:43]")
            a.raw("L_pc:")
            a(f"s_sub_u32 s42, s42, L_pc-{NAME}"); a("s_subb_u32 s43, s43, 0")
            a("s_lshr_b32 s40, s2, 3"); a("s_lshl_b32 s40, s40, 11")
            a("v_lshlrev_b32 v40, 7, v2"); a("v_add_u32 v40, s40, v40"); a(f"v_min_u32 v40, L_code_end-{NAME}-4, v40")
            a("v_mov_b32 v41, s43"); a("v_add_co_u32 v40, vcc, s42, v40"); a("v_addc_co_u32 v41, vcc, 0, v41, vcc")
            a("s_mov_b64 exec, 0xffff"); a("global_load_dword v162, v[40:41], off"); a("s_mov_b64 exec, -1")
        if OPT.get("codepf", 1): only(["s_cmp_eq_u32 s6, 2"], codepf)
        def qtouch():
            a(f"v_lshrrev_b32 v{HT}, 3, v2"); a(f"v_mul_u32_u24 v{HT}, 3072, v{HT}"); a(f"v_and_b32 v{HT+1}, 7, v2"); a(f"v_lshl_add_u32 v{HT}, v{HT+1}, 7, v{HT}")
            a("s_mul_i32 s41, s2, 6144"); a("s_mov_b64 exec, 0xffff"); a(f"buffer_load_dword v161, v{HT}, {SQ}, s41 offen"); a("s_mov_b64 exec, -1")
        only(["s_cmp_eq_u32 s6, 1"], qtouch)
        def tlb():
            st_ = OPT.get("tlbs", 2) * MB // 2
            a("s_mov_b64 s[42:43], s[8:9]")
            for p in range(WS_USED // st_):
                a("s_load_dword s94, s[42:43], 0"); a(f"s_add_u32 s42, s42, {st_}"); a("s_addc_u32 s43, s43, 0")
            for r in (68, 76, 78): a(f"s_load_dword s94, s[{r}:{r+1}], 0")
            a("s_load_dword s94, s[76:77], 0xffff0"); a("s_load_dword s94, s[78:79], 0xffff0")
        wqkv([WK, WV], range(0, 2), win=63)
        if OPT.get("tlb", 0): only(["s_cmp_eq_u32 s6, 0"], tlb)
        a("s_mov_b64 s[12:13], s[70:71]"); a("s_mov_b32 s14, 256"); a("s_mov_b32 s15, 0x20000")
        a("s_mov_b64 s[48:49], s[68:69]"); a(f"s_mov_b32 s50, {512*1024}"); a("s_mov_b32 s51, 0x20000")
        a("s_mov_b64 s[52:53], s[76:77]"); a(f"s_mov_b32 s54, {1792*1024}"); a("s_mov_b32 s55, 0x20000")
        a(f"v_lshrrev_b32 v{HT}, 3, v2"); a(f"v_bfe_u32 v{HT+1}, v2, 4, 1"); a(f"v_lshlrev_b32 v{HT+1}, 2, v{HT+1}")
        a(f"v_and_b32 v{HT+2}, 7, v2"); a(f"v_xor_b32 v{HT+2}, v{HT+1}, v{HT+2}"); a(f"v_lshlrev_b32 v{HT+2}, 4, v{HT+2}")
        a(f"v_lshl_add_u32 v{HV_R128}, v{HT}, 10, v{HT+2}")
        a(f"v_mul_u32_u24 v{HT+3}, 3584, v{HT}"); a(f"v_add_u32 v{HT+3}, v{HT+3}, v{HT+2}")
        a("s_and_b32 s85, s83, 1"); a("s_lshr_b32 s86, s83, 1")
        a("s_add_u32 s80, s6, 1"); a("s_cmp_eq_u32 s6, 0"); a("s_cselect_b32 s80, 0, s80"); a("s_cmp_eq_u32 s6, 3"); a("s_cselect_b32 s80, 1, s80")
        a("s_lshl_b32 s86, s86, 1"); a("s_add_u32 s86, s86, s80")
        a("s_cmp_eq_u32 s85, 0"); a("s_cselect_b64 s[56:57], s[72:73], s[74:75]"); a(f"s_mov_b32 s58, {512*3584}"); a("s_mov_b32 s59, 0x20000")
        a("s_cmp_lt_u32 s2, 224"); a("s_cselect_b32 s87, 1, 0"); a("s_cmp_lt_u32 s80, 2"); a("s_cselect_b32 s87, s87, 0")
        def rel_ld():
            a(f"s_mul_i32 s41, s86, {64*3584}"); a("s_lshl_b32 s40, s84, 7"); a("s_add_u32 s41, s41, s40")
            for o in range(8):
                a(f"buffer_load_dwordx4 {vr(128+4*o,4)}, v{HT+3}, {SG}, s41 offen")
                if o < 7: a(f"s_add_u32 s41, s41, {8*3584}")
        def coop():
            a(f"v_lshlrev_b32 v{HT}, 7, v2"); a("s_lshl_b32 s41, s2, 13")
            only(["s_cmp_eq_u32 s6, 1"], lambda: a(f"buffer_load_dword v161, v{HT}, {SD}, s41 offen"))
            a("s_sub_u32 s41, 255, s2"); a("s_lshl_b32 s41, s41, 13")
            only(["s_cmp_eq_u32 s6, 2"], lambda: a(f"buffer_load_dword v161, v{HT}, {SO}, s41 offen"))
        a("s_lshl_b32 s32, s19, 7"); a("s_and_b32 s40, s6, 1"); a("s_lshl_b32 s40, s40, 13"); a("s_add_u32 s32, s32, s40")
        a("s_lshr_b32 s40, s6, 1"); a(f"s_mul_i32 s33, s40, {56*16*KB}"); a("s_add_u32 s33, s33, s32"); a("s_lshl_b32 s40, s40, 18"); a("s_add_u32 s32, s32, s40")
        a(f"s_mul_i32 s34, s17, {96*KB}"); a(f"s_add_u32 s34, s34, {WQP}"); a("s_add_u32 s34, s34, s25")
        a(f"s_mul_i32 s29, s17, {0 if OPT.get('x_samew') else 7*32*KB}"); a(f"s_add_u32 s29, s29, {WGU}"); a("s_add_u32 s29, s29, s25")
        a(f"v_lshrrev_b32 v{HT}, 5, v2"); a(f"v_lshlrev_b32 v{HV_ROW0}, 9, v{HT}")
        a(f"v_mov_b32 v{HV_OOB}, 0x7ff00000")
        a(f"v_and_b32 v{HT}, 1, v2"); a("s_sub_i32 s40, s16, 1"); a(f"v_sub_u32 v{HT}, s40, v{HT}")
        a(f"v_lshlrev_b32 v{HT+1}, 11, v{HT}"); a("s_lshl_b32 s40, s6, 2"); a(f"v_add_u32 v{HT+1}, s40, v{HT+1}")
        a(f"v_cmp_gt_i32 vcc, 0, v{HT}"); a(f"v_cndmask_b32_e64 v{HV_PK}, v{HT+1}, 0, vcc")
        a("s_lshl_b32 s82, s17, 7"); a(f"s_add_u32 s82, s82, {KVFL}")
        a(f"v_add_u32 v{HV_W}, s25, v{V_LANE16}"); a(f"v_add_u32 v{HV_W+1}, 0x10000, v{HV_W}"); a(f"v_add_u32 v{HV_W+2}, 0x20000, v{HV_W}")
        self.tr_addr16(HV_TQ, HT, HT + 1)
        a("s_lshl_b32 s40, s6, 15"); a(f"v_add_u32 v{HV_TQ}, s40, v{HV_TQ}")
        for r in range(4): a(f"v_mov_b32 v{64+r}, s20")
        a("v_mov_b32 v48, s20"); a("v_mov_b32 v49, s20"); a("v_mov_b32 v50, 0"); a("v_mov_b32 v51, 0"); a(f"v_mov_b32 v52, {L_ONES}")
        for o in (0, 64, 256, 320): a(f"ds_write_b128 v52, v[48:51] offset:{o}")
        def colsum(lo, hi, first):
            def rd(kc):
                w = 72 + 4 * (kc % 8)
                a(f"ds_read_b64_tr_b16 {vr(w,2)}, v{HV_TQ} offset:{kc*KB}"); a(f"ds_read_b64_tr_b16 {vr(w+2,2)}, v{HV_TQ} offset:{kc*KB+256}")
            for kc in range(lo, min(hi, lo + 6)): rd(kc)
            for kc in range(lo, hi):
                a(f"s_waitcnt lgkmcnt({2 * (min(hi, kc + 6) - kc - 1)})")
                a(f"{MF} v[112:127], v[64:67], {vr(72+4*(kc%8),4)}, {'0' if (first and kc == lo) else 'v[112:127]'}")
                if kc + 6 < hi: rd(kc + 6)
        def augfin():
            a("v_cvt_pk_bf16_f32 v104, v112, v112"); a("v_and_b32 v107, 0xffff, v104")
            a("v_lshlrev_b32 v105, 16, v104"); a("v_sub_f32 v105, v112, v105"); a("v_cvt_pk_bf16_f32 v106, v112, v105")
            a("s_lshl_b32 s40, s6, 8"); a(f"s_add_u32 s40, s40, {L_AUG}")
            a("v_and_b32 v108, 31, v2"); a("v_lshlrev_b32 v108, 3, v108"); a("v_add_u32 v108, s40, v108")
            a("ds_write_b64 v108, v[106:107]"); a("s_waitcnt lgkmcnt(0)")
        kvw = ["s_sub_u32 s40, s6, 1", "s_cmp_lt_u32 s40, 2"]
        qw  = ["s_cmp_eq_u32 s6, 0"]
        w3  = ["s_cmp_eq_u32 s6, 3"]
        def spin_head(loads):
            l = self.lab(); d = self.lab(); l0 = self.lab()
            a("s_mov_b32 s41, 0")
            for x in loads: a(x + ("" if OPT.get("pplain", 1) else " sc1"))
            a(f"s_branch {l0}"); a(f"{l}:"); a("s_sleep 4")
            for x in loads: a(x + " sc1")
            a(f"{l0}:")
            a("s_add_u32 s41, s41, 1"); a(f"s_cmp_gt_u32 s41, {OPT['spin']}"); a(f"s_cbranch_scc1 {d}")
            a("s_waitcnt vmcnt(0)")
            return l, d
        def get_nonce():
            l, d = spin_head([f"buffer_load_dwordx2 {vr(HT,2)}, off, {SDBG}, 0"])
            a(f"v_readfirstlane_b32 s92, v{HT}"); a(f"v_readfirstlane_b32 s93, v{HT+1}")
            a("s_cmp_eq_u32 s93, 0"); a(f"s_cbranch_scc1 {l}"); a(f"{d}:")
        def arrive():
            a("s_waitcnt lgkmcnt(0)")
            only(["s_cmp_eq_u32 s93, 0"], get_nonce)
            a("s_getreg_b32 s40, hwreg(HW_REG_XCC_ID)"); a("s_and_b32 s40, s40, 7"); a("s_or_b32 s91, s40, s92")
            a(f"v_mov_b32 v{HT}, s91"); a(f"v_mov_b32 v{HT+1}, s93")
            a("s_lshl_b32 s40, s16, 7"); a("s_lshl_b32 s41, s17, 3"); a("s_add_u32 s40, s40, s41"); a(f"s_add_u32 s40, s40, {AR}")
            a("s_mov_b64 exec, 1"); a(f"buffer_store_dwordx2 {vr(HT,2)}, off, s[8:11], s40 sc1"); a("s_mov_b64 exec, -1")
        def arrived_all():
            a("v_lshlrev_b32 v248, 5, v2"); a(f"s_mov_b32 s42, {AR}")
            l, d = spin_head(["buffer_load_dwordx4 v[240:243], v248, s[8:11], s42 offen", "buffer_load_dwordx4 v[244:247], v248, s[8:11], s42 offen offset:16"])
            for q in range(4): a(f"v_and_b32 v{240+2*q}, -8, v{240+2*q}"); a(f"v_xor_b32 v{240+2*q}, s92, v{240+2*q}"); a(f"v_xor_b32 v{241+2*q}, s93, v{241+2*q}")
            a("v_or3_b32 v240, v240, v241, v242"); a("v_or3_b32 v243, v243, v244, v245"); a("v_or3_b32 v240, v240, v246, v247"); a("v_or_b32 v240, v240, v243")
            a("v_cmp_ne_u32 vcc, 0, v240"); a(f"s_cbranch_vccnz {l}"); a(f"{d}:")
        def nbr():
            a(f"v_lshrrev_b32 v{HT+2}, 4, v2"); a(f"v_min_u32 v{HT+2}, 2, v{HT+2}"); a("s_sub_i32 s40, s16, 2"); a(f"v_add_u32 v{HT+2}, s40, v{HT+2}"); a(f"v_max_i32 v{HT+2}, 0, v{HT+2}")
            a(f"v_lshlrev_b32 v{HT+2}, 7, v{HT+2}"); a(f"v_and_b32 v{HT}, 15, v2"); a(f"v_lshl_add_u32 v{HT+2}, v{HT}, 3, v{HT+2}"); a(f"s_mov_b32 s42, {AR}")
            l, d = spin_head([f"buffer_load_dwordx2 {vr(HT,2)}, v{HT+2}, s[8:11], s42 offen"])
            a(f"v_and_b32 v{HT+4}, -8, v{HT}"); a(f"v_xor_b32 v{HT+4}, s92, v{HT+4}"); a(f"v_xor_b32 v{HT+1}, s93, v{HT+1}"); a(f"v_or_b32 v{HT+4}, v{HT+4}, v{HT+1}")
            a(f"v_cmp_ne_u32 vcc, 0, v{HT+4}"); a(f"s_cbranch_vccnz {l}"); a(f"{d}:")
            a(f"v_cmp_ne_u32 vcc, s91, v{HT}"); a("s_nop 1"); a("s_cmp_lg_u32 vcc_hi, 0"); a("s_cselect_b32 s40, 1, 0")
            if OPT["force_slow"]: a("s_mov_b32 s40, 1")
            a(f"v_mov_b32 v{HT}, s40"); a(f"v_mov_b32 v{HT+1}, {L_MODE}"); a(f"ds_write_b32 v{HT+1}, v{HT}"); a("s_waitcnt lgkmcnt(0)")
        def rel_do():
            a("s_lshl_b32 s40, s80, 12"); a(f"s_add_u32 s40, s40, {144*KB if OPT.get('rel0', 1) else P4}"); a(f"v_add_u32 v45, s40, v{V_LANE16}")
            a(f"v_bfe_u32 v40, v2, 2, 2"); a("v_lshlrev_b32 v41, 7, v40"); a("v_lshrrev_b32 v40, 1, v40"); a("v_lshrrev_b32 v42, 5, v2"); a("v_xor_b32 v40, v40, v42")
            a("v_lshl_add_u32 v41, v40, 6, v41"); a(f"v_and_b32 v40, 63, v{HV_TQ}"); a("v_add_u32 v41, v41, v40"); a("v_add_u32 v41, s40, v41")
            for hf in range(2):
                for o in range(4): a(f"ds_write_b128 v45, {vr(128+16*hf+4*o,4)} offset:{o*KB}")
                for o in range(4):
                    a(f"ds_read_b64_tr_b16 {vr(72+16*hf+4*o,2)}, v41 offset:{o*KB}"); a(f"ds_read_b64_tr_b16 {vr(74+16*hf+4*o,2)}, v41 offset:{o*KB+512}")
                a("s_waitcnt lgkmcnt(0)")
            a("v_lshrrev_b32 v40, 4, v2"); a("v_lshlrev_b32 v40, 15, v40"); a("v_and_b32 v42, 15, v2"); a("v_lshl_add_u32 v40, v42, 4, v40")
            a("s_lshl_b32 s40, s84, 17"); a("s_lshl_b32 s41, s86, 12"); a("s_add_u32 s40, s40, s41"); a("s_lshl_b32 s41, s85, 8"); a("s_add_u32 s40, s40, s41"); a(f"s_add_u32 s40, s40, {WGU}")
            a("v_mov_b32 v43, 0"); a("v_mov_b32 v44, 0")
            a("s_waitcnt lgkmcnt(0)")
            for o in range(8): a(f"buffer_store_dwordx4 {vr(72+4*o,4)}, v40, s[8:11], s40 offen offset:{o*512} sc1")
            for i in range(32): a(f"v_dot2_f32_bf16 v{43+i%2}, v{72+i}, s20, v{43+i%2}")
            a("s_nop 2"); a("v_add_f32 v43, v43, v44")
            a("s_lshl_b32 s40, s86, 1"); a("s_add_u32 s40, s40, s85"); a(f"s_mul_i32 s40, s40, {1792*4}"); a("s_lshl_b32 s41, s84, 8"); a("s_add_u32 s40, s40, s41"); a(f"s_add_u32 s40, s40, {CS}")
            a("v_lshlrev_b32 v42, 2, v2")
            a("buffer_store_dword v43, v42, s[8:11], s40 offen sc1")
        def halo():
            for kv in range(2):
                for d in (1, 2):
                    l1 = self.lab(); l2 = self.lab()
                    a(f"s_cmp_lt_u32 s16, {d}"); a(f"s_cbranch_scc1 {l1}")
                    a(f"s_sub_u32 s95, s27, {4*d}"); a("s_lshl_b32 s95, s95, 10"); a("s_add_u32 s95, s95, s94")
                    for hh in range(2): self.dma("s95", kv*32*64*KB + hh*64*KB, LK + kv*12*KB + hh*HS + (8-4*d)*KB, fl=" sc1")
                    a(f"s_branch {l2}")
                    a(f"{l1}:")
                    for hh in range(2): self.dma("s94", hh*64*KB, LK + kv*12*KB + hh*HS + (8-4*d)*KB, voff=(HV_ROW0, HV_OOB)[kv], fl=" sc1")
                    a(f"{l2}:")
                    op(63); op(63)
                sig(("hk", "hv")[kv])
        def pack():
            a("s_lshl_b32 s40, s16, 1"); a("s_sub_u32 s41, s40, s28"); a("s_and_b32 s41, s41, 31"); a("s_lshl_b32 s41, s41, 10"); a("s_lshl_b32 s42, s6, 15"); a("s_add_u32 s41, s41, s42")
            a(f"v_add_u32 v160, s41, v{V_LANE16}")
            a("ds_read_b128 v[164:167], v160"); a("ds_read_b128 v[168:171], v160 offset:1024")
            a("s_lshl_b32 s41, s6, 15"); a("s_lshl_b32 s40, s40, 10"); a("s_add_u32 s41, s41, s40")
            a("s_add_u32 s41, s41, s34"); a("s_sub_u32 s41, s41, s25")
            a("s_mov_b32 s90, s41")
            a("s_waitcnt lgkmcnt(0)")
        def pack_st():
            a(f"buffer_store_dwordx4 v[164:167], v{V_LANE16}, s[8:11], s90 offen sc1"); a(f"buffer_store_dwordx4 v[168:171], v{V_LANE16}, s[8:11], s90 offen offset:1024 sc1")
        def rel_sig():
            a("s_lshl_b32 s40, s80, 2"); a("s_add_u32 s40, s40, s88")
            a(f"v_mov_b32 v{HT}, 1"); a("s_mov_b64 exec, 1"); a(f"buffer_store_dword v{HT}, off, s[8:11], s40 sc1"); a("s_mov_b64 exec, -1")
        def gu_ready():
            a("s_lshr_b32 s40, s17, 2"); a("s_lshl_b32 s40, s40, 9"); a(f"s_add_u32 s42, s40, {RF}"); a("s_mov_b32 s43, 1")
            a(f"v_lshlrev_b32 v{HT}, 2, v2"); self.poll(HT, "s42", "s43", sleep=8)
            a(f"v_min_u32 v{HT}, 47, v2"); a(f"v_lshlrev_b32 v{HT}, 2, v{HT}"); a("s_add_u32 s42, s42, 256"); self.poll(HT, "s42", "s43", sleep=8)
            a("s_lshl_b32 s40, s6, 2"); a("s_add_u32 s40, s40, s89")
            a(f"v_mov_b32 v{HT}, 1"); a("s_mov_b64 exec, 1"); a(f"buffer_store_dword v{HT}, off, s[8:11], s40 sc1"); a("s_mov_b64 exec, -1")
        def gu_aug():
            a("v_lshrrev_b32 v240, 5, v2"); a(f"v_mul_u32_u24 v241, {1792*4}, v240"); a("v_and_b32 v242, 31, v2"); a("v_min_u32 v242, 27, v242"); a("v_lshl_add_u32 v241, v242, 4, v241")
            a(f"s_mul_i32 s40, s17, {112*4}"); a(f"s_add_u32 s40, s40, {CS}")
            for p in range(8):
                a(f"buffer_load_dwordx4 {vr(208+4*p,4)}, v241, s[8:11], s40 offen sc1")
                if p < 7: a(f"s_add_u32 s40, s40, {2*1792*4}")
            a("v_lshrrev_b32 v243, 2, v242"); a("v_lshlrev_b32 v243, 8, v243"); a("v_lshl_add_u32 v243, v240, 7, v243"); a("v_and_b32 v244, 3, v242"); a("v_lshl_add_u32 v243, v244, 5, v243")
            a(f"v_add_u32 v243, {L_AUG + 768}, v243")
            a("s_waitcnt vmcnt(0)")
            for p in range(1, 8):
                for c in range(4): a(f"v_add_f32 v{208+c}, v{208+c}, v{208+4*p+c}")
            for c in range(4):
                a(f"v_cvt_pk_bf16_f32 v245, v{208+c}, v{208+c}"); a(f"v_and_b32 v{217+2*c}, 0xffff, v245")
                a("v_lshlrev_b32 v245, 16, v245"); a(f"v_sub_f32 v245, v{208+c}, v245"); a(f"v_cvt_pk_bf16_f32 v{216+2*c}, v{208+c}, v245")
            a("ds_write_b128 v243, v[216:219]"); a("ds_write_b128 v243, v[220:223] offset:16"); a("s_waitcnt lgkmcnt(0)")
        def pack_ready():
            a("s_lshl_b32 s42, s17, 8"); a(f"s_add_u32 s42, s42, {PFL}"); a("s_mov_b32 s43, 1")
            a(f"v_lshlrev_b32 v{HT}, 2, v2"); self.poll(HT, "s42", "s43", sleep=8)
        a(f"v_and_b32 v{HF_}, 3, v2"); a(f"v_lshlrev_b32 v{HF_}, 2, v{HF_}"); a(f"v_add_u32 v{HF_}, {L_HL}, v{HF_}")
        a("s_lshr_b32 s40, s6, 1"); a("s_lshl_b32 s41, s18, 1"); a("s_add_u32 s40, s40, s41"); a("s_lshl_b32 s41, s16, 2"); a("s_add_u32 s40, s40, s41")
        a("s_and_b32 s41, s6, 1"); a("s_lshl_b32 s42, s19, 1"); a("s_add_u32 s41, s41, s42")
        a("s_lshl_b32 s60, s40, 15"); a("s_lshl_b32 s42, s41, 11"); a("s_add_u32 s60, s60, s42")
        a("s_lshl_b32 s61, s40, 12"); a("s_lshr_b32 s42, s41, 2"); a("s_lshl_b32 s42, s42, 10"); a("s_add_u32 s61, s61, s42")
        a("s_lshl_b32 s62, s27, 15"); a("s_lshl_b32 s42, s17, 11"); a("s_add_u32 s62, s62, s42")
        a(f"s_mul_i32 s63, s27, {112*KB}"); a(f"s_mul_i32 s42, s17, {7*KB}"); a("s_add_u32 s63, s63, s42")
        def touch(items):
            a(self.touch_txt([([f"s_add_u32 s43, {r}, {b}"], n) for r, b, n in items]).replace(f"v{V_OUT},", "v31,"))
        def ext():
            pass
        for it in range(2):
            st["it"] = it
            if it == 0:
                KW = OPT.get("kw", 4); RP = OPT.get("rp", 8)
                wqkv([WK, WV], range(2, 4), win=KW)
                retire(max(4, cnt["done"]))
                only(w3, lambda: a("s_load_dwordx2 s[92:93], s[70:71], 0"))
                wqkv([WK, WV], range(4, 6), win=KW)
                only(w3, arrive)
                wqkv([WK, WV], range(6, RP), win=KW)
                only(["s_cmp_gt_u32 s87, 0"], rel_ld); cnt["ghost"] = (cnt["issued"], 8)
                wqkv([WK, WV], range(RP, 8), win=KW)
                only(kvw, lambda: (need("kv1", "H"), colsum(0, 16, True)))
                flush()
                self.stamp(9)
                only(kvw, lambda: (need("kv3", "H"), colsum(16, 32, False), augfin(), pack()))
                hpub("augkv")
                if OPT.get("rel0", 1): only(["s_cmp_gt_u32 s87, 0"], lambda: (a(f"s_setprio {OPT.get('rprio', 3)}"), a("s_waitcnt vmcnt(0)"), rel_do(), a("s_setprio 0")))
                self.stamp(10)
                need("x")
                wqkv([WQ], range(0, 8), win=63)
                only(w3, lambda: (nbr(), arrived_all() if OPT.get("aa", 0) else None))
                drain(); hpub("wq")
                need("wq", "H")
                if OPT.get("rel0", 1): only(["s_cmp_gt_u32 s87, 0"], rel_sig)
                QS = OPT.get("qs", 32)
                only(qw, lambda: (a("s_setprio 3"), colsum(0, QS, True), augfin() if QS == 32 else None))
                if QS == 32: hpub("augq")
                self.stamp(12)
            else:
                need("x"); hpub("augq")
            a(f"s_mov_b32 s42, {it + 1}")
            a("s_lshl_b32 s94, s17, 17"); a(f"s_add_u32 s94, s94, {KV + it*KVS}")
            self.stamp(14)
            need("kvf")
            self.stamp(15)
            a("s_mov_b64 exec, 3")
            self.poll(HV_PK, "s82", "s42")
            a("s_mov_b64 exec, -1")
            cnt["done"] = cnt["issued"]; retire(cnt["done"])
            self.stamp(2)
            halo()
            if it == 0:
                hold = list(sigs); sigs.clear()
                only(qw, lambda: ((colsum(QS, 32, False), augfin()) if QS < 32 else None, pack(), a("s_setprio 0")))
                hpub("augq"); sigs.extend(hold)
            if it == 0 and not OPT.get("rel0", 1): only(["s_cmp_gt_u32 s87, 0"], rel_ld); cnt["ghost"] = (cnt["issued"], 8)
            flush()
            if it == 0:
                a(f"v_mov_b32 v{V_TMP}, {L_MODE}"); a(f"ds_read_b32 v{V_TMP}, v{V_TMP}"); a("s_waitcnt lgkmcnt(0)"); a(f"v_readfirstlane_b32 s21, v{V_TMP}")
            if it == 0 and not OPT.get("aa", 0): only(w3, arrived_all)
            touch([("s62", OF, 16), ("s60", XA, 16), ("s61", STA, 8)])
            if it == 0: coop(); only(["s_cmp_lt_u32 s6, 3"], pack_st)
            self.stamp(3)
            for g in range(16):
                self.dma("s32", (2*(g%8) + g//8)*16*KB, RK + g*4*KB, voff=HV_R128, srd=SO); op()
                if it == 0 and not OPT.get("rel0", 1):
                    if g == 2: only(["s_cmp_gt_u32 s87, 0"], lambda: (a("s_waitcnt vmcnt(3)"), rel_do()))
                    if g == 3 + W: only(["s_cmp_gt_u32 s87, 0"], rel_sig)
            sig("wo")
            if it == 0:
                stash(OPT["st_a"]); flush()
                need("wo", "H")
                gu_ready(); cnt["done"] = cnt["issued"]
                only(w3, gu_aug)
            self.stamp(5)
            need("q"); tile(0)
            if it == 0: need("wo", "H")
            tile(1, range(0, 3))
            need("h0"); tile(1, range(3, 8))
            if it == 0: stash(OPT.get("st_b", 8)); only(w3, pack_ready)
            if OPT.get("htouch", 0) > it: touch([("s63", HF, 56)])
            if it == 0: touch([("s60", XB, 16), ("s61", STB, 8)])
            self.stamp(4)
            if OPT.get("t2e", 1):
                need("wo1"); tile(2); sig("t2_3")
                for p in range(3): self.seen.add(("H", f"t2_{p}"))
                need("xr"); flush(); wdw(range(0, 7))
                need("xch")
            else:
                need("wo"); tile(2, range(0, 2)); sig("t2_0")
                need("xch")
                for p in range(1, 4): tile(2, range(2*p, 2*p + 2)); sig(f"t2_{p}")
            if OPT.get("t3g"): need(f"g{OPT['t3g']}")
            tile(3); sig("t3")
            for p, nm in enumerate(("g8", "g16", "g24", "g32")):
                need(nm); tile(4, range(2*p, 2*p + 2))
            sig("t4")
            tile(5); sig("t5"); tile(6); sig("t6")
            if it == 0: stash(9)
            if OPT.get("wlate", 1): flush()
            need("t3"); wdw(range(7, 15))
            if it == 0: stash(8)
            need("t4"); wdw(range(15, 23))
            flush(); hpub("w0")
            if it == 0: stash(56)
            need("t5"); wdw(range(23, 31)); hpub("w23")
            need("t6"); wdw(range(31, 39)); hpub("w31")
            need("d7"); wdw(range(39, 46)); hpub("w39")
            if it == 0:
                need("d15"); wqp([WV], range(8))
                need("d23"); wqp([WK], range(4))
            need("d31"); wdw(range(46, 54)); hpub("w46")
            if it == 0:
                wqp([WK], range(4, 8))
                need("d39"); wqp([WQ], range(4))
            need("d45"); wdw(range(54, 56)); hpub("w54")
            if it == 0: wqp([WQ], range(4, 8))
            if it == 0:
                drain(); hpub("nkv")
                a("s_mov_b32 s23, 16")
        self.finish()

    def count_poll(self, soff, T):
        a = self.a; l = self.lab(); d = self.lab()
        a("s_mov_b32 s41, 0")
        l0 = self.lab(); a(f"s_branch {l0}"); a(f"{l}:"); a("s_sleep 8"); a(f"{l0}:")
        a(f"buffer_load_dwordx2 {vr(T,2)}, off, s[12:15], {soff} sc1"); a("s_waitcnt vmcnt(0)")
        a(f"v_readfirstlane_b32 s42, v{T}"); a(f"v_readfirstlane_b32 s43, v{T+1}")
        a("s_add_u32 s41, s41, 1"); a(f"s_cmp_gt_u32 s41, {OPT['spin']}"); a(f"s_cbranch_scc1 {d}")
        a("s_add_u32 s40, s42, s43"); a("s_mul_i32 s40, s40, 0x01010101"); a("s_lshr_b32 s40, s40, 24")
        a("s_cmp_lg_u32 s40, 16"); a(f"s_cbranch_scc1 {l}")
        a(f"{d}:")

    def build(self):
        a = self.a
        self.prologue()
        a("s_cmp_ge_u32 s3, 4"); a("s_cbranch_scc1 L_helper")
        self.compute()
        a("L_helper:")
        self.helper()
        assert self.used <= self.seen, self.used - self.seen
        a("L_end:"); a("s_endpgm")
        for x in self.ool: a.raw(x)
        a.raw("L_code_end:"); a.raw("    s_endpgm")
        return a.text()

def build():
    body = Main().build()
    return f"""; generated by dev/gen8.py
; @launch grid=(256,1,1) block=(512,1,1) lds={160*KB}
.amdgcn_target "amdgcn-amd-amdhsa--gfx950"
.text
{body}
.section .rodata,"a"
.p2align 6
.amdhsa_kernel {NAME}
  .amdhsa_next_free_vgpr 256
  .amdhsa_next_free_sgpr 102
  .amdhsa_accum_offset 256
  .amdhsa_group_segment_fixed_size 0
  .amdhsa_kernarg_size 80
  .amdhsa_user_sgpr_count 2
  .amdhsa_user_sgpr_kernarg_segment_ptr 1
  .amdhsa_system_sgpr_workgroup_id_x 1
.end_amdhsa_kernel
"""

if __name__ == "__main__":
    for x in sys.argv[2:]:
        if "=" in x: kk, v = x.split("="); OPT[kk] = int(v)
        else: OPT[x] = True
    open(sys.argv[1], "w").write(build())
```

```python
import sys, struct
from asmlib import *

NAME = "interleave_layers__sliding_block__glu_gated_glu__prompt_kernel"
KB = 1024
MB = 1 << 20
WQP  = 0
CS   = 0x180000
FL   = 0x1A0000
KVFL = 0x1A4000
RF   = 0x1AC000
PFL  = RF + 2048
AR   = RF + 8192
WGU  = 2*MB
STA  = WGU + 3584*KB; STB = STA + 256*KB
XA   = 6*MB; XB = 8*MB; OF = 10*MB
KV   = 12*MB
KVS  = 4*MB
HF   = 20*MB
WS_USED = 28*MB
ITS  = 32*MB
TS   = 0x6000000
WS_BYTES = 0x10000000
LOG2E = 1.4426950408889634
def f32(x): return "0x%08x" % struct.unpack("<I", struct.pack("<f", x))[0]
MF = "v_mfma_f32_32x32x16_bf16"
OPT = dict(stamp=False, force_slow=False, spin=400000, pre=10, cprio=2, fine=0, pf=0, st_a=14, kvflag=24, rot=1, win=6, hsc1=1)

P1, P2, P3, P4, PE, MISC = 0, 32*KB, 64*KB, 96*KB, 128*KB, 156*KB
LK = 108*KB; LV = LK + 12*KB; HS = 24*KB
L_AUG = MISC; L_ONES = MISC + 2560; L_HL = MISC + 2944; L_CP = L_HL + 16; L_MODE = L_HL + 32; L_DUMMY = MISC + 3072
DG = [0, 23, 31, 39, 46, 54]
DP = [7, 15, 23, 31, 39, 45]
CSEQ = ["x0", "x", "kv", "kvf", "q", "h0", "att", "wo1", "wo", "xr", "xch", "g8", "g16", "g24", "g32", "t3", "t4", "t5", "t6"] + [f"d{s}" for s in DP] + ["dx"]
HSEQ = ["kv0", "kv1", "kv2", "kv3", "augkv", "wq", "augq", "hk", "hv", "wo", "t2_0", "t2_1", "t2_2", "t2_3", "t3", "t4", "t5", "t6"] + [f"w{s}" for s in DG] + ["nkv"]
CV = {n: i + 1 for i, n in enumerate(CSEQ)}; HV = {n: i + 1 for i, n in enumerate(HSEQ)}
assert max(len(CSEQ), len(HSEQ)) < 64
XCH_WO = PE; XCH_DN = PE
L_X0 = P4
L_REL_ = 0
def wd_slot(s):
    for lo, hi, reg in ((0, 7, PE), (7, 15, P3), (15, 23, P2), (23, 31, P4), (31, 39, P1), (39, 46, PE), (46, 54, P4), (54, 56, PE + 16*KB)):
        if lo <= s < hi: return reg + (s - lo)*4*KB
GU_REG = [P1, P4, P2, P3, P2, P4, P1]
RQ, RK, RV = P1, P2, P3
F_O1, F_O2, F_X1, F_H1, F_H2, F_X2 = 1, 2, 3, 7, 9, 10
STASH = 32

V_LANE16 = 3; V_F0 = 4
V_TQ = 6
V_XOFF = 8
V_RSTD = 10; V_STD = 11; V_C1 = 12; V_TMP = 13; V_TS = 14; V_TS2 = 15
V_XAUG = 16
V_PX = 20; V_PH = 21; V_AUGA = 22; V_OUT = 23
V_RES = 24
V_PUBA = 0; V_FA = 35; V_FLG = 1; V_BASE = 9
V_FW = 32
V_EP = 36
ACC = [40, 56, 72, 88]
WR = 96; NW = 8
XR = 128
T0 = 104

class VM:
    def __init__(self, a): self.a = a; self.q = []
    def issue(self, tag): self.q.append(tag)
    def wait(self, tag):
        idx = max((i for i, t in enumerate(self.q) if t == tag), default=-1)
        if idx < 0: return
        n = len(self.q) - 1 - idx; assert n <= 63
        self.a(f"s_waitcnt vmcnt({n})"); del self.q[:idx + 1]
    def drain(self):
        self.a("s_waitcnt vmcnt(0)"); self.q = []

def stats_calc_list(d0, tmp):
    L = [f"v_mov_b32 v{tmp}, 0", f"v_mov_b32 v{tmp+1}, 0"]
    for i in range(8):
        L.append(f"v_dot2_f32_bf16 v{tmp}, v{d0+i}, s20, v{tmp}")
        L.append(f"v_dot2_f32_bf16 v{tmp+1}, v{d0+i}, v{d0+i}, v{tmp+1}")
    L += ["s_nop 2", f"v_permlane32_swap_b32 v{tmp}, v{tmp+1}", "s_nop 1", f"v_add_f32 v{tmp}, v{tmp}, v{tmp+1}"]
    return L

class Main:
    DBARS = list(range(0, 56, 7))
    def __init__(self):
        self.a = Asm(); self.nl = 0
        self.seen = set(); self.used = set()
        self.role = None; self.pend_stamp = None; self.ool = []; self.nw = NW; self.wr = WR
    def lab(self): self.nl += 1; return f"L{self.nl}"
    def emit(self, x):
        if callable(x): x()
        else: self.a(x)
    def pub(self, name):
        self.a(f"v_add_u32 v{V_TMP}, {CV[name]}, v{V_BASE}"); self.a(f"ds_write_b32 v{V_PUBA}, v{V_TMP}")
        self.seen.add(("C", name))
    def gate_rd(self, src): self.a(f"ds_read_b32 v{V_FLG}, v{V_FA} offset:{0 if src == 'H' else 16}")
    def gate_cmp(self, name, src="H", absval=None):
        a = self.a
        n = (HV if src == "H" else CV)[name]
        if absval is not None: a(f"s_movk_i32 s39, {absval}")
        else: a(f"s_add_u32 s39, s7, {n}")
        a(f"v_cmp_gt_u32 s[30:31], s39, v{V_FLG}")
        self.used.add((src, name))
    def gate_br(self, src="H", redo=[]):
        a = self.a; l1 = self.lab(); l2 = self.lab()
        a("s_cmp_eq_u64 s[30:31], 0"); a(f"s_cbranch_scc1 {l2}")
        a(f"{l1}:"); a("s_add_u32 s38, s38, 1"); a(f"s_cmp_gt_u32 s38, {OPT['spin']*16}"); a(f"s_cbranch_scc1 {l2}")
        a(f"ds_read_b32 v{V_FLG}, v{V_FA} offset:{0 if src == 'H' else 16}")
        for x in redo: a(x)
        a("s_waitcnt lgkmcnt(0)"); a(f"v_cmp_gt_u32 vcc, s39, v{V_FLG}"); a(f"s_cbranch_vccnz {l1}")
        a.pending.pop(l1, None)
        a(f"{l2}:")
    def gate_chk(self, name, src="H", absval=None):
        self.gate_cmp(name, src, absval); self.gate_br(src)
    def gate(self, name, src="H", absval=None):
        self.gate_rd(src); self.a("s_waitcnt lgkmcnt(0)"); self.gate_chk(name, src, absval)
    def stamp(self, i):
        if not OPT["stamp"]: return
        a = self.a
        a("s_memrealtime s[96:97]"); a("s_memtime s[98:99]"); a("s_waitcnt lgkmcnt(0)")
        if OPT.get("cnt"): a("s_lshl_b32 s98, s38, 12"); a("s_add_u32 s98, s98, s5")
        a(f"s_add_u32 s97, s23, {i}"); a(f"s_add_u32 m0, s97, s23"); a("s_nop 3")
        a(f"v_writelane_b32 v{V_TS}, s96, m0"); a(f"v_writelane_b32 v{V_TS2}, s98, m0")
    def store(self, instr, tag="st"):
        l1 = self.lab(); l2 = self.lab(); a = self.a
        if tag[0] == "h" and OPT.get("hsc1"):
            a(instr + " sc1"); self.vm.issue(tag); return
        a("s_cmp_lg_u32 s21, 0"); a(f"s_cbranch_scc1 {l1}"); a(instr); a(f"{l2}:")
        a.pending.pop(l1, None)
        self.ool += [f"{l1}:", "    " + instr + " sc1", f"    s_branch {l2}"]
        self.vm.issue(tag)
    def flag(self, val, tag="st"):
        a = self.a
        a(f"s_add_u32 s40, s23, {val}"); a(f"v_mov_b32 v{V_TMP}, s40"); self.vm.wait(tag); a("s_mov_b64 exec, 1")
        self.store(f"buffer_store_dword v{V_TMP}, off, s[8:11], s24", "fl_st"); a("s_mov_b64 exec, -1")
    def peek(self, voff):
        self.a(f"buffer_load_dword v{V_OUT}, v{voff}, s[8:11], s26 offen sc1"); self.vm.issue("pk")
    def check(self, voff, val):
        a = self.a; d = self.lab()
        a(f"s_add_u32 s61, s23, {val}")
        self.vm.wait("pk")
        a(f"v_cmp_gt_u32 vcc, s61, v{V_OUT}"); a(f"s_cbranch_vccz {d}")
        self.poll(voff, "s26", "s61")
        a(f"{d}:")
    def acquire(self):
        a = self.a; l = self.lab()
        a("s_cmp_eq_u32 s21, 0"); a(f"s_cbranch_scc1 {l}"); a("buffer_inv sc1"); a("s_waitcnt vmcnt(0)"); a(f"{l}:")
    def poll(self, voff, sbase, sval, srd="s[8:11]", sleep=0):
        a = self.a; l = self.lab(); d = self.lab()
        a("s_mov_b32 s41, 0")
        if sleep and OPT.get("pplain", 1):
            l0 = self.lab(); a(f"buffer_load_dword v{V_TMP}, v{voff}, {srd}, {sbase} offen"); a(f"s_branch {l0}"); a(f"{l}:"); a(f"s_sleep {sleep}")
            a(f"buffer_load_dword v{V_TMP}, v{voff}, {srd}, {sbase} offen sc1"); a(f"{l0}:")
        else:
            if sleep:
                l0 = self.lab(); a(f"s_branch {l0}"); a(f"{l}:"); a(f"s_sleep {sleep}"); a(f"{l0}:")
            else: a(f"{l}:")
            a(f"buffer_load_dword v{V_TMP}, v{voff}, {srd}, {sbase} offen sc1")
        if OPT.get("cnt"): a("s_add_u32 s5, s5, 1")
        a("s_add_u32 s41, s41, 1"); a(f"s_cmp_gt_u32 s41, {OPT['spin']}"); a(f"s_cbranch_scc1 {d}")
        a("s_waitcnt vmcnt(0)")
        a(f"v_cmp_gt_u32 vcc, {sval}, v{V_TMP}")
        a(f"s_cbranch_vccnz {l}")
        a(f"{d}:")
    def dma(self, sbase, const, lds, voff=V_LANE16, fl="", srd="s[8:11]", sl="s25"):
        a = self.a
        a(f"s_add_u32 s40, {sbase}, {const}")
        a(f"s_add_u32 m0, {sl}, {lds}")
        a(f"buffer_load_dwordx4 v{voff}, {srd}, s40 offen{fl} lds")
    def touch_txt(self, items):
        l = self.lab()
        L = ["s_cmp_lg_u32 s21, 0", f"s_cbranch_scc1 {l}", f"v_lshlrev_b32 v{V_TMP}, 7, v2"]
        for sal, n in items:
            L += sal
            m = (1 << n) - 1
            L += [f"s_mov_b32 exec_lo, {m & 0xffffffff:#x}", f"s_mov_b32 exec_hi, {m >> 32:#x}", f"buffer_load_dword v{V_OUT}, v{V_TMP}, s[8:11], s43 offen sc1"]
        L += ["s_mov_b64 exec, -1", f"{l}:"]
        return "\n".join(L)
    def stream(self, steps, look, fill=None):
        a = self.a
        reads = []; need = []
        for s in steps:
            reads += s["reads"]; need.append(len(reads) - 1)
        per = 2 if any(r["op"].endswith("tr_b16") for r in reads) else 1
        pre_rd = {}; pre_cmp = {}
        for i, r in enumerate(reads):
            if r.get("gate"):
                pre_rd[max(0, i - look - per)] = i; pre_cmp[max(0, i - per)] = i
        ng = sum(1 for r in reads if r.get("gate"))
        assert len(pre_rd) == ng and len(pre_cmp) == ng
        gi = sorted(pre_rd.values())
        assert all(b - a_ > look + per for a_, b in zip(gi, gi[1:])), gi
        nr = 0; q = []; done = [0]
        def wait(tag):
            idx = q.index(tag)
            if idx < done[0]: return
            n = len(q) - 1 - idx; assert n <= 15, n
            a(f"s_waitcnt lgkmcnt({n})"); done[0] = idx + 1
        def issue():
            nonlocal nr
            r = reads[nr]
            if nr in pre_rd: self.gate_rd(reads[pre_rd[nr]].get("gsrc", "H")); q.append(("g", pre_rd[nr]))
            if nr in pre_cmp:
                g = reads[pre_cmp[nr]]
                wait(("g", pre_cmp[nr])); self.gate_cmp(g["gate"], g.get("gsrc", "H"), g.get("absval"))
            if r.get("gate"): self.gate_br(r.get("gsrc", "H"))
            if r.get("vm") is not None: self.vm.wait(r["vm"])
            n = 4 if r["op"] == "ds_read_b128" else 2
            fm = r["fam"]; off = r["off"]
            reg = fm[off >> 16] if isinstance(fm, list) else fm
            a(f"{r['op']} {vr(r['d'], n)}, v{reg} offset:{off & 0xffff}"); q.append(nr)
            if r.get("pub"): self.pub(r["pub"]); q.append(("p", nr))
            nr += 1
        for i, s in enumerate(steps):
            while nr < len(reads) and nr <= need[i] + (look if i == 0 else 0): issue()
            for x in s.get("pre", []): self.emit(x)
            wait(need[i + 1] if (s.get("pair") and i + 1 < len(steps)) else need[i])
            a(s["mf"])
            nxt = need[i + 1] if i + 1 < len(steps) else need[i]
            while nr < len(reads) and nr <= nxt + look: issue()
            for x in s.get("post", []): self.emit(x)
            if fill:
                for f in fill(i): self.emit(f)
            if self.pend_stamp: self.stamp(self.pend_stamp); self.pend_stamp = None
    def rd128(self, w, off, gate=None, pub=None): return [dict(op="ds_read_b128", d=w, fam=[V_F0, V_F0 + 1], off=off, gate=gate, pub=pub)]
    def rdtr(self, w, fam, off, d2, gate=None, pub=None, absval=None):
        return [dict(op="ds_read_b64_tr_b16", d=w, fam=fam, off=off, gate=gate, absval=absval), dict(op="ds_read_b64_tr_b16", d=w + 2, fam=fam, off=off + d2, pub=pub)]
    def tr_addr16(self, dst, t0, t1):
        a = self.a
        a(f"v_lshrrev_b32 v{t0}, 5, v2"); a(f"v_lshlrev_b32 v{dst}, 9, v{t0}")
        a(f"v_bfe_u32 v{t0}, v2, 2, 2"); a(f"v_lshl_add_u32 v{dst}, v{t0}, 6, v{dst}")
        a(f"v_bfe_u32 v{t0}, v2, 4, 1"); a(f"v_lshl_add_u32 v{dst}, v{t0}, 5, v{dst}")
        a(f"v_and_b32 v{t0}, 1, v2"); a(f"v_lshl_add_u32 v{dst}, v{t0}, 4, v{dst}")
        a(f"v_bfe_u32 v{t0}, v2, 1, 1"); a(f"v_lshl_add_u32 v{dst}, v{t0}, 3, v{dst}")

    def prologue(self):
        a = self.a
        a.raw(f".globl {NAME}"); a.raw(".p2align 8"); a.raw(f".type {NAME},@function"); a.raw(f"{NAME}:")
        a(f"s_cmp_ge_u32 s2, {0 if OPT.get('empty') else 256}"); a("s_cbranch_scc1 L_end")
        if OPT["stamp"]: a("s_memrealtime s[100:101]")
        a("s_load_dwordx4 s[64:67], s[0:1], 0")
        a("s_load_dwordx2 s[8:9], s[0:1], 72")
        a("s_load_dwordx2 s[68:69], s[0:1], 16")
        a("s_load_dwordx8 s[72:79], s[0:1], 32")
        a("s_load_dwordx2 s[70:71], s[0:1], 64")
        a(f"s_mov_b32 s10, {WS_BYTES}"); a("s_mov_b32 s11, 0x20000")
        a("v_lshrrev_b32 v1, 6, v0"); a("v_and_b32 v2, 63, v0")
        a("v_readfirstlane_b32 s3, v1")
        a(f"v_lshlrev_b32 v{V_LANE16}, 4, v2")
        a("s_and_b32 s4, s2, 7"); a("s_lshr_b32 s5, s2, 3"); a("s_and_b32 s6, s3, 3")
        a("s_lshl_b32 s16, s4, 1"); a("s_lshr_b32 s40, s5, 4"); a("s_add_u32 s16, s16, s40")
        a("s_and_b32 s17, s5, 15")
        a("s_lshr_b32 s18, s17, 3"); a("s_and_b32 s19, s17, 7")
        a("s_mov_b32 s20, 0x3f803f80"); a("s_mov_b32 s21, 0"); a("s_mov_b32 s22, 0"); a("s_mov_b32 s23, 0")
        a("s_lshl_b32 s26, s16, 9"); a(f"s_add_u32 s26, s26, {FL}")
        a("s_lshl_b32 s24, s17, 5"); a("s_lshl_b32 s40, s3, 2"); a("s_add_u32 s24, s24, s40"); a("s_add_u32 s24, s24, s26")
        a("s_lshl_b32 s25, s6, 10")
        a("s_lshl_b32 s27, s16, 2"); a("s_add_u32 s27, s27, s6")
        if OPT["rot"]: a("s_add_u32 s28, s16, s17"); a("s_lshl_b32 s28, s28, 2"); a("s_and_b32 s28, s28, 31")
        else: a("s_mov_b32 s28, 0")
        a("s_mov_b32 s35, 0"); a("s_mov_b32 s36, 0")
        a(f"v_mov_b32 v{V_TS}, 0"); a(f"v_mov_b32 v{V_TS2}, 0")
        a("s_xor_b32 s40, s3, 4"); a("s_lshl_b32 s40, s40, 2"); a(f"s_add_u32 s40, s40, {L_HL}")
        a(f"v_lshlrev_b32 v{V_PUBA}, 2, v2"); a(f"v_add_u32 v{V_PUBA}, {L_DUMMY}, v{V_PUBA}"); a(f"v_writelane_b32 v{V_PUBA}, s40, 0")
        a(f"v_mov_b32 v{V_BASE}, 0"); a("s_mov_b32 s7, 0"); a("s_mov_b32 s38, 0")
        a(f"ds_write_b32 v{V_PUBA}, v{V_BASE}")
        a("s_waitcnt lgkmcnt(0)"); a("s_barrier")
        if OPT.get("wsoff"):
            a(f"s_add_u32 s8, s8, {OPT['wsoff']*MB}"); a("s_addc_u32 s9, s9, 0"); a(f"s_mov_b32 s10, {WS_BYTES - OPT['wsoff']*MB}")

    def attention(self):
        a = self.a
        KF = XR + 8; S = [XR + 44, XR + 60, XR + 76]; NM = [XR + 92, XR + 108]; MX = [XR + 124, XR + 125]; T = XR + 126
        O = [ACC[2], ACC[3]]; VA = ACC[1]; KA = VA + 9
        VF = [104, 112]; P = [120, ACC[0] + 8]; BM = ACC[0]; NEG = KA + 2
        a("v_and_b32 v104, 31, v2"); a("v_lshrrev_b32 v105, 5, v2")
        a(f"v_and_b32 v{KA}, 0x13, v104"); a("v_bfe_u32 v106, v104, 2, 1"); a(f"v_lshl_add_u32 v{KA}, v106, 3, v{KA}")
        a("v_bfe_u32 v106, v104, 3, 1"); a(f"v_lshl_add_u32 v{KA}, v106, 2, v{KA}")
        a(f"v_lshlrev_b32 v{KA}, 4, v{KA}"); a(f"v_lshl_add_u32 v{KA}, v105, 9, v{KA}")
        a(f"s_add_u32 s41, s25, {LK}"); a(f"v_add_u32 v{KA}, s41, v{KA}")
        a("v_bfe_u32 v106, v2, 2, 2"); a("v_lshl_add_u32 v106, v105, 3, v106"); a("v_lshlrev_b32 v106, 4, v106")
        a("v_and_b32 v107, 1, v2"); a("v_lshl_add_u32 v106, v107, 9, v106")
        a("v_bfe_u32 v107, v2, 1, 1"); a("v_lshl_add_u32 v106, v107, 3, v106")
        a(f"s_add_u32 s41, s25, {LV}"); a("v_add_u32 v106, s41, v106")
        a("v_bfe_u32 v107, v2, 4, 1"); a("v_cmp_eq_u32 vcc, 1, v107")
        a(f"v_mov_b32 v109, {HS}"); a(f"v_cndmask_b32_e64 v{KA+1}, v109, 0, vcc")
        a("s_sub_i32 s42, 8, s27")
        for i in range(9):
            a(f"s_cmp_gt_i32 s42, {i}"); a("s_cselect_b32 s41, 8, 0"); a(f"s_add_u32 s41, s41, {L_ONES}")
            a(f"v_mov_b32 v107, s41"); a(f"v_add_u32 v108, {i*KB}, v106")
            a(f"v_cndmask_b32 v{VA+i}, v108, v107, vcc")
        a("v_mov_b32 v107, 0xffff"); a("v_mov_b32 v108, 0xffff0000")
        for p in range(8):
            a(f"v_cndmask_b32_e64 v109, v107, 0, s[{64+4*p}:{65+4*p}]"); a(f"v_cndmask_b32_e64 v110, v108, 0, s[{66+4*p}:{67+4*p}]")
            a(f"v_or_b32 v{BM+p}, v109, v110")
        a(f"v_mov_b32 v{NEG}, {f32(-1e30)}")
        return dict(KF=KF, S=S, NM=NM, O=O, VA=VA, VF=VF, P=P, BM=BM, MX=MX, T=T, KA=KA, NEG=NEG)

    def attention_run(self, r, halo_k, halo_v, early_a, redo_a):
        a = self.a
        KF, S, NM, O, VA, VF, P, BM, MX, T, KA, NEG = (r[x] for x in "KF S NM O VA VF P BM MX T KA NEG".split())
        def kread(hh, i, d=None): a(f"ds_read_b128 {vr(KF+4*(i if d is None else d),4)}, v{KA} offset:{hh*HS + i*KB}")
        def vrd(reg, vf):
            for t in range(2):
                for u in range(2): a(f"ds_read_b64_tr_b16 {vr(vf+4*t+2*u,2)}, v{reg} offset:{t*256 + u*64}")
        def vread(hh, i, vf):
            vrd(VA + i, vf)
            if hh == 0: a(f"v_add_u32 v{VA+i}, v{KA+1}, v{VA+i}")
        def qk(hh, dst, i, c): a(f"{MF} {vr(dst,16)}, {vr(KF+4*i,4)}, {vr(XR+4*hh,4)}, {c}")
        def pv(hh, vf, p, t, first=False): a(f"{MF} {vr(O[hh],16)}, {vr(vf+4*t,4)}, {vr(p+4*t,4)}, {'0' if first else vr(O[hh],16)}")
        def mx(b, first=False):
            lo = 0
            if first:
                a(f"v_max3_f32 v{MX[0]}, v{b}, v{b+1}, v{b+2}"); a(f"v_max3_f32 v{MX[1]}, v{b+3}, v{b+4}, v{b+5}"); lo = 6
            for n, q in enumerate(range(lo, 16, 2)): a(f"v_max3_f32 v{MX[n%2]}, v{MX[n%2]}, v{b+q}, v{b+q+1}")
        def mxfin(hh):
            a(f"v_max_f32 v{MX[0]}, v{MX[0]}, v{MX[1]}"); a(f"v_mov_b32 v{MX[1]}, v{MX[0]}")
            a(f"v_permlane32_swap_b32 v{MX[0]}, v{MX[1]}"); a("s_nop 1"); a(f"v_max_f32 v{MX[0]}, v{MX[0]}, v{MX[1]}")
            for q in range(16): a(f"v_sub_f32 v{NM[hh]+q}, 0, v{MX[0]}")
        def mask(b, diag):
            for q in range(16):
                a(f"v_cndmask_b32_e64 v{b+q}, v{NEG}, v{b+q}, s[{64+2*q}:{65+2*q}]" if diag else f"v_cndmask_b32_e64 v{b+q}, v{b+q}, v{NEG}, s[{64+2*q}:{65+2*q}]")
        def ex(b, lo, hi):
            for q in range(lo, hi): a(f"v_exp_f32 v{b+q}, v{b+q}")
        def cv(p, b, lo, hi):
            for q in range(lo, hi): a(f"v_cvt_pk_bf16_f32 v{p+q}, v{b+2*q}, v{b+2*q+1}")
        def fin(hh, bad=None):
            a(f"v_rcp_f32 v{T}, v{O[hh]+8}")
            if bad:
                a(f"v_cmp_nle_f32 vcc, v{O[hh]+8}, v{NEG+1}")
            for q in range(8): a(f"v_mul_f32 v{O[hh]+q}, v{T}, v{O[hh]+q}")
            if bad: a(f"s_cbranch_vccnz {bad}"); a.pending.pop(bad, None)
            for q in range(4): a(f"v_cvt_pk_bf16_f32 v{V_EP+q}, v{O[hh]+2*q}, v{O[hh]+2*q+1}")
            self.store(f"buffer_store_dwordx4 {vr(V_EP,4)}, v{V_LANE16}, s[8:11], s37 offen offset:{hh*KB}")
        a(f"v_mov_b32 v{NEG+1}, {f32(2.0**OPT.get('thr', 40))}")
        kread(0, 8); kread(1, 8, 7); vread(0, 8, VF[0]); vread(1, 8, VF[1])
        a("s_waitcnt lgkmcnt(9)"); qk(0, S[0], 8, "0")
        a("s_waitcnt lgkmcnt(8)"); qk(1, S[1], 7, "0")
        for hh in range(2):
            b = S[hh]
            mask(b, True); mx(b, True); mxfin(hh)
            for q in range(16): a(f"v_sub_f32 v{b+q}, v{b+q}, v{MX[0]}")
            ex(b, 0, 16); cv(P[hh], b, 0, 8)
            a("s_waitcnt lgkmcnt(0)")
            pv(hh, VF[hh], P[hh], 0, True); pv(hh, VF[hh], P[hh], 1)
        if OPT["fine"] > 2: self.stamp(15)
        halo_k()
        order = [7, 6, 5, 4, 3, 2, 1, 0]
        blocks = [(hh, i) for hh in range(2) for i in order]
        for i in order: kread(0, i)
        a("s_waitcnt lgkmcnt(7)"); qk(0, S[0], 7, vr(NM[0], 16))
        a("s_waitcnt lgkmcnt(6)"); qk(0, S[1], 6, vr(NM[0], 16))
        halo_v()
        F3 = (lambda i: self.stamp(i)) if OPT["fine"] > 2 else (lambda i: None)
        F3(16)
        kread(1, 7); kread(1, 6)
        pend = None
        for n, (hh, i) in enumerate(blocks):
            b = S[n % 3]; vf = VF[n % 2]; p = P[n % 2]
            ex(b, 0, 4)
            vread(hh, i, vf)
            if pend: pv(*pend)
            ex(b, 4, 10)
            kr = False
            if n + 2 < 16:
                h2, i2 = blocks[n + 2]
                qk(h2, S[(n + 2) % 3], i2, vr(NM[h2], 16))
                if h2 == 0: kread(1, i2); kr = True
            if n == OPT.get("pk", 15): self.peek(V_PH)
            ex(b, 10, 16)
            if n == 8: F3(17); fin(0, "L_redo0"); self.pub("h0"); F3(18)
            if n == OPT.get("fo1", 11): F3(19); self.flag(F_O1); F3(20)
            cv(p, b, 0, 8)
            if i == 0:
                for q in range(8): a(f"v_and_b32 v{p+q}, v{BM+q}, v{p+q}")
            a("s_waitcnt lgkmcnt(1)" if (kr or n == 8) else "s_waitcnt lgkmcnt(0)")
            pv(hh, vf, p, 0)
            pend = (hh, vf, p, 1)
        pv(*pend)
        fin(1, "L_redo1")
        self.pub("att")
        lb = self.lab(); lj = self.lab()
        a(f"s_add_u32 s61, s23, {F_O1}"); self.vm.wait("pk")
        a(f"v_cmp_gt_u32 vcc, s61, v{V_OUT}"); a(f"s_cbranch_vccz {lb}")
        qs = list(self.vm.q)
        a("L_att_late:")
        self.flag(F_O2); redo_a(a); a("s_waitcnt vmcnt(0)"); a(f"s_branch {lj}")
        a(f"{lb}:")
        self.vm.q = qs
        early_a()
        self.flag(F_O2)
        a(f"{lj}:")
        main = self.a; saved_q = list(self.vm.q)
        self.a = a = Asm(); self.vm.a = a
        def redo(hh):
            a("s_nop 15"); a("s_waitcnt vmcnt(0) lgkmcnt(0)")
            for i in range(9): kread(hh, i)
            a("s_waitcnt lgkmcnt(0)")
            for i in (8, 0, 1, 2, 3, 4, 5, 6, 7):
                qk(hh, S[0], i, "0")
                if i in (0, 8): mask(S[0], i == 8)
                mx(S[0], i == 8)
            mxfin(hh)
            for i in range(9):
                if hh == 0: a(f"v_sub_u32 v{T}, v{VA+i}, v{KA+1}")
                vrd(T if hh == 0 else VA + i, VF[0])
                qk(hh, S[0], i, vr(NM[hh], 16))
                if i in (0, 8): mask(S[0], i == 8)
                ex(S[0], 0, 16); cv(P[0], S[0], 0, 8)
                a("s_waitcnt lgkmcnt(0)")
                pv(hh, VF[0], P[0], 0, i == 0); pv(hh, VF[0], P[0], 1)
            fin(hh)
        a("L_redo0:")
        redo(0); self.pub("h0"); self.vm.q = ["st"]; self.flag(F_O1)
        a("L_redo1:")
        redo(1); self.pub("att")
        a("s_waitcnt vmcnt(0)"); a("s_branch L_att_late")
        self.ool += a.out
        self.a = main; self.vm.a = main; self.vm.q = saved_q

    def ln_stats(self, d):
        L = []
        for n in (8, 4, 2, 1):
            for i in range(n): L.append(f"v_add_f32 v{d+i}, v{d+i}, v{d+i+n}")
        L += [f"v_mov_b32 v{d+1}, v{d}", f"v_permlane32_swap_b32 v{d}, v{d+1}", "s_nop 1",
              f"v_mul_f32 v{d}, {f32(-1.0/512)}, v{d}", f"v_mul_f32 v{d+1}, {f32(1.0/512)}, v{d+1}",
              f"v_fma_f32 v{d+1}, -v{d}, v{d}, v{d+1}", f"v_max_f32 v{d+1}, 0, v{d+1}", f"v_add_f32 v{d+1}, {f32(1e-5)}, v{d+1}",
              f"v_rsq_f32 v{V_RSTD}, v{d+1}", f"v_sqrt_f32 v{V_STD}, v{d+1}",
              f"v_cvt_pk_bf16_f32 v{V_XAUG}, v{d}, v{d}",
              f"v_and_b32 v{d+2}, 0xffff0000, v{V_XAUG}", f"v_sub_f32 v{d+2}, v{d}, v{d+2}", f"v_mov_b32 v{d+3}, 0",
              f"v_cvt_pk_bf16_f32 v{V_XAUG+1}, v{d+2}, v{d+3}",
              f"v_cndmask_b32_e64 v{V_XAUG}, 0, v{V_XAUG}, s[62:63]", f"v_cndmask_b32_e64 v{V_XAUG+1}, 0, v{V_XAUG+1}, s[62:63]",
              f"v_mul_f32 v{V_C1}, {f32(-LOG2E)}, v{V_RSTD}"]
        return L
    def wreg(self):
        w = self.wr + 4 * (self.wc % self.nw); self.wc += 1; return w
    def aug_step(self, acc, augidx, bn=None, look=None):
        w = self.wreg()
        s = dict(reads=[dict(op="ds_read_b64", d=w, fam=V_AUGA, off=augidx * 256, gate=bn)], mf=f"{MF} {vr(acc,16)}, {vr(w,4)}, {vr(V_XAUG,4)}, {vr(acc,16)}")
        return s
    def x_pass1(self, xl, sst, local, wread, augs, augbar, NT=2):
        a = self.a; vm = self.vm
        PRE = OPT["pre"] if NT == 2 else OPT.get("pre3", OPT["pre"]); STD = ACC[NT]
        def X(kc):
            def f(): xl(kc); vm.issue(f"x{kc}")
            return f
        XS = STD + 4
        xslot = lambda p: [L_X0, L_X0 + 16*KB, L_X0 + 32*KB, RQ, RQ + 16*KB][p if p < 5 else p - 5]
        def piece(p):
            a(f"s_add_u32 s41, s28, {4*p}"); a("s_and_b32 s41, s41, 31"); a("s_lshl_b32 s41, s41, 5"); a("s_add_u32 s41, s41, s55")
            for i in range(4): self.dma("s41", i*8*KB, xslot(p) + i*KB, voff=XS + i%2, srd="s[44:47]", sl="s42"); vm.issue(f"pc{p}")
        def dots(lo, hi):
            for kc in range(lo, hi):
                for i in range(4):
                    r = XR + 4 * kc + i
                    a(f"v_dot2c_f32_bf16 v{STD + 2*(i%2)}, s20, v{r}"); a(f"v_dot2c_f32_bf16 v{STD + 1 + 2*(i%2)}, v{r}, v{r}")
        def xrd(p): return [dict(op="ds_read_b128", d=XR+16*p+4*q, fam=(XS+2+q if xslot(p) >= L_X0 else XS+6+q), off=(xslot(p) - L_X0 if xslot(p) >= L_X0 else xslot(p) - RQ), vm=(f"pc{p}" if q == 0 else None)) for q in range(4)]
        def piece_part(p, i):
            if i == 0: a(f"s_add_u32 s33, s28, {4*p}"); a("s_and_b32 s33, s33, 31"); a("s_lshl_b32 s33, s33, 5"); a("s_add_u32 s33, s33, s55")
            self.dma("s33", i*8*KB, xslot(p) + i*KB, voff=XS + i%2, srd="s[44:47]", sl="s42"); vm.issue(f"pc{p}")
        def fin0():
            dots(28, 32)
            a(f"v_add_f32 v{STD}, v{STD}, v{STD+2}"); a(f"v_add_f32 v{STD+1}, v{STD+1}, v{STD+3}")
            a(f"v_permlane32_swap_b32 v{STD}, v{STD+1}"); a("s_nop 1"); a(f"v_add_f32 v{STD}, v{STD}, v{STD+1}")
            for x in self.ln_stats(STD)[15:]: a(x)
        if local == "start":
            a(f"v_lshrrev_b32 v{XS+3}, 4, v2"); a(f"v_and_b32 v{XS}, 7, v2"); a(f"v_xor_b32 v{XS}, v{XS+3}, v{XS}"); a(f"v_lshlrev_b32 v{XS}, 4, v{XS}")
            a(f"v_lshrrev_b32 v{XS+3}, 3, v2"); a(f"v_lshl_add_u32 v{XS}, v{XS+3}, 10, v{XS}"); a(f"v_xor_b32 v{XS+1}, 64, v{XS}")
            a("s_lshl_b32 s42, s6, 12")
            a("s_waitcnt lgkmcnt(0)"); a("s_mov_b64 s[44:45], s[64:65]")
            piece(0)
            return
        if local:
            piece(1)
            if not OPT.get("p2l"): piece(2)
            for i in range(4): a(f"v_mov_b32 v{STD+i}, 0")
            a(f"v_bfe_u32 v{XS+2}, v2, 1, 3"); a(f"v_lshrrev_b32 v{XS+3}, 5, v2"); a(f"v_xor_b32 v{XS+2}, v{XS+3}, v{XS+2}"); a(f"v_lshlrev_b32 v{XS+2}, 4, v{XS+2}")
            a(f"v_and_b32 v{XS+3}, 31, v2"); a(f"v_lshl_add_u32 v{XS+2}, v{XS+3}, 7, v{XS+2}")
            a(f"s_add_u32 s41, s42, {L_X0}"); a(f"v_add_u32 v{XS+2}, s41, v{XS+2}")
            for q in range(1, 4): a(f"v_xor_b32 v{XS+2+q}, {32*q}, v{XS+2}")
            for q in range(4): a(f"v_subrev_u32 v{XS+6+q}, {L_X0 - RQ}, v{XS+2+q}")
        else:
            SP = OPT.get("sp", 6)
            for kc in range(SP): X(kc)()
            for i in range(4): a(f"buffer_load_dwordx4 {vr(STD+4*i,4)}, v{V_LANE16}, s[8:11], {sst} offen offset:{1024*i} sc1"); vm.issue("stt")
            for kc in range(SP, PRE): X(kc)()
        steps = []
        st = self.ln_stats(STD)
        for kc in range(32):
            for t in range(NT):
                w = self.wreg()
                s = dict(reads=wread(w, t, kc), mf=f"{MF} {vr(ACC[t],16)}, {vr(w,4)}, {vr(XR+4*kc,4)}, {'0' if kc == 0 else vr(ACC[t],16)}", post=[])
                if local:
                    p = kc // 4
                    if t == 0 and kc % 4 == 0:
                        s["reads"] = xrd(p) + s["reads"]
                        if p: s["pre"] = [lambda p=p: dots(4*p - 4, 4*p)]
                        if OPT["fine"] == 2: s["post"].append(lambda p=p: self.stamp(16 + p))
                    n8 = 2 * (kc % 4) + t
                    sched = ({0: (2, 3), 1: (4, 5), 2: (6, 7)} if OPT.get("p2l") else {0: (3, 4), 1: (5, 6), 2: (7, None)}).get(p, (None, None))[n8 // 4]
                    if sched is not None: s["post"].append(lambda sched=sched, n8=n8: piece_part(sched, n8 % 4))
                    if n8 == 7 and p == 2: s["post"].append(lambda: self.pub("x0"))
                    if n8 == 0 and p == 4: s["post"].append(lambda: self.pub("x"))
                    if t == 1 and kc == 31: s["post"].append(fin0)
                elif t == 0:
                    s["pre"] = [lambda kc=kc: vm.wait(f"x{kc}")]
                    if kc + PRE < 32: s["post"].append(X(kc + PRE))
                elif kc >= OPT.get("sp", 6) + 1:
                    s["post"] += st[:3]; st = st[3:]
                steps.append(s)
        for t in range(NT): steps.append(self.aug_step(ACC[t], augs[t], augbar if t == 0 else None))
        return steps

    def res_gemm(self, nsteps, slot, areg, aload, pre_issued, PRE, gates, pubs, xch, xpub, pre_x, hooks={}):
        a = self.a; vm = self.vm
        for i in range(8):
            a(f"v_lshlrev_b32 v{ACC[0]+2*i}, 16, v{V_RES+i}"); a(f"v_and_b32 v{ACC[0]+2*i+1}, 0xffff0000, v{V_RES+i}")
        a(f"v_xor_b32 v{V_EP}, 64, v{V_FW}"); a(f"v_add_u32 v{V_EP+1}, 0x10000, v{V_EP}"); a(f"v_add_u32 v{V_EP+2}, 0x20000, v{V_EP}")
        nxt = [pre_issued]
        def upto(n):
            while nxt[0] < min(n, nsteps): aload(nxt[0]); nxt[0] += 1
        steps = []; self.wc = 0; self.wr = WR; self.nw = NW
        fo = [V_FW, V_FW + 1, V_FW + 2]; ft = [V_EP, V_EP + 1, V_EP + 2]
        order = [(s, t) for s in range(nsteps - 2) for t in range(2)] + [(nsteps - 2, 1), (nsteps - 1, 1), (nsteps - 2, 0), (nsteps - 1, 0)]
        first = {}; last = {}
        for n, (s, t) in enumerate(order): first.setdefault(s, n); last[s] = n
        for n, (s, t) in enumerate(order):
            w = self.wreg()
            c = vr(ACC[t], 16) if (t == 0 or s > 0) else "0"
            st = dict(reads=self.rdtr(w, fo if t == 0 else ft, slot(s), 512, gates.get(s) if first[s] == n else None, pubs.get(s) if last[s] == n else None),
                      mf=f"{MF} {vr(ACC[t],16)}, {vr(w,4)}, {vr(areg(s),4)}, {c}")
            if first[s] == n and s == pre_x[0]: st["reads"][0].update(gate=pre_x[1], gsrc="C")
            if first[s] == n: st["pre"] = ([lambda s=s: hooks[s](upto)] if s in hooks else []) + [lambda s=s: vm.wait(f"a{s}")]
            elif PRE: st["post"] = [lambda s=s: upto(s + 1 + PRE)]
            steps.append(st)
        a(f"s_xor_b32 s40, s6, 1"); a("s_lshl_b32 s40, s40, 12"); a(f"s_add_u32 s40, s40, {xch}"); a(f"v_add_u32 v{V_EP+3}, s40, v{V_LANE16}")
        self.stream(steps, look=10)
        if OPT["fine"] and nsteps == 56: self.stamp(9)
        for i in range(4): a(f"ds_write_b128 v{V_EP+3}, {vr(ACC[1]+4*i,4)} offset:{i*KB}")
        self.pub(xpub)
        a(f"v_xor_b32 v{V_EP+3}, 4096, v{V_EP+3}")
        rds = [f"ds_read_b128 {vr(ACC[2]+4*i,4)}, v{V_EP+3} offset:{i*KB}" for i in range(4)]
        self.gate_rd("C")
        for x in rds: a(x)
        a("s_waitcnt lgkmcnt(4)")
        self.gate_cmp(xpub, "C"); self.gate_br("C", redo=rds)
        for i in range(4):
            a(f"s_waitcnt lgkmcnt({3-i})")
            for q in range(4): a(f"v_add_f32 v{ACC[0]+4*i+q}, v{ACC[0]+4*i+q}, v{ACC[2]+4*i+q}")
            for q in range(2): a(f"v_cvt_pk_bf16_f32 v{V_RES+2*i+q}, v{ACC[0]+4*i+2*q}, v{ACC[0]+4*i+2*q+1}")

    def x_store(self, sx, sst, flagval):
        a = self.a
        self.store(f"buffer_store_dwordx4 {vr(V_RES,4)}, v{V_LANE16}, s[8:11], {sx} offen")
        self.store(f"buffer_store_dwordx4 {vr(V_RES+4,4)}, v{V_LANE16}, s[8:11], {sx} offen offset:1024")
        for x in stats_calc_list(V_RES, ACC[1]): a(x)
        self.store(f"buffer_store_dword v{ACC[1]}, v{V_LANE16}, s[8:11], {sst} offen")
        self.flag(flagval)

    def compute(self):
        a = self.a; self.role = "C"; self.vm = vm = VM(a)
        a(f"s_setprio {OPT['cprio']}")
        a("v_and_b32 v104, 31, v2"); a("v_lshrrev_b32 v105, 5, v2")
        a(f"v_lshlrev_b32 v{V_XOFF}, 10, v104"); a(f"v_lshl_add_u32 v{V_XOFF}, v105, 4, v{V_XOFF}")
        a("s_lshl_b32 s55, s27, 15")
        a(f"s_mov_b32 s46, {2048*1024}"); a("s_mov_b32 s47, 0x20000")
        self.x_pass1(None, None, "start", None, None, None)
        a(f"s_mov_b32 s14, {2048*1024}"); a("s_mov_b32 s15, 0x20000")
        a("s_lshr_b32 s50, s6, 1"); a("s_and_b32 s51, s6, 1")
        a("s_lshl_b32 s48, s18, 1"); a("s_add_u32 s48, s48, s50"); a("s_mov_b32 s52, s48")
        a("s_lshl_b32 s40, s16, 2"); a("s_add_u32 s48, s48, s40")
        a("s_lshl_b32 s49, s19, 1"); a("s_add_u32 s49, s49, s51")
        a("s_lshl_b32 s53, s48, 15"); a("s_lshl_b32 s40, s49, 11"); a("s_add_u32 s53, s53, s40")
        a("s_lshl_b32 s54, s48, 12"); a("s_lshr_b32 s40, s49, 2"); a("s_lshl_b32 s40, s40, 10"); a("s_add_u32 s54, s54, s40")
        a("s_and_b32 s40, s49, 3"); a("s_lshl_b32 s40, s40, 2"); a("s_add_u32 s54, s54, s40")
        a(f"v_mov_b32 v{V_F0}, v{V_LANE16}"); a(f"v_add_u32 v{V_F0+1}, 0x10000, v{V_LANE16}")
        self.tr_addr16(V_TQ, 106, 107); a(f"v_add_u32 v{V_TQ+1}, 0x10000, v{V_TQ}")
        a(f"v_lshlrev_b32 v{V_FW}, 10, v105"); a("v_bfe_u32 v106, v2, 2, 2"); a(f"v_lshl_add_u32 v{V_FW}, v106, 7, v{V_FW}")
        a("v_bfe_u32 v106, v2, 3, 1"); a("v_xor_b32 v106, s51, v106"); a(f"v_lshl_add_u32 v{V_FW}, v106, 6, v{V_FW}")
        a(f"v_and_b32 v106, 63, v{V_TQ}"); a(f"v_add_u32 v{V_FW}, v106, v{V_FW}")
        a("s_lshl_b32 s40, s51, 11"); a(f"v_add_u32 v{V_FW}, s40, v{V_FW}")
        a(f"v_add_u32 v{V_FW+1}, 0x10000, v{V_FW}"); a(f"v_add_u32 v{V_FW+2}, 0x20000, v{V_FW}")
        a("v_bfe_u32 v106, v2, 1, 3"); a("v_and_b32 v107, 1, v2"); a("v_and_b32 v108, 7, v2")
        a("s_lshl_b32 s40, s50, 8"); a("s_lshl_b32 s41, s51, 3"); a("s_add_u32 s40, s40, s41")
        a(f"v_lshlrev_b32 v{V_PX}, 5, v106"); a(f"v_lshl_add_u32 v{V_PX}, v107, 2, v{V_PX}"); a(f"v_add_u32 v{V_PX}, s40, v{V_PX}")
        a("s_lshl_b32 s40, s51, 8"); a("s_lshl_b32 s41, s52, 2"); a("s_add_u32 s40, s40, s41")
        a(f"v_lshlrev_b32 v{V_PH}, 5, v108"); a(f"v_add_u32 v{V_PH}, s40, v{V_PH}")
        a(f"v_lshlrev_b32 v{V_AUGA}, 3, v104"); a(f"v_add_u32 v{V_AUGA}, {L_AUG}, v{V_AUGA}")
        a(f"v_mov_b32 v{V_XAUG+2}, 0"); a(f"v_mov_b32 v{V_XAUG+3}, 0")
        for r in range(WR, WR + 32, 4): a(f"v_mov_b32 v{r+2}, 0") if False else None
        a("v_cmp_gt_u32 s[62:63], 32, v2")
        a("v_lshlrev_b32 v106, 3, v105"); a("v_sub_u32 v106, v104, v106")
        a("s_mov_b64 s[12:13], s[78:79]")
        if OPT["stamp"]: a(f"v_writelane_b32 v{V_TS}, s100, 31")
        for r in range(16): a(f"v_cmp_le_i32 s[{64+2*r}:{65+2*r}], {16*(r>>3) + (r&7)}, v106")
        a(f"v_and_b32 v{V_FA}, 3, v2"); a(f"v_lshlrev_b32 v{V_FA}, 2, v{V_FA}"); a(f"v_add_u32 v{V_FA}, {L_HL}, v{V_FA}")
        self.stamp(0)
        ftq = [V_TQ, V_TQ + 1]
        self.wc = 0
        steps = self.x_pass1(None, None, True, lambda w, t, kc: self.rdtr(w, ftq, (RK, RV)[t] + kc*KB, 256, f"kv{kc//8}" if (t == 0 and kc % 8 == 0) else None, "kv" if (t == 1 and kc == 31) else None), [1, 2], "augkv")
        self.stream(steps, look=8)
        a("s_branch L_c_go")
        a("L_c_loop:")
        self.stamp(0)
        self.poll(V_PX, "s26", "s57"); vm.q = []
        self.stamp(1)
        def xl(kc):
            if kc % 4 == 0: a(f"s_add_u32 s43, s55, {kc*KB}")
            a(f"buffer_load_dwordx4 {vr(XR+4*kc,4)}, v{V_LANE16}, s[8:11], s43 offen offset:{(kc%4)*KB} sc1")
        self.wc = 0
        steps = self.x_pass1(xl, "s56", False, lambda w, t, kc: self.rdtr(w, ftq, (RK, RV)[t] + kc*KB, 256, "nkv" if (t == 0 and kc == 0) else None,
                                                                          {(1, OPT.get("b1x", 22)): "x", (1, 31): "kv"}.get((t, kc)), HV["nkv"]), [1, 2], None)
        self.stream(steps, look=10)
        a("L_c_go:")
        if OPT["fine"]: self.stamp(14)
        steps = []
        for kc in range(32):
            w = self.wreg()
            steps.append(dict(reads=self.rdtr(w, ftq, RQ + kc*KB, 256, "wq" if kc == 0 else None),
                              mf=f"{MF} {vr(ACC[2],16)}, {vr(w,4)}, {vr(XR+4*kc,4)}, {'0' if kc == 0 else vr(ACC[2],16)}"))
        steps.append(None)
        q = ["s_lshl_b32 s58, s17, 17", "s_lshl_b32 s40, s27, 10", "s_add_u32 s58, s58, s40", f"s_add_u32 s58, s58, {KV}", "s_add_u32 s58, s58, s36",
             f"s_add_u32 s40, s25, {LK + 8*KB}", f"v_add_u32 v{V_OUT}, s40, v{V_LANE16}"]
        for t in range(2):
            A0 = ACC[t]
            for hh in range(2):
                q += [f"v_mul_f32 v{A0+r}, v{V_RSTD}, v{A0+r}" for r in range(8*hh, 8*hh + 8)]
                q += [f"v_cvt_pk_bf16_f32 v{A0+r}, v{A0+2*r}, v{A0+2*r+1}" for r in range(4*hh, 4*hh + 4)]
                q += [f"s_add_u32 s59, s58, {t*32*64*KB + hh*64*KB}", f"buffer_store_dwordx4 {vr(A0+4*hh,4)}, v{V_LANE16}, s[8:11], s59 offen sc1"]
        def kvflag():
            a("s_lshl_b32 s40, s16, 11"); a("s_lshl_b32 s41, s17, 7"); a("s_add_u32 s40, s40, s41"); a("s_lshl_b32 s41, s6, 2"); a("s_add_u32 s40, s40, s41"); a(f"s_add_u32 s40, s40, {KVFL}")
            a("s_add_u32 s41, s22, 1"); a(f"v_mov_b32 v{V_TMP}, s41")
            vm.drain()
            a("s_mov_b64 exec, 1"); a(f"buffer_store_dword v{V_TMP}, off, s[8:11], s40 sc1"); a("s_mov_b64 exec, -1")
            self.pub("kvf")
        for x in q: a(x)
        q = []
        def kvf_if(it):
            l = self.lab()
            a(f"s_cmp_lg_u32 s22, {it}"); a(f"s_cbranch_scc1 {l}"); kvflag(); a(f"{l}:")
        kvf_if(0)
        def fill(i):
            out = []
            if i == OPT["kvflag"]: out.append(lambda: kvf_if(1))
            return out
        self.stream(steps[:-1], look=10, fill=fill)
        assert not q
        for hh in range(2):
            a(f"ds_write_b128 v{V_OUT}, {vr(ACC[0]+4*hh,4)} offset:{hh*HS}")
            a(f"ds_write_b128 v{V_OUT}, {vr(ACC[1]+4*hh,4)} offset:{12*KB + hh*HS}")
        self.pub("q")
        a(f"v_mul_f32 v{V_C1}, {f32(0.25*LOG2E)}, v{V_RSTD}")
        r = self.attention()
        a(f"v_mov_b32 v{V_TMP}, {L_MODE}"); a(f"ds_read_b32 v{V_TMP}, v{V_TMP}"); a("s_waitcnt lgkmcnt(0)")
        a(f"v_readfirstlane_b32 s21, v{V_TMP}")
        a("s_lshl_b32 s37, s27, 15"); a("s_lshl_b32 s40, s17, 11"); a("s_add_u32 s37, s37, s40"); a(f"s_add_u32 s37, s37, {OF}"); a("s_add_u32 s37, s37, s35")
        a("s_lshl_b32 s60, s48, 15"); a("s_lshl_b32 s40, s51, 14"); a("s_add_u32 s60, s60, s40"); a(f"s_add_u32 s60, s60, {OF}"); a("s_add_u32 s60, s60, s35")
        self.stamp(2)
        self.wc = 0
        self.stream([self.aug_step(ACC[2], 0, "augq")], look=0)
        for r_ in range(16): a(f"v_mul_f32 v{ACC[2]+r_}, v{V_C1}, v{ACC[2]+r_}")
        for r_ in range(8): a(f"v_cvt_pk_bf16_f32 v{XR+r_}, v{ACC[2]+2*r_}, v{ACC[2]+2*r_+1}")
        def halo_k():
            self.gate("q", "C"); self.gate("hk")
            self.stamp(3)
        def after_k():
            self.gate("hv")
            l = self.lab()
            a("s_cmp_lg_u32 s22, 0"); a(f"s_cbranch_scc1 {l}")
            a("s_lshl_b32 s40, s48, 15"); a("s_lshl_b32 s41, s49, 6"); a("s_add_u32 s40, s40, s41")
            a(f"buffer_load_dwordx4 {vr(V_RES,4)}, v{V_XOFF}, s[44:47], s40 offen")
            a(f"buffer_load_dwordx4 {vr(V_RES+4,4)}, v{V_XOFF}, s[44:47], s40 offen offset:32")
            a(f"{l}:")
        oreg = lambda s: XR + 8 + 4 * s
        def al_o(s):
            a = self.a
            g = 2 * (s % 8) + (s >> 3)
            if s % 2 == 0: a(f"s_add_u32 s43, s60, {(g & ~3)*KB}")
            a(f"buffer_load_dwordx4 {vr(oreg(s),4)}, v{V_LANE16}, s[8:11], s43 offen offset:{(g & 3)*KB} sc1"); vm.issue(f"a{s}")
        def early_a():
            for s_ in range(8): al_o(s_)
        def redo_a(a2):
            a2(f"s_add_u32 s61, s23, {F_O1}"); self.poll(V_PH, "s26", "s61")
            for s_ in range(8): al_o(s_)
        self.attention_run(r, halo_k, after_k, early_a, redo_a)
        self.stamp(4)
        a(f"s_add_u32 s58, s53, {XA}"); a("s_add_u32 s58, s58, s35"); a(f"s_add_u32 s59, s54, {STA}"); a("s_add_u32 s59, s59, s35")
        def h_o(upto):
            self.check(V_PH, F_O2); self.stamp(5); upto(16)
        self.res_gemm(16, lambda s: RK + s*4*KB, oreg, al_o, 8, 0, {0: "wo"}, {7: "wo1"}, XCH_WO, "wo", (10, "att"),
                      hooks={OPT.get("opeek", 2): lambda u: self.peek(V_PH), 8: h_o})
        self.pub("xr")
        self.x_store("s58", "s59", F_X1)
        self.stamp(6)
        a(f"s_mul_i32 s60, s27, {112*KB}"); a(f"s_mul_i32 s40, s17, {7*KB}"); a("s_add_u32 s60, s60, s40"); a(f"s_add_u32 s60, s60, {HF}"); a("s_add_u32 s60, s60, s35")
        a("s_lshl_b32 s58, s27, 15"); a(f"s_add_u32 s58, s58, {XA}"); a("s_add_u32 s58, s58, s35")
        a("s_lshl_b32 s59, s27, 12"); a(f"s_add_u32 s59, s59, {STA}"); a("s_add_u32 s59, s59, s35")
        a(f"s_mul_i32 s29, s48, {112*KB}"); a(f"s_mul_i32 s40, s51, {56*KB}"); a("s_add_u32 s29, s29, s40"); a(f"s_add_u32 s29, s29, {HF}"); a("s_add_u32 s29, s29, s35")
        a(f"s_add_u32 s61, s23, {F_X1}")
        self.poll(V_PX, "s26", "s61"); vm.q = []
        self.stamp(7)
        def xl2(kc):
            if kc % 4 == 0: a(f"s_add_u32 s43, s58, {kc*KB}")
            a(f"buffer_load_dwordx4 {vr(XR+4*kc,4)}, v{V_LANE16}, s[8:11], s43 offen offset:{(kc%4)*KB} sc1")
        self.wc = 0; self.wr = 104; self.nw = 6
        steps = self.x_pass1(xl2, "s59", False, lambda w, t, kc: self.rd128(w, GU_REG[t] + kc*KB, f"t2_{kc//8}" if (t == 0 and kc % 8 == 0 and (kc == 0 or not OPT.get("t2e", 1))) else None, f"g{kc+1}" if (t == 2 and kc % 8 == 7) else None), [3, 4, 5], None, NT=3)
        self.pub("xch")
        done = {t: len(steps) - 3 + t for t in range(3)}; start = {}
        accof = {t: ACC[t % 4] for t in range(7)}
        for t in range(3, 7):
            start[t] = len(steps)
            for kc in range(32):
                w = self.wreg()
                steps.append(dict(reads=self.rd128(w, GU_REG[t] + kc*KB, f"t{t}" if kc == 0 else None, f"t{t}" if kc == 31 else None),
                                  mf=f"{MF} {vr(accof[t],16)}, {vr(w,4)}, {vr(XR+4*kc,4)}, {'0' if kc == 0 else vr(accof[t],16)}", pair=(kc % 2 == 0 and OPT.get("pair", 1))))
            steps.append(self.aug_step(accof[t], 3 + t))
            done[t] = len(steps) - 1
        def epi(t):
            A0 = accof[t]; L = []
            if OPT.get("x_nofill"): return [lambda: (a(f"s_add_u32 s43, s60, {t*KB}"), self.store(f"buffer_store_dwordx4 {vr(V_EP,4)}, v{V_LANE16}, s[8:11], s43 offen", f"h{t}"))]
            L += [f"v_mul_f32 v{A0+r}, v{V_C1}, v{A0+r}" for r in range(8)]
            L += [f"v_exp_f32 v{A0+r}, v{A0+r}" for r in range(8)]
            L += [f"v_fma_f32 v{A0+r}, v{A0+r}, v{V_STD}, v{V_STD}" for r in range(8)]
            L += [f"v_rcp_f32 v{A0+r}, v{A0+r}" for r in range(8)]
            L += [f"v_mul_f32 v{A0+r}, v{A0+r}, v{A0+8+r}" for r in range(8)]
            L += [f"v_cvt_pk_bf16_f32 v{V_EP+r}, v{A0+2*r}, v{A0+2*r+1}" for r in range(4)]
            L += [lambda: (a(f"s_add_u32 s43, s60, {t*KB}"), self.store(f"buffer_store_dwordx4 {vr(V_EP,4)}, v{V_LANE16}, s[8:11], s43 offen", f"h{t}"))]
            return L
        hreg = lambda s: XR + 4 * (s % 32)
        def al_h(s):
            t, i = s // 8, s % 8
            if OPT.get("x_noh") and s >= 16: return
            if OPT.get("x_sameh"): t, i = 0, s % 2
            a(f"s_add_u32 s43, s29, {(7*i + t)*KB}"); a(f"buffer_load_dwordx4 {vr(hreg(s),4)}, v{V_LANE16}, s[8:11], s43 offen sc1"); vm.issue(f"a{s}")
        NP = OPT.get("np", 16)
        queue = []; flag_at = {}
        def fill2(i):
            for t in range(7):
                if done[t] + 2 == i: queue.extend((x, t) for x in epi(t))
            out = []
            if OPT["fine"] and i == done[2]: self.pend_stamp = 12
            if OPT["fine"] and i == done[4]: self.pend_stamp = 13
            for t2, sidx in start.items():
                if sidx == i + 1 and t2 >= 4:
                    while queue and queue[0][1] <= t2 - 4: out.append(queue.pop(0)[0])
            cost = 0; lim = OPT.get("fillc", 3)
            while queue and cost < lim:
                x, t = queue.pop(0); out.append(x)
                cost += 3 if callable(x) else 2 if x.startswith(("v_exp", "v_rcp")) else 1
                if callable(x) and t == 3: flag_at[i + 10] = t
            if i in flag_at: out.append(lambda: self.flag(F_H1, "h3"))
            k6 = i - start[6]
            if k6 == 31 - NP - 14: out.append(lambda: self.peek(V_PH))
            if k6 == 31 - NP: out.append(lambda: self.check(V_PH, F_H1))
            if 31 - NP < k6 <= 31: out.append(lambda s_=k6 - (32 - NP): al_h(s_))
            return out
        self.stream(steps, look=4, fill=fill2)
        assert flag_at and max(flag_at) < start[6], (flag_at, start)
        for x, _ in queue: self.emit(x)
        for x in epi(6): self.emit(x)
        self.stamp(8)
        a(f"s_add_u32 s58, s53, {XB}"); a("s_add_u32 s58, s58, s35"); a(f"s_add_u32 s59, s54, {STB}"); a("s_add_u32 s59, s59, s35")
        PD = OPT.get("pd", 14)
        hooks = {OPT.get("hflag", 5): lambda u: self.flag(F_H2, "h6"), 32 - PD - 8: lambda u: self.peek(V_PH), 32 - PD - 1: lambda u: self.check(V_PH, F_H2)}
        self.res_gemm(56, wd_slot, hreg, al_h, NP, PD, {s: f"w{s}" for s in DG}, {s - 1: f"d{s}" for s in DP},
                      XCH_DN, "dx", (50, "d45"), hooks=hooks)
        self.stamp(10)
        a("s_cmp_lg_u32 s22, 0"); a("s_cbranch_scc1 L_c_final")
        self.x_store("s58", "s59", F_X2)
        a("s_lshl_b32 s55, s27, 15"); a(f"s_add_u32 s55, s55, {XB}"); a("s_add_u32 s55, s55, s35")
        a("s_lshl_b32 s56, s27, 12"); a(f"s_add_u32 s56, s56, {STB}"); a("s_add_u32 s56, s56, s35")
        a(f"s_mov_b32 s57, {F_X2}")
        self.next_iter()
        a.fence()
        a("s_branch L_c_loop")
        a("L_c_final:")
        a("s_lshl_b32 s40, s48, 15"); a("s_lshl_b32 s41, s49, 6"); a("s_add_u32 s40, s40, s41")
        a(f"buffer_store_dwordx4 {vr(V_RES,4)}, v{V_XOFF}, s[12:15], s40 offen")
        a(f"buffer_store_dwordx4 {vr(V_RES+4,4)}, v{V_XOFF}, s[12:15], s40 offen offset:32")
        self.finish()

    def next_iter(self):
        a = self.a
        a("s_mov_b32 s22, 1"); a("s_mov_b32 s23, 16"); a("s_mov_b32 s7, 64"); a(f"v_mov_b32 v{V_BASE}, 64")
        a(f"s_mov_b32 s36, {0 if OPT.get('kvre') else KVS}"); a(f"s_mul_i32 s35, s21, {ITS}")
    def finish(self):
        a = self.a
        if OPT["stamp"]:
            a("s_waitcnt vmcnt(0)")
            self.stamp(11)
            a("s_lshl_b32 s40, s2, 12"); a("s_lshl_b32 s41, s3, 9"); a("s_add_u32 s40, s40, s41"); a(f"s_add_u32 s40, s40, {TS}")
            if OPT.get("dbgout") and self.role == "C":
                l = self.lab()
                a("s_lshl_b32 s41, s2, 3"); a("s_add_u32 s41, s41, s3"); a(f"s_cmp_lg_u32 s41, {OPT['dbgout']*8}"); a(f"s_cbranch_scc1 {l}")
                a("s_load_dwordx2 s[44:45], s[0:1], 64"); a("s_mov_b32 s46, 256"); a("s_mov_b32 s47, 0x20000")
                a(f"v_readlane_b32 s42, v{V_TS}, 31"); a("v_mov_b32 v41, 0")
                for n, idx in enumerate([0, 14, 3, 4, 7, 8, 10, 32+1, 32+14, 32+3, 32+4, 32+7, 32+8, 32+11]):
                    a(f"v_readlane_b32 s43, v{V_TS}, {idx}"); a("s_sub_u32 s43, s43, s42"); a("s_nop 3"); a(f"v_writelane_b32 v41, s43, {n}")
                a("v_lshlrev_b32 v40, 2, v2"); a("s_waitcnt lgkmcnt(0)"); a("s_mov_b64 exec, 0x3fff")
                a("buffer_store_dword v41, v40, s[44:47], 0 offen offset:8"); a("s_mov_b64 exec, -1")
                a(f"{l}:")
            a("v_lshlrev_b32 v40, 2, v2")
            a(f"buffer_store_dword v{V_TS}, v40, s[8:11], s40 offen"); a(f"buffer_store_dword v{V_TS2}, v40, s[8:11], s40 offen offset:256")
        a("s_endpgm")

    def helper(self):
        a = self.a; self.role = "H"; vm = VM(a)
        HV_QKV = 16; HV_ROW0 = 17; HV_OOB = 18; HV_PK = 19; HV_W = 20; HV_R128 = 23; HV_TQ = 24; HT = 26
        SQ, SO, SD, SG, SX, SDBG = "s[44:47]", "s[48:51]", "s[52:55]", "s[56:59]", "s[60:63]", "s[12:15]"
        HF_ = 25
        W = OPT.get("win", 8)
        st = dict(it=0); outq = []; sigs = []
        cnt = dict(issued=0, done=0)
        def hpub_txt(name):
            self.seen.add(("H", name))
            return [f"v_mov_b32 v{V_TMP}, {64*st['it'] + HV[name]}", f"ds_max_u32 v{V_PUBA}, v{V_TMP}"]
        def hpub(name):
            for x in hpub_txt(name): a(x)
        def retire(n):
            if n > cnt["done"]:
                k = cnt["issued"] - n; assert 0 <= k <= 63
                if cnt.get("ghost") and n <= cnt["ghost"][0]:
                    l = self.lab()
                    a(f"s_waitcnt vmcnt({k + cnt['ghost'][1]})"); a("s_cmp_lg_u32 s87, 0"); a(f"s_cbranch_scc1 {l}"); a(f"s_waitcnt vmcnt({k})"); a(f"{l}:")
                else: a(f"s_waitcnt vmcnt({k})")
                cnt["done"] = n
            last = None
            while sigs and sigs[0][1] <= cnt["done"]: last = sigs.pop(0)[0]; self.seen.add(("H", last))
            if last: hpub(last)
        def op(win=None):
            cnt["issued"] += 1
            retire(max(cnt["done"], cnt["issued"] - (W if win is None else win)))
        def sig(name):
            sigs.append((name, cnt["issued"])); retire(cnt["done"])
        def flush():
            while sigs: retire(sigs[0][1])
        def drain():
            retire(cnt["issued"])
        def need(name, src="C", it=None):
            l1 = self.lab(); l2 = self.lab(); l3 = self.lab()
            val = 64 * (st["it"] if it is None else it) + (CV if src == "C" else HV)[name]
            rd = f"ds_read_b32 v{V_FLG}, v{HF_} offset:{16 if src == 'C' else 0}"
            a(rd); a("s_waitcnt lgkmcnt(0)"); a(f"s_movk_i32 s39, {val}"); a(f"v_cmp_gt_u32 vcc, s39, v{V_FLG}"); a(f"s_cbranch_vccz {l2}")
            for nm, n in sigs:
                a(f"s_waitcnt vmcnt({cnt['issued'] - n})")
                for x in hpub_txt(nm): a(x)
            a(f"{l3}:"); a("s_sleep 1"); a("s_add_u32 s38, s38, 1"); a(f"s_cmp_gt_u32 s38, {OPT['spin']*16}"); a(f"s_cbranch_scc1 {l2}")
            a(rd); a("s_waitcnt lgkmcnt(0)"); a(f"v_cmp_gt_u32 vcc, s39, v{V_FLG}"); a(f"s_cbranch_vccnz {l3}")
            a.pending.pop(l3, None)
            a(f"{l2}:")
            self.used.add((src, name))
        def tile(t, gs=range(8)):
            for g in gs: self.dma("s29", t*32*KB + g*4*KB, GU_REG[t] + g*4*KB, fl="" if OPT.get("wplain") else " sc1"); op()
        def wqkv(which, gs, win=None):
            for g in gs:
                a(f"s_add_u32 s41, s30, {4*g}"); a("s_and_b32 s41, s41, 31"); a("s_mul_i32 s41, s41, 49152"); a("s_add_u32 s41, s41, s31")
                for ci, reg in which:
                    self.dma("s41", ci*1024, reg + g*4*KB, voff=HV_QKV, srd=SQ); op(win)
                if len(which) == 2 and g % 2 == 1: sig(f"kv{g//2}")
        def wqp(which, gs):
            for g in gs:
                for ci, reg in which: self.dma("s34", ci*32*KB + g*4*KB, reg + g*4*KB, fl="" if OPT.get("wplain") else " sc1"); op()
        WK = (1, RK); WV = (2, RV); WQ = (0, RQ)
        st_next = [0]; st_idx = {}
        def stash(n):
            for _ in range(n):
                s_ = st_next[0]
                if s_ >= 56: break
                t, i = s_ // 8, s_ % 8
                a(f"s_add_u32 s40, s33, {(7*i + t)*16*KB}")
                a(f"buffer_load_dwordx4 {vr(STASH+4*s_,4)}, v{HV_R128}, {SD}, s40 offen"); op(); st_idx[s_] = cnt["issued"]
                st_next[0] += 1
        def wdw(steps):
            for s_ in steps:
                if s_ >= 56: break
                retire(max(cnt["done"], st_idx[s_]))
                if OPT.get("x_nowdw"): continue
                o = wd_slot(s_)
                a(f"ds_write_b128 v{HV_W + (o >> 16)}, {vr(STASH+4*s_,4)} offset:{o & 0xffff}")
                if OPT.get("wpace"): a("s_waitcnt lgkmcnt(0)")
        def only(cond_lines, fn):
            l = self.lab()
            for c in cond_lines: a(c)
            a(f"s_cbranch_scc0 {l}"); fn(); a(f"{l}:")
        a(f"v_lshrrev_b32 v{HT}, 2, v2"); a(f"v_mul_u32_u24 v{HV_QKV}, 3072, v{HT}"); a(f"v_and_b32 v{HT}, 3, v2"); a(f"v_lshl_add_u32 v{HV_QKV}, v{HT}, 4, v{HV_QKV}")
        a("s_add_u32 s30, s28, s6"); a("s_lshl_b32 s31, s17, 6")
        a(f"s_mov_b32 s46, {512*3072}"); a("s_mov_b32 s47, 0x20000")
        a("s_mov_b64 s[44:45], s[66:67]")
        if OPT["stamp"]: a(f"v_writelane_b32 v{V_TS}, s100, 31")
        a("s_mul_i32 s83, s2, 9363"); a("s_lshr_b32 s83, s83, 18")
        a("s_mul_i32 s40, s83, 28"); a("s_sub_u32 s84, s2, s40")
        a("s_mul_i32 s40, s84, 37"); a("s_lshr_b32 s40, s40, 8"); a("s_mul_i32 s41, s40, 7"); a("s_sub_u32 s41, s84, s41")
        a("s_lshl_b32 s41, s41, 3"); a("s_add_u32 s41, s41, s83"); a("s_lshl_b32 s40, s40, 6"); a("s_add_u32 s40, s40, s41"); a("s_lshl_b32 s40, s40, 3"); a(f"s_add_u32 s88, s40, {RF}")
        a("s_cmp_lt_u32 s2, 224"); a("s_cselect_b32 s88, s88, 0x7ff00000")
        a("s_lshl_b32 s89, s17, 8"); a("s_lshl_b32 s40, s16, 4"); a("s_add_u32 s89, s89, s40"); a(f"s_add_u32 s89, s89, {PFL}")
        def zero():
            def nonce():
                a("s_memrealtime s[42:43]"); a("s_mov_b64 s[12:13], s[70:71]"); a("s_mov_b32 s14, 256"); a("s_mov_b32 s15, 0x20000"); a("s_waitcnt lgkmcnt(0)")
                a("s_lshl_b64 s[42:43], s[42:43], 3"); a("s_or_b32 s43, s43, 0x80000000")
                a("v_mov_b32 v44, s42"); a("v_mov_b32 v45, s43")
                a("s_mov_b64 exec, 1"); a(f"buffer_store_dwordx2 v[44:45], off, {SDBG}, 0 sc1"); a("s_mov_b64 exec, -1")
            only(["s_cmp_eq_u32 s2, 0"], nonce)
            for r in range(4): a(f"v_mov_b32 v{40+r}, 0")
            a("s_sub_u32 s40, s24, 28")
            a("s_lshl_b32 s81, s16, 11"); a("s_lshl_b32 s41, s17, 7"); a("s_add_u32 s81, s81, s41"); a(f"s_add_u32 s81, s81, {KVFL}")
            a("s_mov_b64 exec, 1")
            a("buffer_store_dwordx4 v[40:43], off, s[8:11], s40 sc1"); a("buffer_store_dwordx4 v[40:43], off, s[8:11], s81 sc1")
            a("buffer_store_dwordx2 v[40:41], off, s[8:11], s88 sc1"); a("buffer_store_dwordx4 v[40:43], off, s[8:11], s89 sc1")
            a("s_mov_b64 exec, -1")
        only(["s_cmp_eq_u32 s6, 3"], zero)
        def codepf():
            a("s_getpc_b64 s[42:43]")
            a.raw("L_pc:")
            a(f"s_sub_u32 s42, s42, L_pc-{NAME}"); a("s_subb_u32 s43, s43, 0")
            a("s_lshr_b32 s40, s2, 3"); a("s_lshl_b32 s40, s40, 11")
            a("v_lshlrev_b32 v40, 7, v2"); a("v_add_u32 v40, s40, v40"); a(f"v_min_u32 v40, L_code_end-{NAME}-4, v40")
            a("v_mov_b32 v41, s43"); a("v_add_co_u32 v40, vcc, s42, v40"); a("v_addc_co_u32 v41, vcc, 0, v41, vcc")
            a("s_mov_b64 exec, 0xffff"); a("global_load_dword v162, v[40:41], off"); a("s_mov_b64 exec, -1")
        if OPT.get("codepf", 1): only(["s_cmp_eq_u32 s6, 2"], codepf)
        def qtouch():
            a(f"v_lshrrev_b32 v{HT}, 3, v2"); a(f"v_mul_u32_u24 v{HT}, 3072, v{HT}"); a(f"v_and_b32 v{HT+1}, 7, v2"); a(f"v_lshl_add_u32 v{HT}, v{HT+1}, 7, v{HT}")
            a("s_mul_i32 s41, s2, 6144"); a("s_mov_b64 exec, 0xffff"); a(f"buffer_load_dword v161, v{HT}, {SQ}, s41 offen"); a("s_mov_b64 exec, -1")
        if not OPT.get("ct0"): only(["s_cmp_eq_u32 s6, 1"], qtouch)
        def tlb():
            st_ = OPT.get("tlbs", 2) * MB // 2
            a("s_mov_b64 s[42:43], s[8:9]")
            for p in range(WS_USED // st_):
                a("s_load_dword s94, s[42:43], 0"); a(f"s_add_u32 s42, s42, {st_}"); a("s_addc_u32 s43, s43, 0")
            for r in (68, 76, 78): a(f"s_load_dword s94, s[{r}:{r+1}], 0")
            a("s_load_dword s94, s[76:77], 0xffff0"); a("s_load_dword s94, s[78:79], 0xffff0")
        wqkv([WK, WV], range(0, 2), win=63)
        if OPT.get("ct0"):
            a(f"v_lshlrev_b32 v{HT}, 7, v2")
            def tw():
                a("s_mul_i32 s41, s2, 6144"); a("s_mov_b32 exec_hi, 0xffff"); a(f"buffer_load_dword v161, v{HT}, {SQ}, s41 offen"); a("s_mov_b64 exec, -1")
            def tx():
                a("s_mov_b64 s[56:57], s[64:65]"); a(f"s_mov_b32 s58, {2048*1024}"); a("s_mov_b32 s59, 0x20000")
                a("s_lshl_b32 s41, s16, 4"); a("s_add_u32 s41, s41, s17"); a("s_lshl_b32 s41, s41, 13"); a(f"buffer_load_dword v161, v{HT}, {SG}, s41 offen")
            only(["s_cmp_eq_u32 s6, 1"], tw); only(["s_cmp_eq_u32 s6, 0"], tx)
        if OPT.get("tlb", 0): only(["s_cmp_eq_u32 s6, 0"], tlb)
        a("s_mov_b64 s[12:13], s[70:71]"); a("s_mov_b32 s14, 256"); a("s_mov_b32 s15, 0x20000")
        a("s_mov_b64 s[48:49], s[68:69]"); a(f"s_mov_b32 s50, {512*1024}"); a("s_mov_b32 s51, 0x20000")
        a("s_mov_b64 s[52:53], s[76:77]"); a(f"s_mov_b32 s54, {1792*1024}"); a("s_mov_b32 s55, 0x20000")
        a(f"v_lshrrev_b32 v{HT}, 3, v2"); a(f"v_bfe_u32 v{HT+1}, v2, 4, 1"); a(f"v_lshlrev_b32 v{HT+1}, 2, v{HT+1}")
        a(f"v_and_b32 v{HT+2}, 7, v2"); a(f"v_xor_b32 v{HT+2}, v{HT+1}, v{HT+2}"); a(f"v_lshlrev_b32 v{HT+2}, 4, v{HT+2}")
        a(f"v_lshl_add_u32 v{HV_R128}, v{HT}, 10, v{HT+2}")
        a(f"v_mul_u32_u24 v{HT+3}, 3584, v{HT}"); a(f"v_add_u32 v{HT+3}, v{HT+3}, v{HT+2}")
        a("s_and_b32 s85, s83, 1"); a("s_lshr_b32 s86, s83, 1")
        a("s_add_u32 s80, s6, 1"); a("s_cmp_eq_u32 s6, 0"); a("s_cselect_b32 s80, 0, s80"); a("s_cmp_eq_u32 s6, 3"); a("s_cselect_b32 s80, 1, s80")
        a("s_lshl_b32 s86, s86, 1"); a("s_add_u32 s86, s86, s80")
        a("s_cmp_eq_u32 s85, 0"); a("s_cselect_b64 s[56:57], s[72:73], s[74:75]"); a(f"s_mov_b32 s58, {512*3584}"); a("s_mov_b32 s59, 0x20000")
        a("s_cmp_lt_u32 s2, 224"); a("s_cselect_b32 s87, 1, 0"); a("s_cmp_lt_u32 s80, 2"); a("s_cselect_b32 s87, s87, 0")
        def rel_ld():
            a(f"s_mul_i32 s41, s86, {64*3584}"); a("s_lshl_b32 s40, s84, 7"); a("s_add_u32 s41, s41, s40")
            for o in range(8):
                a(f"buffer_load_dwordx4 {vr(128+4*o,4)}, v{HT+3}, {SG}, s41 offen")
                if o < 7: a(f"s_add_u32 s41, s41, {8*3584}")
        if OPT.get("rele"): only(["s_cmp_gt_u32 s87, 0"], rel_ld); cnt["ghost"] = (cnt["issued"], 8)
        def coop():
            a(f"v_lshlrev_b32 v{HT}, 7, v2"); a("s_lshl_b32 s41, s2, 13")
            only(["s_cmp_eq_u32 s6, 1"], lambda: a(f"buffer_load_dword v161, v{HT}, {SD}, s41 offen"))
            a("s_sub_u32 s41, 255, s2"); a("s_lshl_b32 s41, s41, 13")
            only(["s_cmp_eq_u32 s6, 2"], lambda: a(f"buffer_load_dword v161, v{HT}, {SO}, s41 offen"))
        a("s_lshl_b32 s32, s19, 7"); a("s_and_b32 s40, s6, 1"); a("s_lshl_b32 s40, s40, 13"); a("s_add_u32 s32, s32, s40")
        a("s_lshr_b32 s40, s6, 1"); a(f"s_mul_i32 s33, s40, {56*16*KB}"); a("s_add_u32 s33, s33, s32"); a("s_lshl_b32 s40, s40, 18"); a("s_add_u32 s32, s32, s40")
        a(f"s_mul_i32 s34, s17, {96*KB}"); a(f"s_add_u32 s34, s34, {WQP}"); a("s_add_u32 s34, s34, s25")
        a(f"s_mul_i32 s29, s17, {0 if OPT.get('x_samew') else 7*32*KB}"); a(f"s_add_u32 s29, s29, {WGU}"); a("s_add_u32 s29, s29, s25")
        a(f"v_lshrrev_b32 v{HT}, 5, v2"); a(f"v_lshlrev_b32 v{HV_ROW0}, 9, v{HT}")
        a(f"v_mov_b32 v{HV_OOB}, 0x7ff00000")
        a(f"v_and_b32 v{HT}, 1, v2"); a("s_sub_i32 s40, s16, 1"); a(f"v_sub_u32 v{HT}, s40, v{HT}")
        a(f"v_lshlrev_b32 v{HT+1}, 11, v{HT}"); a("s_lshl_b32 s40, s6, 2"); a(f"v_add_u32 v{HT+1}, s40, v{HT+1}")
        a(f"v_cmp_gt_i32 vcc, 0, v{HT}"); a(f"v_cndmask_b32_e64 v{HV_PK}, v{HT+1}, 0, vcc")
        a("s_lshl_b32 s82, s17, 7"); a(f"s_add_u32 s82, s82, {KVFL}")
        a(f"v_add_u32 v{HV_W}, s25, v{V_LANE16}"); a(f"v_add_u32 v{HV_W+1}, 0x10000, v{HV_W}"); a(f"v_add_u32 v{HV_W+2}, 0x20000, v{HV_W}")
        self.tr_addr16(HV_TQ, HT, HT + 1)
        a("s_lshl_b32 s40, s6, 15"); a(f"v_add_u32 v{HV_TQ}, s40, v{HV_TQ}")
        for r in range(4): a(f"v_mov_b32 v{64+r}, s20")
        a("v_mov_b32 v48, s20"); a("v_mov_b32 v49, s20"); a("v_mov_b32 v50, 0"); a("v_mov_b32 v51, 0"); a(f"v_mov_b32 v52, {L_ONES}")
        for o in (0, 64, 256, 320): a(f"ds_write_b128 v52, v[48:51] offset:{o}")
        def colsum(lo, hi, first):
            def rd(kc):
                w = 72 + 4 * (kc % 8)
                a(f"ds_read_b64_tr_b16 {vr(w,2)}, v{HV_TQ} offset:{kc*KB}"); a(f"ds_read_b64_tr_b16 {vr(w+2,2)}, v{HV_TQ} offset:{kc*KB+256}")
            for kc in range(lo, min(hi, lo + 6)): rd(kc)
            for kc in range(lo, hi):
                a(f"s_waitcnt lgkmcnt({2 * (min(hi, kc + 6) - kc - 1)})")
                a(f"{MF} v[112:127], v[64:67], {vr(72+4*(kc%8),4)}, {'0' if (first and kc == lo) else 'v[112:127]'}")
                if kc + 6 < hi: rd(kc + 6)
        def augfin():
            a("v_cvt_pk_bf16_f32 v104, v112, v112"); a("v_and_b32 v107, 0xffff, v104")
            a("v_lshlrev_b32 v105, 16, v104"); a("v_sub_f32 v105, v112, v105"); a("v_cvt_pk_bf16_f32 v106, v112, v105")
            a("s_lshl_b32 s40, s6, 8"); a(f"s_add_u32 s40, s40, {L_AUG}")
            a("v_and_b32 v108, 31, v2"); a("v_lshlrev_b32 v108, 3, v108"); a("v_add_u32 v108, s40, v108")
            a("ds_write_b64 v108, v[106:107]"); a("s_waitcnt lgkmcnt(0)")
        kvw = ["s_sub_u32 s40, s6, 1", "s_cmp_lt_u32 s40, 2"]
        qw  = ["s_cmp_eq_u32 s6, 0"]
        w3  = ["s_cmp_eq_u32 s6, 3"]
        def spin_head(loads):
            l = self.lab(); d = self.lab(); l0 = self.lab()
            a("s_mov_b32 s41, 0")
            for x in loads: a(x + ("" if OPT.get("pplain", 1) else " sc1"))
            a(f"s_branch {l0}"); a(f"{l}:"); a("s_sleep 4")
            for x in loads: a(x + " sc1")
            a(f"{l0}:")
            a("s_add_u32 s41, s41, 1"); a(f"s_cmp_gt_u32 s41, {OPT['spin']}"); a(f"s_cbranch_scc1 {d}")
            a("s_waitcnt vmcnt(0)")
            return l, d
        def get_nonce():
            l, d = spin_head([f"buffer_load_dwordx2 {vr(HT,2)}, off, {SDBG}, 0"])
            a(f"v_readfirstlane_b32 s92, v{HT}"); a(f"v_readfirstlane_b32 s93, v{HT+1}")
            a("s_cmp_eq_u32 s93, 0"); a(f"s_cbranch_scc1 {l}"); a(f"{d}:")
        def arrive():
            a("s_waitcnt lgkmcnt(0)")
            only(["s_cmp_eq_u32 s93, 0"], get_nonce)
            a("s_getreg_b32 s40, hwreg(HW_REG_XCC_ID)"); a("s_and_b32 s40, s40, 7"); a("s_or_b32 s91, s40, s92")
            a(f"v_mov_b32 v{HT}, s91"); a(f"v_mov_b32 v{HT+1}, s93")
            a("s_lshl_b32 s40, s16, 7"); a("s_lshl_b32 s41, s17, 3"); a("s_add_u32 s40, s40, s41"); a(f"s_add_u32 s40, s40, {AR}")
            a("s_mov_b64 exec, 1"); a(f"buffer_store_dwordx2 {vr(HT,2)}, off, s[8:11], s40 sc1"); a("s_mov_b64 exec, -1")
        def arrived_all():
            a("v_lshlrev_b32 v248, 5, v2"); a(f"s_mov_b32 s42, {AR}")
            l, d = spin_head(["buffer_load_dwordx4 v[240:243], v248, s[8:11], s42 offen", "buffer_load_dwordx4 v[244:247], v248, s[8:11], s42 offen offset:16"])
            for q in range(4): a(f"v_and_b32 v{240+2*q}, -8, v{240+2*q}"); a(f"v_xor_b32 v{240+2*q}, s92, v{240+2*q}"); a(f"v_xor_b32 v{241+2*q}, s93, v{241+2*q}")
            a("v_or3_b32 v240, v240, v241, v242"); a("v_or3_b32 v243, v243, v244, v245"); a("v_or3_b32 v240, v240, v246, v247"); a("v_or_b32 v240, v240, v243")
            a("v_cmp_ne_u32 vcc, 0, v240"); a(f"s_cbranch_vccnz {l}"); a(f"{d}:")
        def nbr():
            a(f"v_lshrrev_b32 v{HT+2}, 4, v2"); a(f"v_min_u32 v{HT+2}, 2, v{HT+2}"); a("s_sub_i32 s40, s16, 2"); a(f"v_add_u32 v{HT+2}, s40, v{HT+2}"); a(f"v_max_i32 v{HT+2}, 0, v{HT+2}")
            a(f"v_lshlrev_b32 v{HT+2}, 7, v{HT+2}"); a(f"v_and_b32 v{HT}, 15, v2"); a(f"v_lshl_add_u32 v{HT+2}, v{HT}, 3, v{HT+2}"); a(f"s_mov_b32 s42, {AR}")
            l, d = spin_head([f"buffer_load_dwordx2 {vr(HT,2)}, v{HT+2}, s[8:11], s42 offen"])
            a(f"v_and_b32 v{HT+4}, -8, v{HT}"); a(f"v_xor_b32 v{HT+4}, s92, v{HT+4}"); a(f"v_xor_b32 v{HT+1}, s93, v{HT+1}"); a(f"v_or_b32 v{HT+4}, v{HT+4}, v{HT+1}")
            a(f"v_cmp_ne_u32 vcc, 0, v{HT+4}"); a(f"s_cbranch_vccnz {l}"); a(f"{d}:")
            a(f"v_cmp_ne_u32 vcc, s91, v{HT}"); a("s_nop 1"); a("s_cmp_lg_u32 vcc_hi, 0"); a("s_cselect_b32 s40, 1, 0")
            if OPT["force_slow"]: a("s_mov_b32 s40, 1")
            a(f"v_mov_b32 v{HT}, s40"); a(f"v_mov_b32 v{HT+1}, {L_MODE}"); a(f"ds_write_b32 v{HT+1}, v{HT}"); a("s_waitcnt lgkmcnt(0)")
        def rel_do():
            a("s_lshl_b32 s40, s80, 12"); a(f"s_add_u32 s40, s40, {144*KB if OPT.get('rel0', 1) else P4}"); a(f"v_add_u32 v45, s40, v{V_LANE16}")
            a(f"v_bfe_u32 v40, v2, 2, 2"); a("v_lshlrev_b32 v41, 7, v40"); a("v_lshrrev_b32 v40, 1, v40"); a("v_lshrrev_b32 v42, 5, v2"); a("v_xor_b32 v40, v40, v42")
            a("v_lshl_add_u32 v41, v40, 6, v41"); a(f"v_and_b32 v40, 63, v{HV_TQ}"); a("v_add_u32 v41, v41, v40"); a("v_add_u32 v41, s40, v41")
            for hf in range(2):
                for o in range(4): a(f"ds_write_b128 v45, {vr(128+16*hf+4*o,4)} offset:{o*KB}")
                for o in range(4):
                    a(f"ds_read_b64_tr_b16 {vr(72+16*hf+4*o,2)}, v41 offset:{o*KB}"); a(f"ds_read_b64_tr_b16 {vr(74+16*hf+4*o,2)}, v41 offset:{o*KB+512}")
                a("s_waitcnt lgkmcnt(0)")
            a("v_lshrrev_b32 v40, 4, v2"); a("v_lshlrev_b32 v40, 15, v40"); a("v_and_b32 v42, 15, v2"); a("v_lshl_add_u32 v40, v42, 4, v40")
            a("s_lshl_b32 s40, s84, 17"); a("s_lshl_b32 s41, s86, 12"); a("s_add_u32 s40, s40, s41"); a("s_lshl_b32 s41, s85, 8"); a("s_add_u32 s40, s40, s41"); a(f"s_add_u32 s40, s40, {WGU}")
            a("v_mov_b32 v43, 0"); a("v_mov_b32 v44, 0")
            a("s_waitcnt lgkmcnt(0)")
            for o in range(8): a(f"buffer_store_dwordx4 {vr(72+4*o,4)}, v40, s[8:11], s40 offen offset:{o*512} sc1")
            for i in range(32): a(f"v_dot2_f32_bf16 v{43+i%2}, v{72+i}, s20, v{43+i%2}")
            a("s_nop 2"); a("v_add_f32 v43, v43, v44")
            a("s_lshl_b32 s40, s86, 1"); a("s_add_u32 s40, s40, s85"); a(f"s_mul_i32 s40, s40, {1792*4}"); a("s_lshl_b32 s41, s84, 8"); a("s_add_u32 s40, s40, s41"); a(f"s_add_u32 s40, s40, {CS}")
            a("v_lshlrev_b32 v42, 2, v2")
            a("buffer_store_dword v43, v42, s[8:11], s40 offen sc1")
        def halo():
            for kv in range(2):
                for d in (1, 2):
                    l1 = self.lab(); l2 = self.lab()
                    a(f"s_cmp_lt_u32 s16, {d}"); a(f"s_cbranch_scc1 {l1}")
                    a(f"s_sub_u32 s95, s27, {4*d}"); a("s_lshl_b32 s95, s95, 10"); a("s_add_u32 s95, s95, s94")
                    for hh in range(2): self.dma("s95", kv*32*64*KB + hh*64*KB, LK + kv*12*KB + hh*HS + (8-4*d)*KB, fl=" sc1")
                    a(f"s_branch {l2}")
                    a(f"{l1}:")
                    for hh in range(2): self.dma("s94", hh*64*KB, LK + kv*12*KB + hh*HS + (8-4*d)*KB, voff=(HV_ROW0, HV_OOB)[kv], fl=" sc1")
                    a(f"{l2}:")
                    op(63); op(63)
                sig(("hk", "hv")[kv])
        def pack():
            a("s_lshl_b32 s40, s16, 1"); a("s_sub_u32 s41, s40, s28"); a("s_and_b32 s41, s41, 31"); a("s_lshl_b32 s41, s41, 10"); a("s_lshl_b32 s42, s6, 15"); a("s_add_u32 s41, s41, s42")
            a(f"v_add_u32 v160, s41, v{V_LANE16}")
            a("ds_read_b128 v[164:167], v160"); a("ds_read_b128 v[168:171], v160 offset:1024")
            a("s_lshl_b32 s41, s6, 15"); a("s_lshl_b32 s40, s40, 10"); a("s_add_u32 s41, s41, s40")
            a("s_add_u32 s41, s41, s34"); a("s_sub_u32 s41, s41, s25")
            a("s_mov_b32 s90, s41")
            a("s_waitcnt lgkmcnt(0)")
        def pack_st():
            a(f"buffer_store_dwordx4 v[164:167], v{V_LANE16}, s[8:11], s90 offen sc1"); a(f"buffer_store_dwordx4 v[168:171], v{V_LANE16}, s[8:11], s90 offen offset:1024 sc1")
        def rel_sig():
            a("s_lshl_b32 s40, s80, 2"); a("s_add_u32 s40, s40, s88")
            a(f"v_mov_b32 v{HT}, 1"); a("s_mov_b64 exec, 1"); a(f"buffer_store_dword v{HT}, off, s[8:11], s40 sc1"); a("s_mov_b64 exec, -1")
        def gu_ready():
            a("s_lshr_b32 s40, s17, 2"); a("s_lshl_b32 s40, s40, 9"); a(f"s_add_u32 s42, s40, {RF}"); a("s_mov_b32 s43, 1")
            a(f"v_lshlrev_b32 v{HT}, 2, v2"); self.poll(HT, "s42", "s43", sleep=8)
            a(f"v_min_u32 v{HT}, 47, v2"); a(f"v_lshlrev_b32 v{HT}, 2, v{HT}"); a("s_add_u32 s42, s42, 256"); self.poll(HT, "s42", "s43", sleep=8)
            a("s_lshl_b32 s40, s6, 2"); a("s_add_u32 s40, s40, s89")
            a(f"v_mov_b32 v{HT}, 1"); a("s_mov_b64 exec, 1"); a(f"buffer_store_dword v{HT}, off, s[8:11], s40 sc1"); a("s_mov_b64 exec, -1")
        def gu_aug():
            a("v_lshrrev_b32 v240, 5, v2"); a(f"v_mul_u32_u24 v241, {1792*4}, v240"); a("v_and_b32 v242, 31, v2"); a("v_min_u32 v242, 27, v242"); a("v_lshl_add_u32 v241, v242, 4, v241")
            a(f"s_mul_i32 s40, s17, {112*4}"); a(f"s_add_u32 s40, s40, {CS}")
            for p in range(8):
                a(f"buffer_load_dwordx4 {vr(208+4*p,4)}, v241, s[8:11], s40 offen sc1")
                if p < 7: a(f"s_add_u32 s40, s40, {2*1792*4}")
            a("v_lshrrev_b32 v243, 2, v242"); a("v_lshlrev_b32 v243, 8, v243"); a("v_lshl_add_u32 v243, v240, 7, v243"); a("v_and_b32 v244, 3, v242"); a("v_lshl_add_u32 v243, v244, 5, v243")
            a(f"v_add_u32 v243, {L_AUG + 768}, v243")
            a("s_waitcnt vmcnt(0)")
            for p in range(1, 8):
                for c in range(4): a(f"v_add_f32 v{208+c}, v{208+c}, v{208+4*p+c}")
            for c in range(4):
                a(f"v_cvt_pk_bf16_f32 v245, v{208+c}, v{208+c}"); a(f"v_and_b32 v{217+2*c}, 0xffff, v245")
                a("v_lshlrev_b32 v245, 16, v245"); a(f"v_sub_f32 v245, v{208+c}, v245"); a(f"v_cvt_pk_bf16_f32 v{216+2*c}, v{208+c}, v245")
            a("ds_write_b128 v243, v[216:219]"); a("ds_write_b128 v243, v[220:223] offset:16"); a("s_waitcnt lgkmcnt(0)")
        def pack_ready():
            a("s_lshl_b32 s42, s17, 8"); a(f"s_add_u32 s42, s42, {PFL}"); a("s_mov_b32 s43, 1")
            a(f"v_lshlrev_b32 v{HT}, 2, v2"); self.poll(HT, "s42", "s43", sleep=8)
        a(f"v_and_b32 v{HF_}, 3, v2"); a(f"v_lshlrev_b32 v{HF_}, 2, v{HF_}"); a(f"v_add_u32 v{HF_}, {L_HL}, v{HF_}")
        a("s_lshr_b32 s40, s6, 1"); a("s_lshl_b32 s41, s18, 1"); a("s_add_u32 s40, s40, s41"); a("s_lshl_b32 s41, s16, 2"); a("s_add_u32 s40, s40, s41")
        a("s_and_b32 s41, s6, 1"); a("s_lshl_b32 s42, s19, 1"); a("s_add_u32 s41, s41, s42")
        a("s_lshl_b32 s60, s40, 15"); a("s_lshl_b32 s42, s41, 11"); a("s_add_u32 s60, s60, s42")
        a("s_lshl_b32 s61, s40, 12"); a("s_lshr_b32 s42, s41, 2"); a("s_lshl_b32 s42, s42, 10"); a("s_add_u32 s61, s61, s42")
        a("s_lshl_b32 s62, s27, 15"); a("s_lshl_b32 s42, s17, 11"); a("s_add_u32 s62, s62, s42")
        a(f"s_mul_i32 s63, s27, {112*KB}"); a(f"s_mul_i32 s42, s17, {7*KB}"); a("s_add_u32 s63, s63, s42")
        def touch(items):
            a(self.touch_txt([([f"s_add_u32 s43, {r}, {b}"], n) for r, b, n in items]).replace(f"v{V_OUT},", "v31,"))
        def ext():
            pass
        for it in range(2):
            st["it"] = it
            if it == 0:
                KW = OPT.get("kw", 4); RP = OPT.get("rp", 8)
                wqkv([WK, WV], range(2, 4), win=KW)
                retire(max(4, cnt["done"]))
                only(w3, lambda: a("s_load_dwordx2 s[92:93], s[70:71], 0"))
                wqkv([WK, WV], range(4, 6), win=KW)
                only(w3, arrive)
                wqkv([WK, WV], range(6, RP), win=KW)
                if not OPT.get("rele"): only(["s_cmp_gt_u32 s87, 0"], lambda: (need("x0") if OPT.get("relx", 0) else None, rel_ld())); cnt["ghost"] = (cnt["issued"], 8)
                wqkv([WK, WV], range(RP, 8), win=KW)
                only(kvw, lambda: (need("kv1", "H"), colsum(0, 16, True)))
                flush()
                self.stamp(9)
                only(kvw, lambda: (need("kv3", "H"), colsum(16, 32, False), augfin(), pack()))
                hpub("augkv")
                if OPT.get("rel0", 1): only(["s_cmp_gt_u32 s87, 0"], lambda: (a(f"s_setprio {OPT.get('rprio', 3)}"), a("s_waitcnt vmcnt(0)"), rel_do(), a("s_setprio 0")))
                self.stamp(10)
                need("x")
                wqkv([WQ], range(0, 8), win=63)
                only(w3, lambda: (nbr(), arrived_all() if OPT.get("aa", 0) else None))
                drain(); hpub("wq")
                need("wq", "H")
                if OPT.get("rel0", 1): only(["s_cmp_gt_u32 s87, 0"], rel_sig)
                QS = OPT.get("qs", 32)
                only(qw, lambda: (a("s_setprio 3"), colsum(0, QS, True), augfin() if QS == 32 else None))
                if QS == 32: hpub("augq")
                self.stamp(12)
            else:
                need("x"); hpub("augq")
            a(f"s_mov_b32 s42, {it + 1}")
            a("s_lshl_b32 s94, s17, 17"); a(f"s_add_u32 s94, s94, {KV + (0 if OPT.get('kvre') else it*KVS)}")
            self.stamp(14)
            need("kvf")
            self.stamp(15)
            a("s_mov_b64 exec, 3")
            self.poll(HV_PK, "s82", "s42")
            a("s_mov_b64 exec, -1")
            cnt["done"] = cnt["issued"]; retire(cnt["done"])
            self.stamp(2)
            halo()
            if it == 0:
                hold = list(sigs); sigs.clear()
                only(qw, lambda: ((colsum(QS, 32, False), augfin()) if QS < 32 else None, pack(), a("s_setprio 0")))
                hpub("augq"); sigs.extend(hold)
            if it == 0 and not OPT.get("rel0", 1): only(["s_cmp_gt_u32 s87, 0"], rel_ld); cnt["ghost"] = (cnt["issued"], 8)
            flush()
            if it == 0:
                a(f"v_mov_b32 v{V_TMP}, {L_MODE}"); a(f"ds_read_b32 v{V_TMP}, v{V_TMP}"); a("s_waitcnt lgkmcnt(0)"); a(f"v_readfirstlane_b32 s21, v{V_TMP}")
            if it == 0 and not OPT.get("aa", 0): only(w3, arrived_all)
            touch([("s62", OF, 16), ("s60", XA, 16), ("s61", STA, 8)])
            if it == 0: coop(); only(["s_cmp_lt_u32 s6, 3"], pack_st)
            self.stamp(3)
            for g in range(16):
                self.dma("s32", (2*(g%8) + g//8)*16*KB, RK + g*4*KB, voff=HV_R128, srd=SO); op()
                if it == 0 and not OPT.get("rel0", 1):
                    if g == 2: only(["s_cmp_gt_u32 s87, 0"], lambda: (a("s_waitcnt vmcnt(3)"), rel_do()))
                    if g == 3 + W: only(["s_cmp_gt_u32 s87, 0"], rel_sig)
            sig("wo")
            if it == 0:
                stash(OPT["st_a"]); flush()
                need("wo", "H")
                gu_ready(); cnt["done"] = cnt["issued"]
                only(w3, gu_aug)
            self.stamp(5)
            need("q"); tile(0)
            if it == 0: need("wo", "H")
            tile(1, range(0, 3))
            need("h0"); tile(1, range(3, 8))
            if it == 0: stash(OPT.get("st_b", 8)); only(w3, pack_ready)
            if OPT.get("htouch", 0) > it: touch([("s63", HF, 56)])
            if it == 0: touch([("s60", XB, 16), ("s61", STB, 8)])
            self.stamp(4)
            if OPT.get("t2e", 1):
                need("wo1"); tile(2); sig("t2_3")
                for p in range(3): self.seen.add(("H", f"t2_{p}"))
                need("xr"); flush(); wdw(range(0, 7))
                need("xch")
            else:
                need("wo"); tile(2, range(0, 2)); sig("t2_0")
                need("xch")
                for p in range(1, 4): tile(2, range(2*p, 2*p + 2)); sig(f"t2_{p}")
            if OPT.get("t3g"): need(f"g{OPT['t3g']}")
            tile(3); sig("t3")
            for p, nm in enumerate(("g8", "g16", "g24", "g32")):
                need(nm); tile(4, range(2*p, 2*p + 2))
            sig("t4")
            tile(5); sig("t5"); tile(6); sig("t6")
            if it == 0: stash(9)
            if OPT.get("wlate", 1): flush()
            need("t3"); wdw(range(7, 15))
            if it == 0: stash(8)
            need("t4"); wdw(range(15, 23))
            flush(); hpub("w0")
            if it == 0: stash(56)
            need("t5"); wdw(range(23, 31)); hpub("w23")
            need("t6"); wdw(range(31, 39)); hpub("w31")
            need("d7"); wdw(range(39, 46)); hpub("w39")
            if it == 0:
                need("d15"); wqp([WV], range(8))
                need("d23"); wqp([WK], range(4))
            need("d31"); wdw(range(46, 54)); hpub("w46")
            if it == 0:
                wqp([WK], range(4, 8))
                need("d39"); wqp([WQ], range(4))
            need("d45"); wdw(range(54, 56)); hpub("w54")
            if it == 0: wqp([WQ], range(4, 8))
            if it == 0:
                drain(); hpub("nkv")
                a("s_mov_b32 s23, 16")
        self.finish()

    def count_poll(self, soff, T):
        a = self.a; l = self.lab(); d = self.lab()
        a("s_mov_b32 s41, 0")
        l0 = self.lab(); a(f"s_branch {l0}"); a(f"{l}:"); a("s_sleep 8"); a(f"{l0}:")
        a(f"buffer_load_dwordx2 {vr(T,2)}, off, s[12:15], {soff} sc1"); a("s_waitcnt vmcnt(0)")
        a(f"v_readfirstlane_b32 s42, v{T}"); a(f"v_readfirstlane_b32 s43, v{T+1}")
        a("s_add_u32 s41, s41, 1"); a(f"s_cmp_gt_u32 s41, {OPT['spin']}"); a(f"s_cbranch_scc1 {d}")
        a("s_add_u32 s40, s42, s43"); a("s_mul_i32 s40, s40, 0x01010101"); a("s_lshr_b32 s40, s40, 24")
        a("s_cmp_lg_u32 s40, 16"); a(f"s_cbranch_scc1 {l}")
        a(f"{d}:")

    def build(self):
        a = self.a
        self.prologue()
        a("s_cmp_ge_u32 s3, 4"); a("s_cbranch_scc1 L_helper")
        self.compute()
        a("L_helper:")
        self.helper()
        assert self.used <= self.seen, self.used - self.seen
        a("L_end:"); a("s_endpgm")
        for x in self.ool: a.raw(x)
        a.raw("L_code_end:"); a.raw("    s_endpgm")
        return a.text()

def build():
    body = Main().build()
    return f"""; generated by dev/gen8.py
; @launch grid=(256,1,1) block=(512,1,1) lds={160*KB}
.amdgcn_target "amdgcn-amd-amdhsa--gfx950"
.text
{body}
.section .rodata,"a"
.p2align 6
.amdhsa_kernel {NAME}
  .amdhsa_next_free_vgpr 256
  .amdhsa_next_free_sgpr 102
  .amdhsa_accum_offset 256
  .amdhsa_group_segment_fixed_size 0
  .amdhsa_kernarg_size 80
  .amdhsa_user_sgpr_count 2
  .amdhsa_user_sgpr_kernarg_segment_ptr 1
  .amdhsa_system_sgpr_workgroup_id_x 1
.end_amdhsa_kernel
"""

if __name__ == "__main__":
    for x in sys.argv[2:]:
        if "=" in x: kk, v = x.split("="); OPT[kk] = int(v)
        else: OPT[x] = True
    open(sys.argv[1], "w").write(build())
```

```python
import sys, struct
from asmlib import *

NAME = "interleave_layers__sliding_block__glu_gated_glu__prompt_kernel"
KB = 1024
MB = 1 << 20
WQP  = 0
CS   = 0x180000
FL   = 0x1A0000
KVFL = 0x1A4000
RF   = 0x1AC000
PFL  = RF + 2048
AR   = RF + 8192
WGU  = 2*MB
STA  = WGU + 3584*KB; STB = STA
XA   = 6*MB; XB = XA
KV   = 8*MB
KVT  = 4608
KVS  = 0
HF   = 8*MB
OF   = HF
WS_USED = 16*MB
ALS  = 128*MB
ITS  = 32*MB
TS   = 0x6000000
WS_BYTES = 0x10000000
LOG2E = 1.4426950408889634
def f32(x): return "0x%08x" % struct.unpack("<I", struct.pack("<f", x))[0]
MF = "v_mfma_f32_32x32x16_bf16"
OPT = dict(stamp=False, force_slow=False, spin=400000, pre=10, cprio=2, fine=0, pf=0, st_a=14, kvflag=24, rot=1, win=6, hsc1=1)

P1, P2, P3, P4, PE, MISC = 0, 32*KB, 64*KB, 96*KB, 128*KB, 156*KB
LK = 108*KB; LV = LK + 12*KB; HS = 24*KB
L_AUG = MISC; L_ONES = MISC + 2560; L_HL = MISC + 2944; L_CP = L_HL + 16; L_MODE = L_HL + 32; L_TAG = L_HL + 40; L_DUMMY = MISC + 3072
DG = [0, 23, 31, 39, 46]
DP = [7, 15, 23, 33, 39, 43, 56]
CSEQ = ["x0", "x", "kv", "q", "hl", "h0", "att", "wo1", "wo", "xr", "xch", "g8", "g16", "g24", "g32", "t3", "t4", "t5", "t6"] + [f"d{s}" for s in DP] + ["dx"]
HSEQ = ["kv0", "kv1", "kv2", "kv3", "augkv", "wq", "augq", "wo", "t2_0", "t2_1", "t2_2", "t2_3", "t3", "t4", "t5", "t6"] + [f"w{s}" for s in DG] + ["nkv"]
CV = {n: i + 1 for i, n in enumerate(CSEQ)}; HV = {n: i + 1 for i, n in enumerate(HSEQ)}
assert max(len(CSEQ), len(HSEQ)) < 64
XCH_WO = PE; XCH_DN = PE
L_X0 = P4
L_REL_ = 0
def wd_slot(s):
    for lo, hi, reg in ((0, 7, PE), (7, 15, P3), (15, 23, P2), (23, 31, P4), (31, 39, P1), (39, 46, PE), (46, 54, P4), (54, 56, P1)):
        if lo <= s < hi: return reg + (s - lo)*4*KB
GU_REG = [P1, P4, P2, P3, P2, P4, P1]
RQ, RK, RV = P1, P2, P3
F_O1, F_O2, F_X1, F_H1, F_H2, F_X2 = 1, 2, 3, 7, 9, 10
STASH = 32

V_LANE16 = 3; V_F0 = 4
V_TQ = 6
V_XOFF = 8
V_RSTD = 10; V_STD = 11; V_C1 = 12; V_TMP = 13; V_TS = 14; V_TS2 = 15
V_XAUG = 16
V_PX = 20; V_PH = 21; V_AUGA = 22; V_OUT = 23
V_RES = 24
V_PUBA = 0; V_FA = 35; V_FLG = 1; V_BASE = 9
V_FW = 32
V_EP = 36
ACC = [40, 56, 72, 88]
WR = 96; NW = 8
XR = 128
T0 = 104

class VM:
    def __init__(self, a): self.a = a; self.q = []
    def issue(self, tag): self.q.append(tag)
    def wait(self, tag):
        idx = max((i for i, t in enumerate(self.q) if t == tag), default=-1)
        if idx < 0: return
        n = len(self.q) - 1 - idx; assert n <= 63
        self.a(f"s_waitcnt vmcnt({n})"); del self.q[:idx + 1]
    def drain(self):
        self.a("s_waitcnt vmcnt(0)"); self.q = []

def stats_calc_list(d0, tmp):
    L = [f"v_mov_b32 v{tmp}, 0", f"v_mov_b32 v{tmp+1}, 0"]
    for i in range(8):
        L.append(f"v_dot2_f32_bf16 v{tmp}, v{d0+i}, s20, v{tmp}")
        L.append(f"v_dot2_f32_bf16 v{tmp+1}, v{d0+i}, v{d0+i}, v{tmp+1}")
    L += ["s_nop 2", f"v_permlane32_swap_b32 v{tmp}, v{tmp+1}", "s_nop 1", f"v_add_f32 v{tmp}, v{tmp}, v{tmp+1}"]
    return L

class Main:
    DBARS = list(range(0, 56, 7))
    def __init__(self):
        self.a = Asm(); self.nl = 0
        self.seen = set(); self.used = set()
        self.role = None; self.pend_stamp = None; self.ool = []; self.nw = NW; self.wr = WR
    def lab(self): self.nl += 1; return f"L{self.nl}"
    def emit(self, x):
        if callable(x): x()
        else: self.a(x)
    def pub(self, name):
        self.a(f"v_add_u32 v{V_TMP}, {CV[name]}, v{V_BASE}"); self.a(f"ds_write_b32 v{V_PUBA}, v{V_TMP}")
        self.seen.add(("C", name))
    def gate_rd(self, src): self.a(f"ds_read_b32 v{V_FLG}, v{V_FA} offset:{0 if src == 'H' else 16}")
    def gate_cmp(self, name, src="H", absval=None):
        a = self.a
        n = (HV if src == "H" else CV)[name]
        if absval is not None: a(f"s_movk_i32 s39, {absval}")
        else: a(f"s_add_u32 s39, s7, {n}")
        a(f"v_cmp_gt_u32 s[30:31], s39, v{V_FLG}")
        self.used.add((src, name))
    def gate_br(self, src="H", redo=[]):
        a = self.a; l1 = self.lab(); l2 = self.lab()
        a("s_cmp_eq_u64 s[30:31], 0"); a(f"s_cbranch_scc1 {l2}")
        a(f"{l1}:"); a("s_add_u32 s38, s38, 1"); a(f"s_cmp_gt_u32 s38, {OPT['spin']*16}"); a(f"s_cbranch_scc1 {l2}")
        a(f"ds_read_b32 v{V_FLG}, v{V_FA} offset:{0 if src == 'H' else 16}")
        for x in redo: a(x)
        a("s_waitcnt lgkmcnt(0)"); a(f"v_cmp_gt_u32 vcc, s39, v{V_FLG}"); a(f"s_cbranch_vccnz {l1}")
        a.pending.pop(l1, None)
        a(f"{l2}:")
    def gate_chk(self, name, src="H", absval=None):
        self.gate_cmp(name, src, absval); self.gate_br(src)
    def gate(self, name, src="H", absval=None):
        self.gate_rd(src); self.a("s_waitcnt lgkmcnt(0)"); self.gate_chk(name, src, absval)
    def stamp(self, i):
        if not OPT["stamp"]: return
        a = self.a
        a("s_memrealtime s[96:97]"); a("s_memtime s[98:99]"); a("s_waitcnt lgkmcnt(0)")
        if OPT.get("cnt"): a("s_lshl_b32 s98, s38, 12"); a("s_add_u32 s98, s98, s5")
        a(f"s_add_u32 s97, s23, {i}"); a(f"s_add_u32 m0, s97, s23"); a("s_nop 3")
        a(f"v_writelane_b32 v{V_TS}, s96, m0"); a(f"v_writelane_b32 v{V_TS2}, s98, m0")
    def store(self, instr, tag="st"):
        l1 = self.lab(); l2 = self.lab(); a = self.a
        if tag[0] == "h" and OPT.get("hsc1"):
            a(instr + " sc1"); self.vm.issue(tag); return
        a("s_cmp_lg_u32 s21, 0"); a(f"s_cbranch_scc1 {l1}"); a(instr); a(f"{l2}:")
        a.pending.pop(l1, None)
        self.ool += [f"{l1}:", "    " + instr + " sc1", f"    s_branch {l2}"]
        self.vm.issue(tag)
    def flag(self, val, tag="st"):
        a = self.a
        a(f"s_add_u32 s40, s23, {val}"); a(f"v_mov_b32 v{V_TMP}, s40"); self.vm.wait(tag); a("s_mov_b64 exec, 1")
        self.store(f"buffer_store_dword v{V_TMP}, off, s[8:11], s24", "fl_st"); a("s_mov_b64 exec, -1")
    def peek(self, voff):
        self.a(f"buffer_load_dword v{V_OUT}, v{voff}, s[8:11], s26 offen sc1"); self.vm.issue("pk")
    def check(self, voff, val):
        a = self.a; d = self.lab()
        a(f"s_add_u32 s61, s23, {val}")
        self.vm.wait("pk")
        a(f"v_cmp_gt_u32 vcc, s61, v{V_OUT}"); a(f"s_cbranch_vccz {d}")
        self.poll(voff, "s26", "s61")
        a(f"{d}:")
    def acquire(self):
        a = self.a; l = self.lab()
        a("s_cmp_eq_u32 s21, 0"); a(f"s_cbranch_scc1 {l}"); a("buffer_inv sc1"); a("s_waitcnt vmcnt(0)"); a(f"{l}:")
    def poll(self, voff, sbase, sval, srd="s[8:11]", sleep=0):
        a = self.a; l = self.lab(); d = self.lab()
        a("s_mov_b32 s41, 0")
        if sleep and OPT.get("pplain", 1):
            l0 = self.lab(); a(f"buffer_load_dword v{V_TMP}, v{voff}, {srd}, {sbase} offen"); a(f"s_branch {l0}"); a(f"{l}:"); a(f"s_sleep {sleep}")
            a(f"buffer_load_dword v{V_TMP}, v{voff}, {srd}, {sbase} offen sc1"); a(f"{l0}:")
        else:
            if sleep:
                l0 = self.lab(); a(f"s_branch {l0}"); a(f"{l}:"); a(f"s_sleep {sleep}"); a(f"{l0}:")
            else: a(f"{l}:")
            a(f"buffer_load_dword v{V_TMP}, v{voff}, {srd}, {sbase} offen sc1")
        if OPT.get("cnt"): a("s_add_u32 s5, s5, 1")
        a("s_add_u32 s41, s41, 1"); a(f"s_cmp_gt_u32 s41, {OPT['spin']}"); a(f"s_cbranch_scc1 {d}")
        a("s_waitcnt vmcnt(0)")
        a(f"v_cmp_gt_u32 vcc, {sval}, v{V_TMP}")
        a(f"s_cbranch_vccnz {l}")
        a(f"{d}:")
    def dma(self, sbase, const, lds, voff=V_LANE16, fl="", srd="s[8:11]", sl="s25"):
        a = self.a
        a(f"s_add_u32 s40, {sbase}, {const}")
        a(f"s_add_u32 m0, {sl}, {lds}")
        a(f"buffer_load_dwordx4 v{voff}, {srd}, s40 offen{fl} lds")
    def touch_txt(self, items):
        l = self.lab()
        L = ["s_cmp_lg_u32 s21, 0", f"s_cbranch_scc1 {l}", f"v_lshlrev_b32 v{V_TMP}, 7, v2"]
        for sal, n in items:
            L += sal
            m = (1 << n) - 1
            L += [f"s_mov_b32 exec_lo, {m & 0xffffffff:#x}", f"s_mov_b32 exec_hi, {m >> 32:#x}", f"buffer_load_dword v{V_OUT}, v{V_TMP}, s[8:11], s43 offen sc1"]
        L += ["s_mov_b64 exec, -1", f"{l}:"]
        return "\n".join(L)
    def stream(self, steps, look, fill=None):
        a = self.a
        reads = []; need = []
        for s in steps:
            reads += s["reads"]; need.append(len(reads) - 1)
        per = 2 if any(r["op"].endswith("tr_b16") for r in reads) else 1
        pre_rd = {}; pre_cmp = {}
        for i, r in enumerate(reads):
            if r.get("gate"):
                pre_rd[max(0, i - look - per)] = i; pre_cmp[max(0, i - per)] = i
        ng = sum(1 for r in reads if r.get("gate"))
        assert len(pre_rd) == ng and len(pre_cmp) == ng
        gi = sorted(pre_rd.values())
        assert all(b - a_ > look + per for a_, b in zip(gi, gi[1:])), gi
        nr = 0; q = []; done = [0]; self._q = q
        def wait(tag):
            idx = q.index(tag)
            if idx < done[0]: return
            n = len(q) - 1 - idx; assert n <= 15, n
            a(f"s_waitcnt lgkmcnt({n})"); done[0] = idx + 1
        def issue():
            nonlocal nr
            r = reads[nr]
            if nr in pre_rd: self.gate_rd(reads[pre_rd[nr]].get("gsrc", "H")); q.append(("g", pre_rd[nr]))
            if nr in pre_cmp:
                g = reads[pre_cmp[nr]]
                wait(("g", pre_cmp[nr])); self.gate_cmp(g["gate"], g.get("gsrc", "H"), g.get("absval"))
            if r.get("gate"): self.gate_br(r.get("gsrc", "H"))
            if r.get("vm") is not None: self.vm.wait(r["vm"])
            n = 4 if r["op"] == "ds_read_b128" else 2
            fm = r["fam"]; off = r["off"]
            reg = fm[off >> 16] if isinstance(fm, list) else fm
            a(f"{r['op']} {vr(r['d'], n)}, v{reg} offset:{off & 0xffff}"); q.append(nr)
            if r.get("pub"): self.pub(r["pub"]); q.append(("p", nr))
            nr += 1
        for i, s in enumerate(steps):
            while nr < len(reads) and nr <= need[i] + (look if i == 0 else 0): issue()
            for x in s.get("pre", []): self.emit(x)
            wait(need[i + 1] if (s.get("pair") and i + 1 < len(steps)) else need[i])
            a(s["mf"])
            nxt = need[i + 1] if i + 1 < len(steps) else need[i]
            while nr < len(reads) and nr <= nxt + look: issue()
            for x in s.get("post", []): self.emit(x)
            if fill:
                for f in fill(i): self.emit(f)
            if self.pend_stamp: self.stamp(self.pend_stamp); self.pend_stamp = None
    def rd128(self, w, off, gate=None, pub=None): return [dict(op="ds_read_b128", d=w, fam=[V_F0, V_F0 + 1], off=off, gate=gate, pub=pub)]
    def rdtr(self, w, fam, off, d2, gate=None, pub=None, absval=None):
        return [dict(op="ds_read_b64_tr_b16", d=w, fam=fam, off=off, gate=gate, absval=absval), dict(op="ds_read_b64_tr_b16", d=w + 2, fam=fam, off=off + d2, pub=pub)]
    def tr_addr16(self, dst, t0, t1):
        a = self.a
        a(f"v_lshrrev_b32 v{t0}, 5, v2"); a(f"v_lshlrev_b32 v{dst}, 9, v{t0}")
        a(f"v_bfe_u32 v{t0}, v2, 2, 2"); a(f"v_lshl_add_u32 v{dst}, v{t0}, 6, v{dst}")
        a(f"v_bfe_u32 v{t0}, v2, 4, 1"); a(f"v_lshl_add_u32 v{dst}, v{t0}, 5, v{dst}")
        a(f"v_and_b32 v{t0}, 1, v2"); a(f"v_lshl_add_u32 v{dst}, v{t0}, 4, v{dst}")
        a(f"v_bfe_u32 v{t0}, v2, 1, 1"); a(f"v_lshl_add_u32 v{dst}, v{t0}, 3, v{dst}")

    def prologue(self):
        a = self.a
        a.raw(f".globl {NAME}"); a.raw(".p2align 8"); a.raw(f".type {NAME},@function"); a.raw(f"{NAME}:")
        a(f"s_cmp_ge_u32 s2, {0 if OPT.get('empty') else 256}"); a("s_cbranch_scc1 L_end")
        if OPT["stamp"]: a("s_memrealtime s[100:101]")
        a("s_load_dwordx4 s[64:67], s[0:1], 0")
        a("s_load_dwordx2 s[8:9], s[0:1], 72")
        a("s_load_dwordx2 s[68:69], s[0:1], 16")
        a("s_load_dwordx8 s[72:79], s[0:1], 32")
        a("s_load_dwordx2 s[70:71], s[0:1], 64")
        a(f"s_mov_b32 s10, {WS_BYTES}"); a("s_mov_b32 s11, 0x20000")
        a("v_lshrrev_b32 v1, 6, v0"); a("v_and_b32 v2, 63, v0")
        a("v_readfirstlane_b32 s3, v1")
        a(f"v_lshlrev_b32 v{V_LANE16}, 4, v2")
        a("s_and_b32 s4, s2, 7"); a("s_lshr_b32 s5, s2, 3"); a("s_and_b32 s6, s3, 3")
        a("s_lshl_b32 s16, s4, 1"); a("s_lshr_b32 s40, s5, 4"); a("s_add_u32 s16, s16, s40")
        a("s_and_b32 s17, s5, 15")
        a("s_lshr_b32 s18, s17, 3"); a("s_and_b32 s19, s17, 7")
        a("s_mov_b32 s20, 0x3f803f80"); a("s_mov_b32 s21, 0"); a("s_mov_b32 s22, 0"); a("s_mov_b32 s23, 0")
        a("s_lshl_b32 s26, s16, 9"); a(f"s_add_u32 s26, s26, {FL}")
        a("s_lshl_b32 s24, s17, 5"); a("s_lshl_b32 s40, s3, 2"); a("s_add_u32 s24, s24, s40"); a("s_add_u32 s24, s24, s26")
        a("s_lshl_b32 s25, s6, 10")
        a("s_lshl_b32 s27, s16, 2"); a("s_add_u32 s27, s27, s6")
        if OPT["rot"]: a("s_add_u32 s28, s16, s17"); a("s_lshl_b32 s28, s28, 2"); a("s_and_b32 s28, s28, 31")
        else: a("s_mov_b32 s28, 0")
        a("s_mov_b32 s35, 0"); a("s_mov_b32 s36, 0")
        a(f"v_mov_b32 v{V_TS}, 0"); a(f"v_mov_b32 v{V_TS2}, 0")
        a("s_xor_b32 s40, s3, 4"); a("s_lshl_b32 s40, s40, 2"); a(f"s_add_u32 s40, s40, {L_HL}")
        a(f"v_lshlrev_b32 v{V_PUBA}, 2, v2"); a(f"v_add_u32 v{V_PUBA}, {L_DUMMY}, v{V_PUBA}"); a(f"v_writelane_b32 v{V_PUBA}, s40, 0")
        a(f"v_mov_b32 v{V_BASE}, 0"); a("s_mov_b32 s7, 0"); a("s_mov_b32 s38, 0")
        a(f"ds_write_b32 v{V_PUBA}, v{V_BASE}")
        a("s_waitcnt lgkmcnt(0)"); a("s_barrier")
        if OPT.get("wsoff"):
            a(f"s_add_u32 s8, s8, {OPT['wsoff']*MB}"); a("s_addc_u32 s9, s9, 0"); a(f"s_mov_b32 s10, {WS_BYTES - OPT['wsoff']*MB}")

    def attention(self):
        KF = XR + 8; S = [XR + 44, XR + 60, XR + 76]; NM = [XR + 92, XR + 108]; MX = [XR + 124, XR + 125]; T = XR + 126
        O = [ACC[2], ACC[3]]; VA = ACC[1]; KA = VA + 9
        VF = [104, 112]; P = [120, ACC[0] + 8]; BM = ACC[0]; NEG = KA + 2
        t0, t1, t2, t3, t4 = (ACC[0] + 8 + i for i in range(5))
        L = [f"v_and_b32 v{t0}, 31, v2", f"v_lshrrev_b32 v{t1}, 5, v2",
             f"v_and_b32 v{KA}, 0x13, v{t0}", f"v_bfe_u32 v{t2}, v{t0}, 2, 1", f"v_lshl_add_u32 v{KA}, v{t2}, 3, v{KA}",
             f"v_bfe_u32 v{t2}, v{t0}, 3, 1", f"v_lshl_add_u32 v{KA}, v{t2}, 2, v{KA}",
             f"v_lshlrev_b32 v{KA}, 4, v{KA}", f"v_lshl_add_u32 v{KA}, v{t1}, 9, v{KA}",
             f"s_add_u32 s41, s25, {LK}\nv_add_u32 v{KA}, s41, v{KA}",
             f"v_bfe_u32 v{t2}, v2, 2, 2", f"v_lshl_add_u32 v{t2}, v{t1}, 3, v{t2}", f"v_lshlrev_b32 v{t2}, 4, v{t2}",
             f"v_and_b32 v{t3}, 1, v2", f"v_lshl_add_u32 v{t2}, v{t3}, 9, v{t2}",
             f"v_bfe_u32 v{t3}, v2, 1, 1", f"v_lshl_add_u32 v{t2}, v{t3}, 3, v{t2}",
             f"s_add_u32 s41, s25, {LV}\nv_add_u32 v{t2}, s41, v{t2}",
             f"v_bfe_u32 v{t3}, v2, 4, 1", f"v_xor_b32 v{t4}, 1, v{t3}",
             f"v_mul_u32_u24 v{KA+1}, {HS}, v{t4}", f"v_mul_u32_u24 v{VA}, v{t2}, v{t4}", f"v_mul_u32_u24 v{t2}, {L_ONES}, v{t3}", f"v_add_u32 v{VA}, v{VA}, v{t2}",
             f"v_lshlrev_b32 v{t4}, 10, v{t4}"]
        L += [f"v_add_u32 v{VA+i}, v{t4}, v{VA+i-1}" for i in range(1, 9)]
        l = self.lab()
        fx = ["s_cmp_ge_u32 s27, 8", f"s_cbranch_scc1 {l}", "s_sub_i32 s42, 8, s27", f"v_lshlrev_b32 v{t3}, 3, v{t3}"]
        for i in range(8): fx += [f"s_cmp_gt_i32 s42, {i}", "s_cselect_b32 s41, -1, 0", f"v_and_b32 v{t2}, s41, v{t3}", f"v_add_u32 v{VA+i}, v{t2}, v{VA+i}"]
        L.append("\n".join(fx + [f"{l}:"]))
        L += [f"v_mov_b32 v{t0}, 0xffff", f"v_mov_b32 v{t1}, 0xffff0000"]
        for p in range(8):
            L += [f"v_cndmask_b32_e64 v{t2}, v{t0}, 0, s[{64+4*p}:{65+4*p}]", f"v_cndmask_b32_e64 v{t3}, v{t1}, 0, s[{66+4*p}:{67+4*p}]", f"v_or_b32 v{BM+p}, v{t2}, v{t3}"]
        L += [f"v_mov_b32 v{NEG}, {f32(-1e30)}", f"v_mov_b32 v{NEG+1}, {f32(2.0**OPT.get('thr', 40))}", f"v_mov_b32 v{NEG+2}, {f32(2.0**-OPT.get('thr', 40))}"]
        return dict(KF=KF, S=S, NM=NM, O=O, VA=VA, VF=VF, P=P, BM=BM, MX=MX, T=T, KA=KA, NEG=NEG), L

    def attention_run(self, r, halo_k, halo_v, early_a, redo_a):
        a = self.a
        KF, S, NM, O, VA, VF, P, BM, MX, T, KA, NEG = (r[x] for x in "KF S NM O VA VF P BM MX T KA NEG".split())
        def kread(hh, i, d=None): a(f"ds_read_b128 {vr(KF+4*(i if d is None else d),4)}, v{KA} offset:{hh*HS + i*KB}")
        def vrd(reg, vf):
            for t in range(2):
                for u in range(2): a(f"ds_read_b64_tr_b16 {vr(vf+4*t+2*u,2)}, v{reg} offset:{t*256 + u*64}")
        def vread(hh, i, vf):
            vrd(VA + i, vf)
            if hh == 0: a(f"v_add_u32 v{VA+i}, v{KA+1}, v{VA+i}")
        def qk(hh, dst, i, c): a(f"{MF} {vr(dst,16)}, {vr(KF+4*i,4)}, {vr(XR+4*hh,4)}, {c}")
        def pv(hh, vf, p, t, first=False): a(f"{MF} {vr(O[hh],16)}, {vr(vf+4*t,4)}, {vr(p+4*t,4)}, {'0' if first else vr(O[hh],16)}")
        def mx(b, first=False):
            lo = 0
            if first:
                a(f"v_max3_f32 v{MX[0]}, v{b}, v{b+1}, v{b+2}"); a(f"v_max3_f32 v{MX[1]}, v{b+3}, v{b+4}, v{b+5}"); lo = 6
            for n, q in enumerate(range(lo, 16, 2)): a(f"v_max3_f32 v{MX[n%2]}, v{MX[n%2]}, v{b+q}, v{b+q+1}")
        def mxfin(hh):
            a(f"v_max_f32 v{MX[0]}, v{MX[0]}, v{MX[1]}"); a(f"v_mov_b32 v{MX[1]}, v{MX[0]}")
            a(f"v_permlane32_swap_b32 v{MX[0]}, v{MX[1]}"); a("s_nop 1"); a(f"v_max_f32 v{MX[0]}, v{MX[0]}, v{MX[1]}")
            for q in range(16): a(f"v_sub_f32 v{NM[hh]+q}, 0, v{MX[0]}")
        def mask(b, diag):
            for q in range(16):
                a(f"v_cndmask_b32_e64 v{b+q}, v{NEG}, v{b+q}, s[{64+2*q}:{65+2*q}]" if diag else f"v_cndmask_b32_e64 v{b+q}, v{b+q}, v{NEG}, s[{64+2*q}:{65+2*q}]")
        def ex(b, lo, hi):
            for q in range(lo, hi): a(f"v_exp_f32 v{b+q}, v{b+q}")
        def cv(p, b, lo, hi):
            for q in range(lo, hi): a(f"v_cvt_pk_bf16_f32 v{p+q}, v{b+2*q}, v{b+2*q+1}")
        def fin(hh, bad=None):
            a(f"v_rcp_f32 v{T}, v{O[hh]+8}")
            if bad:
                a(f"v_med3_f32 v{MX[0]}, v{O[hh]+8}, v{NEG+2}, v{NEG+1}"); a(f"v_cmp_neq_f32 vcc, v{O[hh]+8}, v{MX[0]}")
            for q in range(8): a(f"v_mul_f32 v{O[hh]+q}, v{T}, v{O[hh]+q}")
            if bad: a(f"s_cbranch_vccnz {bad}"); a.pending.pop(bad, None)
            for q in range(4): a(f"v_cvt_pk_bf16_f32 v{V_EP+q}, v{O[hh]+2*q}, v{O[hh]+2*q+1}")
            self.store(f"buffer_store_dwordx4 {vr(V_EP,4)}, v{V_LANE16}, s[8:11], s37 offen offset:{hh*KB}")
        vread(0, 8, VF[0]); vread(1, 8, VF[1])
        qk(0, S[0], 8, "0"); qk(1, S[1], 7, "0")
        halo_v()
        mx(S[0], True); mxfin(0); qk(0, S[0], 8, vr(NM[0], 16))
        mx(S[1], True); mxfin(1); qk(1, S[1], 7, vr(NM[1], 16))
        def diag(hh):
            ex(S[hh], 0, 16); cv(P[hh], S[hh], 0, 8)
            for q in range(8): a(f"v_bfi_b32 v{P[hh]+q}, v{BM+q}, 0, v{P[hh]+q}")
        diag(0)
        a("s_waitcnt lgkmcnt(0)")
        pv(0, VF[0], P[0], 0, True)
        if OPT["fine"] > 2: self.stamp(15)
        halo_k(lambda: pv(0, VF[0], P[0], 1))
        diag(1)
        order = [7, 6, 5, 4, 3, 2, 1, 0]
        blocks = [(hh, i) for hh in range(2) for i in order]
        krs = [f"ds_read_b128 {vr(KF+4*i,4)}, v{KA} offset:{i*KB}" for i in order[:3]]
        self.gate_rd("C")
        for x in krs: a(x)
        pv(1, VF[1], P[1], 0, True)
        a("s_waitcnt lgkmcnt(3)"); self.gate_cmp("hl", "C")
        pv(1, VF[1], P[1], 1)
        self.gate_br("C", redo=krs)
        for i in order[3:]: kread(0, i)
        a("s_waitcnt lgkmcnt(7)"); qk(0, S[0], 7, vr(NM[0], 16))
        a("s_waitcnt lgkmcnt(6)"); qk(0, S[1], 6, vr(NM[0], 16))
        F3 = (lambda i: self.stamp(i)) if OPT["fine"] > 2 else (lambda i: None)
        F3(16)
        kread(1, 7); kread(1, 6)
        pend = None
        for n, (hh, i) in enumerate(blocks):
            b = S[n % 3]; vf = VF[n % 2]; p = P[n % 2]
            ex(b, 0, 4)
            vread(hh, i, vf)
            if pend: pv(*pend)
            ex(b, 4, 10)
            kr = False
            if n + 2 < 16:
                h2, i2 = blocks[n + 2]
                if n == 0: a("s_waitcnt lgkmcnt(6)")
                qk(h2, S[(n + 2) % 3], i2, vr(NM[h2], 16))
                if h2 == 0: kread(1, i2); kr = True
            if n == OPT.get("pk", 15): self.peek(V_PH)
            ex(b, 10, 16)
            if n == 8: F3(17); fin(0, "L_redo0"); self.pub("h0"); F3(18)
            if n == OPT.get("fo1", 11): F3(19); self.flag(F_O1); F3(20)
            cv(p, b, 0, 8)
            if i == 0:
                for q in range(8): a(f"v_and_b32 v{p+q}, v{BM+q}, v{p+q}")
            a("s_waitcnt lgkmcnt(1)" if (kr or n == 8) else "s_waitcnt lgkmcnt(0)")
            pv(hh, vf, p, 0)
            pend = (hh, vf, p, 1)
        pv(*pend)
        fin(1, "L_redo1")
        self.pub("att")
        lb = self.lab(); lj = self.lab()
        a(f"s_add_u32 s61, s23, {F_O1}"); self.vm.wait("pk")
        a(f"v_cmp_gt_u32 vcc, s61, v{V_OUT}"); a(f"s_cbranch_vccz {lb}")
        qs = list(self.vm.q)
        a("L_att_late:")
        self.flag(F_O2); redo_a(a); a("s_waitcnt vmcnt(0)"); a(f"s_branch {lj}")
        a(f"{lb}:")
        self.vm.q = qs
        early_a()
        self.flag(F_O2)
        a(f"{lj}:")
        main = self.a; saved_q = list(self.vm.q)
        self.a = a = Asm(); self.vm.a = a
        def redo(hh):
            a("s_nop 15"); a("s_waitcnt vmcnt(0) lgkmcnt(0)")
            for i in range(9): kread(hh, i)
            a("s_waitcnt lgkmcnt(0)")
            a("s_sub_i32 s42, 8, s27")
            for i in (8, 0, 1, 2, 3, 4, 5, 6, 7):
                sk = self.lab()
                a(f"s_cmp_gt_i32 s42, {i}"); a(f"s_cbranch_scc1 {sk}")
                qk(hh, S[0], i, "0")
                if i in (0, 8): mask(S[0], i == 8)
                mx(S[0], i == 8)
                a(f"{sk}:")
            mxfin(hh)
            for i in (8, 0, 1, 2, 3, 4, 5, 6, 7):
                sk = self.lab()
                a(f"s_cmp_gt_i32 s42, {i}"); a(f"s_cbranch_scc1 {sk}")
                if hh == 0: a(f"v_sub_u32 v{T}, v{VA+i}, v{KA+1}")
                vrd(T if hh == 0 else VA + i, VF[0])
                qk(hh, S[0], i, vr(NM[hh], 16))
                if i in (0, 8): mask(S[0], i == 8)
                ex(S[0], 0, 16); cv(P[0], S[0], 0, 8)
                a("s_waitcnt lgkmcnt(0)")
                pv(hh, VF[0], P[0], 0, i == 8); pv(hh, VF[0], P[0], 1)
                a(f"{sk}:")
            fin(hh)
        a("L_redo0:")
        redo(0); self.pub("h0"); self.vm.q = ["st"]; self.flag(F_O1)
        a("L_redo1:")
        redo(1); self.pub("att")
        a("s_waitcnt vmcnt(0)"); a("s_branch L_att_late")
        self.ool += a.out
        self.a = main; self.vm.a = main; self.vm.q = saved_q

    def ln_stats(self, d):
        L = []
        for n in (8, 4, 2, 1):
            for i in range(n): L.append(f"v_add_f32 v{d+i}, v{d+i}, v{d+i+n}")
        L += [f"v_mov_b32 v{d+1}, v{d}", f"v_permlane32_swap_b32 v{d}, v{d+1}", "s_nop 1",
              f"v_mul_f32 v{d}, {f32(-1.0/512)}, v{d}", f"v_mul_f32 v{d+1}, {f32(1.0/512)}, v{d+1}",
              f"v_fma_f32 v{d+1}, -v{d}, v{d}, v{d+1}", f"v_max_f32 v{d+1}, 0, v{d+1}", f"v_add_f32 v{d+1}, {f32(1e-5)}, v{d+1}",
              f"v_rsq_f32 v{V_RSTD}, v{d+1}", f"v_sqrt_f32 v{V_STD}, v{d+1}",
              f"v_cvt_pk_bf16_f32 v{V_XAUG}, v{d}, v{d}",
              f"v_and_b32 v{d+2}, 0xffff0000, v{V_XAUG}", f"v_sub_f32 v{d+2}, v{d}, v{d+2}", f"v_mov_b32 v{d+3}, 0",
              f"v_cvt_pk_bf16_f32 v{V_XAUG+1}, v{d+2}, v{d+3}",
              f"v_cndmask_b32_e64 v{V_XAUG}, 0, v{V_XAUG}, s[62:63]", f"v_cndmask_b32_e64 v{V_XAUG+1}, 0, v{V_XAUG+1}, s[62:63]",
              f"v_mul_f32 v{V_C1}, {f32(-LOG2E)}, v{V_RSTD}"]
        return L
    def wreg(self):
        w = self.wr + 4 * (self.wc % self.nw); self.wc += 1; return w
    def aug_step(self, acc, augidx, bn=None, look=None):
        w = self.wreg()
        s = dict(reads=[dict(op="ds_read_b64", d=w, fam=V_AUGA, off=augidx * 256, gate=bn)], mf=f"{MF} {vr(acc,16)}, {vr(w,4)}, {vr(V_XAUG,4)}, {vr(acc,16)}")
        return s
    def x_pass1(self, xl, sst, local, wread, augs, augbar, NT=2):
        a = self.a; vm = self.vm
        PRE = OPT["pre"] if NT == 2 else OPT.get("pre3", OPT["pre"]); STD = ACC[NT]
        def X(kc):
            def f(): xl(kc); vm.issue(f"x{kc}")
            return f
        XS = STD + 4
        xslot = lambda p: [L_X0, L_X0 + 16*KB, L_X0 + 32*KB, RQ, RQ + 16*KB][p if p < 5 else p - 5]
        def piece(p):
            a(f"s_add_u32 s41, s28, {4*p}"); a("s_and_b32 s41, s41, 31"); a("s_lshl_b32 s41, s41, 5"); a("s_add_u32 s41, s41, s55")
            for i in range(4): self.dma("s41", i*8*KB, xslot(p) + i*KB, voff=XS + i%2, srd="s[44:47]", sl="s42"); vm.issue(f"pc{p}")
        def dots(lo, hi):
            for kc in range(lo, hi):
                for i in range(4):
                    r = XR + 4 * kc + i
                    a(f"v_dot2c_f32_bf16 v{STD + 2*(i%2)}, s20, v{r}"); a(f"v_dot2c_f32_bf16 v{STD + 1 + 2*(i%2)}, v{r}, v{r}")
        def xrd(p): return [dict(op="ds_read_b128", d=XR+16*p+4*q, fam=(XS+2+q if xslot(p) >= L_X0 else XS+6+q), off=(xslot(p) - L_X0 if xslot(p) >= L_X0 else xslot(p) - RQ), vm=(f"pc{p}" if q == 0 else None)) for q in range(4)]
        def piece_part(p, i):
            if i == 0: a(f"s_add_u32 s33, s28, {4*p}"); a("s_and_b32 s33, s33, 31"); a("s_lshl_b32 s33, s33, 5"); a("s_add_u32 s33, s33, s55")
            self.dma("s33", i*8*KB, xslot(p) + i*KB, voff=XS + i%2, srd="s[44:47]", sl="s42"); vm.issue(f"pc{p}")
        def fin0():
            dots(28, 32)
            a(f"v_add_f32 v{STD}, v{STD}, v{STD+2}"); a(f"v_add_f32 v{STD+1}, v{STD+1}, v{STD+3}")
            a(f"v_permlane32_swap_b32 v{STD}, v{STD+1}"); a("s_nop 1"); a(f"v_add_f32 v{STD}, v{STD}, v{STD+1}")
            for x in self.ln_stats(STD)[15:]: a(x)
        if local == "start":
            a(f"v_lshrrev_b32 v{XS+3}, 4, v2"); a(f"v_and_b32 v{XS}, 7, v2"); a(f"v_xor_b32 v{XS}, v{XS+3}, v{XS}"); a(f"v_lshlrev_b32 v{XS}, 4, v{XS}")
            a(f"v_lshrrev_b32 v{XS+3}, 3, v2"); a(f"v_lshl_add_u32 v{XS}, v{XS+3}, 10, v{XS}"); a(f"v_xor_b32 v{XS+1}, 64, v{XS}")
            a("s_lshl_b32 s42, s6, 12")
            a("s_waitcnt lgkmcnt(0)"); a("s_mov_b64 s[44:45], s[64:65]")
            piece(0)
            return
        if local:
            piece(1)
            if not OPT.get("p2l"): piece(2)
            for i in range(4): a(f"v_mov_b32 v{STD+i}, 0")
            a(f"v_bfe_u32 v{XS+2}, v2, 1, 3"); a(f"v_lshrrev_b32 v{XS+3}, 5, v2"); a(f"v_xor_b32 v{XS+2}, v{XS+3}, v{XS+2}"); a(f"v_lshlrev_b32 v{XS+2}, 4, v{XS+2}")
            a(f"v_and_b32 v{XS+3}, 31, v2"); a(f"v_lshl_add_u32 v{XS+2}, v{XS+3}, 7, v{XS+2}")
            a(f"s_add_u32 s41, s42, {L_X0}"); a(f"v_add_u32 v{XS+2}, s41, v{XS+2}")
            for q in range(1, 4): a(f"v_xor_b32 v{XS+2+q}, {32*q}, v{XS+2}")
            for q in range(4): a(f"v_subrev_u32 v{XS+6+q}, {L_X0 - RQ}, v{XS+2+q}")
        else:
            SP = OPT.get("sp", 6)
            for kc in range(SP): X(kc)()
            for i in range(4): a(f"buffer_load_dwordx4 {vr(STD+4*i,4)}, v{V_LANE16}, s[8:11], {sst} offen offset:{1024*i} sc1"); vm.issue("stt")
            for kc in range(SP, PRE): X(kc)()
        steps = []
        st = self.ln_stats(STD)
        for kc in range(32):
            for t in range(NT):
                w = self.wreg()
                s = dict(reads=wread(w, t, kc), mf=f"{MF} {vr(ACC[t],16)}, {vr(w,4)}, {vr(XR+4*kc,4)}, {'0' if kc == 0 else vr(ACC[t],16)}", post=[])
                if local:
                    p = kc // 4
                    if t == 0 and kc % 4 == 0:
                        s["reads"] = xrd(p) + s["reads"]
                        if p: s["pre"] = [lambda p=p: dots(4*p - 4, 4*p)]
                        if OPT["fine"] == 2: s["post"].append(lambda p=p: self.stamp(16 + p))
                    n8 = 2 * (kc % 4) + t
                    sched = ({0: (2, 3), 1: (4, 5), 2: (6, 7)} if OPT.get("p2l") else {0: (3, 4), 1: (5, 6), 2: (7, None)}).get(p, (None, None))[n8 // 4]
                    if sched is not None: s["post"].append(lambda sched=sched, n8=n8: piece_part(sched, n8 % 4))
                    if n8 == 7 and p == 2: s["post"].append(lambda: self.pub("x0"))
                    if n8 == 0 and p == 4: s["post"].append(lambda: self.pub("x"))
                    if t == 1 and kc == 31: s["post"].append(fin0)
                elif t == 0:
                    s["pre"] = [lambda kc=kc: vm.wait(f"x{kc}")]
                    if kc + PRE < 32: s["post"].append(X(kc + PRE))
                elif kc >= OPT.get("sp", 6) + 1:
                    s["post"] += st[:3]; st = st[3:]
                steps.append(s)
        for t in range(NT): steps.append(self.aug_step(ACC[t], augs[t], augbar if t == 0 else None))
        return steps

    def res_gemm(self, nsteps, slot, areg, aload, pre_issued, PRE, gates, pubs, xch, xpub, pre_x, hooks={}):
        a = self.a; vm = self.vm
        for i in range(8):
            a(f"v_lshlrev_b32 v{ACC[0]+2*i}, 16, v{V_RES+i}"); a(f"v_and_b32 v{ACC[0]+2*i+1}, 0xffff0000, v{V_RES+i}")
        a(f"v_xor_b32 v{V_EP}, 64, v{V_FW}"); a(f"v_add_u32 v{V_EP+1}, 0x10000, v{V_EP}"); a(f"v_add_u32 v{V_EP+2}, 0x20000, v{V_EP}")
        nxt = [pre_issued]
        def upto(n):
            while nxt[0] < min(n, nsteps): aload(nxt[0]); nxt[0] += 1
        steps = []; self.wc = 0; self.wr = WR; self.nw = NW
        fo = [V_FW, V_FW + 1, V_FW + 2]; ft = [V_EP, V_EP + 1, V_EP + 2]
        T = OPT.get("xt", 8)
        order = [(s, t) for s in range(nsteps - T) for t in range(2)] + [(s, 1) for s in range(nsteps - T, nsteps)] + [(s, 0) for s in range(nsteps - T, nsteps)]
        first = {}; last = {}
        for n, (s, t) in enumerate(order): first.setdefault(s, n); last[s] = n
        for n, (s, t) in enumerate(order):
            w = self.wreg()
            c = vr(ACC[t], 16) if (t == 0 or s > 0) else "0"
            st = dict(reads=self.rdtr(w, fo if t == 0 else ft, slot(s), 512, gates.get(s) if first[s] == n else None, pubs.get(s) if last[s] == n else None),
                      mf=f"{MF} {vr(ACC[t],16)}, {vr(w,4)}, {vr(areg(s),4)}, {c}")
            if first[s] == n and s == pre_x[0]: st["reads"][0].update(gate=pre_x[1], gsrc="C")
            if first[s] == n: st["pre"] = ([lambda s=s: hooks[s](upto)] if s in hooks else []) + [lambda s=s: vm.wait(f"a{s}")]
            elif PRE: st["post"] = [lambda s=s: upto(s + 1 + PRE)]
            steps.append(st)
        a(f"s_xor_b32 s40, s6, 1"); a("s_lshl_b32 s40, s40, 12"); a(f"s_add_u32 s40, s40, {xch}"); a(f"v_add_u32 v{V_EP+3}, s40, v{V_LANE16}")
        rds = [f"ds_read_b128 {vr(ACC[2]+4*i,4)}, v{V_EP+3} offset:{i*KB}" for i in range(4)]
        def wr(i):
            a(f"ds_write_b128 v{V_EP+3}, {vr(ACC[1]+4*i,4)} offset:{i*KB}"); self._q.append(("x", i))
            if i == 3: self.pub(xpub); self._q.append(("x", 4)); a(f"v_xor_b32 v{V_EP+3}, 4096, v{V_EP+3}")
        o0 = len(steps) - T
        for i in range(4): steps[o0 + min(T - 1, 2 + i)].setdefault("post", []).append(lambda i=i: wr(i))
        self.stream(steps, look=10)
        if OPT["fine"] and nsteps == 56: self.stamp(9)
        self.gate_rd("C")
        for x in rds: a(x)
        a("s_waitcnt lgkmcnt(4)")
        self.gate_cmp(xpub, "C"); self.gate_br("C", redo=rds)
        for i in range(4):
            a(f"s_waitcnt lgkmcnt({3-i})")
            for q in range(4): a(f"v_add_f32 v{ACC[0]+4*i+q}, v{ACC[0]+4*i+q}, v{ACC[2]+4*i+q}")
            for q in range(2): a(f"v_cvt_pk_bf16_f32 v{V_RES+2*i+q}, v{ACC[0]+4*i+2*q}, v{ACC[0]+4*i+2*q+1}")

    def x_store(self, sx, sst, flagval):
        a = self.a; t = ACC[1]
        self.store(f"buffer_store_dwordx4 {vr(V_RES,4)}, v{V_LANE16}, s[8:11], {sx} offen")
        self.store(f"buffer_store_dwordx4 {vr(V_RES+4,4)}, v{V_LANE16}, s[8:11], {sx} offen offset:1024")
        for i in range(2): a(f"v_dot2_f32_bf16 v{t+2*i}, v{V_RES+i}, s20, 0"); a(f"v_dot2_f32_bf16 v{t+2*i+1}, v{V_RES+i}, v{V_RES+i}, 0")
        for i in range(2, 8): a(f"v_dot2_f32_bf16 v{t+2*(i%2)}, v{V_RES+i}, s20, v{t+2*(i%2)}"); a(f"v_dot2_f32_bf16 v{t+2*(i%2)+1}, v{V_RES+i}, v{V_RES+i}, v{t+2*(i%2)+1}")
        a(f"v_add_f32 v{t}, v{t}, v{t+2}"); a(f"v_add_f32 v{t+1}, v{t+1}, v{t+3}")
        a(f"v_permlane32_swap_b32 v{t}, v{t+1}"); a("s_nop 0"); a(f"v_add_f32 v{t}, v{t}, v{t+1}")
        self.store(f"buffer_store_dword v{t}, v{V_LANE16}, s[8:11], {sst} offen")
        self.flag(flagval)

    def compute(self):
        a = self.a; self.role = "C"; self.vm = vm = VM(a)
        a(f"s_setprio {OPT['cprio']}")
        a("v_and_b32 v104, 31, v2"); a("v_lshrrev_b32 v105, 5, v2")
        a(f"v_lshlrev_b32 v{V_XOFF}, 10, v104"); a(f"v_lshl_add_u32 v{V_XOFF}, v105, 4, v{V_XOFF}")
        a("s_lshl_b32 s55, s27, 15")
        a(f"s_mov_b32 s46, {2048*1024}"); a("s_mov_b32 s47, 0x20000")
        self.x_pass1(None, None, "start", None, None, None)
        a(f"s_mov_b32 s14, {2048*1024}"); a("s_mov_b32 s15, 0x20000")
        a("s_lshr_b32 s50, s6, 1"); a("s_and_b32 s51, s6, 1")
        a("s_lshl_b32 s48, s18, 1"); a("s_add_u32 s48, s48, s50"); a("s_mov_b32 s52, s48")
        a("s_lshl_b32 s40, s16, 2"); a("s_add_u32 s48, s48, s40")
        a("s_lshl_b32 s49, s19, 1"); a("s_add_u32 s49, s49, s51")
        a("s_lshl_b32 s53, s48, 15"); a("s_lshl_b32 s40, s49, 11"); a("s_add_u32 s53, s53, s40")
        a("s_lshl_b32 s54, s48, 12"); a("s_lshr_b32 s40, s49, 2"); a("s_lshl_b32 s40, s40, 10"); a("s_add_u32 s54, s54, s40")
        a("s_and_b32 s40, s49, 3"); a("s_lshl_b32 s40, s40, 2"); a("s_add_u32 s54, s54, s40")
        a(f"v_mov_b32 v{V_F0}, v{V_LANE16}"); a(f"v_add_u32 v{V_F0+1}, 0x10000, v{V_LANE16}")
        self.tr_addr16(V_TQ, 106, 107); a(f"v_add_u32 v{V_TQ+1}, 0x10000, v{V_TQ}")
        a(f"v_lshlrev_b32 v{V_FW}, 10, v105"); a("v_bfe_u32 v106, v2, 2, 2"); a(f"v_lshl_add_u32 v{V_FW}, v106, 7, v{V_FW}")
        a("v_bfe_u32 v106, v2, 3, 1"); a("v_xor_b32 v106, s51, v106"); a(f"v_lshl_add_u32 v{V_FW}, v106, 6, v{V_FW}")
        a(f"v_and_b32 v106, 63, v{V_TQ}"); a(f"v_add_u32 v{V_FW}, v106, v{V_FW}")
        a("s_lshl_b32 s40, s51, 11"); a(f"v_add_u32 v{V_FW}, s40, v{V_FW}")
        a(f"v_add_u32 v{V_FW+1}, 0x10000, v{V_FW}"); a(f"v_add_u32 v{V_FW+2}, 0x20000, v{V_FW}")
        a("v_bfe_u32 v106, v2, 1, 3"); a("v_and_b32 v107, 1, v2"); a("v_and_b32 v108, 7, v2")
        a("s_lshl_b32 s40, s50, 8"); a("s_lshl_b32 s41, s51, 3"); a("s_add_u32 s40, s40, s41")
        a(f"v_lshlrev_b32 v{V_PX}, 5, v106"); a(f"v_lshl_add_u32 v{V_PX}, v107, 2, v{V_PX}"); a(f"v_add_u32 v{V_PX}, s40, v{V_PX}")
        a("s_lshl_b32 s40, s51, 8"); a("s_lshl_b32 s41, s52, 2"); a("s_add_u32 s40, s40, s41")
        a(f"v_lshlrev_b32 v{V_PH}, 5, v108"); a(f"v_add_u32 v{V_PH}, s40, v{V_PH}")
        a(f"v_lshlrev_b32 v{V_AUGA}, 3, v104"); a(f"v_add_u32 v{V_AUGA}, {L_AUG}, v{V_AUGA}")
        a(f"v_mov_b32 v{V_XAUG+2}, 0"); a(f"v_mov_b32 v{V_XAUG+3}, 0")
        for r in range(WR, WR + 32, 4): a(f"v_mov_b32 v{r+2}, 0") if False else None
        a("v_cmp_gt_u32 s[62:63], 32, v2")
        a("v_lshlrev_b32 v106, 3, v105"); a("v_sub_u32 v106, v104, v106")
        a("s_mov_b64 s[12:13], s[78:79]")
        if OPT["stamp"]: a(f"v_writelane_b32 v{V_TS}, s100, 31")
        for r in range(16): a(f"v_cmp_le_i32 s[{64+2*r}:{65+2*r}], {16*(r>>3) + (r&7)}, v106")
        a(f"v_and_b32 v{V_FA}, 3, v2"); a(f"v_lshlrev_b32 v{V_FA}, 2, v{V_FA}"); a(f"v_add_u32 v{V_FA}, {L_HL}, v{V_FA}")
        self.stamp(0)
        ftq = [V_TQ, V_TQ + 1]
        self.wc = 0
        steps = self.x_pass1(None, None, True, lambda w, t, kc: self.rdtr(w, ftq, (RK, RV)[t] + kc*KB, 256, f"kv{kc//8}" if (t == 0 and kc % 8 == 0) else None, "kv" if (t == 1 and kc == 31) else None), [1, 2], "augkv")
        self.stream(steps, look=8)
        a(f"v_mov_b32 v{V_TMP}, {L_TAG}"); a(f"ds_read_b64 {vr(V_EP,2)}, v{V_TMP}"); a("s_waitcnt lgkmcnt(0)")
        a(f"v_readfirstlane_b32 s4, v{V_EP}"); a(f"v_readfirstlane_b32 s5, v{V_EP+1}")
        a("s_branch L_c_go")
        a("L_c_loop:")
        self.stamp(0)
        self.poll(V_PX, "s26", "s57"); vm.q = []
        self.stamp(1)
        def xl(kc):
            if kc % 4 == 0: a(f"s_add_u32 s43, s55, {kc*KB}")
            a(f"buffer_load_dwordx4 {vr(XR+4*kc,4)}, v{V_LANE16}, s[8:11], s43 offen offset:{(kc%4)*KB} sc1")
        self.wc = 0
        steps = self.x_pass1(xl, "s56", False, lambda w, t, kc: self.rdtr(w, ftq, (RK, RV)[t] + kc*KB, 256, "nkv" if (t == 0 and kc == 0) else None,
                                                                          {(1, OPT.get("b1x", 22)): "x", (1, 31): "kv"}.get((t, kc)), HV["nkv"]), [1, 2], None)
        self.stream(steps, look=10)
        a("L_c_go:")
        if OPT["fine"]: self.stamp(14)
        steps = []
        korder = [19, 20, 21, 22, 2, 3, 4, 5, 6, 7, 9, 10] + [k for k in range(32) if k not in (19, 20, 21, 22, 2, 3, 4, 5, 6, 7, 9, 10)]
        for n, kc in enumerate(korder):
            w = self.wreg()
            steps.append(dict(reads=self.rdtr(w, ftq, RQ + kc*KB, 256),
                              mf=f"{MF} {vr(ACC[2],16)}, {vr(w,4)}, {vr(XR+4*kc,4)}, {'0' if n == 0 else vr(ACC[2],16)}"))
        self.gate_rd("H")
        steps.append(None)
        VC8 = ACC[3]; VCK = ACC[3] + 2
        a("s_lshl_b32 s58, s27, 4"); a("s_add_u32 s58, s58, s17"); a(f"s_mul_i32 s58, s58, {7*KB}"); a(f"s_add_u32 s58, s58, {HF + 2*KB}")
        a(f"s_add_u32 s40, s25, {LK + 8*KB}"); a(f"v_add_u32 v{V_OUT}, s40, v{V_LANE16}")
        a(f"v_lshlrev_b32 v{VC8}, 3, v2"); a(f"v_add_u32 v{VC8}, 4096, v{VC8}"); a(f"v_mov_b32 v{VCK}, s4"); a(f"v_mov_b32 v{VCK+1}, s5")
        def xor16(dst, regs):
            for n in range(0, 16, 2): self.a(f"v_bitop3_b32 v{dst}, v{dst}, v{regs[n]}, v{regs[n+1]} bitop3:0x96")
        F = []
        for t in range(2):
            A0 = ACC[t]
            for hh in range(2):
                F += [f"v_mul_f32 v{A0+r}, v{V_RSTD}, v{A0+r}" for r in range(8*hh, 8*hh + 8)]
                F += [f"v_cvt_pk_bf16_f32 v{A0+r}, v{A0+2*r}, v{A0+2*r+1}" for r in range(4*hh, 4*hh + 4)]
                F += [f"buffer_store_dwordx4 {vr(A0+4*hh,4)}, v{V_LANE16}, s[8:11], s58 offen offset:{(2*t + hh)*KB} sc1"]
                F += [f"v_bitop3_b32 v{VCK}, v{VCK}, v{A0+4*hh+n}, v{A0+4*hh+n+1} bitop3:0x96" for n in (0, 2)]
        F.append(f"buffer_store_dwordx2 {vr(VCK,2)}, v{VC8}, s[8:11], s58 offen sc1")
        NE = OPT.get("ne", 61)
        for x in F[:15]: a(x)
        a("s_waitcnt lgkmcnt(0)"); self.gate_cmp("wq")
        late = self.lab(); join = self.lab()
        a("s_cmp_eq_u64 s[30:31], 0"); a(f"s_cbranch_scc1 {join}")
        for x in F[15:]: a(x)
        self.gate_br("H")
        a("s_mov_b64 s[30:31], -1")
        a(f"{join}:")
        def rest():
            l = self.lab()
            a("s_cmp_lg_u64 s[30:31], 0"); a(f"s_cbranch_scc1 {l}")
            for x in EP2: a(x)
            a(f"{l}:")
        EP2 = F[15:]; F = []
        steps[0]["pre"] = [rest]
        if OPT["fine"] > 2: self.stamp(24)
        def lds(x):
            def f(): a(x); self._q.append(("u", id(f)))
            return f
        for hh in range(2):
            F.append(lds(f"ds_write_b128 v{V_OUT}, {vr(ACC[0]+4*hh,4)} offset:{hh*HS}"))
            F.append(lds(f"ds_write_b128 v{V_OUT}, {vr(ACC[1]+4*hh,4)} offset:{12*KB + hh*HS}"))
        r, SL = self.attention()
        F += [f"v_mov_b32 v{V_EP}, {L_MODE}", lds(f"ds_read_b32 v{V_EP}, v{V_EP}"), f"v_mul_f32 v{V_C1}, {f32(0.25*LOG2E)}, v{V_RSTD}"]
        F += SL[:10] + [lds(f"ds_read_b128 {vr(r['KF']+32,4)}, v{r['KA']} offset:{8*KB}"), lds(f"ds_read_b128 {vr(r['KF']+28,4)}, v{r['KA']} offset:{HS + 8*KB}")] + SL[10:]
        HB = [XR + 8, XR + 76]; HC = [XR + 24, XR + 26]; HO = XR + 28
        for d, sr_ in ((1, 28), (2, 29)):
            a(f"s_sub_u32 s{sr_}, s58, {4*d*112*KB}"); a(f"s_cmp_ge_u32 s16, {d}"); a(f"s_cselect_b32 s{sr_}, s{sr_}, 0x7ff00000"); a(f"s_cselect_b32 s{31+d}, -1, 0")
        HL = []
        for n in range(2):
            HL += [f"buffer_load_dwordx4 {vr(HB[n]+4*p,4)}, v{V_LANE16}, s[8:11], s{28+n} offen offset:{p*KB} sc1" for p in range(4)]
            HL.append(f"buffer_load_dwordx2 {vr(HC[n],2)}, v{HO}, s[8:11], s{28+n} offen sc1")
        def halo_ld():
            for x in HL: self.a(x)
        def fill(i):
            out = []
            h0 = OPT.get("hld", 22); k = i - h0
            for _ in range(OPT.get("f2", 4) - (2 if 0 <= k < 10 else 0)):
                if F and not (i < 12 and callable(F[0]) and len(F) <= len(SL) - 10 + 2): out.append(F.pop(0))
            if k == 0: out.append(f"v_mov_b32 v{HO}, v{VC8}")
            if 0 <= k < 10: out.append(HL[k])
            return out
        steps[31]["reads"][1]["pub"] = "q"
        steps[-1] = self.aug_step(ACC[2], 0, "augq")
        self.stream(steps, look=8, fill=fill)
        for x in F: self.emit(x)
        a("s_waitcnt lgkmcnt(0)")
        a(f"v_readfirstlane_b32 s21, v{V_EP}")
        a(f"s_mul_i32 s34, s21, {ALS}"); a("s_add_u32 s34, s34, s35")
        a(f"s_sub_u32 s37, s58, {2*KB}"); a("s_add_u32 s37, s37, s34")
        a(f"s_mul_i32 s60, s48, {112*KB}"); a(f"s_mul_i32 s40, s51, {56*KB}"); a("s_add_u32 s60, s60, s40"); a(f"s_add_u32 s60, s60, {OF}"); a("s_add_u32 s60, s60, s34")
        self.stamp(2)
        for r_ in range(16): a(f"v_mul_f32 v{ACC[2]+r_}, v{V_C1}, v{ACC[2]+r_}")
        for r_ in range(8): a(f"v_cvt_pk_bf16_f32 v{XR+r_}, v{ACC[2]+2*r_}, v{ACC[2]+2*r_+1}")
        def halo_k(mid):
            mid()
            l = self.lab(); ok = self.lab()
            a("s_mov_b32 s41, 0")
            a(f"{l}:")
            a("s_waitcnt vmcnt(0)")
            for n in range(2):
                xor16(HC[n], [HB[n] + r for r in range(16)])
                a(f"v_xor_b32 v{HC[n]}, s4, v{HC[n]}"); a(f"v_xor_b32 v{HC[n]+1}, s5, v{HC[n]+1}")
                a(f"v_or_b32 v{HC[n]}, v{HC[n]}, v{HC[n]+1}"); a(f"v_and_b32 v{HC[n]}, s{32+n}, v{HC[n]}")
            a(f"v_or_b32 v{HC[0]}, v{HC[0]}, v{HC[1]}"); a(f"v_cmp_ne_u32 vcc, 0, v{HC[0]}"); a(f"s_cbranch_vccz {ok}")
            a("s_add_u32 s41, s41, 1"); a(f"s_cmp_gt_u32 s41, {OPT['spin']}"); a(f"s_cbranch_scc1 {ok}")
            halo_ld(); a(f"s_branch {l}"); a.pending.pop(l, None)
            a(f"{ok}:"); vm.q = []
            if OPT["fine"] > 2: self.stamp(25)
            a(f"v_subrev_u32 v{V_OUT}, {8*KB}, v{V_OUT}")
            for p in (0, 2, 1, 3):
                for n in range(2): a(f"ds_write_b128 v{V_OUT}, {vr(HB[n]+4*p,4)} offset:{(p&1)*HS + (p>>1)*12*KB + (4 - 4*n)*KB}")
            self.pub("hl")
            a("s_lshl_b32 s36, s16, 11"); a("s_lshl_b32 s41, s17, 7"); a("s_add_u32 s36, s36, s41"); a("s_lshl_b32 s41, s6, 2"); a("s_add_u32 s36, s36, s41"); a(f"s_add_u32 s36, s36, {KVFL}")
            a("s_add_u32 s41, s22, 1"); a(f"v_mov_b32 v{V_TMP}, s41")
            a("s_mov_b64 exec, 1"); a(f"buffer_store_dword v{V_TMP}, off, s[8:11], s36 sc1"); a("s_mov_b64 exec, -1")
            self.stamp(3)
        def after_k():
            l = self.lab()
            a("s_cmp_lg_u32 s22, 0"); a(f"s_cbranch_scc1 {l}")
            a("s_lshl_b32 s40, s48, 15"); a("s_lshl_b32 s41, s49, 6"); a("s_add_u32 s40, s40, s41")
            a(f"buffer_load_dwordx4 {vr(V_RES,4)}, v{V_XOFF}, s[44:47], s40 offen")
            a(f"buffer_load_dwordx4 {vr(V_RES+4,4)}, v{V_XOFF}, s[44:47], s40 offen offset:32")
            a(f"{l}:")
        oreg = lambda s: XR + 8 + 4 * s
        def al_o(s):
            a = self.a
            a(f"s_add_u32 s43, s60, {(s % 8)*7*KB}")
            a(f"buffer_load_dwordx4 {vr(oreg(s),4)}, v{V_LANE16}, s[8:11], s43 offen offset:{(s >> 3)*KB} sc1"); vm.issue(f"a{s}")
        def early_a():
            for s_ in range(8): al_o(s_)
        def redo_a(a2):
            a2(f"s_add_u32 s61, s23, {F_O1}"); self.poll(V_PH, "s26", "s61")
            for s_ in range(8): al_o(s_)
        self.attention_run(r, halo_k, after_k, early_a, redo_a)
        self.stamp(4)
        a(f"s_add_u32 s58, s53, {XA}"); a("s_add_u32 s58, s58, s35"); a(f"s_add_u32 s59, s54, {STA}"); a("s_add_u32 s59, s59, s35")
        def h_o(upto):
            self.check(V_PH, F_O2); self.stamp(5); upto(16)
        self.res_gemm(16, lambda s: RK + s*4*KB, oreg, al_o, 8, 0, {0: "wo"}, {7: "wo1"}, XCH_WO, "wo", (6, "att"),
                      hooks={OPT.get("opeek", 2): lambda u: self.peek(V_PH), 8: h_o})
        self.pub("xr")
        self.x_store("s58", "s59", F_X1)
        self.stamp(6)
        a(f"s_mul_i32 s60, s27, {112*KB}"); a(f"s_mul_i32 s40, s17, {7*KB}"); a("s_add_u32 s60, s60, s40"); a(f"s_add_u32 s60, s60, {HF}"); a("s_add_u32 s60, s60, s35")
        a("s_lshl_b32 s58, s27, 15"); a(f"s_add_u32 s58, s58, {XA}"); a("s_add_u32 s58, s58, s35")
        a("s_lshl_b32 s59, s27, 12"); a(f"s_add_u32 s59, s59, {STA}"); a("s_add_u32 s59, s59, s35")
        a(f"s_mul_i32 s29, s48, {112*KB}"); a(f"s_mul_i32 s40, s51, {56*KB}"); a("s_add_u32 s29, s29, s40"); a(f"s_add_u32 s29, s29, {HF}"); a("s_add_u32 s29, s29, s35")
        a(f"s_add_u32 s61, s23, {F_X1}")
        self.poll(V_PX, "s26", "s61"); vm.q = []
        self.stamp(7)
        def xl2(kc):
            if kc % 4 == 0: a(f"s_add_u32 s43, s58, {kc*KB}")
            a(f"buffer_load_dwordx4 {vr(XR+4*kc,4)}, v{V_LANE16}, s[8:11], s43 offen offset:{(kc%4)*KB} sc1")
        self.wc = 0; self.wr = 104; self.nw = 6
        steps = self.x_pass1(xl2, "s59", False, lambda w, t, kc: self.rd128(w, GU_REG[t] + kc*KB, f"t2_{kc//8}" if (t == 0 and kc % 8 == 0 and (kc == 0 or not OPT.get("t2e", 1))) else None, f"g{kc+1}" if (t == 2 and kc % 8 == 7) else None), [3, 4, 5], None, NT=3)
        self.pub("xch")
        done = {t: len(steps) - 3 + t for t in range(3)}; start = {}
        accof = {t: ACC[t % 4] for t in range(7)}
        for t in range(3, 7):
            start[t] = len(steps)
            for kc in range(32):
                w = self.wreg()
                steps.append(dict(reads=self.rd128(w, GU_REG[t] + kc*KB, f"t{t}" if kc == 0 else None, f"t{t}" if kc == 31 else None),
                                  mf=f"{MF} {vr(accof[t],16)}, {vr(w,4)}, {vr(XR+4*kc,4)}, {'0' if kc == 0 else vr(accof[t],16)}", pair=(kc % 2 == 0 and OPT.get("pair", 1))))
            steps.append(self.aug_step(accof[t], 3 + t))
            done[t] = len(steps) - 1
        def epi(t):
            A0 = accof[t]; L = []
            if OPT.get("x_nofill"): return [lambda: (a(f"s_add_u32 s43, s60, {t*KB}"), self.store(f"buffer_store_dwordx4 {vr(V_EP,4)}, v{V_LANE16}, s[8:11], s43 offen", f"h{t}"))]
            L += [f"v_mul_f32 v{A0+r}, v{V_C1}, v{A0+r}" for r in range(8)]
            L += [f"v_exp_f32 v{A0+r}, v{A0+r}" for r in range(8)]
            L += [f"v_fma_f32 v{A0+r}, v{A0+r}, v{V_STD}, v{V_STD}" for r in range(8)]
            L += [f"v_rcp_f32 v{A0+r}, v{A0+r}" for r in range(8)]
            L += [f"v_mul_f32 v{A0+r}, v{A0+r}, v{A0+8+r}" for r in range(8)]
            L += [f"v_cvt_pk_bf16_f32 v{V_EP+r}, v{A0+2*r}, v{A0+2*r+1}" for r in range(4)]
            L += [lambda: (a(f"s_add_u32 s43, s60, {t*KB}"), self.store(f"buffer_store_dwordx4 {vr(V_EP,4)}, v{V_LANE16}, s[8:11], s43 offen", f"h{t}"))]
            return L
        hreg = lambda s: XR + 4 * (s % 32)
        def al_h(s):
            t, i = s // 8, s % 8
            if OPT.get("x_noh") and s >= 16: return
            if OPT.get("x_sameh"): t, i = 0, s % 2
            a(f"s_add_u32 s43, s29, {(7*i + t)*KB}"); a(f"buffer_load_dwordx4 {vr(hreg(s),4)}, v{V_LANE16}, s[8:11], s43 offen sc1"); vm.issue(f"a{s}")
        NP = OPT.get("np", 16)
        queue = []; flag_at = {}
        def fill2(i):
            for t in range(7):
                if done[t] + 2 == i: queue.extend((x, t) for x in epi(t))
            out = []
            if i == 70:
                def pk2():
                    a(f"v_and_b32 v{V_EP}, 1, v2"); a(f"v_add_u32 v{V_EP}, 1, v{V_EP}"); a("s_sub_u32 s40, 15, s16"); a(f"v_min_u32 v{V_EP}, s40, v{V_EP}"); a(f"v_lshlrev_b32 v{V_EP}, 11, v{V_EP}")
                    a(f"buffer_load_dword v{V_OUT}, v{V_EP}, s[8:11], s36 offen sc1"); vm.issue("pk")
                out.append(pk2)
            if i == done[2] + 4:
                def ck2():
                    d = self.lab()
                    a("s_add_u32 s61, s22, 1"); vm.wait("pk")
                    a(f"v_cmp_gt_u32 vcc, s61, v{V_OUT}"); a(f"s_cbranch_vccz {d}")
                    self.poll(V_EP, "s36", "s61"); a(f"{d}:")
                out.append(ck2)
            if OPT["fine"] and i == done[2]: self.pend_stamp = 12
            if OPT["fine"] and i == done[4]: self.pend_stamp = 13
            for t2, sidx in start.items():
                if sidx == i + 1 and t2 >= 4:
                    while queue and queue[0][1] <= t2 - 4: out.append(queue.pop(0)[0])
            cost = 0; lim = OPT.get("fillc", 3)
            while queue and cost < lim:
                x, t = queue.pop(0); out.append(x)
                cost += 3 if callable(x) else 2 if x.startswith(("v_exp", "v_rcp")) else 1
                if callable(x) and t == 3: flag_at[i + 10] = t
            if i in flag_at: out.append(lambda: self.flag(F_H1, "h3"))
            k6 = i - start[6]
            if k6 == 31 - NP - 14: out.append(lambda: self.peek(V_PH))
            if k6 == 31 - NP: out.append(lambda: self.check(V_PH, F_H1))
            if 31 - NP < k6 <= 31: out.append(lambda s_=k6 - (32 - NP): al_h(s_))
            return out
        self.stream(steps, look=4, fill=fill2)
        assert flag_at and max(flag_at) < start[6], (flag_at, start)
        for x, _ in queue: self.emit(x)
        for x in epi(6): self.emit(x)
        self.stamp(8)
        a(f"s_add_u32 s58, s53, {XB}"); a("s_add_u32 s58, s58, s34"); a(f"s_add_u32 s59, s54, {STB}"); a("s_add_u32 s59, s59, s34")
        PD = OPT.get("pd", 14)
        hooks = {OPT.get("hflag", 5): lambda u: self.flag(F_H2, "h6"), 32 - PD - 8: lambda u: self.peek(V_PH), 32 - PD - 1: lambda u: self.check(V_PH, F_H2)}
        self.res_gemm(56, wd_slot, hreg, al_h, NP, PD, {s: f"w{s}" for s in DG}, {s - 1: f"d{s}" for s in DP},
                      XCH_DN, "dx", (52, "d43"), hooks=hooks)
        self.stamp(10)
        a("s_cmp_lg_u32 s22, 0"); a("s_cbranch_scc1 L_c_final")
        self.x_store("s58", "s59", F_X2)
        a("s_lshl_b32 s55, s27, 15"); a(f"s_add_u32 s55, s55, {XB}"); a("s_add_u32 s55, s55, s34")
        a("s_lshl_b32 s56, s27, 12"); a(f"s_add_u32 s56, s56, {STB}"); a("s_add_u32 s56, s56, s34")
        a(f"s_mov_b32 s57, {F_X2}")
        self.next_iter()
        a.fence()
        a("s_branch L_c_loop")
        a("L_c_final:")
        a("s_lshl_b32 s40, s48, 15"); a("s_lshl_b32 s41, s49, 6"); a("s_add_u32 s40, s40, s41")
        a(f"buffer_store_dwordx4 {vr(V_RES,4)}, v{V_XOFF}, s[12:15], s40 offen")
        a(f"buffer_store_dwordx4 {vr(V_RES+4,4)}, v{V_XOFF}, s[12:15], s40 offen offset:32")
        self.finish()

    def next_iter(self):
        a = self.a
        a("s_mov_b32 s22, 1"); a("s_mov_b32 s23, 16"); a("s_mov_b32 s7, 64"); a("s_add_u32 s4, s4, 1"); a(f"v_mov_b32 v{V_BASE}, 64")
        a(f"s_mul_i32 s35, s21, {ITS}")
    def finish(self):
        a = self.a
        if OPT["stamp"]:
            a("s_waitcnt vmcnt(0)")
            self.stamp(11)
            a("s_lshl_b32 s40, s2, 12"); a("s_lshl_b32 s41, s3, 9"); a("s_add_u32 s40, s40, s41"); a(f"s_add_u32 s40, s40, {TS}")
            if OPT.get("dbgout") and self.role == "C":
                l = self.lab()
                a("s_lshl_b32 s41, s2, 3"); a("s_add_u32 s41, s41, s3"); a(f"s_cmp_lg_u32 s41, {OPT['dbgout']*8}"); a(f"s_cbranch_scc1 {l}")
                a("s_load_dwordx2 s[44:45], s[0:1], 64"); a("s_mov_b32 s46, 256"); a("s_mov_b32 s47, 0x20000")
                a(f"v_readlane_b32 s42, v{V_TS}, 31"); a("v_mov_b32 v41, 0")
                for n, idx in enumerate([0, 14, 3, 4, 7, 8, 10, 32+1, 32+14, 32+3, 32+4, 32+7, 32+8, 32+11]):
                    a(f"v_readlane_b32 s43, v{V_TS}, {idx}"); a("s_sub_u32 s43, s43, s42"); a("s_nop 3"); a(f"v_writelane_b32 v41, s43, {n}")
                a("v_lshlrev_b32 v40, 2, v2"); a("s_waitcnt lgkmcnt(0)"); a("s_mov_b64 exec, 0x3fff")
                a("buffer_store_dword v41, v40, s[44:47], 0 offen offset:8"); a("s_mov_b64 exec, -1")
                a(f"{l}:")
            a("v_lshlrev_b32 v40, 2, v2")
            a(f"buffer_store_dword v{V_TS}, v40, s[8:11], s40 offen"); a(f"buffer_store_dword v{V_TS2}, v40, s[8:11], s40 offen offset:256")
        a("s_endpgm")

    def helper(self):
        a = self.a; self.role = "H"; vm = VM(a)
        HV_QKV = 16; HV_ROW0 = 17; HV_OOB = 18; HV_PK = 19; HV_W = 20; HV_R128 = 23; HV_TQ = 24; HT = 26
        SQ, SO, SD, SG, SX, SDBG = "s[44:47]", "s[48:51]", "s[52:55]", "s[56:59]", "s[60:63]", "s[12:15]"
        HF_ = 25
        W = OPT.get("win", 8)
        st = dict(it=0); outq = []; sigs = []
        cnt = dict(issued=0, done=0)
        def hpub_txt(name):
            self.seen.add(("H", name))
            return [f"v_mov_b32 v{V_TMP}, {64*st['it'] + HV[name]}", f"ds_max_u32 v{V_PUBA}, v{V_TMP}"]
        def hpub(name):
            for x in hpub_txt(name): a(x)
        def retire(n):
            if n > cnt["done"]:
                k = cnt["issued"] - n; assert 0 <= k <= 63
                if cnt.get("ghost") and n <= cnt["ghost"][0]:
                    l = self.lab()
                    a(f"s_waitcnt vmcnt({k + cnt['ghost'][1]})"); a("s_cmp_lg_u32 s87, 0"); a(f"s_cbranch_scc1 {l}"); a(f"s_waitcnt vmcnt({k})"); a(f"{l}:")
                else: a(f"s_waitcnt vmcnt({k})")
                cnt["done"] = n
            last = None
            while sigs and sigs[0][1] <= cnt["done"]: last = sigs.pop(0)[0]; self.seen.add(("H", last))
            if last: hpub(last)
        def op(win=None):
            cnt["issued"] += 1
            retire(max(cnt["done"], cnt["issued"] - (W if win is None else win)))
        def sig(name):
            sigs.append((name, cnt["issued"])); retire(cnt["done"])
        def flush():
            while sigs: retire(sigs[0][1])
        def drain():
            retire(cnt["issued"])
        def need(name, src="C", it=None):
            l1 = self.lab(); l2 = self.lab(); l3 = self.lab()
            val = 64 * (st["it"] if it is None else it) + (CV if src == "C" else HV)[name]
            rd = f"ds_read_b32 v{V_FLG}, v{HF_} offset:{16 if src == 'C' else 0}"
            a(rd); a("s_waitcnt lgkmcnt(0)"); a(f"s_movk_i32 s39, {val}"); a(f"v_cmp_gt_u32 vcc, s39, v{V_FLG}"); a(f"s_cbranch_vccz {l2}")
            for nm, n in sigs:
                a(f"s_waitcnt vmcnt({cnt['issued'] - n})")
                for x in hpub_txt(nm): a(x)
            a(f"{l3}:"); a("s_sleep 1"); a("s_add_u32 s38, s38, 1"); a(f"s_cmp_gt_u32 s38, {OPT['spin']*16}"); a(f"s_cbranch_scc1 {l2}")
            a(rd); a("s_waitcnt lgkmcnt(0)"); a(f"v_cmp_gt_u32 vcc, s39, v{V_FLG}"); a(f"s_cbranch_vccnz {l3}")
            a.pending.pop(l3, None)
            a(f"{l2}:")
            self.used.add((src, name))
        def tile(t, gs=range(8)):
            for g in gs: self.dma("s29", t*32*KB + g*4*KB, GU_REG[t] + g*4*KB, fl="" if OPT.get("wplain") else " sc1"); op()
        def wqkv(which, gs, win=None):
            for g in gs:
                a(f"s_add_u32 s41, s30, {4*g}"); a("s_and_b32 s41, s41, 31"); a("s_mul_i32 s41, s41, 49152"); a("s_add_u32 s41, s41, s31")
                for ci, reg in which:
                    self.dma("s41", ci*1024, reg + g*4*KB, voff=HV_QKV, srd=SQ); op(win)
                if len(which) == 2 and g % 2 == 1: sig(f"kv{g//2}")
        def wqp(which, gs):
            for g in gs:
                for ci, reg in which: self.dma("s34", ci*32*KB + g*4*KB, reg + g*4*KB, fl="" if OPT.get("wplain") else " sc1"); op()
        WK = (1, RK); WV = (2, RV); WQ = (0, RQ)
        st_next = [0]; st_idx = {}
        def stash(n):
            for _ in range(n):
                s_ = st_next[0]
                if s_ >= 56: break
                t, i = s_ // 8, s_ % 8
                a(f"s_add_u32 s40, s33, {(7*i + t)*16*KB}")
                a(f"buffer_load_dwordx4 {vr(STASH+4*s_,4)}, v{HV_R128}, {SD}, s40 offen"); op(); st_idx[s_] = cnt["issued"]
                st_next[0] += 1
        def wdw(steps):
            for s_ in steps:
                if s_ >= 56: break
                retire(max(cnt["done"], st_idx[s_]))
                if OPT.get("x_nowdw"): continue
                o = wd_slot(s_)
                a(f"ds_write_b128 v{HV_W + (o >> 16)}, {vr(STASH+4*s_,4)} offset:{o & 0xffff}")
                if OPT.get("wpace"): a("s_waitcnt lgkmcnt(0)")
        def only(cond_lines, fn):
            l = self.lab()
            for c in cond_lines: a(c)
            a(f"s_cbranch_scc0 {l}"); fn(); a(f"{l}:")
        a(f"v_lshrrev_b32 v{HT}, 2, v2"); a(f"v_mul_u32_u24 v{HV_QKV}, 3072, v{HT}"); a(f"v_and_b32 v{HT}, 3, v2"); a(f"v_lshl_add_u32 v{HV_QKV}, v{HT}, 4, v{HV_QKV}")
        a("s_add_u32 s30, s28, s6"); a("s_lshl_b32 s31, s17, 6")
        a(f"s_mov_b32 s46, {512*3072}"); a("s_mov_b32 s47, 0x20000")
        a("s_mov_b64 s[44:45], s[66:67]")
        if OPT["stamp"]: a(f"v_writelane_b32 v{V_TS}, s100, 31")
        a("s_mul_i32 s83, s2, 9363"); a("s_lshr_b32 s83, s83, 18")
        a("s_mul_i32 s40, s83, 28"); a("s_sub_u32 s84, s2, s40")
        a("s_mul_i32 s40, s84, 37"); a("s_lshr_b32 s40, s40, 8"); a("s_mul_i32 s41, s40, 7"); a("s_sub_u32 s41, s84, s41")
        a("s_lshl_b32 s41, s41, 3"); a("s_add_u32 s41, s41, s83"); a("s_lshl_b32 s40, s40, 6"); a("s_add_u32 s40, s40, s41"); a("s_lshl_b32 s40, s40, 3"); a(f"s_add_u32 s88, s40, {RF}")
        a("s_cmp_lt_u32 s2, 224"); a("s_cselect_b32 s88, s88, 0x7ff00000")
        a("s_lshl_b32 s89, s17, 8"); a("s_lshl_b32 s40, s16, 4"); a("s_add_u32 s89, s89, s40"); a(f"s_add_u32 s89, s89, {PFL}")
        def zero():
            def nonce():
                a("s_memrealtime s[42:43]"); a("s_mov_b64 s[12:13], s[70:71]"); a("s_mov_b32 s14, 256"); a("s_mov_b32 s15, 0x20000"); a("s_waitcnt lgkmcnt(0)")
                a("s_lshl_b64 s[42:43], s[42:43], 3"); a("s_or_b32 s43, s43, 0x80000000")
                a("v_mov_b32 v44, s42"); a("v_mov_b32 v45, s43")
                a("s_mov_b64 exec, 1"); a(f"buffer_store_dwordx2 v[44:45], off, {SDBG}, 0 sc1"); a("s_mov_b64 exec, -1")
            only(["s_cmp_eq_u32 s2, 0"], nonce)
            for r in range(4): a(f"v_mov_b32 v{40+r}, 0")
            a("s_sub_u32 s40, s24, 28")
            a("s_lshl_b32 s81, s16, 11"); a("s_lshl_b32 s41, s17, 7"); a("s_add_u32 s81, s81, s41"); a(f"s_add_u32 s81, s81, {KVFL}")
            a("s_mov_b64 exec, 1")
            a("buffer_store_dwordx4 v[40:43], off, s[8:11], s40 sc1"); a("buffer_store_dwordx4 v[40:43], off, s[8:11], s81 sc1")
            a("buffer_store_dwordx2 v[40:41], off, s[8:11], s88 sc1"); a("buffer_store_dwordx4 v[40:43], off, s[8:11], s89 sc1")
            a("s_mov_b64 exec, -1")
        only(["s_cmp_eq_u32 s6, 3"], zero)
        def codepf():
            a("s_getpc_b64 s[42:43]")
            a.raw("L_pc:")
            a(f"s_sub_u32 s42, s42, L_pc-{NAME}"); a("s_subb_u32 s43, s43, 0")
            a("s_lshr_b32 s40, s2, 3"); a("s_lshl_b32 s40, s40, 11")
            a("v_lshlrev_b32 v40, 7, v2"); a("v_add_u32 v40, s40, v40"); a(f"v_min_u32 v40, L_code_end-{NAME}-4, v40")
            a("v_mov_b32 v41, s43"); a("v_add_co_u32 v40, vcc, s42, v40"); a("v_addc_co_u32 v41, vcc, 0, v41, vcc")
            a("s_mov_b64 exec, 0xffff"); a("global_load_dword v162, v[40:41], off"); a("s_mov_b64 exec, -1")
        if OPT.get("codepf", 1): only(["s_cmp_eq_u32 s6, 2"], codepf)
        def qtouch():
            a(f"v_lshrrev_b32 v{HT}, 3, v2"); a(f"v_mul_u32_u24 v{HT}, 3072, v{HT}"); a(f"v_and_b32 v{HT+1}, 7, v2"); a(f"v_lshl_add_u32 v{HT}, v{HT+1}, 7, v{HT}")
            a("s_mul_i32 s41, s2, 6144"); a("s_mov_b64 exec, 0xffff"); a(f"buffer_load_dword v161, v{HT}, {SQ}, s41 offen"); a("s_mov_b64 exec, -1")
        if not OPT.get("ct0"): only(["s_cmp_eq_u32 s6, 1"], qtouch)
        def tlb():
            st_ = OPT.get("tlbs", 2) * MB // 2
            a("s_mov_b64 s[42:43], s[8:9]")
            for p in range(WS_USED // st_):
                a("s_load_dword s94, s[42:43], 0"); a(f"s_add_u32 s42, s42, {st_}"); a("s_addc_u32 s43, s43, 0")
            for r in (68, 76, 78): a(f"s_load_dword s94, s[{r}:{r+1}], 0")
            a("s_load_dword s94, s[76:77], 0xffff0"); a("s_load_dword s94, s[78:79], 0xffff0")
        wqkv([WK, WV], range(0, 2), win=63)
        if OPT.get("ct0"):
            a(f"v_lshlrev_b32 v{HT}, 7, v2")
            def tw():
                a("s_mul_i32 s41, s2, 6144"); a("s_mov_b32 exec_hi, 0xffff"); a(f"buffer_load_dword v161, v{HT}, {SQ}, s41 offen"); a("s_mov_b64 exec, -1")
            def tx():
                a("s_mov_b64 s[56:57], s[64:65]"); a(f"s_mov_b32 s58, {2048*1024}"); a("s_mov_b32 s59, 0x20000")
                a("s_lshl_b32 s41, s16, 4"); a("s_add_u32 s41, s41, s17"); a("s_lshl_b32 s41, s41, 13"); a(f"buffer_load_dword v161, v{HT}, {SG}, s41 offen")
            only(["s_cmp_eq_u32 s6, 1"], tw); only(["s_cmp_eq_u32 s6, 0"], tx)
        if OPT.get("tlb", 0): only(["s_cmp_eq_u32 s6, 0"], tlb)
        a("s_mov_b64 s[12:13], s[70:71]"); a("s_mov_b32 s14, 256"); a("s_mov_b32 s15, 0x20000")
        a("s_mov_b64 s[48:49], s[68:69]"); a(f"s_mov_b32 s50, {512*1024}"); a("s_mov_b32 s51, 0x20000")
        a("s_mov_b64 s[52:53], s[76:77]"); a(f"s_mov_b32 s54, {1792*1024}"); a("s_mov_b32 s55, 0x20000")
        a(f"v_lshrrev_b32 v{HT}, 3, v2"); a(f"v_bfe_u32 v{HT+1}, v2, 4, 1"); a(f"v_lshlrev_b32 v{HT+1}, 2, v{HT+1}")
        a(f"v_and_b32 v{HT+2}, 7, v2"); a(f"v_xor_b32 v{HT+2}, v{HT+1}, v{HT+2}"); a(f"v_lshlrev_b32 v{HT+2}, 4, v{HT+2}")
        a(f"v_lshl_add_u32 v{HV_R128}, v{HT}, 10, v{HT+2}")
        a(f"v_mul_u32_u24 v{HT+3}, 3584, v{HT}"); a(f"v_add_u32 v{HT+3}, v{HT+3}, v{HT+2}")
        a("s_and_b32 s85, s83, 1"); a("s_lshr_b32 s86, s83, 1")
        a("s_add_u32 s80, s6, 1"); a("s_cmp_eq_u32 s6, 0"); a("s_cselect_b32 s80, 0, s80"); a("s_cmp_eq_u32 s6, 3"); a("s_cselect_b32 s80, 1, s80")
        a("s_lshl_b32 s86, s86, 1"); a("s_add_u32 s86, s86, s80")
        a("s_cmp_eq_u32 s85, 0"); a("s_cselect_b64 s[56:57], s[72:73], s[74:75]"); a(f"s_mov_b32 s58, {512*3584}"); a("s_mov_b32 s59, 0x20000")
        a("s_cmp_lt_u32 s2, 224"); a("s_cselect_b32 s87, 1, 0"); a("s_cmp_lt_u32 s80, 2"); a("s_cselect_b32 s87, s87, 0")
        def rel_ld():
            a(f"s_mul_i32 s41, s86, {64*3584}"); a("s_lshl_b32 s40, s84, 7"); a("s_add_u32 s41, s41, s40")
            for o in range(8):
                a(f"buffer_load_dwordx4 {vr(128+4*o,4)}, v{HT+3}, {SG}, s41 offen")
                if o < 7: a(f"s_add_u32 s41, s41, {8*3584}")
        if OPT.get("rele"): only(["s_cmp_gt_u32 s87, 0"], rel_ld); cnt["ghost"] = (cnt["issued"], 8)
        def coop():
            a(f"v_lshlrev_b32 v{HT}, 7, v2"); a("s_lshl_b32 s41, s2, 13")
            only(["s_cmp_eq_u32 s6, 1"], lambda: a(f"buffer_load_dword v161, v{HT}, {SD}, s41 offen"))
            a("s_sub_u32 s41, 255, s2"); a("s_lshl_b32 s41, s41, 13")
            only(["s_cmp_eq_u32 s6, 2"], lambda: a(f"buffer_load_dword v161, v{HT}, {SO}, s41 offen"))
        a("s_lshl_b32 s32, s19, 7"); a("s_and_b32 s40, s6, 1"); a("s_lshl_b32 s40, s40, 13"); a("s_add_u32 s32, s32, s40")
        a("s_lshr_b32 s40, s6, 1"); a(f"s_mul_i32 s33, s40, {56*16*KB}"); a("s_add_u32 s33, s33, s32"); a("s_lshl_b32 s40, s40, 18"); a("s_add_u32 s32, s32, s40")
        a(f"s_mul_i32 s34, s17, {96*KB}"); a(f"s_add_u32 s34, s34, {WQP}"); a("s_add_u32 s34, s34, s25")
        a(f"s_mul_i32 s29, s17, {0 if OPT.get('x_samew') else 7*32*KB}"); a(f"s_add_u32 s29, s29, {WGU}"); a("s_add_u32 s29, s29, s25")
        a(f"v_lshrrev_b32 v{HT}, 5, v2"); a(f"v_lshlrev_b32 v{HV_ROW0}, 9, v{HT}")
        a(f"v_mov_b32 v{HV_OOB}, 0x7ff00000")
        a(f"v_and_b32 v{HT}, 1, v2"); a("s_sub_i32 s40, s16, 1"); a(f"v_sub_u32 v{HT}, s40, v{HT}")
        a(f"v_lshlrev_b32 v{HT+1}, 11, v{HT}"); a("s_lshl_b32 s40, s6, 2"); a(f"v_add_u32 v{HT+1}, s40, v{HT+1}")
        a(f"v_cmp_gt_i32 vcc, 0, v{HT}"); a(f"v_cndmask_b32_e64 v{HV_PK}, v{HT+1}, 0, vcc")
        a("s_lshl_b32 s82, s17, 7"); a(f"s_add_u32 s82, s82, {KVFL}")
        a(f"v_add_u32 v{HV_W}, s25, v{V_LANE16}"); a(f"v_add_u32 v{HV_W+1}, 0x10000, v{HV_W}"); a(f"v_add_u32 v{HV_W+2}, 0x20000, v{HV_W}")
        self.tr_addr16(HV_TQ, HT, HT + 1)
        a("s_lshl_b32 s40, s6, 15"); a(f"v_add_u32 v{HV_TQ}, s40, v{HV_TQ}")
        for r in range(4): a(f"v_mov_b32 v{64+r}, s20")
        a("v_mov_b32 v48, s20"); a("v_mov_b32 v49, s20"); a("v_mov_b32 v50, 0"); a("v_mov_b32 v51, 0"); a(f"v_mov_b32 v52, {L_ONES}")
        for o in (0, 64, 256, 320): a(f"ds_write_b128 v52, v[48:51] offset:{o}")
        def colsum(lo, hi, first):
            def rd(kc):
                w = 72 + 4 * (kc % 8)
                a(f"ds_read_b64_tr_b16 {vr(w,2)}, v{HV_TQ} offset:{kc*KB}"); a(f"ds_read_b64_tr_b16 {vr(w+2,2)}, v{HV_TQ} offset:{kc*KB+256}")
            for kc in range(lo, min(hi, lo + 6)): rd(kc)
            for kc in range(lo, hi):
                a(f"s_waitcnt lgkmcnt({2 * (min(hi, kc + 6) - kc - 1)})")
                a(f"{MF} v[112:127], v[64:67], {vr(72+4*(kc%8),4)}, {'0' if (first and kc == lo) else 'v[112:127]'}")
                if kc + 6 < hi: rd(kc + 6)
        def augfin():
            a("v_cvt_pk_bf16_f32 v104, v112, v112"); a("v_and_b32 v107, 0xffff, v104")
            a("v_lshlrev_b32 v105, 16, v104"); a("v_sub_f32 v105, v112, v105"); a("v_cvt_pk_bf16_f32 v106, v112, v105")
            a("s_lshl_b32 s40, s6, 8"); a(f"s_add_u32 s40, s40, {L_AUG}")
            a("v_and_b32 v108, 31, v2"); a("v_lshlrev_b32 v108, 3, v108"); a("v_add_u32 v108, s40, v108")
            a("ds_write_b64 v108, v[106:107]"); a("s_waitcnt lgkmcnt(0)")
        kvw = ["s_sub_u32 s40, s6, 1", "s_cmp_lt_u32 s40, 2"]
        qw  = ["s_cmp_eq_u32 s6, 0"]
        w3  = ["s_cmp_eq_u32 s6, 3"]
        def spin_head(loads):
            l = self.lab(); d = self.lab(); l0 = self.lab()
            a("s_mov_b32 s41, 0")
            for x in loads: a(x + ("" if OPT.get("pplain", 1) else " sc1"))
            a(f"s_branch {l0}"); a(f"{l}:"); a("s_sleep 4")
            for x in loads: a(x + " sc1")
            a(f"{l0}:")
            a("s_add_u32 s41, s41, 1"); a(f"s_cmp_gt_u32 s41, {OPT['spin']}"); a(f"s_cbranch_scc1 {d}")
            a("s_waitcnt vmcnt(0)")
            return l, d
        def get_nonce():
            l, d = spin_head([f"buffer_load_dwordx2 {vr(HT,2)}, off, {SDBG}, 0"])
            a(f"v_readfirstlane_b32 s92, v{HT}"); a(f"v_readfirstlane_b32 s93, v{HT+1}")
            a("s_cmp_eq_u32 s93, 0"); a(f"s_cbranch_scc1 {l}"); a(f"{d}:")
        def arrive():
            a("s_waitcnt lgkmcnt(0)")
            only(["s_cmp_eq_u32 s93, 0"], get_nonce)
            a(f"v_mov_b32 v{HT}, s92"); a(f"v_mov_b32 v{HT+1}, s93"); a(f"v_mov_b32 v{HT+2}, {L_TAG}"); a(f"ds_write_b64 v{HT+2}, {vr(HT,2)}")
            a("s_getreg_b32 s40, hwreg(HW_REG_XCC_ID)"); a("s_and_b32 s40, s40, 7"); a("s_or_b32 s91, s40, s92")
            a(f"v_mov_b32 v{HT}, s91"); a(f"v_mov_b32 v{HT+1}, s93")
            a("s_lshl_b32 s40, s16, 7"); a("s_lshl_b32 s41, s17, 3"); a("s_add_u32 s40, s40, s41"); a(f"s_add_u32 s40, s40, {AR}")
            a("s_mov_b64 exec, 1"); a(f"buffer_store_dwordx2 {vr(HT,2)}, off, s[8:11], s40 sc1"); a("s_mov_b64 exec, -1")
        def arrived_all():
            a("v_lshlrev_b32 v248, 5, v2"); a(f"s_mov_b32 s42, {AR}")
            l, d = spin_head(["buffer_load_dwordx4 v[240:243], v248, s[8:11], s42 offen", "buffer_load_dwordx4 v[244:247], v248, s[8:11], s42 offen offset:16"])
            for q in range(4): a(f"v_and_b32 v{240+2*q}, -8, v{240+2*q}"); a(f"v_xor_b32 v{240+2*q}, s92, v{240+2*q}"); a(f"v_xor_b32 v{241+2*q}, s93, v{241+2*q}")
            a("v_or3_b32 v240, v240, v241, v242"); a("v_or3_b32 v243, v243, v244, v245"); a("v_or3_b32 v240, v240, v246, v247"); a("v_or_b32 v240, v240, v243")
            a("v_cmp_ne_u32 vcc, 0, v240"); a(f"s_cbranch_vccnz {l}"); a(f"{d}:")
        def nbr():
            a(f"v_lshrrev_b32 v{HT+2}, 4, v2"); a(f"v_min_u32 v{HT+2}, 2, v{HT+2}"); a("s_sub_i32 s40, s16, 2"); a(f"v_add_u32 v{HT+2}, s40, v{HT+2}"); a(f"v_max_i32 v{HT+2}, 0, v{HT+2}")
            a(f"v_lshlrev_b32 v{HT+2}, 7, v{HT+2}"); a(f"v_and_b32 v{HT}, 15, v2"); a(f"v_lshl_add_u32 v{HT+2}, v{HT}, 3, v{HT+2}"); a(f"s_mov_b32 s42, {AR}")
            l, d = spin_head([f"buffer_load_dwordx2 {vr(HT,2)}, v{HT+2}, s[8:11], s42 offen"])
            a(f"v_and_b32 v{HT+4}, -8, v{HT}"); a(f"v_xor_b32 v{HT+4}, s92, v{HT+4}"); a(f"v_xor_b32 v{HT+1}, s93, v{HT+1}"); a(f"v_or_b32 v{HT+4}, v{HT+4}, v{HT+1}")
            a(f"v_cmp_ne_u32 vcc, 0, v{HT+4}"); a(f"s_cbranch_vccnz {l}"); a(f"{d}:")
            a(f"v_cmp_ne_u32 vcc, s91, v{HT}"); a("s_nop 1"); a("s_cmp_lg_u32 vcc_hi, 0"); a("s_cselect_b32 s40, 1, 0")
            if OPT["force_slow"]: a("s_mov_b32 s40, 1")
            a(f"v_mov_b32 v{HT}, s40"); a(f"v_mov_b32 v{HT+1}, {L_MODE}"); a(f"ds_write_b32 v{HT+1}, v{HT}"); a("s_waitcnt lgkmcnt(0)")
        def rel_do():
            a("s_lshl_b32 s40, s80, 12"); a(f"s_add_u32 s40, s40, {144*KB if OPT.get('rel0', 1) else P4}"); a(f"v_add_u32 v45, s40, v{V_LANE16}")
            a(f"v_bfe_u32 v40, v2, 2, 2"); a("v_lshlrev_b32 v41, 7, v40"); a("v_lshrrev_b32 v40, 1, v40"); a("v_lshrrev_b32 v42, 5, v2"); a("v_xor_b32 v40, v40, v42")
            a("v_lshl_add_u32 v41, v40, 6, v41"); a(f"v_and_b32 v40, 63, v{HV_TQ}"); a("v_add_u32 v41, v41, v40"); a("v_add_u32 v41, s40, v41")
            for hf in range(2):
                for o in range(4): a(f"ds_write_b128 v45, {vr(128+16*hf+4*o,4)} offset:{o*KB}")
                for o in range(4):
                    a(f"ds_read_b64_tr_b16 {vr(72+16*hf+4*o,2)}, v41 offset:{o*KB}"); a(f"ds_read_b64_tr_b16 {vr(74+16*hf+4*o,2)}, v41 offset:{o*KB+512}")
                a("s_waitcnt lgkmcnt(0)")
            a("v_lshrrev_b32 v40, 4, v2"); a("v_lshlrev_b32 v40, 15, v40"); a("v_and_b32 v42, 15, v2"); a("v_lshl_add_u32 v40, v42, 4, v40")
            a("s_lshl_b32 s40, s84, 17"); a("s_lshl_b32 s41, s86, 12"); a("s_add_u32 s40, s40, s41"); a("s_lshl_b32 s41, s85, 8"); a("s_add_u32 s40, s40, s41"); a(f"s_add_u32 s40, s40, {WGU}")
            a("v_mov_b32 v43, 0"); a("v_mov_b32 v44, 0")
            a("s_waitcnt lgkmcnt(0)")
            for o in range(8): a(f"buffer_store_dwordx4 {vr(72+4*o,4)}, v40, s[8:11], s40 offen offset:{o*512} sc1")
            for i in range(32): a(f"v_dot2_f32_bf16 v{43+i%2}, v{72+i}, s20, v{43+i%2}")
            a("s_nop 2"); a("v_add_f32 v43, v43, v44")
            a("s_lshl_b32 s40, s86, 1"); a("s_add_u32 s40, s40, s85"); a(f"s_mul_i32 s40, s40, {1792*4}"); a("s_lshl_b32 s41, s84, 8"); a("s_add_u32 s40, s40, s41"); a(f"s_add_u32 s40, s40, {CS}")
            a("v_lshlrev_b32 v42, 2, v2")
            a("buffer_store_dword v43, v42, s[8:11], s40 offen sc1")
        def halo():
            for kv in range(2):
                for d in (1, 2):
                    l1 = self.lab(); l2 = self.lab()
                    a(f"s_cmp_lt_u32 s16, {d}"); a(f"s_cbranch_scc1 {l1}")
                    a(f"s_sub_u32 s95, s27, {4*d}"); a("s_lshl_b32 s95, s95, 10"); a("s_add_u32 s95, s95, s94")
                    for hh in range(2): self.dma("s95", kv*32*64*KB + hh*64*KB, LK + kv*12*KB + hh*HS + (8-4*d)*KB, fl=" sc1")
                    a(f"s_branch {l2}")
                    a(f"{l1}:")
                    for hh in range(2): self.dma("s94", hh*64*KB, LK + kv*12*KB + hh*HS + (8-4*d)*KB, voff=(HV_ROW0, HV_OOB)[kv], fl=" sc1")
                    a(f"{l2}:")
                    op(63); op(63)
                sig(("hk", "hv")[kv])
        def pack():
            a("s_lshl_b32 s40, s16, 1"); a("s_sub_u32 s41, s40, s28"); a("s_and_b32 s41, s41, 31"); a("s_lshl_b32 s41, s41, 10"); a("s_lshl_b32 s42, s6, 15"); a("s_add_u32 s41, s41, s42")
            a(f"v_add_u32 v160, s41, v{V_LANE16}")
            a("ds_read_b128 v[164:167], v160"); a("ds_read_b128 v[168:171], v160 offset:1024")
            a("s_lshl_b32 s41, s6, 15"); a("s_lshl_b32 s40, s40, 10"); a("s_add_u32 s41, s41, s40")
            a("s_add_u32 s41, s41, s34"); a("s_sub_u32 s41, s41, s25")
            a("s_mov_b32 s90, s41")
            a("s_waitcnt lgkmcnt(0)")
        def pack_st():
            a(f"buffer_store_dwordx4 v[164:167], v{V_LANE16}, s[8:11], s90 offen sc1"); a(f"buffer_store_dwordx4 v[168:171], v{V_LANE16}, s[8:11], s90 offen offset:1024 sc1")
        def rel_sig():
            a("s_lshl_b32 s40, s80, 2"); a("s_add_u32 s40, s40, s88")
            a(f"v_mov_b32 v{HT}, 1"); a("s_mov_b64 exec, 1"); a(f"buffer_store_dword v{HT}, off, s[8:11], s40 sc1"); a("s_mov_b64 exec, -1")
        def gu_ready():
            a("s_lshr_b32 s40, s17, 2"); a("s_lshl_b32 s40, s40, 9"); a(f"s_add_u32 s42, s40, {RF}"); a("s_mov_b32 s43, 1")
            a(f"v_lshlrev_b32 v{HT}, 2, v2"); self.poll(HT, "s42", "s43", sleep=8)
            a(f"v_min_u32 v{HT}, 47, v2"); a(f"v_lshlrev_b32 v{HT}, 2, v{HT}"); a("s_add_u32 s42, s42, 256"); self.poll(HT, "s42", "s43", sleep=8)
            a("s_lshl_b32 s40, s6, 2"); a("s_add_u32 s40, s40, s89")
            a(f"v_mov_b32 v{HT}, 1"); a("s_mov_b64 exec, 1"); a(f"buffer_store_dword v{HT}, off, s[8:11], s40 sc1"); a("s_mov_b64 exec, -1")
        def gu_aug():
            a("v_lshrrev_b32 v240, 5, v2"); a(f"v_mul_u32_u24 v241, {1792*4}, v240"); a("v_and_b32 v242, 31, v2"); a("v_min_u32 v242, 27, v242"); a("v_lshl_add_u32 v241, v242, 4, v241")
            a(f"s_mul_i32 s40, s17, {112*4}"); a(f"s_add_u32 s40, s40, {CS}")
            for p in range(8):
                a(f"buffer_load_dwordx4 {vr(208+4*p,4)}, v241, s[8:11], s40 offen sc1")
                if p < 7: a(f"s_add_u32 s40, s40, {2*1792*4}")
            a("v_lshrrev_b32 v243, 2, v242"); a("v_lshlrev_b32 v243, 8, v243"); a("v_lshl_add_u32 v243, v240, 7, v243"); a("v_and_b32 v244, 3, v242"); a("v_lshl_add_u32 v243, v244, 5, v243")
            a(f"v_add_u32 v243, {L_AUG + 768}, v243")
            a("s_waitcnt vmcnt(0)")
            for p in range(1, 8):
                for c in range(4): a(f"v_add_f32 v{208+c}, v{208+c}, v{208+4*p+c}")
            for c in range(4):
                a(f"v_cvt_pk_bf16_f32 v245, v{208+c}, v{208+c}"); a(f"v_and_b32 v{217+2*c}, 0xffff, v245")
                a("v_lshlrev_b32 v245, 16, v245"); a(f"v_sub_f32 v245, v{208+c}, v245"); a(f"v_cvt_pk_bf16_f32 v{216+2*c}, v{208+c}, v245")
            a("ds_write_b128 v243, v[216:219]"); a("ds_write_b128 v243, v[220:223] offset:16"); a("s_waitcnt lgkmcnt(0)")
        def pack_ready():
            a("s_lshl_b32 s42, s17, 8"); a(f"s_add_u32 s42, s42, {PFL}"); a("s_mov_b32 s43, 1")
            a(f"v_lshlrev_b32 v{HT}, 2, v2"); self.poll(HT, "s42", "s43", sleep=8)
        a(f"v_and_b32 v{HF_}, 3, v2"); a(f"v_lshlrev_b32 v{HF_}, 2, v{HF_}"); a(f"v_add_u32 v{HF_}, {L_HL}, v{HF_}")
        a("s_lshr_b32 s40, s6, 1"); a("s_lshl_b32 s41, s18, 1"); a("s_add_u32 s40, s40, s41"); a("s_lshl_b32 s41, s16, 2"); a("s_add_u32 s40, s40, s41")
        a("s_and_b32 s41, s6, 1"); a("s_lshl_b32 s42, s19, 1"); a("s_add_u32 s41, s41, s42")
        a("s_lshl_b32 s60, s40, 15"); a("s_lshl_b32 s42, s41, 11"); a("s_add_u32 s60, s60, s42")
        a("s_lshl_b32 s61, s40, 12"); a("s_lshr_b32 s42, s41, 2"); a("s_lshl_b32 s42, s42, 10"); a("s_add_u32 s61, s61, s42")
        a(f"s_mul_i32 s62, s27, {112*KB}"); a("s_lshl_b32 s42, s17, 11"); a("s_add_u32 s62, s62, s42")
        a(f"s_mul_i32 s63, s27, {112*KB}"); a(f"s_mul_i32 s42, s17, {7*KB}"); a("s_add_u32 s63, s63, s42")
        def touch(items):
            a(self.touch_txt([([f"s_add_u32 s43, {r}, {b}"], n) for r, b, n in items]).replace(f"v{V_OUT},", "v31,"))
        def ext():
            pass
        for it in range(2):
            st["it"] = it
            if it == 0:
                KW = OPT.get("kw", 4); RP = OPT.get("rp", 8)
                wqkv([WK, WV], range(2, 4), win=KW)
                retire(max(4, cnt["done"]))
                only(w3, lambda: a("s_load_dwordx2 s[92:93], s[70:71], 0"))
                wqkv([WK, WV], range(4, 6), win=KW)
                only(w3, arrive)
                wqkv([WK, WV], range(6, RP), win=KW)
                if not OPT.get("rele"): only(["s_cmp_gt_u32 s87, 0"], lambda: (need("x0") if OPT.get("relx", 0) else None, rel_ld())); cnt["ghost"] = (cnt["issued"], 8)
                wqkv([WK, WV], range(RP, 8), win=KW)
                only(kvw, lambda: (need("kv1", "H"), colsum(0, 16, True)))
                flush()
                self.stamp(9)
                only(kvw, lambda: (need("kv3", "H"), colsum(16, 32, False), augfin(), pack()))
                hpub("augkv")
                if OPT.get("rel0", 1): only(["s_cmp_gt_u32 s87, 0"], lambda: (a(f"s_setprio {OPT.get('rprio', 3)}"), a("s_waitcnt vmcnt(0)"), rel_do(), a("s_setprio 0")))
                self.stamp(10)
                need("x")
                wqkv([WQ], range(0, 8), win=63)
                only(w3, lambda: (nbr(), arrived_all() if OPT.get("aa", 0) else None))
                drain(); hpub("wq")
                need("wq", "H")
                if OPT.get("rel0", 1): only(["s_cmp_gt_u32 s87, 0"], rel_sig)
                QS = OPT.get("qs", 32)
                only(qw, lambda: (a("s_setprio 3"), colsum(0, QS, True), augfin() if QS == 32 else None))
                if QS == 32: hpub("augq")
                self.stamp(12)
            else:
                need("x"); hpub("augq")
            if it == 0: only(qw, lambda: (pack(), a("s_setprio 0")))
            self.stamp(14)
            need(["hl", "kv", "q"][OPT.get("hgo1", 0) if it else OPT.get("hgo0", 0)])
            self.stamp(2)
            if it == 0:
                a(f"v_mov_b32 v{V_TMP}, {L_MODE}"); a(f"ds_read_b32 v{V_TMP}, v{V_TMP}"); a("s_waitcnt lgkmcnt(0)"); a(f"v_readfirstlane_b32 s21, v{V_TMP}")
            if it == 0 and not OPT.get("aa", 0): only(w3, arrived_all)
            touch([("s63", OF, 16), ("s60", XA, 16), ("s61", STA, 8)])
            if it == 0: coop(); only(["s_cmp_lt_u32 s6, 3"], pack_st)
            self.stamp(3)
            for g in range(16):
                self.dma("s32", (2*(g%8) + g//8)*16*KB, RK + g*4*KB, voff=HV_R128, srd=SO); op()
                if it == 0 and not OPT.get("rel0", 1):
                    if g == 2: only(["s_cmp_gt_u32 s87, 0"], lambda: (a("s_waitcnt vmcnt(3)"), rel_do()))
                    if g == 3 + W: only(["s_cmp_gt_u32 s87, 0"], rel_sig)
            sig("wo")
            if it == 0:
                stash(OPT["st_a"]); flush()
                need("wo", "H")
                need("hl")
                gu_ready(); cnt["done"] = cnt["issued"]
                only(w3, gu_aug)
            self.stamp(5)
            need("hl" if OPT.get("t0hl", 1) else "q"); tile(0)
            if it == 0: need("wo", "H")
            tile(1, range(0, 3))
            need("h0"); tile(1, range(3, 8))
            if it == 0: stash(OPT.get("st_b", 8)); only(w3, pack_ready)
            if OPT.get("htouch", 0) > it: touch([("s63", HF, 56)])
            for n in range(OPT.get("pf1", 0) if it else OPT.get("pf0", 0)):
                if n == 0:
                    a("s_and_b32 s40, s16, 1"); a("s_lshl_b32 s41, s6, 1"); a("s_add_u32 s40, s40, s41"); a("s_lshl_b32 s40, s40, 13")
                    a("s_sub_u32 s43, s29, s25"); a("s_add_u32 s43, s43, s40"); a(f"v_lshlrev_b32 v{HT}, 7, v2")
                a(f"s_add_u32 s43, s43, {64*KB}")
                a(f"buffer_load_dword v31, v{HT}, s[8:11], s43 offen"); op(1)
            self.stamp(4)
            if OPT.get("t2e", 1):
                need("wo1"); tile(2); sig("t2_3")
                for p in range(3): self.seen.add(("H", f"t2_{p}"))
                need("xr"); flush(); wdw(range(0, 7))
                need("xch")
            else:
                need("wo"); tile(2, range(0, 2)); sig("t2_0")
                need("xch")
                for p in range(1, 4): tile(2, range(2*p, 2*p + 2)); sig(f"t2_{p}")
            if OPT.get("t3g"): need(f"g{OPT['t3g']}")
            tile(3); sig("t3")
            for p, nm in enumerate(("g8", "g16", "g24", "g32")):
                need(nm); tile(4, range(2*p, 2*p + 2))
            sig("t4")
            tile(5); sig("t5"); tile(6); sig("t6")
            if it == 0: stash(9)
            if OPT.get("wlate", 1): flush()
            need("t3"); wdw(range(7, 15))
            if it == 0: stash(8)
            need("t4"); wdw(range(15, 23))
            flush(); hpub("w0")
            if it == 0: stash(56)
            need("t5"); wdw(range(23, 31)); hpub("w23")
            need("t6"); wdw(range(31, 39)); hpub("w31")
            need("d7"); wdw(range(39, 46)); hpub("w39")
            if it == 0:
                need("d15"); wqp([WV], range(8))
                need("d23"); wqp([WK], range(4))
            need("d33"); wdw(range(46, 56)); hpub("w46")
            if it == 0:
                wqp([WK], range(4, 8))
                need("d39"); wqp([WQ], range(2, 8))
            if it == 0:
                drain(); hpub("nkv")
                need("d56"); wqp([WQ], range(0, 2)); drain()
                a("s_mov_b32 s23, 16")
        self.finish()

    def count_poll(self, soff, T):
        a = self.a; l = self.lab(); d = self.lab()
        a("s_mov_b32 s41, 0")
        l0 = self.lab(); a(f"s_branch {l0}"); a(f"{l}:"); a("s_sleep 8"); a(f"{l0}:")
        a(f"buffer_load_dwordx2 {vr(T,2)}, off, s[12:15], {soff} sc1"); a("s_waitcnt vmcnt(0)")
        a(f"v_readfirstlane_b32 s42, v{T}"); a(f"v_readfirstlane_b32 s43, v{T+1}")
        a("s_add_u32 s41, s41, 1"); a(f"s_cmp_gt_u32 s41, {OPT['spin']}"); a(f"s_cbranch_scc1 {d}")
        a("s_add_u32 s40, s42, s43"); a("s_mul_i32 s40, s40, 0x01010101"); a("s_lshr_b32 s40, s40, 24")
        a("s_cmp_lg_u32 s40, 16"); a(f"s_cbranch_scc1 {l}")
        a(f"{d}:")

    def build(self):
        a = self.a
        self.prologue()
        a("s_cmp_ge_u32 s3, 4"); a("s_cbranch_scc1 L_helper")
        self.compute()
        a("L_helper:")
        self.helper()
        assert self.used <= self.seen, self.used - self.seen
        a("L_end:"); a("s_endpgm")
        for x in self.ool: a.raw(x)
        a.raw("L_code_end:"); a.raw("    s_endpgm")
        return a.text()

def build():
    body = Main().build()
    return f"""; generated by dev/gen10.py
; @launch grid=(256,1,1) block=(512,1,1) lds={160*KB}
.amdgcn_target "amdgcn-amd-amdhsa--gfx950"
.text
{body}
.section .rodata,"a"
.p2align 6
.amdhsa_kernel {NAME}
  .amdhsa_next_free_vgpr 256
  .amdhsa_next_free_sgpr 102
  .amdhsa_accum_offset 256
  .amdhsa_group_segment_fixed_size 0
  .amdhsa_kernarg_size 80
  .amdhsa_user_sgpr_count 2
  .amdhsa_user_sgpr_kernarg_segment_ptr 1
  .amdhsa_system_sgpr_workgroup_id_x 1
.end_amdhsa_kernel
"""

if __name__ == "__main__":
    for x in sys.argv[2:]:
        if "=" in x: kk, v = x.split("="); OPT[kk] = int(v)
        else: OPT[x] = True
    open(sys.argv[1], "w").write(build())
```

```python
import sys, struct
from asmlib import *

NAME = "interleave_layers__sliding_block__glu_gated_glu__prompt_kernel"
KB = 1024
MB = 1 << 20
WQP  = 0
CS   = 0x180000
FL   = 0x1A0000
KVFL = 0x1A4000
RF   = 0x1AC000
PFL  = RF + 2048
AR   = RF + 8192
WGU  = 2*MB
STA  = WGU + 3584*KB; STB = STA
XA   = 6*MB; XB = XA
KV   = 8*MB
KVT  = 4608
KVS  = 0
HF   = 8*MB
OF   = HF
WS_USED = 16*MB
ALS  = 128*MB
ITS  = 32*MB
TS   = 0x6000000
WS_BYTES = 0x10000000
LOG2E = 1.4426950408889634
def f32(x): return "0x%08x" % struct.unpack("<I", struct.pack("<f", x))[0]
MF = "v_mfma_f32_32x32x16_bf16"
OPT = dict(stamp=False, force_slow=False, spin=400000, pre=10, cprio=2, fine=0, pf=0, kvflag=24, rot=1, win=6, hsc1=1)

P1, P2, P3, P4, PE, MISC = 0, 32*KB, 64*KB, 96*KB, 128*KB, 156*KB
LK = 108*KB; LV = LK + 12*KB; HS = 24*KB
L_QB = MISC; L_AUG = MISC + 768; L_ONES = MISC + 3328; L_HL = MISC + 3712; L_CP = L_HL + 16; L_MODE = L_HL + 32; L_TAG = L_HL + 40; L_DUMMY = MISC + 3840
DG = [0, 23, 31, 39, 46]
DP = [7, 15, 23, 33, 39, 43, 56]
CSEQ = ["x0", "x", "kv", "q", "hl", "h0", "att", "wo1", "wo", "xr", "xch", "g8", "g16", "g24", "g32", "t3", "t4", "t5", "t6"] + [f"d{s}" for s in DP] + ["dx"]
HSEQ = ["kv0", "kv1", "kv2", "kv3", "augkv", "wq", "augq", "wo", "gur", "t2_0", "t2_1", "t2_2", "t2_3", "t3", "t4", "t5", "t6"] + [f"w{s}" for s in DG] + ["nkv"]
CV = {n: i + 1 for i, n in enumerate(CSEQ)}; HV = {n: i + 1 for i, n in enumerate(HSEQ)}
assert max(len(CSEQ), len(HSEQ)) < 64
XCH_WO = PE; XCH_DN = PE
L_X0 = P4
L_REL_ = 0
def wd_slot(s):
    for lo, hi, reg in ((0, 7, PE), (7, 15, P3), (15, 23, P2), (23, 31, P4), (31, 39, P1), (39, 46, PE), (46, 54, P4), (54, 56, P1)):
        if lo <= s < hi: return reg + (s - lo)*4*KB
GU_REG = [P1, P4, P2, P3, P2, P4, P1]
RQ, RK, RV = P1, P2, P3
F_O1, F_O2, F_X1, F_H1, F_H2, F_X2 = 1, 2, 3, 7, 9, 10
STASH = 32

V_LANE16 = 3; V_F0 = 4
V_TQ = 6
V_XOFF = 8
V_RSTD = 10; V_STD = 11; V_C1 = 12; V_TMP = 13; V_TS = 14; V_TS2 = 15
V_XAUG = 16
V_PX = 20; V_PH = 21; V_AUGA = 22; V_OUT = 23
V_RES = 24
V_PUBA = 0; V_FA = 35; V_FLG = 1; V_BASE = 9
V_FW = 32
V_EP = 36
ACC = [40, 56, 72, 88]
WR = 96; NW = 8
XR = 128
T0 = 104

class VM:
    def __init__(self, a): self.a = a; self.q = []
    def issue(self, tag): self.q.append(tag)
    def wait(self, tag):
        idx = max((i for i, t in enumerate(self.q) if t == tag), default=-1)
        if idx < 0: return
        n = len(self.q) - 1 - idx; assert n <= 63
        self.a(f"s_waitcnt vmcnt({n})"); del self.q[:idx + 1]
    def drain(self):
        self.a("s_waitcnt vmcnt(0)"); self.q = []

def stats_calc_list(d0, tmp):
    L = [f"v_mov_b32 v{tmp}, 0", f"v_mov_b32 v{tmp+1}, 0"]
    for i in range(8):
        L.append(f"v_dot2_f32_bf16 v{tmp}, v{d0+i}, s20, v{tmp}")
        L.append(f"v_dot2_f32_bf16 v{tmp+1}, v{d0+i}, v{d0+i}, v{tmp+1}")
    L += ["s_nop 2", f"v_permlane32_swap_b32 v{tmp}, v{tmp+1}", "s_nop 1", f"v_add_f32 v{tmp}, v{tmp}, v{tmp+1}"]
    return L

class Main:
    DBARS = list(range(0, 56, 7))
    def __init__(self):
        self.a = Asm(); self.nl = 0
        self.seen = set(); self.used = set()
        self.role = None; self.pend_stamp = None; self.ool = []; self.nw = NW; self.wr = WR
    def lab(self): self.nl += 1; return f"L{self.nl}"
    def emit(self, x):
        if callable(x): x()
        else: self.a(x)
    def pub(self, name):
        self.a(f"v_add_u32 v{V_TMP}, {CV[name]}, v{V_BASE}"); self.a(f"ds_write_b32 v{V_PUBA}, v{V_TMP}")
        self.seen.add(("C", name))
    def gate_rd(self, src): self.a(f"ds_read_b32 v{V_FLG}, v{V_FA} offset:{0 if src == 'H' else 16}")
    def gate_cmp(self, name, src="H", absval=None):
        a = self.a
        n = (HV if src == "H" else CV)[name]
        if absval is not None: a(f"s_movk_i32 s39, {absval}")
        else: a(f"s_add_u32 s39, s7, {n}")
        a(f"v_cmp_gt_u32 s[30:31], s39, v{V_FLG}")
        self.used.add((src, name))
    def gate_br(self, src="H", redo=[]):
        a = self.a; l1 = self.lab(); l2 = self.lab()
        a("s_cmp_eq_u64 s[30:31], 0"); a(f"s_cbranch_scc1 {l2}")
        a(f"{l1}:")
        if OPT.get("csl"): a(f"s_sleep {OPT['csl']}")
        a("s_add_u32 s38, s38, 1"); a(f"s_cmp_gt_u32 s38, {OPT['spin']*16}"); a(f"s_cbranch_scc1 {l2}")
        a(f"ds_read_b32 v{V_FLG}, v{V_FA} offset:{0 if src == 'H' else 16}")
        for x in redo: a(x)
        a("s_waitcnt lgkmcnt(0)"); a(f"v_cmp_gt_u32 vcc, s39, v{V_FLG}"); a(f"s_cbranch_vccnz {l1}")
        a.pending.pop(l1, None)
        a(f"{l2}:")
    def gate_chk(self, name, src="H", absval=None):
        self.gate_cmp(name, src, absval); self.gate_br(src)
    def gate(self, name, src="H", absval=None):
        self.gate_rd(src); self.a("s_waitcnt lgkmcnt(0)"); self.gate_chk(name, src, absval)
    def stamp(self, i):
        if not OPT["stamp"]: return
        a = self.a
        a("s_memrealtime s[96:97]"); a("s_memtime s[98:99]"); a("s_waitcnt lgkmcnt(0)")
        if OPT.get("cnt"): a("s_lshl_b32 s98, s38, 12"); a("s_add_u32 s98, s98, s5")
        a(f"s_add_u32 s97, s23, {i}"); a(f"s_add_u32 m0, s97, s23"); a("s_nop 3")
        a(f"v_writelane_b32 v{V_TS}, s96, m0"); a(f"v_writelane_b32 v{V_TS2}, s98, m0")
    def store(self, instr, tag="st"):
        l1 = self.lab(); l2 = self.lab(); a = self.a
        if tag[0] == "h" and OPT.get("hsc1") == 1:
            a(instr + " sc1"); self.vm.issue(tag); return
        if tag[0] == "h" and OPT.get("hsc1") == 2:
            a("s_cmp_le_u32 s22, s21"); a(f"s_cbranch_scc1 {l1}"); a(instr); a(f"s_branch {l2}"); a(f"{l1}:"); a(instr + " sc1"); a(f"{l2}:")
            self.vm.issue(tag); return
        a("s_cmp_lg_u32 s21, 0"); a(f"s_cbranch_scc1 {l1}"); a(instr); a(f"{l2}:")
        a.pending.pop(l1, None)
        self.ool += [f"{l1}:", "    " + instr + " sc1", f"    s_branch {l2}"]
        self.vm.issue(tag)
    def flag(self, val, tag="st"):
        a = self.a
        a(f"s_add_u32 s40, s23, {val}"); a(f"v_mov_b32 v{V_TMP}, s40"); self.vm.wait(tag); a("s_mov_b64 exec, 1")
        self.store(f"buffer_store_dword v{V_TMP}, off, s[8:11], s24", "fl_st"); a("s_mov_b64 exec, -1")
    def peek(self, voff):
        self.a(f"buffer_load_dword v{V_OUT}, v{voff}, s[8:11], s26 offen sc1"); self.vm.issue("pk")
    def check(self, voff, val):
        a = self.a; d = self.lab()
        a(f"s_add_u32 s61, s23, {val}")
        self.vm.wait("pk")
        a(f"v_cmp_gt_u32 vcc, s61, v{V_OUT}"); a(f"s_cbranch_vccz {d}")
        self.poll(voff, "s26", "s61")
        a(f"{d}:")
    def acquire(self):
        a = self.a; l = self.lab()
        a("s_cmp_eq_u32 s21, 0"); a(f"s_cbranch_scc1 {l}"); a("buffer_inv sc1"); a("s_waitcnt vmcnt(0)"); a(f"{l}:")
    def poll(self, voff, sbase, sval, srd="s[8:11]", sleep=0):
        a = self.a; l = self.lab(); d = self.lab()
        a("s_mov_b32 s41, 0")
        if sleep and OPT.get("pplain", 0):
            l0 = self.lab(); a(f"buffer_load_dword v{V_TMP}, v{voff}, {srd}, {sbase} offen"); a(f"s_branch {l0}"); a(f"{l}:"); a(f"s_sleep {sleep}")
            a(f"buffer_load_dword v{V_TMP}, v{voff}, {srd}, {sbase} offen sc1"); a(f"{l0}:")
        else:
            if sleep:
                l0 = self.lab(); a(f"s_branch {l0}"); a(f"{l}:"); a(f"s_sleep {sleep}"); a(f"{l0}:")
            else: a(f"{l}:")
            a(f"buffer_load_dword v{V_TMP}, v{voff}, {srd}, {sbase} offen sc1")
        if OPT.get("cnt"): a("s_add_u32 s5, s5, 1")
        a("s_add_u32 s41, s41, 1"); a(f"s_cmp_gt_u32 s41, {OPT['spin']}"); a(f"s_cbranch_scc1 {d}")
        a("s_waitcnt vmcnt(0)")
        a(f"v_cmp_gt_u32 vcc, {sval}, v{V_TMP}")
        a(f"s_cbranch_vccnz {l}")
        a(f"{d}:")
    def poll2(self, voff, sbase, sval):
        N = OPT.get("pp", 1)
        if N == 1: return self.poll(voff, sbase, sval)
        a = self.a; l = self.lab(); d = self.lab()
        regs = [ACC[0] + i for i in range(N)]
        ld = lambda r: a(f"buffer_load_dword v{r}, v{voff}, s[8:11], {sbase} offen sc1")
        a("s_mov_b32 s41, 0")
        for n, r in enumerate(regs):
            ld(r)
            if n < N - 1: a(f"s_sleep {OPT.get('ppd', 2)}")
        a(f"{l}:")
        for r in regs:
            a(f"s_waitcnt vmcnt({N-1})"); a(f"v_cmp_gt_u32 vcc, {sval}, v{r}"); a(f"s_cbranch_vccz {d}"); ld(r)
        a("s_add_u32 s41, s41, 1"); a(f"s_cmp_le_u32 s41, {OPT['spin']}"); a(f"s_cbranch_scc1 {l}")
        a.pending.pop(l, None)
        a(f"{d}:")
    def dma(self, sbase, const, lds, voff=V_LANE16, fl="", srd="s[8:11]", sl="s25"):
        a = self.a
        a(f"s_add_u32 s40, {sbase}, {const}")
        a(f"s_add_u32 m0, {sl}, {lds}")
        a(f"buffer_load_dwordx4 v{voff}, {srd}, s40 offen{fl} lds")
    def touch_txt(self, items):
        l = self.lab()
        L = ["s_cmp_lg_u32 s21, 0", f"s_cbranch_scc1 {l}", f"v_lshlrev_b32 v{V_TMP}, 7, v2"]
        for sal, n in items:
            L += sal
            m = (1 << n) - 1
            L += [f"s_mov_b32 exec_lo, {m & 0xffffffff:#x}", f"s_mov_b32 exec_hi, {m >> 32:#x}", f"buffer_load_dword v{V_OUT}, v{V_TMP}, s[8:11], s43 offen sc1"]
        L += ["s_mov_b64 exec, -1", f"{l}:"]
        return "\n".join(L)
    def stream(self, steps, look, fill=None):
        a = self.a
        reads = []; need = []
        for s in steps:
            reads += s["reads"]; need.append(len(reads) - 1)
        per = 2 if any(r["op"].endswith("tr_b16") for r in reads) else 1
        pre_rd = {}; pre_cmp = {}
        for i, r in enumerate(reads):
            if r.get("gate"):
                pre_rd[max(0, i - look - per)] = i; pre_cmp[max(0, i - per)] = i
        ng = sum(1 for r in reads if r.get("gate"))
        assert len(pre_rd) == ng and len(pre_cmp) == ng
        gi = sorted(pre_rd.values())
        assert all(b - a_ > look + per for a_, b in zip(gi, gi[1:])), gi
        nr = 0; q = []; done = [0]; self._q = q
        def wait(tag):
            idx = q.index(tag)
            if idx < done[0]: return
            n = len(q) - 1 - idx; assert n <= 15, n
            a(f"s_waitcnt lgkmcnt({n})"); done[0] = idx + 1
        def issue():
            nonlocal nr
            r = reads[nr]
            if nr in pre_rd: self.gate_rd(reads[pre_rd[nr]].get("gsrc", "H")); q.append(("g", pre_rd[nr]))
            if nr in pre_cmp:
                g = reads[pre_cmp[nr]]
                wait(("g", pre_cmp[nr])); self.gate_cmp(g["gate"], g.get("gsrc", "H"), g.get("absval"))
            if r.get("gate"): self.gate_br(r.get("gsrc", "H"))
            if r.get("vm") is not None: self.vm.wait(r["vm"])
            n = 4 if r["op"] == "ds_read_b128" else 2
            fm = r["fam"]; off = r["off"]
            reg = fm[off >> 16] if isinstance(fm, list) else fm
            a(f"{r['op']} {vr(r['d'], n)}, v{reg} offset:{off & 0xffff}"); q.append(nr)
            if r.get("pub"): self.pub(r["pub"]); q.append(("p", nr))
            nr += 1
        for i, s in enumerate(steps):
            while nr < len(reads) and nr <= need[i] + (look if i == 0 else 0): issue()
            for x in s.get("pre", []): self.emit(x)
            wait(need[i + 1] if (s.get("pair") and i + 1 < len(steps)) else need[i])
            a(s["mf"])
            nxt = need[i + 1] if i + 1 < len(steps) else need[i]
            while nr < len(reads) and nr <= nxt + look: issue()
            for x in s.get("post", []): self.emit(x)
            if fill:
                for f in fill(i): self.emit(f)
            if self.pend_stamp: self.stamp(self.pend_stamp); self.pend_stamp = None
    def rd128(self, w, off, gate=None, pub=None): return [dict(op="ds_read_b128", d=w, fam=[V_F0, V_F0 + 1], off=off, gate=gate, pub=pub)]
    def rdtr(self, w, fam, off, d2, gate=None, pub=None, absval=None):
        return [dict(op="ds_read_b64_tr_b16", d=w, fam=fam, off=off, gate=gate, absval=absval), dict(op="ds_read_b64_tr_b16", d=w + 2, fam=fam, off=off + d2, pub=pub)]
    def tr_addr16(self, dst, t0, t1):
        a = self.a
        a(f"v_lshrrev_b32 v{t0}, 5, v2"); a(f"v_lshlrev_b32 v{dst}, 9, v{t0}")
        a(f"v_bfe_u32 v{t0}, v2, 2, 2"); a(f"v_lshl_add_u32 v{dst}, v{t0}, 6, v{dst}")
        a(f"v_bfe_u32 v{t0}, v2, 4, 1"); a(f"v_lshl_add_u32 v{dst}, v{t0}, 5, v{dst}")
        a(f"v_and_b32 v{t0}, 1, v2"); a(f"v_lshl_add_u32 v{dst}, v{t0}, 4, v{dst}")
        a(f"v_bfe_u32 v{t0}, v2, 1, 1"); a(f"v_lshl_add_u32 v{dst}, v{t0}, 3, v{dst}")

    def prologue(self):
        a = self.a
        a.raw(f".globl {NAME}"); a.raw(".p2align 8"); a.raw(f".type {NAME},@function"); a.raw(f"{NAME}:")
        a(f"s_cmp_ge_u32 s2, {0 if OPT.get('empty') else 256}"); a("s_cbranch_scc1 L_end")
        if OPT["stamp"]: a("s_memrealtime s[100:101]")
        a("s_load_dwordx4 s[64:67], s[0:1], 0")
        a("s_load_dwordx2 s[8:9], s[0:1], 72")
        a("s_load_dwordx2 s[68:69], s[0:1], 16")
        a("s_load_dwordx8 s[72:79], s[0:1], 32")
        a("s_load_dwordx2 s[70:71], s[0:1], 64")
        a(f"s_mov_b32 s10, {WS_BYTES}"); a("s_mov_b32 s11, 0x20000")
        a("v_lshrrev_b32 v1, 6, v0"); a("v_and_b32 v2, 63, v0")
        a("v_readfirstlane_b32 s3, v1")
        a(f"v_lshlrev_b32 v{V_LANE16}, 4, v2")
        a("s_and_b32 s4, s2, 7"); a("s_lshr_b32 s5, s2, 3"); a("s_and_b32 s6, s3, 3")
        a("s_lshl_b32 s16, s4, 1"); a("s_lshr_b32 s40, s5, 4"); a("s_add_u32 s16, s16, s40")
        a("s_and_b32 s17, s5, 15")
        a("s_lshr_b32 s18, s17, 3"); a("s_and_b32 s19, s17, 7")
        a("s_mov_b32 s20, 0x3f803f80"); a("s_mov_b32 s21, 0"); a("s_mov_b32 s22, 0"); a("s_mov_b32 s23, 0")
        a("s_lshl_b32 s26, s16, 9"); a(f"s_add_u32 s26, s26, {FL}")
        a("s_lshl_b32 s24, s17, 5"); a("s_lshl_b32 s40, s3, 2"); a("s_add_u32 s24, s24, s40"); a("s_add_u32 s24, s24, s26")
        a("s_lshl_b32 s25, s6, 10")
        a("s_lshl_b32 s27, s16, 2"); a("s_add_u32 s27, s27, s6")
        if OPT["rot"]: a("s_add_u32 s28, s16, s17"); a("s_lshl_b32 s28, s28, 2"); a("s_and_b32 s28, s28, 31")
        else: a("s_mov_b32 s28, 0")
        a("s_mov_b32 s35, 0"); a("s_mov_b32 s36, 0")
        a(f"v_mov_b32 v{V_TS}, 0"); a(f"v_mov_b32 v{V_TS2}, 0")
        a("s_xor_b32 s40, s3, 4"); a("s_lshl_b32 s40, s40, 2"); a(f"s_add_u32 s40, s40, {L_HL}")
        a(f"v_lshlrev_b32 v{V_PUBA}, 2, v2"); a(f"v_add_u32 v{V_PUBA}, {L_DUMMY}, v{V_PUBA}"); a(f"v_writelane_b32 v{V_PUBA}, s40, 0")
        a(f"v_mov_b32 v{V_BASE}, 0"); a("s_mov_b32 s7, 0"); a("s_mov_b32 s38, 0")
        a(f"ds_write_b32 v{V_PUBA}, v{V_BASE}")
        a("s_waitcnt lgkmcnt(0)"); a("s_barrier")
        if OPT.get("wsoff"):
            a(f"s_add_u32 s8, s8, {OPT['wsoff']*MB}"); a("s_addc_u32 s9, s9, 0"); a(f"s_mov_b32 s10, {WS_BYTES - OPT['wsoff']*MB}")

    def attention(self):
        KF = XR + 8; S = [XR + 44, XR + 60, XR + 76]; NM = [XR + 92, XR + 108]; MX = [XR + 124, XR + 125]; T = XR + 126
        O = [ACC[2], ACC[3]]; VA = ACC[1]; KA = VA + 9
        VF = [104, 112]; P = [120, ACC[0] + 8]; BM = ACC[0]; NEG = KA + 2
        t0, t1, t2, t3, t4 = (ACC[0] + 8 + i for i in range(5))
        L = [f"v_and_b32 v{t0}, 31, v2", f"v_lshrrev_b32 v{t1}, 5, v2",
             f"v_and_b32 v{KA}, 0x13, v{t0}", f"v_bfe_u32 v{t2}, v{t0}, 2, 1", f"v_lshl_add_u32 v{KA}, v{t2}, 3, v{KA}",
             f"v_bfe_u32 v{t2}, v{t0}, 3, 1", f"v_lshl_add_u32 v{KA}, v{t2}, 2, v{KA}",
             f"v_lshlrev_b32 v{KA}, 4, v{KA}", f"v_lshl_add_u32 v{KA}, v{t1}, 9, v{KA}",
             f"s_add_u32 s41, s25, {LK}\nv_add_u32 v{KA}, s41, v{KA}",
             f"v_bfe_u32 v{t2}, v2, 2, 2", f"v_lshl_add_u32 v{t2}, v{t1}, 3, v{t2}", f"v_lshlrev_b32 v{t2}, 4, v{t2}",
             f"v_and_b32 v{t3}, 1, v2", f"v_lshl_add_u32 v{t2}, v{t3}, 9, v{t2}",
             f"v_bfe_u32 v{t3}, v2, 1, 1", f"v_lshl_add_u32 v{t2}, v{t3}, 3, v{t2}",
             f"s_add_u32 s41, s25, {LV}\nv_add_u32 v{t2}, s41, v{t2}",
             f"v_bfe_u32 v{t3}, v2, 4, 1", f"v_xor_b32 v{t4}, 1, v{t3}",
             f"v_mul_u32_u24 v{KA+1}, {HS}, v{t4}", f"v_mul_u32_u24 v{VA}, v{t2}, v{t4}", f"v_mul_u32_u24 v{t2}, {L_ONES}, v{t3}", f"v_add_u32 v{VA}, v{VA}, v{t2}",
             f"v_lshlrev_b32 v{t4}, 10, v{t4}"]
        L += [f"v_add_u32 v{VA+i}, v{t4}, v{VA+i-1}" for i in range(1, 9)]
        l = self.lab()
        fx = ["s_cmp_ge_u32 s27, 8", f"s_cbranch_scc1 {l}", "s_sub_i32 s42, 8, s27", f"v_lshlrev_b32 v{t3}, 3, v{t3}"]
        for i in range(8): fx += [f"s_cmp_gt_i32 s42, {i}", "s_cselect_b32 s41, -1, 0", f"v_and_b32 v{t2}, s41, v{t3}", f"v_add_u32 v{VA+i}, v{t2}, v{VA+i}"]
        L.append("\n".join(fx + [f"{l}:"]))
        L += [f"v_mov_b32 v{t0}, 0xffff", f"v_mov_b32 v{t1}, 0xffff0000"]
        for p in range(8):
            L += [f"v_cndmask_b32_e64 v{t2}, v{t0}, 0, s[{64+4*p}:{65+4*p}]", f"v_cndmask_b32_e64 v{t3}, v{t1}, 0, s[{66+4*p}:{67+4*p}]", f"v_or_b32 v{BM+p}, v{t2}, v{t3}"]
        L += [f"v_mov_b32 v{NEG}, {f32(-1e30)}", f"v_mov_b32 v{NEG+1}, {f32(2.0**OPT.get('thr', 40))}", f"v_mov_b32 v{NEG+2}, {f32(2.0**-OPT.get('thr', 40))}"]
        return dict(KF=KF, S=S, NM=NM, O=O, VA=VA, VF=VF, P=P, BM=BM, MX=MX, T=T, KA=KA, NEG=NEG), L

    def attention_run(self, r, halo_k, halo_v, early_a, redo_a):
        a = self.a
        KF, S, NM, O, VA, VF, P, BM, MX, T, KA, NEG = (r[x] for x in "KF S NM O VA VF P BM MX T KA NEG".split())
        def kread(hh, i, d=None): a(f"ds_read_b128 {vr(KF+4*(i if d is None else d),4)}, v{KA} offset:{hh*HS + i*KB}")
        def vrd(reg, vf):
            for t in range(2):
                for u in range(2): a(f"ds_read_b64_tr_b16 {vr(vf+4*t+2*u,2)}, v{reg} offset:{t*256 + u*64}")
        def vread(hh, i, vf):
            vrd(VA + i, vf)
            if hh == 0: a(f"v_add_u32 v{VA+i}, v{KA+1}, v{VA+i}")
        def qk(hh, dst, i, c): a(f"{MF} {vr(dst,16)}, {vr(KF+4*i,4)}, {vr(XR+4*hh,4)}, {c}")
        def pv(hh, vf, p, t, first=False): a(f"{MF} {vr(O[hh],16)}, {vr(vf+4*t,4)}, {vr(p+4*t,4)}, {'0' if first else vr(O[hh],16)}")
        def mx(b, first=False):
            lo = 0
            if first:
                a(f"v_max3_f32 v{MX[0]}, v{b}, v{b+1}, v{b+2}"); a(f"v_max3_f32 v{MX[1]}, v{b+3}, v{b+4}, v{b+5}"); lo = 6
            for n, q in enumerate(range(lo, 16, 2)): a(f"v_max3_f32 v{MX[n%2]}, v{MX[n%2]}, v{b+q}, v{b+q+1}")
        def mxfin(hh):
            a(f"v_max_f32 v{MX[0]}, v{MX[0]}, v{MX[1]}"); a(f"v_mov_b32 v{MX[1]}, v{MX[0]}")
            a(f"v_permlane32_swap_b32 v{MX[0]}, v{MX[1]}"); a("s_nop 1"); a(f"v_max_f32 v{MX[0]}, v{MX[0]}, v{MX[1]}")
            for q in range(16): a(f"v_sub_f32 v{NM[hh]+q}, 0, v{MX[0]}")
        def mask(b, diag):
            for q in range(16):
                a(f"v_cndmask_b32_e64 v{b+q}, v{NEG}, v{b+q}, s[{64+2*q}:{65+2*q}]" if diag else f"v_cndmask_b32_e64 v{b+q}, v{b+q}, v{NEG}, s[{64+2*q}:{65+2*q}]")
        def ex(b, lo, hi):
            for q in range(lo, hi): a(f"v_exp_f32 v{b+q}, v{b+q}")
        def cv(p, b, lo, hi):
            for q in range(lo, hi): a(f"v_cvt_pk_bf16_f32 v{p+q}, v{b+2*q}, v{b+2*q+1}")
        def fin(hh, bad=None):
            a(f"v_rcp_f32 v{T}, v{O[hh]+8}")
            if bad:
                a(f"v_med3_f32 v{MX[0]}, v{O[hh]+8}, v{NEG+2}, v{NEG+1}"); a(f"v_cmp_neq_f32 vcc, v{O[hh]+8}, v{MX[0]}")
            for q in range(8): a(f"v_mul_f32 v{O[hh]+q}, v{T}, v{O[hh]+q}")
            if bad: a(f"s_cbranch_vccnz {bad}"); a.pending.pop(bad, None)
            for q in range(4): a(f"v_cvt_pk_bf16_f32 v{V_EP+q}, v{O[hh]+2*q}, v{O[hh]+2*q+1}")
            self.store(f"buffer_store_dwordx4 {vr(V_EP,4)}, v{V_LANE16}, s[8:11], s37 offen offset:{hh*KB}")
        vread(0, 8, VF[0]); vread(1, 8, VF[1])
        qk(0, S[0], 8, "0"); qk(1, S[1], 7, "0")
        halo_v()
        mx(S[0], True); mxfin(0); qk(0, S[0], 8, vr(NM[0], 16))
        mx(S[1], True); mxfin(1); qk(1, S[1], 7, vr(NM[1], 16))
        def diag(hh):
            ex(S[hh], 0, 16); cv(P[hh], S[hh], 0, 8)
            for q in range(8): a(f"v_bfi_b32 v{P[hh]+q}, v{BM+q}, 0, v{P[hh]+q}")
        diag(0)
        a("s_waitcnt lgkmcnt(0)")
        pv(0, VF[0], P[0], 0, True)
        if OPT["fine"] > 2: self.stamp(15)
        halo_k(lambda: pv(0, VF[0], P[0], 1))
        diag(1)
        order = [7, 6, 5, 4, 3, 2, 1, 0]
        blocks = [(hh, i) for hh in range(2) for i in order]
        krs = [f"ds_read_b128 {vr(KF+4*i,4)}, v{KA} offset:{i*KB}" for i in order[:3]]
        self.gate_rd("C")
        for x in krs: a(x)
        pv(1, VF[1], P[1], 0, True)
        a("s_waitcnt lgkmcnt(3)"); self.gate_cmp("hl", "C")
        pv(1, VF[1], P[1], 1)
        self.gate_br("C", redo=krs)
        for i in order[3:]: kread(0, i)
        a("s_waitcnt lgkmcnt(7)"); qk(0, S[0], 7, vr(NM[0], 16))
        a("s_waitcnt lgkmcnt(6)"); qk(0, S[1], 6, vr(NM[0], 16))
        F3 = (lambda i: self.stamp(i)) if OPT["fine"] > 2 else (lambda i: None)
        F3(16)
        kread(1, 7); kread(1, 6)
        pend = None
        for n, (hh, i) in enumerate(blocks):
            b = S[n % 3]; vf = VF[n % 2]; p = P[n % 2]
            ex(b, 0, 4)
            vread(hh, i, vf)
            if pend: pv(*pend)
            ex(b, 4, 10)
            kr = False
            if n + 2 < 16:
                h2, i2 = blocks[n + 2]
                if n == 0: a("s_waitcnt lgkmcnt(6)")
                qk(h2, S[(n + 2) % 3], i2, vr(NM[h2], 16))
                if h2 == 0: kread(1, i2); kr = True
            if n == OPT.get("pk", 15): self.peek(V_PH)
            ex(b, 10, 16)
            if n == 8: F3(17); fin(0, "L_redo0"); self.pub("h0"); F3(18)
            if n == OPT.get("fo1", 11): F3(19); self.flag(F_O1); F3(20)
            cv(p, b, 0, 8)
            if i == 0:
                for q in range(8): a(f"v_and_b32 v{p+q}, v{BM+q}, v{p+q}")
            a("s_waitcnt lgkmcnt(1)" if (kr or n == 8) else "s_waitcnt lgkmcnt(0)")
            pv(hh, vf, p, 0)
            pend = (hh, vf, p, 1)
        pv(*pend)
        fin(1, "L_redo1")
        self.pub("att")
        lb = self.lab(); lj = self.lab()
        a(f"s_add_u32 s61, s23, {F_O1}"); self.vm.wait("pk")
        a(f"v_cmp_gt_u32 vcc, s61, v{V_OUT}"); a(f"s_cbranch_vccz {lb}")
        qs = list(self.vm.q)
        a("L_att_late:")
        self.flag(F_O2); redo_a(a); a("s_waitcnt vmcnt(0)"); a(f"s_branch {lj}")
        a(f"{lb}:")
        self.vm.q = qs
        early_a()
        self.flag(F_O2)
        a(f"{lj}:")
        main = self.a; saved_q = list(self.vm.q)
        self.a = a = Asm(); self.vm.a = a
        def redo(hh):
            a("s_nop 15"); a("s_waitcnt vmcnt(0) lgkmcnt(0)")
            for i in range(9): kread(hh, i)
            a("s_waitcnt lgkmcnt(0)")
            a("s_sub_i32 s42, 8, s27")
            for i in (8, 0, 1, 2, 3, 4, 5, 6, 7):
                sk = self.lab()
                a(f"s_cmp_gt_i32 s42, {i}"); a(f"s_cbranch_scc1 {sk}")
                qk(hh, S[0], i, "0")
                if i in (0, 8): mask(S[0], i == 8)
                mx(S[0], i == 8)
                a(f"{sk}:")
            mxfin(hh)
            for i in (8, 0, 1, 2, 3, 4, 5, 6, 7):
                sk = self.lab()
                a(f"s_cmp_gt_i32 s42, {i}"); a(f"s_cbranch_scc1 {sk}")
                if hh == 0: a(f"v_sub_u32 v{T}, v{VA+i}, v{KA+1}")
                vrd(T if hh == 0 else VA + i, VF[0])
                qk(hh, S[0], i, vr(NM[hh], 16))
                if i in (0, 8): mask(S[0], i == 8)
                ex(S[0], 0, 16); cv(P[0], S[0], 0, 8)
                a("s_waitcnt lgkmcnt(0)")
                pv(hh, VF[0], P[0], 0, i == 8); pv(hh, VF[0], P[0], 1)
                a(f"{sk}:")
            fin(hh)
        a("L_redo0:")
        redo(0); self.pub("h0"); self.vm.q = ["st"]; self.flag(F_O1)
        a("L_redo1:")
        redo(1); self.pub("att")
        a("s_waitcnt vmcnt(0)"); a("s_branch L_att_late")
        self.ool += a.out
        self.a = main; self.vm.a = main; self.vm.q = saved_q

    def ln_stats(self, d):
        L = []
        for n in (8, 4, 2, 1):
            for i in range(n): L.append(f"v_add_f32 v{d+i}, v{d+i}, v{d+i+n}")
        L += [f"v_mov_b32 v{d+1}, v{d}", f"v_permlane32_swap_b32 v{d}, v{d+1}", "s_nop 1",
              f"v_mul_f32 v{d}, {f32(-1.0/512)}, v{d}", f"v_mul_f32 v{d+1}, {f32(1.0/512)}, v{d+1}",
              f"v_fma_f32 v{d+1}, -v{d}, v{d}, v{d+1}", f"v_max_f32 v{d+1}, 0, v{d+1}", f"v_add_f32 v{d+1}, {f32(1e-5)}, v{d+1}",
              f"v_rsq_f32 v{V_RSTD}, v{d+1}", f"v_sqrt_f32 v{V_STD}, v{d+1}",
              f"v_cvt_pk_bf16_f32 v{V_XAUG}, v{d}, v{d}",
              f"v_and_b32 v{d+2}, 0xffff0000, v{V_XAUG}", f"v_sub_f32 v{d+2}, v{d}, v{d+2}", f"v_mov_b32 v{d+3}, 0",
              f"v_cvt_pk_bf16_f32 v{V_XAUG+1}, v{d+2}, v{d+3}",
              f"v_cndmask_b32_e64 v{V_XAUG}, 0, v{V_XAUG}, s[62:63]", f"v_cndmask_b32_e64 v{V_XAUG+1}, 0, v{V_XAUG+1}, s[62:63]",
              f"v_mul_f32 v{V_C1}, {f32(-LOG2E)}, v{V_RSTD}"]
        return L
    def wreg(self):
        w = self.wr + 4 * (self.wc % self.nw); self.wc += 1; return w
    def aug_step(self, acc, augidx, bn=None, look=None):
        w = self.wreg()
        s = dict(reads=[dict(op="ds_read_b64", d=w, fam=V_AUGA, off=augidx * 256, gate=bn)], mf=f"{MF} {vr(acc,16)}, {vr(w,4)}, {vr(V_XAUG,4)}, {vr(acc,16)}")
        return s
    def x_pass1(self, xl, sst, local, wread, augs, augbar, NT=2):
        a = self.a; vm = self.vm
        PRE = OPT["pre"] if NT == 2 else OPT.get("pre3", OPT["pre"]); STD = ACC[NT]
        def X(kc):
            def f(): xl(kc); vm.issue(f"x{kc}")
            return f
        XS = STD + 4
        xslot = lambda p: [L_X0, L_X0 + 16*KB, L_X0 + 32*KB, RQ, RQ + 16*KB][p if p < 5 else p - 5]
        def piece(p):
            a(f"s_add_u32 s41, s28, {4*p}"); a("s_and_b32 s41, s41, 31"); a("s_lshl_b32 s41, s41, 5"); a("s_add_u32 s41, s41, s55")
            for i in range(4): self.dma("s41", i*8*KB, xslot(p) + i*KB, voff=XS + i%2, srd="s[44:47]", sl="s42"); vm.issue(f"pc{p}")
        def dots(lo, hi):
            for kc in range(lo, hi):
                for i in range(4):
                    r = XR + 4 * kc + i
                    a(f"v_dot2c_f32_bf16 v{STD + 2*(i%2)}, s20, v{r}"); a(f"v_dot2c_f32_bf16 v{STD + 1 + 2*(i%2)}, v{r}, v{r}")
        def xrd(p): return [dict(op="ds_read_b128", d=XR+16*p+4*q, fam=(XS+2+q if xslot(p) >= L_X0 else XS+6+q), off=(xslot(p) - L_X0 if xslot(p) >= L_X0 else xslot(p) - RQ), vm=(f"pc{p}" if q == 0 else None)) for q in range(4)]
        def piece_part(p, i):
            if i == 0: a(f"s_add_u32 s33, s28, {4*p}"); a("s_and_b32 s33, s33, 31"); a("s_lshl_b32 s33, s33, 5"); a("s_add_u32 s33, s33, s55")
            self.dma("s33", i*8*KB, xslot(p) + i*KB, voff=XS + i%2, srd="s[44:47]", sl="s42"); vm.issue(f"pc{p}")
        def fin0():
            dots(28, 32)
            a(f"v_add_f32 v{STD}, v{STD}, v{STD+2}"); a(f"v_add_f32 v{STD+1}, v{STD+1}, v{STD+3}")
            a(f"v_permlane32_swap_b32 v{STD}, v{STD+1}"); a("s_nop 1"); a(f"v_add_f32 v{STD}, v{STD}, v{STD+1}")
            for x in self.ln_stats(STD)[15:]: a(x)
        if local == "start":
            a(f"v_lshrrev_b32 v{XS+3}, 4, v2"); a(f"v_and_b32 v{XS}, 7, v2"); a(f"v_xor_b32 v{XS}, v{XS+3}, v{XS}"); a(f"v_lshlrev_b32 v{XS}, 4, v{XS}")
            a(f"v_lshrrev_b32 v{XS+3}, 3, v2"); a(f"v_lshl_add_u32 v{XS}, v{XS+3}, 10, v{XS}"); a(f"v_xor_b32 v{XS+1}, 64, v{XS}")
            a("s_lshl_b32 s42, s6, 12")
            a("s_waitcnt lgkmcnt(0)"); a("s_mov_b64 s[44:45], s[64:65]")
            piece(0)
            return
        if local:
            piece(1)
            if not OPT.get("p2l"): piece(2)
            for i in range(4): a(f"v_mov_b32 v{STD+i}, 0")
            a(f"v_bfe_u32 v{XS+2}, v2, 1, 3"); a(f"v_lshrrev_b32 v{XS+3}, 5, v2"); a(f"v_xor_b32 v{XS+2}, v{XS+3}, v{XS+2}"); a(f"v_lshlrev_b32 v{XS+2}, 4, v{XS+2}")
            a(f"v_and_b32 v{XS+3}, 31, v2"); a(f"v_lshl_add_u32 v{XS+2}, v{XS+3}, 7, v{XS+2}")
            a(f"s_add_u32 s41, s42, {L_X0}"); a(f"v_add_u32 v{XS+2}, s41, v{XS+2}")
            for q in range(1, 4): a(f"v_xor_b32 v{XS+2+q}, {32*q}, v{XS+2}")
            for q in range(4): a(f"v_subrev_u32 v{XS+6+q}, {L_X0 - RQ}, v{XS+2+q}")
        else:
            SP = OPT.get("sp", 6)
            for kc in range(SP): X(kc)()
            for i in range(4): a(f"buffer_load_dwordx4 {vr(STD+4*i,4)}, v{V_LANE16}, s[8:11], {sst} offen offset:{1024*i} sc1"); vm.issue("stt")
            for kc in range(SP, PRE): X(kc)()
        steps = []
        st = self.ln_stats(STD)
        xn = [PRE]; PMAX = OPT.get("pm3", PRE) if NT == 3 else OPT.get("pm2", PRE)
        for kc in range(32):
            for t in range(NT):
                w = self.wreg()
                s = dict(reads=wread(w, t, kc), mf=f"{MF} {vr(ACC[t],16)}, {vr(w,4)}, {vr(XR+4*kc,4)}, {'0' if kc == 0 else vr(ACC[t],16)}", post=[])
                if local:
                    p = kc // 4
                    if t == 0 and kc % 4 == 0:
                        s["reads"] = xrd(p) + s["reads"]
                        if p: s["pre"] = [lambda p=p: dots(4*p - 4, 4*p)]
                        if OPT["fine"] == 2: s["post"].append(lambda p=p: self.stamp(16 + p))
                    n8 = 2 * (kc % 4) + t
                    sched = ({0: (2, 3), 1: (4, 5), 2: (6, 7)} if OPT.get("p2l") else {0: (3, 4), 1: (5, 6), 2: (7, None)}).get(p, (None, None))[n8 // 4]
                    if sched is not None: s["post"].append(lambda sched=sched, n8=n8: piece_part(sched, n8 % 4))
                    if n8 == 7 and p == 2: s["post"].append(lambda: self.pub("x0"))
                    if n8 == 0 and p == 4: s["post"].append(lambda: self.pub("x"))
                    if t == 1 and kc == 31: s["post"].append(fin0)
                elif t == 0:
                    s["pre"] = [lambda kc=kc: vm.wait(f"x{kc}")]
                    if xn[0] < 32: s["post"].append(X(xn[0])); xn[0] += 1
                elif t == 1 and xn[0] < min(32, kc + 1 + PMAX):
                    s["post"].append(X(xn[0])); xn[0] += 1
                elif kc >= OPT.get("sp", 6) + 1:
                    s["post"] += st[:3]; st = st[3:]
                steps.append(s)
        assert local or not st
        for t in range(NT): steps.append(self.aug_step(ACC[t], augs[t], augbar if t == 0 else None))
        return steps

    def res_gemm(self, nsteps, slot, areg, aload, pre_issued, PRE, gates, pubs, xch, xpub, pre_x, hooks={}):
        a = self.a; vm = self.vm
        for i in range(8):
            a(f"v_lshlrev_b32 v{ACC[0]+2*i}, 16, v{V_RES+i}"); a(f"v_and_b32 v{ACC[0]+2*i+1}, 0xffff0000, v{V_RES+i}")
        a(f"v_xor_b32 v{V_EP}, 64, v{V_FW}"); a(f"v_add_u32 v{V_EP+1}, 0x10000, v{V_EP}"); a(f"v_add_u32 v{V_EP+2}, 0x20000, v{V_EP}")
        nxt = [pre_issued]
        def upto(n):
            while nxt[0] < min(n, nsteps): aload(nxt[0]); nxt[0] += 1
        steps = []; self.wc = 0; self.wr = WR; self.nw = NW
        fo = [V_FW, V_FW + 1, V_FW + 2]; ft = [V_EP, V_EP + 1, V_EP + 2]
        T = OPT.get("xt", 8)
        order = [(s, t) for s in range(nsteps - T) for t in range(2)] + [(s, 1) for s in range(nsteps - T, nsteps)] + [(s, 0) for s in range(nsteps - T, nsteps)]
        first = {}; last = {}
        for n, (s, t) in enumerate(order): first.setdefault(s, n); last[s] = n
        for n, (s, t) in enumerate(order):
            w = self.wreg()
            c = vr(ACC[t], 16) if (t == 0 or s > 0) else "0"
            st = dict(reads=self.rdtr(w, fo if t == 0 else ft, slot(s), 512, gates.get(s) if first[s] == n else None, pubs.get(s) if last[s] == n else None),
                      mf=f"{MF} {vr(ACC[t],16)}, {vr(w,4)}, {vr(areg(s),4)}, {c}")
            if OPT.get("x_b128") and nsteps == 56:
                r0, r1 = st["reads"]; st["reads"] = [dict(op="ds_read_b128", d=w, fam=[V_F0, V_F0 + 1, V_F0 + 1], off=slot(s) + t*KB, gate=r0.get("gate"), pub=r1.get("pub"))]
            if first[s] == n and s == pre_x[0]: st["reads"][0].update(gate=pre_x[1], gsrc="C")
            if first[s] == n: st["pre"] = ([lambda s=s: hooks[s](upto)] if s in hooks else []) + [lambda s=s: vm.wait(f"a{s}")]
            elif PRE: st["post"] = [lambda s=s: upto(s + 1 + PRE)]
            steps.append(st)
        a(f"s_xor_b32 s40, s6, 1"); a("s_lshl_b32 s40, s40, 12"); a(f"s_add_u32 s40, s40, {xch}"); a(f"v_add_u32 v{V_EP+3}, s40, v{V_LANE16}")
        rds = [f"ds_read_b128 {vr(ACC[2]+4*i,4)}, v{V_EP+3} offset:{i*KB}" for i in range(4)]
        def wr(i):
            a(f"ds_write_b128 v{V_EP+3}, {vr(ACC[1]+4*i,4)} offset:{i*KB}"); self._q.append(("x", i))
            if i == 3: self.pub(xpub); self._q.append(("x", 4)); a(f"v_xor_b32 v{V_EP+3}, 4096, v{V_EP+3}")
        o0 = len(steps) - T
        for i in range(4): steps[o0 + min(T - 1, 2 + i)].setdefault("post", []).append(lambda i=i: wr(i))
        self.stream(steps, look=5 if (OPT.get("x_b128") and nsteps == 56) else 10)
        if OPT["fine"] and nsteps == 56: self.stamp(9)
        self.gate_rd("C")
        for x in rds: a(x)
        a("s_waitcnt lgkmcnt(4)")
        self.gate_cmp(xpub, "C"); self.gate_br("C", redo=rds)
        for i in range(4):
            a(f"s_waitcnt lgkmcnt({3-i})")
            for q in range(4): a(f"v_add_f32 v{ACC[0]+4*i+q}, v{ACC[0]+4*i+q}, v{ACC[2]+4*i+q}")
            for q in range(2): a(f"v_cvt_pk_bf16_f32 v{V_RES+2*i+q}, v{ACC[0]+4*i+2*q}, v{ACC[0]+4*i+2*q+1}")

    def x_store(self, sx, sst, flagval):
        a = self.a; t = ACC[1]
        self.store(f"buffer_store_dwordx4 {vr(V_RES,4)}, v{V_LANE16}, s[8:11], {sx} offen")
        self.store(f"buffer_store_dwordx4 {vr(V_RES+4,4)}, v{V_LANE16}, s[8:11], {sx} offen offset:1024")
        for i in range(2): a(f"v_dot2_f32_bf16 v{t+2*i}, v{V_RES+i}, s20, 0"); a(f"v_dot2_f32_bf16 v{t+2*i+1}, v{V_RES+i}, v{V_RES+i}, 0")
        for i in range(2, 8): a(f"v_dot2_f32_bf16 v{t+2*(i%2)}, v{V_RES+i}, s20, v{t+2*(i%2)}"); a(f"v_dot2_f32_bf16 v{t+2*(i%2)+1}, v{V_RES+i}, v{V_RES+i}, v{t+2*(i%2)+1}")
        a(f"v_add_f32 v{t}, v{t}, v{t+2}"); a(f"v_add_f32 v{t+1}, v{t+1}, v{t+3}")
        a(f"v_permlane32_swap_b32 v{t}, v{t+1}"); a("s_nop 0"); a(f"v_add_f32 v{t}, v{t}, v{t+1}")
        self.store(f"buffer_store_dword v{t}, v{V_LANE16}, s[8:11], {sst} offen")
        self.flag(flagval)

    def compute(self):
        a = self.a; self.role = "C"; self.vm = vm = VM(a)
        a(f"s_setprio {OPT['cprio']}")
        a("v_and_b32 v104, 31, v2"); a("v_lshrrev_b32 v105, 5, v2")
        a(f"v_lshlrev_b32 v{V_XOFF}, 10, v104"); a(f"v_lshl_add_u32 v{V_XOFF}, v105, 4, v{V_XOFF}")
        a("s_lshl_b32 s55, s27, 15")
        a(f"s_mov_b32 s46, {2048*1024}"); a("s_mov_b32 s47, 0x20000")
        self.x_pass1(None, None, "start", None, None, None)
        a(f"s_mov_b32 s14, {2048*1024}"); a("s_mov_b32 s15, 0x20000")
        a("s_lshr_b32 s50, s6, 1"); a("s_and_b32 s51, s6, 1")
        a("s_lshl_b32 s48, s18, 1"); a("s_add_u32 s48, s48, s50"); a("s_mov_b32 s52, s48")
        a("s_lshl_b32 s40, s16, 2"); a("s_add_u32 s48, s48, s40")
        a("s_lshl_b32 s49, s19, 1"); a("s_add_u32 s49, s49, s51")
        a("s_lshl_b32 s53, s48, 15"); a("s_lshl_b32 s40, s49, 11"); a("s_add_u32 s53, s53, s40")
        a("s_lshl_b32 s54, s48, 12"); a("s_lshr_b32 s40, s49, 2"); a("s_lshl_b32 s40, s40, 10"); a("s_add_u32 s54, s54, s40")
        a("s_and_b32 s40, s49, 3"); a("s_lshl_b32 s40, s40, 2"); a("s_add_u32 s54, s54, s40")
        a(f"v_mov_b32 v{V_F0}, v{V_LANE16}"); a(f"v_add_u32 v{V_F0+1}, 0x10000, v{V_LANE16}")
        self.tr_addr16(V_TQ, 106, 107); a(f"v_add_u32 v{V_TQ+1}, 0x10000, v{V_TQ}")
        a(f"v_lshlrev_b32 v{V_FW}, 10, v105"); a("v_bfe_u32 v106, v2, 2, 2"); a(f"v_lshl_add_u32 v{V_FW}, v106, 7, v{V_FW}")
        a("v_bfe_u32 v106, v2, 3, 1"); a("v_xor_b32 v106, s51, v106"); a(f"v_lshl_add_u32 v{V_FW}, v106, 6, v{V_FW}")
        a(f"v_and_b32 v106, 63, v{V_TQ}"); a(f"v_add_u32 v{V_FW}, v106, v{V_FW}")
        a("s_lshl_b32 s40, s51, 11"); a(f"v_add_u32 v{V_FW}, s40, v{V_FW}")
        a(f"v_add_u32 v{V_FW+1}, 0x10000, v{V_FW}"); a(f"v_add_u32 v{V_FW+2}, 0x20000, v{V_FW}")
        a("v_bfe_u32 v106, v2, 1, 3"); a("v_and_b32 v107, 1, v2"); a("v_and_b32 v108, 7, v2")
        a("s_lshl_b32 s40, s50, 8"); a("s_lshl_b32 s41, s51, 3"); a("s_add_u32 s40, s40, s41")
        a(f"v_lshlrev_b32 v{V_PX}, 5, v106"); a(f"v_lshl_add_u32 v{V_PX}, v107, 2, v{V_PX}"); a(f"v_add_u32 v{V_PX}, s40, v{V_PX}")
        a("s_lshl_b32 s40, s51, 8"); a("s_lshl_b32 s41, s52, 2"); a("s_add_u32 s40, s40, s41")
        a(f"v_lshlrev_b32 v{V_PH}, 5, v108"); a(f"v_add_u32 v{V_PH}, s40, v{V_PH}")
        a(f"v_lshlrev_b32 v{V_AUGA}, 3, v104"); a(f"v_add_u32 v{V_AUGA}, {L_AUG}, v{V_AUGA}")
        a(f"v_mov_b32 v{V_XAUG+2}, 0"); a(f"v_mov_b32 v{V_XAUG+3}, 0")
        for r in range(WR, WR + 32, 4): a(f"v_mov_b32 v{r+2}, 0") if False else None
        a("v_cmp_gt_u32 s[62:63], 32, v2")
        a("v_lshlrev_b32 v106, 3, v105"); a("v_sub_u32 v106, v104, v106")
        a("s_mov_b64 s[12:13], s[78:79]")
        if OPT["stamp"]: a(f"v_writelane_b32 v{V_TS}, s100, 31")
        for r in range(16): a(f"v_cmp_le_i32 s[{64+2*r}:{65+2*r}], {16*(r>>3) + (r&7)}, v106")
        a(f"v_and_b32 v{V_FA}, 3, v2"); a(f"v_lshlrev_b32 v{V_FA}, 2, v{V_FA}"); a(f"v_add_u32 v{V_FA}, {L_HL}, v{V_FA}")
        self.stamp(0)
        ftq = [V_TQ, V_TQ + 1]
        self.wc = 0
        steps = self.x_pass1(None, None, True, lambda w, t, kc: self.rdtr(w, ftq, (RK, RV)[t] + kc*KB, 256, f"kv{kc//8}" if (t == 0 and kc % 8 == 0) else None, "kv" if (t == 1 and kc == 31) else None), [1, 2], "augkv")
        self.stream(steps, look=8)
        a(f"v_mov_b32 v{V_TMP}, {L_TAG}"); a(f"ds_read_b64 {vr(V_EP,2)}, v{V_TMP}"); a("s_waitcnt lgkmcnt(0)")
        a(f"v_readfirstlane_b32 s4, v{V_EP}"); a(f"v_readfirstlane_b32 s5, v{V_EP+1}")
        a("s_branch L_c_go")
        a("L_c_loop:")
        self.stamp(0)
        self.poll2(V_PX, "s26", "s57"); vm.q = []
        self.stamp(1)
        def xl(kc):
            if kc % 4 == 0: a(f"s_add_u32 s43, s55, {kc*KB}")
            a(f"buffer_load_dwordx4 {vr(XR+4*kc,4)}, v{V_LANE16}, s[8:11], s43 offen offset:{(kc%4)*KB} sc1")
        self.wc = 0
        steps = self.x_pass1(xl, "s56", False, lambda w, t, kc: self.rdtr(w, ftq, (RK, RV)[t] + kc*KB, 256, "nkv" if (t == 0 and kc == 0) else None,
                                                                          {(1, OPT.get("b1x", 22)): "x", (1, 31): "kv"}.get((t, kc)), HV["nkv"]), [1, 2], None)
        self.stream(steps, look=10)
        a("L_c_go:")
        if OPT["fine"]: self.stamp(14)
        steps = []
        korder = [19, 20, 21, 22, 2, 3, 4, 5, 6, 7, 9, 10] + [k for k in range(32) if k not in (19, 20, 21, 22, 2, 3, 4, 5, 6, 7, 9, 10)]
        for n, kc in enumerate(korder):
            w = self.wreg()
            steps.append(dict(reads=self.rdtr(w, ftq, RQ + kc*KB, 256),
                              mf=f"{MF} {vr(ACC[2],16)}, {vr(w,4)}, {vr(XR+4*kc,4)}, {'0' if n == 0 else vr(ACC[2],16)}"))
        self.gate_rd("H")
        steps.append(None)
        VC8 = ACC[3]; VCK = ACC[3] + 2
        a("s_lshl_b32 s58, s27, 4"); a("s_add_u32 s58, s58, s17"); a(f"s_mul_i32 s58, s58, {7*KB}"); a(f"s_add_u32 s58, s58, {HF + 2*KB}")
        if OPT.get("kv2"): a(f"s_mul_i32 s40, s22, {8*MB}"); a("s_add_u32 s58, s58, s40")
        a(f"s_add_u32 s40, s25, {LK + 8*KB}"); a(f"v_add_u32 v{V_OUT}, s40, v{V_LANE16}")
        a(f"v_lshlrev_b32 v{VC8}, 3, v2"); a(f"v_add_u32 v{VC8}, 4096, v{VC8}"); a(f"v_mov_b32 v{VCK}, s4"); a(f"v_mov_b32 v{VCK+1}, s5")
        def xor16(dst, regs):
            for n in range(0, 16, 2): self.a(f"v_bitop3_b32 v{dst}, v{dst}, v{regs[n]}, v{regs[n+1]} bitop3:0x96")
        F = []
        for t in range(2):
            A0 = ACC[t]
            for hh in range(2):
                F += [f"v_mul_f32 v{A0+r}, v{V_RSTD}, v{A0+r}" for r in range(8*hh, 8*hh + 8)]
                F += [f"v_cvt_pk_bf16_f32 v{A0+r}, v{A0+2*r}, v{A0+2*r+1}" for r in range(4*hh, 4*hh + 4)]
                F += [f"buffer_store_dwordx4 {vr(A0+4*hh,4)}, v{V_LANE16}, s[8:11], s58 offen offset:{(2*t + hh)*KB} sc1"]
                F += [f"v_bitop3_b32 v{VCK}, v{VCK}, v{A0+4*hh+n}, v{A0+4*hh+n+1} bitop3:0x96" for n in (0, 2)]
        F.append(f"buffer_store_dwordx2 {vr(VCK,2)}, v{VC8}, s[8:11], s58 offen sc1")
        NE = OPT.get("ne", 61)
        for x in F[:15]: a(x)
        a("s_waitcnt lgkmcnt(0)"); self.gate_cmp("wq")
        late = self.lab(); join = self.lab()
        a("s_cmp_eq_u64 s[30:31], 0"); a(f"s_cbranch_scc1 {join}")
        for x in F[15:]: a(x)
        self.gate_br("H")
        a("s_mov_b64 s[30:31], -1")
        a(f"{join}:")
        def rest():
            l = self.lab()
            a("s_cmp_lg_u64 s[30:31], 0"); a(f"s_cbranch_scc1 {l}")
            for x in EP2: a(x)
            a(f"{l}:")
        EP2 = F[15:]; F = []
        steps[0]["pre"] = [rest]
        if OPT["fine"] > 2: self.stamp(24)
        def lds(x):
            def f(): a(x); self._q.append(("u", id(f)))
            return f
        for hh in range(2):
            F.append(lds(f"ds_write_b128 v{V_OUT}, {vr(ACC[0]+4*hh,4)} offset:{hh*HS}"))
            F.append(lds(f"ds_write_b128 v{V_OUT}, {vr(ACC[1]+4*hh,4)} offset:{12*KB + hh*HS}"))
        r, SL = self.attention()
        F += [f"v_mov_b32 v{V_EP}, {L_MODE}", lds(f"ds_read_b32 v{V_EP}, v{V_EP}"), f"v_mul_f32 v{V_C1}, {f32(0.25*LOG2E)}, v{V_RSTD}"]
        F += SL[:10] + [lds(f"ds_read_b128 {vr(r['KF']+32,4)}, v{r['KA']} offset:{8*KB}"), lds(f"ds_read_b128 {vr(r['KF']+28,4)}, v{r['KA']} offset:{HS + 8*KB}")] + SL[10:]
        HB = [XR + 8, XR + 76]; HC = [XR + 24, XR + 26]; HO = XR + 28
        for d, sr_ in ((1, 28), (2, 29)):
            a(f"s_sub_u32 s{sr_}, s58, {4*d*112*KB}"); a(f"s_cmp_ge_u32 s16, {d}"); a(f"s_cselect_b32 s{sr_}, s{sr_}, 0x7ff00000"); a(f"s_cselect_b32 s{31+d}, -1, 0")
        HL = []
        for n in range(2):
            HL += [f"buffer_load_dwordx4 {vr(HB[n]+4*p,4)}, v{V_LANE16}, s[8:11], s{28+n} offen offset:{p*KB} sc1" for p in range(4)]
            HL.append(f"buffer_load_dwordx2 {vr(HC[n],2)}, v{HO}, s[8:11], s{28+n} offen sc1")
        def halo_ld():
            for x in HL: self.a(x)
        def fill(i):
            out = []
            h0 = OPT.get("hld", 22); k = i - h0
            for _ in range(OPT.get("f2", 4) - (2 if 0 <= k < 10 else 0)):
                if F and not (i < 12 and callable(F[0]) and len(F) <= len(SL) - 10 + 2): out.append(F.pop(0))
            if k == 0: out.append(f"v_mov_b32 v{HO}, v{VC8}")
            if 0 <= k < 10: out.append(HL[k])
            return out
        steps[31]["reads"][1]["pub"] = "q"
        XQ = ACC[3] + 4; wq_ = self.wreg()
        steps[-1] = dict(reads=[dict(op="ds_read_b128", d=wq_, fam=V_EP + 1, off=0, gate="augq")], mf=f"{MF} {vr(ACC[2],16)}, {vr(wq_,4)}, {vr(XQ,4)}, {vr(ACC[2],16)}")
        F[4:4] = [f"v_add_u32 v{V_EP+1}, {L_QB}, v{V_LANE16}", f"v_mov_b32 v{XQ}, v{V_XAUG}", f"v_mov_b32 v{XQ+1}, v{V_XAUG+1}", f"v_mov_b32 v{XQ+2}, v{V_XAUG}", f"v_mov_b32 v{XQ+3}, v{V_XAUG+1}",
                  f"v_permlane32_swap_b32 v{XQ}, v{XQ+2}", f"v_permlane32_swap_b32 v{XQ+1}, v{XQ+3}", f"s_nop 0\nv_mov_b32 v{XQ+2}, v{XQ}", f"v_mov_b32 v{XQ+3}, v{XQ+1}"]
        self.stream(steps, look=8, fill=fill)
        for x in F: self.emit(x)
        a("s_waitcnt lgkmcnt(0)")
        a(f"v_readfirstlane_b32 s21, v{V_EP}")
        a(f"s_mul_i32 s34, s21, {ALS}"); a("s_add_u32 s34, s34, s35")
        a(f"s_sub_u32 s37, s58, {2*KB}"); a("s_add_u32 s37, s37, s34")
        if OPT.get("kv2"): a(f"s_mul_i32 s40, s22, {8*MB}"); a("s_sub_u32 s37, s37, s40")
        a(f"s_mul_i32 s60, s48, {112*KB}"); a(f"s_mul_i32 s40, s51, {56*KB}"); a("s_add_u32 s60, s60, s40"); a(f"s_add_u32 s60, s60, {OF}"); a("s_add_u32 s60, s60, s34")
        self.stamp(2)
        for r_ in range(16): a(f"v_mul_f32 v{ACC[2]+r_}, v{V_C1}, v{ACC[2]+r_}")
        for r_ in range(8): a(f"v_cvt_pk_bf16_f32 v{XR+r_}, v{ACC[2]+2*r_}, v{ACC[2]+2*r_+1}")
        def halo_k(mid):
            mid()
            l = self.lab(); ok = self.lab()
            a("s_mov_b32 s41, 0")
            a(f"{l}:")
            a("s_waitcnt vmcnt(0)")
            for n in range(2):
                xor16(HC[n], [HB[n] + r for r in range(16)])
                a(f"v_xor_b32 v{HC[n]}, s4, v{HC[n]}"); a(f"v_xor_b32 v{HC[n]+1}, s5, v{HC[n]+1}")
                a(f"v_or_b32 v{HC[n]}, v{HC[n]}, v{HC[n]+1}"); a(f"v_and_b32 v{HC[n]}, s{32+n}, v{HC[n]}")
            a(f"v_or_b32 v{HC[0]}, v{HC[0]}, v{HC[1]}"); a(f"v_cmp_ne_u32 vcc, 0, v{HC[0]}"); a(f"s_cbranch_vccz {ok}")
            a("s_add_u32 s41, s41, 1"); a(f"s_cmp_gt_u32 s41, {OPT['spin']}"); a(f"s_cbranch_scc1 {ok}")
            halo_ld(); a(f"s_branch {l}"); a.pending.pop(l, None)
            a(f"{ok}:"); vm.q = []
            if OPT["fine"] > 2: self.stamp(25)
            a(f"v_subrev_u32 v{V_OUT}, {8*KB}, v{V_OUT}")
            for p in (0, 2, 1, 3):
                for n in range(2): a(f"ds_write_b128 v{V_OUT}, {vr(HB[n]+4*p,4)} offset:{(p&1)*HS + (p>>1)*12*KB + (4 - 4*n)*KB}")
            self.pub("hl")
            a("s_lshl_b32 s36, s16, 11"); a("s_lshl_b32 s41, s17, 7"); a("s_add_u32 s36, s36, s41"); a("s_lshl_b32 s41, s6, 2"); a("s_add_u32 s36, s36, s41"); a(f"s_add_u32 s36, s36, {KVFL}")
            a("s_add_u32 s41, s22, 1"); a(f"v_mov_b32 v{V_TMP}, s41")
            a("s_mov_b64 exec, 1"); a(f"buffer_store_dword v{V_TMP}, off, s[8:11], s36 sc1"); a("s_mov_b64 exec, -1")
            self.stamp(3)
        def after_k():
            l = self.lab()
            a("s_cmp_lg_u32 s22, 0"); a(f"s_cbranch_scc1 {l}")
            a("s_lshl_b32 s40, s48, 15"); a("s_lshl_b32 s41, s49, 6"); a("s_add_u32 s40, s40, s41")
            a(f"buffer_load_dwordx4 {vr(V_RES,4)}, v{V_XOFF}, s[44:47], s40 offen")
            a(f"buffer_load_dwordx4 {vr(V_RES+4,4)}, v{V_XOFF}, s[44:47], s40 offen offset:32")
            a(f"{l}:")
        oreg = lambda s: XR + 8 + 4 * s
        def al_o(s):
            a = self.a
            a(f"s_add_u32 s43, s60, {(s % 8)*7*KB}")
            a(f"buffer_load_dwordx4 {vr(oreg(s),4)}, v{V_LANE16}, s[8:11], s43 offen offset:{(s >> 3)*KB} sc1"); vm.issue(f"a{s}")
        def early_a():
            for s_ in range(8): al_o(s_)
        def redo_a(a2):
            a2(f"s_add_u32 s61, s23, {F_O1}"); self.poll(V_PH, "s26", "s61")
            for s_ in range(8): al_o(s_)
        self.attention_run(r, halo_k, after_k, early_a, redo_a)
        self.stamp(4)
        a(f"s_add_u32 s58, s53, {XA}"); a("s_add_u32 s58, s58, s35"); a(f"s_add_u32 s59, s54, {STA}"); a("s_add_u32 s59, s59, s35")
        def h_o(upto):
            self.check(V_PH, F_O2); self.stamp(5); upto(16)
            if OPT.get("wo1l", 1): self.pub("wo1"); self._q.append(("w1", 0))
        self.res_gemm(16, lambda s: RK + s*4*KB, oreg, al_o, 8, 0, {0: "wo"}, {} if OPT.get("wo1l", 1) else {7: "wo1"}, XCH_WO, "wo", (6, "att"),
                      hooks={OPT.get("opeek", 2): lambda u: self.peek(V_PH), 8: h_o})
        self.pub("xr")
        self.x_store("s58", "s59", F_X1)
        self.stamp(6)
        a(f"s_mul_i32 s60, s27, {112*KB}"); a(f"s_mul_i32 s40, s17, {7*KB}"); a("s_add_u32 s60, s60, s40"); a(f"s_add_u32 s60, s60, {HF}"); a("s_add_u32 s60, s60, s35")
        a("s_lshl_b32 s58, s27, 15"); a(f"s_add_u32 s58, s58, {XA}"); a("s_add_u32 s58, s58, s35")
        a("s_lshl_b32 s59, s27, 12"); a(f"s_add_u32 s59, s59, {STA}"); a("s_add_u32 s59, s59, s35")
        a(f"s_mul_i32 s29, s48, {112*KB}"); a(f"s_mul_i32 s40, s51, {56*KB}"); a("s_add_u32 s29, s29, s40"); a(f"s_add_u32 s29, s29, {HF}"); a("s_add_u32 s29, s29, s35")
        a(f"s_add_u32 s61, s23, {F_X1}")
        self.poll2(V_PX, "s26", "s61"); vm.q = []
        self.stamp(7)
        def xl2(kc):
            if kc % 4 == 0: a(f"s_add_u32 s43, s58, {kc*KB}")
            a(f"buffer_load_dwordx4 {vr(XR+4*kc,4)}, v{V_LANE16}, s[8:11], s43 offen offset:{(kc%4)*KB} sc1")
        self.wc = 0; self.wr = 104; self.nw = 6
        steps = self.x_pass1(xl2, "s59", False, lambda w, t, kc: self.rd128(w, GU_REG[t] + kc*KB, f"t2_{kc//8}" if (t == 0 and kc % 8 == 0 and (kc == 0 or not OPT.get("t2e", 1))) else None, f"g{kc+1}" if (t == 2 and kc % 8 == 7) else None), [3, 4, 5], None, NT=3)
        self.pub("xch")
        done = {t: len(steps) - 3 + t for t in range(3)}; start = {}
        accof = {t: ACC[t % 4] for t in range(7)}
        for t in range(3, 7):
            start[t] = len(steps)
            for kc in range(32):
                w = self.wreg()
                steps.append(dict(reads=self.rd128(w, GU_REG[t] + kc*KB, f"t{t}" if kc == 0 else None, f"t{t}" if kc == 31 else None),
                                  mf=f"{MF} {vr(accof[t],16)}, {vr(w,4)}, {vr(XR+4*kc,4)}, {'0' if kc == 0 else vr(accof[t],16)}", pair=(kc % 2 == 0 and OPT.get("pair", 1))))
            steps.append(self.aug_step(accof[t], 3 + t))
            done[t] = len(steps) - 1
        def epi(t):
            A0 = accof[t]; L = []
            if OPT.get("x_nofill"): return [lambda: (a(f"s_add_u32 s43, s60, {t*KB}"), self.store(f"buffer_store_dwordx4 {vr(V_EP,4)}, v{V_LANE16}, s[8:11], s43 offen", f"h{t}"))]
            L += [f"v_mul_f32 v{A0+r}, v{V_C1}, v{A0+r}" for r in range(8)]
            L += [f"v_exp_f32 v{A0+r}, v{A0+r}" for r in range(8)]
            L += [f"v_fma_f32 v{A0+r}, v{A0+r}, v{V_STD}, v{V_STD}" for r in range(8)]
            L += [f"v_rcp_f32 v{A0+r}, v{A0+r}" for r in range(8)]
            L += [f"v_mul_f32 v{A0+r}, v{A0+r}, v{A0+8+r}" for r in range(8)]
            L += [f"v_cvt_pk_bf16_f32 v{V_EP+r}, v{A0+2*r}, v{A0+2*r+1}" for r in range(4)]
            L += [lambda: (a(f"s_add_u32 s43, s60, {t*KB}"), self.store(f"buffer_store_dwordx4 {vr(V_EP,4)}, v{V_LANE16}, s[8:11], s43 offen", f"h{t}"))]
            return L
        hreg = lambda s: XR + 4 * (s % 32)
        def al_h(s):
            t, i = s // 8, s % 8
            if OPT.get("x_noh") and s >= 16: return
            if OPT.get("x_sameh"): t, i = 0, s % 2
            a(f"s_add_u32 s43, s29, {(7*i + t)*KB}"); a(f"buffer_load_dwordx4 {vr(hreg(s),4)}, v{V_LANE16}, s[8:11], s43 offen sc1"); vm.issue(f"a{s}")
        NP = OPT.get("np", 16)
        queue = []; flag_at = {}; T1 = OPT.get('t1', 3)
        def fill2(i):
            for t in range(7):
                if done[t] + 2 == i: queue.extend((x, t) for x in epi(t))
            out = []
            if i == 70:
                def pk2():
                    a(f"v_and_b32 v{V_EP}, 1, v2"); a(f"v_add_u32 v{V_EP}, 1, v{V_EP}"); a("s_sub_u32 s40, 15, s16"); a(f"v_min_u32 v{V_EP}, s40, v{V_EP}"); a(f"v_lshlrev_b32 v{V_EP}, 11, v{V_EP}")
                    a(f"buffer_load_dword v{V_OUT}, v{V_EP}, s[8:11], s36 offen sc1"); vm.issue("pk")
                out.append(pk2)
            if i == done[2] + 4:
                def ck2():
                    d = self.lab()
                    a("s_add_u32 s61, s22, 1"); vm.wait("pk")
                    a(f"v_cmp_gt_u32 vcc, s61, v{V_OUT}"); a(f"s_cbranch_vccz {d}")
                    self.poll(V_EP, "s36", "s61"); a(f"{d}:")
                out.append(ck2)
            if OPT["fine"] and i == done[2]: self.pend_stamp = 12
            if OPT["fine"] and i == done[4]: self.pend_stamp = 13
            for t2, sidx in start.items():
                if sidx == i + 1 and t2 >= 4:
                    while queue and queue[0][1] <= t2 - 4: out.append(queue.pop(0)[0])
            cost = 0; lim = OPT.get("fillc", 3)
            while queue and cost < lim:
                x, t = queue.pop(0); out.append(x)
                cost += 3 if callable(x) else 2 if x.startswith(("v_exp", "v_rcp")) else 1
                if callable(x) and t == T1: flag_at[i + OPT.get("fld", 13)] = (F_H1, t)
                if callable(x) and t == 4 and T1 == 2: flag_at[min(i + OPT.get("fld", 13), len(steps) - 1)] = (8, t)
            if i in flag_at: out.append(lambda v=flag_at[i]: self.flag(v[0], f"h{v[1]}"))
            k6 = i - start[6]
            if k6 == 31 - NP - 14: out.append(lambda: self.peek(V_PH))
            if k6 == 31 - NP: out.append(lambda: self.check(V_PH, F_H1))
            if 31 - NP < k6 <= 31: out.append(lambda s_=k6 - (32 - NP): al_h(s_))
            return out
        self.stream(steps, look=4, fill=fill2)
        assert flag_at and min(flag_at) < start[6], (flag_at, start)
        for x, _ in queue: self.emit(x)
        for x in epi(6): self.emit(x)
        self.stamp(8)
        a(f"s_add_u32 s58, s53, {XB}"); a("s_add_u32 s58, s58, s34"); a(f"s_add_u32 s59, s54, {STB}"); a("s_add_u32 s59, s59, s34")
        PD = OPT.get("pd", 14)
        hooks = {OPT.get("hflag", 5): lambda u: self.flag(F_H2, "h6"), 32 - PD - 8: lambda u: self.peek(V_PH), 32 - PD - 1: lambda u: self.check(V_PH, F_H2)}
        if T1 == 2:
            hooks = {OPT.get("hflag", 5): lambda u: self.flag(F_H2, "h6"), 24 - PD - 7: lambda u: self.peek(V_PH), 24 - PD - 1: lambda u: self.check(V_PH, 8),
                     40 - PD - 8: lambda u: self.peek(V_PH), 40 - PD - 1: lambda u: self.check(V_PH, F_H2)}
            assert len(hooks) == 5
        self.res_gemm(56, wd_slot, hreg, al_h, NP, PD, {s: f"w{s}" for s in DG}, {s - 1: f"d{s}" for s in DP},
                      XCH_DN, "dx", (52, "d43"), hooks=hooks)
        self.stamp(10)
        a("s_cmp_lg_u32 s22, 0"); a("s_cbranch_scc1 L_c_final")
        self.x_store("s58", "s59", F_X2)
        a("s_lshl_b32 s55, s27, 15"); a(f"s_add_u32 s55, s55, {XB}"); a("s_add_u32 s55, s55, s34")
        a("s_lshl_b32 s56, s27, 12"); a(f"s_add_u32 s56, s56, {STB}"); a("s_add_u32 s56, s56, s34")
        a(f"s_mov_b32 s57, {F_X2}")
        self.next_iter()
        a.fence()
        a("s_branch L_c_loop")
        a("L_c_final:")
        a("s_lshl_b32 s40, s48, 15"); a("s_lshl_b32 s41, s49, 6"); a("s_add_u32 s40, s40, s41")
        a(f"buffer_store_dwordx4 {vr(V_RES,4)}, v{V_XOFF}, s[12:15], s40 offen{['', ' sc1', ' nt', ' sc0 sc1'][OPT.get('osc', 0)]}")
        a(f"buffer_store_dwordx4 {vr(V_RES+4,4)}, v{V_XOFF}, s[12:15], s40 offen offset:32{['', ' sc1', ' nt', ' sc0 sc1'][OPT.get('osc', 0)]}")
        self.finish()

    def next_iter(self):
        a = self.a
        a("s_mov_b32 s22, 1"); a("s_mov_b32 s23, 16"); a("s_mov_b32 s7, 64"); a("s_add_u32 s4, s4, 1"); a(f"v_mov_b32 v{V_BASE}, 64")
        a(f"s_mul_i32 s35, s21, {ITS}")
    def finish(self):
        a = self.a
        if OPT["stamp"]:
            a("s_waitcnt vmcnt(0)")
            self.stamp(11)
            a("s_lshl_b32 s40, s2, 12"); a("s_lshl_b32 s41, s3, 9"); a("s_add_u32 s40, s40, s41"); a(f"s_add_u32 s40, s40, {TS}")
            if OPT.get("dbgout") and self.role == "C":
                l = self.lab()
                a("s_lshl_b32 s41, s2, 3"); a("s_add_u32 s41, s41, s3"); a(f"s_cmp_lg_u32 s41, {OPT['dbgout']*8}"); a(f"s_cbranch_scc1 {l}")
                a("s_load_dwordx2 s[44:45], s[0:1], 64"); a("s_mov_b32 s46, 256"); a("s_mov_b32 s47, 0x20000")
                a(f"v_readlane_b32 s42, v{V_TS}, 31"); a("v_mov_b32 v41, 0")
                for n, idx in enumerate([0, 14, 3, 4, 7, 8, 10, 32+1, 32+14, 32+3, 32+4, 32+7, 32+8, 32+11]):
                    a(f"v_readlane_b32 s43, v{V_TS}, {idx}"); a("s_sub_u32 s43, s43, s42"); a("s_nop 3"); a(f"v_writelane_b32 v41, s43, {n}")
                a("v_lshlrev_b32 v40, 2, v2"); a("s_waitcnt lgkmcnt(0)"); a("s_mov_b64 exec, 0x3fff")
                a("buffer_store_dword v41, v40, s[44:47], 0 offen offset:8"); a("s_mov_b64 exec, -1")
                a(f"{l}:")
            a("v_lshlrev_b32 v40, 2, v2")
            a(f"buffer_store_dword v{V_TS}, v40, s[8:11], s40 offen"); a(f"buffer_store_dword v{V_TS2}, v40, s[8:11], s40 offen offset:256")
        a("s_endpgm")

    def helper(self):
        a = self.a; self.role = "H"; vm = VM(a)
        HV_QKV = 16; HV_ROW0 = 17; HV_OOB = 18; HV_PK = 19; HV_W = 20; HV_R128 = 23; HV_TQ = 24; HT = 26
        SQ, SO, SD, SG, SX, SDBG = "s[44:47]", "s[48:51]", "s[52:55]", "s[56:59]", "s[60:63]", "s[12:15]"
        HF_ = 25
        W = OPT.get("win", 8)
        st = dict(it=0); outq = []; sigs = []
        cnt = dict(issued=0, done=0)
        def hpub_txt(name):
            self.seen.add(("H", name))
            return [f"v_mov_b32 v{V_TMP}, {64*st['it'] + HV[name]}", f"ds_max_u32 v{V_PUBA}, v{V_TMP}"]
        def hpub(name):
            for x in hpub_txt(name): a(x)
        def retire(n):
            if n > cnt["done"]:
                k = cnt["issued"] - n; assert 0 <= k <= 63
                if cnt.get("ghost") and n <= cnt["ghost"][0]:
                    l = self.lab()
                    a(f"s_waitcnt vmcnt({k + cnt['ghost'][1]})"); a("s_cmp_lg_u32 s87, 0"); a(f"s_cbranch_scc1 {l}"); a(f"s_waitcnt vmcnt({k})"); a(f"{l}:")
                else: a(f"s_waitcnt vmcnt({k})")
                cnt["done"] = n
            last = None
            while sigs and sigs[0][1] <= cnt["done"]: last = sigs.pop(0)[0]; self.seen.add(("H", last))
            if last: hpub(last)
        def op(win=None):
            cnt["issued"] += 1
            retire(max(cnt["done"], cnt["issued"] - (W if win is None else win)))
        def sig(name):
            sigs.append((name, cnt["issued"])); retire(cnt["done"])
        def flush():
            while sigs: retire(sigs[0][1])
        def drain():
            retire(cnt["issued"])
        def need(name, src="C", it=None):
            l1 = self.lab(); l2 = self.lab(); l3 = self.lab()
            val = 64 * (st["it"] if it is None else it) + (CV if src == "C" else HV)[name]
            rd = f"ds_read_b32 v{V_FLG}, v{HF_} offset:{16 if src == 'C' else 0}"
            a(rd); a("s_waitcnt lgkmcnt(0)"); a(f"s_movk_i32 s39, {val}"); a(f"v_cmp_gt_u32 vcc, s39, v{V_FLG}"); a(f"s_cbranch_vccz {l2}")
            for nm, n in sigs:
                a(f"s_waitcnt vmcnt({cnt['issued'] - n})")
                for x in hpub_txt(nm): a(x)
            a(f"{l3}:"); a(f"s_sleep {OPT.get('hsl', 1)}"); a("s_add_u32 s38, s38, 1"); a(f"s_cmp_gt_u32 s38, {OPT['spin']*16}"); a(f"s_cbranch_scc1 {l2}")
            a(rd); a("s_waitcnt lgkmcnt(0)"); a(f"v_cmp_gt_u32 vcc, s39, v{V_FLG}"); a(f"s_cbranch_vccnz {l3}")
            a.pending.pop(l3, None)
            a(f"{l2}:")
            self.used.add((src, name))
        spq = []
        def tile(t, gs=range(8)):
            for g in gs: self.dma("s29", t*32*KB + g*4*KB, GU_REG[t] + g*4*KB, fl="" if OPT.get("wplain") else " sc1"); op()
        def wqkv(which, gs, win=None):
            for g in gs:
                a(f"s_add_u32 s41, s30, {4*g}"); a("s_and_b32 s41, s41, 31"); a("s_mul_i32 s41, s41, 49152"); a("s_add_u32 s41, s41, s31")
                for ci, reg in which:
                    self.dma("s41", ci*1024, reg + g*4*KB, voff=HV_QKV, srd=SQ)
                    if spq and g >= 2 and OPT.get("scoop", 4) in (1, 4):
                        def f():
                            for _ in range(OPT.get("scn", 2)):
                                if spq: a(spq.pop(0))
                        only(["s_cmp_lt_u32 s80, 2"], f)
                    op(win)
                if len(which) == 2 and g % 2 == 1: sig(f"kv{g//2}")
        def wqp(which, gs):
            for g in gs:
                for ci, reg in which: self.dma("s34", ci*32*KB + g*4*KB, reg + g*4*KB, fl="" if OPT.get("wplain") else " sc1"); op()
        WK = (1, RK); WV = (2, RV); WQ = (0, RQ)
        st_next = [0]; st_idx = {}
        def stash(n):
            for _ in range(n):
                s_ = st_next[0]
                if s_ >= 56: break
                t, i = s_ // 8, s_ % 8
                a(f"s_add_u32 s40, s33, {(7*i + t)*16*KB}")
                a(f"buffer_load_dwordx4 {vr(STASH+4*s_,4)}, v{HV_R128}, {SD}, s40 offen"); op(); st_idx[s_] = cnt["issued"]
                st_next[0] += 1
        def wdw(steps):
            for s_ in steps:
                if s_ >= 56: break
                retire(max(cnt["done"], st_idx[s_]))
                if OPT.get("x_nowdw"): continue
                o = wd_slot(s_)
                a(f"ds_write_b128 v{HV_W + (o >> 16)}, {vr(STASH+4*s_,4)} offset:{o & 0xffff}")
                if OPT.get("wpace"): a("s_waitcnt lgkmcnt(0)")
        def only(cond_lines, fn):
            l = self.lab()
            for c in cond_lines: a(c)
            a(f"s_cbranch_scc0 {l}"); fn(); a(f"{l}:")
        a(f"v_lshrrev_b32 v{HT}, 2, v2"); a(f"v_mul_u32_u24 v{HV_QKV}, 3072, v{HT}"); a(f"v_and_b32 v{HT}, 3, v2"); a(f"v_lshl_add_u32 v{HV_QKV}, v{HT}, 4, v{HV_QKV}")
        a("s_add_u32 s30, s28, s6"); a("s_lshl_b32 s31, s17, 6")
        a(f"s_mov_b32 s46, {512*3072}"); a("s_mov_b32 s47, 0x20000")
        a("s_mov_b64 s[44:45], s[66:67]")
        if OPT["stamp"]: a(f"v_writelane_b32 v{V_TS}, s100, 31")
        a("s_mul_i32 s83, s2, 9363"); a("s_lshr_b32 s83, s83, 18")
        a("s_mul_i32 s40, s83, 28"); a("s_sub_u32 s84, s2, s40")
        a("s_mul_i32 s40, s84, 37"); a("s_lshr_b32 s40, s40, 8"); a("s_mul_i32 s41, s40, 7"); a("s_sub_u32 s41, s84, s41")
        a("s_lshl_b32 s41, s41, 3"); a("s_add_u32 s41, s41, s83"); a("s_lshl_b32 s40, s40, 6"); a("s_add_u32 s40, s40, s41"); a("s_lshl_b32 s40, s40, 3"); a(f"s_add_u32 s88, s40, {RF}")
        a("s_cmp_lt_u32 s2, 224"); a("s_cselect_b32 s88, s88, 0x7ff00000")
        a("s_lshl_b32 s89, s17, 8"); a("s_lshl_b32 s40, s16, 4"); a("s_add_u32 s89, s89, s40"); a(f"s_add_u32 s89, s89, {PFL}")
        def zero():
            def nonce():
                a("s_memrealtime s[42:43]"); a("s_mov_b64 s[12:13], s[70:71]"); a("s_mov_b32 s14, 256"); a("s_mov_b32 s15, 0x20000"); a("s_waitcnt lgkmcnt(0)")
                a("s_lshl_b64 s[42:43], s[42:43], 3"); a("s_or_b32 s43, s43, 0x80000000")
                a("v_mov_b32 v44, s42"); a("v_mov_b32 v45, s43")
                a("s_mov_b64 exec, 1"); a(f"buffer_store_dwordx2 v[44:45], off, {SDBG}, 0 sc1"); a("s_mov_b64 exec, -1")
            only(["s_cmp_eq_u32 s2, 0"], nonce)
            for r in range(4): a(f"v_mov_b32 v{40+r}, 0")
            a("s_sub_u32 s40, s24, 28")
            a("s_lshl_b32 s81, s16, 11"); a("s_lshl_b32 s41, s17, 7"); a("s_add_u32 s81, s81, s41"); a(f"s_add_u32 s81, s81, {KVFL}")
            a("s_mov_b64 exec, 1")
            a("buffer_store_dwordx4 v[40:43], off, s[8:11], s40 sc1"); a("buffer_store_dwordx4 v[40:43], off, s[8:11], s81 sc1")
            a("buffer_store_dwordx2 v[40:41], off, s[8:11], s88 sc1"); a("buffer_store_dwordx4 v[40:43], off, s[8:11], s89 sc1")
            a("s_mov_b64 exec, -1")
        only(["s_cmp_eq_u32 s6, 3"], zero)
        def codepf():
            a("s_getpc_b64 s[42:43]")
            a.raw("L_pc:")
            a(f"s_sub_u32 s42, s42, L_pc-{NAME}"); a("s_subb_u32 s43, s43, 0")
            a("s_lshr_b32 s40, s2, 3"); a("s_lshl_b32 s40, s40, 11")
            a("v_lshlrev_b32 v40, 7, v2"); a("v_add_u32 v40, s40, v40"); a(f"v_min_u32 v40, L_code_end-{NAME}-4, v40")
            a("v_mov_b32 v41, s43"); a("v_add_co_u32 v40, vcc, s42, v40"); a("v_addc_co_u32 v41, vcc, 0, v41, vcc")
            a("s_mov_b64 exec, 0xffff"); a("global_load_dword v162, v[40:41], off"); a("s_mov_b64 exec, -1")
        if OPT.get("codepf", 1): only(["s_cmp_eq_u32 s6, 2"], codepf)
        def qtouch():
            a(f"v_lshrrev_b32 v{HT}, 3, v2"); a(f"v_mul_u32_u24 v{HT}, 3072, v{HT}"); a(f"v_and_b32 v{HT+1}, 7, v2"); a(f"v_lshl_add_u32 v{HT}, v{HT+1}, 7, v{HT}")
            a("s_mul_i32 s41, s2, 6144"); a("s_mov_b64 exec, 0xffff"); a(f"buffer_load_dword v161, v{HT}, {SQ}, s41 offen"); a("s_mov_b64 exec, -1")
        if not OPT.get("ct0"): only(["s_cmp_eq_u32 s6, 1"], qtouch)
        def c3q():
            a(f"v_and_b32 v{HT}, 15, v2"); a(f"v_mul_u32_u24 v{HT}, 3072, v{HT}"); a(f"v_lshrrev_b32 v{HT+1}, 4, v2"); a(f"v_lshl_add_u32 v{HT}, v{HT+1}, 10, v{HT}")
            a("s_lshr_b32 s41, s2, 3"); a("s_mul_i32 s41, s41, 49152"); a("s_add_u32 s41, s41, 384")
            a("s_mov_b32 exec_hi, 0xffff"); a(f"buffer_load_dword v161, v{HT}, {SQ}, s41 offen"); a("s_mov_b64 exec, -1")
        if OPT.get("c3", 2): only(["s_cmp_eq_u32 s6, 0"], c3q)
        def c3w(srd, n):
            a(f"v_lshlrev_b32 v{HT}, 10, v2"); a("s_lshr_b32 s41, s2, 3"); a(f"s_mul_i32 s41, s41, {n*1024}"); a("s_add_u32 s41, s41, 384")
            m = (1 << n) - 1
            a(f"s_mov_b32 exec_lo, {m & 0xffffffff:#x}"); a(f"s_mov_b32 exec_hi, {m >> 32:#x}"); a(f"buffer_load_dword v31, v{HT}, {srd}, s41 offen"); a("s_mov_b64 exec, -1")
        def tlb():
            st_ = OPT.get("tlbs", 2) * MB // 2
            a("s_mov_b64 s[42:43], s[8:9]")
            for p in range(WS_USED // st_):
                a("s_load_dword s94, s[42:43], 0"); a(f"s_add_u32 s42, s42, {st_}"); a("s_addc_u32 s43, s43, 0")
            for r in (68, 76, 78): a(f"s_load_dword s94, s[{r}:{r+1}], 0")
            a("s_load_dword s94, s[76:77], 0xffff0"); a("s_load_dword s94, s[78:79], 0xffff0")
        wqkv([WK, WV], range(0, 2), win=63)
        if OPT.get("ct0"):
            a(f"v_lshlrev_b32 v{HT}, 7, v2")
            def tw():
                a("s_mul_i32 s41, s2, 6144"); a("s_mov_b32 exec_hi, 0xffff"); a(f"buffer_load_dword v161, v{HT}, {SQ}, s41 offen"); a("s_mov_b64 exec, -1")
            def tx():
                a("s_mov_b64 s[56:57], s[64:65]"); a(f"s_mov_b32 s58, {2048*1024}"); a("s_mov_b32 s59, 0x20000")
                a("s_lshl_b32 s41, s16, 4"); a("s_add_u32 s41, s41, s17"); a("s_lshl_b32 s41, s41, 13"); a(f"buffer_load_dword v161, v{HT}, {SG}, s41 offen")
            only(["s_cmp_eq_u32 s6, 1"], tw); only(["s_cmp_eq_u32 s6, 0"], tx)
        if OPT.get("tlb", 0): only(["s_cmp_eq_u32 s6, 0"], tlb)
        a("s_mov_b64 s[12:13], s[70:71]"); a("s_mov_b32 s14, 256"); a("s_mov_b32 s15, 0x20000")
        a("s_mov_b64 s[48:49], s[68:69]"); a(f"s_mov_b32 s50, {512*1024}"); a("s_mov_b32 s51, 0x20000")
        a("s_mov_b64 s[52:53], s[76:77]"); a(f"s_mov_b32 s54, {1792*1024}"); a("s_mov_b32 s55, 0x20000")
        a(f"v_lshrrev_b32 v{HT}, 3, v2"); a(f"v_bfe_u32 v{HT+1}, v2, 4, 1"); a(f"v_lshlrev_b32 v{HT+1}, 2, v{HT+1}")
        a(f"v_and_b32 v{HT+2}, 7, v2"); a(f"v_xor_b32 v{HT+2}, v{HT+1}, v{HT+2}"); a(f"v_lshlrev_b32 v{HT+2}, 4, v{HT+2}")
        a(f"v_lshl_add_u32 v{HV_R128}, v{HT}, 10, v{HT+2}")
        a(f"v_mul_u32_u24 v{HT+3}, 3584, v{HT}"); a(f"v_add_u32 v{HT+3}, v{HT+3}, v{HT+2}")
        a("s_and_b32 s85, s83, 1"); a("s_lshr_b32 s86, s83, 1")
        if OPT.get("rl2", 0): a("s_add_u32 s80, s6, 3"); a("s_and_b32 s80, s80, 3")
        else: a("s_add_u32 s80, s6, 1"); a("s_cmp_eq_u32 s6, 0"); a("s_cselect_b32 s80, 0, s80"); a("s_cmp_eq_u32 s6, 3"); a("s_cselect_b32 s80, 1, s80")
        a("s_lshl_b32 s86, s86, 1"); a("s_add_u32 s86, s86, s80")
        a("s_cmp_eq_u32 s85, 0"); a("s_cselect_b64 s[56:57], s[72:73], s[74:75]"); a(f"s_mov_b32 s58, {512*3584}"); a("s_mov_b32 s59, 0x20000")
        a("s_cmp_lt_u32 s2, 224"); a("s_cselect_b32 s87, 1, 0"); a("s_cmp_lt_u32 s80, 2"); a("s_cselect_b32 s87, s87, 0")
        def rel_ld():
            a(f"s_mul_i32 s41, s86, {64*3584}"); a("s_lshl_b32 s40, s84, 7"); a("s_add_u32 s41, s41, s40")
            for o in range(8):
                a(f"buffer_load_dwordx4 {vr(128+4*o,4)}, v{HT+3}, {SG}, s41 offen")
                if o < 7: a(f"s_add_u32 s41, s41, {8*3584}")
        if OPT.get("rele"): only(["s_cmp_gt_u32 s87, 0"], rel_ld); cnt["ghost"] = (cnt["issued"], 8)
        def coop():
            a(f"v_lshlrev_b32 v{HT}, 7, v2"); a("s_lshl_b32 s41, s2, 13")
            only(["s_cmp_eq_u32 s6, 1"], lambda: a(f"buffer_load_dword v161, v{HT}, {SD}, s41 offen"))
            a("s_sub_u32 s41, 255, s2"); a("s_lshl_b32 s41, s41, 13")
            if OPT.get("scoop", 4) != 4: only(["s_cmp_eq_u32 s6, 2"], lambda: a(f"buffer_load_dword v161, v{HT}, {SO}, s41 offen"))
        a("s_lshl_b32 s32, s19, 7"); a("s_and_b32 s40, s6, 1"); a("s_lshl_b32 s40, s40, 13"); a("s_add_u32 s32, s32, s40")
        a("s_lshr_b32 s40, s6, 1"); a(f"s_mul_i32 s33, s40, {56*16*KB}"); a("s_add_u32 s33, s33, s32"); a("s_lshl_b32 s40, s40, 18"); a("s_add_u32 s32, s32, s40")
        a(f"s_mul_i32 s34, s17, {96*KB}"); a(f"s_add_u32 s34, s34, {WQP}"); a("s_add_u32 s34, s34, s25")
        a(f"s_mul_i32 s29, s17, {0 if OPT.get('x_samew') else 7*32*KB}"); a(f"s_add_u32 s29, s29, {WGU}"); a("s_add_u32 s29, s29, s25")
        a(f"v_lshrrev_b32 v{HT}, 5, v2"); a(f"v_lshlrev_b32 v{HV_ROW0}, 9, v{HT}")
        a(f"v_mov_b32 v{HV_OOB}, 0x7ff00000")
        a(f"v_and_b32 v{HT}, 1, v2"); a("s_sub_i32 s40, s16, 1"); a(f"v_sub_u32 v{HT}, s40, v{HT}")
        a(f"v_lshlrev_b32 v{HT+1}, 11, v{HT}"); a("s_lshl_b32 s40, s6, 2"); a(f"v_add_u32 v{HT+1}, s40, v{HT+1}")
        a(f"v_cmp_gt_i32 vcc, 0, v{HT}"); a(f"v_cndmask_b32_e64 v{HV_PK}, v{HT+1}, 0, vcc")
        a("s_lshl_b32 s82, s17, 7"); a(f"s_add_u32 s82, s82, {KVFL}")
        a(f"v_add_u32 v{HV_W}, s25, v{V_LANE16}"); a(f"v_add_u32 v{HV_W+1}, 0x10000, v{HV_W}"); a(f"v_add_u32 v{HV_W+2}, 0x20000, v{HV_W}")
        self.tr_addr16(HV_TQ, HT, HT + 1)
        a("s_lshl_b32 s40, s6, 15"); a(f"v_add_u32 v{HV_TQ}, s40, v{HV_TQ}")
        for r in range(4): a(f"v_mov_b32 v{64+r}, s20")
        a("v_mov_b32 v48, s20"); a("v_mov_b32 v49, s20"); a("v_mov_b32 v50, 0"); a("v_mov_b32 v51, 0"); a(f"v_mov_b32 v52, {L_ONES}")
        for o in (0, 64, 256, 320): a(f"ds_write_b128 v52, v[48:51] offset:{o}")
        def colsum(lo, hi, first, HV_TQ=HV_TQ):
            def rd(kc):
                w = 72 + 4 * (kc % 8)
                a(f"ds_read_b64_tr_b16 {vr(w,2)}, v{HV_TQ} offset:{kc*KB}"); a(f"ds_read_b64_tr_b16 {vr(w+2,2)}, v{HV_TQ} offset:{kc*KB+256}")
            for kc in range(lo, min(hi, lo + 6)): rd(kc)
            for kc in range(lo, hi):
                a(f"s_waitcnt lgkmcnt({2 * (min(hi, kc + 6) - kc - 1)})")
                a(f"{MF} v[112:127], v[64:67], {vr(72+4*(kc%8),4)}, {'0' if (first and kc == lo) else 'v[112:127]'}")
                if kc + 6 < hi: rd(kc + 6)
        def augfin(q4=False):
            a("v_cvt_pk_bf16_f32 v104, v112, v112"); a("v_and_b32 v107, 0xffff, v104")
            a("v_lshlrev_b32 v105, 16, v104"); a("v_sub_f32 v105, v112, v105"); a("v_cvt_pk_bf16_f32 v106, v112, v105")
            if q4: a("s_lshr_b32 s40, s6, 1"); a("s_lshl_b32 s40, s40, 9"); a("s_and_b32 s41, s6, 1"); a("s_lshl_b32 s41, s41, 3"); a("s_add_u32 s40, s40, s41"); a(f"s_add_u32 s40, s40, {L_QB}")
            else: a("s_lshl_b32 s40, s6, 8"); a(f"s_add_u32 s40, s40, {L_AUG}")
            a("v_and_b32 v108, 31, v2"); a(f"v_lshlrev_b32 v108, {4 if q4 else 3}, v108"); a("v_add_u32 v108, s40, v108")
            a("ds_write_b64 v108, v[106:107]"); a("s_waitcnt lgkmcnt(0)")
        kvw = ["s_sub_u32 s40, s6, 1", "s_cmp_lt_u32 s40, 2"]
        qw  = ["s_cmp_eq_u32 s6, 0"]
        w3  = ["s_cmp_eq_u32 s6, 3"]
        def spin_head(loads):
            l = self.lab(); d = self.lab(); l0 = self.lab()
            a("s_mov_b32 s41, 0")
            for x in loads: a(x + ("" if OPT.get("pplain", 0) else " sc1"))
            a(f"s_branch {l0}"); a(f"{l}:"); a("s_sleep 4")
            for x in loads: a(x + " sc1")
            a(f"{l0}:")
            a("s_add_u32 s41, s41, 1"); a(f"s_cmp_gt_u32 s41, {OPT['spin']}"); a(f"s_cbranch_scc1 {d}")
            a("s_waitcnt vmcnt(0)")
            return l, d
        def get_nonce():
            l, d = spin_head([f"buffer_load_dwordx2 {vr(HT,2)}, off, {SDBG}, 0"])
            a(f"v_readfirstlane_b32 s92, v{HT}"); a(f"v_readfirstlane_b32 s93, v{HT+1}")
            a("s_cmp_eq_u32 s93, 0"); a(f"s_cbranch_scc1 {l}"); a(f"{d}:")
        def arrive():
            a("s_waitcnt lgkmcnt(0)")
            only(["s_cmp_eq_u32 s93, 0"], get_nonce)
            a(f"v_mov_b32 v{HT}, s92"); a(f"v_mov_b32 v{HT+1}, s93"); a(f"v_mov_b32 v{HT+2}, {L_TAG}"); a(f"ds_write_b64 v{HT+2}, {vr(HT,2)}")
            a("s_getreg_b32 s40, hwreg(HW_REG_XCC_ID)"); a("s_and_b32 s40, s40, 7"); a("s_or_b32 s91, s40, s92")
            a(f"v_mov_b32 v{HT}, s91"); a(f"v_mov_b32 v{HT+1}, s93")
            a("s_lshl_b32 s40, s16, 7"); a("s_lshl_b32 s41, s17, 3"); a("s_add_u32 s40, s40, s41"); a(f"s_add_u32 s40, s40, {AR}")
            a("s_mov_b64 exec, 1"); a(f"buffer_store_dwordx2 {vr(HT,2)}, off, s[8:11], s40 sc1"); a("s_mov_b64 exec, -1")
        def nbr():
            a("v_lshlrev_b32 v248, 5, v2"); a(f"s_mov_b32 s42, {AR}")
            l, d = spin_head(["buffer_load_dwordx4 v[240:243], v248, s[8:11], s42 offen", "buffer_load_dwordx4 v[244:247], v248, s[8:11], s42 offen offset:16"])
            for q in range(4): a(f"v_xor_b32 v{240+2*q}, s91, v{240+2*q}"); a(f"v_xor_b32 v{241+2*q}, s93, v{241+2*q}")
            a("v_or3_b32 v240, v240, v242, v244"); a("v_or_b32 v240, v240, v246"); a("v_or3_b32 v241, v241, v243, v245"); a("v_and_b32 v249, -8, v240"); a("v_or3_b32 v241, v241, v247, v249")
            a("v_cmp_ne_u32 vcc, 0, v241"); a(f"s_cbranch_vccnz {l}"); a(f"{d}:")
            a("v_cmp_ne_u32 vcc, 0, v240"); a("s_lshl_b32 s40, s16, 2"); a("s_lshr_b64 s[42:43], vcc, s40"); a("s_and_b32 s40, s42, 15"); a("s_cselect_b32 s40, 1, 0")
            if OPT["force_slow"]: a("s_mov_b32 s40, 1")
            a(f"v_mov_b32 v{HT}, s40"); a(f"v_mov_b32 v{HT+1}, {L_MODE}"); a(f"ds_write_b32 v{HT+1}, v{HT}"); a("s_waitcnt lgkmcnt(0)")
        def rel_do():
            a("s_lshl_b32 s40, s80, 12"); a(f"s_add_u32 s40, s40, {P4 if OPT.get('rl2', 0) else 144*KB}"); a(f"v_add_u32 v45, s40, v{V_LANE16}")
            a(f"v_bfe_u32 v40, v2, 2, 2"); a("v_lshlrev_b32 v41, 7, v40"); a("v_lshrrev_b32 v40, 1, v40"); a("v_lshrrev_b32 v42, 5, v2"); a("v_xor_b32 v40, v40, v42")
            a("v_lshl_add_u32 v41, v40, 6, v41"); a(f"v_and_b32 v40, 63, v{HV_TQ}"); a("v_add_u32 v41, v41, v40"); a("v_add_u32 v41, s40, v41")
            for hf in range(2):
                for o in range(4): a(f"ds_write_b128 v45, {vr(128+16*hf+4*o,4)} offset:{o*KB}")
                for o in range(4):
                    a(f"ds_read_b64_tr_b16 {vr(72+16*hf+4*o,2)}, v41 offset:{o*KB}"); a(f"ds_read_b64_tr_b16 {vr(74+16*hf+4*o,2)}, v41 offset:{o*KB+512}")
                a("s_waitcnt lgkmcnt(0)")
            a("v_lshrrev_b32 v40, 4, v2"); a("v_lshlrev_b32 v40, 15, v40"); a("v_and_b32 v42, 15, v2"); a("v_lshl_add_u32 v40, v42, 4, v40")
            a("s_lshl_b32 s40, s84, 17"); a("s_lshl_b32 s41, s86, 12"); a("s_add_u32 s40, s40, s41"); a("s_lshl_b32 s41, s85, 8"); a("s_add_u32 s40, s40, s41"); a(f"s_add_u32 s40, s40, {WGU}")
            a("v_mov_b32 v43, 0"); a("v_mov_b32 v44, 0")
            a("s_waitcnt lgkmcnt(0)")
            for o in range(8): a(f"buffer_store_dwordx4 {vr(72+4*o,4)}, v40, s[8:11], s40 offen offset:{o*512} sc1")
            for i in range(32): a(f"v_dot2_f32_bf16 v{43+i%2}, v{72+i}, s20, v{43+i%2}")
            a("s_nop 2"); a("v_add_f32 v43, v43, v44")
            a("s_lshl_b32 s40, s86, 1"); a("s_add_u32 s40, s40, s85"); a(f"s_mul_i32 s40, s40, {1792*4}"); a("s_lshl_b32 s41, s84, 8"); a("s_add_u32 s40, s40, s41"); a(f"s_add_u32 s40, s40, {CS}")
            a("v_lshlrev_b32 v42, 2, v2")
            a("buffer_store_dword v43, v42, s[8:11], s40 offen sc1")
        def halo():
            for kv in range(2):
                for d in (1, 2):
                    l1 = self.lab(); l2 = self.lab()
                    a(f"s_cmp_lt_u32 s16, {d}"); a(f"s_cbranch_scc1 {l1}")
                    a(f"s_sub_u32 s95, s27, {4*d}"); a("s_lshl_b32 s95, s95, 10"); a("s_add_u32 s95, s95, s94")
                    for hh in range(2): self.dma("s95", kv*32*64*KB + hh*64*KB, LK + kv*12*KB + hh*HS + (8-4*d)*KB, fl=" sc1")
                    a(f"s_branch {l2}")
                    a(f"{l1}:")
                    for hh in range(2): self.dma("s94", hh*64*KB, LK + kv*12*KB + hh*HS + (8-4*d)*KB, voff=(HV_ROW0, HV_OOB)[kv], fl=" sc1")
                    a(f"{l2}:")
                    op(63); op(63)
                sig(("hk", "hv")[kv])
        def pack():
            a("s_lshl_b32 s40, s16, 1"); a("s_sub_u32 s41, s40, s28"); a("s_and_b32 s41, s41, 31"); a("s_lshl_b32 s41, s41, 10"); a("s_lshl_b32 s42, s6, 15"); a("s_add_u32 s41, s41, s42")
            a(f"v_add_u32 v160, s41, v{V_LANE16}")
            a("ds_read_b128 v[164:167], v160"); a("ds_read_b128 v[168:171], v160 offset:1024")
            a("s_lshl_b32 s41, s6, 15"); a("s_lshl_b32 s40, s40, 10"); a("s_add_u32 s41, s41, s40")
            a("s_add_u32 s41, s41, s34"); a("s_sub_u32 s41, s41, s25")
            a("s_mov_b32 s90, s41")
            a("s_waitcnt lgkmcnt(0)")
        def pack_st():
            a(f"buffer_store_dwordx4 v[164:167], v{V_LANE16}, s[8:11], s90 offen sc1"); a(f"buffer_store_dwordx4 v[168:171], v{V_LANE16}, s[8:11], s90 offen offset:1024 sc1")
        def rel_sig():
            a("s_lshl_b32 s40, s80, 2"); a("s_add_u32 s40, s40, s88")
            a(f"v_mov_b32 v{HT}, 1"); a("s_mov_b64 exec, 1"); a(f"buffer_store_dword v{HT}, off, s[8:11], s40 sc1"); a("s_mov_b64 exec, -1")
        def gu_ready():
            a("s_lshr_b32 s40, s17, 2"); a("s_lshl_b32 s40, s40, 9"); a(f"s_add_u32 s42, s40, {RF}")
            a(f"v_min_u32 v{HT+2}, 55, v2"); a(f"v_lshlrev_b32 v{HT+2}, 3, v{HT+2}")
            l, d = spin_head([f"buffer_load_dwordx2 {vr(HT,2)}, v{HT+2}, s[8:11], s42 offen"])
            a(f"v_and_b32 v{HT}, v{HT}, v{HT+1}"); a(f"v_cmp_ne_u32 vcc, 1, v{HT}"); a(f"s_cbranch_vccnz {l}"); a(f"{d}:")
        def pack_sig():
            a("s_lshl_b32 s40, s6, 2"); a("s_add_u32 s40, s40, s89")
            a(f"v_mov_b32 v{HT}, 1"); a("s_mov_b64 exec, 1"); a(f"buffer_store_dword v{HT}, off, s[8:11], s40 sc1"); a("s_mov_b64 exec, -1")
        def gu_aug():
            a("v_lshrrev_b32 v240, 5, v2"); a(f"v_mul_u32_u24 v241, {1792*4}, v240"); a("v_and_b32 v242, 31, v2"); a("v_min_u32 v242, 27, v242"); a("v_lshl_add_u32 v241, v242, 4, v241")
            a(f"s_mul_i32 s40, s17, {112*4}"); a(f"s_add_u32 s40, s40, {CS}")
            for p in range(8):
                a(f"buffer_load_dwordx4 {vr(208+4*p,4)}, v241, s[8:11], s40 offen sc1")
                if p < 7: a(f"s_add_u32 s40, s40, {2*1792*4}")
            a("v_lshrrev_b32 v243, 2, v242"); a("v_lshlrev_b32 v243, 8, v243"); a("v_lshl_add_u32 v243, v240, 7, v243"); a("v_and_b32 v244, 3, v242"); a("v_lshl_add_u32 v243, v244, 5, v243")
            a(f"v_add_u32 v243, {L_AUG + 768}, v243")
            a("s_waitcnt vmcnt(0)")
            for p in range(1, 8):
                for c in range(4): a(f"v_add_f32 v{208+c}, v{208+c}, v{208+4*p+c}")
            for c in range(4):
                a(f"v_cvt_pk_bf16_f32 v245, v{208+c}, v{208+c}"); a(f"v_and_b32 v{217+2*c}, 0xffff, v245")
                a("v_lshlrev_b32 v245, 16, v245"); a(f"v_sub_f32 v245, v{208+c}, v245"); a(f"v_cvt_pk_bf16_f32 v{216+2*c}, v{208+c}, v245")
            a("ds_write_b128 v243, v[216:219]"); a("ds_write_b128 v243, v[220:223] offset:16"); a("s_waitcnt lgkmcnt(0)")
        def pack_ready():
            a("s_lshl_b32 s42, s17, 8"); a(f"s_add_u32 s42, s42, {PFL}"); a("s_mov_b32 s43, 1")
            a(f"v_lshlrev_b32 v{HT}, 2, v2"); self.poll(HT, "s42", "s43", sleep=8)
        a(f"v_and_b32 v{HF_}, 3, v2"); a(f"v_lshlrev_b32 v{HF_}, 2, v{HF_}"); a(f"v_add_u32 v{HF_}, {L_HL}, v{HF_}")
        a("s_lshr_b32 s40, s6, 1"); a("s_lshl_b32 s41, s18, 1"); a("s_add_u32 s40, s40, s41"); a("s_lshl_b32 s41, s16, 2"); a("s_add_u32 s40, s40, s41")
        a("s_and_b32 s41, s6, 1"); a("s_lshl_b32 s42, s19, 1"); a("s_add_u32 s41, s41, s42")
        a("s_lshl_b32 s60, s40, 15"); a("s_lshl_b32 s42, s41, 11"); a("s_add_u32 s60, s60, s42")
        a("s_lshl_b32 s61, s40, 12"); a("s_lshr_b32 s42, s41, 2"); a("s_lshl_b32 s42, s42, 10"); a("s_add_u32 s61, s61, s42")
        a(f"s_mul_i32 s62, s27, {112*KB}"); a("s_lshl_b32 s42, s17, 11"); a("s_add_u32 s62, s62, s42")
        a(f"s_mul_i32 s63, s27, {112*KB}"); a(f"s_mul_i32 s42, s17, {7*KB}"); a("s_add_u32 s63, s63, s42")
        def touch(items):
            a(self.touch_txt([([f"s_add_u32 s43, {r}, {b}"], n) for r, b, n in items]).replace(f"v{V_OUT},", "v31,"))
        def ext():
            pass
        for it in range(2):
            st["it"] = it
            if it == 0:
                KW = OPT.get("kw", 4); RP = OPT.get("rp", 8)
                if OPT.get("scoop", 4):
                    a("s_and_b32 s40, s80, 1"); a("s_lshl_b32 s40, s40, 6"); a(f"s_mul_i32 s41, s2, {7*KB}"); a("s_add_u32 s41, s41, s40"); a("s_add_u32 s64, s52, s41"); a("s_addc_u32 s65, s53, 0")
                    a("s_lshl_b32 s41, s2, 11"); a("s_add_u32 s41, s41, s40"); a("s_add_u32 s66, s48, s41"); a("s_addc_u32 s67, s49, 0")
                    spq += [f"s_load_dword s95, s[66:67], {q*128}" for q in range(16)] + [f"s_load_dword s95, s[64:65], {q*128}" for q in range(56 if OPT.get("scoop", 4) != 4 else 0)]
                wqkv([WK, WV], range(2, 4), win=KW)
                retire(max(4, cnt["done"]))
                only(w3, lambda: a("s_load_dwordx2 s[92:93], s[70:71], 0"))
                wqkv([WK, WV], range(4, 6), win=KW)
                only(w3, arrive)
                wqkv([WK, WV], range(6, RP), win=KW)
                if not OPT.get("rele"): only(["s_cmp_gt_u32 s87, 0"], lambda: (need("x0") if OPT.get("relx", 0) else None, rel_ld())); cnt["ghost"] = (cnt["issued"], 8)
                wqkv([WK, WV], range(RP, 8), win=KW)
                only(kvw, lambda: (need("kv1", "H"), colsum(0, 16, True)))
                flush()
                if OPT.get("coope", 0): coop()
                self.stamp(9)
                only(kvw, lambda: (need("kv3", "H"), colsum(16, 32, False), augfin(), pack()))
                hpub("augkv")
                def spall():
                    while spq: a(spq.pop(0))
                QS = 32; RA = ["s_cmp_gt_u32 s87, 0"]
                if OPT.get("rl2", 0):
                    self.stamp(10)
                    need("x")
                    wqkv([WQ], range(0, 8), win=63)
                    only(w3, nbr)
                    drain(); hpub("wq")
                    only(qw, lambda: (need("wq", "H"), a("s_setprio 3"), colsum(0, 32, True), augfin()))
                    hpub("augq")
                    only(RA, lambda: (need("kv"), rel_do(), need("wq", "H"), a("s_waitcnt vmcnt(0)"), rel_sig()))
                    if OPT.get("scoop", 4) == 2: only(["s_cmp_ge_u32 s80, 2"], spall)
                else:
                    only(RA, lambda: (a("s_setprio 3"), a("s_waitcnt vmcnt(0)"), rel_do(), a("s_setprio 0")))
                    self.stamp(10)
                    need("x")
                    wqkv([WQ], range(0, 8), win=63)
                    only(w3, nbr)
                    drain(); hpub("wq")
                    need("wq", "H")
                    only(RA, rel_sig)
                    a(f"s_mul_i32 s40, s6, {24*KB}"); a(f"v_subrev_u32 v109, s40, v{HV_TQ}")
                    a("s_setprio 3"); colsum(0, 8, True, 109); augfin(True); a("s_setprio 0")
                    hpub("augq")
                    if OPT.get("scoop", 4) == 2: only(kvw, spall)
                self.stamp(12)
            else:
                need("x"); hpub("augq")
            if it == 0:
                only(qw, lambda: (pack(), a("s_setprio 0")))
                only(["s_cmp_lt_u32 s6, 3"], pack_st)
            if it == 0 and OPT.get("st_e"): coop(); stash(OPT["st_e"])
            self.stamp(14)
            need(["hl", "kv", "q"][OPT.get("hgo1", 0) if it else OPT.get("hgo0", 0)])
            self.stamp(2)
            if it == 0:
                a(f"v_mov_b32 v{V_TMP}, {L_MODE}"); a(f"ds_read_b32 v{V_TMP}, v{V_TMP}"); a("s_waitcnt lgkmcnt(0)"); a(f"v_readfirstlane_b32 s21, v{V_TMP}")
            if OPT.get("c3", 2) > 1:
                only(["s_cmp_eq_u32 s6, 2"], lambda: c3w(SO, 16))
                if it == 0: only(["s_cmp_eq_u32 s6, 1"], lambda: c3w(SD, 56))
            if OPT.get("tlate"):
                for g in range(OPT["tlate"]): self.dma("s32", (2*(g%8) + g//8)*16*KB, RK + g*4*KB, voff=HV_R128, srd=SO); op()
            touch([("s63", OF, 16), ("s60", XA, 16), ("s61", STA, 8)])
            if it == 0 and OPT.get("scoop", 4) in (0, 4) and not OPT.get("coope", 0) and not OPT.get("st_e"): coop()
            assert not spq
            self.stamp(3)
            for g in range(OPT.get("tlate", 0), 16):
                self.dma("s32", (2*(g%8) + g//8)*16*KB, RK + g*4*KB, voff=HV_R128, srd=SO); op()
                if it == 0 and not OPT.get("rel0", 1):
                    if g == 2: only(["s_cmp_gt_u32 s87, 0"], lambda: (a("s_waitcnt vmcnt(3)"), rel_do()))
                    if g == 3 + W: only(["s_cmp_gt_u32 s87, 0"], rel_sig)
            sig("wo")
            if it == 0:
                pack_sig()
                stash(OPT.get("st_0", 10)); flush()
                only(w3, gu_ready)
                hpub("gur"); need("gur", "H")
            self.stamp(5)
            tile(0); tile(1, range(0, 3))
            if it == 0: stash(OPT.get("st_a", 0))
            need("h0"); tile(1, range(3, 8))
            if it == 0: only(w3, gu_aug); stash(OPT.get("st_b", 20))
            if OPT.get("htouch", 0) > it: touch([("s63", HF, 56)])
            for n in range(OPT.get("pf1", 0) if it else OPT.get("pf0", 0)):
                if n == 0:
                    a("s_and_b32 s40, s16, 1"); a("s_lshl_b32 s41, s6, 1"); a("s_add_u32 s40, s40, s41"); a("s_lshl_b32 s40, s40, 13")
                    a("s_sub_u32 s43, s29, s25"); a("s_add_u32 s43, s43, s40"); a(f"v_lshlrev_b32 v{HT}, 7, v2")
                a(f"s_add_u32 s43, s43, {64*KB}")
                a(f"buffer_load_dword v31, v{HT}, s[8:11], s43 offen"); op(1)
            self.stamp(4)
            if OPT.get("t2e", 1):
                need("wo1"); tile(2); sig("t2_3")
                for p in range(3): self.seen.add(("H", f"t2_{p}"))
                need("xr"); flush(); wdw(range(0, 7))
                if it == 0: only(w3, pack_ready)
                need("xch")
            else:
                need("wo"); tile(2, range(0, 2)); sig("t2_0")
                need("xch")
                for p in range(1, 4): tile(2, range(2*p, 2*p + 2)); sig(f"t2_{p}")
            if OPT.get("t3g"): need(f"g{OPT['t3g']}")
            tile(3); sig("t3")
            for p, nm in enumerate(("g8", "g16", "g24", "g32")):
                need(nm); tile(4, range(2*p, 2*p + 2))
            sig("t4")
            tile(5); sig("t5"); tile(6); sig("t6")
            if it == 0: stash(9)
            if OPT.get("wlate", 1): flush()
            need("t3"); wdw(range(7, 15))
            if it == 0: stash(8)
            need("t4"); wdw(range(15, 23))
            flush(); hpub("w0")
            if it == 0: stash(56)
            if it == 1 and OPT.get("wb") == 1: only(["s_lshr_b32 s40, s2, 3", "s_lshl_b32 s40, s40, 2", "s_add_u32 s40, s40, s6", "s_cmp_eq_u32 s40, 0"], lambda: a("buffer_wbl2 sc1"))
            need("t5"); wdw(range(23, 31)); hpub("w23")
            need("t6"); wdw(range(31, 39)); hpub("w31")
            need("d7"); wdw(range(39, 46)); hpub("w39")
            if it == 0:
                need("d15"); wqp([WV], range(8))
                need("d23"); wqp([WK], range(4))
            if it == 1 and OPT.get("wb") == 2: only(["s_lshr_b32 s40, s2, 3", "s_lshl_b32 s40, s40, 2", "s_add_u32 s40, s40, s6", "s_cmp_eq_u32 s40, 0"], lambda: a("buffer_wbl2 sc1"))
            need("d33"); wdw(range(46, 56)); hpub("w46")
            if it == 0:
                wqp([WK], range(4, 8))
                need("d39"); wqp([WQ], range(2, 8))
            if it == 0:
                drain(); hpub("nkv")
                need("d56"); wqp([WQ], range(0, 2)); drain()
                a("s_mov_b32 s23, 16")
        self.finish()

    def count_poll(self, soff, T):
        a = self.a; l = self.lab(); d = self.lab()
        a("s_mov_b32 s41, 0")
        l0 = self.lab(); a(f"s_branch {l0}"); a(f"{l}:"); a("s_sleep 8"); a(f"{l0}:")
        a(f"buffer_load_dwordx2 {vr(T,2)}, off, s[12:15], {soff} sc1"); a("s_waitcnt vmcnt(0)")
        a(f"v_readfirstlane_b32 s42, v{T}"); a(f"v_readfirstlane_b32 s43, v{T+1}")
        a("s_add_u32 s41, s41, 1"); a(f"s_cmp_gt_u32 s41, {OPT['spin']}"); a(f"s_cbranch_scc1 {d}")
        a("s_add_u32 s40, s42, s43"); a("s_mul_i32 s40, s40, 0x01010101"); a("s_lshr_b32 s40, s40, 24")
        a("s_cmp_lg_u32 s40, 16"); a(f"s_cbranch_scc1 {l}")
        a(f"{d}:")

    def build(self):
        a = self.a
        self.prologue()
        a("s_cmp_ge_u32 s3, 4"); a("s_cbranch_scc1 L_helper")
        self.compute()
        a("L_helper:")
        self.helper()
        assert self.used <= self.seen, self.used - self.seen
        a("L_end:"); a("s_endpgm")
        for x in self.ool: a.raw(x)
        a.raw("L_code_end:"); a.raw("    s_endpgm")
        return a.text()

def build():
    body = Main().build()
    return f"""; generated by dev/gen10.py
; @launch grid=(256,1,1) block=(512,1,1) lds={160*KB}
.amdgcn_target "amdgcn-amd-amdhsa--gfx950"
.text
{body}
.section .rodata,"a"
.p2align 6
.amdhsa_kernel {NAME}
  .amdhsa_next_free_vgpr 256
  .amdhsa_next_free_sgpr 102
  .amdhsa_accum_offset 256
  .amdhsa_group_segment_fixed_size 0
  .amdhsa_kernarg_size 80
  .amdhsa_user_sgpr_count 2
  .amdhsa_user_sgpr_kernarg_segment_ptr 1
  .amdhsa_system_sgpr_workgroup_id_x 1
.end_amdhsa_kernel
"""

if __name__ == "__main__":
    for x in sys.argv[2:]:
        if "=" in x: kk, v = x.split("="); OPT[kk] = int(v)
        else: OPT[x] = True
    open(sys.argv[1], "w").write(build())
```

```python
import sys, struct
from asmlib import *

NAME = "interleave_layers__sliding_block__glu_gated_glu__prompt_kernel"
KB = 1024
MB = 1 << 20
WQP  = 0
CS   = 0x180000
FL   = 0x1A0000
KVFL = 0x1A4000
RF   = 0x1AC000
PFL  = RF + 2048
AR   = RF + 8192
WGU  = 2*MB
STA  = WGU + 3584*KB; STB = STA
XA   = 6*MB; XB = XA
KV   = 8*MB
KVT  = 4608
KVS  = 0
HF   = 8*MB
OF   = HF
WS_USED = 16*MB
ALS  = 128*MB
ITS  = 32*MB
TS   = 0x6000000
WS_BYTES = 0x10000000
LOG2E = 1.4426950408889634
def f32(x): return "0x%08x" % struct.unpack("<I", struct.pack("<f", x))[0]
MF = "v_mfma_f32_32x32x16_bf16"
OPT = dict(stamp=False, force_slow=False, spin=400000, pre=10, cprio=2, fine=0, pf=0, kvflag=24, rot=1, win=6, hsc1=1)

P1, P2, P3, P4, PE, MISC = 0, 32*KB, 64*KB, 96*KB, 128*KB, 156*KB
LK = 108*KB; LV = LK + 12*KB; HS = 24*KB
L_QB = MISC; L_AUG = MISC + 768; L_ONES = MISC + 3328; L_HL = MISC + 3712; L_CP = L_HL + 16; L_MODE = L_HL + 32; L_TAG = L_HL + 40; L_DUMMY = MISC + 3840
DG = [0, 23, 31, 39, 46]
DP = [7, 15, 23, 33, 39, 43, 56]
CSEQ = ["x0", "x", "kv", "q", "hl", "h0", "att", "wo1", "wo", "xr", "xch", "g8", "g16", "g24", "g32", "t3", "t4", "t5", "t6"] + [f"d{s}" for s in DP] + ["dx"]
HSEQ = ["kv0", "kv1", "kv2", "kv3", "augkv", "wq", "augq", "wo", "gur", "t2_0", "t2_1", "t2_2", "t2_3", "t3", "t4", "t5", "t6"] + [f"w{s}" for s in DG] + ["nkv"]
CV = {n: i + 1 for i, n in enumerate(CSEQ)}; HV = {n: i + 1 for i, n in enumerate(HSEQ)}
assert max(len(CSEQ), len(HSEQ)) < 64
XCH_WO = PE; XCH_DN = PE
L_X0 = P4
L_REL_ = 0
def wd_slot(s):
    for lo, hi, reg in ((0, 7, PE), (7, 15, P3), (15, 23, P2), (23, 31, P4), (31, 39, P1), (39, 46, PE), (46, 54, P4), (54, 56, P1)):
        if lo <= s < hi: return reg + (s - lo)*4*KB
GU_REG = [P1, P4, P2, P3, P2, P4, P1]
RQ, RK, RV = P1, P2, P3
F_O1, F_O2, F_X1, F_H1, F_H2, F_X2 = 1, 2, 3, 7, 9, 10
STASH = 32

V_LANE16 = 3; V_F0 = 4
V_TQ = 6
V_XOFF = 8
V_RSTD = 10; V_STD = 11; V_C1 = 12; V_TMP = 13; V_TS = 14; V_TS2 = 15
V_XAUG = 16
V_PX = 20; V_PH = 21; V_AUGA = 22; V_OUT = 23
V_RES = 24
V_PUBA = 0; V_FA = 35; V_FLG = 1; V_BASE = 9
V_FW = 32
V_EP = 36
ACC = [40, 56, 72, 88]
WR = 96; NW = 8
XR = 128
T0 = 104

class VM:
    def __init__(self, a): self.a = a; self.q = []
    def issue(self, tag): self.q.append(tag)
    def wait(self, tag):
        idx = max((i for i, t in enumerate(self.q) if t == tag), default=-1)
        if idx < 0: return
        n = len(self.q) - 1 - idx; assert n <= 63
        self.a(f"s_waitcnt vmcnt({n})"); del self.q[:idx + 1]
    def drain(self):
        self.a("s_waitcnt vmcnt(0)"); self.q = []

def stats_calc_list(d0, tmp):
    L = [f"v_mov_b32 v{tmp}, 0", f"v_mov_b32 v{tmp+1}, 0"]
    for i in range(8):
        L.append(f"v_dot2_f32_bf16 v{tmp}, v{d0+i}, s20, v{tmp}")
        L.append(f"v_dot2_f32_bf16 v{tmp+1}, v{d0+i}, v{d0+i}, v{tmp+1}")
    L += ["s_nop 2", f"v_permlane32_swap_b32 v{tmp}, v{tmp+1}", "s_nop 1", f"v_add_f32 v{tmp}, v{tmp}, v{tmp+1}"]
    return L

class Main:
    DBARS = list(range(0, 56, 7))
    def __init__(self):
        self.a = Asm(); self.nl = 0
        self.seen = set(); self.used = set()
        self.role = None; self.pend_stamp = None; self.ool = []; self.nw = NW; self.wr = WR
    def lab(self): self.nl += 1; return f"L{self.nl}"
    def emit(self, x):
        if callable(x): x()
        else: self.a(x)
    def pub(self, name):
        self.a(f"v_add_u32 v{V_TMP}, {CV[name]}, v{V_BASE}"); self.a(f"ds_write_b32 v{V_PUBA}, v{V_TMP}")
        self.seen.add(("C", name))
    def gate_rd(self, src): self.a(f"ds_read_b32 v{V_FLG}, v{V_FA} offset:{0 if src == 'H' else 16}")
    def gate_cmp(self, name, src="H", absval=None):
        a = self.a
        n = (HV if src == "H" else CV)[name]
        if absval is not None: a(f"s_movk_i32 s39, {absval}")
        else: a(f"s_add_u32 s39, s7, {n}")
        a(f"v_cmp_gt_u32 s[30:31], s39, v{V_FLG}")
        self.used.add((src, name))
    def gate_br(self, src="H", redo=[]):
        a = self.a; l1 = self.lab(); l2 = self.lab()
        a("s_cmp_eq_u64 s[30:31], 0"); a(f"s_cbranch_scc1 {l2}")
        a(f"{l1}:")
        if OPT.get("csl"): a(f"s_sleep {OPT['csl']}")
        a("s_add_u32 s38, s38, 1"); a(f"s_cmp_gt_u32 s38, {OPT['spin']*16}"); a(f"s_cbranch_scc1 {l2}")
        a(f"ds_read_b32 v{V_FLG}, v{V_FA} offset:{0 if src == 'H' else 16}")
        for x in redo: a(x)
        a("s_waitcnt lgkmcnt(0)"); a(f"v_cmp_gt_u32 vcc, s39, v{V_FLG}"); a(f"s_cbranch_vccnz {l1}")
        a.pending.pop(l1, None)
        a(f"{l2}:")
    def gate_chk(self, name, src="H", absval=None):
        self.gate_cmp(name, src, absval); self.gate_br(src)
    def gate(self, name, src="H", absval=None):
        self.gate_rd(src); self.a("s_waitcnt lgkmcnt(0)"); self.gate_chk(name, src, absval)
    def stamp(self, i):
        if not OPT["stamp"]: return
        a = self.a
        a("s_memrealtime s[96:97]"); a("s_memtime s[98:99]"); a("s_waitcnt lgkmcnt(0)")
        if OPT.get("cnt"): a("s_lshl_b32 s98, s38, 12"); a("s_add_u32 s98, s98, s5")
        a(f"s_add_u32 s97, s23, {i}"); a(f"s_add_u32 m0, s97, s23"); a("s_nop 3")
        a(f"v_writelane_b32 v{V_TS}, s96, m0"); a(f"v_writelane_b32 v{V_TS2}, s98, m0")
    def store(self, instr, tag="st"):
        l1 = self.lab(); l2 = self.lab(); a = self.a
        if tag[0] == "h" and OPT.get("hsc1") == 1:
            a(instr + " sc1"); self.vm.issue(tag); return
        if tag[0] == "h" and OPT.get("hsc1") == 2:
            a("s_cmp_le_u32 s22, s21"); a(f"s_cbranch_scc1 {l1}"); a(instr); a(f"s_branch {l2}"); a(f"{l1}:"); a(instr + " sc1"); a(f"{l2}:")
            self.vm.issue(tag); return
        a("s_cmp_lg_u32 s21, 0"); a(f"s_cbranch_scc1 {l1}"); a(instr); a(f"{l2}:")
        a.pending.pop(l1, None)
        self.ool += [f"{l1}:", "    " + instr + " sc1", f"    s_branch {l2}"]
        self.vm.issue(tag)
    def flag(self, val, tag="st"):
        a = self.a
        a(f"s_add_u32 s40, s23, {val}"); a(f"v_mov_b32 v{V_TMP}, s40"); self.vm.wait(tag); a("s_mov_b64 exec, 1")
        self.store(f"buffer_store_dword v{V_TMP}, off, s[8:11], s24", "fl_st"); a("s_mov_b64 exec, -1")
    def peek(self, voff):
        self.a(f"buffer_load_dword v{V_OUT}, v{voff}, s[8:11], s26 offen sc1"); self.vm.issue("pk")
    def check(self, voff, val):
        a = self.a; d = self.lab()
        a(f"s_add_u32 s61, s23, {val}")
        self.vm.wait("pk")
        a(f"v_cmp_gt_u32 vcc, s61, v{V_OUT}"); a(f"s_cbranch_vccz {d}")
        self.poll(voff, "s26", "s61")
        a(f"{d}:")
    def acquire(self):
        a = self.a; l = self.lab()
        a("s_cmp_eq_u32 s21, 0"); a(f"s_cbranch_scc1 {l}"); a("buffer_inv sc1"); a("s_waitcnt vmcnt(0)"); a(f"{l}:")
    def poll(self, voff, sbase, sval, srd="s[8:11]", sleep=0):
        a = self.a; l = self.lab(); d = self.lab()
        a("s_mov_b32 s41, 0")
        if sleep and OPT.get("pplain", 0):
            l0 = self.lab(); a(f"buffer_load_dword v{V_TMP}, v{voff}, {srd}, {sbase} offen"); a(f"s_branch {l0}"); a(f"{l}:"); a(f"s_sleep {sleep}")
            a(f"buffer_load_dword v{V_TMP}, v{voff}, {srd}, {sbase} offen sc1"); a(f"{l0}:")
        else:
            if sleep:
                l0 = self.lab(); a(f"s_branch {l0}"); a(f"{l}:"); a(f"s_sleep {sleep}"); a(f"{l0}:")
            else: a(f"{l}:")
            a(f"buffer_load_dword v{V_TMP}, v{voff}, {srd}, {sbase} offen sc1")
        if OPT.get("cnt"): a("s_add_u32 s5, s5, 1")
        a("s_add_u32 s41, s41, 1"); a(f"s_cmp_gt_u32 s41, {OPT['spin']}"); a(f"s_cbranch_scc1 {d}")
        a("s_waitcnt vmcnt(0)")
        a(f"v_cmp_gt_u32 vcc, {sval}, v{V_TMP}")
        a(f"s_cbranch_vccnz {l}")
        a(f"{d}:")
    def poll2(self, voff, sbase, sval):
        N = OPT.get("pp", 1)
        if N == 1: return self.poll(voff, sbase, sval)
        a = self.a; l = self.lab(); d = self.lab()
        regs = [ACC[0] + i for i in range(N)]
        ld = lambda r: a(f"buffer_load_dword v{r}, v{voff}, s[8:11], {sbase} offen sc1")
        a("s_mov_b32 s41, 0")
        for n, r in enumerate(regs):
            ld(r)
            if n < N - 1: a(f"s_sleep {OPT.get('ppd', 2)}")
        a(f"{l}:")
        for r in regs:
            a(f"s_waitcnt vmcnt({N-1})"); a(f"v_cmp_gt_u32 vcc, {sval}, v{r}"); a(f"s_cbranch_vccz {d}"); ld(r)
        a("s_add_u32 s41, s41, 1"); a(f"s_cmp_le_u32 s41, {OPT['spin']}"); a(f"s_cbranch_scc1 {l}")
        a.pending.pop(l, None)
        a(f"{d}:")
    def dma(self, sbase, const, lds, voff=V_LANE16, fl="", srd="s[8:11]", sl="s25"):
        a = self.a
        a(f"s_add_u32 s40, {sbase}, {const}")
        a(f"s_add_u32 m0, {sl}, {lds}")
        a(f"buffer_load_dwordx4 v{voff}, {srd}, s40 offen{fl} lds")
    def touch_txt(self, items):
        l = self.lab()
        L = ["s_cmp_lg_u32 s21, 0", f"s_cbranch_scc1 {l}", f"v_lshlrev_b32 v{V_TMP}, 7, v2"]
        for sal, n in items:
            L += sal
            m = (1 << n) - 1
            L += [f"s_mov_b32 exec_lo, {m & 0xffffffff:#x}", f"s_mov_b32 exec_hi, {m >> 32:#x}", f"buffer_load_dword v{V_OUT}, v{V_TMP}, s[8:11], s43 offen sc1"]
        L += ["s_mov_b64 exec, -1", f"{l}:"]
        return "\n".join(L)
    def stream(self, steps, look, fill=None):
        a = self.a
        reads = []; need = []
        for s in steps:
            reads += s["reads"]; need.append(len(reads) - 1)
        per = 2 if any(r["op"].endswith("tr_b16") for r in reads) else 1
        pre_rd = {}; pre_cmp = {}
        for i, r in enumerate(reads):
            if r.get("gate"):
                pre_rd[max(0, i - look - per)] = i; pre_cmp[max(0, i - per)] = i
        ng = sum(1 for r in reads if r.get("gate"))
        assert len(pre_rd) == ng and len(pre_cmp) == ng
        gi = sorted(pre_rd.values())
        assert all(b - a_ > look + per for a_, b in zip(gi, gi[1:])), gi
        nr = 0; q = []; done = [0]; self._q = q
        def wait(tag):
            idx = q.index(tag)
            if idx < done[0]: return
            n = len(q) - 1 - idx; assert n <= 15, n
            a(f"s_waitcnt lgkmcnt({n})"); done[0] = idx + 1
        def issue():
            nonlocal nr
            r = reads[nr]
            if nr in pre_rd: self.gate_rd(reads[pre_rd[nr]].get("gsrc", "H")); q.append(("g", pre_rd[nr]))
            if nr in pre_cmp:
                g = reads[pre_cmp[nr]]
                wait(("g", pre_cmp[nr])); self.gate_cmp(g["gate"], g.get("gsrc", "H"), g.get("absval"))
            if r.get("gate"): self.gate_br(r.get("gsrc", "H"))
            if r.get("vm") is not None: self.vm.wait(r["vm"])
            n = 4 if r["op"] == "ds_read_b128" else 2
            fm = r["fam"]; off = r["off"]
            reg = fm[off >> 16] if isinstance(fm, list) else fm
            a(f"{r['op']} {vr(r['d'], n)}, v{reg} offset:{off & 0xffff}"); q.append(nr)
            if r.get("pub"): self.pub(r["pub"]); q.append(("p", nr))
            nr += 1
        for i, s in enumerate(steps):
            while nr < len(reads) and nr <= need[i] + (look if i == 0 else 0): issue()
            for x in s.get("pre", []): self.emit(x)
            wait(need[i + 1] if (s.get("pair") and i + 1 < len(steps)) else need[i])
            a(s["mf"])
            nxt = need[i + 1] if i + 1 < len(steps) else need[i]
            while nr < len(reads) and nr <= nxt + look: issue()
            for x in s.get("post", []): self.emit(x)
            if fill:
                for f in fill(i): self.emit(f)
            if self.pend_stamp: self.stamp(self.pend_stamp); self.pend_stamp = None
    def rd128(self, w, off, gate=None, pub=None): return [dict(op="ds_read_b128", d=w, fam=[V_F0, V_F0 + 1], off=off, gate=gate, pub=pub)]
    def rdtr(self, w, fam, off, d2, gate=None, pub=None, absval=None):
        return [dict(op="ds_read_b64_tr_b16", d=w, fam=fam, off=off, gate=gate, absval=absval), dict(op="ds_read_b64_tr_b16", d=w + 2, fam=fam, off=off + d2, pub=pub)]
    def tr_addr16(self, dst, t0, t1):
        a = self.a
        a(f"v_lshrrev_b32 v{t0}, 5, v2"); a(f"v_lshlrev_b32 v{dst}, 9, v{t0}")
        a(f"v_bfe_u32 v{t0}, v2, 2, 2"); a(f"v_lshl_add_u32 v{dst}, v{t0}, 6, v{dst}")
        a(f"v_bfe_u32 v{t0}, v2, 4, 1"); a(f"v_lshl_add_u32 v{dst}, v{t0}, 5, v{dst}")
        a(f"v_and_b32 v{t0}, 1, v2"); a(f"v_lshl_add_u32 v{dst}, v{t0}, 4, v{dst}")
        a(f"v_bfe_u32 v{t0}, v2, 1, 1"); a(f"v_lshl_add_u32 v{dst}, v{t0}, 3, v{dst}")

    def prologue(self):
        a = self.a
        a.raw(f".globl {NAME}"); a.raw(".p2align 8"); a.raw(f".type {NAME},@function"); a.raw(f"{NAME}:")
        a(f"s_cmp_ge_u32 s2, {0 if OPT.get('empty') else 256}"); a("s_cbranch_scc1 L_end")
        if OPT["stamp"]: a("s_memrealtime s[100:101]")
        a("s_load_dwordx4 s[64:67], s[0:1], 0")
        a("s_load_dwordx2 s[8:9], s[0:1], 72")
        a("s_load_dwordx2 s[68:69], s[0:1], 16")
        a("s_load_dwordx8 s[72:79], s[0:1], 32")
        a("s_load_dwordx2 s[70:71], s[0:1], 64")
        a("v_lshrrev_b32 v1, 6, v0"); a("v_and_b32 v2, 63, v0")
        a("v_readfirstlane_b32 s3, v1")
        if OPT.get("codepf", 1):
            a("s_getpc_b64 s[42:43]")
            a.raw("L_pc:")
            a(f"s_sub_u32 s42, s42, L_pc-{NAME}"); a("s_subb_u32 s43, s43, 0")
            a("s_lshr_b32 s40, s2, 3"); a("s_lshl_b32 s40, s40, 11")
            a("v_lshlrev_b32 v10, 7, v2"); a("v_add_u32 v10, s40, v10"); a(f"v_min_u32 v10, L_code_end-{NAME}-4, v10")
            a("v_mov_b32 v11, s43"); a("v_add_co_u32 v10, vcc, s42, v10"); a("v_addc_co_u32 v11, vcc, 0, v11, vcc")
            a("s_cmp_lg_u32 s3, 6"); a("s_cbranch_scc1 L_nopf")
            a("s_mov_b64 exec, 0xffff"); a("global_load_dword v31, v[10:11], off"); a("s_mov_b64 exec, -1")
            a("L_nopf:")
        a(f"s_mov_b32 s10, {WS_BYTES}"); a("s_mov_b32 s11, 0x20000")
        a(f"v_lshlrev_b32 v{V_LANE16}, 4, v2")
        a("s_and_b32 s4, s2, 7"); a("s_lshr_b32 s5, s2, 3"); a("s_and_b32 s6, s3, 3")
        a("s_lshl_b32 s16, s4, 1"); a("s_lshr_b32 s40, s5, 4"); a("s_add_u32 s16, s16, s40")
        a("s_and_b32 s17, s5, 15")
        a("s_lshr_b32 s18, s17, 3"); a("s_and_b32 s19, s17, 7")
        a("s_mov_b32 s20, 0x3f803f80"); a("s_mov_b32 s21, 0"); a("s_mov_b32 s22, 0"); a("s_mov_b32 s23, 0")
        a("s_lshl_b32 s26, s16, 9"); a(f"s_add_u32 s26, s26, {FL}")
        a("s_lshl_b32 s24, s17, 5"); a("s_lshl_b32 s40, s3, 2"); a("s_add_u32 s24, s24, s40"); a("s_add_u32 s24, s24, s26")
        a("s_lshl_b32 s25, s6, 10")
        a("s_lshl_b32 s27, s16, 2"); a("s_add_u32 s27, s27, s6")
        if OPT["rot"]: a("s_add_u32 s28, s16, s17"); a("s_lshl_b32 s28, s28, 2"); a("s_and_b32 s28, s28, 31")
        else: a("s_mov_b32 s28, 0")
        a("s_mov_b32 s35, 0"); a("s_mov_b32 s36, 0")
        a(f"v_mov_b32 v{V_TS}, 0"); a(f"v_mov_b32 v{V_TS2}, 0")
        a("s_xor_b32 s40, s3, 4"); a("s_lshl_b32 s40, s40, 2"); a(f"s_add_u32 s40, s40, {L_HL}")
        a(f"v_lshlrev_b32 v{V_PUBA}, 2, v2"); a(f"v_add_u32 v{V_PUBA}, {L_DUMMY}, v{V_PUBA}"); a(f"v_writelane_b32 v{V_PUBA}, s40, 0")
        a(f"v_mov_b32 v{V_BASE}, 0"); a("s_mov_b32 s7, 0"); a("s_mov_b32 s38, 0")
        a(f"ds_write_b32 v{V_PUBA}, v{V_BASE}")
        a("s_waitcnt lgkmcnt(0)"); a("s_barrier")
        if OPT.get("wsoff"):
            a(f"s_add_u32 s8, s8, {OPT['wsoff']*MB}"); a("s_addc_u32 s9, s9, 0"); a(f"s_mov_b32 s10, {WS_BYTES - OPT['wsoff']*MB}")

    def attention(self):
        KF = XR + 8; S = [XR + 44, XR + 60, XR + 76]; NM = [XR + 92, XR + 108]; MX = [XR + 124, XR + 125]; T = XR + 126
        O = [ACC[2], ACC[3]]; VA = ACC[1]; KA = VA + 9
        VF = [104, 112]; P = [120, ACC[0] + 8]; BM = ACC[0]; NEG = KA + 2
        t0, t1, t2, t3, t4 = (ACC[0] + 8 + i for i in range(5))
        L = [f"v_and_b32 v{t0}, 31, v2", f"v_lshrrev_b32 v{t1}, 5, v2",
             f"v_and_b32 v{KA}, 0x13, v{t0}", f"v_bfe_u32 v{t2}, v{t0}, 2, 1", f"v_lshl_add_u32 v{KA}, v{t2}, 3, v{KA}",
             f"v_bfe_u32 v{t2}, v{t0}, 3, 1", f"v_lshl_add_u32 v{KA}, v{t2}, 2, v{KA}",
             f"v_lshlrev_b32 v{KA}, 4, v{KA}", f"v_lshl_add_u32 v{KA}, v{t1}, 9, v{KA}",
             f"s_add_u32 s41, s25, {LK}\nv_add_u32 v{KA}, s41, v{KA}",
             f"v_bfe_u32 v{t2}, v2, 2, 2", f"v_lshl_add_u32 v{t2}, v{t1}, 3, v{t2}", f"v_lshlrev_b32 v{t2}, 4, v{t2}",
             f"v_and_b32 v{t3}, 1, v2", f"v_lshl_add_u32 v{t2}, v{t3}, 9, v{t2}",
             f"v_bfe_u32 v{t3}, v2, 1, 1", f"v_lshl_add_u32 v{t2}, v{t3}, 3, v{t2}",
             f"s_add_u32 s41, s25, {LV}\nv_add_u32 v{t2}, s41, v{t2}",
             f"v_bfe_u32 v{t3}, v2, 4, 1", f"v_xor_b32 v{t4}, 1, v{t3}",
             f"v_mul_u32_u24 v{KA+1}, {HS}, v{t4}", f"v_mul_u32_u24 v{VA}, v{t2}, v{t4}", f"v_mul_u32_u24 v{t2}, {L_ONES}, v{t3}", f"v_add_u32 v{VA}, v{VA}, v{t2}",
             f"v_lshlrev_b32 v{t4}, 10, v{t4}"]
        L += [f"v_add_u32 v{VA+i}, v{t4}, v{VA+i-1}" for i in range(1, 9)]
        l = self.lab()
        fx = ["s_cmp_ge_u32 s27, 8", f"s_cbranch_scc1 {l}", "s_sub_i32 s42, 8, s27", f"v_lshlrev_b32 v{t3}, 3, v{t3}"]
        for i in range(8): fx += [f"s_cmp_gt_i32 s42, {i}", "s_cselect_b32 s41, -1, 0", f"v_and_b32 v{t2}, s41, v{t3}", f"v_add_u32 v{VA+i}, v{t2}, v{VA+i}"]
        L.append("\n".join(fx + [f"{l}:"]))
        L += [f"v_mov_b32 v{t0}, 0xffff", f"v_mov_b32 v{t1}, 0xffff0000"]
        for p in range(8):
            L += [f"v_cndmask_b32_e64 v{t2}, v{t0}, 0, s[{64+4*p}:{65+4*p}]", f"v_cndmask_b32_e64 v{t3}, v{t1}, 0, s[{66+4*p}:{67+4*p}]", f"v_or_b32 v{BM+p}, v{t2}, v{t3}"]
        L += [f"v_mov_b32 v{NEG}, {f32(-1e30)}", f"v_mov_b32 v{NEG+1}, {f32(2.0**OPT.get('thr', 40))}", f"v_mov_b32 v{NEG+2}, {f32(2.0**-OPT.get('thr', 40))}"]
        return dict(KF=KF, S=S, NM=NM, O=O, VA=VA, VF=VF, P=P, BM=BM, MX=MX, T=T, KA=KA, NEG=NEG), L

    def attention_run(self, r, halo_k, halo_v, early_a, redo_a):
        a = self.a
        KF, S, NM, O, VA, VF, P, BM, MX, T, KA, NEG = (r[x] for x in "KF S NM O VA VF P BM MX T KA NEG".split())
        def kread(hh, i, d=None): a(f"ds_read_b128 {vr(KF+4*(i if d is None else d),4)}, v{KA} offset:{hh*HS + i*KB}")
        def vrd(reg, vf):
            for t in range(2):
                for u in range(2): a(f"ds_read_b64_tr_b16 {vr(vf+4*t+2*u,2)}, v{reg} offset:{t*256 + u*64}")
        def vread(hh, i, vf):
            vrd(VA + i, vf)
            if hh == 0: a(f"v_add_u32 v{VA+i}, v{KA+1}, v{VA+i}")
        def qk(hh, dst, i, c): a(f"{MF} {vr(dst,16)}, {vr(KF+4*i,4)}, {vr(XR+4*hh,4)}, {c}")
        def pv(hh, vf, p, t, first=False): a(f"{MF} {vr(O[hh],16)}, {vr(vf+4*t,4)}, {vr(p+4*t,4)}, {'0' if first else vr(O[hh],16)}")
        def mx(b, first=False):
            lo = 0
            if first:
                a(f"v_max3_f32 v{MX[0]}, v{b}, v{b+1}, v{b+2}"); a(f"v_max3_f32 v{MX[1]}, v{b+3}, v{b+4}, v{b+5}"); lo = 6
            for n, q in enumerate(range(lo, 16, 2)): a(f"v_max3_f32 v{MX[n%2]}, v{MX[n%2]}, v{b+q}, v{b+q+1}")
        def mxfin(hh):
            a(f"v_max_f32 v{MX[0]}, v{MX[0]}, v{MX[1]}"); a(f"v_mov_b32 v{MX[1]}, v{MX[0]}")
            a(f"v_permlane32_swap_b32 v{MX[0]}, v{MX[1]}"); a("s_nop 1"); a(f"v_max_f32 v{MX[0]}, v{MX[0]}, v{MX[1]}")
            for q in range(16): a(f"v_sub_f32 v{NM[hh]+q}, 0, v{MX[0]}")
        def mask(b, diag):
            for q in range(16):
                a(f"v_cndmask_b32_e64 v{b+q}, v{NEG}, v{b+q}, s[{64+2*q}:{65+2*q}]" if diag else f"v_cndmask_b32_e64 v{b+q}, v{b+q}, v{NEG}, s[{64+2*q}:{65+2*q}]")
        def ex(b, lo, hi):
            for q in range(lo, hi): a(f"v_exp_f32 v{b+q}, v{b+q}")
        def cv(p, b, lo, hi):
            for q in range(lo, hi): a(f"v_cvt_pk_bf16_f32 v{p+q}, v{b+2*q}, v{b+2*q+1}")
        def fin(hh, bad=None):
            a(f"v_rcp_f32 v{T}, v{O[hh]+8}")
            if bad:
                a(f"v_med3_f32 v{MX[0]}, v{O[hh]+8}, v{NEG+2}, v{NEG+1}"); a(f"v_cmp_neq_f32 vcc, v{O[hh]+8}, v{MX[0]}")
            for q in range(8): a(f"v_mul_f32 v{O[hh]+q}, v{T}, v{O[hh]+q}")
            if bad: a(f"s_cbranch_vccnz {bad}"); a.pending.pop(bad, None)
            for q in range(4): a(f"v_cvt_pk_bf16_f32 v{V_EP+q}, v{O[hh]+2*q}, v{O[hh]+2*q+1}")
            self.store(f"buffer_store_dwordx4 {vr(V_EP,4)}, v{V_LANE16}, s[8:11], s37 offen offset:{hh*KB}")
        vread(0, 8, VF[0]); vread(1, 8, VF[1])
        qk(0, S[0], 8, "0"); qk(1, S[1], 7, "0")
        halo_v()
        mx(S[0], True); mxfin(0); qk(0, S[0], 8, vr(NM[0], 16))
        mx(S[1], True); mxfin(1); qk(1, S[1], 7, vr(NM[1], 16))
        def diag(hh):
            ex(S[hh], 0, 16); cv(P[hh], S[hh], 0, 8)
            for q in range(8): a(f"v_bfi_b32 v{P[hh]+q}, v{BM+q}, 0, v{P[hh]+q}")
        diag(0)
        a("s_waitcnt lgkmcnt(0)")
        pv(0, VF[0], P[0], 0, True)
        if OPT["fine"] > 2: self.stamp(15)
        halo_k(lambda: pv(0, VF[0], P[0], 1))
        diag(1)
        order = [7, 6, 5, 4, 3, 2, 1, 0]
        blocks = [(hh, i) for hh in range(2) for i in order]
        krs = [f"ds_read_b128 {vr(KF+4*i,4)}, v{KA} offset:{i*KB}" for i in order[:3]]
        self.gate_rd("C")
        for x in krs: a(x)
        pv(1, VF[1], P[1], 0, True)
        a("s_waitcnt lgkmcnt(3)"); self.gate_cmp("hl", "C")
        pv(1, VF[1], P[1], 1)
        self.gate_br("C", redo=krs)
        for i in order[3:]: kread(0, i)
        a("s_waitcnt lgkmcnt(7)"); qk(0, S[0], 7, vr(NM[0], 16))
        a("s_waitcnt lgkmcnt(6)"); qk(0, S[1], 6, vr(NM[0], 16))
        F3 = (lambda i: self.stamp(i)) if OPT["fine"] > 2 else (lambda i: None)
        F3(16)
        kread(1, 7); kread(1, 6)
        pend = None
        for n, (hh, i) in enumerate(blocks):
            b = S[n % 3]; vf = VF[n % 2]; p = P[n % 2]
            ex(b, 0, 4)
            vread(hh, i, vf)
            if pend: pv(*pend)
            ex(b, 4, 10)
            kr = False
            if n + 2 < 16:
                h2, i2 = blocks[n + 2]
                if n == 0: a("s_waitcnt lgkmcnt(6)")
                qk(h2, S[(n + 2) % 3], i2, vr(NM[h2], 16))
                if h2 == 0: kread(1, i2); kr = True
            if n == OPT.get("pk", 15): self.peek(V_PH)
            ex(b, 10, 16)
            if n == 8: F3(17); fin(0, "L_redo0"); self.pub("h0"); F3(18)
            if n == OPT.get("fo1", 11): F3(19); self.flag(F_O1); F3(20)
            cv(p, b, 0, 8)
            if i == 0:
                for q in range(8): a(f"v_and_b32 v{p+q}, v{BM+q}, v{p+q}")
            a("s_waitcnt lgkmcnt(1)" if (kr or n == 8) else "s_waitcnt lgkmcnt(0)")
            pv(hh, vf, p, 0)
            pend = (hh, vf, p, 1)
        pv(*pend)
        fin(1, "L_redo1")
        self.pub("att")
        lb = self.lab(); lj = self.lab()
        a(f"s_add_u32 s61, s23, {F_O1}"); self.vm.wait("pk")
        a(f"v_cmp_gt_u32 vcc, s61, v{V_OUT}"); a(f"s_cbranch_vccz {lb}")
        qs = list(self.vm.q)
        a("L_att_late:")
        self.flag(F_O2); redo_a(a); a("s_waitcnt vmcnt(0)"); a(f"s_branch {lj}")
        a(f"{lb}:")
        self.vm.q = qs
        early_a()
        self.flag(F_O2)
        a(f"{lj}:")
        main = self.a; saved_q = list(self.vm.q)
        self.a = a = Asm(); self.vm.a = a
        def redo(hh):
            a("s_nop 15"); a("s_waitcnt vmcnt(0) lgkmcnt(0)")
            for i in range(9): kread(hh, i)
            a("s_waitcnt lgkmcnt(0)")
            a("s_sub_i32 s42, 8, s27")
            for i in (8, 0, 1, 2, 3, 4, 5, 6, 7):
                sk = self.lab()
                a(f"s_cmp_gt_i32 s42, {i}"); a(f"s_cbranch_scc1 {sk}")
                qk(hh, S[0], i, "0")
                if i in (0, 8): mask(S[0], i == 8)
                mx(S[0], i == 8)
                a(f"{sk}:")
            mxfin(hh)
            for i in (8, 0, 1, 2, 3, 4, 5, 6, 7):
                sk = self.lab()
                a(f"s_cmp_gt_i32 s42, {i}"); a(f"s_cbranch_scc1 {sk}")
                if hh == 0: a(f"v_sub_u32 v{T}, v{VA+i}, v{KA+1}")
                vrd(T if hh == 0 else VA + i, VF[0])
                qk(hh, S[0], i, vr(NM[hh], 16))
                if i in (0, 8): mask(S[0], i == 8)
                ex(S[0], 0, 16); cv(P[0], S[0], 0, 8)
                a("s_waitcnt lgkmcnt(0)")
                pv(hh, VF[0], P[0], 0, i == 8); pv(hh, VF[0], P[0], 1)
                a(f"{sk}:")
            fin(hh)
        a("L_redo0:")
        redo(0); self.pub("h0"); self.vm.q = ["st"]; self.flag(F_O1)
        a("L_redo1:")
        redo(1); self.pub("att")
        a("s_waitcnt vmcnt(0)"); a("s_branch L_att_late")
        self.ool += a.out
        self.a = main; self.vm.a = main; self.vm.q = saved_q

    def ln_stats(self, d):
        L = []
        for n in (8, 4, 2, 1):
            for i in range(n): L.append(f"v_add_f32 v{d+i}, v{d+i}, v{d+i+n}")
        L += [f"v_mov_b32 v{d+1}, v{d}", f"v_permlane32_swap_b32 v{d}, v{d+1}", "s_nop 1",
              f"v_mul_f32 v{d}, {f32(-1.0/512)}, v{d}", f"v_mul_f32 v{d+1}, {f32(1.0/512)}, v{d+1}",
              f"v_fma_f32 v{d+1}, -v{d}, v{d}, v{d+1}", f"v_max_f32 v{d+1}, 0, v{d+1}", f"v_add_f32 v{d+1}, {f32(1e-5)}, v{d+1}",
              f"v_rsq_f32 v{V_RSTD}, v{d+1}", f"v_sqrt_f32 v{V_STD}, v{d+1}",
              f"v_cvt_pk_bf16_f32 v{V_XAUG}, v{d}, v{d}",
              f"v_and_b32 v{d+2}, 0xffff0000, v{V_XAUG}", f"v_sub_f32 v{d+2}, v{d}, v{d+2}", f"v_mov_b32 v{d+3}, 0",
              f"v_cvt_pk_bf16_f32 v{V_XAUG+1}, v{d+2}, v{d+3}",
              f"v_cndmask_b32_e64 v{V_XAUG}, 0, v{V_XAUG}, s[62:63]", f"v_cndmask_b32_e64 v{V_XAUG+1}, 0, v{V_XAUG+1}, s[62:63]",
              f"v_mul_f32 v{V_C1}, {f32(-LOG2E)}, v{V_RSTD}"]
        return L
    def wreg(self):
        w = self.wr + 4 * (self.wc % self.nw); self.wc += 1; return w
    def aug_step(self, acc, augidx, bn=None, look=None):
        w = self.wreg()
        s = dict(reads=[dict(op="ds_read_b64", d=w, fam=V_AUGA, off=augidx * 256, gate=bn)], mf=f"{MF} {vr(acc,16)}, {vr(w,4)}, {vr(V_XAUG,4)}, {vr(acc,16)}")
        return s
    def x_pass1(self, xl, sst, local, wread, augs, augbar, NT=2):
        a = self.a; vm = self.vm
        PRE = OPT["pre"] if NT == 2 else OPT.get("pre3", OPT["pre"]); STD = ACC[NT]
        def X(kc):
            def f(): xl(kc); vm.issue(f"x{kc}")
            return f
        XS = STD + 4
        xslot = lambda p: [L_X0, L_X0 + 16*KB, L_X0 + 32*KB, RQ, RQ + 16*KB][p if p < 5 else p - 5]
        def piece(p):
            a(f"s_add_u32 s41, s28, {4*p}"); a("s_and_b32 s41, s41, 31"); a("s_lshl_b32 s41, s41, 5"); a("s_add_u32 s41, s41, s55")
            for i in range(4): self.dma("s41", i*8*KB, xslot(p) + i*KB, voff=XS + i%2, srd="s[44:47]", sl="s42"); vm.issue(f"pc{p}")
        def dots(lo, hi):
            for kc in range(lo, hi):
                for i in range(4):
                    r = XR + 4 * kc + i
                    a(f"v_dot2c_f32_bf16 v{STD + 2*(i%2)}, s20, v{r}"); a(f"v_dot2c_f32_bf16 v{STD + 1 + 2*(i%2)}, v{r}, v{r}")
        def xrd(p): return [dict(op="ds_read_b128", d=XR+16*p+4*q, fam=(XS+2+q if xslot(p) >= L_X0 else XS+6+q), off=(xslot(p) - L_X0 if xslot(p) >= L_X0 else xslot(p) - RQ), vm=(f"pc{p}" if q == 0 else None)) for q in range(4)]
        def piece_part(p, i):
            if i == 0: a(f"s_add_u32 s33, s28, {4*p}"); a("s_and_b32 s33, s33, 31"); a("s_lshl_b32 s33, s33, 5"); a("s_add_u32 s33, s33, s55")
            self.dma("s33", i*8*KB, xslot(p) + i*KB, voff=XS + i%2, srd="s[44:47]", sl="s42"); vm.issue(f"pc{p}")
        def fin0():
            dots(28, 32)
            a(f"v_add_f32 v{STD}, v{STD}, v{STD+2}"); a(f"v_add_f32 v{STD+1}, v{STD+1}, v{STD+3}")
            a(f"v_permlane32_swap_b32 v{STD}, v{STD+1}"); a("s_nop 1"); a(f"v_add_f32 v{STD}, v{STD}, v{STD+1}")
            for x in self.ln_stats(STD)[15:]: a(x)
        if local == "start":
            a(f"v_lshrrev_b32 v{XS+3}, 4, v2"); a(f"v_and_b32 v{XS}, 7, v2"); a(f"v_xor_b32 v{XS}, v{XS+3}, v{XS}"); a(f"v_lshlrev_b32 v{XS}, 4, v{XS}")
            a(f"v_lshrrev_b32 v{XS+3}, 3, v2"); a(f"v_lshl_add_u32 v{XS}, v{XS+3}, 10, v{XS}"); a(f"v_xor_b32 v{XS+1}, 64, v{XS}")
            a("s_lshl_b32 s42, s6, 12")
            a("s_waitcnt lgkmcnt(0)"); a("s_mov_b64 s[44:45], s[64:65]")
            piece(0)
            return
        if local:
            piece(1)
            if not OPT.get("p2l"): piece(2)
            for i in range(4): a(f"v_mov_b32 v{STD+i}, 0")
            a(f"v_bfe_u32 v{XS+2}, v2, 1, 3"); a(f"v_lshrrev_b32 v{XS+3}, 5, v2"); a(f"v_xor_b32 v{XS+2}, v{XS+3}, v{XS+2}"); a(f"v_lshlrev_b32 v{XS+2}, 4, v{XS+2}")
            a(f"v_and_b32 v{XS+3}, 31, v2"); a(f"v_lshl_add_u32 v{XS+2}, v{XS+3}, 7, v{XS+2}")
            a(f"s_add_u32 s41, s42, {L_X0}"); a(f"v_add_u32 v{XS+2}, s41, v{XS+2}")
            for q in range(1, 4): a(f"v_xor_b32 v{XS+2+q}, {32*q}, v{XS+2}")
            for q in range(4): a(f"v_subrev_u32 v{XS+6+q}, {L_X0 - RQ}, v{XS+2+q}")
        else:
            SP = OPT.get("sp", 6)
            for kc in range(SP): X(kc)()
            for i in range(4): a(f"buffer_load_dwordx4 {vr(STD+4*i,4)}, v{V_LANE16}, s[8:11], {sst} offen offset:{1024*i} sc1"); vm.issue("stt")
            for kc in range(SP, PRE): X(kc)()
        steps = []
        st = self.ln_stats(STD)
        xn = [PRE]; PMAX = OPT.get("pm3", PRE) if NT == 3 else OPT.get("pm2", PRE)
        for kc in range(32):
            for t in range(NT):
                w = self.wreg()
                s = dict(reads=wread(w, t, kc), mf=f"{MF} {vr(ACC[t],16)}, {vr(w,4)}, {vr(XR+4*kc,4)}, {'0' if kc == 0 else vr(ACC[t],16)}", post=[])
                if local:
                    p = kc // 4
                    if t == 0 and kc % 4 == 0:
                        s["reads"] = xrd(p) + s["reads"]
                        if p: s["pre"] = [lambda p=p: dots(4*p - 4, 4*p)]
                        if OPT["fine"] == 2: s["post"].append(lambda p=p: self.stamp(16 + p))
                    n8 = 2 * (kc % 4) + t
                    sched = ({0: (2, 3), 1: (4, 5), 2: (6, 7)} if OPT.get("p2l") else {0: (3, 4), 1: (5, 6), 2: (7, None)}).get(p, (None, None))[n8 // 4]
                    if sched is not None: s["post"].append(lambda sched=sched, n8=n8: piece_part(sched, n8 % 4))
                    if n8 == 7 and p == 2: s["post"].append(lambda: self.pub("x0"))
                    if n8 == 0 and p == 4: s["post"].append(lambda: self.pub("x"))
                    if t == 1 and kc == 31: s["post"].append(fin0)
                elif t == 0:
                    s["pre"] = [lambda kc=kc: vm.wait(f"x{kc}")]
                    if xn[0] < 32: s["post"].append(X(xn[0])); xn[0] += 1
                elif t == 1 and xn[0] < min(32, kc + 1 + PMAX):
                    s["post"].append(X(xn[0])); xn[0] += 1
                elif kc >= OPT.get("sp", 6) + 1:
                    s["post"] += st[:3]; st = st[3:]
                steps.append(s)
        assert local or not st
        for t in range(NT): steps.append(self.aug_step(ACC[t], augs[t], augbar if t == 0 else None))
        return steps

    def res_gemm(self, nsteps, slot, areg, aload, pre_issued, PRE, gates, pubs, xch, xpub, pre_x, hooks={}):
        a = self.a; vm = self.vm
        for i in range(8):
            a(f"v_lshlrev_b32 v{ACC[0]+2*i}, 16, v{V_RES+i}"); a(f"v_and_b32 v{ACC[0]+2*i+1}, 0xffff0000, v{V_RES+i}")
        a(f"v_xor_b32 v{V_EP}, 64, v{V_FW}"); a(f"v_add_u32 v{V_EP+1}, 0x10000, v{V_EP}"); a(f"v_add_u32 v{V_EP+2}, 0x20000, v{V_EP}")
        nxt = [pre_issued]
        def upto(n):
            while nxt[0] < min(n, nsteps): aload(nxt[0]); nxt[0] += 1
        steps = []; self.wc = 0; self.wr = WR; self.nw = NW
        fo = [V_FW, V_FW + 1, V_FW + 2]; ft = [V_EP, V_EP + 1, V_EP + 2]
        T = OPT.get("xt", 8)
        order = [(s, t) for s in range(nsteps - T) for t in range(2)] + [(s, 1) for s in range(nsteps - T, nsteps)] + [(s, 0) for s in range(nsteps - T, nsteps)]
        first = {}; last = {}
        for n, (s, t) in enumerate(order): first.setdefault(s, n); last[s] = n
        for n, (s, t) in enumerate(order):
            w = self.wreg()
            c = vr(ACC[t], 16) if (t == 0 or s > 0) else "0"
            st = dict(reads=self.rdtr(w, fo if t == 0 else ft, slot(s), 512, gates.get(s) if first[s] == n else None, pubs.get(s) if last[s] == n else None),
                      mf=f"{MF} {vr(ACC[t],16)}, {vr(w,4)}, {vr(areg(s),4)}, {c}")
            if OPT.get("x_b128") and nsteps == 56:
                r0, r1 = st["reads"]; st["reads"] = [dict(op="ds_read_b128", d=w, fam=[V_F0, V_F0 + 1, V_F0 + 1], off=slot(s) + t*KB, gate=r0.get("gate"), pub=r1.get("pub"))]
            if first[s] == n and s == pre_x[0]: st["reads"][0].update(gate=pre_x[1], gsrc="C")
            if first[s] == n: st["pre"] = ([lambda s=s: hooks[s](upto)] if s in hooks else []) + [lambda s=s: vm.wait(f"a{s}")]
            elif PRE: st["post"] = [lambda s=s: upto(s + 1 + PRE)]
            steps.append(st)
        a(f"s_xor_b32 s40, s6, 1"); a("s_lshl_b32 s40, s40, 12"); a(f"s_add_u32 s40, s40, {xch}"); a(f"v_add_u32 v{V_EP+3}, s40, v{V_LANE16}")
        rds = [f"ds_read_b128 {vr(ACC[2]+4*i,4)}, v{V_EP+3} offset:{i*KB}" for i in range(4)]
        def wr(i):
            a(f"ds_write_b128 v{V_EP+3}, {vr(ACC[1]+4*i,4)} offset:{i*KB}"); self._q.append(("x", i))
            if i == 3: self.pub(xpub); self._q.append(("x", 4)); a(f"v_xor_b32 v{V_EP+3}, 4096, v{V_EP+3}")
        o0 = len(steps) - T
        for i in range(4): steps[o0 + min(T - 1, 2 + i)].setdefault("post", []).append(lambda i=i: wr(i))
        self.stream(steps, look=5 if (OPT.get("x_b128") and nsteps == 56) else 10)
        if OPT["fine"] and nsteps == 56: self.stamp(9)
        self.gate_rd("C")
        for x in rds: a(x)
        a("s_waitcnt lgkmcnt(4)")
        self.gate_cmp(xpub, "C"); self.gate_br("C", redo=rds)
        for i in range(4):
            a(f"s_waitcnt lgkmcnt({3-i})")
            for q in range(4): a(f"v_add_f32 v{ACC[0]+4*i+q}, v{ACC[0]+4*i+q}, v{ACC[2]+4*i+q}")
            for q in range(2): a(f"v_cvt_pk_bf16_f32 v{V_RES+2*i+q}, v{ACC[0]+4*i+2*q}, v{ACC[0]+4*i+2*q+1}")

    def x_store(self, sx, sst, flagval):
        a = self.a; t = ACC[1]
        self.store(f"buffer_store_dwordx4 {vr(V_RES,4)}, v{V_LANE16}, s[8:11], {sx} offen")
        self.store(f"buffer_store_dwordx4 {vr(V_RES+4,4)}, v{V_LANE16}, s[8:11], {sx} offen offset:1024")
        for i in range(2): a(f"v_dot2_f32_bf16 v{t+2*i}, v{V_RES+i}, s20, 0"); a(f"v_dot2_f32_bf16 v{t+2*i+1}, v{V_RES+i}, v{V_RES+i}, 0")
        for i in range(2, 8): a(f"v_dot2_f32_bf16 v{t+2*(i%2)}, v{V_RES+i}, s20, v{t+2*(i%2)}"); a(f"v_dot2_f32_bf16 v{t+2*(i%2)+1}, v{V_RES+i}, v{V_RES+i}, v{t+2*(i%2)+1}")
        a(f"v_add_f32 v{t}, v{t}, v{t+2}"); a(f"v_add_f32 v{t+1}, v{t+1}, v{t+3}")
        a(f"v_permlane32_swap_b32 v{t}, v{t+1}"); a("s_nop 0"); a(f"v_add_f32 v{t}, v{t}, v{t+1}")
        self.store(f"buffer_store_dword v{t}, v{V_LANE16}, s[8:11], {sst} offen")
        self.flag(flagval)

    def compute(self):
        a = self.a; self.role = "C"; self.vm = vm = VM(a)
        a(f"s_setprio {OPT['cprio']}")
        a("v_and_b32 v104, 31, v2"); a("v_lshrrev_b32 v105, 5, v2")
        a(f"v_lshlrev_b32 v{V_XOFF}, 10, v104"); a(f"v_lshl_add_u32 v{V_XOFF}, v105, 4, v{V_XOFF}")
        a("s_lshl_b32 s55, s27, 15")
        a(f"s_mov_b32 s46, {2048*1024}"); a("s_mov_b32 s47, 0x20000")
        self.x_pass1(None, None, "start", None, None, None)
        a(f"s_mov_b32 s14, {2048*1024}"); a("s_mov_b32 s15, 0x20000")
        a("s_lshr_b32 s50, s6, 1"); a("s_and_b32 s51, s6, 1")
        a("s_lshl_b32 s48, s18, 1"); a("s_add_u32 s48, s48, s50"); a("s_mov_b32 s52, s48")
        a("s_lshl_b32 s40, s16, 2"); a("s_add_u32 s48, s48, s40")
        a("s_lshl_b32 s49, s19, 1"); a("s_add_u32 s49, s49, s51")
        a("s_lshl_b32 s53, s48, 15"); a("s_lshl_b32 s40, s49, 11"); a("s_add_u32 s53, s53, s40")
        a("s_lshl_b32 s54, s48, 12"); a("s_lshr_b32 s40, s49, 2"); a("s_lshl_b32 s40, s40, 10"); a("s_add_u32 s54, s54, s40")
        a("s_and_b32 s40, s49, 3"); a("s_lshl_b32 s40, s40, 2"); a("s_add_u32 s54, s54, s40")
        a(f"v_mov_b32 v{V_F0}, v{V_LANE16}"); a(f"v_add_u32 v{V_F0+1}, 0x10000, v{V_LANE16}")
        self.tr_addr16(V_TQ, 106, 107); a(f"v_add_u32 v{V_TQ+1}, 0x10000, v{V_TQ}")
        a(f"v_lshlrev_b32 v{V_FW}, 10, v105"); a("v_bfe_u32 v106, v2, 2, 2"); a(f"v_lshl_add_u32 v{V_FW}, v106, 7, v{V_FW}")
        a("v_bfe_u32 v106, v2, 3, 1"); a("v_xor_b32 v106, s51, v106"); a(f"v_lshl_add_u32 v{V_FW}, v106, 6, v{V_FW}")
        a(f"v_and_b32 v106, 63, v{V_TQ}"); a(f"v_add_u32 v{V_FW}, v106, v{V_FW}")
        a("s_lshl_b32 s40, s51, 11"); a(f"v_add_u32 v{V_FW}, s40, v{V_FW}")
        a(f"v_add_u32 v{V_FW+1}, 0x10000, v{V_FW}"); a(f"v_add_u32 v{V_FW+2}, 0x20000, v{V_FW}")
        a("v_bfe_u32 v106, v2, 1, 3"); a("v_and_b32 v107, 1, v2"); a("v_and_b32 v108, 7, v2")
        a("s_lshl_b32 s40, s50, 8"); a("s_lshl_b32 s41, s51, 3"); a("s_add_u32 s40, s40, s41")
        a(f"v_lshlrev_b32 v{V_PX}, 5, v106"); a(f"v_lshl_add_u32 v{V_PX}, v107, 2, v{V_PX}"); a(f"v_add_u32 v{V_PX}, s40, v{V_PX}")
        a("s_lshl_b32 s40, s51, 8"); a("s_lshl_b32 s41, s52, 2"); a("s_add_u32 s40, s40, s41")
        a(f"v_lshlrev_b32 v{V_PH}, 5, v108"); a(f"v_add_u32 v{V_PH}, s40, v{V_PH}")
        a(f"v_lshlrev_b32 v{V_AUGA}, 3, v104"); a(f"v_add_u32 v{V_AUGA}, {L_AUG}, v{V_AUGA}")
        a(f"v_mov_b32 v{V_XAUG+2}, 0"); a(f"v_mov_b32 v{V_XAUG+3}, 0")
        for r in range(WR, WR + 32, 4): a(f"v_mov_b32 v{r+2}, 0") if False else None
        a("v_cmp_gt_u32 s[62:63], 32, v2")
        a("v_lshlrev_b32 v106, 3, v105"); a("v_sub_u32 v106, v104, v106")
        a("s_mov_b64 s[12:13], s[78:79]")
        if OPT["stamp"]: a(f"v_writelane_b32 v{V_TS}, s100, 31")
        for r in range(16): a(f"v_cmp_le_i32 s[{64+2*r}:{65+2*r}], {16*(r>>3) + (r&7)}, v106")
        a(f"v_and_b32 v{V_FA}, 3, v2"); a(f"v_lshlrev_b32 v{V_FA}, 2, v{V_FA}"); a(f"v_add_u32 v{V_FA}, {L_HL}, v{V_FA}")
        self.stamp(0)
        ftq = [V_TQ, V_TQ + 1]
        self.wc = 0
        steps = self.x_pass1(None, None, True, lambda w, t, kc: self.rdtr(w, ftq, (RK, RV)[t] + kc*KB, 256, f"kv{kc//8}" if (t == 0 and kc % 8 == 0) else None, "kv" if (t == 1 and kc == 31) else None), [1, 2], "augkv")
        self.stream(steps, look=8)
        a(f"v_mov_b32 v{V_TMP}, {L_TAG}"); a(f"ds_read_b64 {vr(V_EP,2)}, v{V_TMP}"); a("s_waitcnt lgkmcnt(0)")
        a(f"v_readfirstlane_b32 s4, v{V_EP}"); a(f"v_readfirstlane_b32 s5, v{V_EP+1}")
        a("s_branch L_c_go")
        a("L_c_loop:")
        self.stamp(0)
        self.poll2(V_PX, "s26", "s57"); vm.q = []
        self.stamp(1)
        def xl(kc):
            if kc % 4 == 0: a(f"s_add_u32 s43, s55, {kc*KB}")
            a(f"buffer_load_dwordx4 {vr(XR+4*kc,4)}, v{V_LANE16}, s[8:11], s43 offen offset:{(kc%4)*KB} sc1")
        self.wc = 0
        steps = self.x_pass1(xl, "s56", False, lambda w, t, kc: self.rdtr(w, ftq, (RK, RV)[t] + kc*KB, 256, "nkv" if (t == 0 and kc == 0) else None,
                                                                          {(1, OPT.get("b1x", 22)): "x", (1, 31): "kv"}.get((t, kc)), HV["nkv"]), [1, 2], None)
        self.stream(steps, look=10)
        a("L_c_go:")
        if OPT["fine"]: self.stamp(14)
        steps = []
        korder = [19, 20, 21, 22, 2, 3, 4, 5, 6, 7, 9, 10] + [k for k in range(32) if k not in (19, 20, 21, 22, 2, 3, 4, 5, 6, 7, 9, 10)]
        for n, kc in enumerate(korder):
            w = self.wreg()
            steps.append(dict(reads=self.rdtr(w, ftq, RQ + kc*KB, 256),
                              mf=f"{MF} {vr(ACC[2],16)}, {vr(w,4)}, {vr(XR+4*kc,4)}, {'0' if n == 0 else vr(ACC[2],16)}"))
        self.gate_rd("H")
        steps.append(None)
        VC8 = ACC[3]; VCK = ACC[3] + 2
        a("s_lshl_b32 s58, s27, 4"); a("s_add_u32 s58, s58, s17"); a(f"s_mul_i32 s58, s58, {7*KB}"); a(f"s_add_u32 s58, s58, {HF + 2*KB}")
        if OPT.get("kv2"): a(f"s_mul_i32 s40, s22, {8*MB}"); a("s_add_u32 s58, s58, s40")
        a(f"s_add_u32 s40, s25, {LK + 8*KB}"); a(f"v_add_u32 v{V_OUT}, s40, v{V_LANE16}")
        a(f"v_lshlrev_b32 v{VC8}, 3, v2"); a(f"v_add_u32 v{VC8}, 4096, v{VC8}"); a(f"v_mov_b32 v{VCK}, s4"); a(f"v_mov_b32 v{VCK+1}, s5")
        def xor16(dst, regs):
            for n in range(0, 16, 2): self.a(f"v_bitop3_b32 v{dst}, v{dst}, v{regs[n]}, v{regs[n+1]} bitop3:0x96")
        F = []
        for t in range(2):
            A0 = ACC[t]
            for hh in range(2):
                F += [f"v_mul_f32 v{A0+r}, v{V_RSTD}, v{A0+r}" for r in range(8*hh, 8*hh + 8)]
                F += [f"v_cvt_pk_bf16_f32 v{A0+r}, v{A0+2*r}, v{A0+2*r+1}" for r in range(4*hh, 4*hh + 4)]
                F += [f"buffer_store_dwordx4 {vr(A0+4*hh,4)}, v{V_LANE16}, s[8:11], s58 offen offset:{(2*t + hh)*KB} sc1"]
                F += [f"v_bitop3_b32 v{VCK}, v{VCK}, v{A0+4*hh+n}, v{A0+4*hh+n+1} bitop3:0x96" for n in (0, 2)]
        F.append(f"buffer_store_dwordx2 {vr(VCK,2)}, v{VC8}, s[8:11], s58 offen sc1")
        NE = OPT.get("ne", 61)
        for x in F[:15]: a(x)
        a("s_waitcnt lgkmcnt(0)"); self.gate_cmp("wq")
        late = self.lab(); join = self.lab()
        a("s_cmp_eq_u64 s[30:31], 0"); a(f"s_cbranch_scc1 {join}")
        for x in F[15:]: a(x)
        self.gate_br("H")
        a("s_mov_b64 s[30:31], -1")
        a(f"{join}:")
        def rest():
            l = self.lab()
            a("s_cmp_lg_u64 s[30:31], 0"); a(f"s_cbranch_scc1 {l}")
            for x in EP2: a(x)
            a(f"{l}:")
        EP2 = F[15:]; F = []
        steps[0]["pre"] = [rest]
        if OPT["fine"] > 2: self.stamp(24)
        def lds(x):
            def f(): a(x); self._q.append(("u", id(f)))
            return f
        for hh in range(2):
            F.append(lds(f"ds_write_b128 v{V_OUT}, {vr(ACC[0]+4*hh,4)} offset:{hh*HS}"))
            F.append(lds(f"ds_write_b128 v{V_OUT}, {vr(ACC[1]+4*hh,4)} offset:{12*KB + hh*HS}"))
        r, SL = self.attention()
        F += [f"v_mov_b32 v{V_EP}, {L_MODE}", lds(f"ds_read_b32 v{V_EP}, v{V_EP}"), f"v_mul_f32 v{V_C1}, {f32(0.25*LOG2E)}, v{V_RSTD}"]
        F += SL[:10] + [lds(f"ds_read_b128 {vr(r['KF']+32,4)}, v{r['KA']} offset:{8*KB}"), lds(f"ds_read_b128 {vr(r['KF']+28,4)}, v{r['KA']} offset:{HS + 8*KB}")] + SL[10:]
        HB = [XR + 8, XR + 76]; HC = [XR + 24, XR + 26]; HO = XR + 28
        for d, sr_ in ((1, 28), (2, 29)):
            a(f"s_sub_u32 s{sr_}, s58, {4*d*112*KB}"); a(f"s_cmp_ge_u32 s16, {d}"); a(f"s_cselect_b32 s{sr_}, s{sr_}, 0x7ff00000"); a(f"s_cselect_b32 s{31+d}, -1, 0")
        HL = []
        for n in range(2):
            HL += [f"buffer_load_dwordx4 {vr(HB[n]+4*p,4)}, v{V_LANE16}, s[8:11], s{28+n} offen offset:{p*KB} sc1" for p in range(4)]
            HL.append(f"buffer_load_dwordx2 {vr(HC[n],2)}, v{HO}, s[8:11], s{28+n} offen sc1")
        def halo_ld():
            for x in HL: self.a(x)
        def fill(i):
            out = []
            h0 = OPT.get("hld", 22); k = i - h0
            for _ in range(OPT.get("f2", 4) - (2 if 0 <= k < 10 else 0)):
                if F and not (i < 12 and callable(F[0]) and len(F) <= len(SL) - 10 + 2): out.append(F.pop(0))
            if k == 0: out.append(f"v_mov_b32 v{HO}, v{VC8}")
            if 0 <= k < 10: out.append(HL[k])
            return out
        steps[31]["reads"][1]["pub"] = "q"
        XQ = ACC[3] + 4; wq_ = self.wreg()
        steps[-1] = dict(reads=[dict(op="ds_read_b128", d=wq_, fam=V_EP + 1, off=0, gate="augq")], mf=f"{MF} {vr(ACC[2],16)}, {vr(wq_,4)}, {vr(XQ,4)}, {vr(ACC[2],16)}")
        F[4:4] = [f"v_add_u32 v{V_EP+1}, {L_QB}, v{V_LANE16}", f"v_mov_b32 v{XQ}, v{V_XAUG}", f"v_mov_b32 v{XQ+1}, v{V_XAUG+1}", f"v_mov_b32 v{XQ+2}, v{V_XAUG}", f"v_mov_b32 v{XQ+3}, v{V_XAUG+1}",
                  f"v_permlane32_swap_b32 v{XQ}, v{XQ+2}", f"v_permlane32_swap_b32 v{XQ+1}, v{XQ+3}", f"s_nop 0\nv_mov_b32 v{XQ+2}, v{XQ}", f"v_mov_b32 v{XQ+3}, v{XQ+1}"]
        self.stream(steps, look=8, fill=fill)
        for x in F: self.emit(x)
        a("s_waitcnt lgkmcnt(0)")
        a(f"v_readfirstlane_b32 s21, v{V_EP}")
        a(f"s_mul_i32 s34, s21, {ALS}"); a("s_add_u32 s34, s34, s35")
        a(f"s_sub_u32 s37, s58, {2*KB}"); a("s_add_u32 s37, s37, s34")
        if OPT.get("kv2"): a(f"s_mul_i32 s40, s22, {8*MB}"); a("s_sub_u32 s37, s37, s40")
        a(f"s_mul_i32 s60, s48, {112*KB}"); a(f"s_mul_i32 s40, s51, {56*KB}"); a("s_add_u32 s60, s60, s40"); a(f"s_add_u32 s60, s60, {OF}"); a("s_add_u32 s60, s60, s34")
        self.stamp(2)
        for r_ in range(16): a(f"v_mul_f32 v{ACC[2]+r_}, v{V_C1}, v{ACC[2]+r_}")
        for r_ in range(8): a(f"v_cvt_pk_bf16_f32 v{XR+r_}, v{ACC[2]+2*r_}, v{ACC[2]+2*r_+1}")
        def halo_k(mid):
            mid()
            l = self.lab(); ok = self.lab()
            a("s_mov_b32 s41, 0")
            a(f"{l}:")
            a("s_waitcnt vmcnt(0)")
            for n in range(2):
                xor16(HC[n], [HB[n] + r for r in range(16)])
                a(f"v_xor_b32 v{HC[n]}, s4, v{HC[n]}"); a(f"v_xor_b32 v{HC[n]+1}, s5, v{HC[n]+1}")
                a(f"v_or_b32 v{HC[n]}, v{HC[n]}, v{HC[n]+1}"); a(f"v_and_b32 v{HC[n]}, s{32+n}, v{HC[n]}")
            a(f"v_or_b32 v{HC[0]}, v{HC[0]}, v{HC[1]}"); a(f"v_cmp_ne_u32 vcc, 0, v{HC[0]}"); a(f"s_cbranch_vccz {ok}")
            a("s_add_u32 s41, s41, 1"); a(f"s_cmp_gt_u32 s41, {OPT['spin']}"); a(f"s_cbranch_scc1 {ok}")
            halo_ld(); a(f"s_branch {l}"); a.pending.pop(l, None)
            a(f"{ok}:"); vm.q = []
            if OPT["fine"] > 2: self.stamp(25)
            a(f"v_subrev_u32 v{V_OUT}, {8*KB}, v{V_OUT}")
            for p in (0, 2, 1, 3):
                for n in range(2): a(f"ds_write_b128 v{V_OUT}, {vr(HB[n]+4*p,4)} offset:{(p&1)*HS + (p>>1)*12*KB + (4 - 4*n)*KB}")
            self.pub("hl")
            a("s_lshl_b32 s36, s16, 11"); a("s_lshl_b32 s41, s17, 7"); a("s_add_u32 s36, s36, s41"); a("s_lshl_b32 s41, s6, 2"); a("s_add_u32 s36, s36, s41"); a(f"s_add_u32 s36, s36, {KVFL}")
            a("s_add_u32 s41, s22, 1"); a(f"v_mov_b32 v{V_TMP}, s41")
            a("s_mov_b64 exec, 1"); a(f"buffer_store_dword v{V_TMP}, off, s[8:11], s36 sc1"); a("s_mov_b64 exec, -1")
            self.stamp(3)
        def after_k():
            l = self.lab()
            a("s_cmp_lg_u32 s22, 0"); a(f"s_cbranch_scc1 {l}")
            a("s_lshl_b32 s40, s48, 15"); a("s_lshl_b32 s41, s49, 6"); a("s_add_u32 s40, s40, s41")
            a(f"buffer_load_dwordx4 {vr(V_RES,4)}, v{V_XOFF}, s[44:47], s40 offen")
            a(f"buffer_load_dwordx4 {vr(V_RES+4,4)}, v{V_XOFF}, s[44:47], s40 offen offset:32")
            a(f"{l}:")
        oreg = lambda s: XR + 8 + 4 * s
        def al_o(s):
            a = self.a
            a(f"s_add_u32 s43, s60, {(s % 8)*7*KB}")
            a(f"buffer_load_dwordx4 {vr(oreg(s),4)}, v{V_LANE16}, s[8:11], s43 offen offset:{(s >> 3)*KB} sc1"); vm.issue(f"a{s}")
        def early_a():
            for s_ in range(8): al_o(s_)
        def redo_a(a2):
            a2(f"s_add_u32 s61, s23, {F_O1}"); self.poll(V_PH, "s26", "s61")
            for s_ in range(8): al_o(s_)
        self.attention_run(r, halo_k, after_k, early_a, redo_a)
        self.stamp(4)
        a(f"s_add_u32 s58, s53, {XA}"); a("s_add_u32 s58, s58, s35"); a(f"s_add_u32 s59, s54, {STA}"); a("s_add_u32 s59, s59, s35")
        def h_o(upto):
            self.check(V_PH, F_O2); self.stamp(5); upto(16)
            if OPT.get("wo1l", 1): self.pub("wo1"); self._q.append(("w1", 0))
        self.res_gemm(16, lambda s: RK + s*4*KB, oreg, al_o, 8, 0, {0: "wo"}, {} if OPT.get("wo1l", 1) else {7: "wo1"}, XCH_WO, "wo", (6, "att"),
                      hooks={OPT.get("opeek", 2): lambda u: self.peek(V_PH), 8: h_o})
        self.pub("xr")
        self.x_store("s58", "s59", F_X1)
        self.stamp(6)
        a(f"s_mul_i32 s60, s27, {112*KB}"); a(f"s_mul_i32 s40, s17, {7*KB}"); a("s_add_u32 s60, s60, s40"); a(f"s_add_u32 s60, s60, {HF}"); a("s_add_u32 s60, s60, s35")
        a("s_lshl_b32 s58, s27, 15"); a(f"s_add_u32 s58, s58, {XA}"); a("s_add_u32 s58, s58, s35")
        a("s_lshl_b32 s59, s27, 12"); a(f"s_add_u32 s59, s59, {STA}"); a("s_add_u32 s59, s59, s35")
        a(f"s_mul_i32 s29, s48, {112*KB}"); a(f"s_mul_i32 s40, s51, {56*KB}"); a("s_add_u32 s29, s29, s40"); a(f"s_add_u32 s29, s29, {HF}"); a("s_add_u32 s29, s29, s35")
        a(f"s_add_u32 s61, s23, {F_X1}")
        self.poll2(V_PX, "s26", "s61"); vm.q = []
        self.stamp(7)
        def xl2(kc):
            if kc % 4 == 0: a(f"s_add_u32 s43, s58, {kc*KB}")
            a(f"buffer_load_dwordx4 {vr(XR+4*kc,4)}, v{V_LANE16}, s[8:11], s43 offen offset:{(kc%4)*KB} sc1")
        self.wc = 0; self.wr = 104; self.nw = 6
        steps = self.x_pass1(xl2, "s59", False, lambda w, t, kc: self.rd128(w, GU_REG[t] + kc*KB, f"t2_{kc//8}" if (t == 0 and kc % 8 == 0 and (kc == 0 or not OPT.get("t2e", 1))) else None, f"g{kc+1}" if (t == 2 and kc % 8 == 7) else None), [3, 4, 5], None, NT=3)
        self.pub("xch")
        done = {t: len(steps) - 3 + t for t in range(3)}; start = {}
        accof = {t: ACC[t % 4] for t in range(7)}
        for t in range(3, 7):
            start[t] = len(steps)
            for kc in range(32):
                w = self.wreg()
                steps.append(dict(reads=self.rd128(w, GU_REG[t] + kc*KB, f"t{t}" if kc == 0 else None, f"t{t}" if kc == 31 else None),
                                  mf=f"{MF} {vr(accof[t],16)}, {vr(w,4)}, {vr(XR+4*kc,4)}, {'0' if kc == 0 else vr(accof[t],16)}", pair=(kc % 2 == 0 and OPT.get("pair", 1))))
            steps.append(self.aug_step(accof[t], 3 + t))
            done[t] = len(steps) - 1
        def epi(t):
            A0 = accof[t]; L = []
            if OPT.get("x_nofill"): return [lambda: (a(f"s_add_u32 s43, s60, {t*KB}"), self.store(f"buffer_store_dwordx4 {vr(V_EP,4)}, v{V_LANE16}, s[8:11], s43 offen", f"h{t}"))]
            L += [f"v_mul_f32 v{A0+r}, v{V_C1}, v{A0+r}" for r in range(8)]
            L += [f"v_exp_f32 v{A0+r}, v{A0+r}" for r in range(8)]
            L += [f"v_fma_f32 v{A0+r}, v{A0+r}, v{V_STD}, v{V_STD}" for r in range(8)]
            L += [f"v_rcp_f32 v{A0+r}, v{A0+r}" for r in range(8)]
            L += [f"v_mul_f32 v{A0+r}, v{A0+r}, v{A0+8+r}" for r in range(8)]
            L += [f"v_cvt_pk_bf16_f32 v{V_EP+r}, v{A0+2*r}, v{A0+2*r+1}" for r in range(4)]
            L += [lambda: (a(f"s_add_u32 s43, s60, {t*KB}"), self.store(f"buffer_store_dwordx4 {vr(V_EP,4)}, v{V_LANE16}, s[8:11], s43 offen", f"h{t}"))]
            return L
        hreg = lambda s: XR + 4 * (s % 32)
        def al_h(s):
            t, i = s // 8, s % 8
            if OPT.get("x_noh") and s >= 16: return
            if OPT.get("x_sameh"): t, i = 0, s % 2
            a(f"s_add_u32 s43, s29, {(7*i + t)*KB}"); a(f"buffer_load_dwordx4 {vr(hreg(s),4)}, v{V_LANE16}, s[8:11], s43 offen sc1"); vm.issue(f"a{s}")
        NP = OPT.get("np", 16)
        queue = []; flag_at = {}; T1 = OPT.get('t1', 3)
        def fill2(i):
            for t in range(7):
                if done[t] + 2 == i: queue.extend((x, t) for x in epi(t))
            out = []
            if i == 70:
                def pk2():
                    a(f"v_and_b32 v{V_EP}, 1, v2"); a(f"v_add_u32 v{V_EP}, 1, v{V_EP}"); a("s_sub_u32 s40, 15, s16"); a(f"v_min_u32 v{V_EP}, s40, v{V_EP}"); a(f"v_lshlrev_b32 v{V_EP}, 11, v{V_EP}")
                    a(f"buffer_load_dword v{V_OUT}, v{V_EP}, s[8:11], s36 offen sc1"); vm.issue("pk")
                out.append(pk2)
            if i == done[2] + 4:
                def ck2():
                    d = self.lab()
                    a("s_add_u32 s61, s22, 1"); vm.wait("pk")
                    a(f"v_cmp_gt_u32 vcc, s61, v{V_OUT}"); a(f"s_cbranch_vccz {d}")
                    self.poll(V_EP, "s36", "s61"); a(f"{d}:")
                out.append(ck2)
            if OPT["fine"] and i == done[2]: self.pend_stamp = 12
            if OPT["fine"] and i == done[4]: self.pend_stamp = 13
            for t2, sidx in start.items():
                if sidx == i + 1 and t2 >= 4:
                    while queue and queue[0][1] <= t2 - 4: out.append(queue.pop(0)[0])
            cost = 0; lim = OPT.get("fillc", 3)
            while queue and cost < lim:
                x, t = queue.pop(0); out.append(x)
                cost += 3 if callable(x) else 2 if x.startswith(("v_exp", "v_rcp")) else 1
                if callable(x) and t == T1: flag_at[i + OPT.get("fld", 13)] = (F_H1, t)
                if callable(x) and t == 4 and T1 == 2: flag_at[min(i + OPT.get("fld", 13), len(steps) - 1)] = (8, t)
            if i in flag_at: out.append(lambda v=flag_at[i]: self.flag(v[0], f"h{v[1]}"))
            k6 = i - start[6]
            if k6 == 31 - NP - 14: out.append(lambda: self.peek(V_PH))
            if k6 == 31 - NP: out.append(lambda: self.check(V_PH, F_H1))
            if 31 - NP < k6 <= 31: out.append(lambda s_=k6 - (32 - NP): al_h(s_))
            return out
        self.stream(steps, look=4, fill=fill2)
        assert flag_at and min(flag_at) < start[6], (flag_at, start)
        for x, _ in queue: self.emit(x)
        for x in epi(6): self.emit(x)
        self.stamp(8)
        a(f"s_add_u32 s58, s53, {XB}"); a("s_add_u32 s58, s58, s34"); a(f"s_add_u32 s59, s54, {STB}"); a("s_add_u32 s59, s59, s34")
        PD = OPT.get("pd", 14)
        hooks = {OPT.get("hflag", 5): lambda u: self.flag(F_H2, "h6"), 32 - PD - 8: lambda u: self.peek(V_PH), 32 - PD - 1: lambda u: self.check(V_PH, F_H2)}
        if T1 == 2:
            hooks = {OPT.get("hflag", 5): lambda u: self.flag(F_H2, "h6"), 24 - PD - 7: lambda u: self.peek(V_PH), 24 - PD - 1: lambda u: self.check(V_PH, 8),
                     40 - PD - 8: lambda u: self.peek(V_PH), 40 - PD - 1: lambda u: self.check(V_PH, F_H2)}
            assert len(hooks) == 5
        self.res_gemm(56, wd_slot, hreg, al_h, NP, PD, {s: f"w{s}" for s in DG}, {s - 1: f"d{s}" for s in DP},
                      XCH_DN, "dx", (52, "d43"), hooks=hooks)
        self.stamp(10)
        a("s_cmp_lg_u32 s22, 0"); a("s_cbranch_scc1 L_c_final")
        self.x_store("s58", "s59", F_X2)
        a("s_lshl_b32 s55, s27, 15"); a(f"s_add_u32 s55, s55, {XB}"); a("s_add_u32 s55, s55, s34")
        a("s_lshl_b32 s56, s27, 12"); a(f"s_add_u32 s56, s56, {STB}"); a("s_add_u32 s56, s56, s34")
        a(f"s_mov_b32 s57, {F_X2}")
        self.next_iter()
        a.fence()
        a("s_branch L_c_loop")
        a("L_c_final:")
        a("s_lshl_b32 s40, s48, 15"); a("s_lshl_b32 s41, s49, 6"); a("s_add_u32 s40, s40, s41")
        a(f"buffer_store_dwordx4 {vr(V_RES,4)}, v{V_XOFF}, s[12:15], s40 offen{['', ' sc1', ' nt', ' sc0 sc1'][OPT.get('osc', 0)]}")
        a(f"buffer_store_dwordx4 {vr(V_RES+4,4)}, v{V_XOFF}, s[12:15], s40 offen offset:32{['', ' sc1', ' nt', ' sc0 sc1'][OPT.get('osc', 0)]}")
        self.finish()

    def next_iter(self):
        a = self.a
        a("s_mov_b32 s22, 1"); a("s_mov_b32 s23, 16"); a("s_mov_b32 s7, 64"); a("s_add_u32 s4, s4, 1"); a(f"v_mov_b32 v{V_BASE}, 64")
        a(f"s_mul_i32 s35, s21, {ITS}")
    def finish(self):
        a = self.a
        if OPT["stamp"]:
            a("s_waitcnt vmcnt(0)")
            self.stamp(11)
            a("s_lshl_b32 s40, s2, 12"); a("s_lshl_b32 s41, s3, 9"); a("s_add_u32 s40, s40, s41"); a(f"s_add_u32 s40, s40, {TS}")
            if OPT.get("dbgout") and self.role == "C":
                l = self.lab()
                a("s_lshl_b32 s41, s2, 3"); a("s_add_u32 s41, s41, s3"); a(f"s_cmp_lg_u32 s41, {OPT['dbgout']*8}"); a(f"s_cbranch_scc1 {l}")
                a("s_load_dwordx2 s[44:45], s[0:1], 64"); a("s_mov_b32 s46, 256"); a("s_mov_b32 s47, 0x20000")
                a(f"v_readlane_b32 s42, v{V_TS}, 31"); a("v_mov_b32 v41, 0")
                for n, idx in enumerate([0, 14, 3, 4, 7, 8, 10, 32+1, 32+14, 32+3, 32+4, 32+7, 32+8, 32+11]):
                    a(f"v_readlane_b32 s43, v{V_TS}, {idx}"); a("s_sub_u32 s43, s43, s42"); a("s_nop 3"); a(f"v_writelane_b32 v41, s43, {n}")
                a("v_lshlrev_b32 v40, 2, v2"); a("s_waitcnt lgkmcnt(0)"); a("s_mov_b64 exec, 0x3fff")
                a("buffer_store_dword v41, v40, s[44:47], 0 offen offset:8"); a("s_mov_b64 exec, -1")
                a(f"{l}:")
            a("v_lshlrev_b32 v40, 2, v2")
            a(f"buffer_store_dword v{V_TS}, v40, s[8:11], s40 offen"); a(f"buffer_store_dword v{V_TS2}, v40, s[8:11], s40 offen offset:256")
        a("s_endpgm")

    def helper(self):
        a = self.a; self.role = "H"; vm = VM(a)
        HV_QKV = 16; HV_ROW0 = 17; HV_OOB = 18; HV_PK = 19; HV_W = 20; HV_R128 = 23; HV_TQ = 24; HT = 26
        SQ, SO, SD, SG, SX, SDBG = "s[44:47]", "s[48:51]", "s[52:55]", "s[56:59]", "s[60:63]", "s[12:15]"
        HF_ = 25
        W = OPT.get("win", 8)
        st = dict(it=0); outq = []; sigs = []
        cnt = dict(issued=0, done=0)
        def hpub_txt(name):
            self.seen.add(("H", name))
            return [f"v_mov_b32 v{V_TMP}, {64*st['it'] + HV[name]}", f"ds_max_u32 v{V_PUBA}, v{V_TMP}"]
        def hpub(name):
            for x in hpub_txt(name): a(x)
        def retire(n):
            if n > cnt["done"]:
                k = cnt["issued"] - n; assert 0 <= k <= 63
                if cnt.get("ghost") and n <= cnt["ghost"][0]:
                    l = self.lab()
                    a(f"s_waitcnt vmcnt({k + cnt['ghost'][1]})"); a("s_cmp_lg_u32 s87, 0"); a(f"s_cbranch_scc1 {l}"); a(f"s_waitcnt vmcnt({k})"); a(f"{l}:")
                else: a(f"s_waitcnt vmcnt({k})")
                cnt["done"] = n
            last = None
            while sigs and sigs[0][1] <= cnt["done"]: last = sigs.pop(0)[0]; self.seen.add(("H", last))
            if last: hpub(last)
        def op(win=None):
            cnt["issued"] += 1
            retire(max(cnt["done"], cnt["issued"] - (W if win is None else win)))
        def sig(name):
            sigs.append((name, cnt["issued"])); retire(cnt["done"])
        def flush():
            while sigs: retire(sigs[0][1])
        def drain():
            retire(cnt["issued"])
        def need(name, src="C", it=None):
            l1 = self.lab(); l2 = self.lab(); l3 = self.lab()
            val = 64 * (st["it"] if it is None else it) + (CV if src == "C" else HV)[name]
            rd = f"ds_read_b32 v{V_FLG}, v{HF_} offset:{16 if src == 'C' else 0}"
            a(rd); a("s_waitcnt lgkmcnt(0)"); a(f"s_movk_i32 s39, {val}"); a(f"v_cmp_gt_u32 vcc, s39, v{V_FLG}"); a(f"s_cbranch_vccz {l2}")
            for nm, n in sigs:
                a(f"s_waitcnt vmcnt({cnt['issued'] - n})")
                for x in hpub_txt(nm): a(x)
            a(f"{l3}:"); a(f"s_sleep {OPT.get('hsl', 1)}"); a("s_add_u32 s38, s38, 1"); a(f"s_cmp_gt_u32 s38, {OPT['spin']*16}"); a(f"s_cbranch_scc1 {l2}")
            a(rd); a("s_waitcnt lgkmcnt(0)"); a(f"v_cmp_gt_u32 vcc, s39, v{V_FLG}"); a(f"s_cbranch_vccnz {l3}")
            a.pending.pop(l3, None)
            a(f"{l2}:")
            self.used.add((src, name))
        spq = []
        def tile(t, gs=range(8)):
            for g in gs: self.dma("s29", t*32*KB + g*4*KB, GU_REG[t] + g*4*KB, fl="" if OPT.get("wplain") else " sc1"); op()
        def wqkv(which, gs, win=None):
            for g in gs:
                a(f"s_add_u32 s41, s30, {4*g}"); a("s_and_b32 s41, s41, 31"); a("s_mul_i32 s41, s41, 49152"); a("s_add_u32 s41, s41, s31")
                for ci, reg in which:
                    self.dma("s41", ci*1024, reg + g*4*KB, voff=HV_QKV, srd=SQ)
                    if spq and g >= 2 and OPT.get("scoop", 4) in (1, 4):
                        def f():
                            for _ in range(OPT.get("scn", 2)):
                                if spq: a(spq.pop(0))
                        only(["s_cmp_lt_u32 s80, 2"], f)
                    op(win)
                if len(which) == 2 and g % 2 == 1: sig(f"kv{g//2}")
        def wqp(which, gs):
            for g in gs:
                for ci, reg in which: self.dma("s34", ci*32*KB + g*4*KB, reg + g*4*KB, fl="" if OPT.get("wplain") else " sc1"); op()
        WK = (1, RK); WV = (2, RV); WQ = (0, RQ)
        st_next = [0]; st_idx = {}
        def stash(n):
            for _ in range(n):
                s_ = st_next[0]
                if s_ >= 56: break
                t, i = s_ // 8, s_ % 8
                a(f"s_add_u32 s40, s33, {(7*i + t)*16*KB}")
                a(f"buffer_load_dwordx4 {vr(STASH+4*s_,4)}, v{HV_R128}, {SD}, s40 offen"); op(); st_idx[s_] = cnt["issued"]
                st_next[0] += 1
        def wdw(steps):
            for s_ in steps:
                if s_ >= 56: break
                retire(max(cnt["done"], st_idx[s_]))
                if OPT.get("x_nowdw"): continue
                o = wd_slot(s_)
                a(f"ds_write_b128 v{HV_W + (o >> 16)}, {vr(STASH+4*s_,4)} offset:{o & 0xffff}")
                if OPT.get("wpace"): a("s_waitcnt lgkmcnt(0)")
        def only(cond_lines, fn):
            l = self.lab()
            for c in cond_lines: a(c)
            a(f"s_cbranch_scc0 {l}"); fn(); a(f"{l}:")
        a(f"v_lshrrev_b32 v{HT}, 2, v2"); a(f"v_mul_u32_u24 v{HV_QKV}, 3072, v{HT}"); a(f"v_and_b32 v{HT}, 3, v2"); a(f"v_lshl_add_u32 v{HV_QKV}, v{HT}, 4, v{HV_QKV}")
        a("s_add_u32 s30, s28, s6"); a("s_lshl_b32 s31, s17, 6")
        a(f"s_mov_b32 s46, {512*3072}"); a("s_mov_b32 s47, 0x20000")
        a("s_mov_b64 s[44:45], s[66:67]")
        if OPT["stamp"]: a(f"v_writelane_b32 v{V_TS}, s100, 31")
        a("s_mul_i32 s83, s2, 9363"); a("s_lshr_b32 s83, s83, 18")
        a("s_mul_i32 s40, s83, 28"); a("s_sub_u32 s84, s2, s40")
        a("s_mul_i32 s40, s84, 37"); a("s_lshr_b32 s40, s40, 8"); a("s_mul_i32 s41, s40, 7"); a("s_sub_u32 s41, s84, s41")
        a("s_lshl_b32 s41, s41, 3"); a("s_add_u32 s41, s41, s83"); a("s_lshl_b32 s40, s40, 6"); a("s_add_u32 s40, s40, s41"); a("s_lshl_b32 s40, s40, 3"); a(f"s_add_u32 s88, s40, {RF}")
        a("s_cmp_lt_u32 s2, 224"); a("s_cselect_b32 s88, s88, 0x7ff00000")
        a("s_lshl_b32 s89, s17, 8"); a("s_lshl_b32 s40, s16, 4"); a("s_add_u32 s89, s89, s40"); a(f"s_add_u32 s89, s89, {PFL}")
        def zero():
            def nonce():
                a("s_memrealtime s[42:43]"); a("s_mov_b64 s[12:13], s[70:71]"); a("s_mov_b32 s14, 256"); a("s_mov_b32 s15, 0x20000"); a("s_waitcnt lgkmcnt(0)")
                a("s_lshl_b64 s[42:43], s[42:43], 3"); a("s_or_b32 s43, s43, 0x80000000")
                a("v_mov_b32 v44, s42"); a("v_mov_b32 v45, s43")
                a("s_mov_b64 exec, 1"); a(f"buffer_store_dwordx2 v[44:45], off, {SDBG}, 0 sc1"); a("s_mov_b64 exec, -1")
            only(["s_cmp_eq_u32 s2, 0"], nonce)
            for r in range(4): a(f"v_mov_b32 v{40+r}, 0")
            a("s_sub_u32 s40, s24, 28")
            a("s_lshl_b32 s81, s16, 11"); a("s_lshl_b32 s41, s17, 7"); a("s_add_u32 s81, s81, s41"); a(f"s_add_u32 s81, s81, {KVFL}")
            a("s_mov_b64 exec, 1")
            a("buffer_store_dwordx4 v[40:43], off, s[8:11], s40 sc1"); a("buffer_store_dwordx4 v[40:43], off, s[8:11], s81 sc1")
            a("buffer_store_dwordx2 v[40:41], off, s[8:11], s88 sc1"); a("buffer_store_dwordx4 v[40:43], off, s[8:11], s89 sc1")
            a("s_mov_b64 exec, -1")
        only(["s_cmp_eq_u32 s6, 3"], zero)
        def codepf():
            a("s_mov_b64 exec, 0xffff"); a("global_load_dword v31, v[10:11], off"); a("s_mov_b64 exec, -1")
        def qtouch():
            a(f"v_lshrrev_b32 v{HT}, 3, v2"); a(f"v_mul_u32_u24 v{HT}, 3072, v{HT}"); a(f"v_and_b32 v{HT+1}, 7, v2"); a(f"v_lshl_add_u32 v{HT}, v{HT+1}, 7, v{HT}")
            a("s_mul_i32 s41, s2, 6144"); a("s_mov_b64 exec, 0xffff"); a(f"buffer_load_dword v161, v{HT}, {SQ}, s41 offen"); a("s_mov_b64 exec, -1")
        if not OPT.get("ct0"): only(["s_cmp_eq_u32 s6, 1"], qtouch)
        def c3q():
            a(f"v_and_b32 v{HT}, 15, v2"); a(f"v_mul_u32_u24 v{HT}, 3072, v{HT}"); a(f"v_lshrrev_b32 v{HT+1}, 4, v2"); a(f"v_lshl_add_u32 v{HT}, v{HT+1}, 10, v{HT}")
            a("s_lshr_b32 s41, s2, 3"); a("s_mul_i32 s41, s41, 49152"); a("s_add_u32 s41, s41, 384")
            a("s_mov_b32 exec_hi, 0xffff"); a(f"buffer_load_dword v161, v{HT}, {SQ}, s41 offen"); a("s_mov_b64 exec, -1")
        if OPT.get("c3", 2): only(["s_cmp_eq_u32 s6, 0"], c3q)
        def c3w(srd, n):
            a(f"v_lshlrev_b32 v{HT}, 10, v2"); a("s_lshr_b32 s41, s2, 3"); a(f"s_mul_i32 s41, s41, {n*1024}"); a("s_add_u32 s41, s41, 384")
            m = (1 << n) - 1
            a(f"s_mov_b32 exec_lo, {m & 0xffffffff:#x}"); a(f"s_mov_b32 exec_hi, {m >> 32:#x}"); a(f"buffer_load_dword v31, v{HT}, {srd}, s41 offen"); a("s_mov_b64 exec, -1")
        def tlb():
            st_ = OPT.get("tlbs", 2) * MB // 2
            a("s_mov_b64 s[42:43], s[8:9]")
            for p in range(WS_USED // st_):
                a("s_load_dword s94, s[42:43], 0"); a(f"s_add_u32 s42, s42, {st_}"); a("s_addc_u32 s43, s43, 0")
            for r in (68, 76, 78): a(f"s_load_dword s94, s[{r}:{r+1}], 0")
            a("s_load_dword s94, s[76:77], 0xffff0"); a("s_load_dword s94, s[78:79], 0xffff0")
        wqkv([WK, WV], range(0, 2), win=63)
        if OPT.get("ct0"):
            a(f"v_lshlrev_b32 v{HT}, 7, v2")
            def tw():
                a("s_mul_i32 s41, s2, 6144"); a("s_mov_b32 exec_hi, 0xffff"); a(f"buffer_load_dword v161, v{HT}, {SQ}, s41 offen"); a("s_mov_b64 exec, -1")
            def tx():
                a("s_mov_b64 s[56:57], s[64:65]"); a(f"s_mov_b32 s58, {2048*1024}"); a("s_mov_b32 s59, 0x20000")
                a("s_lshl_b32 s41, s16, 4"); a("s_add_u32 s41, s41, s17"); a("s_lshl_b32 s41, s41, 13"); a(f"buffer_load_dword v161, v{HT}, {SG}, s41 offen")
            only(["s_cmp_eq_u32 s6, 1"], tw); only(["s_cmp_eq_u32 s6, 0"], tx)
        if OPT.get("tlb", 0): only(["s_cmp_eq_u32 s6, 0"], tlb)
        a("s_mov_b64 s[12:13], s[70:71]"); a("s_mov_b32 s14, 256"); a("s_mov_b32 s15, 0x20000")
        a("s_mov_b64 s[48:49], s[68:69]"); a(f"s_mov_b32 s50, {512*1024}"); a("s_mov_b32 s51, 0x20000")
        a("s_mov_b64 s[52:53], s[76:77]"); a(f"s_mov_b32 s54, {1792*1024}"); a("s_mov_b32 s55, 0x20000")
        a(f"v_lshrrev_b32 v{HT}, 3, v2"); a(f"v_bfe_u32 v{HT+1}, v2, 4, 1"); a(f"v_lshlrev_b32 v{HT+1}, 2, v{HT+1}")
        a(f"v_and_b32 v{HT+2}, 7, v2"); a(f"v_xor_b32 v{HT+2}, v{HT+1}, v{HT+2}"); a(f"v_lshlrev_b32 v{HT+2}, 4, v{HT+2}")
        a(f"v_lshl_add_u32 v{HV_R128}, v{HT}, 10, v{HT+2}")
        a(f"v_mul_u32_u24 v{HT+3}, 3584, v{HT}"); a(f"v_add_u32 v{HT+3}, v{HT+3}, v{HT+2}")
        a("s_and_b32 s85, s83, 1"); a("s_lshr_b32 s86, s83, 1")
        if OPT.get("rl2", 0): a("s_add_u32 s80, s6, 3"); a("s_and_b32 s80, s80, 3")
        else: a("s_add_u32 s80, s6, 1"); a("s_cmp_eq_u32 s6, 0"); a("s_cselect_b32 s80, 0, s80"); a("s_cmp_eq_u32 s6, 3"); a("s_cselect_b32 s80, 1, s80")
        a("s_lshl_b32 s86, s86, 1"); a("s_add_u32 s86, s86, s80")
        a("s_cmp_eq_u32 s85, 0"); a("s_cselect_b64 s[56:57], s[72:73], s[74:75]"); a(f"s_mov_b32 s58, {512*3584}"); a("s_mov_b32 s59, 0x20000")
        a("s_cmp_lt_u32 s2, 224"); a("s_cselect_b32 s87, 1, 0"); a("s_cmp_lt_u32 s80, 2"); a("s_cselect_b32 s87, s87, 0")
        def rel_ld():
            a(f"s_mul_i32 s41, s86, {64*3584}"); a("s_lshl_b32 s40, s84, 7"); a("s_add_u32 s41, s41, s40")
            for o in range(8):
                a(f"buffer_load_dwordx4 {vr(128+4*o,4)}, v{HT+3}, {SG}, s41 offen")
                if o < 7: a(f"s_add_u32 s41, s41, {8*3584}")
        if OPT.get("rele"): only(["s_cmp_gt_u32 s87, 0"], rel_ld); cnt["ghost"] = (cnt["issued"], 8)
        def coop():
            a(f"v_lshlrev_b32 v{HT}, 7, v2"); a("s_lshl_b32 s41, s2, 13")
            only(["s_cmp_eq_u32 s6, 1"], lambda: a(f"buffer_load_dword v161, v{HT}, {SD}, s41 offen"))
            a("s_sub_u32 s41, 255, s2"); a("s_lshl_b32 s41, s41, 13")
            if OPT.get("scoop", 4) != 4: only(["s_cmp_eq_u32 s6, 2"], lambda: a(f"buffer_load_dword v161, v{HT}, {SO}, s41 offen"))
        a("s_lshl_b32 s32, s19, 7"); a("s_and_b32 s40, s6, 1"); a("s_lshl_b32 s40, s40, 13"); a("s_add_u32 s32, s32, s40")
        a("s_lshr_b32 s40, s6, 1"); a(f"s_mul_i32 s33, s40, {56*16*KB}"); a("s_add_u32 s33, s33, s32"); a("s_lshl_b32 s40, s40, 18"); a("s_add_u32 s32, s32, s40")
        a(f"s_mul_i32 s34, s17, {96*KB}"); a(f"s_add_u32 s34, s34, {WQP}"); a("s_add_u32 s34, s34, s25")
        a(f"s_mul_i32 s29, s17, {0 if OPT.get('x_samew') else 7*32*KB}"); a(f"s_add_u32 s29, s29, {WGU}"); a("s_add_u32 s29, s29, s25")
        a(f"v_lshrrev_b32 v{HT}, 5, v2"); a(f"v_lshlrev_b32 v{HV_ROW0}, 9, v{HT}")
        a(f"v_mov_b32 v{HV_OOB}, 0x7ff00000")
        a(f"v_and_b32 v{HT}, 1, v2"); a("s_sub_i32 s40, s16, 1"); a(f"v_sub_u32 v{HT}, s40, v{HT}")
        a(f"v_lshlrev_b32 v{HT+1}, 11, v{HT}"); a("s_lshl_b32 s40, s6, 2"); a(f"v_add_u32 v{HT+1}, s40, v{HT+1}")
        a(f"v_cmp_gt_i32 vcc, 0, v{HT}"); a(f"v_cndmask_b32_e64 v{HV_PK}, v{HT+1}, 0, vcc")
        a("s_lshl_b32 s82, s17, 7"); a(f"s_add_u32 s82, s82, {KVFL}")
        a(f"v_add_u32 v{HV_W}, s25, v{V_LANE16}"); a(f"v_add_u32 v{HV_W+1}, 0x10000, v{HV_W}"); a(f"v_add_u32 v{HV_W+2}, 0x20000, v{HV_W}")
        self.tr_addr16(HV_TQ, HT, HT + 1)
        a("s_lshl_b32 s40, s6, 15"); a(f"v_add_u32 v{HV_TQ}, s40, v{HV_TQ}")
        for r in range(4): a(f"v_mov_b32 v{64+r}, s20")
        a("v_mov_b32 v48, s20"); a("v_mov_b32 v49, s20"); a("v_mov_b32 v50, 0"); a("v_mov_b32 v51, 0"); a(f"v_mov_b32 v52, {L_ONES}")
        for o in (0, 64, 256, 320): a(f"ds_write_b128 v52, v[48:51] offset:{o}")
        def colsum(lo, hi, first, HV_TQ=HV_TQ):
            def rd(kc):
                w = 72 + 4 * (kc % 8)
                a(f"ds_read_b64_tr_b16 {vr(w,2)}, v{HV_TQ} offset:{kc*KB}"); a(f"ds_read_b64_tr_b16 {vr(w+2,2)}, v{HV_TQ} offset:{kc*KB+256}")
            for kc in range(lo, min(hi, lo + 6)): rd(kc)
            for kc in range(lo, hi):
                a(f"s_waitcnt lgkmcnt({2 * (min(hi, kc + 6) - kc - 1)})")
                a(f"{MF} v[112:127], v[64:67], {vr(72+4*(kc%8),4)}, {'0' if (first and kc == lo) else 'v[112:127]'}")
                if kc + 6 < hi: rd(kc + 6)
        def augfin(q4=False):
            a("v_cvt_pk_bf16_f32 v104, v112, v112"); a("v_and_b32 v107, 0xffff, v104")
            a("v_lshlrev_b32 v105, 16, v104"); a("v_sub_f32 v105, v112, v105"); a("v_cvt_pk_bf16_f32 v106, v112, v105")
            if q4: a("s_lshr_b32 s40, s6, 1"); a("s_lshl_b32 s40, s40, 9"); a("s_and_b32 s41, s6, 1"); a("s_lshl_b32 s41, s41, 3"); a("s_add_u32 s40, s40, s41"); a(f"s_add_u32 s40, s40, {L_QB}")
            else: a("s_lshl_b32 s40, s6, 8"); a(f"s_add_u32 s40, s40, {L_AUG}")
            a("v_and_b32 v108, 31, v2"); a(f"v_lshlrev_b32 v108, {4 if q4 else 3}, v108"); a("v_add_u32 v108, s40, v108")
            a("ds_write_b64 v108, v[106:107]"); a("s_waitcnt lgkmcnt(0)")
        kvw = ["s_sub_u32 s40, s6, 1", "s_cmp_lt_u32 s40, 2"]
        qw  = ["s_cmp_eq_u32 s6, 0"]
        w3  = ["s_cmp_eq_u32 s6, 3"]
        def spin_head(loads):
            l = self.lab(); d = self.lab(); l0 = self.lab()
            a("s_mov_b32 s41, 0")
            for x in loads: a(x + ("" if OPT.get("pplain", 0) else " sc1"))
            a(f"s_branch {l0}"); a(f"{l}:"); a("s_sleep 4")
            for x in loads: a(x + " sc1")
            a(f"{l0}:")
            a("s_add_u32 s41, s41, 1"); a(f"s_cmp_gt_u32 s41, {OPT['spin']}"); a(f"s_cbranch_scc1 {d}")
            a("s_waitcnt vmcnt(0)")
            return l, d
        def get_nonce():
            l, d = spin_head([f"buffer_load_dwordx2 {vr(HT,2)}, off, {SDBG}, 0"])
            a(f"v_readfirstlane_b32 s92, v{HT}"); a(f"v_readfirstlane_b32 s93, v{HT+1}")
            a("s_cmp_eq_u32 s93, 0"); a(f"s_cbranch_scc1 {l}"); a(f"{d}:")
        def arrive():
            a("s_waitcnt lgkmcnt(0)")
            only(["s_cmp_eq_u32 s93, 0"], get_nonce)
            a(f"v_mov_b32 v{HT}, s92"); a(f"v_mov_b32 v{HT+1}, s93"); a(f"v_mov_b32 v{HT+2}, {L_TAG}"); a(f"ds_write_b64 v{HT+2}, {vr(HT,2)}")
            a("s_getreg_b32 s40, hwreg(HW_REG_XCC_ID)"); a("s_and_b32 s40, s40, 7"); a("s_or_b32 s91, s40, s92")
            a(f"v_mov_b32 v{HT}, s91"); a(f"v_mov_b32 v{HT+1}, s93")
            a("s_lshl_b32 s40, s16, 7"); a("s_lshl_b32 s41, s17, 3"); a("s_add_u32 s40, s40, s41"); a(f"s_add_u32 s40, s40, {AR}")
            a("s_mov_b64 exec, 1"); a(f"buffer_store_dwordx2 {vr(HT,2)}, off, s[8:11], s40 sc1"); a("s_mov_b64 exec, -1")
        def nbr():
            a("v_lshlrev_b32 v248, 5, v2"); a(f"s_mov_b32 s42, {AR}")
            l, d = spin_head(["buffer_load_dwordx4 v[240:243], v248, s[8:11], s42 offen", "buffer_load_dwordx4 v[244:247], v248, s[8:11], s42 offen offset:16"])
            for q in range(4): a(f"v_xor_b32 v{240+2*q}, s91, v{240+2*q}"); a(f"v_xor_b32 v{241+2*q}, s93, v{241+2*q}")
            a("v_or3_b32 v240, v240, v242, v244"); a("v_or_b32 v240, v240, v246"); a("v_or3_b32 v241, v241, v243, v245"); a("v_and_b32 v249, -8, v240"); a("v_or3_b32 v241, v241, v247, v249")
            a("v_cmp_ne_u32 vcc, 0, v241"); a(f"s_cbranch_vccnz {l}"); a(f"{d}:")
            a("v_cmp_ne_u32 vcc, 0, v240"); a("s_lshl_b32 s40, s16, 2"); a("s_lshr_b64 s[42:43], vcc, s40"); a("s_and_b32 s40, s42, 15"); a("s_cselect_b32 s40, 1, 0")
            if OPT["force_slow"]: a("s_mov_b32 s40, 1")
            a(f"v_mov_b32 v{HT}, s40"); a(f"v_mov_b32 v{HT+1}, {L_MODE}"); a(f"ds_write_b32 v{HT+1}, v{HT}"); a("s_waitcnt lgkmcnt(0)")
        def rel_do():
            a("s_lshl_b32 s40, s80, 12"); a(f"s_add_u32 s40, s40, {P4 if OPT.get('rl2', 0) else 144*KB}"); a(f"v_add_u32 v45, s40, v{V_LANE16}")
            a(f"v_bfe_u32 v40, v2, 2, 2"); a("v_lshlrev_b32 v41, 7, v40"); a("v_lshrrev_b32 v40, 1, v40"); a("v_lshrrev_b32 v42, 5, v2"); a("v_xor_b32 v40, v40, v42")
            a("v_lshl_add_u32 v41, v40, 6, v41"); a(f"v_and_b32 v40, 63, v{HV_TQ}"); a("v_add_u32 v41, v41, v40"); a("v_add_u32 v41, s40, v41")
            for hf in range(2):
                for o in range(4): a(f"ds_write_b128 v45, {vr(128+16*hf+4*o,4)} offset:{o*KB}")
                for o in range(4):
                    a(f"ds_read_b64_tr_b16 {vr(72+16*hf+4*o,2)}, v41 offset:{o*KB}"); a(f"ds_read_b64_tr_b16 {vr(74+16*hf+4*o,2)}, v41 offset:{o*KB+512}")
                a("s_waitcnt lgkmcnt(0)")
            a("v_lshrrev_b32 v40, 4, v2"); a("v_lshlrev_b32 v40, 15, v40"); a("v_and_b32 v42, 15, v2"); a("v_lshl_add_u32 v40, v42, 4, v40")
            a("s_lshl_b32 s40, s84, 17"); a("s_lshl_b32 s41, s86, 12"); a("s_add_u32 s40, s40, s41"); a("s_lshl_b32 s41, s85, 8"); a("s_add_u32 s40, s40, s41"); a(f"s_add_u32 s40, s40, {WGU}")
            a("v_mov_b32 v43, 0"); a("v_mov_b32 v44, 0")
            a("s_waitcnt lgkmcnt(0)")
            for o in range(8): a(f"buffer_store_dwordx4 {vr(72+4*o,4)}, v40, s[8:11], s40 offen offset:{o*512} sc1")
            for i in range(32): a(f"v_dot2_f32_bf16 v{43+i%2}, v{72+i}, s20, v{43+i%2}")
            a("s_nop 2"); a("v_add_f32 v43, v43, v44")
            a("s_lshl_b32 s40, s86, 1"); a("s_add_u32 s40, s40, s85"); a(f"s_mul_i32 s40, s40, {1792*4}"); a("s_lshl_b32 s41, s84, 8"); a("s_add_u32 s40, s40, s41"); a(f"s_add_u32 s40, s40, {CS}")
            a("v_lshlrev_b32 v42, 2, v2")
            a("buffer_store_dword v43, v42, s[8:11], s40 offen sc1")
        def halo():
            for kv in range(2):
                for d in (1, 2):
                    l1 = self.lab(); l2 = self.lab()
                    a(f"s_cmp_lt_u32 s16, {d}"); a(f"s_cbranch_scc1 {l1}")
                    a(f"s_sub_u32 s95, s27, {4*d}"); a("s_lshl_b32 s95, s95, 10"); a("s_add_u32 s95, s95, s94")
                    for hh in range(2): self.dma("s95", kv*32*64*KB + hh*64*KB, LK + kv*12*KB + hh*HS + (8-4*d)*KB, fl=" sc1")
                    a(f"s_branch {l2}")
                    a(f"{l1}:")
                    for hh in range(2): self.dma("s94", hh*64*KB, LK + kv*12*KB + hh*HS + (8-4*d)*KB, voff=(HV_ROW0, HV_OOB)[kv], fl=" sc1")
                    a(f"{l2}:")
                    op(63); op(63)
                sig(("hk", "hv")[kv])
        def pack():
            a("s_lshl_b32 s40, s16, 1"); a("s_sub_u32 s41, s40, s28"); a("s_and_b32 s41, s41, 31"); a("s_lshl_b32 s41, s41, 10"); a("s_lshl_b32 s42, s6, 15"); a("s_add_u32 s41, s41, s42")
            a(f"v_add_u32 v160, s41, v{V_LANE16}")
            a("ds_read_b128 v[164:167], v160"); a("ds_read_b128 v[168:171], v160 offset:1024")
            a("s_lshl_b32 s41, s6, 15"); a("s_lshl_b32 s40, s40, 10"); a("s_add_u32 s41, s41, s40")
            a("s_add_u32 s41, s41, s34"); a("s_sub_u32 s41, s41, s25")
            a("s_mov_b32 s90, s41")
            a("s_waitcnt lgkmcnt(0)")
        def pack_st():
            a(f"buffer_store_dwordx4 v[164:167], v{V_LANE16}, s[8:11], s90 offen sc1"); a(f"buffer_store_dwordx4 v[168:171], v{V_LANE16}, s[8:11], s90 offen offset:1024 sc1")
        def rel_sig():
            a("s_lshl_b32 s40, s80, 2"); a("s_add_u32 s40, s40, s88")
            a(f"v_mov_b32 v{HT}, 1"); a("s_mov_b64 exec, 1"); a(f"buffer_store_dword v{HT}, off, s[8:11], s40 sc1"); a("s_mov_b64 exec, -1")
        def gu_ready():
            a("s_lshr_b32 s40, s17, 2"); a("s_lshl_b32 s40, s40, 9"); a(f"s_add_u32 s42, s40, {RF}")
            a(f"v_min_u32 v{HT+2}, 55, v2"); a(f"v_lshlrev_b32 v{HT+2}, 3, v{HT+2}")
            l, d = spin_head([f"buffer_load_dwordx2 {vr(HT,2)}, v{HT+2}, s[8:11], s42 offen"])
            a(f"v_and_b32 v{HT}, v{HT}, v{HT+1}"); a(f"v_cmp_ne_u32 vcc, 1, v{HT}"); a(f"s_cbranch_vccnz {l}"); a(f"{d}:")
        def pack_sig():
            a("s_lshl_b32 s40, s6, 2"); a("s_add_u32 s40, s40, s89")
            a(f"v_mov_b32 v{HT}, 1"); a("s_mov_b64 exec, 1"); a(f"buffer_store_dword v{HT}, off, s[8:11], s40 sc1"); a("s_mov_b64 exec, -1")
        def gu_aug():
            a("v_lshrrev_b32 v240, 5, v2"); a(f"v_mul_u32_u24 v241, {1792*4}, v240"); a("v_and_b32 v242, 31, v2"); a("v_min_u32 v242, 27, v242"); a("v_lshl_add_u32 v241, v242, 4, v241")
            a(f"s_mul_i32 s40, s17, {112*4}"); a(f"s_add_u32 s40, s40, {CS}")
            for p in range(8):
                a(f"buffer_load_dwordx4 {vr(208+4*p,4)}, v241, s[8:11], s40 offen sc1")
                if p < 7: a(f"s_add_u32 s40, s40, {2*1792*4}")
            a("v_lshrrev_b32 v243, 2, v242"); a("v_lshlrev_b32 v243, 8, v243"); a("v_lshl_add_u32 v243, v240, 7, v243"); a("v_and_b32 v244, 3, v242"); a("v_lshl_add_u32 v243, v244, 5, v243")
            a(f"v_add_u32 v243, {L_AUG + 768}, v243")
            a("s_waitcnt vmcnt(0)")
            for p in range(1, 8):
                for c in range(4): a(f"v_add_f32 v{208+c}, v{208+c}, v{208+4*p+c}")
            for c in range(4):
                a(f"v_cvt_pk_bf16_f32 v245, v{208+c}, v{208+c}"); a(f"v_and_b32 v{217+2*c}, 0xffff, v245")
                a("v_lshlrev_b32 v245, 16, v245"); a(f"v_sub_f32 v245, v{208+c}, v245"); a(f"v_cvt_pk_bf16_f32 v{216+2*c}, v{208+c}, v245")
            a("ds_write_b128 v243, v[216:219]"); a("ds_write_b128 v243, v[220:223] offset:16"); a("s_waitcnt lgkmcnt(0)")
        def pack_ready():
            a("s_lshl_b32 s42, s17, 8"); a(f"s_add_u32 s42, s42, {PFL}"); a("s_mov_b32 s43, 1")
            a(f"v_lshlrev_b32 v{HT}, 2, v2"); self.poll(HT, "s42", "s43", sleep=8)
        a(f"v_and_b32 v{HF_}, 3, v2"); a(f"v_lshlrev_b32 v{HF_}, 2, v{HF_}"); a(f"v_add_u32 v{HF_}, {L_HL}, v{HF_}")
        a("s_lshr_b32 s40, s6, 1"); a("s_lshl_b32 s41, s18, 1"); a("s_add_u32 s40, s40, s41"); a("s_lshl_b32 s41, s16, 2"); a("s_add_u32 s40, s40, s41")
        a("s_and_b32 s41, s6, 1"); a("s_lshl_b32 s42, s19, 1"); a("s_add_u32 s41, s41, s42")
        a("s_lshl_b32 s60, s40, 15"); a("s_lshl_b32 s42, s41, 11"); a("s_add_u32 s60, s60, s42")
        a("s_lshl_b32 s61, s40, 12"); a("s_lshr_b32 s42, s41, 2"); a("s_lshl_b32 s42, s42, 10"); a("s_add_u32 s61, s61, s42")
        a(f"s_mul_i32 s62, s27, {112*KB}"); a("s_lshl_b32 s42, s17, 11"); a("s_add_u32 s62, s62, s42")
        a(f"s_mul_i32 s63, s27, {112*KB}"); a(f"s_mul_i32 s42, s17, {7*KB}"); a("s_add_u32 s63, s63, s42")
        def touch(items):
            a(self.touch_txt([([f"s_add_u32 s43, {r}, {b}"], n) for r, b, n in items]).replace(f"v{V_OUT},", "v31,"))
        def ext():
            pass
        for it in range(2):
            st["it"] = it
            if it == 0:
                KW = OPT.get("kw", 4); RP = OPT.get("rp", 8)
                if OPT.get("scoop", 4):
                    a("s_and_b32 s40, s80, 1"); a("s_lshl_b32 s40, s40, 6"); a(f"s_mul_i32 s41, s2, {7*KB}"); a("s_add_u32 s41, s41, s40"); a("s_add_u32 s64, s52, s41"); a("s_addc_u32 s65, s53, 0")
                    a("s_lshl_b32 s41, s2, 11"); a("s_add_u32 s41, s41, s40"); a("s_add_u32 s66, s48, s41"); a("s_addc_u32 s67, s49, 0")
                    spq += [f"s_load_dword s95, s[66:67], {q*128}" for q in range(16)] + [f"s_load_dword s95, s[64:65], {q*128}" for q in range(56 if OPT.get("scoop", 4) != 4 else 0)]
                wqkv([WK, WV], range(2, 4), win=KW)
                retire(max(4, cnt["done"]))
                only(w3, lambda: a("s_load_dwordx2 s[92:93], s[70:71], 0"))
                wqkv([WK, WV], range(4, 6), win=KW)
                only(w3, arrive)
                wqkv([WK, WV], range(6, RP), win=KW)
                if not OPT.get("rele"): only(["s_cmp_gt_u32 s87, 0"], lambda: (need("x0") if OPT.get("relx", 0) else None, rel_ld())); cnt["ghost"] = (cnt["issued"], 8)
                wqkv([WK, WV], range(RP, 8), win=KW)
                only(kvw, lambda: (need("kv1", "H"), colsum(0, 16, True)))
                flush()
                if OPT.get("coope", 0): coop()
                self.stamp(9)
                only(kvw, lambda: (need("kv3", "H"), colsum(16, 32, False), augfin(), pack()))
                hpub("augkv")
                def spall():
                    while spq: a(spq.pop(0))
                QS = 32; RA = ["s_cmp_gt_u32 s87, 0"]
                if OPT.get("rl2", 0):
                    self.stamp(10)
                    need("x")
                    wqkv([WQ], range(0, 8), win=63)
                    only(w3, nbr)
                    drain(); hpub("wq")
                    only(qw, lambda: (need("wq", "H"), a("s_setprio 3"), colsum(0, 32, True), augfin()))
                    hpub("augq")
                    only(RA, lambda: (need("kv"), rel_do(), need("wq", "H"), a("s_waitcnt vmcnt(0)"), rel_sig()))
                    if OPT.get("scoop", 4) == 2: only(["s_cmp_ge_u32 s80, 2"], spall)
                else:
                    only(RA, lambda: (a("s_setprio 3"), a("s_waitcnt vmcnt(0)"), rel_do(), a("s_setprio 0")))
                    self.stamp(10)
                    need("x")
                    wqkv([WQ], range(0, 8), win=63)
                    only(w3, nbr)
                    drain(); hpub("wq")
                    need("wq", "H")
                    only(RA, rel_sig)
                    a(f"s_mul_i32 s40, s6, {24*KB}"); a(f"v_subrev_u32 v109, s40, v{HV_TQ}")
                    a("s_setprio 3"); colsum(0, 8, True, 109); augfin(True); a("s_setprio 0")
                    hpub("augq")
                    if OPT.get("scoop", 4) == 2: only(kvw, spall)
                self.stamp(12)
            else:
                need("x"); hpub("augq")
            if it == 0:
                only(qw, lambda: (pack(), a("s_setprio 0")))
                only(["s_cmp_lt_u32 s6, 3"], pack_st)
            if it == 0 and OPT.get("st_e"): coop(); stash(OPT["st_e"])
            self.stamp(14)
            need(["hl", "kv", "q"][OPT.get("hgo1", 0) if it else OPT.get("hgo0", 0)])
            self.stamp(2)
            if it == 0:
                a(f"v_mov_b32 v{V_TMP}, {L_MODE}"); a(f"ds_read_b32 v{V_TMP}, v{V_TMP}"); a("s_waitcnt lgkmcnt(0)"); a(f"v_readfirstlane_b32 s21, v{V_TMP}")
            if OPT.get("c3", 2) > 1:
                only(["s_cmp_eq_u32 s6, 2"], lambda: c3w(SO, 16))
                if it == 0: only(["s_cmp_eq_u32 s6, 1"], lambda: c3w(SD, 56))
            if OPT.get("tlate"):
                for g in range(OPT["tlate"]): self.dma("s32", (2*(g%8) + g//8)*16*KB, RK + g*4*KB, voff=HV_R128, srd=SO); op()
            if OPT.get("codepf", 1) > 1 and it == 0: only(["s_cmp_eq_u32 s6, 0"], codepf)
            touch([("s63", OF, 16), ("s60", XA, 16), ("s61", STA, 8)])
            if it == 0 and OPT.get("scoop", 4) in (0, 4) and not OPT.get("coope", 0) and not OPT.get("st_e"): coop()
            assert not spq
            self.stamp(3)
            for g in range(OPT.get("tlate", 0), 16):
                self.dma("s32", (2*(g%8) + g//8)*16*KB, RK + g*4*KB, voff=HV_R128, srd=SO); op()
                if it == 0 and not OPT.get("rel0", 1):
                    if g == 2: only(["s_cmp_gt_u32 s87, 0"], lambda: (a("s_waitcnt vmcnt(3)"), rel_do()))
                    if g == 3 + W: only(["s_cmp_gt_u32 s87, 0"], rel_sig)
            sig("wo")
            if it == 0:
                pack_sig()
                stash(OPT.get("st_0", 10)); flush()
                only(w3, gu_ready)
                hpub("gur"); need("gur", "H")
            self.stamp(5)
            tile(0); tile(1, range(0, 3))
            if it == 0: stash(OPT.get("st_a", 0))
            need("h0"); tile(1, range(3, 8))
            if it == 0: only(w3, gu_aug); stash(OPT.get("st_b", 20))
            if OPT.get("htouch", 0) > it: touch([("s63", HF, 56)])
            for n in range(OPT.get("pf1", 0) if it else OPT.get("pf0", 0)):
                if n == 0:
                    a("s_and_b32 s40, s16, 1"); a("s_lshl_b32 s41, s6, 1"); a("s_add_u32 s40, s40, s41"); a("s_lshl_b32 s40, s40, 13")
                    a("s_sub_u32 s43, s29, s25"); a("s_add_u32 s43, s43, s40"); a(f"v_lshlrev_b32 v{HT}, 7, v2")
                a(f"s_add_u32 s43, s43, {64*KB}")
                a(f"buffer_load_dword v31, v{HT}, s[8:11], s43 offen"); op(1)
            self.stamp(4)
            if OPT.get("t2e", 1):
                need("wo1"); tile(2); sig("t2_3")
                for p in range(3): self.seen.add(("H", f"t2_{p}"))
                need("xr"); flush(); wdw(range(0, 7))
                if it == 0: only(w3, pack_ready)
                need("xch")
            else:
                need("wo"); tile(2, range(0, 2)); sig("t2_0")
                need("xch")
                for p in range(1, 4): tile(2, range(2*p, 2*p + 2)); sig(f"t2_{p}")
            if OPT.get("t3g"): need(f"g{OPT['t3g']}")
            tile(3); sig("t3")
            for p, nm in enumerate(("g8", "g16", "g24", "g32")):
                need(nm); tile(4, range(2*p, 2*p + 2))
            sig("t4")
            tile(5); sig("t5"); tile(6); sig("t6")
            if it == 0: stash(9)
            if OPT.get("wlate", 1): flush()
            if OPT.get("codepf", 1) > 2 and it == 0: only(["s_cmp_eq_u32 s6, 0"], codepf)
            need("t3"); wdw(range(7, 15))
            if it == 0: stash(8)
            need("t4"); wdw(range(15, 23))
            flush(); hpub("w0")
            if it == 0: stash(56)
            if it == 1 and OPT.get("wb") == 1: only(["s_lshr_b32 s40, s2, 3", "s_lshl_b32 s40, s40, 2", "s_add_u32 s40, s40, s6", "s_cmp_eq_u32 s40, 0"], lambda: a("buffer_wbl2 sc1"))
            need("t5"); wdw(range(23, 31)); hpub("w23")
            need("t6"); wdw(range(31, 39)); hpub("w31")
            need("d7"); wdw(range(39, 46)); hpub("w39")
            if it == 0:
                need("d15"); wqp([WV], range(8))
                need("d23"); wqp([WK], range(4))
            if it == 1 and OPT.get("wb") == 2: only(["s_lshr_b32 s40, s2, 3", "s_lshl_b32 s40, s40, 2", "s_add_u32 s40, s40, s6", "s_cmp_eq_u32 s40, 0"], lambda: a("buffer_wbl2 sc1"))
            need("d33"); wdw(range(46, 56)); hpub("w46")
            if it == 0:
                wqp([WK], range(4, 8))
                need("d39"); wqp([WQ], range(2, 8))
            if it == 0:
                drain(); hpub("nkv")
                need("d56"); wqp([WQ], range(0, 2)); drain()
                a("s_mov_b32 s23, 16")
        self.finish()

    def count_poll(self, soff, T):
        a = self.a; l = self.lab(); d = self.lab()
        a("s_mov_b32 s41, 0")
        l0 = self.lab(); a(f"s_branch {l0}"); a(f"{l}:"); a("s_sleep 8"); a(f"{l0}:")
        a(f"buffer_load_dwordx2 {vr(T,2)}, off, s[12:15], {soff} sc1"); a("s_waitcnt vmcnt(0)")
        a(f"v_readfirstlane_b32 s42, v{T}"); a(f"v_readfirstlane_b32 s43, v{T+1}")
        a("s_add_u32 s41, s41, 1"); a(f"s_cmp_gt_u32 s41, {OPT['spin']}"); a(f"s_cbranch_scc1 {d}")
        a("s_add_u32 s40, s42, s43"); a("s_mul_i32 s40, s40, 0x01010101"); a("s_lshr_b32 s40, s40, 24")
        a("s_cmp_lg_u32 s40, 16"); a(f"s_cbranch_scc1 {l}")
        a(f"{d}:")

    def build(self):
        a = self.a
        self.prologue()
        a("s_cmp_ge_u32 s3, 4"); a("s_cbranch_scc1 L_helper")
        self.compute()
        a("L_helper:")
        self.helper()
        assert self.used <= self.seen, self.used - self.seen
        a("L_end:"); a("s_endpgm")
        for x in self.ool: a.raw(x)
        a.raw("L_code_end:"); a.raw("    s_endpgm")
        return a.text()

def build():
    body = Main().build()
    return f"""; generated by dev/gen10.py
; @launch grid=(256,1,1) block=(512,1,1) lds={160*KB}
.amdgcn_target "amdgcn-amd-amdhsa--gfx950"
.text
{body}
.section .rodata,"a"
.p2align 6
.amdhsa_kernel {NAME}
  .amdhsa_next_free_vgpr 256
  .amdhsa_next_free_sgpr 102
  .amdhsa_accum_offset 256
  .amdhsa_group_segment_fixed_size 0
  .amdhsa_kernarg_size 80
  .amdhsa_user_sgpr_count 2
  .amdhsa_user_sgpr_kernarg_segment_ptr 1
  .amdhsa_system_sgpr_workgroup_id_x 1
.end_amdhsa_kernel
"""

if __name__ == "__main__":
    for x in sys.argv[2:]:
        if "=" in x: kk, v = x.split("="); OPT[kk] = int(v)
        else: OPT[x] = True
    open(sys.argv[1], "w").write(build())
```

```python
import sys, struct
from asmlib import *

NAME = "interleave_layers__sliding_block__glu_gated_glu__prompt_kernel"
KB = 1024
MB = 1 << 20
WQP  = 0
CS   = 0x180000
FL   = 0x1A0000
KVFL = 0x1A4000
RF   = 0x1AC000
PFL  = RF + 2048
AR   = RF + 8192
WGU  = 2*MB
STA  = WGU + 3584*KB; STB = STA
XA   = 6*MB; XB = XA
KV   = 8*MB
KVT  = 4608
KVS  = 0
HF   = 8*MB
OF   = HF
WS_USED = 16*MB
ALS  = 128*MB
ITS  = 32*MB
TS   = 0x6000000
WS_BYTES = 0x10000000
LOG2E = 1.4426950408889634
def f32(x): return "0x%08x" % struct.unpack("<I", struct.pack("<f", x))[0]
MF = "v_mfma_f32_32x32x16_bf16"
OPT = dict(stamp=False, force_slow=False, spin=400000, pre=10, cprio=2, fine=0, pf=0, kvflag=24, rot=1, win=6, hsc1=1)

P1, P2, P3, P4, PE, MISC = 0, 32*KB, 64*KB, 96*KB, 128*KB, 156*KB
LK = 108*KB; LV = LK + 12*KB; HS = 24*KB
L_QB = MISC; L_AUG = MISC + 768; L_ONES = MISC + 3328; L_HL = MISC + 3712; L_CP = L_HL + 16; L_MODE = L_HL + 32; L_TAG = L_HL + 40; L_DUMMY = MISC + 3840
DG = [0, 23, 31, 39, 46]
DP = [7, 15, 23, 33, 39, 43, 56]
CSEQ = ["x0", "x", "kv", "q", "hl", "h0", "att", "wo1", "wo", "xr", "xch", "g8", "g16", "g24", "g32", "t3", "t4", "t5", "t6"] + [f"d{s}" for s in DP] + ["dx"]
HSEQ = ["kv0", "kv1", "kv2", "kv3", "augkv", "wq", "augq", "wo", "gur", "t2_0", "t2_1", "t2_2", "t2_3", "t3", "t4", "t5", "t6"] + [f"w{s}" for s in DG] + ["nkv"]
CV = {n: i + 1 for i, n in enumerate(CSEQ)}; HV = {n: i + 1 for i, n in enumerate(HSEQ)}
assert max(len(CSEQ), len(HSEQ)) < 64
XCH_WO = PE; XCH_DN = PE
L_X0 = P4
L_REL_ = 0
def wd_slot(s):
    for lo, hi, reg in ((0, 7, PE), (7, 15, P3), (15, 23, P2), (23, 31, P4), (31, 39, P1), (39, 46, PE), (46, 54, P4), (54, 56, P1)):
        if lo <= s < hi: return reg + (s - lo)*4*KB
GU_REG = [P1, P4, P2, P3, P2, P4, P1]
RQ, RK, RV = P1, P2, P3
F_O1, F_O2, F_X1, F_H1, F_H2, F_X2 = 1, 2, 3, 7, 9, 10
STASH = 32

V_LANE16 = 3; V_F0 = 4
V_TQ = 6
V_XOFF = 8
V_RSTD = 10; V_STD = 11; V_C1 = 12; V_TMP = 13; V_TS = 14; V_TS2 = 15
V_XAUG = 16
V_PX = 20; V_PH = 21; V_AUGA = 22; V_OUT = 23
V_RES = 24
V_PUBA = 0; V_FA = 35; V_FLG = 1; V_BASE = 9
V_FW = 32
V_EP = 36
ACC = [40, 56, 72, 88]
WR = 96; NW = 8
XR = 128
T0 = 104

class VM:
    def __init__(self, a): self.a = a; self.q = []
    def issue(self, tag): self.q.append(tag)
    def wait(self, tag):
        idx = max((i for i, t in enumerate(self.q) if t == tag), default=-1)
        if idx < 0: return
        n = len(self.q) - 1 - idx; assert n <= 63
        self.a(f"s_waitcnt vmcnt({n})"); del self.q[:idx + 1]
    def drain(self):
        self.a("s_waitcnt vmcnt(0)"); self.q = []

def stats_calc_list(d0, tmp):
    L = [f"v_mov_b32 v{tmp}, 0", f"v_mov_b32 v{tmp+1}, 0"]
    for i in range(8):
        L.append(f"v_dot2_f32_bf16 v{tmp}, v{d0+i}, s20, v{tmp}")
        L.append(f"v_dot2_f32_bf16 v{tmp+1}, v{d0+i}, v{d0+i}, v{tmp+1}")
    L += ["s_nop 2", f"v_permlane32_swap_b32 v{tmp}, v{tmp+1}", "s_nop 1", f"v_add_f32 v{tmp}, v{tmp}, v{tmp+1}"]
    return L

class Main:
    DBARS = list(range(0, 56, 7))
    def __init__(self):
        self.a = Asm(); self.nl = 0
        self.seen = set(); self.used = set()
        self.role = None; self.pend_stamp = None; self.ool = []; self.nw = NW; self.wr = WR
    def lab(self): self.nl += 1; return f"L{self.nl}"
    def emit(self, x):
        if callable(x): x()
        else: self.a(x)
    def pub(self, name):
        self.a(f"v_add_u32 v{V_TMP}, {CV[name]}, v{V_BASE}"); self.a(f"ds_write_b32 v{V_PUBA}, v{V_TMP}")
        self.seen.add(("C", name))
    def gate_rd(self, src): self.a(f"ds_read_b32 v{V_FLG}, v{V_FA} offset:{0 if src == 'H' else 16}")
    def gate_cmp(self, name, src="H", absval=None):
        a = self.a
        n = (HV if src == "H" else CV)[name]
        if absval is not None: a(f"s_movk_i32 s39, {absval}")
        else: a(f"s_add_u32 s39, s7, {n}")
        a(f"v_cmp_gt_u32 s[30:31], s39, v{V_FLG}")
        self.used.add((src, name))
    def gate_br(self, src="H", redo=[]):
        a = self.a; l1 = self.lab(); l2 = self.lab()
        a("s_cmp_eq_u64 s[30:31], 0"); a(f"s_cbranch_scc1 {l2}")
        a(f"{l1}:")
        if OPT.get("csl"): a(f"s_sleep {OPT['csl']}")
        a("s_add_u32 s38, s38, 1"); a(f"s_cmp_gt_u32 s38, {OPT['spin']*16}"); a(f"s_cbranch_scc1 {l2}")
        a(f"ds_read_b32 v{V_FLG}, v{V_FA} offset:{0 if src == 'H' else 16}")
        for x in redo: a(x)
        a("s_waitcnt lgkmcnt(0)"); a(f"v_cmp_gt_u32 vcc, s39, v{V_FLG}"); a(f"s_cbranch_vccnz {l1}")
        a.pending.pop(l1, None)
        a(f"{l2}:")
    def gate_chk(self, name, src="H", absval=None):
        self.gate_cmp(name, src, absval); self.gate_br(src)
    def gate(self, name, src="H", absval=None):
        self.gate_rd(src); self.a("s_waitcnt lgkmcnt(0)"); self.gate_chk(name, src, absval)
    def stamp(self, i):
        if not OPT["stamp"]: return
        a = self.a
        a("s_memrealtime s[96:97]"); a("s_memtime s[98:99]"); a("s_waitcnt lgkmcnt(0)")
        if OPT.get("cnt"): a("s_lshl_b32 s98, s38, 12"); a("s_add_u32 s98, s98, s5")
        a(f"s_add_u32 s97, s23, {i}"); a(f"s_add_u32 m0, s97, s23"); a("s_nop 3")
        a(f"v_writelane_b32 v{V_TS}, s96, m0"); a(f"v_writelane_b32 v{V_TS2}, s98, m0")
    def store(self, instr, tag="st"):
        l1 = self.lab(); l2 = self.lab(); a = self.a
        if tag[0] == "h" and OPT.get("hsc1") == 1:
            a(instr + " sc1"); self.vm.issue(tag); return
        if tag[0] == "h" and OPT.get("hsc1") == 2:
            a("s_cmp_le_u32 s22, s21"); a(f"s_cbranch_scc1 {l1}"); a(instr); a(f"s_branch {l2}"); a(f"{l1}:"); a(instr + " sc1"); a(f"{l2}:")
            self.vm.issue(tag); return
        a("s_cmp_lg_u32 s21, 0"); a(f"s_cbranch_scc1 {l1}"); a(instr); a(f"{l2}:")
        a.pending.pop(l1, None)
        self.ool += [f"{l1}:", "    " + instr + " sc1", f"    s_branch {l2}"]
        self.vm.issue(tag)
    def flag(self, val, tag="st"):
        a = self.a
        a(f"s_add_u32 s40, s23, {val}"); a(f"v_mov_b32 v{V_TMP}, s40"); self.vm.wait(tag); a("s_mov_b64 exec, 1")
        self.store(f"buffer_store_dword v{V_TMP}, off, s[8:11], s24", "fl_st"); a("s_mov_b64 exec, -1")
    def peek(self, voff):
        self.a(f"buffer_load_dword v{V_OUT}, v{voff}, s[8:11], s26 offen sc1"); self.vm.issue("pk")
    def check(self, voff, val):
        a = self.a; d = self.lab()
        a(f"s_add_u32 s61, s23, {val}")
        self.vm.wait("pk")
        a(f"v_cmp_gt_u32 vcc, s61, v{V_OUT}"); a(f"s_cbranch_vccz {d}")
        self.poll(voff, "s26", "s61")
        a(f"{d}:")
    def acquire(self):
        a = self.a; l = self.lab()
        a("s_cmp_eq_u32 s21, 0"); a(f"s_cbranch_scc1 {l}"); a("buffer_inv sc1"); a("s_waitcnt vmcnt(0)"); a(f"{l}:")
    def poll(self, voff, sbase, sval, srd="s[8:11]", sleep=0):
        a = self.a; l = self.lab(); d = self.lab()
        a("s_mov_b32 s41, 0")
        if sleep and OPT.get("pplain", 0):
            l0 = self.lab(); a(f"buffer_load_dword v{V_TMP}, v{voff}, {srd}, {sbase} offen"); a(f"s_branch {l0}"); a(f"{l}:"); a(f"s_sleep {sleep}")
            a(f"buffer_load_dword v{V_TMP}, v{voff}, {srd}, {sbase} offen sc1"); a(f"{l0}:")
        else:
            if sleep:
                l0 = self.lab(); a(f"s_branch {l0}"); a(f"{l}:"); a(f"s_sleep {sleep}"); a(f"{l0}:")
            else: a(f"{l}:")
            a(f"buffer_load_dword v{V_TMP}, v{voff}, {srd}, {sbase} offen sc1")
        if OPT.get("cnt"): a("s_add_u32 s5, s5, 1")
        a("s_add_u32 s41, s41, 1"); a(f"s_cmp_gt_u32 s41, {OPT['spin']}"); a(f"s_cbranch_scc1 {d}")
        a("s_waitcnt vmcnt(0)")
        a(f"v_cmp_gt_u32 vcc, {sval}, v{V_TMP}")
        a(f"s_cbranch_vccnz {l}")
        a(f"{d}:")
    def poll2(self, voff, sbase, sval):
        N = OPT.get("pp", 1)
        if N == 1: return self.poll(voff, sbase, sval)
        a = self.a; l = self.lab(); d = self.lab()
        regs = [ACC[0] + i for i in range(N)]
        ld = lambda r: a(f"buffer_load_dword v{r}, v{voff}, s[8:11], {sbase} offen sc1")
        a("s_mov_b32 s41, 0")
        for n, r in enumerate(regs):
            ld(r)
            if n < N - 1: a(f"s_sleep {OPT.get('ppd', 2)}")
        a(f"{l}:")
        for r in regs:
            a(f"s_waitcnt vmcnt({N-1})"); a(f"v_cmp_gt_u32 vcc, {sval}, v{r}"); a(f"s_cbranch_vccz {d}"); ld(r)
        a("s_add_u32 s41, s41, 1"); a(f"s_cmp_le_u32 s41, {OPT['spin']}"); a(f"s_cbranch_scc1 {l}")
        a.pending.pop(l, None)
        a(f"{d}:")
    def dma(self, sbase, const, lds, voff=V_LANE16, fl="", srd="s[8:11]", sl="s25"):
        a = self.a
        a(f"s_add_u32 s40, {sbase}, {const}")
        a(f"s_add_u32 m0, {sl}, {lds}")
        a(f"buffer_load_dwordx4 v{voff}, {srd}, s40 offen{fl} lds")
    def touch_txt(self, items):
        l = self.lab()
        L = ["s_cmp_lg_u32 s21, 0", f"s_cbranch_scc1 {l}", f"v_lshlrev_b32 v{V_TMP}, 7, v2"]
        for sal, n in items:
            L += sal
            m = (1 << n) - 1
            L += [f"s_mov_b32 exec_lo, {m & 0xffffffff:#x}", f"s_mov_b32 exec_hi, {m >> 32:#x}", f"buffer_load_dword v{V_OUT}, v{V_TMP}, s[8:11], s43 offen sc1"]
        L += ["s_mov_b64 exec, -1", f"{l}:"]
        return "\n".join(L)
    def stream(self, steps, look, fill=None):
        a = self.a
        reads = []; need = []
        for s in steps:
            reads += s["reads"]; need.append(len(reads) - 1)
        per = 2 if any(r["op"].endswith("tr_b16") for r in reads) else 1
        pre_rd = {}; pre_cmp = {}
        for i, r in enumerate(reads):
            if r.get("gate"):
                pre_rd[max(0, i - look - per)] = i; pre_cmp[max(0, i - per)] = i
        ng = sum(1 for r in reads if r.get("gate"))
        assert len(pre_rd) == ng and len(pre_cmp) == ng
        gi = sorted(pre_rd.values())
        assert all(b - a_ > look + per for a_, b in zip(gi, gi[1:])), gi
        nr = 0; q = []; done = [0]; self._q = q
        def wait(tag):
            idx = q.index(tag)
            if idx < done[0]: return
            n = len(q) - 1 - idx; assert n <= 15, n
            a(f"s_waitcnt lgkmcnt({n})"); done[0] = idx + 1
        def issue():
            nonlocal nr
            r = reads[nr]
            if nr in pre_rd: self.gate_rd(reads[pre_rd[nr]].get("gsrc", "H")); q.append(("g", pre_rd[nr]))
            if nr in pre_cmp:
                g = reads[pre_cmp[nr]]
                wait(("g", pre_cmp[nr])); self.gate_cmp(g["gate"], g.get("gsrc", "H"), g.get("absval"))
            if r.get("gate"): self.gate_br(r.get("gsrc", "H"))
            if r.get("vm") is not None: self.vm.wait(r["vm"])
            n = 4 if r["op"] == "ds_read_b128" else 2
            fm = r["fam"]; off = r["off"]
            reg = fm[off >> 16] if isinstance(fm, list) else fm
            a(f"{r['op']} {vr(r['d'], n)}, v{reg} offset:{off & 0xffff}"); q.append(nr)
            if r.get("pub"): self.pub(r["pub"]); q.append(("p", nr))
            nr += 1
        for i, s in enumerate(steps):
            while nr < len(reads) and nr <= need[i] + (look if i == 0 else 0): issue()
            for x in s.get("pre", []): self.emit(x)
            wait(need[i + 1] if (s.get("pair") and i + 1 < len(steps)) else need[i])
            a(s["mf"])
            nxt = need[i + 1] if i + 1 < len(steps) else need[i]
            while nr < len(reads) and nr <= nxt + look: issue()
            for x in s.get("post", []): self.emit(x)
            if fill:
                for f in fill(i): self.emit(f)
            if self.pend_stamp: self.stamp(self.pend_stamp); self.pend_stamp = None
    def rd128(self, w, off, gate=None, pub=None): return [dict(op="ds_read_b128", d=w, fam=[V_F0, V_F0 + 1], off=off, gate=gate, pub=pub)]
    def rdtr(self, w, fam, off, d2, gate=None, pub=None, absval=None):
        return [dict(op="ds_read_b64_tr_b16", d=w, fam=fam, off=off, gate=gate, absval=absval), dict(op="ds_read_b64_tr_b16", d=w + 2, fam=fam, off=off + d2, pub=pub)]
    def tr_addr16(self, dst, t0, t1):
        a = self.a
        a(f"v_lshrrev_b32 v{t0}, 5, v2"); a(f"v_lshlrev_b32 v{dst}, 9, v{t0}")
        a(f"v_bfe_u32 v{t0}, v2, 2, 2"); a(f"v_lshl_add_u32 v{dst}, v{t0}, 6, v{dst}")
        a(f"v_bfe_u32 v{t0}, v2, 4, 1"); a(f"v_lshl_add_u32 v{dst}, v{t0}, 5, v{dst}")
        a(f"v_and_b32 v{t0}, 1, v2"); a(f"v_lshl_add_u32 v{dst}, v{t0}, 4, v{dst}")
        a(f"v_bfe_u32 v{t0}, v2, 1, 1"); a(f"v_lshl_add_u32 v{dst}, v{t0}, 3, v{dst}")

    def prologue(self):
        a = self.a
        a.raw(f".globl {NAME}"); a.raw(".p2align 8"); a.raw(f".type {NAME},@function"); a.raw(f"{NAME}:")
        a(f"s_cmp_ge_u32 s2, {0 if OPT.get('empty') else 256}"); a("s_cbranch_scc1 L_end")
        if OPT["stamp"] or OPT.get("x_dl2"): a("s_memrealtime s[100:101]")
        a("s_load_dwordx4 s[64:67], s[0:1], 0")
        a("s_load_dwordx2 s[8:9], s[0:1], 72")
        a("s_load_dwordx2 s[68:69], s[0:1], 16")
        a("s_load_dwordx8 s[72:79], s[0:1], 32")
        a("s_load_dwordx2 s[70:71], s[0:1], 64")
        a("v_lshrrev_b32 v1, 6, v0"); a("v_and_b32 v2, 63, v0")
        a("v_readfirstlane_b32 s3, v1")
        if OPT.get("codepf", 1):
            a("s_getpc_b64 s[42:43]")
            a.raw("L_pc:")
            a(f"s_sub_u32 s42, s42, L_pc-{NAME}"); a("s_subb_u32 s43, s43, 0")
            a("s_lshr_b32 s40, s2, 3"); a("s_lshl_b32 s40, s40, 11")
            a("v_lshlrev_b32 v10, 7, v2"); a("v_add_u32 v10, s40, v10"); a(f"v_min_u32 v10, L_code_end-{NAME}-4, v10")
            a("v_mov_b32 v11, s43"); a("v_add_co_u32 v10, vcc, s42, v10"); a("v_addc_co_u32 v11, vcc, 0, v11, vcc")
            a("s_cmp_lg_u32 s3, 6"); a("s_cbranch_scc1 L_nopf")
            a("s_mov_b64 exec, 0xffff"); a("global_load_dword v31, v[10:11], off"); a("s_mov_b64 exec, -1")
            a("L_nopf:")
        a(f"s_mov_b32 s10, {WS_BYTES}"); a("s_mov_b32 s11, 0x20000")
        a(f"v_lshlrev_b32 v{V_LANE16}, 4, v2")
        a("s_and_b32 s4, s2, 7"); a("s_lshr_b32 s5, s2, 3"); a("s_and_b32 s6, s3, 3")
        a("s_lshl_b32 s16, s4, 1"); a("s_lshr_b32 s40, s5, 4"); a("s_add_u32 s16, s16, s40")
        a("s_and_b32 s17, s5, 15")
        a("s_lshr_b32 s18, s17, 3"); a("s_and_b32 s19, s17, 7")
        a("s_mov_b32 s20, 0x3f803f80"); a("s_mov_b32 s21, 0"); a("s_mov_b32 s22, 0"); a("s_mov_b32 s23, 0")
        a("s_lshl_b32 s26, s16, 9"); a(f"s_add_u32 s26, s26, {FL}")
        a("s_lshl_b32 s24, s17, 5"); a("s_lshl_b32 s40, s3, 2"); a("s_add_u32 s24, s24, s40"); a("s_add_u32 s24, s24, s26")
        a("s_lshl_b32 s25, s6, 10")
        a("s_lshl_b32 s27, s16, 2"); a("s_add_u32 s27, s27, s6")
        if OPT["rot"]: a("s_add_u32 s28, s16, s17"); a("s_lshl_b32 s28, s28, 2"); a("s_and_b32 s28, s28, 31")
        else: a("s_mov_b32 s28, 0")
        a("s_mov_b32 s35, 0"); a("s_mov_b32 s36, 0")
        a(f"v_mov_b32 v{V_TS}, 0"); a(f"v_mov_b32 v{V_TS2}, 0")
        a("s_xor_b32 s40, s3, 4"); a("s_lshl_b32 s40, s40, 2"); a(f"s_add_u32 s40, s40, {L_HL}")
        a(f"v_lshlrev_b32 v{V_PUBA}, 2, v2"); a(f"v_add_u32 v{V_PUBA}, {L_DUMMY}, v{V_PUBA}"); a(f"v_writelane_b32 v{V_PUBA}, s40, 0")
        a(f"v_mov_b32 v{V_BASE}, 0"); a("s_mov_b32 s7, 0"); a("s_mov_b32 s38, 0")
        a(f"ds_write_b32 v{V_PUBA}, v{V_BASE}")
        a("s_waitcnt lgkmcnt(0)"); a("s_barrier")
        if OPT.get("wsoff"):
            a(f"s_add_u32 s8, s8, {OPT['wsoff']*MB}"); a("s_addc_u32 s9, s9, 0"); a(f"s_mov_b32 s10, {WS_BYTES - OPT['wsoff']*MB}")

    def attention(self):
        KF = XR + 8; S = [XR + 44, XR + 60, XR + 76]; NM = [XR + 92, XR + 108]; MX = [XR + 124, XR + 125]; T = XR + 126
        O = [ACC[2], ACC[3]]; VA = ACC[1]; KA = VA + 9
        VF = [104, 112]; P = [120, ACC[0] + 8]; BM = ACC[0]; NEG = KA + 2
        t0, t1, t2, t3, t4 = (ACC[0] + 8 + i for i in range(5))
        L = [f"v_and_b32 v{t0}, 31, v2", f"v_lshrrev_b32 v{t1}, 5, v2",
             f"v_and_b32 v{KA}, 0x13, v{t0}", f"v_bfe_u32 v{t2}, v{t0}, 2, 1", f"v_lshl_add_u32 v{KA}, v{t2}, 3, v{KA}",
             f"v_bfe_u32 v{t2}, v{t0}, 3, 1", f"v_lshl_add_u32 v{KA}, v{t2}, 2, v{KA}",
             f"v_lshlrev_b32 v{KA}, 4, v{KA}", f"v_lshl_add_u32 v{KA}, v{t1}, 9, v{KA}",
             f"s_add_u32 s41, s25, {LK}\nv_add_u32 v{KA}, s41, v{KA}",
             f"v_bfe_u32 v{t2}, v2, 2, 2", f"v_lshl_add_u32 v{t2}, v{t1}, 3, v{t2}", f"v_lshlrev_b32 v{t2}, 4, v{t2}",
             f"v_and_b32 v{t3}, 1, v2", f"v_lshl_add_u32 v{t2}, v{t3}, 9, v{t2}",
             f"v_bfe_u32 v{t3}, v2, 1, 1", f"v_lshl_add_u32 v{t2}, v{t3}, 3, v{t2}",
             f"s_add_u32 s41, s25, {LV}\nv_add_u32 v{t2}, s41, v{t2}",
             f"v_bfe_u32 v{t3}, v2, 4, 1", f"v_xor_b32 v{t4}, 1, v{t3}",
             f"v_mul_u32_u24 v{KA+1}, {HS}, v{t4}", f"v_mul_u32_u24 v{VA}, v{t2}, v{t4}", f"v_mul_u32_u24 v{t2}, {L_ONES}, v{t3}", f"v_add_u32 v{VA}, v{VA}, v{t2}",
             f"v_lshlrev_b32 v{t4}, 10, v{t4}"]
        L += [f"v_add_u32 v{VA+i}, v{t4}, v{VA+i-1}" for i in range(1, 9)]
        l = self.lab()
        fx = ["s_cmp_ge_u32 s27, 8", f"s_cbranch_scc1 {l}", "s_sub_i32 s42, 8, s27", f"v_lshlrev_b32 v{t3}, 3, v{t3}"]
        for i in range(8): fx += [f"s_cmp_gt_i32 s42, {i}", "s_cselect_b32 s41, -1, 0", f"v_and_b32 v{t2}, s41, v{t3}", f"v_add_u32 v{VA+i}, v{t2}, v{VA+i}"]
        L.append("\n".join(fx + [f"{l}:"]))
        L += [f"v_mov_b32 v{t0}, 0xffff", f"v_mov_b32 v{t1}, 0xffff0000"]
        for p in range(8):
            L += [f"v_cndmask_b32_e64 v{t2}, v{t0}, 0, s[{64+4*p}:{65+4*p}]", f"v_cndmask_b32_e64 v{t3}, v{t1}, 0, s[{66+4*p}:{67+4*p}]", f"v_or_b32 v{BM+p}, v{t2}, v{t3}"]
        L += [f"v_mov_b32 v{NEG}, {f32(-1e30)}", f"v_mov_b32 v{NEG+1}, {f32(2.0**OPT.get('thr', 40))}", f"v_mov_b32 v{NEG+2}, {f32(2.0**-OPT.get('thr', 40))}"]
        return dict(KF=KF, S=S, NM=NM, O=O, VA=VA, VF=VF, P=P, BM=BM, MX=MX, T=T, KA=KA, NEG=NEG), L

    def attention_run(self, r, halo_k, halo_v, early_a, redo_a):
        a = self.a
        KF, S, NM, O, VA, VF, P, BM, MX, T, KA, NEG = (r[x] for x in "KF S NM O VA VF P BM MX T KA NEG".split())
        def kread(hh, i, d=None): a(f"ds_read_b128 {vr(KF+4*(i if d is None else d),4)}, v{KA} offset:{hh*HS + i*KB}")
        def vrd(reg, vf):
            for t in range(2):
                for u in range(2): a(f"ds_read_b64_tr_b16 {vr(vf+4*t+2*u,2)}, v{reg} offset:{t*256 + u*64}")
        def vread(hh, i, vf):
            vrd(VA + i, vf)
            if hh == 0: a(f"v_add_u32 v{VA+i}, v{KA+1}, v{VA+i}")
        def qk(hh, dst, i, c): a(f"{MF} {vr(dst,16)}, {vr(KF+4*i,4)}, {vr(XR+4*hh,4)}, {c}")
        def pv(hh, vf, p, t, first=False): a(f"{MF} {vr(O[hh],16)}, {vr(vf+4*t,4)}, {vr(p+4*t,4)}, {'0' if first else vr(O[hh],16)}")
        def mx(b, first=False):
            lo = 0
            if first:
                a(f"v_max3_f32 v{MX[0]}, v{b}, v{b+1}, v{b+2}"); a(f"v_max3_f32 v{MX[1]}, v{b+3}, v{b+4}, v{b+5}"); lo = 6
            for n, q in enumerate(range(lo, 16, 2)): a(f"v_max3_f32 v{MX[n%2]}, v{MX[n%2]}, v{b+q}, v{b+q+1}")
        def mxfin(hh):
            a(f"v_max_f32 v{MX[0]}, v{MX[0]}, v{MX[1]}"); a(f"v_mov_b32 v{MX[1]}, v{MX[0]}")
            a(f"v_permlane32_swap_b32 v{MX[0]}, v{MX[1]}"); a("s_nop 1"); a(f"v_max_f32 v{MX[0]}, v{MX[0]}, v{MX[1]}")
            for q in range(16): a(f"v_sub_f32 v{NM[hh]+q}, 0, v{MX[0]}")
        def mask(b, diag):
            for q in range(16):
                a(f"v_cndmask_b32_e64 v{b+q}, v{NEG}, v{b+q}, s[{64+2*q}:{65+2*q}]" if diag else f"v_cndmask_b32_e64 v{b+q}, v{b+q}, v{NEG}, s[{64+2*q}:{65+2*q}]")
        def ex(b, lo, hi):
            for q in range(lo, hi): a(f"v_exp_f32 v{b+q}, v{b+q}")
        def cv(p, b, lo, hi):
            for q in range(lo, hi): a(f"v_cvt_pk_bf16_f32 v{p+q}, v{b+2*q}, v{b+2*q+1}")
        def fin(hh, bad=None):
            a(f"v_rcp_f32 v{T}, v{O[hh]+8}")
            if bad:
                a(f"v_med3_f32 v{MX[0]}, v{O[hh]+8}, v{NEG+2}, v{NEG+1}"); a(f"v_cmp_neq_f32 vcc, v{O[hh]+8}, v{MX[0]}")
            for q in range(8): a(f"v_mul_f32 v{O[hh]+q}, v{T}, v{O[hh]+q}")
            if bad: a(f"s_cbranch_vccnz {bad}"); a.pending.pop(bad, None)
            for q in range(4): a(f"v_cvt_pk_bf16_f32 v{V_EP+q}, v{O[hh]+2*q}, v{O[hh]+2*q+1}")
            self.store(f"buffer_store_dwordx4 {vr(V_EP,4)}, v{V_LANE16}, s[8:11], s37 offen offset:{hh*KB}")
        vread(0, 8, VF[0]); vread(1, 8, VF[1])
        qk(0, S[0], 8, "0"); qk(1, S[1], 7, "0")
        halo_v()
        mx(S[0], True); mxfin(0); qk(0, S[0], 8, vr(NM[0], 16))
        mx(S[1], True); mxfin(1); qk(1, S[1], 7, vr(NM[1], 16))
        def diag(hh):
            ex(S[hh], 0, 16); cv(P[hh], S[hh], 0, 8)
            for q in range(8): a(f"v_bfi_b32 v{P[hh]+q}, v{BM+q}, 0, v{P[hh]+q}")
        diag(0)
        a("s_waitcnt lgkmcnt(0)")
        pv(0, VF[0], P[0], 0, True)
        if OPT["fine"] > 2: self.stamp(15)
        halo_k(lambda: pv(0, VF[0], P[0], 1))
        diag(1)
        order = [7, 6, 5, 4, 3, 2, 1, 0]
        blocks = [(hh, i) for hh in range(2) for i in order]
        krs = [f"ds_read_b128 {vr(KF+4*i,4)}, v{KA} offset:{i*KB}" for i in order[:3]]
        self.gate_rd("C")
        for x in krs: a(x)
        pv(1, VF[1], P[1], 0, True)
        a("s_waitcnt lgkmcnt(3)"); self.gate_cmp("hl", "C")
        pv(1, VF[1], P[1], 1)
        self.gate_br("C", redo=krs)
        for i in order[3:]: kread(0, i)
        a("s_waitcnt lgkmcnt(7)"); qk(0, S[0], 7, vr(NM[0], 16))
        a("s_waitcnt lgkmcnt(6)"); qk(0, S[1], 6, vr(NM[0], 16))
        F3 = (lambda i: self.stamp(i)) if OPT["fine"] > 2 else (lambda i: None)
        F3(16)
        kread(1, 7); kread(1, 6)
        pend = None
        for n, (hh, i) in enumerate(blocks):
            b = S[n % 3]; vf = VF[n % 2]; p = P[n % 2]
            ex(b, 0, 4)
            vread(hh, i, vf)
            if pend: pv(*pend)
            ex(b, 4, 10)
            kr = False
            if n + 2 < 16:
                h2, i2 = blocks[n + 2]
                if n == 0: a("s_waitcnt lgkmcnt(6)")
                qk(h2, S[(n + 2) % 3], i2, vr(NM[h2], 16))
                if h2 == 0: kread(1, i2); kr = True
            if n == OPT.get("pk", 15): self.peek(V_PH)
            ex(b, 10, 16)
            if n == 8: F3(17); fin(0, "L_redo0"); self.pub("h0"); F3(18)
            if n == OPT.get("fo1", 11): F3(19); self.flag(F_O1); F3(20)
            cv(p, b, 0, 8)
            if i == 0:
                for q in range(8): a(f"v_and_b32 v{p+q}, v{BM+q}, v{p+q}")
            a("s_waitcnt lgkmcnt(1)" if (kr or n == 8) else "s_waitcnt lgkmcnt(0)")
            pv(hh, vf, p, 0)
            pend = (hh, vf, p, 1)
        pv(*pend)
        fin(1, "L_redo1")
        self.pub("att")
        lb = self.lab(); lj = self.lab()
        a(f"s_add_u32 s61, s23, {F_O1}"); self.vm.wait("pk")
        a(f"v_cmp_gt_u32 vcc, s61, v{V_OUT}"); a(f"s_cbranch_vccz {lb}")
        qs = list(self.vm.q)
        a("L_att_late:")
        self.flag(F_O2); redo_a(a); a("s_waitcnt vmcnt(0)"); a(f"s_branch {lj}")
        a(f"{lb}:")
        self.vm.q = qs
        early_a()
        self.flag(F_O2)
        a(f"{lj}:")
        main = self.a; saved_q = list(self.vm.q)
        self.a = a = Asm(); self.vm.a = a
        def redo(hh):
            a("s_nop 15"); a("s_waitcnt vmcnt(0) lgkmcnt(0)")
            for i in range(9): kread(hh, i)
            a("s_waitcnt lgkmcnt(0)")
            a("s_sub_i32 s42, 8, s27")
            for i in (8, 0, 1, 2, 3, 4, 5, 6, 7):
                sk = self.lab()
                a(f"s_cmp_gt_i32 s42, {i}"); a(f"s_cbranch_scc1 {sk}")
                qk(hh, S[0], i, "0")
                if i in (0, 8): mask(S[0], i == 8)
                mx(S[0], i == 8)
                a(f"{sk}:")
            mxfin(hh)
            for i in (8, 0, 1, 2, 3, 4, 5, 6, 7):
                sk = self.lab()
                a(f"s_cmp_gt_i32 s42, {i}"); a(f"s_cbranch_scc1 {sk}")
                if hh == 0: a(f"v_sub_u32 v{T}, v{VA+i}, v{KA+1}")
                vrd(T if hh == 0 else VA + i, VF[0])
                qk(hh, S[0], i, vr(NM[hh], 16))
                if i in (0, 8): mask(S[0], i == 8)
                ex(S[0], 0, 16); cv(P[0], S[0], 0, 8)
                a("s_waitcnt lgkmcnt(0)")
                pv(hh, VF[0], P[0], 0, i == 8); pv(hh, VF[0], P[0], 1)
                a(f"{sk}:")
            fin(hh)
        a("L_redo0:")
        redo(0); self.pub("h0"); self.vm.q = ["st"]; self.flag(F_O1)
        a("L_redo1:")
        redo(1); self.pub("att")
        a("s_waitcnt vmcnt(0)"); a("s_branch L_att_late")
        self.ool += a.out
        self.a = main; self.vm.a = main; self.vm.q = saved_q

    def ln_stats(self, d):
        L = []
        for n in (8, 4, 2, 1):
            for i in range(n): L.append(f"v_add_f32 v{d+i}, v{d+i}, v{d+i+n}")
        L += [f"v_mov_b32 v{d+1}, v{d}", f"v_permlane32_swap_b32 v{d}, v{d+1}", "s_nop 1",
              f"v_mul_f32 v{d}, {f32(-1.0/512)}, v{d}", f"v_mul_f32 v{d+1}, {f32(1.0/512)}, v{d+1}",
              f"v_fma_f32 v{d+1}, -v{d}, v{d}, v{d+1}", f"v_max_f32 v{d+1}, 0, v{d+1}", f"v_add_f32 v{d+1}, {f32(1e-5)}, v{d+1}",
              f"v_rsq_f32 v{V_RSTD}, v{d+1}", f"v_sqrt_f32 v{V_STD}, v{d+1}",
              f"v_cvt_pk_bf16_f32 v{V_XAUG}, v{d}, v{d}",
              f"v_and_b32 v{d+2}, 0xffff0000, v{V_XAUG}", f"v_sub_f32 v{d+2}, v{d}, v{d+2}", f"v_mov_b32 v{d+3}, 0",
              f"v_cvt_pk_bf16_f32 v{V_XAUG+1}, v{d+2}, v{d+3}",
              f"v_cndmask_b32_e64 v{V_XAUG}, 0, v{V_XAUG}, s[62:63]", f"v_cndmask_b32_e64 v{V_XAUG+1}, 0, v{V_XAUG+1}, s[62:63]",
              f"v_mul_f32 v{V_C1}, {f32(-LOG2E)}, v{V_RSTD}"]
        return L
    def wreg(self):
        w = self.wr + 4 * (self.wc % self.nw); self.wc += 1; return w
    def aug_step(self, acc, augidx, bn=None, look=None):
        w = self.wreg()
        s = dict(reads=[dict(op="ds_read_b64", d=w, fam=V_AUGA, off=augidx * 256, gate=bn)], mf=f"{MF} {vr(acc,16)}, {vr(w,4)}, {vr(V_XAUG,4)}, {vr(acc,16)}")
        return s
    def x_pass1(self, xl, sst, local, wread, augs, augbar, NT=2):
        a = self.a; vm = self.vm
        PRE = OPT["pre"] if NT == 2 else OPT.get("pre3", OPT["pre"]); STD = ACC[NT]
        def X(kc):
            def f(): xl(kc); vm.issue(f"x{kc}")
            return f
        XS = STD + 4
        xslot = lambda p: [L_X0, L_X0 + 16*KB, L_X0 + 32*KB, RQ, RQ + 16*KB][p if p < 5 else p - 5]
        def piece(p):
            a(f"s_add_u32 s41, s28, {4*p}"); a("s_and_b32 s41, s41, 31"); a("s_lshl_b32 s41, s41, 5"); a("s_add_u32 s41, s41, s55")
            for i in range(4): self.dma("s41", i*8*KB, xslot(p) + i*KB, voff=XS + i%2, srd="s[44:47]", sl="s42"); vm.issue(f"pc{p}")
        def dots(lo, hi):
            for kc in range(lo, hi):
                for i in range(4):
                    r = XR + 4 * kc + i
                    a(f"v_dot2c_f32_bf16 v{STD + 2*(i%2)}, s20, v{r}"); a(f"v_dot2c_f32_bf16 v{STD + 1 + 2*(i%2)}, v{r}, v{r}")
        def xrd(p): return [dict(op="ds_read_b128", d=XR+16*p+4*q, fam=(XS+2+q if xslot(p) >= L_X0 else XS+6+q), off=(xslot(p) - L_X0 if xslot(p) >= L_X0 else xslot(p) - RQ), vm=(f"pc{p}" if q == 0 else None)) for q in range(4)]
        def piece_part(p, i):
            if i == 0: a(f"s_add_u32 s33, s28, {4*p}"); a("s_and_b32 s33, s33, 31"); a("s_lshl_b32 s33, s33, 5"); a("s_add_u32 s33, s33, s55")
            self.dma("s33", i*8*KB, xslot(p) + i*KB, voff=XS + i%2, srd="s[44:47]", sl="s42"); vm.issue(f"pc{p}")
        def fin0():
            dots(28, 32)
            a(f"v_add_f32 v{STD}, v{STD}, v{STD+2}"); a(f"v_add_f32 v{STD+1}, v{STD+1}, v{STD+3}")
            a(f"v_permlane32_swap_b32 v{STD}, v{STD+1}"); a("s_nop 1"); a(f"v_add_f32 v{STD}, v{STD}, v{STD+1}")
            for x in self.ln_stats(STD)[15:]: a(x)
        if local == "start":
            a(f"v_lshrrev_b32 v{XS+3}, 4, v2"); a(f"v_and_b32 v{XS}, 7, v2"); a(f"v_xor_b32 v{XS}, v{XS+3}, v{XS}"); a(f"v_lshlrev_b32 v{XS}, 4, v{XS}")
            a(f"v_lshrrev_b32 v{XS+3}, 3, v2"); a(f"v_lshl_add_u32 v{XS}, v{XS+3}, 10, v{XS}"); a(f"v_xor_b32 v{XS+1}, 64, v{XS}")
            a("s_lshl_b32 s42, s6, 12")
            a("s_waitcnt lgkmcnt(0)"); a("s_mov_b64 s[44:45], s[64:65]")
            piece(0)
            return
        if local:
            piece(1)
            if not OPT.get("p2l"): piece(2)
            for i in range(4): a(f"v_mov_b32 v{STD+i}, 0")
            a(f"v_bfe_u32 v{XS+2}, v2, 1, 3"); a(f"v_lshrrev_b32 v{XS+3}, 5, v2"); a(f"v_xor_b32 v{XS+2}, v{XS+3}, v{XS+2}"); a(f"v_lshlrev_b32 v{XS+2}, 4, v{XS+2}")
            a(f"v_and_b32 v{XS+3}, 31, v2"); a(f"v_lshl_add_u32 v{XS+2}, v{XS+3}, 7, v{XS+2}")
            a(f"s_add_u32 s41, s42, {L_X0}"); a(f"v_add_u32 v{XS+2}, s41, v{XS+2}")
            for q in range(1, 4): a(f"v_xor_b32 v{XS+2+q}, {32*q}, v{XS+2}")
            for q in range(4): a(f"v_subrev_u32 v{XS+6+q}, {L_X0 - RQ}, v{XS+2+q}")
        else:
            SP = OPT.get("sp", 6)
            for kc in range(SP): X(kc)()
            for i in range(4): a(f"buffer_load_dwordx4 {vr(STD+4*i,4)}, v{V_LANE16}, s[8:11], {sst} offen offset:{1024*i} sc1"); vm.issue("stt")
            for kc in range(SP, PRE): X(kc)()
        steps = []
        st = self.ln_stats(STD)
        xn = [PRE]; PMAX = OPT.get("pm3", PRE) if NT == 3 else OPT.get("pm2", PRE)
        for kc in range(32):
            for t in range(NT):
                w = self.wreg()
                s = dict(reads=wread(w, t, kc), mf=f"{MF} {vr(ACC[t],16)}, {vr(w,4)}, {vr(XR+4*kc,4)}, {'0' if kc == 0 else vr(ACC[t],16)}", post=[])
                if local:
                    p = kc // 4
                    if t == 0 and kc % 4 == 0:
                        s["reads"] = xrd(p) + s["reads"]
                        if p: s["pre"] = [lambda p=p: dots(4*p - 4, 4*p)]
                        if OPT["fine"] == 2: s["post"].append(lambda p=p: self.stamp(16 + p))
                    n8 = 2 * (kc % 4) + t
                    sched = ({0: (2, 3), 1: (4, 5), 2: (6, 7)} if OPT.get("p2l") else {0: (3, 4), 1: (5, 6), 2: (7, None)}).get(p, (None, None))[n8 // 4]
                    if sched is not None: s["post"].append(lambda sched=sched, n8=n8: piece_part(sched, n8 % 4))
                    if n8 == 7 and p == 2: s["post"].append(lambda: self.pub("x0"))
                    if n8 == 0 and p == 4: s["post"].append(lambda: self.pub("x"))
                    if t == 1 and kc == 31: s["post"].append(fin0)
                elif t == 0:
                    s["pre"] = [lambda kc=kc: vm.wait(f"x{kc}")]
                    if xn[0] < 32: s["post"].append(X(xn[0])); xn[0] += 1
                elif t == 1 and xn[0] < min(32, kc + 1 + PMAX):
                    s["post"].append(X(xn[0])); xn[0] += 1
                elif kc >= OPT.get("sp", 6) + 1:
                    s["post"] += st[:3]; st = st[3:]
                steps.append(s)
        assert local or not st
        for t in range(NT): steps.append(self.aug_step(ACC[t], augs[t], augbar if t == 0 else None))
        return steps

    def res_gemm(self, nsteps, slot, areg, aload, pre_issued, PRE, gates, pubs, xch, xpub, pre_x, hooks={}):
        a = self.a; vm = self.vm
        for i in range(8):
            a(f"v_lshlrev_b32 v{ACC[0]+2*i}, 16, v{V_RES+i}"); a(f"v_and_b32 v{ACC[0]+2*i+1}, 0xffff0000, v{V_RES+i}")
        a(f"v_xor_b32 v{V_EP}, 64, v{V_FW}"); a(f"v_add_u32 v{V_EP+1}, 0x10000, v{V_EP}"); a(f"v_add_u32 v{V_EP+2}, 0x20000, v{V_EP}")
        nxt = [pre_issued]
        def upto(n):
            while nxt[0] < min(n, nsteps): aload(nxt[0]); nxt[0] += 1
        steps = []; self.wc = 0; self.wr = WR; self.nw = NW
        fo = [V_FW, V_FW + 1, V_FW + 2]; ft = [V_EP, V_EP + 1, V_EP + 2]
        T = OPT.get("xt", 8)
        order = [(s, t) for s in range(nsteps - T) for t in range(2)] + [(s, 1) for s in range(nsteps - T, nsteps)] + [(s, 0) for s in range(nsteps - T, nsteps)]
        first = {}; last = {}
        for n, (s, t) in enumerate(order): first.setdefault(s, n); last[s] = n
        for n, (s, t) in enumerate(order):
            w = self.wreg()
            c = vr(ACC[t], 16) if (t == 0 or s > 0) else "0"
            st = dict(reads=self.rdtr(w, fo if t == 0 else ft, slot(s), 512, gates.get(s) if first[s] == n else None, pubs.get(s) if last[s] == n else None),
                      mf=f"{MF} {vr(ACC[t],16)}, {vr(w,4)}, {vr(areg(s),4)}, {c}")
            if OPT.get("x_b128") and nsteps == 56:
                r0, r1 = st["reads"]; st["reads"] = [dict(op="ds_read_b128", d=w, fam=[V_F0, V_F0 + 1, V_F0 + 1], off=slot(s) + t*KB, gate=r0.get("gate"), pub=r1.get("pub"))]
            if first[s] == n and s == pre_x[0]: st["reads"][0].update(gate=pre_x[1], gsrc="C")
            if first[s] == n: st["pre"] = ([lambda s=s: hooks[s](upto)] if s in hooks else []) + [lambda s=s: vm.wait(f"a{s}")]
            elif PRE: st["post"] = [lambda s=s: upto(s + 1 + PRE)]
            steps.append(st)
        a(f"s_xor_b32 s40, s6, 1"); a("s_lshl_b32 s40, s40, 12"); a(f"s_add_u32 s40, s40, {xch}"); a(f"v_add_u32 v{V_EP+3}, s40, v{V_LANE16}")
        rds = [f"ds_read_b128 {vr(ACC[2]+4*i,4)}, v{V_EP+3} offset:{i*KB}" for i in range(4)]
        def wr(i):
            a(f"ds_write_b128 v{V_EP+3}, {vr(ACC[1]+4*i,4)} offset:{i*KB}"); self._q.append(("x", i))
            if i == 3: self.pub(xpub); self._q.append(("x", 4)); a(f"v_xor_b32 v{V_EP+3}, 4096, v{V_EP+3}")
        o0 = len(steps) - T
        for i in range(4): steps[o0 + min(T - 1, 2 + i)].setdefault("post", []).append(lambda i=i: wr(i))
        self.stream(steps, look=5 if (OPT.get("x_b128") and nsteps == 56) else 10)
        if OPT["fine"] and nsteps == 56: self.stamp(9)
        self.gate_rd("C")
        for x in rds: a(x)
        a("s_waitcnt lgkmcnt(4)")
        self.gate_cmp(xpub, "C"); self.gate_br("C", redo=rds)
        for i in range(4):
            a(f"s_waitcnt lgkmcnt({3-i})")
            for q in range(4): a(f"v_add_f32 v{ACC[0]+4*i+q}, v{ACC[0]+4*i+q}, v{ACC[2]+4*i+q}")
            for q in range(2): a(f"v_cvt_pk_bf16_f32 v{V_RES+2*i+q}, v{ACC[0]+4*i+2*q}, v{ACC[0]+4*i+2*q+1}")

    def x_store(self, sx, sst, flagval):
        a = self.a; t = ACC[1]
        self.store(f"buffer_store_dwordx4 {vr(V_RES,4)}, v{V_LANE16}, s[8:11], {sx} offen")
        self.store(f"buffer_store_dwordx4 {vr(V_RES+4,4)}, v{V_LANE16}, s[8:11], {sx} offen offset:1024")
        for i in range(2): a(f"v_dot2_f32_bf16 v{t+2*i}, v{V_RES+i}, s20, 0"); a(f"v_dot2_f32_bf16 v{t+2*i+1}, v{V_RES+i}, v{V_RES+i}, 0")
        for i in range(2, 8): a(f"v_dot2_f32_bf16 v{t+2*(i%2)}, v{V_RES+i}, s20, v{t+2*(i%2)}"); a(f"v_dot2_f32_bf16 v{t+2*(i%2)+1}, v{V_RES+i}, v{V_RES+i}, v{t+2*(i%2)+1}")
        a(f"v_add_f32 v{t}, v{t}, v{t+2}"); a(f"v_add_f32 v{t+1}, v{t+1}, v{t+3}")
        a(f"v_permlane32_swap_b32 v{t}, v{t+1}"); a("s_nop 0"); a(f"v_add_f32 v{t}, v{t}, v{t+1}")
        self.store(f"buffer_store_dword v{t}, v{V_LANE16}, s[8:11], {sst} offen")
        self.flag(flagval)

    def compute(self):
        a = self.a; self.role = "C"; self.vm = vm = VM(a)
        a(f"s_setprio {OPT['cprio']}")
        a("v_and_b32 v104, 31, v2"); a("v_lshrrev_b32 v105, 5, v2")
        a(f"v_lshlrev_b32 v{V_XOFF}, 10, v104"); a(f"v_lshl_add_u32 v{V_XOFF}, v105, 4, v{V_XOFF}")
        a("s_lshl_b32 s55, s27, 15")
        a(f"s_mov_b32 s46, {2048*1024}"); a("s_mov_b32 s47, 0x20000")
        self.x_pass1(None, None, "start", None, None, None)
        a(f"s_mov_b32 s14, {2048*1024}"); a("s_mov_b32 s15, 0x20000")
        a("s_lshr_b32 s50, s6, 1"); a("s_and_b32 s51, s6, 1")
        a("s_lshl_b32 s48, s18, 1"); a("s_add_u32 s48, s48, s50"); a("s_mov_b32 s52, s48")
        a("s_lshl_b32 s40, s16, 2"); a("s_add_u32 s48, s48, s40")
        a("s_lshl_b32 s49, s19, 1"); a("s_add_u32 s49, s49, s51")
        a("s_lshl_b32 s53, s48, 15"); a("s_lshl_b32 s40, s49, 11"); a("s_add_u32 s53, s53, s40")
        a("s_lshl_b32 s54, s48, 12"); a("s_lshr_b32 s40, s49, 2"); a("s_lshl_b32 s40, s40, 10"); a("s_add_u32 s54, s54, s40")
        a("s_and_b32 s40, s49, 3"); a("s_lshl_b32 s40, s40, 2"); a("s_add_u32 s54, s54, s40")
        a(f"v_mov_b32 v{V_F0}, v{V_LANE16}"); a(f"v_add_u32 v{V_F0+1}, 0x10000, v{V_LANE16}")
        self.tr_addr16(V_TQ, 106, 107); a(f"v_add_u32 v{V_TQ+1}, 0x10000, v{V_TQ}")
        a(f"v_lshlrev_b32 v{V_FW}, 10, v105"); a("v_bfe_u32 v106, v2, 2, 2"); a(f"v_lshl_add_u32 v{V_FW}, v106, 7, v{V_FW}")
        a("v_bfe_u32 v106, v2, 3, 1"); a("v_xor_b32 v106, s51, v106"); a(f"v_lshl_add_u32 v{V_FW}, v106, 6, v{V_FW}")
        a(f"v_and_b32 v106, 63, v{V_TQ}"); a(f"v_add_u32 v{V_FW}, v106, v{V_FW}")
        a("s_lshl_b32 s40, s51, 11"); a(f"v_add_u32 v{V_FW}, s40, v{V_FW}")
        a(f"v_add_u32 v{V_FW+1}, 0x10000, v{V_FW}"); a(f"v_add_u32 v{V_FW+2}, 0x20000, v{V_FW}")
        a("v_bfe_u32 v106, v2, 1, 3"); a("v_and_b32 v107, 1, v2"); a("v_and_b32 v108, 7, v2")
        a("s_lshl_b32 s40, s50, 8"); a("s_lshl_b32 s41, s51, 3"); a("s_add_u32 s40, s40, s41")
        a(f"v_lshlrev_b32 v{V_PX}, 5, v106"); a(f"v_lshl_add_u32 v{V_PX}, v107, 2, v{V_PX}"); a(f"v_add_u32 v{V_PX}, s40, v{V_PX}")
        a("s_lshl_b32 s40, s51, 8"); a("s_lshl_b32 s41, s52, 2"); a("s_add_u32 s40, s40, s41")
        a(f"v_lshlrev_b32 v{V_PH}, 5, v108"); a(f"v_add_u32 v{V_PH}, s40, v{V_PH}")
        a(f"v_lshlrev_b32 v{V_AUGA}, 3, v104"); a(f"v_add_u32 v{V_AUGA}, {L_AUG}, v{V_AUGA}")
        a(f"v_mov_b32 v{V_XAUG+2}, 0"); a(f"v_mov_b32 v{V_XAUG+3}, 0")
        for r in range(WR, WR + 32, 4): a(f"v_mov_b32 v{r+2}, 0") if False else None
        a("v_cmp_gt_u32 s[62:63], 32, v2")
        a("v_lshlrev_b32 v106, 3, v105"); a("v_sub_u32 v106, v104, v106")
        a("s_mov_b64 s[12:13], s[78:79]")
        if OPT["stamp"]: a(f"v_writelane_b32 v{V_TS}, s100, 31")
        for r in range(16): a(f"v_cmp_le_i32 s[{64+2*r}:{65+2*r}], {16*(r>>3) + (r&7)}, v106")
        a(f"v_and_b32 v{V_FA}, 3, v2"); a(f"v_lshlrev_b32 v{V_FA}, 2, v{V_FA}"); a(f"v_add_u32 v{V_FA}, {L_HL}, v{V_FA}")
        self.stamp(0)
        ftq = [V_TQ, V_TQ + 1]
        self.wc = 0
        steps = self.x_pass1(None, None, True, lambda w, t, kc: self.rdtr(w, ftq, (RK, RV)[t] + kc*KB, 256, f"kv{kc//8}" if (t == 0 and kc % 8 == 0) else None, "kv" if (t == 1 and kc == 31) else None), [1, 2], "augkv")
        self.stream(steps, look=8)
        a(f"v_mov_b32 v{V_TMP}, {L_TAG}"); a(f"ds_read_b64 {vr(V_EP,2)}, v{V_TMP}"); a("s_waitcnt lgkmcnt(0)")
        a(f"v_readfirstlane_b32 s4, v{V_EP}"); a(f"v_readfirstlane_b32 s5, v{V_EP+1}")
        a("s_branch L_c_go")
        a("L_c_loop:")
        self.stamp(0)
        self.poll2(V_PX, "s26", "s57"); vm.q = []
        self.stamp(1)
        def xl(kc):
            if kc % 4 == 0: a(f"s_add_u32 s43, s55, {kc*KB}")
            a(f"buffer_load_dwordx4 {vr(XR+4*kc,4)}, v{V_LANE16}, s[8:11], s43 offen offset:{(kc%4)*KB} sc1")
        self.wc = 0
        steps = self.x_pass1(xl, "s56", False, lambda w, t, kc: self.rdtr(w, ftq, (RK, RV)[t] + kc*KB, 256, "nkv" if (t == 0 and kc == 0) else None,
                                                                          {(1, OPT.get("b1x", 22)): "x", (1, 31): "kv"}.get((t, kc)), HV["nkv"]), [1, 2], None)
        self.stream(steps, look=10)
        a("L_c_go:")
        if OPT["fine"]: self.stamp(14)
        steps = []
        korder = [19, 20, 21, 22, 2, 3, 4, 5, 6, 7, 9, 10] + [k for k in range(32) if k not in (19, 20, 21, 22, 2, 3, 4, 5, 6, 7, 9, 10)]
        for n, kc in enumerate(korder):
            w = self.wreg()
            steps.append(dict(reads=self.rdtr(w, ftq, RQ + kc*KB, 256),
                              mf=f"{MF} {vr(ACC[2],16)}, {vr(w,4)}, {vr(XR+4*kc,4)}, {'0' if n == 0 else vr(ACC[2],16)}"))
        self.gate_rd("H")
        steps.append(None)
        VC8 = ACC[3]; VCK = ACC[3] + 2
        a("s_lshl_b32 s58, s27, 4"); a("s_add_u32 s58, s58, s17"); a(f"s_mul_i32 s58, s58, {7*KB}"); a(f"s_add_u32 s58, s58, {HF + 2*KB}")
        if OPT.get("kv2"): a(f"s_mul_i32 s40, s22, {8*MB}"); a("s_add_u32 s58, s58, s40")
        a(f"s_add_u32 s40, s25, {LK + 8*KB}"); a(f"v_add_u32 v{V_OUT}, s40, v{V_LANE16}")
        a(f"v_lshlrev_b32 v{VC8}, 3, v2"); a(f"v_add_u32 v{VC8}, 4096, v{VC8}"); a(f"v_mov_b32 v{VCK}, s4"); a(f"v_mov_b32 v{VCK+1}, s5")
        def xor16(dst, regs):
            for n in range(0, 16, 2): self.a(f"v_bitop3_b32 v{dst}, v{dst}, v{regs[n]}, v{regs[n+1]} bitop3:0x96")
        F = []
        for t in range(2):
            A0 = ACC[t]
            for hh in range(2):
                F += [f"v_mul_f32 v{A0+r}, v{V_RSTD}, v{A0+r}" for r in range(8*hh, 8*hh + 8)]
                F += [f"v_cvt_pk_bf16_f32 v{A0+r}, v{A0+2*r}, v{A0+2*r+1}" for r in range(4*hh, 4*hh + 4)]
                F += [f"buffer_store_dwordx4 {vr(A0+4*hh,4)}, v{V_LANE16}, s[8:11], s58 offen offset:{(2*t + hh)*KB} sc1"]
                F += [f"v_bitop3_b32 v{VCK}, v{VCK}, v{A0+4*hh+n}, v{A0+4*hh+n+1} bitop3:0x96" for n in (0, 2)]
        F.append(f"buffer_store_dwordx2 {vr(VCK,2)}, v{VC8}, s[8:11], s58 offen sc1")
        NE = OPT.get("ne", 61)
        for x in F[:15]: a(x)
        a("s_waitcnt lgkmcnt(0)"); self.gate_cmp("wq")
        late = self.lab(); join = self.lab()
        a("s_cmp_eq_u64 s[30:31], 0"); a(f"s_cbranch_scc1 {join}")
        for x in F[15:]: a(x)
        self.gate_br("H")
        a("s_mov_b64 s[30:31], -1")
        a(f"{join}:")
        def rest():
            l = self.lab()
            a("s_cmp_lg_u64 s[30:31], 0"); a(f"s_cbranch_scc1 {l}")
            for x in EP2: a(x)
            a(f"{l}:")
        EP2 = F[15:]; F = []
        steps[0]["pre"] = [rest]
        if OPT["fine"] > 2: self.stamp(24)
        def lds(x):
            def f(): a(x); self._q.append(("u", id(f)))
            return f
        for hh in range(2):
            F.append(lds(f"ds_write_b128 v{V_OUT}, {vr(ACC[0]+4*hh,4)} offset:{hh*HS}"))
            F.append(lds(f"ds_write_b128 v{V_OUT}, {vr(ACC[1]+4*hh,4)} offset:{12*KB + hh*HS}"))
        r, SL = self.attention()
        F += [f"v_mov_b32 v{V_EP}, {L_MODE}", lds(f"ds_read_b32 v{V_EP}, v{V_EP}"), f"v_mul_f32 v{V_C1}, {f32(0.25*LOG2E)}, v{V_RSTD}"]
        F += SL[:10] + [lds(f"ds_read_b128 {vr(r['KF']+32,4)}, v{r['KA']} offset:{8*KB}"), lds(f"ds_read_b128 {vr(r['KF']+28,4)}, v{r['KA']} offset:{HS + 8*KB}")] + SL[10:]
        HB = [XR + 8, XR + 76]; HC = [XR + 24, XR + 26]; HO = XR + 28
        for d, sr_ in ((1, 28), (2, 29)):
            a(f"s_sub_u32 s{sr_}, s58, {4*d*112*KB}"); a(f"s_cmp_ge_u32 s16, {d}"); a(f"s_cselect_b32 s{sr_}, s{sr_}, 0x7ff00000"); a(f"s_cselect_b32 s{31+d}, -1, 0")
        HL = []
        for n in range(2):
            HL += [f"buffer_load_dwordx4 {vr(HB[n]+4*p,4)}, v{V_LANE16}, s[8:11], s{28+n} offen offset:{p*KB} sc1" for p in range(4)]
            HL.append(f"buffer_load_dwordx2 {vr(HC[n],2)}, v{HO}, s[8:11], s{28+n} offen sc1")
        def halo_ld():
            for x in HL: self.a(x)
        def fill(i):
            out = []
            h0 = OPT.get("hld", 22); k = i - h0
            for _ in range(OPT.get("f2", 4) - (2 if 0 <= k < 10 else 0)):
                if F and not (i < 12 and callable(F[0]) and len(F) <= len(SL) - 10 + 2): out.append(F.pop(0))
            if k == 0: out.append(f"v_mov_b32 v{HO}, v{VC8}")
            if 0 <= k < 10: out.append(HL[k])
            return out
        steps[31]["reads"][1]["pub"] = "q"
        XQ = ACC[3] + 4; wq_ = self.wreg()
        steps[-1] = dict(reads=[dict(op="ds_read_b128", d=wq_, fam=V_EP + 1, off=0, gate="augq")], mf=f"{MF} {vr(ACC[2],16)}, {vr(wq_,4)}, {vr(XQ,4)}, {vr(ACC[2],16)}")
        F[4:4] = [f"v_add_u32 v{V_EP+1}, {L_QB}, v{V_LANE16}", f"v_mov_b32 v{XQ}, v{V_XAUG}", f"v_mov_b32 v{XQ+1}, v{V_XAUG+1}", f"v_mov_b32 v{XQ+2}, v{V_XAUG}", f"v_mov_b32 v{XQ+3}, v{V_XAUG+1}",
                  f"v_permlane32_swap_b32 v{XQ}, v{XQ+2}", f"v_permlane32_swap_b32 v{XQ+1}, v{XQ+3}", f"s_nop 0\nv_mov_b32 v{XQ+2}, v{XQ}", f"v_mov_b32 v{XQ+3}, v{XQ+1}"]
        self.stream(steps, look=8, fill=fill)
        for x in F: self.emit(x)
        a("s_waitcnt lgkmcnt(0)")
        a(f"v_readfirstlane_b32 s21, v{V_EP}")
        a(f"s_mul_i32 s34, s21, {ALS}"); a("s_add_u32 s34, s34, s35")
        a(f"s_sub_u32 s37, s58, {2*KB}"); a("s_add_u32 s37, s37, s34")
        if OPT.get("kv2"): a(f"s_mul_i32 s40, s22, {8*MB}"); a("s_sub_u32 s37, s37, s40")
        a(f"s_mul_i32 s60, s48, {112*KB}"); a(f"s_mul_i32 s40, s51, {56*KB}"); a("s_add_u32 s60, s60, s40"); a(f"s_add_u32 s60, s60, {OF}"); a("s_add_u32 s60, s60, s34")
        self.stamp(2)
        for r_ in range(16): a(f"v_mul_f32 v{ACC[2]+r_}, v{V_C1}, v{ACC[2]+r_}")
        for r_ in range(8): a(f"v_cvt_pk_bf16_f32 v{XR+r_}, v{ACC[2]+2*r_}, v{ACC[2]+2*r_+1}")
        def halo_k(mid):
            mid()
            l = self.lab(); ok = self.lab()
            a("s_mov_b32 s41, 0")
            a(f"{l}:")
            a("s_waitcnt vmcnt(0)")
            for n in range(2):
                xor16(HC[n], [HB[n] + r for r in range(16)])
                a(f"v_xor_b32 v{HC[n]}, s4, v{HC[n]}"); a(f"v_xor_b32 v{HC[n]+1}, s5, v{HC[n]+1}")
                a(f"v_or_b32 v{HC[n]}, v{HC[n]}, v{HC[n]+1}"); a(f"v_and_b32 v{HC[n]}, s{32+n}, v{HC[n]}")
            a(f"v_or_b32 v{HC[0]}, v{HC[0]}, v{HC[1]}"); a(f"v_cmp_ne_u32 vcc, 0, v{HC[0]}"); a(f"s_cbranch_vccz {ok}")
            a("s_add_u32 s41, s41, 1"); a(f"s_cmp_gt_u32 s41, {OPT['spin']}"); a(f"s_cbranch_scc1 {ok}")
            halo_ld(); a(f"s_branch {l}"); a.pending.pop(l, None)
            a(f"{ok}:"); vm.q = []
            if OPT["fine"] > 2: self.stamp(25)
            a(f"v_subrev_u32 v{V_OUT}, {8*KB}, v{V_OUT}")
            for p in (0, 2, 1, 3):
                for n in range(2): a(f"ds_write_b128 v{V_OUT}, {vr(HB[n]+4*p,4)} offset:{(p&1)*HS + (p>>1)*12*KB + (4 - 4*n)*KB}")
            self.pub("hl")
            a("s_lshl_b32 s36, s16, 11"); a("s_lshl_b32 s41, s17, 7"); a("s_add_u32 s36, s36, s41"); a("s_lshl_b32 s41, s6, 2"); a("s_add_u32 s36, s36, s41"); a(f"s_add_u32 s36, s36, {KVFL}")
            a("s_add_u32 s41, s22, 1"); a(f"v_mov_b32 v{V_TMP}, s41")
            a("s_mov_b64 exec, 1"); a(f"buffer_store_dword v{V_TMP}, off, s[8:11], s36 sc1"); a("s_mov_b64 exec, -1")
            self.stamp(3)
        def after_k():
            l = self.lab()
            a("s_cmp_lg_u32 s22, 0"); a(f"s_cbranch_scc1 {l}")
            a("s_lshl_b32 s40, s48, 15"); a("s_lshl_b32 s41, s49, 6"); a("s_add_u32 s40, s40, s41")
            a(f"buffer_load_dwordx4 {vr(V_RES,4)}, v{V_XOFF}, s[44:47], s40 offen")
            a(f"buffer_load_dwordx4 {vr(V_RES+4,4)}, v{V_XOFF}, s[44:47], s40 offen offset:32")
            a(f"{l}:")
        oreg = lambda s: XR + 8 + 4 * s
        def al_o(s):
            a = self.a
            a(f"s_add_u32 s43, s60, {(s % 8)*7*KB}")
            a(f"buffer_load_dwordx4 {vr(oreg(s),4)}, v{V_LANE16}, s[8:11], s43 offen offset:{(s >> 3)*KB} sc1"); vm.issue(f"a{s}")
        def early_a():
            for s_ in range(8): al_o(s_)
        def redo_a(a2):
            a2(f"s_add_u32 s61, s23, {F_O1}"); self.poll(V_PH, "s26", "s61")
            for s_ in range(8): al_o(s_)
        self.attention_run(r, halo_k, after_k, early_a, redo_a)
        self.stamp(4)
        a(f"s_add_u32 s58, s53, {XA}"); a("s_add_u32 s58, s58, s35"); a(f"s_add_u32 s59, s54, {STA}"); a("s_add_u32 s59, s59, s35")
        def h_o(upto):
            self.check(V_PH, F_O2); self.stamp(5); upto(16)
            if OPT.get("wo1l", 1): self.pub("wo1"); self._q.append(("w1", 0))
        self.res_gemm(16, lambda s: RK + s*4*KB, oreg, al_o, 8, 0, {0: "wo"}, {} if OPT.get("wo1l", 1) else {7: "wo1"}, XCH_WO, "wo", (6, "att"),
                      hooks={OPT.get("opeek", 2): lambda u: self.peek(V_PH), 8: h_o})
        self.pub("xr")
        self.x_store("s58", "s59", F_X1)
        self.stamp(6)
        a(f"s_mul_i32 s60, s27, {112*KB}"); a(f"s_mul_i32 s40, s17, {7*KB}"); a("s_add_u32 s60, s60, s40"); a(f"s_add_u32 s60, s60, {HF}"); a("s_add_u32 s60, s60, s35")
        a("s_lshl_b32 s58, s27, 15"); a(f"s_add_u32 s58, s58, {XA}"); a("s_add_u32 s58, s58, s35")
        a("s_lshl_b32 s59, s27, 12"); a(f"s_add_u32 s59, s59, {STA}"); a("s_add_u32 s59, s59, s35")
        a(f"s_mul_i32 s29, s48, {112*KB}"); a(f"s_mul_i32 s40, s51, {56*KB}"); a("s_add_u32 s29, s29, s40"); a(f"s_add_u32 s29, s29, {HF}"); a("s_add_u32 s29, s29, s35")
        a(f"s_add_u32 s61, s23, {F_X1}")
        self.poll2(V_PX, "s26", "s61"); vm.q = []
        self.stamp(7)
        def xl2(kc):
            if kc % 4 == 0: a(f"s_add_u32 s43, s58, {kc*KB}")
            a(f"buffer_load_dwordx4 {vr(XR+4*kc,4)}, v{V_LANE16}, s[8:11], s43 offen offset:{(kc%4)*KB} sc1")
        self.wc = 0; self.wr = 104; self.nw = 6
        steps = self.x_pass1(xl2, "s59", False, lambda w, t, kc: self.rd128(w, GU_REG[t] + kc*KB, f"t2_{kc//8}" if (t == 0 and kc % 8 == 0 and (kc == 0 or not OPT.get("t2e", 1))) else None, f"g{kc+1}" if (t == 2 and kc % 8 == 7) else None), [3, 4, 5], None, NT=3)
        self.pub("xch")
        done = {t: len(steps) - 3 + t for t in range(3)}; start = {}
        accof = {t: ACC[t % 4] for t in range(7)}
        for t in range(3, 7):
            start[t] = len(steps)
            for kc in range(32):
                w = self.wreg()
                steps.append(dict(reads=self.rd128(w, GU_REG[t] + kc*KB, f"t{t}" if kc == 0 else None, f"t{t}" if kc == 31 else None),
                                  mf=f"{MF} {vr(accof[t],16)}, {vr(w,4)}, {vr(XR+4*kc,4)}, {'0' if kc == 0 else vr(accof[t],16)}", pair=(kc % 2 == 0 and OPT.get("pair", 1))))
            steps.append(self.aug_step(accof[t], 3 + t))
            done[t] = len(steps) - 1
        def epi(t):
            A0 = accof[t]; L = []
            if OPT.get("x_nofill"): return [lambda: (a(f"s_add_u32 s43, s60, {t*KB}"), self.store(f"buffer_store_dwordx4 {vr(V_EP,4)}, v{V_LANE16}, s[8:11], s43 offen", f"h{t}"))]
            L += [f"v_mul_f32 v{A0+r}, v{V_C1}, v{A0+r}" for r in range(8)]
            L += [f"v_exp_f32 v{A0+r}, v{A0+r}" for r in range(8)]
            L += [f"v_fma_f32 v{A0+r}, v{A0+r}, v{V_STD}, v{V_STD}" for r in range(8)]
            L += [f"v_rcp_f32 v{A0+r}, v{A0+r}" for r in range(8)]
            L += [f"v_mul_f32 v{A0+r}, v{A0+r}, v{A0+8+r}" for r in range(8)]
            L += [f"v_cvt_pk_bf16_f32 v{V_EP+r}, v{A0+2*r}, v{A0+2*r+1}" for r in range(4)]
            L += [lambda: (a(f"s_add_u32 s43, s60, {t*KB}"), self.store(f"buffer_store_dwordx4 {vr(V_EP,4)}, v{V_LANE16}, s[8:11], s43 offen", f"h{t}"))]
            return L
        hreg = lambda s: XR + 4 * (s % 32)
        def al_h(s):
            t, i = s // 8, s % 8
            if OPT.get("x_noh") and s >= 16: return
            if OPT.get("x_sameh"): t, i = 0, s % 2
            a(f"s_add_u32 s43, s29, {(7*i + t)*KB}"); a(f"buffer_load_dwordx4 {vr(hreg(s),4)}, v{V_LANE16}, s[8:11], s43 offen sc1"); vm.issue(f"a{s}")
        NP = OPT.get("np", 16)
        queue = []; flag_at = {}; T1 = OPT.get('t1', 3)
        def fill2(i):
            for t in range(7):
                if done[t] + 2 == i: queue.extend((x, t) for x in epi(t))
            out = []
            if i == 70:
                def pk2():
                    a(f"v_and_b32 v{V_EP}, 1, v2"); a(f"v_add_u32 v{V_EP}, 1, v{V_EP}"); a("s_sub_u32 s40, 15, s16"); a(f"v_min_u32 v{V_EP}, s40, v{V_EP}"); a(f"v_lshlrev_b32 v{V_EP}, 11, v{V_EP}")
                    a(f"buffer_load_dword v{V_OUT}, v{V_EP}, s[8:11], s36 offen sc1"); vm.issue("pk")
                out.append(pk2)
            if i == done[2] + 4:
                def ck2():
                    d = self.lab()
                    a("s_add_u32 s61, s22, 1"); vm.wait("pk")
                    a(f"v_cmp_gt_u32 vcc, s61, v{V_OUT}"); a(f"s_cbranch_vccz {d}")
                    self.poll(V_EP, "s36", "s61"); a(f"{d}:")
                out.append(ck2)
            if OPT["fine"] and i == done[2]: self.pend_stamp = 12
            if OPT["fine"] and i == done[4]: self.pend_stamp = 13
            for t2, sidx in start.items():
                if sidx == i + 1 and t2 >= 4:
                    while queue and queue[0][1] <= t2 - 4: out.append(queue.pop(0)[0])
            cost = 0; lim = OPT.get("fillc", 3)
            while queue and cost < lim:
                x, t = queue.pop(0); out.append(x)
                cost += 3 if callable(x) else 2 if x.startswith(("v_exp", "v_rcp")) else 1
                if callable(x) and t == T1: flag_at[i + OPT.get("fld", 13)] = (F_H1, t)
                if callable(x) and t == 4 and T1 == 2: flag_at[min(i + OPT.get("fld", 13), len(steps) - 1)] = (8, t)
            if i in flag_at: out.append(lambda v=flag_at[i]: self.flag(v[0], f"h{v[1]}"))
            k6 = i - start[6]
            if k6 == 31 - NP - 14: out.append(lambda: self.peek(V_PH))
            if k6 == 31 - NP: out.append(lambda: self.check(V_PH, F_H1))
            if 31 - NP < k6 <= 31: out.append(lambda s_=k6 - (32 - NP): al_h(s_))
            return out
        self.stream(steps, look=4, fill=fill2)
        assert flag_at and min(flag_at) < start[6], (flag_at, start)
        for x, _ in queue: self.emit(x)
        for x in epi(6): self.emit(x)
        self.stamp(8)
        a(f"s_add_u32 s58, s53, {XB}"); a("s_add_u32 s58, s58, s34"); a(f"s_add_u32 s59, s54, {STB}"); a("s_add_u32 s59, s59, s34")
        PD = OPT.get("pd", 14)
        hooks = {OPT.get("hflag", 5): lambda u: self.flag(F_H2, "h6"), 32 - PD - 8: lambda u: self.peek(V_PH), 32 - PD - 1: lambda u: self.check(V_PH, F_H2)}
        if T1 == 2:
            hooks = {OPT.get("hflag", 5): lambda u: self.flag(F_H2, "h6"), 24 - PD - 7: lambda u: self.peek(V_PH), 24 - PD - 1: lambda u: self.check(V_PH, 8),
                     40 - PD - 8: lambda u: self.peek(V_PH), 40 - PD - 1: lambda u: self.check(V_PH, F_H2)}
            assert len(hooks) == 5
        self.res_gemm(56, wd_slot, hreg, al_h, NP, PD, {s: f"w{s}" for s in DG}, {s - 1: f"d{s}" for s in DP},
                      XCH_DN, "dx", (52, "d43"), hooks=hooks)
        self.stamp(10)
        a("s_cmp_lg_u32 s22, 0"); a("s_cbranch_scc1 L_c_final")
        self.x_store("s58", "s59", F_X2)
        a("s_lshl_b32 s55, s27, 15"); a(f"s_add_u32 s55, s55, {XB}"); a("s_add_u32 s55, s55, s34")
        a("s_lshl_b32 s56, s27, 12"); a(f"s_add_u32 s56, s56, {STB}"); a("s_add_u32 s56, s56, s34")
        a(f"s_mov_b32 s57, {F_X2}")
        self.next_iter()
        a.fence()
        a("s_branch L_c_loop")
        a("L_c_final:")
        a("s_lshl_b32 s40, s48, 15"); a("s_lshl_b32 s41, s49, 6"); a("s_add_u32 s40, s40, s41")
        a(f"buffer_store_dwordx4 {vr(V_RES,4)}, v{V_XOFF}, s[12:15], s40 offen{['', ' sc1', ' nt', ' sc0 sc1'][OPT.get('osc', 0)]}")
        a(f"buffer_store_dwordx4 {vr(V_RES+4,4)}, v{V_XOFF}, s[12:15], s40 offen offset:32{['', ' sc1', ' nt', ' sc0 sc1'][OPT.get('osc', 0)]}")
        self.finish()

    def next_iter(self):
        a = self.a
        a("s_mov_b32 s22, 1"); a("s_mov_b32 s23, 16"); a("s_mov_b32 s7, 64"); a("s_add_u32 s4, s4, 1"); a(f"v_mov_b32 v{V_BASE}, 64")
        a(f"s_mul_i32 s35, s21, {ITS}")
    def finish(self):
        a = self.a
        if OPT.get("x_dl2") and self.role == "C":
            l = self.lab()
            a(f"{l}:"); a("s_memrealtime s[96:97]"); a("s_waitcnt lgkmcnt(0)"); a("s_sub_u32 s96, s96, s100")
            a(f"s_cmp_lt_u32 s96, {OPT['x_dl2']*100}"); a(f"s_cbranch_scc1 {l}")
        if OPT.get("x_deadline") and self.role == "C":
            l = self.lab()
            a(f"{l}:"); a("s_memrealtime s[96:97]"); a("s_waitcnt lgkmcnt(0)"); a("s_lshl_b32 s96, s96, 3"); a("s_sub_u32 s96, s96, s4")
            a(f"s_cmp_lt_u32 s96, {OPT['x_deadline']*800}"); a(f"s_cbranch_scc1 {l}")
        if OPT["stamp"]:
            a("s_waitcnt vmcnt(0)")
            self.stamp(11)
            a("s_lshl_b32 s40, s2, 12"); a("s_lshl_b32 s41, s3, 9"); a("s_add_u32 s40, s40, s41"); a(f"s_add_u32 s40, s40, {TS}")
            if OPT.get("dbgout") and self.role == "C":
                l = self.lab()
                a("s_lshl_b32 s41, s2, 3"); a("s_add_u32 s41, s41, s3"); a(f"s_cmp_lg_u32 s41, {OPT['dbgout']*8}"); a(f"s_cbranch_scc1 {l}")
                a("s_load_dwordx2 s[44:45], s[0:1], 64"); a("s_mov_b32 s46, 256"); a("s_mov_b32 s47, 0x20000")
                a(f"v_readlane_b32 s42, v{V_TS}, 31"); a("v_mov_b32 v41, 0")
                for n, idx in enumerate([0, 14, 3, 4, 7, 8, 10, 32+1, 32+14, 32+3, 32+4, 32+7, 32+8, 32+11]):
                    a(f"v_readlane_b32 s43, v{V_TS}, {idx}"); a("s_sub_u32 s43, s43, s42"); a("s_nop 3"); a(f"v_writelane_b32 v41, s43, {n}")
                a("v_lshlrev_b32 v40, 2, v2"); a("s_waitcnt lgkmcnt(0)"); a("s_mov_b64 exec, 0x3fff")
                a("buffer_store_dword v41, v40, s[44:47], 0 offen offset:8"); a("s_mov_b64 exec, -1")
                a(f"{l}:")
            a("v_lshlrev_b32 v40, 2, v2")
            a(f"buffer_store_dword v{V_TS}, v40, s[8:11], s40 offen"); a(f"buffer_store_dword v{V_TS2}, v40, s[8:11], s40 offen offset:256")
        a("s_endpgm")

    def helper(self):
        a = self.a; self.role = "H"; vm = VM(a)
        HV_QKV = 16; HV_ROW0 = 17; HV_OOB = 18; HV_PK = 19; HV_W = 20; HV_R128 = 23; HV_TQ = 24; HT = 26
        SQ, SO, SD, SG, SX, SDBG = "s[44:47]", "s[48:51]", "s[52:55]", "s[56:59]", "s[60:63]", "s[12:15]"
        HF_ = 25
        W = OPT.get("win", 8)
        st = dict(it=0); outq = []; sigs = []
        cnt = dict(issued=0, done=0)
        def hpub_txt(name):
            self.seen.add(("H", name))
            return [f"v_mov_b32 v{V_TMP}, {64*st['it'] + HV[name]}", f"ds_max_u32 v{V_PUBA}, v{V_TMP}"]
        def hpub(name):
            for x in hpub_txt(name): a(x)
        def retire(n):
            if n > cnt["done"]:
                k = cnt["issued"] - n; assert 0 <= k <= 63
                if cnt.get("ghost") and n <= cnt["ghost"][0]:
                    l = self.lab()
                    a(f"s_waitcnt vmcnt({k + cnt['ghost'][1]})"); a("s_cmp_lg_u32 s87, 0"); a(f"s_cbranch_scc1 {l}"); a(f"s_waitcnt vmcnt({k})"); a(f"{l}:")
                else: a(f"s_waitcnt vmcnt({k})")
                cnt["done"] = n
            last = None
            while sigs and sigs[0][1] <= cnt["done"]: last = sigs.pop(0)[0]; self.seen.add(("H", last))
            if last: hpub(last)
        def op(win=None):
            cnt["issued"] += 1
            retire(max(cnt["done"], cnt["issued"] - (W if win is None else win)))
        def sig(name):
            sigs.append((name, cnt["issued"])); retire(cnt["done"])
        def flush():
            while sigs: retire(sigs[0][1])
        def drain():
            retire(cnt["issued"])
        def need(name, src="C", it=None):
            l1 = self.lab(); l2 = self.lab(); l3 = self.lab()
            val = 64 * (st["it"] if it is None else it) + (CV if src == "C" else HV)[name]
            rd = f"ds_read_b32 v{V_FLG}, v{HF_} offset:{16 if src == 'C' else 0}"
            a(rd); a("s_waitcnt lgkmcnt(0)"); a(f"s_movk_i32 s39, {val}"); a(f"v_cmp_gt_u32 vcc, s39, v{V_FLG}"); a(f"s_cbranch_vccz {l2}")
            for nm, n in sigs:
                a(f"s_waitcnt vmcnt({cnt['issued'] - n})")
                for x in hpub_txt(nm): a(x)
            a(f"{l3}:"); a(f"s_sleep {OPT.get('hsl', 1)}"); a("s_add_u32 s38, s38, 1"); a(f"s_cmp_gt_u32 s38, {OPT['spin']*16}"); a(f"s_cbranch_scc1 {l2}")
            a(rd); a("s_waitcnt lgkmcnt(0)"); a(f"v_cmp_gt_u32 vcc, s39, v{V_FLG}"); a(f"s_cbranch_vccnz {l3}")
            a.pending.pop(l3, None)
            a(f"{l2}:")
            self.used.add((src, name))
        spq = []
        def tile(t, gs=range(8)):
            for g in gs: self.dma("s29", t*32*KB + g*4*KB, GU_REG[t] + g*4*KB, fl="" if OPT.get("wplain") else " sc1"); op()
        def wqkv(which, gs, win=None):
            for g in gs:
                a(f"s_add_u32 s41, s30, {4*g}"); a("s_and_b32 s41, s41, 31"); a("s_mul_i32 s41, s41, 49152"); a("s_add_u32 s41, s41, s31")
                for ci, reg in which:
                    self.dma("s41", ci*1024, reg + g*4*KB, voff=HV_QKV, srd=SQ)
                    if spq and g >= 2 and OPT.get("scoop", 4) in (1, 4):
                        def f():
                            for _ in range(OPT.get("scn", 2)):
                                if spq: a(spq.pop(0))
                        only(["s_cmp_lt_u32 s80, 2"], f)
                    op(win)
                if len(which) == 2 and g % 2 == 1: sig(f"kv{g//2}")
        def wqp(which, gs):
            for g in gs:
                for ci, reg in which: self.dma("s34", ci*32*KB + g*4*KB, reg + g*4*KB, fl="" if OPT.get("wplain") else " sc1"); op()
        WK = (1, RK); WV = (2, RV); WQ = (0, RQ)
        st_next = [0]; st_idx = {}
        def stash(n):
            for _ in range(n):
                s_ = st_next[0]
                if s_ >= 56: break
                t, i = s_ // 8, s_ % 8
                a(f"s_add_u32 s40, s33, {(7*i + t)*16*KB}")
                a(f"buffer_load_dwordx4 {vr(STASH+4*s_,4)}, v{HV_R128}, {SD}, s40 offen"); op(); st_idx[s_] = cnt["issued"]
                st_next[0] += 1
        def wdw(steps):
            for s_ in steps:
                if s_ >= 56: break
                retire(max(cnt["done"], st_idx[s_]))
                if OPT.get("x_nowdw"): continue
                o = wd_slot(s_)
                a(f"ds_write_b128 v{HV_W + (o >> 16)}, {vr(STASH+4*s_,4)} offset:{o & 0xffff}")
                if OPT.get("wpace"): a("s_waitcnt lgkmcnt(0)")
        def only(cond_lines, fn):
            l = self.lab()
            for c in cond_lines: a(c)
            a(f"s_cbranch_scc0 {l}"); fn(); a(f"{l}:")
        a(f"v_lshrrev_b32 v{HT}, 2, v2"); a(f"v_mul_u32_u24 v{HV_QKV}, 3072, v{HT}"); a(f"v_and_b32 v{HT}, 3, v2"); a(f"v_lshl_add_u32 v{HV_QKV}, v{HT}, 4, v{HV_QKV}")
        a("s_add_u32 s30, s28, s6"); a("s_lshl_b32 s31, s17, 6")
        a(f"s_mov_b32 s46, {512*3072}"); a("s_mov_b32 s47, 0x20000")
        a("s_mov_b64 s[44:45], s[66:67]")
        if OPT["stamp"]: a(f"v_writelane_b32 v{V_TS}, s100, 31")
        a("s_mul_i32 s83, s2, 9363"); a("s_lshr_b32 s83, s83, 18")
        a("s_mul_i32 s40, s83, 28"); a("s_sub_u32 s84, s2, s40")
        a("s_mul_i32 s40, s84, 37"); a("s_lshr_b32 s40, s40, 8"); a("s_mul_i32 s41, s40, 7"); a("s_sub_u32 s41, s84, s41")
        a("s_lshl_b32 s41, s41, 3"); a("s_add_u32 s41, s41, s83"); a("s_lshl_b32 s40, s40, 6"); a("s_add_u32 s40, s40, s41"); a("s_lshl_b32 s40, s40, 3"); a(f"s_add_u32 s88, s40, {RF}")
        a("s_cmp_lt_u32 s2, 224"); a("s_cselect_b32 s88, s88, 0x7ff00000")
        a("s_lshl_b32 s89, s17, 8"); a("s_lshl_b32 s40, s16, 4"); a("s_add_u32 s89, s89, s40"); a(f"s_add_u32 s89, s89, {PFL}")
        def zero():
            def nonce():
                a("s_memrealtime s[42:43]"); a("s_mov_b64 s[12:13], s[70:71]"); a("s_mov_b32 s14, 256"); a("s_mov_b32 s15, 0x20000"); a("s_waitcnt lgkmcnt(0)")
                a("s_lshl_b64 s[42:43], s[42:43], 3"); a("s_or_b32 s43, s43, 0x80000000")
                a("v_mov_b32 v44, s42"); a("v_mov_b32 v45, s43")
                a("s_mov_b64 exec, 1"); a(f"buffer_store_dwordx2 v[44:45], off, {SDBG}, 0 sc1"); a("s_mov_b64 exec, -1")
            only(["s_cmp_eq_u32 s2, 0"], nonce)
            for r in range(4): a(f"v_mov_b32 v{40+r}, 0")
            a("s_sub_u32 s40, s24, 28")
            a("s_lshl_b32 s81, s16, 11"); a("s_lshl_b32 s41, s17, 7"); a("s_add_u32 s81, s81, s41"); a(f"s_add_u32 s81, s81, {KVFL}")
            a("s_mov_b64 exec, 1")
            a("buffer_store_dwordx4 v[40:43], off, s[8:11], s40 sc1"); a("buffer_store_dwordx4 v[40:43], off, s[8:11], s81 sc1")
            a("buffer_store_dwordx2 v[40:41], off, s[8:11], s88 sc1"); a("buffer_store_dwordx4 v[40:43], off, s[8:11], s89 sc1")
            a("s_mov_b64 exec, -1")
        only(["s_cmp_eq_u32 s6, 3"], zero)
        def codepf():
            a("s_mov_b64 exec, 0xffff"); a("global_load_dword v31, v[10:11], off"); a("s_mov_b64 exec, -1")
        def qtouch():
            a(f"v_lshrrev_b32 v{HT}, 3, v2"); a(f"v_mul_u32_u24 v{HT}, 3072, v{HT}"); a(f"v_and_b32 v{HT+1}, 7, v2"); a(f"v_lshl_add_u32 v{HT}, v{HT+1}, 7, v{HT}")
            a("s_mul_i32 s41, s2, 6144"); a("s_mov_b64 exec, 0xffff"); a(f"buffer_load_dword v161, v{HT}, {SQ}, s41 offen"); a("s_mov_b64 exec, -1")
        if not OPT.get("ct0"): only(["s_cmp_eq_u32 s6, 1"], qtouch)
        def c3q():
            a(f"v_and_b32 v{HT}, 15, v2"); a(f"v_mul_u32_u24 v{HT}, 3072, v{HT}"); a(f"v_lshrrev_b32 v{HT+1}, 4, v2"); a(f"v_lshl_add_u32 v{HT}, v{HT+1}, 10, v{HT}")
            a("s_lshr_b32 s41, s2, 3"); a("s_mul_i32 s41, s41, 49152"); a("s_add_u32 s41, s41, 384")
            a("s_mov_b32 exec_hi, 0xffff"); a(f"buffer_load_dword v161, v{HT}, {SQ}, s41 offen"); a("s_mov_b64 exec, -1")
        if OPT.get("c3", 2): only(["s_cmp_eq_u32 s6, 0"], c3q)
        def c3w(srd, n):
            a(f"v_lshlrev_b32 v{HT}, 10, v2"); a("s_lshr_b32 s41, s2, 3"); a(f"s_mul_i32 s41, s41, {n*1024}"); a("s_add_u32 s41, s41, 384")
            m = (1 << n) - 1
            a(f"s_mov_b32 exec_lo, {m & 0xffffffff:#x}"); a(f"s_mov_b32 exec_hi, {m >> 32:#x}"); a(f"buffer_load_dword v31, v{HT}, {srd}, s41 offen"); a("s_mov_b64 exec, -1")
        def tlb():
            st_ = OPT.get("tlbs", 2) * MB // 2
            a("s_mov_b64 s[42:43], s[8:9]")
            for p in range(WS_USED // st_):
                a("s_load_dword s94, s[42:43], 0"); a(f"s_add_u32 s42, s42, {st_}"); a("s_addc_u32 s43, s43, 0")
            for r in (68, 76, 78): a(f"s_load_dword s94, s[{r}:{r+1}], 0")
            a("s_load_dword s94, s[76:77], 0xffff0"); a("s_load_dword s94, s[78:79], 0xffff0")
        wqkv([WK, WV], range(0, 2), win=63)
        if OPT.get("ct0"):
            a(f"v_lshlrev_b32 v{HT}, 7, v2")
            def tw():
                a("s_mul_i32 s41, s2, 6144"); a("s_mov_b32 exec_hi, 0xffff"); a(f"buffer_load_dword v161, v{HT}, {SQ}, s41 offen"); a("s_mov_b64 exec, -1")
            def tx():
                a("s_mov_b64 s[56:57], s[64:65]"); a(f"s_mov_b32 s58, {2048*1024}"); a("s_mov_b32 s59, 0x20000")
                a("s_lshl_b32 s41, s16, 4"); a("s_add_u32 s41, s41, s17"); a("s_lshl_b32 s41, s41, 13"); a(f"buffer_load_dword v161, v{HT}, {SG}, s41 offen")
            only(["s_cmp_eq_u32 s6, 1"], tw); only(["s_cmp_eq_u32 s6, 0"], tx)
        if OPT.get("tlb", 0): only(["s_cmp_eq_u32 s6, 0"], tlb)
        a("s_mov_b64 s[12:13], s[70:71]"); a("s_mov_b32 s14, 256"); a("s_mov_b32 s15, 0x20000")
        a("s_mov_b64 s[48:49], s[68:69]"); a(f"s_mov_b32 s50, {512*1024}"); a("s_mov_b32 s51, 0x20000")
        a("s_mov_b64 s[52:53], s[76:77]"); a(f"s_mov_b32 s54, {1792*1024}"); a("s_mov_b32 s55, 0x20000")
        a(f"v_lshrrev_b32 v{HT}, 3, v2"); a(f"v_bfe_u32 v{HT+1}, v2, 4, 1"); a(f"v_lshlrev_b32 v{HT+1}, 2, v{HT+1}")
        a(f"v_and_b32 v{HT+2}, 7, v2"); a(f"v_xor_b32 v{HT+2}, v{HT+1}, v{HT+2}"); a(f"v_lshlrev_b32 v{HT+2}, 4, v{HT+2}")
        a(f"v_lshl_add_u32 v{HV_R128}, v{HT}, 10, v{HT+2}")
        a(f"v_mul_u32_u24 v{HT+3}, 3584, v{HT}"); a(f"v_add_u32 v{HT+3}, v{HT+3}, v{HT+2}")
        a("s_and_b32 s85, s83, 1"); a("s_lshr_b32 s86, s83, 1")
        if OPT.get("rl2", 0): a("s_add_u32 s80, s6, 3"); a("s_and_b32 s80, s80, 3")
        else: a("s_add_u32 s80, s6, 1"); a("s_cmp_eq_u32 s6, 0"); a("s_cselect_b32 s80, 0, s80"); a("s_cmp_eq_u32 s6, 3"); a("s_cselect_b32 s80, 1, s80")
        a("s_lshl_b32 s86, s86, 1"); a("s_add_u32 s86, s86, s80")
        a("s_cmp_eq_u32 s85, 0"); a("s_cselect_b64 s[56:57], s[72:73], s[74:75]"); a(f"s_mov_b32 s58, {512*3584}"); a("s_mov_b32 s59, 0x20000")
        a("s_cmp_lt_u32 s2, 224"); a("s_cselect_b32 s87, 1, 0"); a("s_cmp_lt_u32 s80, 2"); a("s_cselect_b32 s87, s87, 0")
        def rel_ld():
            a(f"s_mul_i32 s41, s86, {64*3584}"); a("s_lshl_b32 s40, s84, 7"); a("s_add_u32 s41, s41, s40")
            for o in range(8):
                a(f"buffer_load_dwordx4 {vr(128+4*o,4)}, v{HT+3}, {SG}, s41 offen")
                if o < 7: a(f"s_add_u32 s41, s41, {8*3584}")
        if OPT.get("rele"): only(["s_cmp_gt_u32 s87, 0"], rel_ld); cnt["ghost"] = (cnt["issued"], 8)
        def coop():
            a(f"v_lshlrev_b32 v{HT}, 7, v2"); a("s_lshl_b32 s41, s2, 13")
            only(["s_cmp_eq_u32 s6, 1"], lambda: a(f"buffer_load_dword v161, v{HT}, {SD}, s41 offen"))
            a("s_sub_u32 s41, 255, s2"); a("s_lshl_b32 s41, s41, 13")
            if OPT.get("scoop", 4) != 4: only(["s_cmp_eq_u32 s6, 2"], lambda: a(f"buffer_load_dword v161, v{HT}, {SO}, s41 offen"))
        a("s_lshl_b32 s32, s19, 7"); a("s_and_b32 s40, s6, 1"); a("s_lshl_b32 s40, s40, 13"); a("s_add_u32 s32, s32, s40")
        a("s_lshr_b32 s40, s6, 1"); a(f"s_mul_i32 s33, s40, {56*16*KB}"); a("s_add_u32 s33, s33, s32"); a("s_lshl_b32 s40, s40, 18"); a("s_add_u32 s32, s32, s40")
        a(f"s_mul_i32 s34, s17, {96*KB}"); a(f"s_add_u32 s34, s34, {WQP}"); a("s_add_u32 s34, s34, s25")
        a(f"s_mul_i32 s29, s17, {0 if OPT.get('x_samew') else 7*32*KB}"); a(f"s_add_u32 s29, s29, {WGU}"); a("s_add_u32 s29, s29, s25")
        a(f"v_lshrrev_b32 v{HT}, 5, v2"); a(f"v_lshlrev_b32 v{HV_ROW0}, 9, v{HT}")
        a(f"v_mov_b32 v{HV_OOB}, 0x7ff00000")
        a(f"v_and_b32 v{HT}, 1, v2"); a("s_sub_i32 s40, s16, 1"); a(f"v_sub_u32 v{HT}, s40, v{HT}")
        a(f"v_lshlrev_b32 v{HT+1}, 11, v{HT}"); a("s_lshl_b32 s40, s6, 2"); a(f"v_add_u32 v{HT+1}, s40, v{HT+1}")
        a(f"v_cmp_gt_i32 vcc, 0, v{HT}"); a(f"v_cndmask_b32_e64 v{HV_PK}, v{HT+1}, 0, vcc")
        a("s_lshl_b32 s82, s17, 7"); a(f"s_add_u32 s82, s82, {KVFL}")
        a(f"v_add_u32 v{HV_W}, s25, v{V_LANE16}"); a(f"v_add_u32 v{HV_W+1}, 0x10000, v{HV_W}"); a(f"v_add_u32 v{HV_W+2}, 0x20000, v{HV_W}")
        self.tr_addr16(HV_TQ, HT, HT + 1)
        a("s_lshl_b32 s40, s6, 15"); a(f"v_add_u32 v{HV_TQ}, s40, v{HV_TQ}")
        for r in range(4): a(f"v_mov_b32 v{64+r}, s20")
        a("v_mov_b32 v48, s20"); a("v_mov_b32 v49, s20"); a("v_mov_b32 v50, 0"); a("v_mov_b32 v51, 0"); a(f"v_mov_b32 v52, {L_ONES}")
        for o in (0, 64, 256, 320): a(f"ds_write_b128 v52, v[48:51] offset:{o}")
        def colsum(lo, hi, first, HV_TQ=HV_TQ):
            def rd(kc):
                w = 72 + 4 * (kc % 8)
                a(f"ds_read_b64_tr_b16 {vr(w,2)}, v{HV_TQ} offset:{kc*KB}"); a(f"ds_read_b64_tr_b16 {vr(w+2,2)}, v{HV_TQ} offset:{kc*KB+256}")
            for kc in range(lo, min(hi, lo + 6)): rd(kc)
            for kc in range(lo, hi):
                a(f"s_waitcnt lgkmcnt({2 * (min(hi, kc + 6) - kc - 1)})")
                a(f"{MF} v[112:127], v[64:67], {vr(72+4*(kc%8),4)}, {'0' if (first and kc == lo) else 'v[112:127]'}")
                if kc + 6 < hi: rd(kc + 6)
        def augfin(q4=False):
            a("v_cvt_pk_bf16_f32 v104, v112, v112"); a("v_and_b32 v107, 0xffff, v104")
            a("v_lshlrev_b32 v105, 16, v104"); a("v_sub_f32 v105, v112, v105"); a("v_cvt_pk_bf16_f32 v106, v112, v105")
            if q4: a("s_lshr_b32 s40, s6, 1"); a("s_lshl_b32 s40, s40, 9"); a("s_and_b32 s41, s6, 1"); a("s_lshl_b32 s41, s41, 3"); a("s_add_u32 s40, s40, s41"); a(f"s_add_u32 s40, s40, {L_QB}")
            else: a("s_lshl_b32 s40, s6, 8"); a(f"s_add_u32 s40, s40, {L_AUG}")
            a("v_and_b32 v108, 31, v2"); a(f"v_lshlrev_b32 v108, {4 if q4 else 3}, v108"); a("v_add_u32 v108, s40, v108")
            a("ds_write_b64 v108, v[106:107]"); a("s_waitcnt lgkmcnt(0)")
        kvw = ["s_sub_u32 s40, s6, 1", "s_cmp_lt_u32 s40, 2"]
        qw  = ["s_cmp_eq_u32 s6, 0"]
        w3  = ["s_cmp_eq_u32 s6, 3"]
        def spin_head(loads):
            l = self.lab(); d = self.lab(); l0 = self.lab()
            a("s_mov_b32 s41, 0")
            for x in loads: a(x + ("" if OPT.get("pplain", 0) else " sc1"))
            a(f"s_branch {l0}"); a(f"{l}:"); a("s_sleep 4")
            for x in loads: a(x + " sc1")
            a(f"{l0}:")
            a("s_add_u32 s41, s41, 1"); a(f"s_cmp_gt_u32 s41, {OPT['spin']}"); a(f"s_cbranch_scc1 {d}")
            a("s_waitcnt vmcnt(0)")
            return l, d
        def get_nonce():
            l, d = spin_head([f"buffer_load_dwordx2 {vr(HT,2)}, off, {SDBG}, 0"])
            a(f"v_readfirstlane_b32 s92, v{HT}"); a(f"v_readfirstlane_b32 s93, v{HT+1}")
            a("s_cmp_eq_u32 s93, 0"); a(f"s_cbranch_scc1 {l}"); a(f"{d}:")
        def arrive():
            a("s_waitcnt lgkmcnt(0)")
            only(["s_cmp_eq_u32 s93, 0"], get_nonce)
            a(f"v_mov_b32 v{HT}, s92"); a(f"v_mov_b32 v{HT+1}, s93"); a(f"v_mov_b32 v{HT+2}, {L_TAG}"); a(f"ds_write_b64 v{HT+2}, {vr(HT,2)}")
            a("s_getreg_b32 s40, hwreg(HW_REG_XCC_ID)"); a("s_and_b32 s40, s40, 7"); a("s_or_b32 s91, s40, s92")
            a(f"v_mov_b32 v{HT}, s91"); a(f"v_mov_b32 v{HT+1}, s93")
            a("s_lshl_b32 s40, s16, 7"); a("s_lshl_b32 s41, s17, 3"); a("s_add_u32 s40, s40, s41"); a(f"s_add_u32 s40, s40, {AR}")
            a("s_mov_b64 exec, 1"); a(f"buffer_store_dwordx2 {vr(HT,2)}, off, s[8:11], s40 sc1"); a("s_mov_b64 exec, -1")
        def nbr():
            a("v_lshlrev_b32 v248, 5, v2"); a(f"s_mov_b32 s42, {AR}")
            l, d = spin_head(["buffer_load_dwordx4 v[240:243], v248, s[8:11], s42 offen", "buffer_load_dwordx4 v[244:247], v248, s[8:11], s42 offen offset:16"])
            for q in range(4): a(f"v_xor_b32 v{240+2*q}, s91, v{240+2*q}"); a(f"v_xor_b32 v{241+2*q}, s93, v{241+2*q}")
            a("v_or3_b32 v240, v240, v242, v244"); a("v_or_b32 v240, v240, v246"); a("v_or3_b32 v241, v241, v243, v245"); a("v_and_b32 v249, -8, v240"); a("v_or3_b32 v241, v241, v247, v249")
            a("v_cmp_ne_u32 vcc, 0, v241"); a(f"s_cbranch_vccnz {l}"); a(f"{d}:")
            a("v_cmp_ne_u32 vcc, 0, v240"); a("s_lshl_b32 s40, s16, 2"); a("s_lshr_b64 s[42:43], vcc, s40"); a("s_and_b32 s40, s42, 15"); a("s_cselect_b32 s40, 1, 0")
            if OPT["force_slow"]: a("s_mov_b32 s40, 1")
            a(f"v_mov_b32 v{HT}, s40"); a(f"v_mov_b32 v{HT+1}, {L_MODE}"); a(f"ds_write_b32 v{HT+1}, v{HT}"); a("s_waitcnt lgkmcnt(0)")
        def rel_do():
            a("s_lshl_b32 s40, s80, 12"); a(f"s_add_u32 s40, s40, {P4 if OPT.get('rl2', 0) else 144*KB}"); a(f"v_add_u32 v45, s40, v{V_LANE16}")
            a(f"v_bfe_u32 v40, v2, 2, 2"); a("v_lshlrev_b32 v41, 7, v40"); a("v_lshrrev_b32 v40, 1, v40"); a("v_lshrrev_b32 v42, 5, v2"); a("v_xor_b32 v40, v40, v42")
            a("v_lshl_add_u32 v41, v40, 6, v41"); a(f"v_and_b32 v40, 63, v{HV_TQ}"); a("v_add_u32 v41, v41, v40"); a("v_add_u32 v41, s40, v41")
            for hf in range(2):
                for o in range(4): a(f"ds_write_b128 v45, {vr(128+16*hf+4*o,4)} offset:{o*KB}")
                for o in range(4):
                    a(f"ds_read_b64_tr_b16 {vr(72+16*hf+4*o,2)}, v41 offset:{o*KB}"); a(f"ds_read_b64_tr_b16 {vr(74+16*hf+4*o,2)}, v41 offset:{o*KB+512}")
                a("s_waitcnt lgkmcnt(0)")
            a("v_lshrrev_b32 v40, 4, v2"); a("v_lshlrev_b32 v40, 15, v40"); a("v_and_b32 v42, 15, v2"); a("v_lshl_add_u32 v40, v42, 4, v40")
            a("s_lshl_b32 s40, s84, 17"); a("s_lshl_b32 s41, s86, 12"); a("s_add_u32 s40, s40, s41"); a("s_lshl_b32 s41, s85, 8"); a("s_add_u32 s40, s40, s41"); a(f"s_add_u32 s40, s40, {WGU}")
            a("v_mov_b32 v43, 0"); a("v_mov_b32 v44, 0")
            a("s_waitcnt lgkmcnt(0)")
            for o in range(8): a(f"buffer_store_dwordx4 {vr(72+4*o,4)}, v40, s[8:11], s40 offen offset:{o*512} sc1")
            for i in range(32): a(f"v_dot2_f32_bf16 v{43+i%2}, v{72+i}, s20, v{43+i%2}")
            a("s_nop 2"); a("v_add_f32 v43, v43, v44")
            a("s_lshl_b32 s40, s86, 1"); a("s_add_u32 s40, s40, s85"); a(f"s_mul_i32 s40, s40, {1792*4}"); a("s_lshl_b32 s41, s84, 8"); a("s_add_u32 s40, s40, s41"); a(f"s_add_u32 s40, s40, {CS}")
            a("v_lshlrev_b32 v42, 2, v2")
            a("buffer_store_dword v43, v42, s[8:11], s40 offen sc1")
        def halo():
            for kv in range(2):
                for d in (1, 2):
                    l1 = self.lab(); l2 = self.lab()
                    a(f"s_cmp_lt_u32 s16, {d}"); a(f"s_cbranch_scc1 {l1}")
                    a(f"s_sub_u32 s95, s27, {4*d}"); a("s_lshl_b32 s95, s95, 10"); a("s_add_u32 s95, s95, s94")
                    for hh in range(2): self.dma("s95", kv*32*64*KB + hh*64*KB, LK + kv*12*KB + hh*HS + (8-4*d)*KB, fl=" sc1")
                    a(f"s_branch {l2}")
                    a(f"{l1}:")
                    for hh in range(2): self.dma("s94", hh*64*KB, LK + kv*12*KB + hh*HS + (8-4*d)*KB, voff=(HV_ROW0, HV_OOB)[kv], fl=" sc1")
                    a(f"{l2}:")
                    op(63); op(63)
                sig(("hk", "hv")[kv])
        def pack():
            a("s_lshl_b32 s40, s16, 1"); a("s_sub_u32 s41, s40, s28"); a("s_and_b32 s41, s41, 31"); a("s_lshl_b32 s41, s41, 10"); a("s_lshl_b32 s42, s6, 15"); a("s_add_u32 s41, s41, s42")
            a(f"v_add_u32 v160, s41, v{V_LANE16}")
            a("ds_read_b128 v[164:167], v160"); a("ds_read_b128 v[168:171], v160 offset:1024")
            a("s_lshl_b32 s41, s6, 15"); a("s_lshl_b32 s40, s40, 10"); a("s_add_u32 s41, s41, s40")
            a("s_add_u32 s41, s41, s34"); a("s_sub_u32 s41, s41, s25")
            a("s_mov_b32 s90, s41")
            a("s_waitcnt lgkmcnt(0)")
        def pack_st():
            a(f"buffer_store_dwordx4 v[164:167], v{V_LANE16}, s[8:11], s90 offen sc1"); a(f"buffer_store_dwordx4 v[168:171], v{V_LANE16}, s[8:11], s90 offen offset:1024 sc1")
        def rel_sig():
            a("s_lshl_b32 s40, s80, 2"); a("s_add_u32 s40, s40, s88")
            a(f"v_mov_b32 v{HT}, 1"); a("s_mov_b64 exec, 1"); a(f"buffer_store_dword v{HT}, off, s[8:11], s40 sc1"); a("s_mov_b64 exec, -1")
        def gu_ready():
            a("s_lshr_b32 s40, s17, 2"); a("s_lshl_b32 s40, s40, 9"); a(f"s_add_u32 s42, s40, {RF}")
            a(f"v_min_u32 v{HT+2}, 55, v2"); a(f"v_lshlrev_b32 v{HT+2}, 3, v{HT+2}")
            l, d = spin_head([f"buffer_load_dwordx2 {vr(HT,2)}, v{HT+2}, s[8:11], s42 offen"])
            a(f"v_and_b32 v{HT}, v{HT}, v{HT+1}"); a(f"v_cmp_ne_u32 vcc, 1, v{HT}"); a(f"s_cbranch_vccnz {l}"); a(f"{d}:")
        def pack_sig():
            a("s_lshl_b32 s40, s6, 2"); a("s_add_u32 s40, s40, s89")
            a(f"v_mov_b32 v{HT}, 1"); a("s_mov_b64 exec, 1"); a(f"buffer_store_dword v{HT}, off, s[8:11], s40 sc1"); a("s_mov_b64 exec, -1")
        def gu_aug():
            a("v_lshrrev_b32 v240, 5, v2"); a(f"v_mul_u32_u24 v241, {1792*4}, v240"); a("v_and_b32 v242, 31, v2"); a("v_min_u32 v242, 27, v242"); a("v_lshl_add_u32 v241, v242, 4, v241")
            a(f"s_mul_i32 s40, s17, {112*4}"); a(f"s_add_u32 s40, s40, {CS}")
            for p in range(8):
                a(f"buffer_load_dwordx4 {vr(208+4*p,4)}, v241, s[8:11], s40 offen sc1")
                if p < 7: a(f"s_add_u32 s40, s40, {2*1792*4}")
            a("v_lshrrev_b32 v243, 2, v242"); a("v_lshlrev_b32 v243, 8, v243"); a("v_lshl_add_u32 v243, v240, 7, v243"); a("v_and_b32 v244, 3, v242"); a("v_lshl_add_u32 v243, v244, 5, v243")
            a(f"v_add_u32 v243, {L_AUG + 768}, v243")
            a("s_waitcnt vmcnt(0)")
            for p in range(1, 8):
                for c in range(4): a(f"v_add_f32 v{208+c}, v{208+c}, v{208+4*p+c}")
            for c in range(4):
                a(f"v_cvt_pk_bf16_f32 v245, v{208+c}, v{208+c}"); a(f"v_and_b32 v{217+2*c}, 0xffff, v245")
                a("v_lshlrev_b32 v245, 16, v245"); a(f"v_sub_f32 v245, v{208+c}, v245"); a(f"v_cvt_pk_bf16_f32 v{216+2*c}, v{208+c}, v245")
            a("ds_write_b128 v243, v[216:219]"); a("ds_write_b128 v243, v[220:223] offset:16"); a("s_waitcnt lgkmcnt(0)")
        def pack_ready():
            a("s_lshl_b32 s42, s17, 8"); a(f"s_add_u32 s42, s42, {PFL}"); a("s_mov_b32 s43, 1")
            a(f"v_lshlrev_b32 v{HT}, 2, v2"); self.poll(HT, "s42", "s43", sleep=8)
        a(f"v_and_b32 v{HF_}, 3, v2"); a(f"v_lshlrev_b32 v{HF_}, 2, v{HF_}"); a(f"v_add_u32 v{HF_}, {L_HL}, v{HF_}")
        a("s_lshr_b32 s40, s6, 1"); a("s_lshl_b32 s41, s18, 1"); a("s_add_u32 s40, s40, s41"); a("s_lshl_b32 s41, s16, 2"); a("s_add_u32 s40, s40, s41")
        a("s_and_b32 s41, s6, 1"); a("s_lshl_b32 s42, s19, 1"); a("s_add_u32 s41, s41, s42")
        a("s_lshl_b32 s60, s40, 15"); a("s_lshl_b32 s42, s41, 11"); a("s_add_u32 s60, s60, s42")
        a("s_lshl_b32 s61, s40, 12"); a("s_lshr_b32 s42, s41, 2"); a("s_lshl_b32 s42, s42, 10"); a("s_add_u32 s61, s61, s42")
        a(f"s_mul_i32 s62, s27, {112*KB}"); a("s_lshl_b32 s42, s17, 11"); a("s_add_u32 s62, s62, s42")
        a(f"s_mul_i32 s63, s27, {112*KB}"); a(f"s_mul_i32 s42, s17, {7*KB}"); a("s_add_u32 s63, s63, s42")
        def touch(items):
            a(self.touch_txt([([f"s_add_u32 s43, {r}, {b}"], n) for r, b, n in items]).replace(f"v{V_OUT},", "v31,"))
        def ext():
            pass
        for it in range(2):
            st["it"] = it
            if it == 0:
                KW = OPT.get("kw", 4); RP = OPT.get("rp", 8)
                if OPT.get("scoop", 4):
                    a("s_and_b32 s40, s80, 1"); a("s_lshl_b32 s40, s40, 6"); a(f"s_mul_i32 s41, s2, {7*KB}"); a("s_add_u32 s41, s41, s40"); a("s_add_u32 s64, s52, s41"); a("s_addc_u32 s65, s53, 0")
                    a("s_lshl_b32 s41, s2, 11"); a("s_add_u32 s41, s41, s40"); a("s_add_u32 s66, s48, s41"); a("s_addc_u32 s67, s49, 0")
                    spq += [f"s_load_dword s95, s[66:67], {q*128}" for q in range(16)] + [f"s_load_dword s95, s[64:65], {q*128}" for q in range(56 if OPT.get("scoop", 4) != 4 else 0)]
                wqkv([WK, WV], range(2, 4), win=KW)
                retire(max(4, cnt["done"]))
                only(w3, lambda: a("s_load_dwordx2 s[92:93], s[70:71], 0"))
                wqkv([WK, WV], range(4, 6), win=KW)
                only(w3, arrive)
                wqkv([WK, WV], range(6, RP), win=KW)
                if not OPT.get("rele"): only(["s_cmp_gt_u32 s87, 0"], lambda: (need("x0") if OPT.get("relx", 0) else None, rel_ld())); cnt["ghost"] = (cnt["issued"], 8)
                wqkv([WK, WV], range(RP, 8), win=KW)
                only(kvw, lambda: (need("kv1", "H"), colsum(0, 16, True)))
                flush()
                if OPT.get("coope", 0): coop()
                self.stamp(9)
                only(kvw, lambda: (need("kv3", "H"), colsum(16, 32, False), augfin(), pack()))
                hpub("augkv")
                def spall():
                    while spq: a(spq.pop(0))
                QS = 32; RA = ["s_cmp_gt_u32 s87, 0"]
                if OPT.get("rl2", 0):
                    self.stamp(10)
                    need("x")
                    wqkv([WQ], range(0, 8), win=63)
                    only(w3, nbr)
                    drain(); hpub("wq")
                    only(qw, lambda: (need("wq", "H"), a("s_setprio 3"), colsum(0, 32, True), augfin()))
                    hpub("augq")
                    only(RA, lambda: (need("kv"), rel_do(), need("wq", "H"), a("s_waitcnt vmcnt(0)"), rel_sig()))
                    if OPT.get("scoop", 4) == 2: only(["s_cmp_ge_u32 s80, 2"], spall)
                else:
                    only(RA, lambda: (a("s_setprio 3"), a("s_waitcnt vmcnt(0)"), rel_do(), a("s_setprio 0")))
                    self.stamp(10)
                    need("x")
                    wqkv([WQ], range(0, 8), win=63)
                    only(w3, nbr)
                    drain(); hpub("wq")
                    need("wq", "H")
                    only(RA, rel_sig)
                    a(f"s_mul_i32 s40, s6, {24*KB}"); a(f"v_subrev_u32 v109, s40, v{HV_TQ}")
                    a("s_setprio 3"); colsum(0, 8, True, 109); augfin(True); a("s_setprio 0")
                    hpub("augq")
                    if OPT.get("scoop", 4) == 2: only(kvw, spall)
                self.stamp(12)
            else:
                need("x"); hpub("augq")
            if it == 0:
                only(qw, lambda: (pack(), a("s_setprio 0")))
                only(["s_cmp_lt_u32 s6, 3"], pack_st)
            if it == 0 and OPT.get("st_e"): coop(); stash(OPT["st_e"])
            self.stamp(14)
            need(["hl", "kv", "q"][OPT.get("hgo1", 0) if it else OPT.get("hgo0", 0)])
            self.stamp(2)
            if it == 0:
                a(f"v_mov_b32 v{V_TMP}, {L_MODE}"); a(f"ds_read_b32 v{V_TMP}, v{V_TMP}"); a("s_waitcnt lgkmcnt(0)"); a(f"v_readfirstlane_b32 s21, v{V_TMP}")
            if OPT.get("c3", 2) > 1:
                only(["s_cmp_eq_u32 s6, 2"], lambda: c3w(SO, 16))
                if it == 0: only(["s_cmp_eq_u32 s6, 1"], lambda: c3w(SD, 56))
            if OPT.get("tlate"):
                for g in range(OPT["tlate"]): self.dma("s32", (2*(g%8) + g//8)*16*KB, RK + g*4*KB, voff=HV_R128, srd=SO); op()
            if OPT.get("codepf", 1) > 1 and it == 0: only(["s_cmp_eq_u32 s6, 0"], codepf)
            touch([("s63", OF, 16), ("s60", XA, 16), ("s61", STA, 8)])
            if it == 0 and OPT.get("scoop", 4) in (0, 4) and not OPT.get("coope", 0) and not OPT.get("st_e"): coop()
            assert not spq
            self.stamp(3)
            for g in range(OPT.get("tlate", 0), 16):
                self.dma("s32", (2*(g%8) + g//8)*16*KB, RK + g*4*KB, voff=HV_R128, srd=SO); op()
                if it == 0 and not OPT.get("rel0", 1):
                    if g == 2: only(["s_cmp_gt_u32 s87, 0"], lambda: (a("s_waitcnt vmcnt(3)"), rel_do()))
                    if g == 3 + W: only(["s_cmp_gt_u32 s87, 0"], rel_sig)
            sig("wo")
            if it == 0:
                pack_sig()
                stash(OPT.get("st_0", 10)); flush()
                only(w3, gu_ready)
                hpub("gur"); need("gur", "H")
            self.stamp(5)
            tile(0); tile(1, range(0, 3))
            if it == 0: stash(OPT.get("st_a", 0))
            need("h0"); tile(1, range(3, 8))
            if it == 0: only(w3, gu_aug); stash(OPT.get("st_b", 20))
            if OPT.get("htouch", 0) > it: touch([("s63", HF, 56)])
            for n in range(OPT.get("pf1", 0) if it else OPT.get("pf0", 0)):
                if n == 0:
                    a("s_and_b32 s40, s16, 1"); a("s_lshl_b32 s41, s6, 1"); a("s_add_u32 s40, s40, s41"); a("s_lshl_b32 s40, s40, 13")
                    a("s_sub_u32 s43, s29, s25"); a("s_add_u32 s43, s43, s40"); a(f"v_lshlrev_b32 v{HT}, 7, v2")
                a(f"s_add_u32 s43, s43, {64*KB}")
                a(f"buffer_load_dword v31, v{HT}, s[8:11], s43 offen"); op(1)
            self.stamp(4)
            if OPT.get("t2e", 1):
                need("wo1"); tile(2); sig("t2_3")
                for p in range(3): self.seen.add(("H", f"t2_{p}"))
                need("xr"); flush(); wdw(range(0, 7))
                if it == 0: only(w3, pack_ready)
                need("xch")
            else:
                need("wo"); tile(2, range(0, 2)); sig("t2_0")
                need("xch")
                for p in range(1, 4): tile(2, range(2*p, 2*p + 2)); sig(f"t2_{p}")
            if OPT.get("t3g"): need(f"g{OPT['t3g']}")
            tile(3); sig("t3")
            for p, nm in enumerate(("g8", "g16", "g24", "g32")):
                need(nm); tile(4, range(2*p, 2*p + 2))
            sig("t4")
            tile(5); sig("t5"); tile(6); sig("t6")
            if it == 0: stash(9)
            if OPT.get("wlate", 1): flush()
            if OPT.get("codepf", 1) > 2 and it == 0: only(["s_cmp_eq_u32 s6, 0"], codepf)
            need("t3"); wdw(range(7, 15))
            if it == 0: stash(8)
            need("t4"); wdw(range(15, 23))
            flush(); hpub("w0")
            if it == 0: stash(56)
            if it == 1 and OPT.get("wb") == 1: only(["s_lshr_b32 s40, s2, 3", "s_lshl_b32 s40, s40, 2", "s_add_u32 s40, s40, s6", "s_cmp_eq_u32 s40, 0"], lambda: a("buffer_wbl2 sc1"))
            need("t5"); wdw(range(23, 31)); hpub("w23")
            need("t6"); wdw(range(31, 39)); hpub("w31")
            need("d7"); wdw(range(39, 46)); hpub("w39")
            if it == 0:
                need("d15"); wqp([WV], range(8))
                need("d23"); wqp([WK], range(4))
            if it == 1 and OPT.get("wb") == 2: only(["s_lshr_b32 s40, s2, 3", "s_lshl_b32 s40, s40, 2", "s_add_u32 s40, s40, s6", "s_cmp_eq_u32 s40, 0"], lambda: a("buffer_wbl2 sc1"))
            need("d33"); wdw(range(46, 56)); hpub("w46")
            if it == 0:
                wqp([WK], range(4, 8))
                need("d39"); wqp([WQ], range(2, 8))
            if it == 0:
                drain(); hpub("nkv")
                need("d56"); wqp([WQ], range(0, 2)); drain()
                a("s_mov_b32 s23, 16")
        self.finish()

    def count_poll(self, soff, T):
        a = self.a; l = self.lab(); d = self.lab()
        a("s_mov_b32 s41, 0")
        l0 = self.lab(); a(f"s_branch {l0}"); a(f"{l}:"); a("s_sleep 8"); a(f"{l0}:")
        a(f"buffer_load_dwordx2 {vr(T,2)}, off, s[12:15], {soff} sc1"); a("s_waitcnt vmcnt(0)")
        a(f"v_readfirstlane_b32 s42, v{T}"); a(f"v_readfirstlane_b32 s43, v{T+1}")
        a("s_add_u32 s41, s41, 1"); a(f"s_cmp_gt_u32 s41, {OPT['spin']}"); a(f"s_cbranch_scc1 {d}")
        a("s_add_u32 s40, s42, s43"); a("s_mul_i32 s40, s40, 0x01010101"); a("s_lshr_b32 s40, s40, 24")
        a("s_cmp_lg_u32 s40, 16"); a(f"s_cbranch_scc1 {l}")
        a(f"{d}:")

    def build(self):
        a = self.a
        self.prologue()
        a("s_cmp_ge_u32 s3, 4"); a("s_cbranch_scc1 L_helper")
        self.compute()
        a("L_helper:")
        self.helper()
        assert self.used <= self.seen, self.used - self.seen
        a("L_end:"); a("s_endpgm")
        for x in self.ool: a.raw(x)
        a.raw("L_code_end:"); a.raw("    s_endpgm")
        return a.text()

def build():
    body = Main().build()
    return f"""; generated by dev/gen10.py
; @launch grid=(256,1,1) block=(512,1,1) lds={160*KB}
.amdgcn_target "amdgcn-amd-amdhsa--gfx950"
.text
{body}
.section .rodata,"a"
.p2align 6
.amdhsa_kernel {NAME}
  .amdhsa_next_free_vgpr 256
  .amdhsa_next_free_sgpr 102
  .amdhsa_accum_offset 256
  .amdhsa_group_segment_fixed_size 0
  .amdhsa_kernarg_size 80
  .amdhsa_user_sgpr_count 2
  .amdhsa_user_sgpr_kernarg_segment_ptr 1
  .amdhsa_system_sgpr_workgroup_id_x 1
.end_amdhsa_kernel
"""

if __name__ == "__main__":
    for x in sys.argv[2:]:
        if "=" in x: kk, v = x.split("="); OPT[kk] = int(v)
        else: OPT[x] = True
    open(sys.argv[1], "w").write(build())
```

```python
import sys, struct
from asmlib import *

NAME = "interleave_layers__sliding_block__glu_gated_glu__prompt_kernel"
KB = 1024
MB = 1 << 20
WQP  = 0
CS   = 0x180000
FL   = 0x1A0000
KVFL = 0x1A4000
RF   = 0x1AC000
PFL  = RF + 2048
AR   = RF + 8192
WGU  = 2*MB
STA  = WGU + 3584*KB; STB = STA
XA   = 6*MB; XB = XA
KV   = 8*MB
KVT  = 4608
KVS  = 0
HF   = 8*MB
OF   = HF
WS_USED = 16*MB
ALS  = 128*MB
ITS  = 32*MB
TS   = 0x6000000
WS_BYTES = 0x10000000
LOG2E = 1.4426950408889634
def f32(x): return "0x%08x" % struct.unpack("<I", struct.pack("<f", x))[0]
MF = "v_mfma_f32_32x32x16_bf16"
OPT = dict(stamp=False, force_slow=False, spin=400000, pre=10, cprio=2, fine=0, pf=0, kvflag=24, rot=1, win=6, hsc1=1)

P1, P2, P3, P4, PE, MISC = 0, 32*KB, 64*KB, 96*KB, 128*KB, 156*KB
LK = 108*KB; LV = LK + 12*KB; HS = 24*KB
L_QB = MISC; L_AUG = MISC + 768; L_ONES = MISC + 3328; L_HL = MISC + 3712; L_CP = L_HL + 16; L_MODE = L_HL + 32; L_TAG = L_HL + 40; L_DUMMY = MISC + 3840
DG = [0, 23, 31, 39, 46]
DP = [7, 15, 23, 33, 39, 43, 56]
CSEQ = ["x0", "x", "kv", "q", "hl", "h0", "att", "wo1", "wo", "xr", "xch", "g8", "g16", "g24", "g32", "t3", "t4", "t5", "t6"] + [f"d{s}" for s in DP] + ["dx"]
HSEQ = ["kv0", "kv1", "kv2", "kv3", "augkv", "wq", "augq", "wo", "gur", "t2_0", "t2_1", "t2_2", "t2_3", "t3", "t4", "t5", "t6"] + [f"w{s}" for s in DG] + ["nkv"]
CV = {n: i + 1 for i, n in enumerate(CSEQ)}; HV = {n: i + 1 for i, n in enumerate(HSEQ)}
assert max(len(CSEQ), len(HSEQ)) < 64
XCH_WO = PE; XCH_DN = PE
L_X0 = P4
L_REL_ = 0
def wd_slot(s):
    for lo, hi, reg in ((0, 7, PE), (7, 15, P3), (15, 23, P2), (23, 31, P4), (31, 39, P1), (39, 46, PE), (46, 54, P4), (54, 56, P1)):
        if lo <= s < hi: return reg + (s - lo)*4*KB
GU_REG = [P1, P4, P2, P3, P2, P4, P1]
RQ, RK, RV = P1, P2, P3
F_O1, F_O2, F_X1, F_H1, F_H2, F_X2 = 1, 2, 3, 7, 9, 10
STASH = 32

V_LANE16 = 3; V_F0 = 4
V_TQ = 6
V_XOFF = 8
V_RSTD = 10; V_STD = 11; V_C1 = 12; V_TMP = 13; V_TS = 14; V_TS2 = 15
V_XAUG = 16
V_PX = 20; V_PH = 21; V_AUGA = 22; V_OUT = 23
V_RES = 24
V_PUBA = 0; V_FA = 35; V_FLG = 1; V_BASE = 9
V_FW = 32
V_EP = 36
ACC = [40, 56, 72, 88]
WR = 96; NW = 8
XR = 128
T0 = 104

class VM:
    def __init__(self, a): self.a = a; self.q = []
    def issue(self, tag): self.q.append(tag)
    def wait(self, tag):
        idx = max((i for i, t in enumerate(self.q) if t == tag), default=-1)
        if idx < 0: return
        n = len(self.q) - 1 - idx; assert n <= 63
        self.a(f"s_waitcnt vmcnt({n})"); del self.q[:idx + 1]
    def drain(self):
        self.a("s_waitcnt vmcnt(0)"); self.q = []

def stats_calc_list(d0, tmp):
    L = [f"v_mov_b32 v{tmp}, 0", f"v_mov_b32 v{tmp+1}, 0"]
    for i in range(8):
        L.append(f"v_dot2_f32_bf16 v{tmp}, v{d0+i}, s20, v{tmp}")
        L.append(f"v_dot2_f32_bf16 v{tmp+1}, v{d0+i}, v{d0+i}, v{tmp+1}")
    L += ["s_nop 2", f"v_permlane32_swap_b32 v{tmp}, v{tmp+1}", "s_nop 1", f"v_add_f32 v{tmp}, v{tmp}, v{tmp+1}"]
    return L

class Main:
    DBARS = list(range(0, 56, 7))
    def __init__(self):
        self.a = Asm(); self.nl = 0
        self.seen = set(); self.used = set()
        self.role = None; self.pend_stamp = None; self.ool = []; self.nw = NW; self.wr = WR
    def lab(self): self.nl += 1; return f"L{self.nl}"
    def emit(self, x):
        if callable(x): x()
        else: self.a(x)
    def pub(self, name):
        self.a(f"v_add_u32 v{V_TMP}, {CV[name]}, v{V_BASE}"); self.a(f"ds_write_b32 v{V_PUBA}, v{V_TMP}")
        self.seen.add(("C", name))
    def gate_rd(self, src): self.a(f"ds_read_b32 v{V_FLG}, v{V_FA} offset:{0 if src == 'H' else 16}")
    def gate_cmp(self, name, src="H", absval=None):
        a = self.a
        n = (HV if src == "H" else CV)[name]
        if absval is not None: a(f"s_movk_i32 s39, {absval}")
        else: a(f"s_add_u32 s39, s7, {n}")
        a(f"v_cmp_gt_u32 s[30:31], s39, v{V_FLG}")
        self.used.add((src, name))
    def gate_br(self, src="H", redo=[]):
        a = self.a; l1 = self.lab(); l2 = self.lab()
        a("s_cmp_eq_u64 s[30:31], 0"); a(f"s_cbranch_scc1 {l2}")
        a(f"{l1}:")
        if OPT.get("csl"): a(f"s_sleep {OPT['csl']}")
        a("s_add_u32 s38, s38, 1"); a(f"s_cmp_gt_u32 s38, {OPT['spin']*16}"); a(f"s_cbranch_scc1 {l2}")
        a(f"ds_read_b32 v{V_FLG}, v{V_FA} offset:{0 if src == 'H' else 16}")
        for x in redo: a(x)
        a("s_waitcnt lgkmcnt(0)"); a(f"v_cmp_gt_u32 vcc, s39, v{V_FLG}"); a(f"s_cbranch_vccnz {l1}")
        a.pending.pop(l1, None)
        a(f"{l2}:")
    def gate_chk(self, name, src="H", absval=None):
        self.gate_cmp(name, src, absval); self.gate_br(src)
    def gate(self, name, src="H", absval=None):
        self.gate_rd(src); self.a("s_waitcnt lgkmcnt(0)"); self.gate_chk(name, src, absval)
    def stamp(self, i):
        if OPT.get("x_ref", 0) >= 100 and self.role == "C" and i == OPT["x_ref"] - 100:
            l = self.lab(); self.a("s_cmp_lg_u32 s22, 0"); self.a(f"s_cbranch_scc1 {l}"); self.a("s_memrealtime s[100:101]"); self.a(f"{l}:")
        if not OPT["stamp"]: return
        a = self.a
        a("s_memrealtime s[96:97]"); a("s_memtime s[98:99]"); a("s_waitcnt lgkmcnt(0)")
        if OPT.get("cnt"): a("s_lshl_b32 s98, s38, 12"); a("s_add_u32 s98, s98, s5")
        a(f"s_add_u32 s97, s23, {i}"); a(f"s_add_u32 m0, s97, s23"); a("s_nop 3")
        a(f"v_writelane_b32 v{V_TS}, s96, m0"); a(f"v_writelane_b32 v{V_TS2}, s98, m0")
    def store(self, instr, tag="st"):
        l1 = self.lab(); l2 = self.lab(); a = self.a
        if tag[0] == "h" and OPT.get("hsc1") == 1:
            a(instr + " sc1"); self.vm.issue(tag); return
        if tag[0] == "h" and OPT.get("hsc1") == 2:
            a("s_cmp_le_u32 s22, s21"); a(f"s_cbranch_scc1 {l1}"); a(instr); a(f"s_branch {l2}"); a(f"{l1}:"); a(instr + " sc1"); a(f"{l2}:")
            self.vm.issue(tag); return
        a("s_cmp_lg_u32 s21, 0"); a(f"s_cbranch_scc1 {l1}"); a(instr); a(f"{l2}:")
        a.pending.pop(l1, None)
        self.ool += [f"{l1}:", "    " + instr + " sc1", f"    s_branch {l2}"]
        self.vm.issue(tag)
    def flag(self, val, tag="st"):
        a = self.a
        a(f"s_add_u32 s40, s23, {val}"); a(f"v_mov_b32 v{V_TMP}, s40"); self.vm.wait(tag); a("s_mov_b64 exec, 1")
        self.store(f"buffer_store_dword v{V_TMP}, off, s[8:11], s24", "fl_st"); a("s_mov_b64 exec, -1")
    def peek(self, voff):
        self.a(f"buffer_load_dword v{V_OUT}, v{voff}, s[8:11], s26 offen sc1"); self.vm.issue("pk")
    def check(self, voff, val):
        a = self.a; d = self.lab()
        a(f"s_add_u32 s61, s23, {val}")
        self.vm.wait("pk")
        a(f"v_cmp_gt_u32 vcc, s61, v{V_OUT}"); a(f"s_cbranch_vccz {d}")
        self.poll(voff, "s26", "s61")
        a(f"{d}:")
    def acquire(self):
        a = self.a; l = self.lab()
        a("s_cmp_eq_u32 s21, 0"); a(f"s_cbranch_scc1 {l}"); a("buffer_inv sc1"); a("s_waitcnt vmcnt(0)"); a(f"{l}:")
    def poll(self, voff, sbase, sval, srd="s[8:11]", sleep=0):
        a = self.a; l = self.lab(); d = self.lab()
        a("s_mov_b32 s41, 0")
        if sleep and OPT.get("pplain", 0):
            l0 = self.lab(); a(f"buffer_load_dword v{V_TMP}, v{voff}, {srd}, {sbase} offen"); a(f"s_branch {l0}"); a(f"{l}:"); a(f"s_sleep {sleep}")
            a(f"buffer_load_dword v{V_TMP}, v{voff}, {srd}, {sbase} offen sc1"); a(f"{l0}:")
        else:
            if sleep:
                l0 = self.lab(); a(f"s_branch {l0}"); a(f"{l}:"); a(f"s_sleep {sleep}"); a(f"{l0}:")
            else: a(f"{l}:")
            a(f"buffer_load_dword v{V_TMP}, v{voff}, {srd}, {sbase} offen sc1")
        if OPT.get("cnt"): a("s_add_u32 s5, s5, 1")
        a("s_add_u32 s41, s41, 1"); a(f"s_cmp_gt_u32 s41, {OPT['spin']}"); a(f"s_cbranch_scc1 {d}")
        a("s_waitcnt vmcnt(0)")
        a(f"v_cmp_gt_u32 vcc, {sval}, v{V_TMP}")
        a(f"s_cbranch_vccnz {l}")
        a(f"{d}:")
    def poll2(self, voff, sbase, sval):
        N = OPT.get("pp", 1)
        if N == 1: return self.poll(voff, sbase, sval)
        a = self.a; l = self.lab(); d = self.lab()
        regs = [ACC[0] + i for i in range(N)]
        ld = lambda r: a(f"buffer_load_dword v{r}, v{voff}, s[8:11], {sbase} offen sc1")
        a("s_mov_b32 s41, 0")
        for n, r in enumerate(regs):
            ld(r)
            if n < N - 1: a(f"s_sleep {OPT.get('ppd', 2)}")
        a(f"{l}:")
        for r in regs:
            a(f"s_waitcnt vmcnt({N-1})"); a(f"v_cmp_gt_u32 vcc, {sval}, v{r}"); a(f"s_cbranch_vccz {d}"); ld(r)
        a("s_add_u32 s41, s41, 1"); a(f"s_cmp_le_u32 s41, {OPT['spin']}"); a(f"s_cbranch_scc1 {l}")
        a.pending.pop(l, None)
        a(f"{d}:")
    def dma(self, sbase, const, lds, voff=V_LANE16, fl="", srd="s[8:11]", sl="s25"):
        a = self.a
        a(f"s_add_u32 s40, {sbase}, {const}")
        a(f"s_add_u32 m0, {sl}, {lds}")
        a(f"buffer_load_dwordx4 v{voff}, {srd}, s40 offen{fl} lds")
    def touch_txt(self, items):
        l = self.lab()
        L = ["s_cmp_lg_u32 s21, 0", f"s_cbranch_scc1 {l}", f"v_lshlrev_b32 v{V_TMP}, 7, v2"]
        for sal, n in items:
            L += sal
            m = (1 << n) - 1
            L += [f"s_mov_b32 exec_lo, {m & 0xffffffff:#x}", f"s_mov_b32 exec_hi, {m >> 32:#x}", f"buffer_load_dword v{V_OUT}, v{V_TMP}, s[8:11], s43 offen sc1"]
        L += ["s_mov_b64 exec, -1", f"{l}:"]
        return "\n".join(L)
    def stream(self, steps, look, fill=None):
        a = self.a
        reads = []; need = []
        for s in steps:
            reads += s["reads"]; need.append(len(reads) - 1)
        per = 2 if any(r["op"].endswith("tr_b16") for r in reads) else 1
        pre_rd = {}; pre_cmp = {}
        for i, r in enumerate(reads):
            if r.get("gate"):
                pre_rd[max(0, i - look - per)] = i; pre_cmp[max(0, i - per)] = i
        ng = sum(1 for r in reads if r.get("gate"))
        assert len(pre_rd) == ng and len(pre_cmp) == ng
        gi = sorted(pre_rd.values())
        assert all(b - a_ > look + per for a_, b in zip(gi, gi[1:])), gi
        nr = 0; q = []; done = [0]; self._q = q
        def wait(tag):
            idx = q.index(tag)
            if idx < done[0]: return
            n = len(q) - 1 - idx; assert n <= 15, n
            a(f"s_waitcnt lgkmcnt({n})"); done[0] = idx + 1
        def issue():
            nonlocal nr
            r = reads[nr]
            if nr in pre_rd: self.gate_rd(reads[pre_rd[nr]].get("gsrc", "H")); q.append(("g", pre_rd[nr]))
            if nr in pre_cmp:
                g = reads[pre_cmp[nr]]
                wait(("g", pre_cmp[nr])); self.gate_cmp(g["gate"], g.get("gsrc", "H"), g.get("absval"))
            if r.get("gate"): self.gate_br(r.get("gsrc", "H"))
            if r.get("vm") is not None: self.vm.wait(r["vm"])
            n = 4 if r["op"] == "ds_read_b128" else 2
            fm = r["fam"]; off = r["off"]
            reg = fm[off >> 16] if isinstance(fm, list) else fm
            a(f"{r['op']} {vr(r['d'], n)}, v{reg} offset:{off & 0xffff}"); q.append(nr)
            if r.get("pub"): self.pub(r["pub"]); q.append(("p", nr))
            nr += 1
        for i, s in enumerate(steps):
            while nr < len(reads) and nr <= need[i] + (look if i == 0 else 0): issue()
            for x in s.get("pre", []): self.emit(x)
            wait(need[i + 1] if (s.get("pair") and i + 1 < len(steps)) else need[i])
            a(s["mf"])
            nxt = need[i + 1] if i + 1 < len(steps) else need[i]
            while nr < len(reads) and nr <= nxt + look: issue()
            for x in s.get("post", []): self.emit(x)
            if fill:
                for f in fill(i): self.emit(f)
            if self.pend_stamp: self.stamp(self.pend_stamp); self.pend_stamp = None
    def rd128(self, w, off, gate=None, pub=None): return [dict(op="ds_read_b128", d=w, fam=[V_F0, V_F0 + 1], off=off, gate=gate, pub=pub)]
    def rdtr(self, w, fam, off, d2, gate=None, pub=None, absval=None):
        return [dict(op="ds_read_b64_tr_b16", d=w, fam=fam, off=off, gate=gate, absval=absval), dict(op="ds_read_b64_tr_b16", d=w + 2, fam=fam, off=off + d2, pub=pub)]
    def tr_addr16(self, dst, t0, t1):
        a = self.a
        a(f"v_lshrrev_b32 v{t0}, 5, v2"); a(f"v_lshlrev_b32 v{dst}, 9, v{t0}")
        a(f"v_bfe_u32 v{t0}, v2, 2, 2"); a(f"v_lshl_add_u32 v{dst}, v{t0}, 6, v{dst}")
        a(f"v_bfe_u32 v{t0}, v2, 4, 1"); a(f"v_lshl_add_u32 v{dst}, v{t0}, 5, v{dst}")
        a(f"v_and_b32 v{t0}, 1, v2"); a(f"v_lshl_add_u32 v{dst}, v{t0}, 4, v{dst}")
        a(f"v_bfe_u32 v{t0}, v2, 1, 1"); a(f"v_lshl_add_u32 v{dst}, v{t0}, 3, v{dst}")

    def prologue(self):
        a = self.a
        a.raw(f".globl {NAME}"); a.raw(".p2align 8"); a.raw(f".type {NAME},@function"); a.raw(f"{NAME}:")
        a(f"s_cmp_ge_u32 s2, {0 if OPT.get('empty') else 256}"); a("s_cbranch_scc1 L_end")
        if OPT["stamp"] or OPT.get("x_dl2"): a("s_memrealtime s[100:101]")
        a("s_load_dwordx4 s[64:67], s[0:1], 0")
        a("s_load_dwordx2 s[8:9], s[0:1], 72")
        a("s_load_dwordx2 s[68:69], s[0:1], 16")
        a("s_load_dwordx8 s[72:79], s[0:1], 32")
        a("s_load_dwordx2 s[70:71], s[0:1], 64")
        a("v_lshrrev_b32 v1, 6, v0"); a("v_and_b32 v2, 63, v0")
        a("v_readfirstlane_b32 s3, v1")
        if OPT.get("codepf", 1):
            a("s_getpc_b64 s[42:43]")
            a.raw("L_pc:")
            a(f"s_sub_u32 s42, s42, L_pc-{NAME}"); a("s_subb_u32 s43, s43, 0")
            a("s_lshr_b32 s40, s2, 3"); a("s_lshl_b32 s40, s40, 11")
            a("v_lshlrev_b32 v10, 7, v2"); a("v_add_u32 v10, s40, v10"); a(f"v_min_u32 v10, L_code_end-{NAME}-4, v10")
            a("v_mov_b32 v11, s43"); a("v_add_co_u32 v10, vcc, s42, v10"); a("v_addc_co_u32 v11, vcc, 0, v11, vcc")
            a("s_cmp_lg_u32 s3, 6"); a("s_cbranch_scc1 L_nopf")
            a("s_mov_b64 exec, 0xffff"); a("global_load_dword v31, v[10:11], off"); a("s_mov_b64 exec, -1")
            a("L_nopf:")
        a(f"s_mov_b32 s10, {WS_BYTES}"); a("s_mov_b32 s11, 0x20000")
        a(f"v_lshlrev_b32 v{V_LANE16}, 4, v2")
        a("s_and_b32 s4, s2, 7"); a("s_lshr_b32 s5, s2, 3"); a("s_and_b32 s6, s3, 3")
        a("s_lshl_b32 s16, s4, 1"); a("s_lshr_b32 s40, s5, 4"); a("s_add_u32 s16, s16, s40")
        a("s_and_b32 s17, s5, 15")
        a("s_lshr_b32 s18, s17, 3"); a("s_and_b32 s19, s17, 7")
        a("s_mov_b32 s20, 0x3f803f80"); a("s_mov_b32 s21, 0"); a("s_mov_b32 s22, 0"); a("s_mov_b32 s23, 0")
        a("s_lshl_b32 s26, s16, 9"); a(f"s_add_u32 s26, s26, {FL}")
        a("s_lshl_b32 s24, s17, 5"); a("s_lshl_b32 s40, s3, 2"); a("s_add_u32 s24, s24, s40"); a("s_add_u32 s24, s24, s26")
        a("s_lshl_b32 s25, s6, 10")
        a("s_lshl_b32 s27, s16, 2"); a("s_add_u32 s27, s27, s6")
        if OPT["rot"]: a("s_add_u32 s28, s16, s17"); a("s_lshl_b32 s28, s28, 2"); a("s_and_b32 s28, s28, 31")
        else: a("s_mov_b32 s28, 0")
        a("s_mov_b32 s35, 0"); a("s_mov_b32 s36, 0")
        a(f"v_mov_b32 v{V_TS}, 0"); a(f"v_mov_b32 v{V_TS2}, 0")
        a("s_xor_b32 s40, s3, 4"); a("s_lshl_b32 s40, s40, 2"); a(f"s_add_u32 s40, s40, {L_HL}")
        a(f"v_lshlrev_b32 v{V_PUBA}, 2, v2"); a(f"v_add_u32 v{V_PUBA}, {L_DUMMY}, v{V_PUBA}"); a(f"v_writelane_b32 v{V_PUBA}, s40, 0")
        a(f"v_mov_b32 v{V_BASE}, 0"); a("s_mov_b32 s7, 0"); a("s_mov_b32 s38, 0")
        a(f"ds_write_b32 v{V_PUBA}, v{V_BASE}")
        a("s_waitcnt lgkmcnt(0)")
        if OPT.get("x_ref") == 1: a("s_memrealtime s[100:101]")
        a("s_barrier")
        if OPT.get("wsoff"):
            a(f"s_add_u32 s8, s8, {OPT['wsoff']*MB}"); a("s_addc_u32 s9, s9, 0"); a(f"s_mov_b32 s10, {WS_BYTES - OPT['wsoff']*MB}")

    def attention(self):
        KF = XR + 8; S = [XR + 44, XR + 60, XR + 76]; NM = [XR + 92, XR + 108]; MX = [XR + 124, XR + 125]; T = XR + 126
        O = [ACC[2], ACC[3]]; VA = ACC[1]; KA = VA + 9
        VF = [104, 112]; P = [120, ACC[0] + 8]; BM = ACC[0]; NEG = KA + 2
        t0, t1, t2, t3, t4 = (ACC[0] + 8 + i for i in range(5))
        L = [f"v_and_b32 v{t0}, 31, v2", f"v_lshrrev_b32 v{t1}, 5, v2",
             f"v_and_b32 v{KA}, 0x13, v{t0}", f"v_bfe_u32 v{t2}, v{t0}, 2, 1", f"v_lshl_add_u32 v{KA}, v{t2}, 3, v{KA}",
             f"v_bfe_u32 v{t2}, v{t0}, 3, 1", f"v_lshl_add_u32 v{KA}, v{t2}, 2, v{KA}",
             f"v_lshlrev_b32 v{KA}, 4, v{KA}", f"v_lshl_add_u32 v{KA}, v{t1}, 9, v{KA}",
             f"s_add_u32 s41, s25, {LK}\nv_add_u32 v{KA}, s41, v{KA}",
             f"v_bfe_u32 v{t2}, v2, 2, 2", f"v_lshl_add_u32 v{t2}, v{t1}, 3, v{t2}", f"v_lshlrev_b32 v{t2}, 4, v{t2}",
             f"v_and_b32 v{t3}, 1, v2", f"v_lshl_add_u32 v{t2}, v{t3}, 9, v{t2}",
             f"v_bfe_u32 v{t3}, v2, 1, 1", f"v_lshl_add_u32 v{t2}, v{t3}, 3, v{t2}",
             f"s_add_u32 s41, s25, {LV}\nv_add_u32 v{t2}, s41, v{t2}",
             f"v_bfe_u32 v{t3}, v2, 4, 1", f"v_xor_b32 v{t4}, 1, v{t3}",
             f"v_mul_u32_u24 v{KA+1}, {HS}, v{t4}", f"v_mul_u32_u24 v{VA}, v{t2}, v{t4}", f"v_mul_u32_u24 v{t2}, {L_ONES}, v{t3}", f"v_add_u32 v{VA}, v{VA}, v{t2}",
             f"v_lshlrev_b32 v{t4}, 10, v{t4}"]
        L += [f"v_add_u32 v{VA+i}, v{t4}, v{VA+i-1}" for i in range(1, 9)]
        l = self.lab()
        fx = ["s_cmp_ge_u32 s27, 8", f"s_cbranch_scc1 {l}", "s_sub_i32 s42, 8, s27", f"v_lshlrev_b32 v{t3}, 3, v{t3}"]
        for i in range(8): fx += [f"s_cmp_gt_i32 s42, {i}", "s_cselect_b32 s41, -1, 0", f"v_and_b32 v{t2}, s41, v{t3}", f"v_add_u32 v{VA+i}, v{t2}, v{VA+i}"]
        L.append("\n".join(fx + [f"{l}:"]))
        L += [f"v_mov_b32 v{t0}, 0xffff", f"v_mov_b32 v{t1}, 0xffff0000"]
        for p in range(8):
            L += [f"v_cndmask_b32_e64 v{t2}, v{t0}, 0, s[{64+4*p}:{65+4*p}]", f"v_cndmask_b32_e64 v{t3}, v{t1}, 0, s[{66+4*p}:{67+4*p}]", f"v_or_b32 v{BM+p}, v{t2}, v{t3}"]
        L += [f"v_mov_b32 v{NEG}, {f32(-1e30)}", f"v_mov_b32 v{NEG+1}, {f32(2.0**OPT.get('thr', 40))}", f"v_mov_b32 v{NEG+2}, {f32(2.0**-OPT.get('thr', 40))}"]
        return dict(KF=KF, S=S, NM=NM, O=O, VA=VA, VF=VF, P=P, BM=BM, MX=MX, T=T, KA=KA, NEG=NEG), L

    def attention_run(self, r, halo_k, halo_v, early_a, redo_a):
        a = self.a
        KF, S, NM, O, VA, VF, P, BM, MX, T, KA, NEG = (r[x] for x in "KF S NM O VA VF P BM MX T KA NEG".split())
        def kread(hh, i, d=None): a(f"ds_read_b128 {vr(KF+4*(i if d is None else d),4)}, v{KA} offset:{hh*HS + i*KB}")
        def vrd(reg, vf):
            for t in range(2):
                for u in range(2): a(f"ds_read_b64_tr_b16 {vr(vf+4*t+2*u,2)}, v{reg} offset:{t*256 + u*64}")
        def vread(hh, i, vf):
            vrd(VA + i, vf)
            if hh == 0: a(f"v_add_u32 v{VA+i}, v{KA+1}, v{VA+i}")
        def qk(hh, dst, i, c): a(f"{MF} {vr(dst,16)}, {vr(KF+4*i,4)}, {vr(XR+4*hh,4)}, {c}")
        def pv(hh, vf, p, t, first=False): a(f"{MF} {vr(O[hh],16)}, {vr(vf+4*t,4)}, {vr(p+4*t,4)}, {'0' if first else vr(O[hh],16)}")
        def mx(b, first=False):
            lo = 0
            if first:
                a(f"v_max3_f32 v{MX[0]}, v{b}, v{b+1}, v{b+2}"); a(f"v_max3_f32 v{MX[1]}, v{b+3}, v{b+4}, v{b+5}"); lo = 6
            for n, q in enumerate(range(lo, 16, 2)): a(f"v_max3_f32 v{MX[n%2]}, v{MX[n%2]}, v{b+q}, v{b+q+1}")
        def mxfin(hh):
            a(f"v_max_f32 v{MX[0]}, v{MX[0]}, v{MX[1]}"); a(f"v_mov_b32 v{MX[1]}, v{MX[0]}")
            a(f"v_permlane32_swap_b32 v{MX[0]}, v{MX[1]}"); a("s_nop 1"); a(f"v_max_f32 v{MX[0]}, v{MX[0]}, v{MX[1]}")
            for q in range(16): a(f"v_sub_f32 v{NM[hh]+q}, 0, v{MX[0]}")
        def mask(b, diag):
            for q in range(16):
                a(f"v_cndmask_b32_e64 v{b+q}, v{NEG}, v{b+q}, s[{64+2*q}:{65+2*q}]" if diag else f"v_cndmask_b32_e64 v{b+q}, v{b+q}, v{NEG}, s[{64+2*q}:{65+2*q}]")
        def ex(b, lo, hi):
            for q in range(lo, hi): a(f"v_exp_f32 v{b+q}, v{b+q}")
        def cv(p, b, lo, hi):
            for q in range(lo, hi): a(f"v_cvt_pk_bf16_f32 v{p+q}, v{b+2*q}, v{b+2*q+1}")
        def fin(hh, bad=None):
            a(f"v_rcp_f32 v{T}, v{O[hh]+8}")
            if bad:
                a(f"v_med3_f32 v{MX[0]}, v{O[hh]+8}, v{NEG+2}, v{NEG+1}"); a(f"v_cmp_neq_f32 vcc, v{O[hh]+8}, v{MX[0]}")
            for q in range(8): a(f"v_mul_f32 v{O[hh]+q}, v{T}, v{O[hh]+q}")
            if bad: a(f"s_cbranch_vccnz {bad}"); a.pending.pop(bad, None)
            for q in range(4): a(f"v_cvt_pk_bf16_f32 v{V_EP+q}, v{O[hh]+2*q}, v{O[hh]+2*q+1}")
            self.store(f"buffer_store_dwordx4 {vr(V_EP,4)}, v{V_LANE16}, s[8:11], s37 offen offset:{hh*KB}")
        vread(0, 8, VF[0]); vread(1, 8, VF[1])
        qk(0, S[0], 8, "0"); qk(1, S[1], 7, "0")
        halo_v()
        mx(S[0], True); mxfin(0); qk(0, S[0], 8, vr(NM[0], 16))
        mx(S[1], True); mxfin(1); qk(1, S[1], 7, vr(NM[1], 16))
        def diag(hh):
            ex(S[hh], 0, 16); cv(P[hh], S[hh], 0, 8)
            for q in range(8): a(f"v_bfi_b32 v{P[hh]+q}, v{BM+q}, 0, v{P[hh]+q}")
        diag(0)
        a("s_waitcnt lgkmcnt(0)")
        pv(0, VF[0], P[0], 0, True)
        if OPT["fine"] > 2: self.stamp(15)
        halo_k(lambda: pv(0, VF[0], P[0], 1))
        diag(1)
        order = [7, 6, 5, 4, 3, 2, 1, 0]
        blocks = [(hh, i) for hh in range(2) for i in order]
        krs = [f"ds_read_b128 {vr(KF+4*i,4)}, v{KA} offset:{i*KB}" for i in order[:3]]
        self.gate_rd("C")
        for x in krs: a(x)
        pv(1, VF[1], P[1], 0, True)
        a("s_waitcnt lgkmcnt(3)"); self.gate_cmp("hl", "C")
        pv(1, VF[1], P[1], 1)
        self.gate_br("C", redo=krs)
        for i in order[3:]: kread(0, i)
        a("s_waitcnt lgkmcnt(7)"); qk(0, S[0], 7, vr(NM[0], 16))
        a("s_waitcnt lgkmcnt(6)"); qk(0, S[1], 6, vr(NM[0], 16))
        F3 = (lambda i: self.stamp(i)) if OPT["fine"] > 2 else (lambda i: None)
        F3(16)
        kread(1, 7); kread(1, 6)
        pend = None
        for n, (hh, i) in enumerate(blocks):
            b = S[n % 3]; vf = VF[n % 2]; p = P[n % 2]
            ex(b, 0, 4)
            vread(hh, i, vf)
            if pend: pv(*pend)
            ex(b, 4, 10)
            kr = False
            if n + 2 < 16:
                h2, i2 = blocks[n + 2]
                if n == 0: a("s_waitcnt lgkmcnt(6)")
                qk(h2, S[(n + 2) % 3], i2, vr(NM[h2], 16))
                if h2 == 0: kread(1, i2); kr = True
            if n == OPT.get("pk", 15): self.peek(V_PH)
            ex(b, 10, 16)
            if n == 8: F3(17); fin(0, "L_redo0"); self.pub("h0"); F3(18)
            if n == OPT.get("fo1", 11): F3(19); self.flag(F_O1); F3(20)
            cv(p, b, 0, 8)
            if i == 0:
                for q in range(8): a(f"v_and_b32 v{p+q}, v{BM+q}, v{p+q}")
            a("s_waitcnt lgkmcnt(1)" if (kr or n == 8) else "s_waitcnt lgkmcnt(0)")
            pv(hh, vf, p, 0)
            pend = (hh, vf, p, 1)
        pv(*pend)
        fin(1, "L_redo1")
        self.pub("att")
        lb = self.lab(); lj = self.lab()
        a(f"s_add_u32 s61, s23, {F_O1}"); self.vm.wait("pk")
        a(f"v_cmp_gt_u32 vcc, s61, v{V_OUT}"); a(f"s_cbranch_vccz {lb}")
        qs = list(self.vm.q)
        a("L_att_late:")
        self.flag(F_O2); redo_a(a); a("s_waitcnt vmcnt(0)"); a(f"s_branch {lj}")
        a(f"{lb}:")
        self.vm.q = qs
        early_a()
        self.flag(F_O2)
        a(f"{lj}:")
        main = self.a; saved_q = list(self.vm.q)
        self.a = a = Asm(); self.vm.a = a
        def redo(hh):
            a("s_nop 15"); a("s_waitcnt vmcnt(0) lgkmcnt(0)")
            for i in range(9): kread(hh, i)
            a("s_waitcnt lgkmcnt(0)")
            a("s_sub_i32 s42, 8, s27")
            for i in (8, 0, 1, 2, 3, 4, 5, 6, 7):
                sk = self.lab()
                a(f"s_cmp_gt_i32 s42, {i}"); a(f"s_cbranch_scc1 {sk}")
                qk(hh, S[0], i, "0")
                if i in (0, 8): mask(S[0], i == 8)
                mx(S[0], i == 8)
                a(f"{sk}:")
            mxfin(hh)
            for i in (8, 0, 1, 2, 3, 4, 5, 6, 7):
                sk = self.lab()
                a(f"s_cmp_gt_i32 s42, {i}"); a(f"s_cbranch_scc1 {sk}")
                if hh == 0: a(f"v_sub_u32 v{T}, v{VA+i}, v{KA+1}")
                vrd(T if hh == 0 else VA + i, VF[0])
                qk(hh, S[0], i, vr(NM[hh], 16))
                if i in (0, 8): mask(S[0], i == 8)
                ex(S[0], 0, 16); cv(P[0], S[0], 0, 8)
                a("s_waitcnt lgkmcnt(0)")
                pv(hh, VF[0], P[0], 0, i == 8); pv(hh, VF[0], P[0], 1)
                a(f"{sk}:")
            fin(hh)
        a("L_redo0:")
        redo(0); self.pub("h0"); self.vm.q = ["st"]; self.flag(F_O1)
        a("L_redo1:")
        redo(1); self.pub("att")
        a("s_waitcnt vmcnt(0)"); a("s_branch L_att_late")
        self.ool += a.out
        self.a = main; self.vm.a = main; self.vm.q = saved_q

    def ln_stats(self, d):
        L = []
        for n in (8, 4, 2, 1):
            for i in range(n): L.append(f"v_add_f32 v{d+i}, v{d+i}, v{d+i+n}")
        L += [f"v_mov_b32 v{d+1}, v{d}", f"v_permlane32_swap_b32 v{d}, v{d+1}", "s_nop 1",
              f"v_mul_f32 v{d}, {f32(-1.0/512)}, v{d}", f"v_mul_f32 v{d+1}, {f32(1.0/512)}, v{d+1}",
              f"v_fma_f32 v{d+1}, -v{d}, v{d}, v{d+1}", f"v_max_f32 v{d+1}, 0, v{d+1}", f"v_add_f32 v{d+1}, {f32(1e-5)}, v{d+1}",
              f"v_rsq_f32 v{V_RSTD}, v{d+1}", f"v_sqrt_f32 v{V_STD}, v{d+1}",
              f"v_cvt_pk_bf16_f32 v{V_XAUG}, v{d}, v{d}",
              f"v_and_b32 v{d+2}, 0xffff0000, v{V_XAUG}", f"v_sub_f32 v{d+2}, v{d}, v{d+2}", f"v_mov_b32 v{d+3}, 0",
              f"v_cvt_pk_bf16_f32 v{V_XAUG+1}, v{d+2}, v{d+3}",
              f"v_cndmask_b32_e64 v{V_XAUG}, 0, v{V_XAUG}, s[62:63]", f"v_cndmask_b32_e64 v{V_XAUG+1}, 0, v{V_XAUG+1}, s[62:63]",
              f"v_mul_f32 v{V_C1}, {f32(-LOG2E)}, v{V_RSTD}"]
        return L
    def wreg(self):
        w = self.wr + 4 * (self.wc % self.nw); self.wc += 1; return w
    def aug_step(self, acc, augidx, bn=None, look=None):
        w = self.wreg()
        s = dict(reads=[dict(op="ds_read_b64", d=w, fam=V_AUGA, off=augidx * 256, gate=bn)], mf=f"{MF} {vr(acc,16)}, {vr(w,4)}, {vr(V_XAUG,4)}, {vr(acc,16)}")
        return s
    def x_pass1(self, xl, sst, local, wread, augs, augbar, NT=2):
        a = self.a; vm = self.vm
        PRE = OPT["pre"] if NT == 2 else OPT.get("pre3", OPT["pre"]); STD = ACC[NT]
        def X(kc):
            def f(): xl(kc); vm.issue(f"x{kc}")
            return f
        XS = STD + 4
        xslot = lambda p: [L_X0, L_X0 + 16*KB, L_X0 + 32*KB, RQ, RQ + 16*KB][p if p < 5 else p - 5]
        def piece(p):
            a(f"s_add_u32 s41, s28, {4*p}"); a("s_and_b32 s41, s41, 31"); a("s_lshl_b32 s41, s41, 5"); a("s_add_u32 s41, s41, s55")
            for i in range(4): self.dma("s41", i*8*KB, xslot(p) + i*KB, voff=XS + i%2, srd="s[44:47]", sl="s42"); vm.issue(f"pc{p}")
        def dots(lo, hi):
            for kc in range(lo, hi):
                for i in range(4):
                    r = XR + 4 * kc + i
                    a(f"v_dot2c_f32_bf16 v{STD + 2*(i%2)}, s20, v{r}"); a(f"v_dot2c_f32_bf16 v{STD + 1 + 2*(i%2)}, v{r}, v{r}")
        def xrd(p): return [dict(op="ds_read_b128", d=XR+16*p+4*q, fam=(XS+2+q if xslot(p) >= L_X0 else XS+6+q), off=(xslot(p) - L_X0 if xslot(p) >= L_X0 else xslot(p) - RQ), vm=(f"pc{p}" if q == 0 else None)) for q in range(4)]
        def piece_part(p, i):
            if i == 0: a(f"s_add_u32 s33, s28, {4*p}"); a("s_and_b32 s33, s33, 31"); a("s_lshl_b32 s33, s33, 5"); a("s_add_u32 s33, s33, s55")
            self.dma("s33", i*8*KB, xslot(p) + i*KB, voff=XS + i%2, srd="s[44:47]", sl="s42"); vm.issue(f"pc{p}")
        def fin0():
            dots(28, 32)
            a(f"v_add_f32 v{STD}, v{STD}, v{STD+2}"); a(f"v_add_f32 v{STD+1}, v{STD+1}, v{STD+3}")
            a(f"v_permlane32_swap_b32 v{STD}, v{STD+1}"); a("s_nop 1"); a(f"v_add_f32 v{STD}, v{STD}, v{STD+1}")
            for x in self.ln_stats(STD)[15:]: a(x)
        if local == "start":
            a(f"v_lshrrev_b32 v{XS+3}, 4, v2"); a(f"v_and_b32 v{XS}, 7, v2"); a(f"v_xor_b32 v{XS}, v{XS+3}, v{XS}"); a(f"v_lshlrev_b32 v{XS}, 4, v{XS}")
            a(f"v_lshrrev_b32 v{XS+3}, 3, v2"); a(f"v_lshl_add_u32 v{XS}, v{XS+3}, 10, v{XS}"); a(f"v_xor_b32 v{XS+1}, 64, v{XS}")
            a("s_lshl_b32 s42, s6, 12")
            a("s_waitcnt lgkmcnt(0)"); a("s_mov_b64 s[44:45], s[64:65]")
            piece(0)
            return
        if local:
            piece(1)
            if not OPT.get("p2l"): piece(2)
            for i in range(4): a(f"v_mov_b32 v{STD+i}, 0")
            a(f"v_bfe_u32 v{XS+2}, v2, 1, 3"); a(f"v_lshrrev_b32 v{XS+3}, 5, v2"); a(f"v_xor_b32 v{XS+2}, v{XS+3}, v{XS+2}"); a(f"v_lshlrev_b32 v{XS+2}, 4, v{XS+2}")
            a(f"v_and_b32 v{XS+3}, 31, v2"); a(f"v_lshl_add_u32 v{XS+2}, v{XS+3}, 7, v{XS+2}")
            a(f"s_add_u32 s41, s42, {L_X0}"); a(f"v_add_u32 v{XS+2}, s41, v{XS+2}")
            for q in range(1, 4): a(f"v_xor_b32 v{XS+2+q}, {32*q}, v{XS+2}")
            for q in range(4): a(f"v_subrev_u32 v{XS+6+q}, {L_X0 - RQ}, v{XS+2+q}")
        else:
            SP = OPT.get("sp", 6)
            for kc in range(SP): X(kc)()
            for i in range(4): a(f"buffer_load_dwordx4 {vr(STD+4*i,4)}, v{V_LANE16}, s[8:11], {sst} offen offset:{1024*i} sc1"); vm.issue("stt")
            for kc in range(SP, PRE): X(kc)()
        steps = []
        st = self.ln_stats(STD)
        xn = [PRE]; PMAX = OPT.get("pm3", PRE) if NT == 3 else OPT.get("pm2", PRE)
        for kc in range(32):
            for t in range(NT):
                w = self.wreg()
                s = dict(reads=wread(w, t, kc), mf=f"{MF} {vr(ACC[t],16)}, {vr(w,4)}, {vr(XR+4*kc,4)}, {'0' if kc == 0 else vr(ACC[t],16)}", post=[])
                if local:
                    p = kc // 4
                    if t == 0 and kc % 4 == 0:
                        s["reads"] = xrd(p) + s["reads"]
                        if p: s["pre"] = [lambda p=p: dots(4*p - 4, 4*p)]
                        if OPT["fine"] == 2: s["post"].append(lambda p=p: self.stamp(16 + p))
                    n8 = 2 * (kc % 4) + t
                    sched = ({0: (2, 3), 1: (4, 5), 2: (6, 7)} if OPT.get("p2l") else {0: (3, 4), 1: (5, 6), 2: (7, None)}).get(p, (None, None))[n8 // 4]
                    if sched is not None: s["post"].append(lambda sched=sched, n8=n8: piece_part(sched, n8 % 4))
                    if n8 == 7 and p == 2: s["post"].append(lambda: self.pub("x0"))
                    if n8 == 0 and p == 4: s["post"].append(lambda: self.pub("x"))
                    if t == 1 and kc == 31: s["post"].append(fin0)
                elif t == 0:
                    s["pre"] = [lambda kc=kc: vm.wait(f"x{kc}")]
                    if xn[0] < 32: s["post"].append(X(xn[0])); xn[0] += 1
                elif t == 1 and xn[0] < min(32, kc + 1 + PMAX):
                    s["post"].append(X(xn[0])); xn[0] += 1
                elif kc >= OPT.get("sp", 6) + 1:
                    s["post"] += st[:3]; st = st[3:]
                steps.append(s)
        assert local or not st
        for t in range(NT): steps.append(self.aug_step(ACC[t], augs[t], augbar if t == 0 else None))
        return steps

    def res_gemm(self, nsteps, slot, areg, aload, pre_issued, PRE, gates, pubs, xch, xpub, pre_x, hooks={}):
        a = self.a; vm = self.vm
        for i in range(8):
            a(f"v_lshlrev_b32 v{ACC[0]+2*i}, 16, v{V_RES+i}"); a(f"v_and_b32 v{ACC[0]+2*i+1}, 0xffff0000, v{V_RES+i}")
        a(f"v_xor_b32 v{V_EP}, 64, v{V_FW}"); a(f"v_add_u32 v{V_EP+1}, 0x10000, v{V_EP}"); a(f"v_add_u32 v{V_EP+2}, 0x20000, v{V_EP}")
        nxt = [pre_issued]
        def upto(n):
            while nxt[0] < min(n, nsteps): aload(nxt[0]); nxt[0] += 1
        steps = []; self.wc = 0; self.wr = WR; self.nw = NW
        fo = [V_FW, V_FW + 1, V_FW + 2]; ft = [V_EP, V_EP + 1, V_EP + 2]
        T = OPT.get("xt", 8)
        order = [(s, t) for s in range(nsteps - T) for t in range(2)] + [(s, 1) for s in range(nsteps - T, nsteps)] + [(s, 0) for s in range(nsteps - T, nsteps)]
        first = {}; last = {}
        for n, (s, t) in enumerate(order): first.setdefault(s, n); last[s] = n
        for n, (s, t) in enumerate(order):
            w = self.wreg()
            c = vr(ACC[t], 16) if (t == 0 or s > 0) else "0"
            st = dict(reads=self.rdtr(w, fo if t == 0 else ft, slot(s), 512, gates.get(s) if first[s] == n else None, pubs.get(s) if last[s] == n else None),
                      mf=f"{MF} {vr(ACC[t],16)}, {vr(w,4)}, {vr(areg(s),4)}, {c}")
            if OPT.get("x_b128") and nsteps == 56:
                r0, r1 = st["reads"]; st["reads"] = [dict(op="ds_read_b128", d=w, fam=[V_F0, V_F0 + 1, V_F0 + 1], off=slot(s) + t*KB, gate=r0.get("gate"), pub=r1.get("pub"))]
            if first[s] == n and s == pre_x[0]: st["reads"][0].update(gate=pre_x[1], gsrc="C")
            if first[s] == n: st["pre"] = ([lambda s=s: hooks[s](upto)] if s in hooks else []) + [lambda s=s: vm.wait(f"a{s}")]
            elif PRE: st["post"] = [lambda s=s: upto(s + 1 + PRE)]
            steps.append(st)
        a(f"s_xor_b32 s40, s6, 1"); a("s_lshl_b32 s40, s40, 12"); a(f"s_add_u32 s40, s40, {xch}"); a(f"v_add_u32 v{V_EP+3}, s40, v{V_LANE16}")
        rds = [f"ds_read_b128 {vr(ACC[2]+4*i,4)}, v{V_EP+3} offset:{i*KB}" for i in range(4)]
        def wr(i):
            a(f"ds_write_b128 v{V_EP+3}, {vr(ACC[1]+4*i,4)} offset:{i*KB}"); self._q.append(("x", i))
            if i == 3: self.pub(xpub); self._q.append(("x", 4)); a(f"v_xor_b32 v{V_EP+3}, 4096, v{V_EP+3}")
        o0 = len(steps) - T
        for i in range(4): steps[o0 + min(T - 1, 2 + i)].setdefault("post", []).append(lambda i=i: wr(i))
        self.stream(steps, look=5 if (OPT.get("x_b128") and nsteps == 56) else 10)
        if OPT["fine"] and nsteps == 56: self.stamp(9)
        self.gate_rd("C")
        for x in rds: a(x)
        a("s_waitcnt lgkmcnt(4)")
        self.gate_cmp(xpub, "C"); self.gate_br("C", redo=rds)
        for i in range(4):
            a(f"s_waitcnt lgkmcnt({3-i})")
            for q in range(4): a(f"v_add_f32 v{ACC[0]+4*i+q}, v{ACC[0]+4*i+q}, v{ACC[2]+4*i+q}")
            for q in range(2): a(f"v_cvt_pk_bf16_f32 v{V_RES+2*i+q}, v{ACC[0]+4*i+2*q}, v{ACC[0]+4*i+2*q+1}")

    def x_store(self, sx, sst, flagval):
        a = self.a; t = ACC[1]
        self.store(f"buffer_store_dwordx4 {vr(V_RES,4)}, v{V_LANE16}, s[8:11], {sx} offen")
        self.store(f"buffer_store_dwordx4 {vr(V_RES+4,4)}, v{V_LANE16}, s[8:11], {sx} offen offset:1024")
        for i in range(2): a(f"v_dot2_f32_bf16 v{t+2*i}, v{V_RES+i}, s20, 0"); a(f"v_dot2_f32_bf16 v{t+2*i+1}, v{V_RES+i}, v{V_RES+i}, 0")
        for i in range(2, 8): a(f"v_dot2_f32_bf16 v{t+2*(i%2)}, v{V_RES+i}, s20, v{t+2*(i%2)}"); a(f"v_dot2_f32_bf16 v{t+2*(i%2)+1}, v{V_RES+i}, v{V_RES+i}, v{t+2*(i%2)+1}")
        a(f"v_add_f32 v{t}, v{t}, v{t+2}"); a(f"v_add_f32 v{t+1}, v{t+1}, v{t+3}")
        a(f"v_permlane32_swap_b32 v{t}, v{t+1}"); a("s_nop 0"); a(f"v_add_f32 v{t}, v{t}, v{t+1}")
        self.store(f"buffer_store_dword v{t}, v{V_LANE16}, s[8:11], {sst} offen")
        self.flag(flagval)

    def compute(self):
        a = self.a; self.role = "C"; self.vm = vm = VM(a)
        a(f"s_setprio {OPT['cprio']}")
        a("v_and_b32 v104, 31, v2"); a("v_lshrrev_b32 v105, 5, v2")
        a(f"v_lshlrev_b32 v{V_XOFF}, 10, v104"); a(f"v_lshl_add_u32 v{V_XOFF}, v105, 4, v{V_XOFF}")
        a("s_lshl_b32 s55, s27, 15")
        a(f"s_mov_b32 s46, {2048*1024}"); a("s_mov_b32 s47, 0x20000")
        self.x_pass1(None, None, "start", None, None, None)
        a(f"s_mov_b32 s14, {2048*1024}"); a("s_mov_b32 s15, 0x20000")
        a("s_lshr_b32 s50, s6, 1"); a("s_and_b32 s51, s6, 1")
        a("s_lshl_b32 s48, s18, 1"); a("s_add_u32 s48, s48, s50"); a("s_mov_b32 s52, s48")
        a("s_lshl_b32 s40, s16, 2"); a("s_add_u32 s48, s48, s40")
        a("s_lshl_b32 s49, s19, 1"); a("s_add_u32 s49, s49, s51")
        a("s_lshl_b32 s53, s48, 15"); a("s_lshl_b32 s40, s49, 11"); a("s_add_u32 s53, s53, s40")
        a("s_lshl_b32 s54, s48, 12"); a("s_lshr_b32 s40, s49, 2"); a("s_lshl_b32 s40, s40, 10"); a("s_add_u32 s54, s54, s40")
        a("s_and_b32 s40, s49, 3"); a("s_lshl_b32 s40, s40, 2"); a("s_add_u32 s54, s54, s40")
        a(f"v_mov_b32 v{V_F0}, v{V_LANE16}"); a(f"v_add_u32 v{V_F0+1}, 0x10000, v{V_LANE16}")
        self.tr_addr16(V_TQ, 106, 107); a(f"v_add_u32 v{V_TQ+1}, 0x10000, v{V_TQ}")
        a(f"v_lshlrev_b32 v{V_FW}, 10, v105"); a("v_bfe_u32 v106, v2, 2, 2"); a(f"v_lshl_add_u32 v{V_FW}, v106, 7, v{V_FW}")
        a("v_bfe_u32 v106, v2, 3, 1"); a("v_xor_b32 v106, s51, v106"); a(f"v_lshl_add_u32 v{V_FW}, v106, 6, v{V_FW}")
        a(f"v_and_b32 v106, 63, v{V_TQ}"); a(f"v_add_u32 v{V_FW}, v106, v{V_FW}")
        a("s_lshl_b32 s40, s51, 11"); a(f"v_add_u32 v{V_FW}, s40, v{V_FW}")
        a(f"v_add_u32 v{V_FW+1}, 0x10000, v{V_FW}"); a(f"v_add_u32 v{V_FW+2}, 0x20000, v{V_FW}")
        a("v_bfe_u32 v106, v2, 1, 3"); a("v_and_b32 v107, 1, v2"); a("v_and_b32 v108, 7, v2")
        a("s_lshl_b32 s40, s50, 8"); a("s_lshl_b32 s41, s51, 3"); a("s_add_u32 s40, s40, s41")
        a(f"v_lshlrev_b32 v{V_PX}, 5, v106"); a(f"v_lshl_add_u32 v{V_PX}, v107, 2, v{V_PX}"); a(f"v_add_u32 v{V_PX}, s40, v{V_PX}")
        a("s_lshl_b32 s40, s51, 8"); a("s_lshl_b32 s41, s52, 2"); a("s_add_u32 s40, s40, s41")
        a(f"v_lshlrev_b32 v{V_PH}, 5, v108"); a(f"v_add_u32 v{V_PH}, s40, v{V_PH}")
        a(f"v_lshlrev_b32 v{V_AUGA}, 3, v104"); a(f"v_add_u32 v{V_AUGA}, {L_AUG}, v{V_AUGA}")
        a(f"v_mov_b32 v{V_XAUG+2}, 0"); a(f"v_mov_b32 v{V_XAUG+3}, 0")
        for r in range(WR, WR + 32, 4): a(f"v_mov_b32 v{r+2}, 0") if False else None
        a("v_cmp_gt_u32 s[62:63], 32, v2")
        a("v_lshlrev_b32 v106, 3, v105"); a("v_sub_u32 v106, v104, v106")
        a("s_mov_b64 s[12:13], s[78:79]")
        if OPT["stamp"]: a(f"v_writelane_b32 v{V_TS}, s100, 31")
        for r in range(16): a(f"v_cmp_le_i32 s[{64+2*r}:{65+2*r}], {16*(r>>3) + (r&7)}, v106")
        a(f"v_and_b32 v{V_FA}, 3, v2"); a(f"v_lshlrev_b32 v{V_FA}, 2, v{V_FA}"); a(f"v_add_u32 v{V_FA}, {L_HL}, v{V_FA}")
        self.stamp(0)
        ftq = [V_TQ, V_TQ + 1]
        self.wc = 0
        steps = self.x_pass1(None, None, True, lambda w, t, kc: self.rdtr(w, ftq, (RK, RV)[t] + kc*KB, 256, f"kv{kc//8}" if (t == 0 and kc % 8 == 0) else None, "kv" if (t == 1 and kc == 31) else None), [1, 2], "augkv")
        self.stream(steps, look=8)
        a(f"v_mov_b32 v{V_TMP}, {L_TAG}"); a(f"ds_read_b64 {vr(V_EP,2)}, v{V_TMP}"); a("s_waitcnt lgkmcnt(0)")
        a(f"v_readfirstlane_b32 s4, v{V_EP}"); a(f"v_readfirstlane_b32 s5, v{V_EP+1}")
        a("s_branch L_c_go")
        a("L_c_loop:")
        self.stamp(0)
        self.poll2(V_PX, "s26", "s57"); vm.q = []
        self.stamp(1)
        def xl(kc):
            if kc % 4 == 0: a(f"s_add_u32 s43, s55, {kc*KB}")
            a(f"buffer_load_dwordx4 {vr(XR+4*kc,4)}, v{V_LANE16}, s[8:11], s43 offen offset:{(kc%4)*KB} sc1")
        self.wc = 0
        steps = self.x_pass1(xl, "s56", False, lambda w, t, kc: self.rdtr(w, ftq, (RK, RV)[t] + kc*KB, 256, "nkv" if (t == 0 and kc == 0) else None,
                                                                          {(1, OPT.get("b1x", 22)): "x", (1, 31): "kv"}.get((t, kc)), HV["nkv"]), [1, 2], None)
        self.stream(steps, look=10)
        a("L_c_go:")
        if OPT["fine"]: self.stamp(14)
        steps = []
        korder = [19, 20, 21, 22, 2, 3, 4, 5, 6, 7, 9, 10] + [k for k in range(32) if k not in (19, 20, 21, 22, 2, 3, 4, 5, 6, 7, 9, 10)]
        for n, kc in enumerate(korder):
            w = self.wreg()
            steps.append(dict(reads=self.rdtr(w, ftq, RQ + kc*KB, 256),
                              mf=f"{MF} {vr(ACC[2],16)}, {vr(w,4)}, {vr(XR+4*kc,4)}, {'0' if n == 0 else vr(ACC[2],16)}"))
        self.gate_rd("H")
        steps.append(None)
        VC8 = ACC[3]; VCK = ACC[3] + 2
        a("s_lshl_b32 s58, s27, 4"); a("s_add_u32 s58, s58, s17"); a(f"s_mul_i32 s58, s58, {7*KB}"); a(f"s_add_u32 s58, s58, {HF + 2*KB}")
        if OPT.get("kv2"): a(f"s_mul_i32 s40, s22, {8*MB}"); a("s_add_u32 s58, s58, s40")
        a(f"s_add_u32 s40, s25, {LK + 8*KB}"); a(f"v_add_u32 v{V_OUT}, s40, v{V_LANE16}")
        a(f"v_lshlrev_b32 v{VC8}, 3, v2"); a(f"v_add_u32 v{VC8}, 4096, v{VC8}"); a(f"v_mov_b32 v{VCK}, s4"); a(f"v_mov_b32 v{VCK+1}, s5")
        def xor16(dst, regs):
            for n in range(0, 16, 2): self.a(f"v_bitop3_b32 v{dst}, v{dst}, v{regs[n]}, v{regs[n+1]} bitop3:0x96")
        F = []
        for t in range(2):
            A0 = ACC[t]
            for hh in range(2):
                F += [f"v_mul_f32 v{A0+r}, v{V_RSTD}, v{A0+r}" for r in range(8*hh, 8*hh + 8)]
                F += [f"v_cvt_pk_bf16_f32 v{A0+r}, v{A0+2*r}, v{A0+2*r+1}" for r in range(4*hh, 4*hh + 4)]
                F += [f"buffer_store_dwordx4 {vr(A0+4*hh,4)}, v{V_LANE16}, s[8:11], s58 offen offset:{(2*t + hh)*KB} sc1"]
                F += [f"v_bitop3_b32 v{VCK}, v{VCK}, v{A0+4*hh+n}, v{A0+4*hh+n+1} bitop3:0x96" for n in (0, 2)]
        F.append(f"buffer_store_dwordx2 {vr(VCK,2)}, v{VC8}, s[8:11], s58 offen sc1")
        NE = OPT.get("ne", 61)
        for x in F[:15]: a(x)
        a("s_waitcnt lgkmcnt(0)"); self.gate_cmp("wq")
        late = self.lab(); join = self.lab()
        a("s_cmp_eq_u64 s[30:31], 0"); a(f"s_cbranch_scc1 {join}")
        for x in F[15:]: a(x)
        self.gate_br("H")
        a("s_mov_b64 s[30:31], -1")
        a(f"{join}:")
        def rest():
            l = self.lab()
            a("s_cmp_lg_u64 s[30:31], 0"); a(f"s_cbranch_scc1 {l}")
            for x in EP2: a(x)
            a(f"{l}:")
        EP2 = F[15:]; F = []
        steps[0]["pre"] = [rest]
        if OPT["fine"] > 2: self.stamp(24)
        def lds(x):
            def f(): a(x); self._q.append(("u", id(f)))
            return f
        for hh in range(2):
            F.append(lds(f"ds_write_b128 v{V_OUT}, {vr(ACC[0]+4*hh,4)} offset:{hh*HS}"))
            F.append(lds(f"ds_write_b128 v{V_OUT}, {vr(ACC[1]+4*hh,4)} offset:{12*KB + hh*HS}"))
        r, SL = self.attention()
        F += [f"v_mov_b32 v{V_EP}, {L_MODE}", lds(f"ds_read_b32 v{V_EP}, v{V_EP}"), f"v_mul_f32 v{V_C1}, {f32(0.25*LOG2E)}, v{V_RSTD}"]
        F += SL[:10] + [lds(f"ds_read_b128 {vr(r['KF']+32,4)}, v{r['KA']} offset:{8*KB}"), lds(f"ds_read_b128 {vr(r['KF']+28,4)}, v{r['KA']} offset:{HS + 8*KB}")] + SL[10:]
        HB = [XR + 8, XR + 76]; HC = [XR + 24, XR + 26]; HO = XR + 28
        for d, sr_ in ((1, 28), (2, 29)):
            a(f"s_sub_u32 s{sr_}, s58, {4*d*112*KB}"); a(f"s_cmp_ge_u32 s16, {d}"); a(f"s_cselect_b32 s{sr_}, s{sr_}, 0x7ff00000"); a(f"s_cselect_b32 s{31+d}, -1, 0")
        HL = []
        for n in range(2):
            HL += [f"buffer_load_dwordx4 {vr(HB[n]+4*p,4)}, v{V_LANE16}, s[8:11], s{28+n} offen offset:{p*KB} sc1" for p in range(4)]
            HL.append(f"buffer_load_dwordx2 {vr(HC[n],2)}, v{HO}, s[8:11], s{28+n} offen sc1")
        def halo_ld():
            for x in HL: self.a(x)
        def fill(i):
            out = []
            h0 = OPT.get("hld", 22); k = i - h0
            for _ in range(OPT.get("f2", 4) - (2 if 0 <= k < 10 else 0)):
                if F and not (i < 12 and callable(F[0]) and len(F) <= len(SL) - 10 + 2): out.append(F.pop(0))
            if k == 0: out.append(f"v_mov_b32 v{HO}, v{VC8}")
            if 0 <= k < 10: out.append(HL[k])
            return out
        steps[31]["reads"][1]["pub"] = "q"
        XQ = ACC[3] + 4; wq_ = self.wreg()
        steps[-1] = dict(reads=[dict(op="ds_read_b128", d=wq_, fam=V_EP + 1, off=0, gate="augq")], mf=f"{MF} {vr(ACC[2],16)}, {vr(wq_,4)}, {vr(XQ,4)}, {vr(ACC[2],16)}")
        F[4:4] = [f"v_add_u32 v{V_EP+1}, {L_QB}, v{V_LANE16}", f"v_mov_b32 v{XQ}, v{V_XAUG}", f"v_mov_b32 v{XQ+1}, v{V_XAUG+1}", f"v_mov_b32 v{XQ+2}, v{V_XAUG}", f"v_mov_b32 v{XQ+3}, v{V_XAUG+1}",
                  f"v_permlane32_swap_b32 v{XQ}, v{XQ+2}", f"v_permlane32_swap_b32 v{XQ+1}, v{XQ+3}", f"s_nop 0\nv_mov_b32 v{XQ+2}, v{XQ}", f"v_mov_b32 v{XQ+3}, v{XQ+1}"]
        self.stream(steps, look=8, fill=fill)
        for x in F: self.emit(x)
        a("s_waitcnt lgkmcnt(0)")
        a(f"v_readfirstlane_b32 s21, v{V_EP}")
        a(f"s_mul_i32 s34, s21, {ALS}"); a("s_add_u32 s34, s34, s35")
        a(f"s_sub_u32 s37, s58, {2*KB}"); a("s_add_u32 s37, s37, s34")
        if OPT.get("kv2"): a(f"s_mul_i32 s40, s22, {8*MB}"); a("s_sub_u32 s37, s37, s40")
        a(f"s_mul_i32 s60, s48, {112*KB}"); a(f"s_mul_i32 s40, s51, {56*KB}"); a("s_add_u32 s60, s60, s40"); a(f"s_add_u32 s60, s60, {OF}"); a("s_add_u32 s60, s60, s34")
        self.stamp(2)
        for r_ in range(16): a(f"v_mul_f32 v{ACC[2]+r_}, v{V_C1}, v{ACC[2]+r_}")
        for r_ in range(8): a(f"v_cvt_pk_bf16_f32 v{XR+r_}, v{ACC[2]+2*r_}, v{ACC[2]+2*r_+1}")
        def halo_k(mid):
            mid()
            l = self.lab(); ok = self.lab()
            a("s_mov_b32 s41, 0")
            a(f"{l}:")
            a("s_waitcnt vmcnt(0)")
            for n in range(2):
                xor16(HC[n], [HB[n] + r for r in range(16)])
                a(f"v_xor_b32 v{HC[n]}, s4, v{HC[n]}"); a(f"v_xor_b32 v{HC[n]+1}, s5, v{HC[n]+1}")
                a(f"v_or_b32 v{HC[n]}, v{HC[n]}, v{HC[n]+1}"); a(f"v_and_b32 v{HC[n]}, s{32+n}, v{HC[n]}")
            a(f"v_or_b32 v{HC[0]}, v{HC[0]}, v{HC[1]}"); a(f"v_cmp_ne_u32 vcc, 0, v{HC[0]}"); a(f"s_cbranch_vccz {ok}")
            a("s_add_u32 s41, s41, 1"); a(f"s_cmp_gt_u32 s41, {OPT['spin']}"); a(f"s_cbranch_scc1 {ok}")
            halo_ld(); a(f"s_branch {l}"); a.pending.pop(l, None)
            a(f"{ok}:"); vm.q = []
            if OPT["fine"] > 2: self.stamp(25)
            a(f"v_subrev_u32 v{V_OUT}, {8*KB}, v{V_OUT}")
            for p in (0, 2, 1, 3):
                for n in range(2): a(f"ds_write_b128 v{V_OUT}, {vr(HB[n]+4*p,4)} offset:{(p&1)*HS + (p>>1)*12*KB + (4 - 4*n)*KB}")
            self.pub("hl")
            a("s_lshl_b32 s36, s16, 11"); a("s_lshl_b32 s41, s17, 7"); a("s_add_u32 s36, s36, s41"); a("s_lshl_b32 s41, s6, 2"); a("s_add_u32 s36, s36, s41"); a(f"s_add_u32 s36, s36, {KVFL}")
            a("s_add_u32 s41, s22, 1"); a(f"v_mov_b32 v{V_TMP}, s41")
            a("s_mov_b64 exec, 1"); a(f"buffer_store_dword v{V_TMP}, off, s[8:11], s36 sc1"); a("s_mov_b64 exec, -1")
            self.stamp(3)
        def after_k():
            l = self.lab()
            a("s_cmp_lg_u32 s22, 0"); a(f"s_cbranch_scc1 {l}")
            a("s_lshl_b32 s40, s48, 15"); a("s_lshl_b32 s41, s49, 6"); a("s_add_u32 s40, s40, s41")
            a(f"buffer_load_dwordx4 {vr(V_RES,4)}, v{V_XOFF}, s[44:47], s40 offen")
            a(f"buffer_load_dwordx4 {vr(V_RES+4,4)}, v{V_XOFF}, s[44:47], s40 offen offset:32")
            a(f"{l}:")
        oreg = lambda s: XR + 8 + 4 * s
        def al_o(s):
            a = self.a
            a(f"s_add_u32 s43, s60, {(s % 8)*7*KB}")
            a(f"buffer_load_dwordx4 {vr(oreg(s),4)}, v{V_LANE16}, s[8:11], s43 offen offset:{(s >> 3)*KB} sc1"); vm.issue(f"a{s}")
        def early_a():
            for s_ in range(8): al_o(s_)
        def redo_a(a2):
            a2(f"s_add_u32 s61, s23, {F_O1}"); self.poll(V_PH, "s26", "s61")
            for s_ in range(8): al_o(s_)
        self.attention_run(r, halo_k, after_k, early_a, redo_a)
        self.stamp(4)
        a(f"s_add_u32 s58, s53, {XA}"); a("s_add_u32 s58, s58, s35"); a(f"s_add_u32 s59, s54, {STA}"); a("s_add_u32 s59, s59, s35")
        def h_o(upto):
            self.check(V_PH, F_O2); self.stamp(5); upto(16)
            if OPT.get("wo1l", 1): self.pub("wo1"); self._q.append(("w1", 0))
        self.res_gemm(16, lambda s: RK + s*4*KB, oreg, al_o, 8, 0, {0: "wo"}, {} if OPT.get("wo1l", 1) else {7: "wo1"}, XCH_WO, "wo", (6, "att"),
                      hooks={OPT.get("opeek", 2): lambda u: self.peek(V_PH), 8: h_o})
        self.pub("xr")
        self.x_store("s58", "s59", F_X1)
        self.stamp(6)
        a(f"s_mul_i32 s60, s27, {112*KB}"); a(f"s_mul_i32 s40, s17, {7*KB}"); a("s_add_u32 s60, s60, s40"); a(f"s_add_u32 s60, s60, {HF}"); a("s_add_u32 s60, s60, s35")
        a("s_lshl_b32 s58, s27, 15"); a(f"s_add_u32 s58, s58, {XA}"); a("s_add_u32 s58, s58, s35")
        a("s_lshl_b32 s59, s27, 12"); a(f"s_add_u32 s59, s59, {STA}"); a("s_add_u32 s59, s59, s35")
        a(f"s_mul_i32 s29, s48, {112*KB}"); a(f"s_mul_i32 s40, s51, {56*KB}"); a("s_add_u32 s29, s29, s40"); a(f"s_add_u32 s29, s29, {HF}"); a("s_add_u32 s29, s29, s35")
        a(f"s_add_u32 s61, s23, {F_X1}")
        self.poll2(V_PX, "s26", "s61"); vm.q = []
        self.stamp(7)
        def xl2(kc):
            if kc % 4 == 0: a(f"s_add_u32 s43, s58, {kc*KB}")
            a(f"buffer_load_dwordx4 {vr(XR+4*kc,4)}, v{V_LANE16}, s[8:11], s43 offen offset:{(kc%4)*KB} sc1")
        self.wc = 0; self.wr = 104; self.nw = 6
        steps = self.x_pass1(xl2, "s59", False, lambda w, t, kc: self.rd128(w, GU_REG[t] + kc*KB, f"t2_{kc//8}" if (t == 0 and kc % 8 == 0 and (kc == 0 or not OPT.get("t2e", 1))) else None, f"g{kc+1}" if (t == 2 and kc % 8 == 7) else None), [3, 4, 5], None, NT=3)
        self.pub("xch")
        done = {t: len(steps) - 3 + t for t in range(3)}; start = {}
        accof = {t: ACC[t % 4] for t in range(7)}
        for t in range(3, 7):
            start[t] = len(steps)
            for kc in range(32):
                w = self.wreg()
                steps.append(dict(reads=self.rd128(w, GU_REG[t] + kc*KB, f"t{t}" if kc == 0 else None, f"t{t}" if kc == 31 else None),
                                  mf=f"{MF} {vr(accof[t],16)}, {vr(w,4)}, {vr(XR+4*kc,4)}, {'0' if kc == 0 else vr(accof[t],16)}", pair=(kc % 2 == 0 and OPT.get("pair", 1))))
            steps.append(self.aug_step(accof[t], 3 + t))
            done[t] = len(steps) - 1
        def epi(t):
            A0 = accof[t]; L = []
            if OPT.get("x_nofill"): return [lambda: (a(f"s_add_u32 s43, s60, {t*KB}"), self.store(f"buffer_store_dwordx4 {vr(V_EP,4)}, v{V_LANE16}, s[8:11], s43 offen", f"h{t}"))]
            L += [f"v_mul_f32 v{A0+r}, v{V_C1}, v{A0+r}" for r in range(8)]
            L += [f"v_exp_f32 v{A0+r}, v{A0+r}" for r in range(8)]
            L += [f"v_fma_f32 v{A0+r}, v{A0+r}, v{V_STD}, v{V_STD}" for r in range(8)]
            L += [f"v_rcp_f32 v{A0+r}, v{A0+r}" for r in range(8)]
            L += [f"v_mul_f32 v{A0+r}, v{A0+r}, v{A0+8+r}" for r in range(8)]
            L += [f"v_cvt_pk_bf16_f32 v{V_EP+r}, v{A0+2*r}, v{A0+2*r+1}" for r in range(4)]
            L += [lambda: (a(f"s_add_u32 s43, s60, {t*KB}"), self.store(f"buffer_store_dwordx4 {vr(V_EP,4)}, v{V_LANE16}, s[8:11], s43 offen", f"h{t}"))]
            return L
        hreg = lambda s: XR + 4 * (s % 32)
        def al_h(s):
            t, i = s // 8, s % 8
            if OPT.get("x_noh") and s >= 16: return
            if OPT.get("x_sameh"): t, i = 0, s % 2
            a(f"s_add_u32 s43, s29, {(7*i + t)*KB}"); a(f"buffer_load_dwordx4 {vr(hreg(s),4)}, v{V_LANE16}, s[8:11], s43 offen sc1"); vm.issue(f"a{s}")
        NP = OPT.get("np", 16)
        queue = []; flag_at = {}; T1 = OPT.get('t1', 3)
        def fill2(i):
            for t in range(7):
                if done[t] + 2 == i: queue.extend((x, t) for x in epi(t))
            out = []
            if i == 70:
                def pk2():
                    a(f"v_and_b32 v{V_EP}, 1, v2"); a(f"v_add_u32 v{V_EP}, 1, v{V_EP}"); a("s_sub_u32 s40, 15, s16"); a(f"v_min_u32 v{V_EP}, s40, v{V_EP}"); a(f"v_lshlrev_b32 v{V_EP}, 11, v{V_EP}")
                    a(f"buffer_load_dword v{V_OUT}, v{V_EP}, s[8:11], s36 offen sc1"); vm.issue("pk")
                out.append(pk2)
            if i == done[2] + 4:
                def ck2():
                    d = self.lab()
                    a("s_add_u32 s61, s22, 1"); vm.wait("pk")
                    a(f"v_cmp_gt_u32 vcc, s61, v{V_OUT}"); a(f"s_cbranch_vccz {d}")
                    self.poll(V_EP, "s36", "s61"); a(f"{d}:")
                out.append(ck2)
            if OPT["fine"] and i == done[2]: self.pend_stamp = 12
            if OPT["fine"] and i == done[4]: self.pend_stamp = 13
            for t2, sidx in start.items():
                if sidx == i + 1 and t2 >= 4:
                    while queue and queue[0][1] <= t2 - 4: out.append(queue.pop(0)[0])
            cost = 0; lim = OPT.get("fillc", 3)
            while queue and cost < lim:
                x, t = queue.pop(0); out.append(x)
                cost += 3 if callable(x) else 2 if x.startswith(("v_exp", "v_rcp")) else 1
                if callable(x) and t == T1: flag_at[i + OPT.get("fld", 13)] = (F_H1, t)
                if callable(x) and t == 4 and T1 == 2: flag_at[min(i + OPT.get("fld", 13), len(steps) - 1)] = (8, t)
            if i in flag_at: out.append(lambda v=flag_at[i]: self.flag(v[0], f"h{v[1]}"))
            k6 = i - start[6]
            if k6 == 31 - NP - 14: out.append(lambda: self.peek(V_PH))
            if k6 == 31 - NP: out.append(lambda: self.check(V_PH, F_H1))
            if 31 - NP < k6 <= 31: out.append(lambda s_=k6 - (32 - NP): al_h(s_))
            return out
        self.stream(steps, look=4, fill=fill2)
        assert flag_at and min(flag_at) < start[6], (flag_at, start)
        for x, _ in queue: self.emit(x)
        for x in epi(6): self.emit(x)
        self.stamp(8)
        a(f"s_add_u32 s58, s53, {XB}"); a("s_add_u32 s58, s58, s34"); a(f"s_add_u32 s59, s54, {STB}"); a("s_add_u32 s59, s59, s34")
        PD = OPT.get("pd", 14)
        hooks = {OPT.get("hflag", 5): lambda u: self.flag(F_H2, "h6"), 32 - PD - 8: lambda u: self.peek(V_PH), 32 - PD - 1: lambda u: self.check(V_PH, F_H2)}
        if T1 == 2:
            hooks = {OPT.get("hflag", 5): lambda u: self.flag(F_H2, "h6"), 24 - PD - 7: lambda u: self.peek(V_PH), 24 - PD - 1: lambda u: self.check(V_PH, 8),
                     40 - PD - 8: lambda u: self.peek(V_PH), 40 - PD - 1: lambda u: self.check(V_PH, F_H2)}
            assert len(hooks) == 5
        self.res_gemm(56, wd_slot, hreg, al_h, NP, PD, {s: f"w{s}" for s in DG}, {s - 1: f"d{s}" for s in DP},
                      XCH_DN, "dx", (52, "d43"), hooks=hooks)
        self.stamp(10)
        a("s_cmp_lg_u32 s22, 0"); a("s_cbranch_scc1 L_c_final")
        self.x_store("s58", "s59", F_X2)
        a("s_lshl_b32 s55, s27, 15"); a(f"s_add_u32 s55, s55, {XB}"); a("s_add_u32 s55, s55, s34")
        a("s_lshl_b32 s56, s27, 12"); a(f"s_add_u32 s56, s56, {STB}"); a("s_add_u32 s56, s56, s34")
        a(f"s_mov_b32 s57, {F_X2}")
        self.next_iter()
        a.fence()
        a("s_branch L_c_loop")
        a("L_c_final:")
        a("s_lshl_b32 s40, s48, 15"); a("s_lshl_b32 s41, s49, 6"); a("s_add_u32 s40, s40, s41")
        a(f"buffer_store_dwordx4 {vr(V_RES,4)}, v{V_XOFF}, s[12:15], s40 offen{['', ' sc1', ' nt', ' sc0 sc1'][OPT.get('osc', 0)]}")
        a(f"buffer_store_dwordx4 {vr(V_RES+4,4)}, v{V_XOFF}, s[12:15], s40 offen offset:32{['', ' sc1', ' nt', ' sc0 sc1'][OPT.get('osc', 0)]}")
        self.finish()

    def next_iter(self):
        a = self.a
        a("s_mov_b32 s22, 1"); a("s_mov_b32 s23, 16"); a("s_mov_b32 s7, 64"); a("s_add_u32 s4, s4, 1"); a(f"v_mov_b32 v{V_BASE}, 64")
        a(f"s_mul_i32 s35, s21, {ITS}")
    def finish(self):
        a = self.a
        if OPT.get("x_dl2") and self.role == "C":
            l = self.lab()
            a(f"{l}:"); a("s_memrealtime s[96:97]"); a("s_waitcnt lgkmcnt(0)"); a("s_sub_u32 s96, s96, s100")
            a(f"s_cmp_lt_u32 s96, {OPT['x_dl2']*100}"); a(f"s_cbranch_scc1 {l}")
        if OPT.get("x_deadline") and self.role == "C":
            l = self.lab()
            a(f"{l}:"); a("s_memrealtime s[96:97]"); a("s_waitcnt lgkmcnt(0)"); a("s_lshl_b32 s96, s96, 3"); a("s_sub_u32 s96, s96, s4")
            a(f"s_cmp_lt_u32 s96, {OPT['x_deadline']*800}"); a(f"s_cbranch_scc1 {l}")
        if OPT["stamp"]:
            a("s_waitcnt vmcnt(0)")
            self.stamp(11)
            a("s_lshl_b32 s40, s2, 12"); a("s_lshl_b32 s41, s3, 9"); a("s_add_u32 s40, s40, s41"); a(f"s_add_u32 s40, s40, {TS}")
            if OPT.get("dbgout") and self.role == "C":
                l = self.lab()
                a("s_lshl_b32 s41, s2, 3"); a("s_add_u32 s41, s41, s3"); a(f"s_cmp_lg_u32 s41, {OPT['dbgout']*8}"); a(f"s_cbranch_scc1 {l}")
                a("s_load_dwordx2 s[44:45], s[0:1], 64"); a("s_mov_b32 s46, 256"); a("s_mov_b32 s47, 0x20000")
                a(f"v_readlane_b32 s42, v{V_TS}, 31"); a("v_mov_b32 v41, 0")
                for n, idx in enumerate([0, 14, 3, 4, 7, 8, 10, 32+1, 32+14, 32+3, 32+4, 32+7, 32+8, 32+11]):
                    a(f"v_readlane_b32 s43, v{V_TS}, {idx}"); a("s_sub_u32 s43, s43, s42"); a("s_nop 3"); a(f"v_writelane_b32 v41, s43, {n}")
                a("v_lshlrev_b32 v40, 2, v2"); a("s_waitcnt lgkmcnt(0)"); a("s_mov_b64 exec, 0x3fff")
                a("buffer_store_dword v41, v40, s[44:47], 0 offen offset:8"); a("s_mov_b64 exec, -1")
                a(f"{l}:")
            a("v_lshlrev_b32 v40, 2, v2")
            a(f"buffer_store_dword v{V_TS}, v40, s[8:11], s40 offen"); a(f"buffer_store_dword v{V_TS2}, v40, s[8:11], s40 offen offset:256")
        a("s_endpgm")

    def helper(self):
        a = self.a; self.role = "H"; vm = VM(a)
        HV_QKV = 16; HV_ROW0 = 17; HV_OOB = 18; HV_PK = 19; HV_W = 20; HV_R128 = 23; HV_TQ = 24; HT = 26
        SQ, SO, SD, SG, SX, SDBG = "s[44:47]", "s[48:51]", "s[52:55]", "s[56:59]", "s[60:63]", "s[12:15]"
        HF_ = 25
        W = OPT.get("win", 8)
        st = dict(it=0); outq = []; sigs = []
        cnt = dict(issued=0, done=0)
        def hpub_txt(name):
            self.seen.add(("H", name))
            return [f"v_mov_b32 v{V_TMP}, {64*st['it'] + HV[name]}", f"ds_max_u32 v{V_PUBA}, v{V_TMP}"]
        def hpub(name):
            for x in hpub_txt(name): a(x)
        def retire(n):
            if n > cnt["done"]:
                k = cnt["issued"] - n; assert 0 <= k <= 63
                if cnt.get("ghost") and n <= cnt["ghost"][0]:
                    l = self.lab()
                    a(f"s_waitcnt vmcnt({k + cnt['ghost'][1]})"); a("s_cmp_lg_u32 s87, 0"); a(f"s_cbranch_scc1 {l}"); a(f"s_waitcnt vmcnt({k})"); a(f"{l}:")
                else: a(f"s_waitcnt vmcnt({k})")
                cnt["done"] = n
            last = None
            while sigs and sigs[0][1] <= cnt["done"]: last = sigs.pop(0)[0]; self.seen.add(("H", last))
            if last: hpub(last)
        def op(win=None):
            cnt["issued"] += 1
            retire(max(cnt["done"], cnt["issued"] - (W if win is None else win)))
        def sig(name):
            sigs.append((name, cnt["issued"])); retire(cnt["done"])
        def flush():
            while sigs: retire(sigs[0][1])
        def drain():
            retire(cnt["issued"])
        def need(name, src="C", it=None):
            l1 = self.lab(); l2 = self.lab(); l3 = self.lab()
            val = 64 * (st["it"] if it is None else it) + (CV if src == "C" else HV)[name]
            rd = f"ds_read_b32 v{V_FLG}, v{HF_} offset:{16 if src == 'C' else 0}"
            a(rd); a("s_waitcnt lgkmcnt(0)"); a(f"s_movk_i32 s39, {val}"); a(f"v_cmp_gt_u32 vcc, s39, v{V_FLG}"); a(f"s_cbranch_vccz {l2}")
            for nm, n in sigs:
                a(f"s_waitcnt vmcnt({cnt['issued'] - n})")
                for x in hpub_txt(nm): a(x)
            a(f"{l3}:"); a(f"s_sleep {OPT.get('hsl', 1)}"); a("s_add_u32 s38, s38, 1"); a(f"s_cmp_gt_u32 s38, {OPT['spin']*16}"); a(f"s_cbranch_scc1 {l2}")
            a(rd); a("s_waitcnt lgkmcnt(0)"); a(f"v_cmp_gt_u32 vcc, s39, v{V_FLG}"); a(f"s_cbranch_vccnz {l3}")
            a.pending.pop(l3, None)
            a(f"{l2}:")
            self.used.add((src, name))
        spq = []
        def tile(t, gs=range(8)):
            for g in gs: self.dma("s29", t*32*KB + g*4*KB, GU_REG[t] + g*4*KB, fl="" if OPT.get("wplain") else " sc1"); op()
        def wqkv(which, gs, win=None):
            for g in gs:
                a(f"s_add_u32 s41, s30, {4*g}"); a("s_and_b32 s41, s41, 31"); a("s_mul_i32 s41, s41, 49152"); a("s_add_u32 s41, s41, s31")
                for ci, reg in which:
                    self.dma("s41", ci*1024, reg + g*4*KB, voff=HV_QKV, srd=SQ)
                    if spq and g >= 2 and OPT.get("scoop", 4) in (1, 4):
                        def f():
                            for _ in range(OPT.get("scn", 2)):
                                if spq: a(spq.pop(0))
                        only(["s_cmp_lt_u32 s80, 2"], f)
                    op(win)
                if len(which) == 2 and g % 2 == 1: sig(f"kv{g//2}")
        def wqp(which, gs):
            for g in gs:
                for ci, reg in which: self.dma("s34", ci*32*KB + g*4*KB, reg + g*4*KB, fl="" if OPT.get("wplain") else " sc1"); op()
        WK = (1, RK); WV = (2, RV); WQ = (0, RQ)
        st_next = [0]; st_idx = {}
        def stash(n):
            for _ in range(n):
                s_ = st_next[0]
                if s_ >= 56: break
                t, i = s_ // 8, s_ % 8
                a(f"s_add_u32 s40, s33, {(7*i + t)*16*KB}")
                a(f"buffer_load_dwordx4 {vr(STASH+4*s_,4)}, v{HV_R128}, {SD}, s40 offen"); op(); st_idx[s_] = cnt["issued"]
                st_next[0] += 1
        def wdw(steps):
            for s_ in steps:
                if s_ >= 56: break
                retire(max(cnt["done"], st_idx[s_]))
                if OPT.get("x_nowdw"): continue
                o = wd_slot(s_)
                a(f"ds_write_b128 v{HV_W + (o >> 16)}, {vr(STASH+4*s_,4)} offset:{o & 0xffff}")
                if OPT.get("wpace"): a("s_waitcnt lgkmcnt(0)")
        def only(cond_lines, fn):
            l = self.lab()
            for c in cond_lines: a(c)
            a(f"s_cbranch_scc0 {l}"); fn(); a(f"{l}:")
        a(f"v_lshrrev_b32 v{HT}, 2, v2"); a(f"v_mul_u32_u24 v{HV_QKV}, 3072, v{HT}"); a(f"v_and_b32 v{HT}, 3, v2"); a(f"v_lshl_add_u32 v{HV_QKV}, v{HT}, 4, v{HV_QKV}")
        a("s_add_u32 s30, s28, s6"); a("s_lshl_b32 s31, s17, 6")
        a(f"s_mov_b32 s46, {512*3072}"); a("s_mov_b32 s47, 0x20000")
        a("s_mov_b64 s[44:45], s[66:67]")
        if OPT["stamp"]: a(f"v_writelane_b32 v{V_TS}, s100, 31")
        a("s_mul_i32 s83, s2, 9363"); a("s_lshr_b32 s83, s83, 18")
        a("s_mul_i32 s40, s83, 28"); a("s_sub_u32 s84, s2, s40")
        a("s_mul_i32 s40, s84, 37"); a("s_lshr_b32 s40, s40, 8"); a("s_mul_i32 s41, s40, 7"); a("s_sub_u32 s41, s84, s41")
        a("s_lshl_b32 s41, s41, 3"); a("s_add_u32 s41, s41, s83"); a("s_lshl_b32 s40, s40, 6"); a("s_add_u32 s40, s40, s41"); a("s_lshl_b32 s40, s40, 3"); a(f"s_add_u32 s88, s40, {RF}")
        a("s_cmp_lt_u32 s2, 224"); a("s_cselect_b32 s88, s88, 0x7ff00000")
        a("s_lshl_b32 s89, s17, 8"); a("s_lshl_b32 s40, s16, 4"); a("s_add_u32 s89, s89, s40"); a(f"s_add_u32 s89, s89, {PFL}")
        def zero():
            def nonce():
                a("s_memrealtime s[42:43]"); a("s_mov_b64 s[12:13], s[70:71]"); a("s_mov_b32 s14, 256"); a("s_mov_b32 s15, 0x20000"); a("s_waitcnt lgkmcnt(0)")
                a("s_lshl_b64 s[42:43], s[42:43], 3"); a("s_or_b32 s43, s43, 0x80000000")
                a("v_mov_b32 v44, s42"); a("v_mov_b32 v45, s43")
                a("s_mov_b64 exec, 1"); a(f"buffer_store_dwordx2 v[44:45], off, {SDBG}, 0 sc1"); a("s_mov_b64 exec, -1")
            only(["s_cmp_eq_u32 s2, 0"], nonce)
            for r in range(4): a(f"v_mov_b32 v{40+r}, 0")
            a("s_sub_u32 s40, s24, 28")
            a("s_lshl_b32 s81, s16, 11"); a("s_lshl_b32 s41, s17, 7"); a("s_add_u32 s81, s81, s41"); a(f"s_add_u32 s81, s81, {KVFL}")
            a("s_mov_b64 exec, 1")
            a("buffer_store_dwordx4 v[40:43], off, s[8:11], s40 sc1"); a("buffer_store_dwordx4 v[40:43], off, s[8:11], s81 sc1")
            a("buffer_store_dwordx2 v[40:41], off, s[8:11], s88 sc1"); a("buffer_store_dwordx4 v[40:43], off, s[8:11], s89 sc1")
            a("s_mov_b64 exec, -1")
        only(["s_cmp_eq_u32 s6, 3"], zero)
        def codepf():
            a("s_mov_b64 exec, 0xffff"); a("global_load_dword v31, v[10:11], off"); a("s_mov_b64 exec, -1")
        def qtouch():
            a(f"v_lshrrev_b32 v{HT}, 3, v2"); a(f"v_mul_u32_u24 v{HT}, 3072, v{HT}"); a(f"v_and_b32 v{HT+1}, 7, v2"); a(f"v_lshl_add_u32 v{HT}, v{HT+1}, 7, v{HT}")
            a("s_mul_i32 s41, s2, 6144"); a("s_mov_b64 exec, 0xffff"); a(f"buffer_load_dword v161, v{HT}, {SQ}, s41 offen"); a("s_mov_b64 exec, -1")
        if not OPT.get("ct0"): only(["s_cmp_eq_u32 s6, 1"], qtouch)
        def c3q():
            a(f"v_and_b32 v{HT}, 15, v2"); a(f"v_mul_u32_u24 v{HT}, 3072, v{HT}"); a(f"v_lshrrev_b32 v{HT+1}, 4, v2"); a(f"v_lshl_add_u32 v{HT}, v{HT+1}, 10, v{HT}")
            a("s_lshr_b32 s41, s2, 3"); a("s_mul_i32 s41, s41, 49152"); a("s_add_u32 s41, s41, 384")
            a("s_mov_b32 exec_hi, 0xffff"); a(f"buffer_load_dword v161, v{HT}, {SQ}, s41 offen"); a("s_mov_b64 exec, -1")
        if OPT.get("c3", 2): only(["s_cmp_eq_u32 s6, 0"], c3q)
        def c3w(srd, n):
            a(f"v_lshlrev_b32 v{HT}, 10, v2"); a("s_lshr_b32 s41, s2, 3"); a(f"s_mul_i32 s41, s41, {n*1024}"); a("s_add_u32 s41, s41, 384")
            m = (1 << n) - 1
            a(f"s_mov_b32 exec_lo, {m & 0xffffffff:#x}"); a(f"s_mov_b32 exec_hi, {m >> 32:#x}"); a(f"buffer_load_dword v31, v{HT}, {srd}, s41 offen"); a("s_mov_b64 exec, -1")
        def tlb():
            st_ = OPT.get("tlbs", 2) * MB // 2
            a("s_mov_b64 s[42:43], s[8:9]")
            for p in range(WS_USED // st_):
                a("s_load_dword s94, s[42:43], 0"); a(f"s_add_u32 s42, s42, {st_}"); a("s_addc_u32 s43, s43, 0")
            for r in (68, 76, 78): a(f"s_load_dword s94, s[{r}:{r+1}], 0")
            a("s_load_dword s94, s[76:77], 0xffff0"); a("s_load_dword s94, s[78:79], 0xffff0")
        wqkv([WK, WV], range(0, 2), win=63)
        if OPT.get("ct0"):
            a(f"v_lshlrev_b32 v{HT}, 7, v2")
            def tw():
                a("s_mul_i32 s41, s2, 6144"); a("s_mov_b32 exec_hi, 0xffff"); a(f"buffer_load_dword v161, v{HT}, {SQ}, s41 offen"); a("s_mov_b64 exec, -1")
            def tx():
                a("s_mov_b64 s[56:57], s[64:65]"); a(f"s_mov_b32 s58, {2048*1024}"); a("s_mov_b32 s59, 0x20000")
                a("s_lshl_b32 s41, s16, 4"); a("s_add_u32 s41, s41, s17"); a("s_lshl_b32 s41, s41, 13"); a(f"buffer_load_dword v161, v{HT}, {SG}, s41 offen")
            only(["s_cmp_eq_u32 s6, 1"], tw); only(["s_cmp_eq_u32 s6, 0"], tx)
        if OPT.get("tlb", 0): only(["s_cmp_eq_u32 s6, 0"], tlb)
        a("s_mov_b64 s[12:13], s[70:71]"); a("s_mov_b32 s14, 256"); a("s_mov_b32 s15, 0x20000")
        a("s_mov_b64 s[48:49], s[68:69]"); a(f"s_mov_b32 s50, {512*1024}"); a("s_mov_b32 s51, 0x20000")
        a("s_mov_b64 s[52:53], s[76:77]"); a(f"s_mov_b32 s54, {1792*1024}"); a("s_mov_b32 s55, 0x20000")
        a(f"v_lshrrev_b32 v{HT}, 3, v2"); a(f"v_bfe_u32 v{HT+1}, v2, 4, 1"); a(f"v_lshlrev_b32 v{HT+1}, 2, v{HT+1}")
        a(f"v_and_b32 v{HT+2}, 7, v2"); a(f"v_xor_b32 v{HT+2}, v{HT+1}, v{HT+2}"); a(f"v_lshlrev_b32 v{HT+2}, 4, v{HT+2}")
        a(f"v_lshl_add_u32 v{HV_R128}, v{HT}, 10, v{HT+2}")
        a(f"v_mul_u32_u24 v{HT+3}, 3584, v{HT}"); a(f"v_add_u32 v{HT+3}, v{HT+3}, v{HT+2}")
        a("s_and_b32 s85, s83, 1"); a("s_lshr_b32 s86, s83, 1")
        if OPT.get("rl2", 0): a("s_add_u32 s80, s6, 3"); a("s_and_b32 s80, s80, 3")
        else: a("s_add_u32 s80, s6, 1"); a("s_cmp_eq_u32 s6, 0"); a("s_cselect_b32 s80, 0, s80"); a("s_cmp_eq_u32 s6, 3"); a("s_cselect_b32 s80, 1, s80")
        a("s_lshl_b32 s86, s86, 1"); a("s_add_u32 s86, s86, s80")
        a("s_cmp_eq_u32 s85, 0"); a("s_cselect_b64 s[56:57], s[72:73], s[74:75]"); a(f"s_mov_b32 s58, {512*3584}"); a("s_mov_b32 s59, 0x20000")
        a("s_cmp_lt_u32 s2, 224"); a("s_cselect_b32 s87, 1, 0"); a("s_cmp_lt_u32 s80, 2"); a("s_cselect_b32 s87, s87, 0")
        def rel_ld():
            a(f"s_mul_i32 s41, s86, {64*3584}"); a("s_lshl_b32 s40, s84, 7"); a("s_add_u32 s41, s41, s40")
            for o in range(8):
                a(f"buffer_load_dwordx4 {vr(128+4*o,4)}, v{HT+3}, {SG}, s41 offen")
                if o < 7: a(f"s_add_u32 s41, s41, {8*3584}")
        if OPT.get("rele"): only(["s_cmp_gt_u32 s87, 0"], rel_ld); cnt["ghost"] = (cnt["issued"], 8)
        def coop():
            a(f"v_lshlrev_b32 v{HT}, 7, v2"); a("s_lshl_b32 s41, s2, 13")
            only(["s_cmp_eq_u32 s6, 1"], lambda: a(f"buffer_load_dword v161, v{HT}, {SD}, s41 offen"))
            a("s_sub_u32 s41, 255, s2"); a("s_lshl_b32 s41, s41, 13")
            if OPT.get("scoop", 4) != 4: only(["s_cmp_eq_u32 s6, 2"], lambda: a(f"buffer_load_dword v161, v{HT}, {SO}, s41 offen"))
        a("s_lshl_b32 s32, s19, 7"); a("s_and_b32 s40, s6, 1"); a("s_lshl_b32 s40, s40, 13"); a("s_add_u32 s32, s32, s40")
        a("s_lshr_b32 s40, s6, 1"); a(f"s_mul_i32 s33, s40, {56*16*KB}"); a("s_add_u32 s33, s33, s32"); a("s_lshl_b32 s40, s40, 18"); a("s_add_u32 s32, s32, s40")
        a(f"s_mul_i32 s34, s17, {96*KB}"); a(f"s_add_u32 s34, s34, {WQP}"); a("s_add_u32 s34, s34, s25")
        a(f"s_mul_i32 s29, s17, {0 if OPT.get('x_samew') else 7*32*KB}"); a(f"s_add_u32 s29, s29, {WGU}"); a("s_add_u32 s29, s29, s25")
        a(f"v_lshrrev_b32 v{HT}, 5, v2"); a(f"v_lshlrev_b32 v{HV_ROW0}, 9, v{HT}")
        a(f"v_mov_b32 v{HV_OOB}, 0x7ff00000")
        a(f"v_and_b32 v{HT}, 1, v2"); a("s_sub_i32 s40, s16, 1"); a(f"v_sub_u32 v{HT}, s40, v{HT}")
        a(f"v_lshlrev_b32 v{HT+1}, 11, v{HT}"); a("s_lshl_b32 s40, s6, 2"); a(f"v_add_u32 v{HT+1}, s40, v{HT+1}")
        a(f"v_cmp_gt_i32 vcc, 0, v{HT}"); a(f"v_cndmask_b32_e64 v{HV_PK}, v{HT+1}, 0, vcc")
        a("s_lshl_b32 s82, s17, 7"); a(f"s_add_u32 s82, s82, {KVFL}")
        a(f"v_add_u32 v{HV_W}, s25, v{V_LANE16}"); a(f"v_add_u32 v{HV_W+1}, 0x10000, v{HV_W}"); a(f"v_add_u32 v{HV_W+2}, 0x20000, v{HV_W}")
        self.tr_addr16(HV_TQ, HT, HT + 1)
        a("s_lshl_b32 s40, s6, 15"); a(f"v_add_u32 v{HV_TQ}, s40, v{HV_TQ}")
        for r in range(4): a(f"v_mov_b32 v{64+r}, s20")
        a("v_mov_b32 v48, s20"); a("v_mov_b32 v49, s20"); a("v_mov_b32 v50, 0"); a("v_mov_b32 v51, 0"); a(f"v_mov_b32 v52, {L_ONES}")
        for o in (0, 64, 256, 320): a(f"ds_write_b128 v52, v[48:51] offset:{o}")
        def colsum(lo, hi, first, HV_TQ=HV_TQ):
            def rd(kc):
                w = 72 + 4 * (kc % 8)
                a(f"ds_read_b64_tr_b16 {vr(w,2)}, v{HV_TQ} offset:{kc*KB}"); a(f"ds_read_b64_tr_b16 {vr(w+2,2)}, v{HV_TQ} offset:{kc*KB+256}")
            for kc in range(lo, min(hi, lo + 6)): rd(kc)
            for kc in range(lo, hi):
                a(f"s_waitcnt lgkmcnt({2 * (min(hi, kc + 6) - kc - 1)})")
                a(f"{MF} v[112:127], v[64:67], {vr(72+4*(kc%8),4)}, {'0' if (first and kc == lo) else 'v[112:127]'}")
                if kc + 6 < hi: rd(kc + 6)
        def augfin(q4=False):
            a("v_cvt_pk_bf16_f32 v104, v112, v112"); a("v_and_b32 v107, 0xffff, v104")
            a("v_lshlrev_b32 v105, 16, v104"); a("v_sub_f32 v105, v112, v105"); a("v_cvt_pk_bf16_f32 v106, v112, v105")
            if q4: a("s_lshr_b32 s40, s6, 1"); a("s_lshl_b32 s40, s40, 9"); a("s_and_b32 s41, s6, 1"); a("s_lshl_b32 s41, s41, 3"); a("s_add_u32 s40, s40, s41"); a(f"s_add_u32 s40, s40, {L_QB}")
            else: a("s_lshl_b32 s40, s6, 8"); a(f"s_add_u32 s40, s40, {L_AUG}")
            a("v_and_b32 v108, 31, v2"); a(f"v_lshlrev_b32 v108, {4 if q4 else 3}, v108"); a("v_add_u32 v108, s40, v108")
            a("ds_write_b64 v108, v[106:107]"); a("s_waitcnt lgkmcnt(0)")
        kvw = ["s_sub_u32 s40, s6, 1", "s_cmp_lt_u32 s40, 2"]
        qw  = ["s_cmp_eq_u32 s6, 0"]
        w3  = ["s_cmp_eq_u32 s6, 3"]
        def spin_head(loads):
            l = self.lab(); d = self.lab(); l0 = self.lab()
            a("s_mov_b32 s41, 0")
            for x in loads: a(x + ("" if OPT.get("pplain", 0) else " sc1"))
            a(f"s_branch {l0}"); a(f"{l}:"); a("s_sleep 4")
            for x in loads: a(x + " sc1")
            a(f"{l0}:")
            a("s_add_u32 s41, s41, 1"); a(f"s_cmp_gt_u32 s41, {OPT['spin']}"); a(f"s_cbranch_scc1 {d}")
            a("s_waitcnt vmcnt(0)")
            return l, d
        def get_nonce():
            l, d = spin_head([f"buffer_load_dwordx2 {vr(HT,2)}, off, {SDBG}, 0"])
            a(f"v_readfirstlane_b32 s92, v{HT}"); a(f"v_readfirstlane_b32 s93, v{HT+1}")
            a("s_cmp_eq_u32 s93, 0"); a(f"s_cbranch_scc1 {l}"); a(f"{d}:")
        def arrive():
            a("s_waitcnt lgkmcnt(0)")
            only(["s_cmp_eq_u32 s93, 0"], get_nonce)
            a(f"v_mov_b32 v{HT}, s92"); a(f"v_mov_b32 v{HT+1}, s93"); a(f"v_mov_b32 v{HT+2}, {L_TAG}"); a(f"ds_write_b64 v{HT+2}, {vr(HT,2)}")
            a("s_getreg_b32 s40, hwreg(HW_REG_XCC_ID)"); a("s_and_b32 s40, s40, 7"); a("s_or_b32 s91, s40, s92")
            a(f"v_mov_b32 v{HT}, s91"); a(f"v_mov_b32 v{HT+1}, s93")
            a("s_lshl_b32 s40, s16, 7"); a("s_lshl_b32 s41, s17, 3"); a("s_add_u32 s40, s40, s41"); a(f"s_add_u32 s40, s40, {AR}")
            a("s_mov_b64 exec, 1"); a(f"buffer_store_dwordx2 {vr(HT,2)}, off, s[8:11], s40 sc1"); a("s_mov_b64 exec, -1")
        def nbr():
            a("v_lshlrev_b32 v248, 5, v2"); a(f"s_mov_b32 s42, {AR}")
            l, d = spin_head(["buffer_load_dwordx4 v[240:243], v248, s[8:11], s42 offen", "buffer_load_dwordx4 v[244:247], v248, s[8:11], s42 offen offset:16"])
            for q in range(4): a(f"v_xor_b32 v{240+2*q}, s91, v{240+2*q}"); a(f"v_xor_b32 v{241+2*q}, s93, v{241+2*q}")
            a("v_or3_b32 v240, v240, v242, v244"); a("v_or_b32 v240, v240, v246"); a("v_or3_b32 v241, v241, v243, v245"); a("v_and_b32 v249, -8, v240"); a("v_or3_b32 v241, v241, v247, v249")
            a("v_cmp_ne_u32 vcc, 0, v241"); a(f"s_cbranch_vccnz {l}"); a(f"{d}:")
            a("v_cmp_ne_u32 vcc, 0, v240"); a("s_lshl_b32 s40, s16, 2"); a("s_lshr_b64 s[42:43], vcc, s40"); a("s_and_b32 s40, s42, 15"); a("s_cselect_b32 s40, 1, 0")
            if OPT["force_slow"]: a("s_mov_b32 s40, 1")
            a(f"v_mov_b32 v{HT}, s40"); a(f"v_mov_b32 v{HT+1}, {L_MODE}"); a(f"ds_write_b32 v{HT+1}, v{HT}"); a("s_waitcnt lgkmcnt(0)")
        def rel_do():
            a("s_lshl_b32 s40, s80, 12"); a(f"s_add_u32 s40, s40, {P4 if OPT.get('rl2', 0) else 144*KB}"); a(f"v_add_u32 v45, s40, v{V_LANE16}")
            a(f"v_bfe_u32 v40, v2, 2, 2"); a("v_lshlrev_b32 v41, 7, v40"); a("v_lshrrev_b32 v40, 1, v40"); a("v_lshrrev_b32 v42, 5, v2"); a("v_xor_b32 v40, v40, v42")
            a("v_lshl_add_u32 v41, v40, 6, v41"); a(f"v_and_b32 v40, 63, v{HV_TQ}"); a("v_add_u32 v41, v41, v40"); a("v_add_u32 v41, s40, v41")
            for hf in range(2):
                for o in range(4): a(f"ds_write_b128 v45, {vr(128+16*hf+4*o,4)} offset:{o*KB}")
                for o in range(4):
                    a(f"ds_read_b64_tr_b16 {vr(72+16*hf+4*o,2)}, v41 offset:{o*KB}"); a(f"ds_read_b64_tr_b16 {vr(74+16*hf+4*o,2)}, v41 offset:{o*KB+512}")
                a("s_waitcnt lgkmcnt(0)")
            a("v_lshrrev_b32 v40, 4, v2"); a("v_lshlrev_b32 v40, 15, v40"); a("v_and_b32 v42, 15, v2"); a("v_lshl_add_u32 v40, v42, 4, v40")
            a("s_lshl_b32 s40, s84, 17"); a("s_lshl_b32 s41, s86, 12"); a("s_add_u32 s40, s40, s41"); a("s_lshl_b32 s41, s85, 8"); a("s_add_u32 s40, s40, s41"); a(f"s_add_u32 s40, s40, {WGU}")
            a("v_mov_b32 v43, 0"); a("v_mov_b32 v44, 0")
            a("s_waitcnt lgkmcnt(0)")
            for o in range(8): a(f"buffer_store_dwordx4 {vr(72+4*o,4)}, v40, s[8:11], s40 offen offset:{o*512} sc1")
            for i in range(32): a(f"v_dot2_f32_bf16 v{43+i%2}, v{72+i}, s20, v{43+i%2}")
            a("s_nop 2"); a("v_add_f32 v43, v43, v44")
            a("s_lshl_b32 s40, s86, 1"); a("s_add_u32 s40, s40, s85"); a(f"s_mul_i32 s40, s40, {1792*4}"); a("s_lshl_b32 s41, s84, 8"); a("s_add_u32 s40, s40, s41"); a(f"s_add_u32 s40, s40, {CS}")
            a("v_lshlrev_b32 v42, 2, v2")
            a("buffer_store_dword v43, v42, s[8:11], s40 offen sc1")
        def halo():
            for kv in range(2):
                for d in (1, 2):
                    l1 = self.lab(); l2 = self.lab()
                    a(f"s_cmp_lt_u32 s16, {d}"); a(f"s_cbranch_scc1 {l1}")
                    a(f"s_sub_u32 s95, s27, {4*d}"); a("s_lshl_b32 s95, s95, 10"); a("s_add_u32 s95, s95, s94")
                    for hh in range(2): self.dma("s95", kv*32*64*KB + hh*64*KB, LK + kv*12*KB + hh*HS + (8-4*d)*KB, fl=" sc1")
                    a(f"s_branch {l2}")
                    a(f"{l1}:")
                    for hh in range(2): self.dma("s94", hh*64*KB, LK + kv*12*KB + hh*HS + (8-4*d)*KB, voff=(HV_ROW0, HV_OOB)[kv], fl=" sc1")
                    a(f"{l2}:")
                    op(63); op(63)
                sig(("hk", "hv")[kv])
        def pack():
            a("s_lshl_b32 s40, s16, 1"); a("s_sub_u32 s41, s40, s28"); a("s_and_b32 s41, s41, 31"); a("s_lshl_b32 s41, s41, 10"); a("s_lshl_b32 s42, s6, 15"); a("s_add_u32 s41, s41, s42")
            a(f"v_add_u32 v160, s41, v{V_LANE16}")
            a("ds_read_b128 v[164:167], v160"); a("ds_read_b128 v[168:171], v160 offset:1024")
            a("s_lshl_b32 s41, s6, 15"); a("s_lshl_b32 s40, s40, 10"); a("s_add_u32 s41, s41, s40")
            a("s_add_u32 s41, s41, s34"); a("s_sub_u32 s41, s41, s25")
            a("s_mov_b32 s90, s41")
            a("s_waitcnt lgkmcnt(0)")
        def pack_st():
            a(f"buffer_store_dwordx4 v[164:167], v{V_LANE16}, s[8:11], s90 offen sc1"); a(f"buffer_store_dwordx4 v[168:171], v{V_LANE16}, s[8:11], s90 offen offset:1024 sc1")
        def rel_sig():
            a("s_lshl_b32 s40, s80, 2"); a("s_add_u32 s40, s40, s88")
            a(f"v_mov_b32 v{HT}, 1"); a("s_mov_b64 exec, 1"); a(f"buffer_store_dword v{HT}, off, s[8:11], s40 sc1"); a("s_mov_b64 exec, -1")
        def gu_ready():
            a("s_lshr_b32 s40, s17, 2"); a("s_lshl_b32 s40, s40, 9"); a(f"s_add_u32 s42, s40, {RF}")
            a(f"v_min_u32 v{HT+2}, 55, v2"); a(f"v_lshlrev_b32 v{HT+2}, 3, v{HT+2}")
            l, d = spin_head([f"buffer_load_dwordx2 {vr(HT,2)}, v{HT+2}, s[8:11], s42 offen"])
            a(f"v_and_b32 v{HT}, v{HT}, v{HT+1}"); a(f"v_cmp_ne_u32 vcc, 1, v{HT}"); a(f"s_cbranch_vccnz {l}"); a(f"{d}:")
        def pack_sig():
            a("s_lshl_b32 s40, s6, 2"); a("s_add_u32 s40, s40, s89")
            a(f"v_mov_b32 v{HT}, 1"); a("s_mov_b64 exec, 1"); a(f"buffer_store_dword v{HT}, off, s[8:11], s40 sc1"); a("s_mov_b64 exec, -1")
        def gu_aug():
            a("v_lshrrev_b32 v240, 5, v2"); a(f"v_mul_u32_u24 v241, {1792*4}, v240"); a("v_and_b32 v242, 31, v2"); a("v_min_u32 v242, 27, v242"); a("v_lshl_add_u32 v241, v242, 4, v241")
            a(f"s_mul_i32 s40, s17, {112*4}"); a(f"s_add_u32 s40, s40, {CS}")
            for p in range(8):
                a(f"buffer_load_dwordx4 {vr(208+4*p,4)}, v241, s[8:11], s40 offen sc1")
                if p < 7: a(f"s_add_u32 s40, s40, {2*1792*4}")
            a("v_lshrrev_b32 v243, 2, v242"); a("v_lshlrev_b32 v243, 8, v243"); a("v_lshl_add_u32 v243, v240, 7, v243"); a("v_and_b32 v244, 3, v242"); a("v_lshl_add_u32 v243, v244, 5, v243")
            a(f"v_add_u32 v243, {L_AUG + 768}, v243")
            a("s_waitcnt vmcnt(0)")
            for p in range(1, 8):
                for c in range(4): a(f"v_add_f32 v{208+c}, v{208+c}, v{208+4*p+c}")
            for c in range(4):
                a(f"v_cvt_pk_bf16_f32 v245, v{208+c}, v{208+c}"); a(f"v_and_b32 v{217+2*c}, 0xffff, v245")
                a("v_lshlrev_b32 v245, 16, v245"); a(f"v_sub_f32 v245, v{208+c}, v245"); a(f"v_cvt_pk_bf16_f32 v{216+2*c}, v{208+c}, v245")
            a("ds_write_b128 v243, v[216:219]"); a("ds_write_b128 v243, v[220:223] offset:16"); a("s_waitcnt lgkmcnt(0)")
        def pack_ready():
            a("s_lshl_b32 s42, s17, 8"); a(f"s_add_u32 s42, s42, {PFL}"); a("s_mov_b32 s43, 1")
            a(f"v_lshlrev_b32 v{HT}, 2, v2"); self.poll(HT, "s42", "s43", sleep=8)
        a(f"v_and_b32 v{HF_}, 3, v2"); a(f"v_lshlrev_b32 v{HF_}, 2, v{HF_}"); a(f"v_add_u32 v{HF_}, {L_HL}, v{HF_}")
        a("s_lshr_b32 s40, s6, 1"); a("s_lshl_b32 s41, s18, 1"); a("s_add_u32 s40, s40, s41"); a("s_lshl_b32 s41, s16, 2"); a("s_add_u32 s40, s40, s41")
        a("s_and_b32 s41, s6, 1"); a("s_lshl_b32 s42, s19, 1"); a("s_add_u32 s41, s41, s42")
        a("s_lshl_b32 s60, s40, 15"); a("s_lshl_b32 s42, s41, 11"); a("s_add_u32 s60, s60, s42")
        a("s_lshl_b32 s61, s40, 12"); a("s_lshr_b32 s42, s41, 2"); a("s_lshl_b32 s42, s42, 10"); a("s_add_u32 s61, s61, s42")
        a(f"s_mul_i32 s62, s27, {112*KB}"); a("s_lshl_b32 s42, s17, 11"); a("s_add_u32 s62, s62, s42")
        a(f"s_mul_i32 s63, s27, {112*KB}"); a(f"s_mul_i32 s42, s17, {7*KB}"); a("s_add_u32 s63, s63, s42")
        def touch(items):
            a(self.touch_txt([([f"s_add_u32 s43, {r}, {b}"], n) for r, b, n in items]).replace(f"v{V_OUT},", "v31,"))
        def ext():
            pass
        for it in range(2):
            st["it"] = it
            if it == 0:
                KW = OPT.get("kw", 4); RP = OPT.get("rp", 8)
                if OPT.get("scoop", 4):
                    a("s_and_b32 s40, s80, 1"); a("s_lshl_b32 s40, s40, 6"); a(f"s_mul_i32 s41, s2, {7*KB}"); a("s_add_u32 s41, s41, s40"); a("s_add_u32 s64, s52, s41"); a("s_addc_u32 s65, s53, 0")
                    a("s_lshl_b32 s41, s2, 11"); a("s_add_u32 s41, s41, s40"); a("s_add_u32 s66, s48, s41"); a("s_addc_u32 s67, s49, 0")
                    spq += [f"s_load_dword s95, s[66:67], {q*128}" for q in range(16)] + [f"s_load_dword s95, s[64:65], {q*128}" for q in range(56 if OPT.get("scoop", 4) != 4 else 0)]
                wqkv([WK, WV], range(2, 4), win=KW)
                retire(max(4, cnt["done"]))
                only(w3, lambda: a("s_load_dwordx2 s[92:93], s[70:71], 0"))
                wqkv([WK, WV], range(4, 6), win=KW)
                only(w3, arrive)
                wqkv([WK, WV], range(6, RP), win=KW)
                if not OPT.get("rele"): only(["s_cmp_gt_u32 s87, 0"], lambda: (need("x0") if OPT.get("relx", 0) else None, rel_ld())); cnt["ghost"] = (cnt["issued"], 8)
                wqkv([WK, WV], range(RP, 8), win=KW)
                only(kvw, lambda: (need("kv1", "H"), colsum(0, 16, True)))
                flush()
                if OPT.get("coope", 0): coop()
                self.stamp(9)
                only(kvw, lambda: (need("kv3", "H"), colsum(16, 32, False), augfin(), pack()))
                hpub("augkv")
                def spall():
                    while spq: a(spq.pop(0))
                QS = 32; RA = ["s_cmp_gt_u32 s87, 0"]
                if OPT.get("rl2", 0):
                    self.stamp(10)
                    need("x")
                    wqkv([WQ], range(0, 8), win=63)
                    only(w3, nbr)
                    drain(); hpub("wq")
                    only(qw, lambda: (need("wq", "H"), a("s_setprio 3"), colsum(0, 32, True), augfin()))
                    hpub("augq")
                    only(RA, lambda: (need("kv"), rel_do(), need("wq", "H"), a("s_waitcnt vmcnt(0)"), rel_sig()))
                    if OPT.get("scoop", 4) == 2: only(["s_cmp_ge_u32 s80, 2"], spall)
                else:
                    only(RA, lambda: (a("s_setprio 3"), a("s_waitcnt vmcnt(0)"), rel_do(), a("s_setprio 0")))
                    self.stamp(10)
                    need("x")
                    wqkv([WQ], range(0, 8), win=63)
                    only(w3, nbr)
                    drain(); hpub("wq")
                    need("wq", "H")
                    only(RA, rel_sig)
                    a(f"s_mul_i32 s40, s6, {24*KB}"); a(f"v_subrev_u32 v109, s40, v{HV_TQ}")
                    a("s_setprio 3"); colsum(0, 8, True, 109); augfin(True); a("s_setprio 0")
                    hpub("augq")
                    if OPT.get("scoop", 4) == 2: only(kvw, spall)
                self.stamp(12)
            else:
                need("x"); hpub("augq")
            if it == 0:
                only(qw, lambda: (pack(), a("s_setprio 0")))
                only(["s_cmp_lt_u32 s6, 3"], pack_st)
            if it == 0 and OPT.get("st_e"): coop(); stash(OPT["st_e"])
            self.stamp(14)
            need(["hl", "kv", "q"][OPT.get("hgo1", 0) if it else OPT.get("hgo0", 0)])
            self.stamp(2)
            if it == 0:
                a(f"v_mov_b32 v{V_TMP}, {L_MODE}"); a(f"ds_read_b32 v{V_TMP}, v{V_TMP}"); a("s_waitcnt lgkmcnt(0)"); a(f"v_readfirstlane_b32 s21, v{V_TMP}")
            if OPT.get("c3", 2) > 1:
                only(["s_cmp_eq_u32 s6, 2"], lambda: c3w(SO, 16))
                if it == 0: only(["s_cmp_eq_u32 s6, 1"], lambda: c3w(SD, 56))
            if OPT.get("tlate"):
                for g in range(OPT["tlate"]): self.dma("s32", (2*(g%8) + g//8)*16*KB, RK + g*4*KB, voff=HV_R128, srd=SO); op()
            if OPT.get("codepf", 1) > 1 and it == 0: only(["s_cmp_eq_u32 s6, 0"], codepf)
            touch([("s63", OF, 16), ("s60", XA, 16), ("s61", STA, 8)])
            if it == 0 and OPT.get("scoop", 4) in (0, 4) and not OPT.get("coope", 0) and not OPT.get("st_e"): coop()
            assert not spq
            self.stamp(3)
            for g in range(OPT.get("tlate", 0), 16):
                self.dma("s32", (2*(g%8) + g//8)*16*KB, RK + g*4*KB, voff=HV_R128, srd=SO); op()
                if it == 0 and not OPT.get("rel0", 1):
                    if g == 2: only(["s_cmp_gt_u32 s87, 0"], lambda: (a("s_waitcnt vmcnt(3)"), rel_do()))
                    if g == 3 + W: only(["s_cmp_gt_u32 s87, 0"], rel_sig)
            sig("wo")
            if it == 0:
                pack_sig()
                stash(OPT.get("st_0", 10)); flush()
                only(w3, gu_ready)
                hpub("gur"); need("gur", "H")
            self.stamp(5)
            tile(0); tile(1, range(0, 3))
            if it == 0: stash(OPT.get("st_a", 0))
            need("h0"); tile(1, range(3, 8))
            if it == 0: only(w3, gu_aug); stash(OPT.get("st_b", 20))
            if OPT.get("htouch", 0) > it: touch([("s63", HF, 56)])
            for n in range(OPT.get("pf1", 0) if it else OPT.get("pf0", 0)):
                if n == 0:
                    a("s_and_b32 s40, s16, 1"); a("s_lshl_b32 s41, s6, 1"); a("s_add_u32 s40, s40, s41"); a("s_lshl_b32 s40, s40, 13")
                    a("s_sub_u32 s43, s29, s25"); a("s_add_u32 s43, s43, s40"); a(f"v_lshlrev_b32 v{HT}, 7, v2")
                a(f"s_add_u32 s43, s43, {64*KB}")
                a(f"buffer_load_dword v31, v{HT}, s[8:11], s43 offen"); op(1)
            self.stamp(4)
            if OPT.get("t2e", 1):
                need("wo1"); tile(2); sig("t2_3")
                for p in range(3): self.seen.add(("H", f"t2_{p}"))
                need("xr"); flush(); wdw(range(0, 7))
                if it == 0: only(w3, pack_ready)
                need("xch")
            else:
                need("wo"); tile(2, range(0, 2)); sig("t2_0")
                need("xch")
                for p in range(1, 4): tile(2, range(2*p, 2*p + 2)); sig(f"t2_{p}")
            if OPT.get("t3g"): need(f"g{OPT['t3g']}")
            tile(3); sig("t3")
            for p, nm in enumerate(("g8", "g16", "g24", "g32")):
                need(nm); tile(4, range(2*p, 2*p + 2))
            sig("t4")
            tile(5); sig("t5"); tile(6); sig("t6")
            if it == 0: stash(9)
            if OPT.get("wlate", 1): flush()
            if OPT.get("codepf", 1) > 2 and it == 0: only(["s_cmp_eq_u32 s6, 0"], codepf)
            need("t3"); wdw(range(7, 15))
            if it == 0: stash(8)
            need("t4"); wdw(range(15, 23))
            flush(); hpub("w0")
            if it == 0: stash(56)
            if it == 1 and OPT.get("wb") == 1: only(["s_lshr_b32 s40, s2, 3", "s_lshl_b32 s40, s40, 2", "s_add_u32 s40, s40, s6", "s_cmp_eq_u32 s40, 0"], lambda: a("buffer_wbl2 sc1"))
            need("t5"); wdw(range(23, 31)); hpub("w23")
            need("t6"); wdw(range(31, 39)); hpub("w31")
            need("d7"); wdw(range(39, 46)); hpub("w39")
            if it == 0:
                need("d15"); wqp([WV], range(8))
                need("d23"); wqp([WK], range(4))
            if it == 1 and OPT.get("wb") == 2: only(["s_lshr_b32 s40, s2, 3", "s_lshl_b32 s40, s40, 2", "s_add_u32 s40, s40, s6", "s_cmp_eq_u32 s40, 0"], lambda: a("buffer_wbl2 sc1"))
            need("d33"); wdw(range(46, 56)); hpub("w46")
            if it == 0:
                wqp([WK], range(4, 8))
                need("d39"); wqp([WQ], range(2, 8))
            if it == 0:
                drain(); hpub("nkv")
                need("d56"); wqp([WQ], range(0, 2)); drain()
                a("s_mov_b32 s23, 16")
        self.finish()

    def count_poll(self, soff, T):
        a = self.a; l = self.lab(); d = self.lab()
        a("s_mov_b32 s41, 0")
        l0 = self.lab(); a(f"s_branch {l0}"); a(f"{l}:"); a("s_sleep 8"); a(f"{l0}:")
        a(f"buffer_load_dwordx2 {vr(T,2)}, off, s[12:15], {soff} sc1"); a("s_waitcnt vmcnt(0)")
        a(f"v_readfirstlane_b32 s42, v{T}"); a(f"v_readfirstlane_b32 s43, v{T+1}")
        a("s_add_u32 s41, s41, 1"); a(f"s_cmp_gt_u32 s41, {OPT['spin']}"); a(f"s_cbranch_scc1 {d}")
        a("s_add_u32 s40, s42, s43"); a("s_mul_i32 s40, s40, 0x01010101"); a("s_lshr_b32 s40, s40, 24")
        a("s_cmp_lg_u32 s40, 16"); a(f"s_cbranch_scc1 {l}")
        a(f"{d}:")

    def build(self):
        a = self.a
        self.prologue()
        a("s_cmp_ge_u32 s3, 4"); a("s_cbranch_scc1 L_helper")
        self.compute()
        a("L_helper:")
        self.helper()
        assert self.used <= self.seen, self.used - self.seen
        a("L_end:"); a("s_endpgm")
        for x in self.ool: a.raw(x)
        a.raw("L_code_end:"); a.raw("    s_endpgm")
        return a.text()

def build():
    body = Main().build()
    return f"""; generated by dev/gen10.py
; @launch grid=(256,1,1) block=(512,1,1) lds={160*KB}
.amdgcn_target "amdgcn-amd-amdhsa--gfx950"
.text
{body}
.section .rodata,"a"
.p2align 6
.amdhsa_kernel {NAME}
  .amdhsa_next_free_vgpr 256
  .amdhsa_next_free_sgpr 102
  .amdhsa_accum_offset 256
  .amdhsa_group_segment_fixed_size 0
  .amdhsa_kernarg_size 80
  .amdhsa_user_sgpr_count 2
  .amdhsa_user_sgpr_kernarg_segment_ptr 1
  .amdhsa_system_sgpr_workgroup_id_x 1
.end_amdhsa_kernel
"""

if __name__ == "__main__":
    for x in sys.argv[2:]:
        if "=" in x: kk, v = x.split("="); OPT[kk] = int(v)
        else: OPT[x] = True
    open(sys.argv[1], "w").write(build())
```

```python
import sys, struct
from asmlib import *

NAME = "interleave_layers__sliding_block__glu_gated_glu__prompt_kernel"
KB = 1024
MB = 1 << 20
WQP  = 0
CS   = 0x180000
FL   = 0x1A0000
KVFL = 0x1A4000
RF   = 0x1AC000
PFL  = RF + 2048
AR   = RF + 8192
WGU  = 2*MB
STA  = WGU + 3584*KB; STB = STA
XA   = 6*MB; XB = XA
KV   = 8*MB
KVT  = 4608
KVS  = 0
HF   = 8*MB
OF   = HF
WS_USED = 16*MB
ALS  = 128*MB
ITS  = 32*MB
TS   = 0x6000000
WS_BYTES = 0x10000000
LOG2E = 1.4426950408889634
def f32(x): return "0x%08x" % struct.unpack("<I", struct.pack("<f", x))[0]
MF = "v_mfma_f32_32x32x16_bf16"
OPT = dict(stamp=False, force_slow=False, spin=400000, pre=10, cprio=2, fine=0, pf=0, kvflag=24, rot=1, win=6, hsc1=1)

P1, P2, P3, P4, PE, MISC = 0, 32*KB, 64*KB, 96*KB, 128*KB, 156*KB
LK = 108*KB; LV = LK + 12*KB; HS = 24*KB
L_QB = MISC; L_AUG = MISC + 768; L_ONES = MISC + 3328; L_HL = MISC + 3712; L_CP = L_HL + 16; L_MODE = L_HL + 32; L_TAG = L_HL + 40; L_DUMMY = MISC + 3840
DG = [0, 23, 31, 39, 46]
DP = [7, 15, 23, 33, 39, 43, 56]
CSEQ = ["x0", "x", "kv", "kvs", "q", "h0", "att", "wo1", "wo", "xr", "xch", "g8", "g16", "g24", "g32", "t3", "t4", "t5", "t6"] + [f"d{s}" for s in DP] + ["dx"]
HSEQ = ["kv0", "kv1", "kv2", "kv3", "augkv", "wq", "augq", "hl", "wo", "gur", "t2_0", "t2_1", "t2_2", "t2_3", "t3", "t4", "t5", "t6"] + [f"w{s}" for s in DG] + ["nkv"]
CV = {n: i + 1 for i, n in enumerate(CSEQ)}; HV = {n: i + 1 for i, n in enumerate(HSEQ)}
assert max(len(CSEQ), len(HSEQ)) < 64
XCH_WO = PE; XCH_DN = PE
L_X0 = P4
L_REL_ = 0
def wd_slot(s):
    for lo, hi, reg in ((0, 7, PE), (7, 15, P3), (15, 23, P2), (23, 31, P4), (31, 39, P1), (39, 46, PE), (46, 54, P4), (54, 56, P1)):
        if lo <= s < hi: return reg + (s - lo)*4*KB
GU_REG = [P1, P4, P2, P3, P2, P4, P1]
RQ, RK, RV = P1, P2, P3
F_O1, F_O2, F_X1, F_H1, F_H2, F_X2 = 1, 2, 3, 7, 9, 10
STASH = 32

V_LANE16 = 3; V_F0 = 4
V_TQ = 6
V_XOFF = 8
V_RSTD = 10; V_STD = 11; V_C1 = 12; V_TMP = 13; V_TS = 14; V_TS2 = 15
V_XAUG = 16
V_PX = 20; V_PH = 21; V_AUGA = 22; V_OUT = 23
V_RES = 24
V_PUBA = 0; V_FA = 35; V_FLG = 1; V_BASE = 9
V_FW = 32
V_EP = 36
ACC = [40, 56, 72, 88]
WR = 96; NW = 8
XR = 128
T0 = 104

class VM:
    def __init__(self, a): self.a = a; self.q = []
    def issue(self, tag): self.q.append(tag)
    def wait(self, tag):
        idx = max((i for i, t in enumerate(self.q) if t == tag), default=-1)
        if idx < 0: return
        n = len(self.q) - 1 - idx; assert n <= 63
        self.a(f"s_waitcnt vmcnt({n})"); del self.q[:idx + 1]
    def drain(self):
        self.a("s_waitcnt vmcnt(0)"); self.q = []

def stats_calc_list(d0, tmp):
    L = [f"v_mov_b32 v{tmp}, 0", f"v_mov_b32 v{tmp+1}, 0"]
    for i in range(8):
        L.append(f"v_dot2_f32_bf16 v{tmp}, v{d0+i}, s20, v{tmp}")
        L.append(f"v_dot2_f32_bf16 v{tmp+1}, v{d0+i}, v{d0+i}, v{tmp+1}")
    L += ["s_nop 2", f"v_permlane32_swap_b32 v{tmp}, v{tmp+1}", "s_nop 1", f"v_add_f32 v{tmp}, v{tmp}, v{tmp+1}"]
    return L

class Main:
    DBARS = list(range(0, 56, 7))
    def __init__(self):
        self.a = Asm(); self.nl = 0
        self.seen = set(); self.used = set()
        self.role = None; self.pend_stamp = None; self.ool = []; self.nw = NW; self.wr = WR
    def lab(self): self.nl += 1; return f"L{self.nl}"
    def emit(self, x):
        if callable(x): x()
        else: self.a(x)
    def pub(self, name):
        self.a(f"v_add_u32 v{V_TMP}, {CV[name]}, v{V_BASE}"); self.a(f"ds_write_b32 v{V_PUBA}, v{V_TMP}")
        self.seen.add(("C", name))
    def gate_rd(self, src): self.a(f"ds_read_b32 v{V_FLG}, v{V_FA} offset:{0 if src == 'H' else 16}")
    def gate_cmp(self, name, src="H", absval=None):
        a = self.a
        n = (HV if src == "H" else CV)[name]
        if absval is not None: a(f"s_movk_i32 s39, {absval}")
        else: a(f"s_add_u32 s39, s7, {n}")
        a(f"v_cmp_gt_u32 s[30:31], s39, v{V_FLG}")
        self.used.add((src, name))
    def gate_br(self, src="H", redo=[]):
        a = self.a; l1 = self.lab(); l2 = self.lab()
        a("s_cmp_eq_u64 s[30:31], 0"); a(f"s_cbranch_scc1 {l2}")
        a(f"{l1}:")
        if OPT.get("csl"): a(f"s_sleep {OPT['csl']}")
        a("s_add_u32 s38, s38, 1"); a(f"s_cmp_gt_u32 s38, {OPT['spin']*16}"); a(f"s_cbranch_scc1 {l2}")
        a(f"ds_read_b32 v{V_FLG}, v{V_FA} offset:{0 if src == 'H' else 16}")
        for x in redo: a(x)
        a("s_waitcnt lgkmcnt(0)"); a(f"v_cmp_gt_u32 vcc, s39, v{V_FLG}"); a(f"s_cbranch_vccnz {l1}")
        a.pending.pop(l1, None)
        a(f"{l2}:")
    def gate_chk(self, name, src="H", absval=None):
        self.gate_cmp(name, src, absval); self.gate_br(src)
    def gate(self, name, src="H", absval=None):
        self.gate_rd(src); self.a("s_waitcnt lgkmcnt(0)"); self.gate_chk(name, src, absval)
    def stamp(self, i):
        if OPT.get("x_ref", 0) >= 100 and self.role == "C" and i == OPT["x_ref"] - 100:
            l = self.lab(); self.a("s_cmp_lg_u32 s22, 0"); self.a(f"s_cbranch_scc1 {l}"); self.a("s_memrealtime s[100:101]"); self.a(f"{l}:")
        if not OPT["stamp"]: return
        a = self.a
        a("s_memrealtime s[96:97]"); a("s_memtime s[98:99]"); a("s_waitcnt lgkmcnt(0)")
        if OPT.get("cnt"): a("s_lshl_b32 s98, s38, 12"); a("s_add_u32 s98, s98, s5")
        a(f"s_add_u32 s97, s23, {i}"); a(f"s_add_u32 m0, s97, s23"); a("s_nop 3")
        a(f"v_writelane_b32 v{V_TS}, s96, m0"); a(f"v_writelane_b32 v{V_TS2}, s98, m0")
    def store(self, instr, tag="st"):
        l1 = self.lab(); l2 = self.lab(); a = self.a
        if tag[0] == "h" and OPT.get("hsc1") == 1:
            a(instr + " sc1"); self.vm.issue(tag); return
        if tag[0] == "h" and OPT.get("hsc1") == 2:
            a("s_cmp_le_u32 s22, s21"); a(f"s_cbranch_scc1 {l1}"); a(instr); a(f"s_branch {l2}"); a(f"{l1}:"); a(instr + " sc1"); a(f"{l2}:")
            self.vm.issue(tag); return
        a("s_cmp_lg_u32 s21, 0"); a(f"s_cbranch_scc1 {l1}"); a(instr); a(f"{l2}:")
        a.pending.pop(l1, None)
        self.ool += [f"{l1}:", "    " + instr + " sc1", f"    s_branch {l2}"]
        self.vm.issue(tag)
    def flag(self, val, tag="st"):
        a = self.a
        a(f"s_add_u32 s40, s23, {val}"); a(f"v_mov_b32 v{V_TMP}, s40"); self.vm.wait(tag); a("s_mov_b64 exec, 1")
        self.store(f"buffer_store_dword v{V_TMP}, off, s[8:11], s24", "fl_st"); a("s_mov_b64 exec, -1")
    def peek(self, voff):
        self.a(f"buffer_load_dword v{V_OUT}, v{voff}, s[8:11], s26 offen sc1"); self.vm.issue("pk")
    def check(self, voff, val):
        a = self.a; d = self.lab()
        a(f"s_add_u32 s61, s23, {val}")
        self.vm.wait("pk")
        a(f"v_cmp_gt_u32 vcc, s61, v{V_OUT}"); a(f"s_cbranch_vccz {d}")
        self.poll(voff, "s26", "s61")
        a(f"{d}:")
    def acquire(self):
        a = self.a; l = self.lab()
        a("s_cmp_eq_u32 s21, 0"); a(f"s_cbranch_scc1 {l}"); a("buffer_inv sc1"); a("s_waitcnt vmcnt(0)"); a(f"{l}:")
    def poll(self, voff, sbase, sval, srd="s[8:11]", sleep=0):
        a = self.a; l = self.lab(); d = self.lab()
        a("s_mov_b32 s41, 0")
        if sleep and OPT.get("pplain", 0):
            l0 = self.lab(); a(f"buffer_load_dword v{V_TMP}, v{voff}, {srd}, {sbase} offen"); a(f"s_branch {l0}"); a(f"{l}:"); a(f"s_sleep {sleep}")
            a(f"buffer_load_dword v{V_TMP}, v{voff}, {srd}, {sbase} offen sc1"); a(f"{l0}:")
        else:
            if sleep:
                l0 = self.lab(); a(f"s_branch {l0}"); a(f"{l}:"); a(f"s_sleep {sleep}"); a(f"{l0}:")
            else: a(f"{l}:")
            a(f"buffer_load_dword v{V_TMP}, v{voff}, {srd}, {sbase} offen sc1")
        if OPT.get("cnt"): a("s_add_u32 s5, s5, 1")
        a("s_add_u32 s41, s41, 1"); a(f"s_cmp_gt_u32 s41, {OPT['spin']}"); a(f"s_cbranch_scc1 {d}")
        a("s_waitcnt vmcnt(0)")
        a(f"v_cmp_gt_u32 vcc, {sval}, v{V_TMP}")
        a(f"s_cbranch_vccnz {l}")
        a(f"{d}:")
    def poll2(self, voff, sbase, sval):
        N = OPT.get("pp", 1)
        if N == 1: return self.poll(voff, sbase, sval)
        a = self.a; l = self.lab(); d = self.lab()
        regs = [ACC[0] + i for i in range(N)]
        ld = lambda r: a(f"buffer_load_dword v{r}, v{voff}, s[8:11], {sbase} offen sc1")
        a("s_mov_b32 s41, 0")
        for n, r in enumerate(regs):
            ld(r)
            if n < N - 1: a(f"s_sleep {OPT.get('ppd', 2)}")
        a(f"{l}:")
        for r in regs:
            a(f"s_waitcnt vmcnt({N-1})"); a(f"v_cmp_gt_u32 vcc, {sval}, v{r}"); a(f"s_cbranch_vccz {d}"); ld(r)
        a("s_add_u32 s41, s41, 1"); a(f"s_cmp_le_u32 s41, {OPT['spin']}"); a(f"s_cbranch_scc1 {l}")
        a.pending.pop(l, None)
        a(f"{d}:")
    def dma(self, sbase, const, lds, voff=V_LANE16, fl="", srd="s[8:11]", sl="s25"):
        a = self.a
        a(f"s_add_u32 s40, {sbase}, {const}")
        a(f"s_add_u32 m0, {sl}, {lds}")
        a(f"buffer_load_dwordx4 v{voff}, {srd}, s40 offen{fl} lds")
    def touch_txt(self, items):
        l = self.lab()
        L = ["s_cmp_lg_u32 s21, 0", f"s_cbranch_scc1 {l}", f"v_lshlrev_b32 v{V_TMP}, 7, v2"]
        for sal, n in items:
            L += sal
            m = (1 << n) - 1
            L += [f"s_mov_b32 exec_lo, {m & 0xffffffff:#x}", f"s_mov_b32 exec_hi, {m >> 32:#x}", f"buffer_load_dword v{V_OUT}, v{V_TMP}, s[8:11], s43 offen sc1"]
        L += ["s_mov_b64 exec, -1", f"{l}:"]
        return "\n".join(L)
    def stream(self, steps, look, fill=None):
        a = self.a
        reads = []; need = []
        for s in steps:
            reads += s["reads"]; need.append(len(reads) - 1)
        per = 2 if any(r["op"].endswith("tr_b16") for r in reads) else 1
        pre_rd = {}; pre_cmp = {}
        for i, r in enumerate(reads):
            if r.get("gate"):
                pre_rd[max(0, i - look - per)] = i; pre_cmp[max(0, i - per)] = i
        ng = sum(1 for r in reads if r.get("gate"))
        assert len(pre_rd) == ng and len(pre_cmp) == ng
        gi = sorted(pre_rd.values())
        assert all(b - a_ > look + per for a_, b in zip(gi, gi[1:])), gi
        nr = 0; q = []; done = [0]; self._q = q
        def wait(tag):
            idx = q.index(tag)
            if idx < done[0]: return
            n = len(q) - 1 - idx; assert n <= 15, n
            a(f"s_waitcnt lgkmcnt({n})"); done[0] = idx + 1
        def issue():
            nonlocal nr
            r = reads[nr]
            if nr in pre_rd: self.gate_rd(reads[pre_rd[nr]].get("gsrc", "H")); q.append(("g", pre_rd[nr]))
            if nr in pre_cmp:
                g = reads[pre_cmp[nr]]
                wait(("g", pre_cmp[nr])); self.gate_cmp(g["gate"], g.get("gsrc", "H"), g.get("absval"))
            if r.get("gate"): self.gate_br(r.get("gsrc", "H"))
            if r.get("vm") is not None: self.vm.wait(r["vm"])
            n = 4 if r["op"] == "ds_read_b128" else 2
            fm = r["fam"]; off = r["off"]
            reg = fm[off >> 16] if isinstance(fm, list) else fm
            a(f"{r['op']} {vr(r['d'], n)}, v{reg} offset:{off & 0xffff}"); q.append(nr)
            if r.get("pub"): self.pub(r["pub"]); q.append(("p", nr))
            nr += 1
        for i, s in enumerate(steps):
            while nr < len(reads) and nr <= need[i] + (look if i == 0 else 0): issue()
            for x in s.get("pre", []): self.emit(x)
            wait(need[i + 1] if (s.get("pair") and i + 1 < len(steps)) else need[i])
            a(s["mf"])
            nxt = need[i + 1] if i + 1 < len(steps) else need[i]
            while nr < len(reads) and nr <= nxt + look: issue()
            for x in s.get("post", []): self.emit(x)
            if fill:
                for f in fill(i): self.emit(f)
            if self.pend_stamp: self.stamp(self.pend_stamp); self.pend_stamp = None
    def rd128(self, w, off, gate=None, pub=None): return [dict(op="ds_read_b128", d=w, fam=[V_F0, V_F0 + 1], off=off, gate=gate, pub=pub)]
    def rdtr(self, w, fam, off, d2, gate=None, pub=None, absval=None):
        return [dict(op="ds_read_b64_tr_b16", d=w, fam=fam, off=off, gate=gate, absval=absval), dict(op="ds_read_b64_tr_b16", d=w + 2, fam=fam, off=off + d2, pub=pub)]
    def tr_addr16(self, dst, t0, t1):
        a = self.a
        a(f"v_lshrrev_b32 v{t0}, 5, v2"); a(f"v_lshlrev_b32 v{dst}, 9, v{t0}")
        a(f"v_bfe_u32 v{t0}, v2, 2, 2"); a(f"v_lshl_add_u32 v{dst}, v{t0}, 6, v{dst}")
        a(f"v_bfe_u32 v{t0}, v2, 4, 1"); a(f"v_lshl_add_u32 v{dst}, v{t0}, 5, v{dst}")
        a(f"v_and_b32 v{t0}, 1, v2"); a(f"v_lshl_add_u32 v{dst}, v{t0}, 4, v{dst}")
        a(f"v_bfe_u32 v{t0}, v2, 1, 1"); a(f"v_lshl_add_u32 v{dst}, v{t0}, 3, v{dst}")

    def prologue(self):
        a = self.a
        a.raw(f".globl {NAME}"); a.raw(".p2align 8"); a.raw(f".type {NAME},@function"); a.raw(f"{NAME}:")
        a(f"s_cmp_ge_u32 s2, {0 if OPT.get('empty') else 256}"); a("s_cbranch_scc1 L_end")
        if OPT["stamp"] or OPT.get("x_dl2"): a("s_memrealtime s[100:101]")
        a("s_load_dwordx4 s[64:67], s[0:1], 0")
        a("s_load_dwordx2 s[8:9], s[0:1], 72")
        a("s_load_dwordx2 s[68:69], s[0:1], 16")
        a("s_load_dwordx8 s[72:79], s[0:1], 32")
        a("s_load_dwordx2 s[70:71], s[0:1], 64")
        a("v_lshrrev_b32 v1, 6, v0"); a("v_and_b32 v2, 63, v0")
        a("v_readfirstlane_b32 s3, v1")
        if OPT.get("codepf", 1):
            a("s_getpc_b64 s[42:43]")
            a.raw("L_pc:")
            a(f"s_sub_u32 s42, s42, L_pc-{NAME}"); a("s_subb_u32 s43, s43, 0")
            a("s_lshr_b32 s40, s2, 3"); a("s_lshl_b32 s40, s40, 11")
            a("v_lshlrev_b32 v10, 7, v2"); a("v_add_u32 v10, s40, v10"); a(f"v_min_u32 v10, L_code_end-{NAME}-4, v10")
            a("v_mov_b32 v11, s43"); a("v_add_co_u32 v10, vcc, s42, v10"); a("v_addc_co_u32 v11, vcc, 0, v11, vcc")
            a("s_cmp_lg_u32 s3, 6"); a("s_cbranch_scc1 L_nopf")
            a("s_mov_b64 exec, 0xffff"); a("global_load_dword v31, v[10:11], off"); a("s_mov_b64 exec, -1")
            a("L_nopf:")
        a(f"s_mov_b32 s10, {WS_BYTES}"); a("s_mov_b32 s11, 0x20000")
        a(f"v_lshlrev_b32 v{V_LANE16}, 4, v2")
        a("s_and_b32 s4, s2, 7"); a("s_lshr_b32 s5, s2, 3"); a("s_and_b32 s6, s3, 3")
        a("s_lshl_b32 s16, s4, 1"); a("s_lshr_b32 s40, s5, 4"); a("s_add_u32 s16, s16, s40")
        a("s_and_b32 s17, s5, 15")
        a("s_lshr_b32 s18, s17, 3"); a("s_and_b32 s19, s17, 7")
        a("s_mov_b32 s20, 0x3f803f80"); a("s_mov_b32 s21, 0"); a("s_mov_b32 s22, 0"); a("s_mov_b32 s23, 0")
        a("s_lshl_b32 s26, s16, 9"); a(f"s_add_u32 s26, s26, {FL}")
        a("s_lshl_b32 s24, s17, 5"); a("s_lshl_b32 s40, s3, 2"); a("s_add_u32 s24, s24, s40"); a("s_add_u32 s24, s24, s26")
        a("s_lshl_b32 s25, s6, 10")
        a("s_lshl_b32 s27, s16, 2"); a("s_add_u32 s27, s27, s6")
        if OPT["rot"]: a("s_add_u32 s28, s16, s17"); a("s_lshl_b32 s28, s28, 2"); a("s_and_b32 s28, s28, 31")
        else: a("s_mov_b32 s28, 0")
        a("s_mov_b32 s35, 0"); a("s_mov_b32 s36, 0")
        a(f"v_mov_b32 v{V_TS}, 0"); a(f"v_mov_b32 v{V_TS2}, 0")
        a("s_xor_b32 s40, s3, 4"); a("s_lshl_b32 s40, s40, 2"); a(f"s_add_u32 s40, s40, {L_HL}")
        a(f"v_lshlrev_b32 v{V_PUBA}, 2, v2"); a(f"v_add_u32 v{V_PUBA}, {L_DUMMY}, v{V_PUBA}"); a(f"v_writelane_b32 v{V_PUBA}, s40, 0")
        a(f"v_mov_b32 v{V_BASE}, 0"); a("s_mov_b32 s7, 0"); a("s_mov_b32 s38, 0")
        a(f"ds_write_b32 v{V_PUBA}, v{V_BASE}")
        a("s_waitcnt lgkmcnt(0)")
        if OPT.get("x_ref") == 1: a("s_memrealtime s[100:101]")
        a("s_barrier")
        if OPT.get("wsoff"):
            a(f"s_add_u32 s8, s8, {OPT['wsoff']*MB}"); a("s_addc_u32 s9, s9, 0"); a(f"s_mov_b32 s10, {WS_BYTES - OPT['wsoff']*MB}")

    def attention(self):
        KF = XR + 8; S = [XR + 44, XR + 60, XR + 76]; NM = [XR + 92, XR + 108]; MX = [XR + 124, XR + 125]; T = XR + 126
        O = [ACC[2], ACC[3]]; VA = ACC[1]; KA = VA + 9
        VF = [104, 112]; P = [120, ACC[0] + 8]; BM = ACC[0]; NEG = KA + 2
        t0, t1, t2, t3, t4 = (ACC[0] + 8 + i for i in range(5))
        L = [f"v_and_b32 v{t0}, 31, v2", f"v_lshrrev_b32 v{t1}, 5, v2",
             f"v_and_b32 v{KA}, 0x13, v{t0}", f"v_bfe_u32 v{t2}, v{t0}, 2, 1", f"v_lshl_add_u32 v{KA}, v{t2}, 3, v{KA}",
             f"v_bfe_u32 v{t2}, v{t0}, 3, 1", f"v_lshl_add_u32 v{KA}, v{t2}, 2, v{KA}",
             f"v_lshlrev_b32 v{KA}, 4, v{KA}", f"v_lshl_add_u32 v{KA}, v{t1}, 9, v{KA}",
             f"s_add_u32 s41, s25, {LK}\nv_add_u32 v{KA}, s41, v{KA}",
             f"v_bfe_u32 v{t2}, v2, 2, 2", f"v_lshl_add_u32 v{t2}, v{t1}, 3, v{t2}", f"v_lshlrev_b32 v{t2}, 4, v{t2}",
             f"v_and_b32 v{t3}, 1, v2", f"v_lshl_add_u32 v{t2}, v{t3}, 9, v{t2}",
             f"v_bfe_u32 v{t3}, v2, 1, 1", f"v_lshl_add_u32 v{t2}, v{t3}, 3, v{t2}",
             f"s_add_u32 s41, s25, {LV}\nv_add_u32 v{t2}, s41, v{t2}",
             f"v_bfe_u32 v{t3}, v2, 4, 1", f"v_xor_b32 v{t4}, 1, v{t3}",
             f"v_mul_u32_u24 v{KA+1}, {HS}, v{t4}", f"v_mul_u32_u24 v{VA}, v{t2}, v{t4}", f"v_mul_u32_u24 v{t2}, {L_ONES}, v{t3}", f"v_add_u32 v{VA}, v{VA}, v{t2}",
             f"v_lshlrev_b32 v{t4}, 10, v{t4}"]
        L += [f"v_add_u32 v{VA+i}, v{t4}, v{VA+i-1}" for i in range(1, 9)]
        l = self.lab()
        fx = ["s_cmp_ge_u32 s27, 8", f"s_cbranch_scc1 {l}", "s_sub_i32 s42, 8, s27", f"v_lshlrev_b32 v{t3}, 3, v{t3}"]
        for i in range(8): fx += [f"s_cmp_gt_i32 s42, {i}", "s_cselect_b32 s41, -1, 0", f"v_and_b32 v{t2}, s41, v{t3}", f"v_add_u32 v{VA+i}, v{t2}, v{VA+i}"]
        L.append("\n".join(fx + [f"{l}:"]))
        L += [f"v_mov_b32 v{t0}, 0xffff", f"v_mov_b32 v{t1}, 0xffff0000"]
        for p in range(8):
            L += [f"v_cndmask_b32_e64 v{t2}, v{t0}, 0, s[{64+4*p}:{65+4*p}]", f"v_cndmask_b32_e64 v{t3}, v{t1}, 0, s[{66+4*p}:{67+4*p}]", f"v_or_b32 v{BM+p}, v{t2}, v{t3}"]
        L += [f"v_mov_b32 v{NEG}, {f32(-1e30)}", f"v_mov_b32 v{NEG+1}, {f32(2.0**OPT.get('thr', 40))}", f"v_mov_b32 v{NEG+2}, {f32(2.0**-OPT.get('thr', 40))}"]
        return dict(KF=KF, S=S, NM=NM, O=O, VA=VA, VF=VF, P=P, BM=BM, MX=MX, T=T, KA=KA, NEG=NEG), L

    def attention_run(self, r, halo_k, halo_v, early_a, redo_a):
        a = self.a
        KF, S, NM, O, VA, VF, P, BM, MX, T, KA, NEG = (r[x] for x in "KF S NM O VA VF P BM MX T KA NEG".split())
        def kread(hh, i, d=None): a(f"ds_read_b128 {vr(KF+4*(i if d is None else d),4)}, v{KA} offset:{hh*HS + i*KB}")
        def vrd(reg, vf):
            for t in range(2):
                for u in range(2): a(f"ds_read_b64_tr_b16 {vr(vf+4*t+2*u,2)}, v{reg} offset:{t*256 + u*64}")
        def vread(hh, i, vf):
            vrd(VA + i, vf)
            if hh == 0: a(f"v_add_u32 v{VA+i}, v{KA+1}, v{VA+i}")
        def qk(hh, dst, i, c): a(f"{MF} {vr(dst,16)}, {vr(KF+4*i,4)}, {vr(XR+4*hh,4)}, {c}")
        def pv(hh, vf, p, t, first=False): a(f"{MF} {vr(O[hh],16)}, {vr(vf+4*t,4)}, {vr(p+4*t,4)}, {'0' if first else vr(O[hh],16)}")
        def mx(b, first=False):
            lo = 0
            if first:
                a(f"v_max3_f32 v{MX[0]}, v{b}, v{b+1}, v{b+2}"); a(f"v_max3_f32 v{MX[1]}, v{b+3}, v{b+4}, v{b+5}"); lo = 6
            for n, q in enumerate(range(lo, 16, 2)): a(f"v_max3_f32 v{MX[n%2]}, v{MX[n%2]}, v{b+q}, v{b+q+1}")
        def mxfin(hh):
            a(f"v_max_f32 v{MX[0]}, v{MX[0]}, v{MX[1]}"); a(f"v_mov_b32 v{MX[1]}, v{MX[0]}")
            a(f"v_permlane32_swap_b32 v{MX[0]}, v{MX[1]}"); a("s_nop 1"); a(f"v_max_f32 v{MX[0]}, v{MX[0]}, v{MX[1]}")
            for q in range(16): a(f"v_sub_f32 v{NM[hh]+q}, 0, v{MX[0]}")
        def mask(b, diag):
            for q in range(16):
                a(f"v_cndmask_b32_e64 v{b+q}, v{NEG}, v{b+q}, s[{64+2*q}:{65+2*q}]" if diag else f"v_cndmask_b32_e64 v{b+q}, v{b+q}, v{NEG}, s[{64+2*q}:{65+2*q}]")
        def ex(b, lo, hi):
            for q in range(lo, hi): a(f"v_exp_f32 v{b+q}, v{b+q}")
        def cv(p, b, lo, hi):
            for q in range(lo, hi): a(f"v_cvt_pk_bf16_f32 v{p+q}, v{b+2*q}, v{b+2*q+1}")
        def fin(hh, bad=None):
            a(f"v_rcp_f32 v{T}, v{O[hh]+8}")
            if bad:
                a(f"v_med3_f32 v{MX[0]}, v{O[hh]+8}, v{NEG+2}, v{NEG+1}"); a(f"v_cmp_neq_f32 vcc, v{O[hh]+8}, v{MX[0]}")
            for q in range(8): a(f"v_mul_f32 v{O[hh]+q}, v{T}, v{O[hh]+q}")
            if bad: a(f"s_cbranch_vccnz {bad}"); a.pending.pop(bad, None)
            for q in range(4): a(f"v_cvt_pk_bf16_f32 v{V_EP+q}, v{O[hh]+2*q}, v{O[hh]+2*q+1}")
            self.store(f"buffer_store_dwordx4 {vr(V_EP,4)}, v{V_LANE16}, s[8:11], s37 offen offset:{hh*KB}")
        vread(0, 8, VF[0]); vread(1, 8, VF[1])
        qk(0, S[0], 8, "0"); qk(1, S[1], 7, "0")
        halo_v()
        mx(S[0], True); mxfin(0); qk(0, S[0], 8, vr(NM[0], 16))
        mx(S[1], True); mxfin(1); qk(1, S[1], 7, vr(NM[1], 16))
        def diag(hh):
            ex(S[hh], 0, 16); cv(P[hh], S[hh], 0, 8)
            for q in range(8): a(f"v_bfi_b32 v{P[hh]+q}, v{BM+q}, 0, v{P[hh]+q}")
        diag(0)
        a("s_waitcnt lgkmcnt(0)")
        pv(0, VF[0], P[0], 0, True)
        if OPT["fine"] > 2: self.stamp(15)
        halo_k(lambda: pv(0, VF[0], P[0], 1))
        self.gate_rd("C")
        diag(1)
        a("s_waitcnt lgkmcnt(0)"); self.gate_cmp("q", "C")
        order = [7, 6, 5, 4, 3, 2, 1, 0]
        blocks = [(hh, i) for hh in range(2) for i in order]
        krs = [f"ds_read_b128 {vr(KF+4*i,4)}, v{KA} offset:{i*KB}" for i in order[:3]]
        pv(1, VF[1], P[1], 0, True)
        self.gate_br("C")
        self.gate_rd("H")
        for x in krs: a(x)
        pv(1, VF[1], P[1], 1)
        a("s_waitcnt lgkmcnt(3)"); self.gate_cmp("hl"); self.gate_br("H", redo=krs)
        self.stamp(3)
        for i in order[3:]: kread(0, i)
        a("s_waitcnt lgkmcnt(7)"); qk(0, S[0], 7, vr(NM[0], 16))
        a("s_waitcnt lgkmcnt(6)"); qk(0, S[1], 6, vr(NM[0], 16))
        F3 = (lambda i: self.stamp(i)) if OPT["fine"] > 2 else (lambda i: None)
        F3(16)
        kread(1, 7); kread(1, 6)
        pend = None
        for n, (hh, i) in enumerate(blocks):
            b = S[n % 3]; vf = VF[n % 2]; p = P[n % 2]
            ex(b, 0, 4)
            vread(hh, i, vf)
            if pend: pv(*pend)
            ex(b, 4, 10)
            kr = False
            if n + 2 < 16:
                h2, i2 = blocks[n + 2]
                if n == 0: a("s_waitcnt lgkmcnt(6)")
                qk(h2, S[(n + 2) % 3], i2, vr(NM[h2], 16))
                if h2 == 0: kread(1, i2); kr = True
            if n == OPT.get("pk", 15): self.peek(V_PH)
            ex(b, 10, 16)
            if n == 8: F3(17); fin(0, "L_redo0"); self.pub("h0"); F3(18)
            if n == OPT.get("fo1", 11): F3(19); self.flag(F_O1); F3(20)
            cv(p, b, 0, 8)
            if i == 0:
                for q in range(8): a(f"v_and_b32 v{p+q}, v{BM+q}, v{p+q}")
            a("s_waitcnt lgkmcnt(1)" if (kr or n == 8) else "s_waitcnt lgkmcnt(0)")
            pv(hh, vf, p, 0)
            pend = (hh, vf, p, 1)
        pv(*pend)
        fin(1, "L_redo1")
        self.pub("att")
        lb = self.lab(); lj = self.lab()
        a(f"s_add_u32 s61, s23, {F_O1}"); self.vm.wait("pk")
        a(f"v_cmp_gt_u32 vcc, s61, v{V_OUT}"); a(f"s_cbranch_vccz {lb}")
        qs = list(self.vm.q)
        a("L_att_late:")
        self.flag(F_O2); redo_a(a); a("s_waitcnt vmcnt(0)"); a(f"s_branch {lj}")
        a(f"{lb}:")
        self.vm.q = qs
        early_a()
        self.flag(F_O2)
        a(f"{lj}:")
        main = self.a; saved_q = list(self.vm.q)
        self.a = a = Asm(); self.vm.a = a
        def redo(hh):
            a("s_nop 15"); a("s_waitcnt vmcnt(0) lgkmcnt(0)")
            for i in range(9): kread(hh, i)
            a("s_waitcnt lgkmcnt(0)")
            a("s_sub_i32 s42, 8, s27")
            for i in (8, 0, 1, 2, 3, 4, 5, 6, 7):
                sk = self.lab()
                a(f"s_cmp_gt_i32 s42, {i}"); a(f"s_cbranch_scc1 {sk}")
                qk(hh, S[0], i, "0")
                if i in (0, 8): mask(S[0], i == 8)
                mx(S[0], i == 8)
                a(f"{sk}:")
            mxfin(hh)
            for i in (8, 0, 1, 2, 3, 4, 5, 6, 7):
                sk = self.lab()
                a(f"s_cmp_gt_i32 s42, {i}"); a(f"s_cbranch_scc1 {sk}")
                if hh == 0: a(f"v_sub_u32 v{T}, v{VA+i}, v{KA+1}")
                vrd(T if hh == 0 else VA + i, VF[0])
                qk(hh, S[0], i, vr(NM[hh], 16))
                if i in (0, 8): mask(S[0], i == 8)
                ex(S[0], 0, 16); cv(P[0], S[0], 0, 8)
                a("s_waitcnt lgkmcnt(0)")
                pv(hh, VF[0], P[0], 0, i == 8); pv(hh, VF[0], P[0], 1)
                a(f"{sk}:")
            fin(hh)
        a("L_redo0:")
        redo(0); self.pub("h0"); self.vm.q = ["st"]; self.flag(F_O1)
        a("L_redo1:")
        redo(1); self.pub("att")
        a("s_waitcnt vmcnt(0)"); a("s_branch L_att_late")
        self.ool += a.out
        self.a = main; self.vm.a = main; self.vm.q = saved_q

    def ln_stats(self, d):
        L = []
        for n in (8, 4, 2, 1):
            for i in range(n): L.append(f"v_add_f32 v{d+i}, v{d+i}, v{d+i+n}")
        L += [f"v_mov_b32 v{d+1}, v{d}", f"v_permlane32_swap_b32 v{d}, v{d+1}", "s_nop 1",
              f"v_mul_f32 v{d}, {f32(-1.0/512)}, v{d}", f"v_mul_f32 v{d+1}, {f32(1.0/512)}, v{d+1}",
              f"v_fma_f32 v{d+1}, -v{d}, v{d}, v{d+1}", f"v_max_f32 v{d+1}, 0, v{d+1}", f"v_add_f32 v{d+1}, {f32(1e-5)}, v{d+1}",
              f"v_rsq_f32 v{V_RSTD}, v{d+1}", f"v_sqrt_f32 v{V_STD}, v{d+1}",
              f"v_cvt_pk_bf16_f32 v{V_XAUG}, v{d}, v{d}",
              f"v_and_b32 v{d+2}, 0xffff0000, v{V_XAUG}", f"v_sub_f32 v{d+2}, v{d}, v{d+2}", f"v_mov_b32 v{d+3}, 0",
              f"v_cvt_pk_bf16_f32 v{V_XAUG+1}, v{d+2}, v{d+3}",
              f"v_cndmask_b32_e64 v{V_XAUG}, 0, v{V_XAUG}, s[62:63]", f"v_cndmask_b32_e64 v{V_XAUG+1}, 0, v{V_XAUG+1}, s[62:63]",
              f"v_mul_f32 v{V_C1}, {f32(-LOG2E)}, v{V_RSTD}"]
        return L
    def wreg(self):
        w = self.wr + 4 * (self.wc % self.nw); self.wc += 1; return w
    def aug_step(self, acc, augidx, bn=None, look=None):
        w = self.wreg()
        s = dict(reads=[dict(op="ds_read_b64", d=w, fam=V_AUGA, off=augidx * 256, gate=bn)], mf=f"{MF} {vr(acc,16)}, {vr(w,4)}, {vr(V_XAUG,4)}, {vr(acc,16)}")
        return s
    def x_pass1(self, xl, sst, local, wread, augs, augbar, NT=2):
        a = self.a; vm = self.vm
        PRE = OPT["pre"] if NT == 2 else OPT.get("pre3", OPT["pre"]); STD = ACC[NT]
        def X(kc):
            def f(): xl(kc); vm.issue(f"x{kc}")
            return f
        XS = STD + 4
        xslot = lambda p: [L_X0, L_X0 + 16*KB, L_X0 + 32*KB, RQ, RQ + 16*KB][p if p < 5 else p - 5]
        def piece(p):
            a(f"s_add_u32 s41, s28, {4*p}"); a("s_and_b32 s41, s41, 31"); a("s_lshl_b32 s41, s41, 5"); a("s_add_u32 s41, s41, s55")
            for i in range(4): self.dma("s41", i*8*KB, xslot(p) + i*KB, voff=XS + i%2, srd="s[44:47]", sl="s42"); vm.issue(f"pc{p}")
        def dots(lo, hi):
            for kc in range(lo, hi):
                for i in range(4):
                    r = XR + 4 * kc + i
                    a(f"v_dot2c_f32_bf16 v{STD + 2*(i%2)}, s20, v{r}"); a(f"v_dot2c_f32_bf16 v{STD + 1 + 2*(i%2)}, v{r}, v{r}")
        def xrd(p): return [dict(op="ds_read_b128", d=XR+16*p+4*q, fam=(XS+2+q if xslot(p) >= L_X0 else XS+6+q), off=(xslot(p) - L_X0 if xslot(p) >= L_X0 else xslot(p) - RQ), vm=(f"pc{p}" if q == 0 else None)) for q in range(4)]
        def piece_part(p, i):
            if i == 0: a(f"s_add_u32 s33, s28, {4*p}"); a("s_and_b32 s33, s33, 31"); a("s_lshl_b32 s33, s33, 5"); a("s_add_u32 s33, s33, s55")
            self.dma("s33", i*8*KB, xslot(p) + i*KB, voff=XS + i%2, srd="s[44:47]", sl="s42"); vm.issue(f"pc{p}")
        def fin0():
            dots(28, 32)
            a(f"v_add_f32 v{STD}, v{STD}, v{STD+2}"); a(f"v_add_f32 v{STD+1}, v{STD+1}, v{STD+3}")
            a(f"v_permlane32_swap_b32 v{STD}, v{STD+1}"); a("s_nop 1"); a(f"v_add_f32 v{STD}, v{STD}, v{STD+1}")
            for x in self.ln_stats(STD)[15:]: a(x)
        if local == "start":
            a(f"v_lshrrev_b32 v{XS+3}, 4, v2"); a(f"v_and_b32 v{XS}, 7, v2"); a(f"v_xor_b32 v{XS}, v{XS+3}, v{XS}"); a(f"v_lshlrev_b32 v{XS}, 4, v{XS}")
            a(f"v_lshrrev_b32 v{XS+3}, 3, v2"); a(f"v_lshl_add_u32 v{XS}, v{XS+3}, 10, v{XS}"); a(f"v_xor_b32 v{XS+1}, 64, v{XS}")
            a("s_lshl_b32 s42, s6, 12")
            a("s_waitcnt lgkmcnt(0)"); a("s_mov_b64 s[44:45], s[64:65]")
            piece(0)
            return
        if local:
            piece(1)
            if not OPT.get("p2l"): piece(2)
            for i in range(4): a(f"v_mov_b32 v{STD+i}, 0")
            a(f"v_bfe_u32 v{XS+2}, v2, 1, 3"); a(f"v_lshrrev_b32 v{XS+3}, 5, v2"); a(f"v_xor_b32 v{XS+2}, v{XS+3}, v{XS+2}"); a(f"v_lshlrev_b32 v{XS+2}, 4, v{XS+2}")
            a(f"v_and_b32 v{XS+3}, 31, v2"); a(f"v_lshl_add_u32 v{XS+2}, v{XS+3}, 7, v{XS+2}")
            a(f"s_add_u32 s41, s42, {L_X0}"); a(f"v_add_u32 v{XS+2}, s41, v{XS+2}")
            for q in range(1, 4): a(f"v_xor_b32 v{XS+2+q}, {32*q}, v{XS+2}")
            for q in range(4): a(f"v_subrev_u32 v{XS+6+q}, {L_X0 - RQ}, v{XS+2+q}")
        else:
            SP = OPT.get("sp", 6)
            for kc in range(SP): X(kc)()
            for i in range(4): a(f"buffer_load_dwordx4 {vr(STD+4*i,4)}, v{V_LANE16}, s[8:11], {sst} offen offset:{1024*i} sc1"); vm.issue("stt")
            for kc in range(SP, PRE): X(kc)()
        steps = []
        st = self.ln_stats(STD)
        xn = [PRE]; PMAX = OPT.get("pm3", PRE) if NT == 3 else OPT.get("pm2", PRE)
        for kc in range(32):
            for t in range(NT):
                w = self.wreg()
                s = dict(reads=wread(w, t, kc), mf=f"{MF} {vr(ACC[t],16)}, {vr(w,4)}, {vr(XR+4*kc,4)}, {'0' if kc == 0 else vr(ACC[t],16)}", post=[])
                if local:
                    p = kc // 4
                    if t == 0 and kc % 4 == 0:
                        s["reads"] = xrd(p) + s["reads"]
                        if p: s["pre"] = [lambda p=p: dots(4*p - 4, 4*p)]
                        if OPT["fine"] == 2: s["post"].append(lambda p=p: self.stamp(16 + p))
                    n8 = 2 * (kc % 4) + t
                    sched = ({0: (2, 3), 1: (4, 5), 2: (6, 7)} if OPT.get("p2l") else {0: (3, 4), 1: (5, 6), 2: (7, None)}).get(p, (None, None))[n8 // 4]
                    if sched is not None: s["post"].append(lambda sched=sched, n8=n8: piece_part(sched, n8 % 4))
                    if n8 == 7 and p == 2: s["post"].append(lambda: self.pub("x0"))
                    if n8 == 0 and p == 4: s["post"].append(lambda: self.pub("x"))
                    if t == 1 and kc == 31: s["post"].append(fin0)
                elif t == 0:
                    s["pre"] = [lambda kc=kc: vm.wait(f"x{kc}")]
                    if xn[0] < 32: s["post"].append(X(xn[0])); xn[0] += 1
                elif t == 1 and xn[0] < min(32, kc + 1 + PMAX):
                    s["post"].append(X(xn[0])); xn[0] += 1
                elif kc >= OPT.get("sp", 6) + 1:
                    s["post"] += st[:3]; st = st[3:]
                steps.append(s)
        assert local or not st
        for t in range(NT): steps.append(self.aug_step(ACC[t], augs[t], augbar if t == 0 else None))
        return steps

    def res_gemm(self, nsteps, slot, areg, aload, pre_issued, PRE, gates, pubs, xch, xpub, pre_x, hooks={}):
        a = self.a; vm = self.vm
        for i in range(8):
            a(f"v_lshlrev_b32 v{ACC[0]+2*i}, 16, v{V_RES+i}"); a(f"v_and_b32 v{ACC[0]+2*i+1}, 0xffff0000, v{V_RES+i}")
        a(f"v_xor_b32 v{V_EP}, 64, v{V_FW}"); a(f"v_add_u32 v{V_EP+1}, 0x10000, v{V_EP}"); a(f"v_add_u32 v{V_EP+2}, 0x20000, v{V_EP}")
        nxt = [pre_issued]
        def upto(n):
            while nxt[0] < min(n, nsteps): aload(nxt[0]); nxt[0] += 1
        steps = []; self.wc = 0; self.wr = WR; self.nw = NW
        fo = [V_FW, V_FW + 1, V_FW + 2]; ft = [V_EP, V_EP + 1, V_EP + 2]
        T = OPT.get("xt", 8)
        order = [(s, t) for s in range(nsteps - T) for t in range(2)] + [(s, 1) for s in range(nsteps - T, nsteps)] + [(s, 0) for s in range(nsteps - T, nsteps)]
        first = {}; last = {}
        for n, (s, t) in enumerate(order): first.setdefault(s, n); last[s] = n
        for n, (s, t) in enumerate(order):
            w = self.wreg()
            c = vr(ACC[t], 16) if (t == 0 or s > 0) else "0"
            st = dict(reads=self.rdtr(w, fo if t == 0 else ft, slot(s), 512, gates.get(s) if first[s] == n else None, pubs.get(s) if last[s] == n else None),
                      mf=f"{MF} {vr(ACC[t],16)}, {vr(w,4)}, {vr(areg(s),4)}, {c}")
            if OPT.get("x_b128") and nsteps == 56:
                r0, r1 = st["reads"]; st["reads"] = [dict(op="ds_read_b128", d=w, fam=[V_F0, V_F0 + 1, V_F0 + 1], off=slot(s) + t*KB, gate=r0.get("gate"), pub=r1.get("pub"))]
            if first[s] == n and s == pre_x[0]: st["reads"][0].update(gate=pre_x[1], gsrc="C")
            if first[s] == n: st["pre"] = ([lambda s=s: hooks[s](upto)] if s in hooks else []) + [lambda s=s: vm.wait(f"a{s}")]
            elif PRE: st["post"] = [lambda s=s: upto(s + 1 + PRE)]
            steps.append(st)
        a(f"s_xor_b32 s40, s6, 1"); a("s_lshl_b32 s40, s40, 12"); a(f"s_add_u32 s40, s40, {xch}"); a(f"v_add_u32 v{V_EP+3}, s40, v{V_LANE16}")
        rds = [f"ds_read_b128 {vr(ACC[2]+4*i,4)}, v{V_EP+3} offset:{i*KB}" for i in range(4)]
        def wr(i):
            a(f"ds_write_b128 v{V_EP+3}, {vr(ACC[1]+4*i,4)} offset:{i*KB}"); self._q.append(("x", i))
            if i == 3: self.pub(xpub); self._q.append(("x", 4)); a(f"v_xor_b32 v{V_EP+3}, 4096, v{V_EP+3}")
        o0 = len(steps) - T
        for i in range(4): steps[o0 + min(T - 1, 2 + i)].setdefault("post", []).append(lambda i=i: wr(i))
        self.stream(steps, look=5 if (OPT.get("x_b128") and nsteps == 56) else 10)
        if OPT["fine"] and nsteps == 56: self.stamp(9)
        self.gate_rd("C")
        for x in rds: a(x)
        a("s_waitcnt lgkmcnt(4)")
        self.gate_cmp(xpub, "C"); self.gate_br("C", redo=rds)
        for i in range(4):
            a(f"s_waitcnt lgkmcnt({3-i})")
            for q in range(4): a(f"v_add_f32 v{ACC[0]+4*i+q}, v{ACC[0]+4*i+q}, v{ACC[2]+4*i+q}")
            for q in range(2): a(f"v_cvt_pk_bf16_f32 v{V_RES+2*i+q}, v{ACC[0]+4*i+2*q}, v{ACC[0]+4*i+2*q+1}")

    def x_store(self, sx, sst, flagval):
        a = self.a; t = ACC[1]
        self.store(f"buffer_store_dwordx4 {vr(V_RES,4)}, v{V_LANE16}, s[8:11], {sx} offen")
        self.store(f"buffer_store_dwordx4 {vr(V_RES+4,4)}, v{V_LANE16}, s[8:11], {sx} offen offset:1024")
        for i in range(2): a(f"v_dot2_f32_bf16 v{t+2*i}, v{V_RES+i}, s20, 0"); a(f"v_dot2_f32_bf16 v{t+2*i+1}, v{V_RES+i}, v{V_RES+i}, 0")
        for i in range(2, 8): a(f"v_dot2_f32_bf16 v{t+2*(i%2)}, v{V_RES+i}, s20, v{t+2*(i%2)}"); a(f"v_dot2_f32_bf16 v{t+2*(i%2)+1}, v{V_RES+i}, v{V_RES+i}, v{t+2*(i%2)+1}")
        a(f"v_add_f32 v{t}, v{t}, v{t+2}"); a(f"v_add_f32 v{t+1}, v{t+1}, v{t+3}")
        a(f"v_permlane32_swap_b32 v{t}, v{t+1}"); a("s_nop 0"); a(f"v_add_f32 v{t}, v{t}, v{t+1}")
        self.store(f"buffer_store_dword v{t}, v{V_LANE16}, s[8:11], {sst} offen")
        self.flag(flagval)

    def compute(self):
        a = self.a; self.role = "C"; self.vm = vm = VM(a)
        a(f"s_setprio {OPT['cprio']}")
        a("v_and_b32 v104, 31, v2"); a("v_lshrrev_b32 v105, 5, v2")
        a(f"v_lshlrev_b32 v{V_XOFF}, 10, v104"); a(f"v_lshl_add_u32 v{V_XOFF}, v105, 4, v{V_XOFF}")
        a("s_lshl_b32 s55, s27, 15")
        a(f"s_mov_b32 s46, {2048*1024}"); a("s_mov_b32 s47, 0x20000")
        self.x_pass1(None, None, "start", None, None, None)
        a(f"s_mov_b32 s14, {2048*1024}"); a("s_mov_b32 s15, 0x20000")
        a("s_lshr_b32 s50, s6, 1"); a("s_and_b32 s51, s6, 1")
        a("s_lshl_b32 s48, s18, 1"); a("s_add_u32 s48, s48, s50"); a("s_mov_b32 s52, s48")
        a("s_lshl_b32 s40, s16, 2"); a("s_add_u32 s48, s48, s40")
        a("s_lshl_b32 s49, s19, 1"); a("s_add_u32 s49, s49, s51")
        a("s_lshl_b32 s53, s48, 15"); a("s_lshl_b32 s40, s49, 11"); a("s_add_u32 s53, s53, s40")
        a("s_lshl_b32 s54, s48, 12"); a("s_lshr_b32 s40, s49, 2"); a("s_lshl_b32 s40, s40, 10"); a("s_add_u32 s54, s54, s40")
        a("s_and_b32 s40, s49, 3"); a("s_lshl_b32 s40, s40, 2"); a("s_add_u32 s54, s54, s40")
        a(f"v_mov_b32 v{V_F0}, v{V_LANE16}"); a(f"v_add_u32 v{V_F0+1}, 0x10000, v{V_LANE16}")
        self.tr_addr16(V_TQ, 106, 107); a(f"v_add_u32 v{V_TQ+1}, 0x10000, v{V_TQ}")
        a(f"v_lshlrev_b32 v{V_FW}, 10, v105"); a("v_bfe_u32 v106, v2, 2, 2"); a(f"v_lshl_add_u32 v{V_FW}, v106, 7, v{V_FW}")
        a("v_bfe_u32 v106, v2, 3, 1"); a("v_xor_b32 v106, s51, v106"); a(f"v_lshl_add_u32 v{V_FW}, v106, 6, v{V_FW}")
        a(f"v_and_b32 v106, 63, v{V_TQ}"); a(f"v_add_u32 v{V_FW}, v106, v{V_FW}")
        a("s_lshl_b32 s40, s51, 11"); a(f"v_add_u32 v{V_FW}, s40, v{V_FW}")
        a(f"v_add_u32 v{V_FW+1}, 0x10000, v{V_FW}"); a(f"v_add_u32 v{V_FW+2}, 0x20000, v{V_FW}")
        a("v_bfe_u32 v106, v2, 1, 3"); a("v_and_b32 v107, 1, v2"); a("v_and_b32 v108, 7, v2")
        a("s_lshl_b32 s40, s50, 8"); a("s_lshl_b32 s41, s51, 3"); a("s_add_u32 s40, s40, s41")
        a(f"v_lshlrev_b32 v{V_PX}, 5, v106"); a(f"v_lshl_add_u32 v{V_PX}, v107, 2, v{V_PX}"); a(f"v_add_u32 v{V_PX}, s40, v{V_PX}")
        a("s_lshl_b32 s40, s51, 8"); a("s_lshl_b32 s41, s52, 2"); a("s_add_u32 s40, s40, s41")
        a(f"v_lshlrev_b32 v{V_PH}, 5, v108"); a(f"v_add_u32 v{V_PH}, s40, v{V_PH}")
        a(f"v_lshlrev_b32 v{V_AUGA}, 3, v104"); a(f"v_add_u32 v{V_AUGA}, {L_AUG}, v{V_AUGA}")
        a(f"v_mov_b32 v{V_XAUG+2}, 0"); a(f"v_mov_b32 v{V_XAUG+3}, 0")
        for r in range(WR, WR + 32, 4): a(f"v_mov_b32 v{r+2}, 0") if False else None
        a("v_cmp_gt_u32 s[62:63], 32, v2")
        a("v_lshlrev_b32 v106, 3, v105"); a("v_sub_u32 v106, v104, v106")
        a("s_mov_b64 s[12:13], s[78:79]")
        if OPT["stamp"]: a(f"v_writelane_b32 v{V_TS}, s100, 31")
        for r in range(16): a(f"v_cmp_le_i32 s[{64+2*r}:{65+2*r}], {16*(r>>3) + (r&7)}, v106")
        a(f"v_and_b32 v{V_FA}, 3, v2"); a(f"v_lshlrev_b32 v{V_FA}, 2, v{V_FA}"); a(f"v_add_u32 v{V_FA}, {L_HL}, v{V_FA}")
        self.stamp(0)
        ftq = [V_TQ, V_TQ + 1]
        self.wc = 0
        steps = self.x_pass1(None, None, True, lambda w, t, kc: self.rdtr(w, ftq, (RK, RV)[t] + kc*KB, 256, f"kv{kc//8}" if (t == 0 and kc % 8 == 0) else None, "kv" if (t == 1 and kc == 31) else None), [1, 2], "augkv")
        self.stream(steps, look=8)
        a(f"v_mov_b32 v{V_TMP}, {L_TAG}"); a(f"ds_read_b64 {vr(V_EP,2)}, v{V_TMP}"); a("s_waitcnt lgkmcnt(0)")
        a(f"v_readfirstlane_b32 s4, v{V_EP}"); a(f"v_readfirstlane_b32 s5, v{V_EP+1}")
        a("s_branch L_c_go")
        a("L_c_loop:")
        self.stamp(0)
        self.poll2(V_PX, "s26", "s57"); vm.q = []
        self.stamp(1)
        def xl(kc):
            if kc % 4 == 0: a(f"s_add_u32 s43, s55, {kc*KB}")
            a(f"buffer_load_dwordx4 {vr(XR+4*kc,4)}, v{V_LANE16}, s[8:11], s43 offen offset:{(kc%4)*KB} sc1")
        self.wc = 0
        steps = self.x_pass1(xl, "s56", False, lambda w, t, kc: self.rdtr(w, ftq, (RK, RV)[t] + kc*KB, 256, "nkv" if (t == 0 and kc == 0) else None,
                                                                          {(1, OPT.get("b1x", 22)): "x", (1, 31): "kv"}.get((t, kc)), HV["nkv"]), [1, 2], None)
        self.stream(steps, look=10)
        a("L_c_go:")
        if OPT["fine"]: self.stamp(14)
        steps = []
        korder = [19, 20, 21, 22, 2, 3, 4, 5, 6, 7, 9, 10] + [k for k in range(32) if k not in (19, 20, 21, 22, 2, 3, 4, 5, 6, 7, 9, 10)]
        for n, kc in enumerate(korder):
            w = self.wreg()
            steps.append(dict(reads=self.rdtr(w, ftq, RQ + kc*KB, 256),
                              mf=f"{MF} {vr(ACC[2],16)}, {vr(w,4)}, {vr(XR+4*kc,4)}, {'0' if n == 0 else vr(ACC[2],16)}"))
        self.gate_rd("H")
        steps.append(None)
        VC8 = ACC[3]; VCK = ACC[3] + 2
        a("s_lshl_b32 s58, s27, 4"); a("s_add_u32 s58, s58, s17"); a(f"s_mul_i32 s58, s58, {7*KB}"); a(f"s_add_u32 s58, s58, {HF + 2*KB}")
        if OPT.get("kv2"): a(f"s_mul_i32 s40, s22, {8*MB}"); a("s_add_u32 s58, s58, s40")
        a(f"s_add_u32 s40, s25, {LK + 8*KB}"); a(f"v_add_u32 v{V_OUT}, s40, v{V_LANE16}")
        a(f"v_lshlrev_b32 v{VC8}, 3, v2"); a(f"v_add_u32 v{VC8}, 4096, v{VC8}"); a(f"v_mov_b32 v{VCK}, s4"); a(f"v_mov_b32 v{VCK+1}, s5")
        def xor16(dst, regs):
            for n in range(0, 16, 2): self.a(f"v_bitop3_b32 v{dst}, v{dst}, v{regs[n]}, v{regs[n+1]} bitop3:0x96")
        F = []
        for t in range(2):
            A0 = ACC[t]
            for hh in range(2):
                F += [f"v_mul_f32 v{A0+r}, v{V_RSTD}, v{A0+r}" for r in range(8*hh, 8*hh + 8)]
                F += [f"v_cvt_pk_bf16_f32 v{A0+r}, v{A0+2*r}, v{A0+2*r+1}" for r in range(4*hh, 4*hh + 4)]
                F += [f"buffer_store_dwordx4 {vr(A0+4*hh,4)}, v{V_LANE16}, s[8:11], s58 offen offset:{(2*t + hh)*KB} sc1"]
                F += [f"v_bitop3_b32 v{VCK}, v{VCK}, v{A0+4*hh+n}, v{A0+4*hh+n+1} bitop3:0x96" for n in (0, 2)]
        F.append(f"buffer_store_dwordx2 {vr(VCK,2)}, v{VC8}, s[8:11], s58 offen sc1")
        NE = OPT.get("ne", 61)
        for x in F[:15]: a(x)
        a("s_waitcnt lgkmcnt(0)"); self.gate_cmp("wq")
        late = self.lab(); join = self.lab()
        a("s_cmp_eq_u64 s[30:31], 0"); a(f"s_cbranch_scc1 {join}")
        for x in F[15:]: a(x)
        self.gate_br("H")
        a("s_mov_b64 s[30:31], -1")
        a(f"{join}:")
        def rest():
            l = self.lab()
            a("s_cmp_lg_u64 s[30:31], 0"); a(f"s_cbranch_scc1 {l}")
            for x in EP2: a(x)
            a(f"{l}:")
        EP2 = F[15:]; F = []
        steps[0]["pre"] = [rest]
        if OPT["fine"] > 2: self.stamp(24)
        def lds(x):
            def f(): a(x); self._q.append(("u", id(f)))
            return f
        for hh in range(2):
            F.append(lds(f"ds_write_b128 v{V_OUT}, {vr(ACC[0]+4*hh,4)} offset:{hh*HS}"))
            F.append(lds(f"ds_write_b128 v{V_OUT}, {vr(ACC[1]+4*hh,4)} offset:{12*KB + hh*HS}"))
        r, SL = self.attention()
        F += [f"v_mov_b32 v{V_EP}, {L_MODE}", lds(f"ds_read_b32 v{V_EP}, v{V_EP}"), f"v_mul_f32 v{V_C1}, {f32(0.25*LOG2E)}, v{V_RSTD}"]
        F += SL[:10] + [lds(f"ds_read_b128 {vr(r['KF']+32,4)}, v{r['KA']} offset:{8*KB}"), lds(f"ds_read_b128 {vr(r['KF']+28,4)}, v{r['KA']} offset:{HS + 8*KB}")] + SL[10:]
        a("s_lshl_b32 s36, s16, 11"); a("s_lshl_b32 s41, s17, 7"); a("s_add_u32 s36, s36, s41"); a("s_lshl_b32 s41, s6, 2"); a("s_add_u32 s36, s36, s41"); a(f"s_add_u32 s36, s36, {KVFL}")
        def fill(i):
            out = []
            for _ in range(OPT.get("f2", 4)):
                if F and not (i < 12 and callable(F[0]) and len(F) <= len(SL) - 10 + 2): out.append(F.pop(0))
            return out
        steps[31]["reads"][1]["pub"] = "q"; steps[OPT.get("hld", 16)]["reads"][1]["pub"] = "kvs"
        XQ = ACC[3] + 4; wq_ = self.wreg()
        steps[-1] = dict(reads=[dict(op="ds_read_b128", d=wq_, fam=V_EP + 1, off=0, gate="augq")], mf=f"{MF} {vr(ACC[2],16)}, {vr(wq_,4)}, {vr(XQ,4)}, {vr(ACC[2],16)}")
        F[4:4] = [f"v_add_u32 v{V_EP+1}, {L_QB}, v{V_LANE16}", f"v_mov_b32 v{XQ}, v{V_XAUG}", f"v_mov_b32 v{XQ+1}, v{V_XAUG+1}", f"v_mov_b32 v{XQ+2}, v{V_XAUG}", f"v_mov_b32 v{XQ+3}, v{V_XAUG+1}",
                  f"v_permlane32_swap_b32 v{XQ}, v{XQ+2}", f"v_permlane32_swap_b32 v{XQ+1}, v{XQ+3}", f"s_nop 0\nv_mov_b32 v{XQ+2}, v{XQ}", f"v_mov_b32 v{XQ+3}, v{XQ+1}"]
        self.stream(steps, look=8, fill=fill)
        for x in F: self.emit(x)
        a("s_waitcnt lgkmcnt(0)")
        a(f"v_readfirstlane_b32 s21, v{V_EP}")
        a(f"s_mul_i32 s34, s21, {ALS}"); a("s_add_u32 s34, s34, s35")
        a(f"s_sub_u32 s37, s58, {2*KB}"); a("s_add_u32 s37, s37, s34")
        if OPT.get("kv2"): a(f"s_mul_i32 s40, s22, {8*MB}"); a("s_sub_u32 s37, s37, s40")
        a(f"s_mul_i32 s60, s48, {112*KB}"); a(f"s_mul_i32 s40, s51, {56*KB}"); a("s_add_u32 s60, s60, s40"); a(f"s_add_u32 s60, s60, {OF}"); a("s_add_u32 s60, s60, s34")
        self.stamp(2)
        for r_ in range(16): a(f"v_mul_f32 v{ACC[2]+r_}, v{V_C1}, v{ACC[2]+r_}")
        for r_ in range(8): a(f"v_cvt_pk_bf16_f32 v{XR+r_}, v{ACC[2]+2*r_}, v{ACC[2]+2*r_+1}")
        def halo_k(mid):
            mid()
        def after_k():
            l = self.lab()
            a("s_cmp_lg_u32 s22, 0"); a(f"s_cbranch_scc1 {l}")
            a("s_lshl_b32 s40, s48, 15"); a("s_lshl_b32 s41, s49, 6"); a("s_add_u32 s40, s40, s41")
            a(f"buffer_load_dwordx4 {vr(V_RES,4)}, v{V_XOFF}, s[44:47], s40 offen")
            a(f"buffer_load_dwordx4 {vr(V_RES+4,4)}, v{V_XOFF}, s[44:47], s40 offen offset:32")
            a(f"{l}:")
        oreg = lambda s: XR + 8 + 4 * s
        def al_o(s):
            a = self.a
            a(f"s_add_u32 s43, s60, {(s % 8)*7*KB}")
            a(f"buffer_load_dwordx4 {vr(oreg(s),4)}, v{V_LANE16}, s[8:11], s43 offen offset:{(s >> 3)*KB} sc1"); vm.issue(f"a{s}")
        def early_a():
            for s_ in range(8): al_o(s_)
        def redo_a(a2):
            a2(f"s_add_u32 s61, s23, {F_O1}"); self.poll(V_PH, "s26", "s61")
            for s_ in range(8): al_o(s_)
        self.attention_run(r, halo_k, after_k, early_a, redo_a)
        self.stamp(4)
        a(f"s_add_u32 s58, s53, {XA}"); a("s_add_u32 s58, s58, s35"); a(f"s_add_u32 s59, s54, {STA}"); a("s_add_u32 s59, s59, s35")
        def h_o(upto):
            self.check(V_PH, F_O2); self.stamp(5); upto(16)
            if OPT.get("wo1l", 1): self.pub("wo1"); self._q.append(("w1", 0))
        self.res_gemm(16, lambda s: RK + s*4*KB, oreg, al_o, 8, 0, {0: "wo"}, {} if OPT.get("wo1l", 1) else {7: "wo1"}, XCH_WO, "wo", (6, "att"),
                      hooks={OPT.get("opeek", 2): lambda u: self.peek(V_PH), 8: h_o})
        self.pub("xr")
        self.x_store("s58", "s59", F_X1)
        self.stamp(6)
        a(f"s_mul_i32 s60, s27, {112*KB}"); a(f"s_mul_i32 s40, s17, {7*KB}"); a("s_add_u32 s60, s60, s40"); a(f"s_add_u32 s60, s60, {HF}"); a("s_add_u32 s60, s60, s35")
        a("s_lshl_b32 s58, s27, 15"); a(f"s_add_u32 s58, s58, {XA}"); a("s_add_u32 s58, s58, s35")
        a("s_lshl_b32 s59, s27, 12"); a(f"s_add_u32 s59, s59, {STA}"); a("s_add_u32 s59, s59, s35")
        a(f"s_mul_i32 s29, s48, {112*KB}"); a(f"s_mul_i32 s40, s51, {56*KB}"); a("s_add_u32 s29, s29, s40"); a(f"s_add_u32 s29, s29, {HF}"); a("s_add_u32 s29, s29, s35")
        a(f"s_add_u32 s61, s23, {F_X1}")
        self.poll2(V_PX, "s26", "s61"); vm.q = []
        self.stamp(7)
        def xl2(kc):
            if kc % 4 == 0: a(f"s_add_u32 s43, s58, {kc*KB}")
            a(f"buffer_load_dwordx4 {vr(XR+4*kc,4)}, v{V_LANE16}, s[8:11], s43 offen offset:{(kc%4)*KB} sc1")
        self.wc = 0; self.wr = 104; self.nw = 6
        steps = self.x_pass1(xl2, "s59", False, lambda w, t, kc: self.rd128(w, GU_REG[t] + kc*KB, f"t2_{kc//8}" if (t == 0 and kc % 8 == 0 and (kc == 0 or not OPT.get("t2e", 1))) else None, f"g{kc+1}" if (t == 2 and kc % 8 == 7) else None), [3, 4, 5], None, NT=3)
        self.pub("xch")
        done = {t: len(steps) - 3 + t for t in range(3)}; start = {}
        accof = {t: ACC[t % 4] for t in range(7)}
        for t in range(3, 7):
            start[t] = len(steps)
            for kc in range(32):
                w = self.wreg()
                steps.append(dict(reads=self.rd128(w, GU_REG[t] + kc*KB, f"t{t}" if kc == 0 else None, f"t{t}" if kc == 31 else None),
                                  mf=f"{MF} {vr(accof[t],16)}, {vr(w,4)}, {vr(XR+4*kc,4)}, {'0' if kc == 0 else vr(accof[t],16)}", pair=(kc % 2 == 0 and OPT.get("pair", 1))))
            steps.append(self.aug_step(accof[t], 3 + t))
            done[t] = len(steps) - 1
        def epi(t):
            A0 = accof[t]; L = []
            if OPT.get("x_nofill"): return [lambda: (a(f"s_add_u32 s43, s60, {t*KB}"), self.store(f"buffer_store_dwordx4 {vr(V_EP,4)}, v{V_LANE16}, s[8:11], s43 offen", f"h{t}"))]
            L += [f"v_mul_f32 v{A0+r}, v{V_C1}, v{A0+r}" for r in range(8)]
            L += [f"v_exp_f32 v{A0+r}, v{A0+r}" for r in range(8)]
            L += [f"v_fma_f32 v{A0+r}, v{A0+r}, v{V_STD}, v{V_STD}" for r in range(8)]
            L += [f"v_rcp_f32 v{A0+r}, v{A0+r}" for r in range(8)]
            L += [f"v_mul_f32 v{A0+r}, v{A0+r}, v{A0+8+r}" for r in range(8)]
            L += [f"v_cvt_pk_bf16_f32 v{V_EP+r}, v{A0+2*r}, v{A0+2*r+1}" for r in range(4)]
            L += [lambda: (a(f"s_add_u32 s43, s60, {t*KB}"), self.store(f"buffer_store_dwordx4 {vr(V_EP,4)}, v{V_LANE16}, s[8:11], s43 offen", f"h{t}"))]
            return L
        hreg = lambda s: XR + 4 * (s % 32)
        def al_h(s):
            t, i = s // 8, s % 8
            if OPT.get("x_noh") and s >= 16: return
            if OPT.get("x_sameh"): t, i = 0, s % 2
            a(f"s_add_u32 s43, s29, {(7*i + t)*KB}"); a(f"buffer_load_dwordx4 {vr(hreg(s),4)}, v{V_LANE16}, s[8:11], s43 offen sc1"); vm.issue(f"a{s}")
        NP = OPT.get("np", 16)
        queue = []; flag_at = {}; T1 = OPT.get('t1', 3)
        def fill2(i):
            for t in range(7):
                if done[t] + 2 == i: queue.extend((x, t) for x in epi(t))
            out = []
            if i == 70:
                def pk2():
                    a(f"v_and_b32 v{V_EP}, 1, v2"); a(f"v_add_u32 v{V_EP}, 1, v{V_EP}"); a("s_sub_u32 s40, 15, s16"); a(f"v_min_u32 v{V_EP}, s40, v{V_EP}"); a(f"v_lshlrev_b32 v{V_EP}, 11, v{V_EP}")
                    a(f"buffer_load_dword v{V_OUT}, v{V_EP}, s[8:11], s36 offen sc1"); vm.issue("pk")
                out.append(pk2)
            if i == done[2] + 4:
                def ck2():
                    d = self.lab()
                    a("s_add_u32 s61, s22, 1"); vm.wait("pk")
                    a(f"v_cmp_gt_u32 vcc, s61, v{V_OUT}"); a(f"s_cbranch_vccz {d}")
                    self.poll(V_EP, "s36", "s61"); a(f"{d}:")
                out.append(ck2)
            if OPT["fine"] and i == done[2]: self.pend_stamp = 12
            if OPT["fine"] and i == done[4]: self.pend_stamp = 13
            for t2, sidx in start.items():
                if sidx == i + 1 and t2 >= 4:
                    while queue and queue[0][1] <= t2 - 4: out.append(queue.pop(0)[0])
            cost = 0; lim = OPT.get("fillc", 3)
            while queue and cost < lim:
                x, t = queue.pop(0); out.append(x)
                cost += 3 if callable(x) else 2 if x.startswith(("v_exp", "v_rcp")) else 1
                if callable(x) and t == T1: flag_at[i + OPT.get("fld", 13)] = (F_H1, t)
                if callable(x) and t == 4 and T1 == 2: flag_at[min(i + OPT.get("fld", 13), len(steps) - 1)] = (8, t)
            if i in flag_at: out.append(lambda v=flag_at[i]: self.flag(v[0], f"h{v[1]}"))
            k6 = i - start[6]
            if k6 == 31 - NP - 14: out.append(lambda: self.peek(V_PH))
            if k6 == 31 - NP: out.append(lambda: self.check(V_PH, F_H1))
            if 31 - NP < k6 <= 31: out.append(lambda s_=k6 - (32 - NP): al_h(s_))
            return out
        self.stream(steps, look=4, fill=fill2)
        assert flag_at and min(flag_at) < start[6], (flag_at, start)
        for x, _ in queue: self.emit(x)
        for x in epi(6): self.emit(x)
        self.stamp(8)
        a(f"s_add_u32 s58, s53, {XB}"); a("s_add_u32 s58, s58, s34"); a(f"s_add_u32 s59, s54, {STB}"); a("s_add_u32 s59, s59, s34")
        PD = OPT.get("pd", 14)
        hooks = {OPT.get("hflag", 5): lambda u: self.flag(F_H2, "h6"), 32 - PD - 8: lambda u: self.peek(V_PH), 32 - PD - 1: lambda u: self.check(V_PH, F_H2)}
        if T1 == 2:
            hooks = {OPT.get("hflag", 5): lambda u: self.flag(F_H2, "h6"), 24 - PD - 7: lambda u: self.peek(V_PH), 24 - PD - 1: lambda u: self.check(V_PH, 8),
                     40 - PD - 8: lambda u: self.peek(V_PH), 40 - PD - 1: lambda u: self.check(V_PH, F_H2)}
            assert len(hooks) == 5
        self.res_gemm(56, wd_slot, hreg, al_h, NP, PD, {s: f"w{s}" for s in DG}, {s - 1: f"d{s}" for s in DP},
                      XCH_DN, "dx", (52, "d43"), hooks=hooks)
        self.stamp(10)
        a("s_cmp_lg_u32 s22, 0"); a("s_cbranch_scc1 L_c_final")
        self.x_store("s58", "s59", F_X2)
        a("s_lshl_b32 s55, s27, 15"); a(f"s_add_u32 s55, s55, {XB}"); a("s_add_u32 s55, s55, s34")
        a("s_lshl_b32 s56, s27, 12"); a(f"s_add_u32 s56, s56, {STB}"); a("s_add_u32 s56, s56, s34")
        a(f"s_mov_b32 s57, {F_X2}")
        self.next_iter()
        a.fence()
        a("s_branch L_c_loop")
        a("L_c_final:")
        a("s_lshl_b32 s40, s48, 15"); a("s_lshl_b32 s41, s49, 6"); a("s_add_u32 s40, s40, s41")
        a(f"buffer_store_dwordx4 {vr(V_RES,4)}, v{V_XOFF}, s[12:15], s40 offen{['', ' sc1', ' nt', ' sc0 sc1'][OPT.get('osc', 0)]}")
        a(f"buffer_store_dwordx4 {vr(V_RES+4,4)}, v{V_XOFF}, s[12:15], s40 offen offset:32{['', ' sc1', ' nt', ' sc0 sc1'][OPT.get('osc', 0)]}")
        self.finish()

    def next_iter(self):
        a = self.a
        a("s_mov_b32 s22, 1"); a("s_mov_b32 s23, 16"); a("s_mov_b32 s7, 64"); a("s_add_u32 s4, s4, 1"); a(f"v_mov_b32 v{V_BASE}, 64")
        a(f"s_mul_i32 s35, s21, {ITS}")
    def finish(self):
        a = self.a
        if OPT.get("x_dl2") and self.role == "C":
            l = self.lab()
            a(f"{l}:"); a("s_memrealtime s[96:97]"); a("s_waitcnt lgkmcnt(0)"); a("s_sub_u32 s96, s96, s100")
            a(f"s_cmp_lt_u32 s96, {OPT['x_dl2']*100}"); a(f"s_cbranch_scc1 {l}")
        if OPT.get("x_deadline") and self.role == "C":
            l = self.lab()
            a(f"{l}:"); a("s_memrealtime s[96:97]"); a("s_waitcnt lgkmcnt(0)"); a("s_lshl_b32 s96, s96, 3"); a("s_sub_u32 s96, s96, s4")
            a(f"s_cmp_lt_u32 s96, {OPT['x_deadline']*800}"); a(f"s_cbranch_scc1 {l}")
        if OPT["stamp"]:
            a("s_waitcnt vmcnt(0)")
            self.stamp(11)
            a("s_lshl_b32 s40, s2, 12"); a("s_lshl_b32 s41, s3, 9"); a("s_add_u32 s40, s40, s41"); a(f"s_add_u32 s40, s40, {TS}")
            if OPT.get("dbgout") and self.role == "C":
                l = self.lab()
                a("s_lshl_b32 s41, s2, 3"); a("s_add_u32 s41, s41, s3"); a(f"s_cmp_lg_u32 s41, {OPT['dbgout']*8}"); a(f"s_cbranch_scc1 {l}")
                a("s_load_dwordx2 s[44:45], s[0:1], 64"); a("s_mov_b32 s46, 256"); a("s_mov_b32 s47, 0x20000")
                a(f"v_readlane_b32 s42, v{V_TS}, 31"); a("v_mov_b32 v41, 0")
                for n, idx in enumerate([0, 14, 3, 4, 7, 8, 10, 32+1, 32+14, 32+3, 32+4, 32+7, 32+8, 32+11]):
                    a(f"v_readlane_b32 s43, v{V_TS}, {idx}"); a("s_sub_u32 s43, s43, s42"); a("s_nop 3"); a(f"v_writelane_b32 v41, s43, {n}")
                a("v_lshlrev_b32 v40, 2, v2"); a("s_waitcnt lgkmcnt(0)"); a("s_mov_b64 exec, 0x3fff")
                a("buffer_store_dword v41, v40, s[44:47], 0 offen offset:8"); a("s_mov_b64 exec, -1")
                a(f"{l}:")
            a("v_lshlrev_b32 v40, 2, v2")
            a(f"buffer_store_dword v{V_TS}, v40, s[8:11], s40 offen"); a(f"buffer_store_dword v{V_TS2}, v40, s[8:11], s40 offen offset:256")
        a("s_endpgm")

    def helper(self):
        a = self.a; self.role = "H"; vm = VM(a)
        HV_QKV = 16; HV_ROW0 = 17; HV_OOB = 18; HV_PK = 19; HV_W = 20; HV_R128 = 23; HV_TQ = 24; HT = 26
        SQ, SO, SD, SG, SX, SDBG = "s[44:47]", "s[48:51]", "s[52:55]", "s[56:59]", "s[60:63]", "s[12:15]"
        HF_ = 25
        W = OPT.get("win", 8)
        st = dict(it=0); outq = []; sigs = []
        cnt = dict(issued=0, done=0)
        def hpub_txt(name):
            self.seen.add(("H", name))
            return [f"v_mov_b32 v{V_TMP}, {64*st['it'] + HV[name]}", f"ds_max_u32 v{V_PUBA}, v{V_TMP}"]
        def hpub(name):
            for x in hpub_txt(name): a(x)
        def retire(n):
            if n > cnt["done"]:
                k = cnt["issued"] - n; assert 0 <= k <= 63
                if cnt.get("ghost") and n <= cnt["ghost"][0]:
                    l = self.lab()
                    a(f"s_waitcnt vmcnt({k + cnt['ghost'][1]})"); a("s_cmp_lg_u32 s87, 0"); a(f"s_cbranch_scc1 {l}"); a(f"s_waitcnt vmcnt({k})"); a(f"{l}:")
                else: a(f"s_waitcnt vmcnt({k})")
                cnt["done"] = n
            last = None
            while sigs and sigs[0][1] <= cnt["done"]: last = sigs.pop(0)[0]; self.seen.add(("H", last))
            if last: hpub(last)
        def op(win=None):
            cnt["issued"] += 1
            retire(max(cnt["done"], cnt["issued"] - (W if win is None else win)))
        def sig(name):
            sigs.append((name, cnt["issued"])); retire(cnt["done"])
        def flush():
            while sigs: retire(sigs[0][1])
        def drain():
            retire(cnt["issued"])
        def need(name, src="C", it=None):
            l1 = self.lab(); l2 = self.lab(); l3 = self.lab()
            val = 64 * (st["it"] if it is None else it) + (CV if src == "C" else HV)[name]
            rd = f"ds_read_b32 v{V_FLG}, v{HF_} offset:{16 if src == 'C' else 0}"
            a(rd); a("s_waitcnt lgkmcnt(0)"); a(f"s_movk_i32 s39, {val}"); a(f"v_cmp_gt_u32 vcc, s39, v{V_FLG}"); a(f"s_cbranch_vccz {l2}")
            for nm, n in sigs:
                a(f"s_waitcnt vmcnt({cnt['issued'] - n})")
                for x in hpub_txt(nm): a(x)
            a(f"{l3}:"); a(f"s_sleep {OPT.get('hsl', 1)}"); a("s_add_u32 s38, s38, 1"); a(f"s_cmp_gt_u32 s38, {OPT['spin']*16}"); a(f"s_cbranch_scc1 {l2}")
            a(rd); a("s_waitcnt lgkmcnt(0)"); a(f"v_cmp_gt_u32 vcc, s39, v{V_FLG}"); a(f"s_cbranch_vccnz {l3}")
            a.pending.pop(l3, None)
            a(f"{l2}:")
            self.used.add((src, name))
        spq = []
        def tile(t, gs=range(8)):
            for g in gs: self.dma("s29", t*32*KB + g*4*KB, GU_REG[t] + g*4*KB, fl="" if OPT.get("wplain") else " sc1"); op()
        def wqkv(which, gs, win=None):
            for g in gs:
                a(f"s_add_u32 s41, s30, {4*g}"); a("s_and_b32 s41, s41, 31"); a("s_mul_i32 s41, s41, 49152"); a("s_add_u32 s41, s41, s31")
                for ci, reg in which:
                    self.dma("s41", ci*1024, reg + g*4*KB, voff=HV_QKV, srd=SQ)
                    if spq and g >= 2 and OPT.get("scoop", 4) in (1, 4):
                        def f():
                            for _ in range(OPT.get("scn", 2)):
                                if spq: a(spq.pop(0))
                        only(["s_cmp_lt_u32 s80, 2"], f)
                    op(win)
                if len(which) == 2 and g % 2 == 1: sig(f"kv{g//2}")
        def wqp(which, gs):
            for g in gs:
                for ci, reg in which: self.dma("s34", ci*32*KB + g*4*KB, reg + g*4*KB, fl="" if OPT.get("wplain") else " sc1"); op()
        WK = (1, RK); WV = (2, RV); WQ = (0, RQ)
        st_order = list(range(0, 7)) + list(range(31, 56)); st_reg = {s_: STASH + 4*n for n, s_ in enumerate(st_order)}
        st_reg.update({s_: 160 + 4*(s_ - 7) for s_ in range(7, 31)})
        st_q = list(st_order)[32 - OPT.get('nst', 32):]; st_idx = {}
        wd_off = lambda s_: (7*(s_ % 8) + s_ // 8)*16*KB
        def stash(n):
            for _ in range(n):
                if not st_q: break
                s_ = st_q.pop(0)
                a(f"s_add_u32 s40, s33, {wd_off(s_)}")
                a(f"buffer_load_dwordx4 {vr(st_reg[s_],4)}, v{HV_R128}, {SD}, s40 offen"); op(); st_idx[s_] = cnt["issued"]
        def wdw(steps):
            for s_ in steps:
                if s_ not in st_idx:
                    self.dma("s33", wd_off(s_), wd_slot(s_), voff=HV_R128, srd=SD); op(); continue
                retire(max(cnt["done"], st_idx[s_]))
                o = wd_slot(s_)
                a(f"ds_write_b128 v{HV_W + (o >> 16)}, {vr(st_reg[s_],4)} offset:{o & 0xffff}")
        SVR = {RK: 160, RV: 192, RQ: 224}
        def save(regs):
            for g in range(8):
                a(f"s_sub_u32 s40, {4*g}, s28"); a("s_and_b32 s40, s40, 31"); a("s_lshl_b32 s40, s40, 10"); a(f"v_add_u32 v{HT}, s40, v{HV_W}")
                if RV in regs: a(f"v_add_u32 v{HT+1}, s40, v{HV_W+1}")
                for r_ in regs: a(f"ds_read_b128 {vr(SVR[r_]+4*g,4)}, v{HT + (r_ >> 16)} offset:{r_ & 0xffff}")
                if g % 4 == 3: a("s_waitcnt lgkmcnt(0)")
        def restore(r_, gs):
            for g in gs:
                o = r_ + g*4*KB
                a(f"ds_write_b128 v{HV_W + (o >> 16)}, {vr(SVR[r_]+4*g,4)} offset:{o & 0xffff}")
        def only(cond_lines, fn):
            l = self.lab()
            for c in cond_lines: a(c)
            a(f"s_cbranch_scc0 {l}"); fn(); a(f"{l}:")
        a(f"v_lshrrev_b32 v{HT}, 2, v2"); a(f"v_mul_u32_u24 v{HV_QKV}, 3072, v{HT}"); a(f"v_and_b32 v{HT}, 3, v2"); a(f"v_lshl_add_u32 v{HV_QKV}, v{HT}, 4, v{HV_QKV}")
        a("s_add_u32 s30, s28, s6"); a("s_lshl_b32 s31, s17, 6")
        a(f"s_mov_b32 s46, {512*3072}"); a("s_mov_b32 s47, 0x20000")
        a("s_mov_b64 s[44:45], s[66:67]")
        if OPT["stamp"]: a(f"v_writelane_b32 v{V_TS}, s100, 31")
        a("s_mul_i32 s83, s2, 9363"); a("s_lshr_b32 s83, s83, 18")
        a("s_mul_i32 s40, s83, 28"); a("s_sub_u32 s84, s2, s40")
        a("s_mul_i32 s40, s84, 37"); a("s_lshr_b32 s40, s40, 8"); a("s_mul_i32 s41, s40, 7"); a("s_sub_u32 s41, s84, s41")
        a("s_lshl_b32 s41, s41, 3"); a("s_add_u32 s41, s41, s83"); a("s_lshl_b32 s40, s40, 6"); a("s_add_u32 s40, s40, s41"); a("s_lshl_b32 s40, s40, 3"); a(f"s_add_u32 s88, s40, {RF}")
        a("s_cmp_lt_u32 s2, 224"); a("s_cselect_b32 s88, s88, 0x7ff00000")
        a("s_lshl_b32 s89, s17, 8"); a("s_lshl_b32 s40, s16, 4"); a("s_add_u32 s89, s89, s40"); a(f"s_add_u32 s89, s89, {PFL}")
        def zero():
            def nonce():
                a("s_memrealtime s[42:43]"); a("s_mov_b64 s[12:13], s[70:71]"); a("s_mov_b32 s14, 256"); a("s_mov_b32 s15, 0x20000"); a("s_waitcnt lgkmcnt(0)")
                a("s_lshl_b64 s[42:43], s[42:43], 3"); a("s_or_b32 s43, s43, 0x80000000")
                a("v_mov_b32 v44, s42"); a("v_mov_b32 v45, s43")
                a("s_mov_b64 exec, 1"); a(f"buffer_store_dwordx2 v[44:45], off, {SDBG}, 0 sc1"); a("s_mov_b64 exec, -1")
            only(["s_cmp_eq_u32 s2, 0"], nonce)
            for r in range(4): a(f"v_mov_b32 v{40+r}, 0")
            a("s_sub_u32 s40, s24, 28")
            a("s_lshl_b32 s81, s16, 11"); a("s_lshl_b32 s41, s17, 7"); a("s_add_u32 s81, s81, s41"); a(f"s_add_u32 s81, s81, {KVFL}")
            a("s_mov_b64 exec, 1")
            a("buffer_store_dwordx4 v[40:43], off, s[8:11], s40 sc1"); a("buffer_store_dwordx4 v[40:43], off, s[8:11], s81 sc1")
            a("buffer_store_dwordx2 v[40:41], off, s[8:11], s88 sc1")
            a("s_mov_b64 exec, -1")
        only(["s_cmp_eq_u32 s6, 3"], zero)
        def codepf():
            a("s_mov_b64 exec, 0xffff"); a("global_load_dword v31, v[10:11], off"); a("s_mov_b64 exec, -1")
        def qtouch():
            a(f"v_lshrrev_b32 v{HT}, 3, v2"); a(f"v_mul_u32_u24 v{HT}, 3072, v{HT}"); a(f"v_and_b32 v{HT+1}, 7, v2"); a(f"v_lshl_add_u32 v{HT}, v{HT+1}, 7, v{HT}")
            a("s_mul_i32 s41, s2, 6144"); a("s_mov_b64 exec, 0xffff"); a(f"buffer_load_dword v31, v{HT}, {SQ}, s41 offen"); a("s_mov_b64 exec, -1")
        if not OPT.get("ct0"): only(["s_cmp_eq_u32 s6, 1"], qtouch)
        def c3q():
            a(f"v_and_b32 v{HT}, 15, v2"); a(f"v_mul_u32_u24 v{HT}, 3072, v{HT}"); a(f"v_lshrrev_b32 v{HT+1}, 4, v2"); a(f"v_lshl_add_u32 v{HT}, v{HT+1}, 10, v{HT}")
            a("s_lshr_b32 s41, s2, 3"); a("s_mul_i32 s41, s41, 49152"); a("s_add_u32 s41, s41, 384")
            a("s_mov_b32 exec_hi, 0xffff"); a(f"buffer_load_dword v31, v{HT}, {SQ}, s41 offen"); a("s_mov_b64 exec, -1")
        if OPT.get("c3", 2): only(["s_cmp_eq_u32 s6, 0"], c3q)
        def c3w(srd, n):
            a(f"v_lshlrev_b32 v{HT}, 10, v2"); a("s_lshr_b32 s41, s2, 3"); a(f"s_mul_i32 s41, s41, {n*1024}"); a("s_add_u32 s41, s41, 384")
            m = (1 << n) - 1
            a(f"s_mov_b32 exec_lo, {m & 0xffffffff:#x}"); a(f"s_mov_b32 exec_hi, {m >> 32:#x}"); a(f"buffer_load_dword v31, v{HT}, {srd}, s41 offen"); a("s_mov_b64 exec, -1")
        def tlb():
            st_ = OPT.get("tlbs", 2) * MB // 2
            a("s_mov_b64 s[42:43], s[8:9]")
            for p in range(WS_USED // st_):
                a("s_load_dword s94, s[42:43], 0"); a(f"s_add_u32 s42, s42, {st_}"); a("s_addc_u32 s43, s43, 0")
            for r in (68, 76, 78): a(f"s_load_dword s94, s[{r}:{r+1}], 0")
            a("s_load_dword s94, s[76:77], 0xffff0"); a("s_load_dword s94, s[78:79], 0xffff0")
        wqkv([WK, WV], range(0, 2), win=63)
        if OPT.get("ct0"):
            a(f"v_lshlrev_b32 v{HT}, 7, v2")
            def tw():
                a("s_mul_i32 s41, s2, 6144"); a("s_mov_b32 exec_hi, 0xffff"); a(f"buffer_load_dword v31, v{HT}, {SQ}, s41 offen"); a("s_mov_b64 exec, -1")
            def tx():
                a("s_mov_b64 s[56:57], s[64:65]"); a(f"s_mov_b32 s58, {2048*1024}"); a("s_mov_b32 s59, 0x20000")
                a("s_lshl_b32 s41, s16, 4"); a("s_add_u32 s41, s41, s17"); a("s_lshl_b32 s41, s41, 13"); a(f"buffer_load_dword v31, v{HT}, {SG}, s41 offen")
            only(["s_cmp_eq_u32 s6, 1"], tw); only(["s_cmp_eq_u32 s6, 0"], tx)
        if OPT.get("tlb", 0): only(["s_cmp_eq_u32 s6, 0"], tlb)
        a("s_mov_b64 s[12:13], s[70:71]"); a("s_mov_b32 s14, 256"); a("s_mov_b32 s15, 0x20000")
        a("s_mov_b64 s[48:49], s[68:69]"); a(f"s_mov_b32 s50, {512*1024}"); a("s_mov_b32 s51, 0x20000")
        a("s_mov_b64 s[52:53], s[76:77]"); a(f"s_mov_b32 s54, {1792*1024}"); a("s_mov_b32 s55, 0x20000")
        a(f"v_lshrrev_b32 v{HT}, 3, v2"); a(f"v_bfe_u32 v{HT+1}, v2, 4, 1"); a(f"v_lshlrev_b32 v{HT+1}, 2, v{HT+1}")
        a(f"v_and_b32 v{HT+2}, 7, v2"); a(f"v_xor_b32 v{HT+2}, v{HT+1}, v{HT+2}"); a(f"v_lshlrev_b32 v{HT+2}, 4, v{HT+2}")
        a(f"v_lshl_add_u32 v{HV_R128}, v{HT}, 10, v{HT+2}")
        a(f"v_mul_u32_u24 v{HT+3}, 3584, v{HT}"); a(f"v_add_u32 v{HT+3}, v{HT+3}, v{HT+2}")
        a("s_and_b32 s85, s83, 1"); a("s_lshr_b32 s86, s83, 1")
        if OPT.get("rl2", 0): a("s_add_u32 s80, s6, 3"); a("s_and_b32 s80, s80, 3")
        else: a("s_add_u32 s80, s6, 1"); a("s_cmp_eq_u32 s6, 0"); a("s_cselect_b32 s80, 0, s80"); a("s_cmp_eq_u32 s6, 3"); a("s_cselect_b32 s80, 1, s80")
        a("s_lshl_b32 s86, s86, 1"); a("s_add_u32 s86, s86, s80")
        a("s_cmp_eq_u32 s85, 0"); a("s_cselect_b64 s[56:57], s[72:73], s[74:75]"); a(f"s_mov_b32 s58, {512*3584}"); a("s_mov_b32 s59, 0x20000")
        a("s_cmp_lt_u32 s2, 224"); a("s_cselect_b32 s87, 1, 0"); a("s_cmp_lt_u32 s80, 2"); a("s_cselect_b32 s87, s87, 0")
        def rel_ld():
            a(f"s_mul_i32 s41, s86, {64*3584}"); a("s_lshl_b32 s40, s84, 7"); a("s_add_u32 s41, s41, s40")
            for o in range(8):
                a(f"buffer_load_dwordx4 {vr(128+4*o,4)}, v{HT+3}, {SG}, s41 offen")
                if o < 7: a(f"s_add_u32 s41, s41, {8*3584}")
        if OPT.get("rele"): only(["s_cmp_gt_u32 s87, 0"], rel_ld); cnt["ghost"] = (cnt["issued"], 8)
        def coop():
            a(f"v_lshlrev_b32 v{HT}, 7, v2"); a("s_lshl_b32 s41, s2, 13")
            only(["s_cmp_eq_u32 s6, 1"], lambda: a(f"buffer_load_dword v31, v{HT}, {SD}, s41 offen"))
            a("s_sub_u32 s41, 255, s2"); a("s_lshl_b32 s41, s41, 13")
            if OPT.get("scoop", 4) != 4: only(["s_cmp_eq_u32 s6, 2"], lambda: a(f"buffer_load_dword v31, v{HT}, {SO}, s41 offen"))
        a("s_lshl_b32 s32, s19, 7"); a("s_and_b32 s40, s6, 1"); a("s_lshl_b32 s40, s40, 13"); a("s_add_u32 s32, s32, s40")
        a("s_lshr_b32 s40, s6, 1"); a(f"s_mul_i32 s33, s40, {56*16*KB}"); a("s_add_u32 s33, s33, s32"); a("s_lshl_b32 s40, s40, 18"); a("s_add_u32 s32, s32, s40")
        a(f"s_mul_i32 s34, s17, {96*KB}"); a(f"s_add_u32 s34, s34, {WQP}"); a("s_add_u32 s34, s34, s25")
        a(f"s_mul_i32 s29, s17, {0 if OPT.get('x_samew') else 7*32*KB}"); a(f"s_add_u32 s29, s29, {WGU}"); a("s_add_u32 s29, s29, s25")
        a(f"v_lshrrev_b32 v{HT}, 5, v2"); a(f"v_lshlrev_b32 v{HV_ROW0}, 9, v{HT}")
        a(f"v_mov_b32 v{HV_OOB}, 0x7ff00000")
        a(f"v_and_b32 v{HT}, 1, v2"); a("s_sub_i32 s40, s16, 1"); a(f"v_sub_u32 v{HT}, s40, v{HT}")
        a(f"v_lshlrev_b32 v{HT+1}, 11, v{HT}"); a("s_lshl_b32 s40, s6, 2"); a(f"v_add_u32 v{HT+1}, s40, v{HT+1}")
        a(f"v_cmp_gt_i32 vcc, 0, v{HT}"); a(f"v_cndmask_b32_e64 v{HV_PK}, v{HT+1}, 0, vcc")
        a("s_lshl_b32 s82, s17, 7"); a(f"s_add_u32 s82, s82, {KVFL}")
        a(f"v_add_u32 v{HV_W}, s25, v{V_LANE16}"); a(f"v_add_u32 v{HV_W+1}, 0x10000, v{HV_W}"); a(f"v_add_u32 v{HV_W+2}, 0x20000, v{HV_W}")
        self.tr_addr16(HV_TQ, HT, HT + 1)
        a("s_lshl_b32 s40, s6, 15"); a(f"v_add_u32 v{HV_TQ}, s40, v{HV_TQ}")
        for r in range(4): a(f"v_mov_b32 v{64+r}, s20")
        a("v_mov_b32 v48, s20"); a("v_mov_b32 v49, s20"); a("v_mov_b32 v50, 0"); a("v_mov_b32 v51, 0"); a(f"v_mov_b32 v52, {L_ONES}")
        for o in (0, 64, 256, 320): a(f"ds_write_b128 v52, v[48:51] offset:{o}")
        def colsum(lo, hi, first, HV_TQ=HV_TQ):
            def rd(kc):
                w = 72 + 4 * (kc % 8)
                a(f"ds_read_b64_tr_b16 {vr(w,2)}, v{HV_TQ} offset:{kc*KB}"); a(f"ds_read_b64_tr_b16 {vr(w+2,2)}, v{HV_TQ} offset:{kc*KB+256}")
            for kc in range(lo, min(hi, lo + 6)): rd(kc)
            for kc in range(lo, hi):
                a(f"s_waitcnt lgkmcnt({2 * (min(hi, kc + 6) - kc - 1)})")
                a(f"{MF} v[112:127], v[64:67], {vr(72+4*(kc%8),4)}, {'0' if (first and kc == lo) else 'v[112:127]'}")
                if kc + 6 < hi: rd(kc + 6)
        def augfin(q4=False):
            a("v_cvt_pk_bf16_f32 v104, v112, v112"); a("v_and_b32 v107, 0xffff, v104")
            a("v_lshlrev_b32 v105, 16, v104"); a("v_sub_f32 v105, v112, v105"); a("v_cvt_pk_bf16_f32 v106, v112, v105")
            if q4: a("s_lshr_b32 s40, s6, 1"); a("s_lshl_b32 s40, s40, 9"); a("s_and_b32 s41, s6, 1"); a("s_lshl_b32 s41, s41, 3"); a("s_add_u32 s40, s40, s41"); a(f"s_add_u32 s40, s40, {L_QB}")
            else: a("s_lshl_b32 s40, s6, 8"); a(f"s_add_u32 s40, s40, {L_AUG}")
            a("v_and_b32 v108, 31, v2"); a(f"v_lshlrev_b32 v108, {4 if q4 else 3}, v108"); a("v_add_u32 v108, s40, v108")
            a("ds_write_b64 v108, v[106:107]"); a("s_waitcnt lgkmcnt(0)")
        kvw = ["s_sub_u32 s40, s6, 1", "s_cmp_lt_u32 s40, 2"]
        qw  = ["s_cmp_eq_u32 s6, 0"]
        w3  = ["s_cmp_eq_u32 s6, 3"]
        def spin_head(loads):
            l = self.lab(); d = self.lab(); l0 = self.lab()
            a("s_mov_b32 s41, 0")
            for x in loads: a(x + ("" if OPT.get("pplain", 0) else " sc1"))
            a(f"s_branch {l0}"); a(f"{l}:"); a("s_sleep 4")
            for x in loads: a(x + " sc1")
            a(f"{l0}:")
            a("s_add_u32 s41, s41, 1"); a(f"s_cmp_gt_u32 s41, {OPT['spin']}"); a(f"s_cbranch_scc1 {d}")
            a("s_waitcnt vmcnt(0)")
            return l, d
        def get_nonce():
            l, d = spin_head([f"buffer_load_dwordx2 {vr(HT,2)}, off, {SDBG}, 0"])
            a(f"v_readfirstlane_b32 s92, v{HT}"); a(f"v_readfirstlane_b32 s93, v{HT+1}")
            a("s_cmp_eq_u32 s93, 0"); a(f"s_cbranch_scc1 {l}"); a(f"{d}:")
        def arrive():
            a("s_waitcnt lgkmcnt(0)")
            only(["s_cmp_eq_u32 s93, 0"], get_nonce)
            a(f"v_mov_b32 v{HT}, s92"); a(f"v_mov_b32 v{HT+1}, s93"); a(f"v_mov_b32 v{HT+2}, {L_TAG}"); a(f"ds_write_b64 v{HT+2}, {vr(HT,2)}")
            a("s_getreg_b32 s40, hwreg(HW_REG_XCC_ID)"); a("s_and_b32 s40, s40, 7"); a("s_or_b32 s91, s40, s92")
            a(f"v_mov_b32 v{HT}, s91"); a(f"v_mov_b32 v{HT+1}, s93")
            a("s_lshl_b32 s40, s16, 7"); a("s_lshl_b32 s41, s17, 3"); a("s_add_u32 s40, s40, s41"); a(f"s_add_u32 s40, s40, {AR}")
            a("s_mov_b64 exec, 1"); a(f"buffer_store_dwordx2 {vr(HT,2)}, off, s[8:11], s40 sc1"); a("s_mov_b64 exec, -1")
        def nbr():
            a("v_lshlrev_b32 v248, 5, v2"); a(f"s_mov_b32 s42, {AR}")
            l, d = spin_head(["buffer_load_dwordx4 v[240:243], v248, s[8:11], s42 offen", "buffer_load_dwordx4 v[244:247], v248, s[8:11], s42 offen offset:16"])
            for q in range(4): a(f"v_xor_b32 v{240+2*q}, s91, v{240+2*q}"); a(f"v_xor_b32 v{241+2*q}, s93, v{241+2*q}")
            a("v_or3_b32 v240, v240, v242, v244"); a("v_or_b32 v240, v240, v246"); a("v_or3_b32 v241, v241, v243, v245"); a("v_and_b32 v249, -8, v240"); a("v_or3_b32 v241, v241, v247, v249")
            a("v_cmp_ne_u32 vcc, 0, v241"); a(f"s_cbranch_vccnz {l}"); a(f"{d}:")
            a("v_cmp_ne_u32 vcc, 0, v240"); a("s_lshl_b32 s40, s16, 2"); a("s_lshr_b64 s[42:43], vcc, s40"); a("s_and_b32 s40, s42, 15"); a("s_cselect_b32 s40, 1, 0")
            if OPT["force_slow"]: a("s_mov_b32 s40, 1")
            a(f"v_mov_b32 v{HT}, s40"); a(f"v_mov_b32 v{HT+1}, {L_MODE}"); a(f"ds_write_b32 v{HT+1}, v{HT}"); a("s_waitcnt lgkmcnt(0)")
        def rel_do():
            a("s_lshl_b32 s40, s80, 12"); a(f"s_add_u32 s40, s40, {P4 if OPT.get('rl2', 0) else 144*KB}"); a(f"v_add_u32 v45, s40, v{V_LANE16}")
            a(f"v_bfe_u32 v40, v2, 2, 2"); a("v_lshlrev_b32 v41, 7, v40"); a("v_lshrrev_b32 v40, 1, v40"); a("v_lshrrev_b32 v42, 5, v2"); a("v_xor_b32 v40, v40, v42")
            a("v_lshl_add_u32 v41, v40, 6, v41"); a(f"v_and_b32 v40, 63, v{HV_TQ}"); a("v_add_u32 v41, v41, v40"); a("v_add_u32 v41, s40, v41")
            for hf in range(2):
                for o in range(4): a(f"ds_write_b128 v45, {vr(128+16*hf+4*o,4)} offset:{o*KB}")
                for o in range(4):
                    a(f"ds_read_b64_tr_b16 {vr(72+16*hf+4*o,2)}, v41 offset:{o*KB}"); a(f"ds_read_b64_tr_b16 {vr(74+16*hf+4*o,2)}, v41 offset:{o*KB+512}")
                a("s_waitcnt lgkmcnt(0)")
            a("v_lshrrev_b32 v40, 4, v2"); a("v_lshlrev_b32 v40, 15, v40"); a("v_and_b32 v42, 15, v2"); a("v_lshl_add_u32 v40, v42, 4, v40")
            a("s_lshl_b32 s40, s84, 17"); a("s_lshl_b32 s41, s86, 12"); a("s_add_u32 s40, s40, s41"); a("s_lshl_b32 s41, s85, 8"); a("s_add_u32 s40, s40, s41"); a(f"s_add_u32 s40, s40, {WGU}")
            a("v_mov_b32 v43, 0"); a("v_mov_b32 v44, 0")
            a("s_waitcnt lgkmcnt(0)")
            for o in range(8): a(f"buffer_store_dwordx4 {vr(72+4*o,4)}, v40, s[8:11], s40 offen offset:{o*512} sc1")
            for i in range(32): a(f"v_dot2_f32_bf16 v{43+i%2}, v{72+i}, s20, v{43+i%2}")
            a("s_nop 2"); a("v_add_f32 v43, v43, v44")
            a("s_lshl_b32 s40, s86, 1"); a("s_add_u32 s40, s40, s85"); a(f"s_mul_i32 s40, s40, {1792*4}"); a("s_lshl_b32 s41, s84, 8"); a("s_add_u32 s40, s40, s41"); a(f"s_add_u32 s40, s40, {CS}")
            a("v_lshlrev_b32 v42, 2, v2")
            a("buffer_store_dword v43, v42, s[8:11], s40 offen sc1")
        def halo2(it):
            B0 = 40 if it == 0 else 176
            HO = B0 + 72; HA = B0 + 73
            if it == 0:
                a(f"v_mov_b32 v{HT}, {L_TAG}"); a(f"ds_read_b64 {vr(HT,2)}, v{HT}"); a("s_waitcnt lgkmcnt(0)")
                a(f"v_readfirstlane_b32 s92, v{HT}"); a(f"v_readfirstlane_b32 s93, v{HT+1}")
                for d in (1, 2):
                    a(f"s_add_u32 s{93+d}, s63, {HF + 2*KB - 4*d*112*KB}"); a(f"s_cmp_ge_u32 s16, {d}"); a(f"s_cselect_b32 s{93+d}, s{93+d}, 0x7ff00000"); a(f"s_cselect_b32 s{63+d}, -1, 0")
                a("s_lshl_b32 s82, s16, 11"); a("s_lshl_b32 s41, s17, 7"); a("s_add_u32 s82, s82, s41"); a("s_lshl_b32 s41, s6, 2"); a("s_add_u32 s82, s82, s41"); a(f"s_add_u32 s82, s82, {KVFL}")
            else: a("s_add_u32 s92, s92, 1")
            a(f"v_lshlrev_b32 v{HO}, 3, v2"); a(f"v_add_u32 v{HO}, 4096, v{HO}"); a(f"v_add_u32 v{HA}, {LK}, v{HV_W}")
            need("kvs")
            a(f"s_setprio {OPT.get('hp', 3)}")
            NA = OPT.get("na", 1)
            def regs(k): return [B0 + 36*k, B0 + 36*k + 16], [B0 + 36*k + 32, B0 + 36*k + 34]
            def ld(k):
                HB, HC = regs(k)
                for n in range(2):
                    for p in range(4): a(f"buffer_load_dwordx4 {vr(HB[n]+4*p,4)}, v{V_LANE16}, s[8:11], s{94+n} offen offset:{p*KB} sc1")
                    a(f"buffer_load_dwordx2 {vr(HC[n],2)}, v{HO}, s[8:11], s{94+n} offen sc1")
            l = self.lab(); oks = [self.lab() for _ in range(NA)]; done = self.lab()
            a("s_mov_b32 s41, 0")
            ld(0)
            if NA == 2: a(f"s_sleep {OPT.get('nas', 10)}"); ld(1)
            a(f"{l}:")
            for k in range(NA):
                HB, HC = regs(k)
                for n in range(2):
                    a(f"s_waitcnt vmcnt({10*(NA-1) + 5 - 5*n})")
                    for q in range(0, 16, 2): a(f"v_bitop3_b32 v{HC[n]}, v{HC[n]}, v{HB[n]+q}, v{HB[n]+q+1} bitop3:0x96")
                    a(f"v_xor_b32 v{HC[n]}, s92, v{HC[n]}"); a(f"v_xor_b32 v{HC[n]+1}, s93, v{HC[n]+1}")
                    a(f"v_or_b32 v{HC[n]}, v{HC[n]}, v{HC[n]+1}"); a(f"v_and_b32 v{HC[n]}, s{64+n}, v{HC[n]}")
                a(f"v_or_b32 v{HC[0]}, v{HC[0]}, v{HC[1]}"); a(f"v_cmp_ne_u32 vcc, 0, v{HC[0]}"); a(f"s_cbranch_vccz {oks[k]}")
                ld(k)
            a("s_add_u32 s41, s41, 1"); a(f"s_cmp_le_u32 s41, {OPT['spin']}"); a(f"s_cbranch_scc1 {l}"); a.pending.pop(l, None)
            a("s_waitcnt vmcnt(0)")
            for k in range(NA):
                HB, HC = regs(k)
                a(f"{oks[k]}:")
                for p in (0, 2, 1, 3):
                    for n in range(2): a(f"ds_write_b128 v{HA}, {vr(HB[n]+4*p,4)} offset:{(p&1)*HS + (p>>1)*12*KB + (4 - 4*n)*KB}")
                if k < NA - 1: a(f"s_branch {done}")
            a(f"{done}:")
            hpub("hl")
            a(f"v_mov_b32 v{HT}, {it + 1}"); a("s_mov_b64 exec, 1"); a(f"buffer_store_dword v{HT}, off, s[8:11], s82 sc1"); a("s_mov_b64 exec, -1")
            a("s_setprio 0")
            if it == 0 and OPT.get("sv", 0) == 1: save([RK, RV])
            if it == 0: save([RQ])
            need("hl", "H")
        def pack():
            a("s_lshl_b32 s40, s16, 1"); a("s_sub_u32 s41, s40, s28"); a("s_and_b32 s41, s41, 31"); a("s_lshl_b32 s41, s41, 10"); a("s_lshl_b32 s42, s6, 15"); a("s_add_u32 s41, s41, s42")
            a(f"v_add_u32 v160, s41, v{V_LANE16}")
            a("ds_read_b128 v[164:167], v160"); a("ds_read_b128 v[168:171], v160 offset:1024")
            a("s_lshl_b32 s41, s6, 15"); a("s_lshl_b32 s40, s40, 10"); a("s_add_u32 s41, s41, s40")
            a("s_add_u32 s41, s41, s34"); a("s_sub_u32 s41, s41, s25")
            a("s_mov_b32 s90, s41")
            a("s_waitcnt lgkmcnt(0)")
        def pack_st():
            a(f"buffer_store_dwordx4 v[164:167], v{V_LANE16}, s[8:11], s90 offen sc1"); a(f"buffer_store_dwordx4 v[168:171], v{V_LANE16}, s[8:11], s90 offen offset:1024 sc1")
        def rel_sig():
            a("s_lshl_b32 s40, s80, 2"); a("s_add_u32 s40, s40, s88")
            a(f"v_mov_b32 v{HT}, 1"); a("s_mov_b64 exec, 1"); a(f"buffer_store_dword v{HT}, off, s[8:11], s40 sc1"); a("s_mov_b64 exec, -1")
        def gu_ready():
            a("s_lshr_b32 s40, s17, 2"); a("s_lshl_b32 s40, s40, 9"); a(f"s_add_u32 s42, s40, {RF}")
            a(f"v_min_u32 v{HT+2}, 55, v2"); a(f"v_lshlrev_b32 v{HT+2}, 3, v{HT+2}")
            l, d = spin_head([f"buffer_load_dwordx2 {vr(HT,2)}, v{HT+2}, s[8:11], s42 offen"])
            a(f"v_and_b32 v{HT}, v{HT}, v{HT+1}"); a(f"v_cmp_ne_u32 vcc, 1, v{HT}"); a(f"s_cbranch_vccnz {l}"); a(f"{d}:")
        def pack_sig():
            a("s_lshl_b32 s40, s6, 2"); a("s_add_u32 s40, s40, s89")
            a(f"v_mov_b32 v{HT}, 1"); a("s_mov_b64 exec, 1"); a(f"buffer_store_dword v{HT}, off, s[8:11], s40 sc1"); a("s_mov_b64 exec, -1")
        def gu_aug():
            a("v_lshrrev_b32 v144, 5, v2"); a(f"v_mul_u32_u24 v145, {1792*4}, v144"); a("v_and_b32 v146, 31, v2"); a("v_min_u32 v146, 27, v146"); a("v_lshl_add_u32 v145, v146, 4, v145")
            a(f"s_mul_i32 s40, s17, {112*4}"); a(f"s_add_u32 s40, s40, {CS}")
            for p in range(8):
                a(f"buffer_load_dwordx4 {vr(112+4*p,4)}, v145, s[8:11], s40 offen sc1")
                if p < 7: a(f"s_add_u32 s40, s40, {2*1792*4}")
            a("v_lshrrev_b32 v147, 2, v146"); a("v_lshlrev_b32 v147, 8, v147"); a("v_lshl_add_u32 v147, v144, 7, v147"); a("v_and_b32 v148, 3, v146"); a("v_lshl_add_u32 v147, v148, 5, v147")
            a(f"v_add_u32 v147, {L_AUG + 768}, v147")
            a("s_waitcnt vmcnt(0)")
            for p in range(1, 8):
                for c in range(4): a(f"v_add_f32 v{112+c}, v{112+c}, v{112+4*p+c}")
            for c in range(4):
                a(f"v_cvt_pk_bf16_f32 v149, v{112+c}, v{112+c}"); a(f"v_and_b32 v{121+2*c}, 0xffff, v149")
                a("v_lshlrev_b32 v149, 16, v149"); a(f"v_sub_f32 v149, v{112+c}, v149"); a(f"v_cvt_pk_bf16_f32 v{120+2*c}, v{112+c}, v149")
            a("ds_write_b128 v147, v[120:123]"); a("ds_write_b128 v147, v[124:127] offset:16"); a("s_waitcnt lgkmcnt(0)")
        def pack_ready():
            a("s_lshl_b32 s42, s17, 8"); a(f"s_add_u32 s42, s42, {PFL}"); a("s_mov_b32 s43, 1")
            a(f"v_lshlrev_b32 v{HT}, 2, v2"); self.poll(HT, "s42", "s43", sleep=8)
        a(f"v_and_b32 v{HF_}, 3, v2"); a(f"v_lshlrev_b32 v{HF_}, 2, v{HF_}"); a(f"v_add_u32 v{HF_}, {L_HL}, v{HF_}")
        a("s_lshr_b32 s40, s6, 1"); a("s_lshl_b32 s41, s18, 1"); a("s_add_u32 s40, s40, s41"); a("s_lshl_b32 s41, s16, 2"); a("s_add_u32 s40, s40, s41")
        a("s_and_b32 s41, s6, 1"); a("s_lshl_b32 s42, s19, 1"); a("s_add_u32 s41, s41, s42")
        a("s_lshl_b32 s60, s40, 15"); a("s_lshl_b32 s42, s41, 11"); a("s_add_u32 s60, s60, s42")
        a("s_lshl_b32 s61, s40, 12"); a("s_lshr_b32 s42, s41, 2"); a("s_lshl_b32 s42, s42, 10"); a("s_add_u32 s61, s61, s42")
        a(f"s_mul_i32 s62, s27, {112*KB}"); a("s_lshl_b32 s42, s17, 11"); a("s_add_u32 s62, s62, s42")
        a(f"s_mul_i32 s63, s27, {112*KB}"); a(f"s_mul_i32 s42, s17, {7*KB}"); a("s_add_u32 s63, s63, s42")
        def touch(items):
            a(self.touch_txt([([f"s_add_u32 s43, {r}, {b}"], n) for r, b, n in items]).replace(f"v{V_OUT},", "v31,"))
        def ext():
            pass
        for it in range(2):
            st["it"] = it
            if it == 0:
                KW = OPT.get("kw", 4); RP = OPT.get("rp", 8)
                if OPT.get("scoop", 4):
                    a("s_and_b32 s40, s80, 1"); a("s_lshl_b32 s40, s40, 6"); a(f"s_mul_i32 s41, s2, {7*KB}"); a("s_add_u32 s41, s41, s40"); a("s_add_u32 s64, s52, s41"); a("s_addc_u32 s65, s53, 0")
                    a("s_lshl_b32 s41, s2, 11"); a("s_add_u32 s41, s41, s40"); a("s_add_u32 s66, s48, s41"); a("s_addc_u32 s67, s49, 0")
                    spq += [f"s_load_dword s95, s[66:67], {q*128}" for q in range(16)] + [f"s_load_dword s95, s[64:65], {q*128}" for q in range(56 if OPT.get("scoop", 4) != 4 else 0)]
                wqkv([WK, WV], range(2, 4), win=KW)
                retire(max(4, cnt["done"]))
                only(w3, lambda: a("s_load_dwordx2 s[92:93], s[70:71], 0"))
                wqkv([WK, WV], range(4, 6), win=KW)
                only(w3, arrive)
                wqkv([WK, WV], range(6, RP), win=KW)
                if not OPT.get("rele"): only(["s_cmp_gt_u32 s87, 0"], lambda: (need("x0") if OPT.get("relx", 0) else None, rel_ld())); cnt["ghost"] = (cnt["issued"], 8)
                wqkv([WK, WV], range(RP, 8), win=KW)
                only(kvw, lambda: (need("kv1", "H"), colsum(0, 16, True)))
                flush()
                if OPT.get("coope", 0): coop()
                self.stamp(9)
                only(kvw, lambda: (need("kv3", "H"), colsum(16, 32, False), augfin()))
                hpub("augkv")
                def spall():
                    while spq: a(spq.pop(0))
                QS = 32; RA = ["s_cmp_gt_u32 s87, 0"]
                if OPT.get("rl2", 0):
                    self.stamp(10)
                    need("x")
                    wqkv([WQ], range(0, 8), win=63)
                    only(w3, nbr)
                    drain(); hpub("wq")
                    only(qw, lambda: (need("wq", "H"), a("s_setprio 3"), colsum(0, 32, True), augfin()))
                    hpub("augq")
                    only(RA, lambda: (need("kv"), rel_do(), need("wq", "H"), a("s_waitcnt vmcnt(0)"), rel_sig()))
                    if OPT.get("scoop", 4) == 2: only(["s_cmp_ge_u32 s80, 2"], spall)
                else:
                    if OPT.get("sv", 0) == 0: save([RK, RV])
                    only(RA, lambda: (a("s_setprio 3"), a("s_waitcnt vmcnt(0)"), rel_do(), a("s_setprio 0")))
                    self.stamp(10)
                    need("x")
                    wqkv([WQ], range(0, 8), win=63)
                    only(w3, nbr)
                    drain(); hpub("wq")
                    need("wq", "H")
                    only(RA, rel_sig)
                    a(f"s_mul_i32 s40, s6, {24*KB}"); a(f"v_subrev_u32 v109, s40, v{HV_TQ}")
                    a("s_setprio 3"); colsum(0, 8, True, 109); augfin(True); a("s_setprio 0")
                    hpub("augq")
                    if OPT.get("scoop", 4) == 2: only(kvw, spall)
                self.stamp(12)
            else:
                need("x"); hpub("augq")
            if it == 0 and OPT.get("st_e"): coop(); stash(OPT["st_e"])
            self.stamp(14)
            halo2(it)
            self.stamp(2)
            if it == 0:
                a(f"v_mov_b32 v{V_TMP}, {L_MODE}"); a(f"ds_read_b32 v{V_TMP}, v{V_TMP}"); a("s_waitcnt lgkmcnt(0)"); a(f"v_readfirstlane_b32 s21, v{V_TMP}")
            if OPT.get("c3", 2) > 1:
                only(["s_cmp_eq_u32 s6, 2"], lambda: c3w(SO, 16))
                if it == 0: only(["s_cmp_eq_u32 s6, 1"], lambda: c3w(SD, 56))
            if OPT.get("tlate"):
                for g in range(OPT["tlate"]): self.dma("s32", (2*(g%8) + g//8)*16*KB, RK + g*4*KB, voff=HV_R128, srd=SO); op()
            if OPT.get("codepf", 1) > 1 and it == 0: only(["s_cmp_eq_u32 s6, 0"], codepf)
            touch([("s63", OF, 16), ("s60", XA, 16), ("s61", STA, 8)])
            if it == 0 and OPT.get("scoop", 4) in (0, 4) and not OPT.get("coope", 0) and not OPT.get("st_e"): coop()
            assert not spq
            self.stamp(3)
            for g in range(OPT.get("tlate", 0), 16):
                self.dma("s32", (2*(g%8) + g//8)*16*KB, RK + g*4*KB, voff=HV_R128, srd=SO); op()
                if it == 0 and not OPT.get("rel0", 1):
                    if g == 2: only(["s_cmp_gt_u32 s87, 0"], lambda: (a("s_waitcnt vmcnt(3)"), rel_do()))
                    if g == 3 + W: only(["s_cmp_gt_u32 s87, 0"], rel_sig)
            sig("wo")
            if it == 0:
                stash(OPT.get("st_0", 10)); flush()
                only(w3, gu_ready)
                hpub("gur"); need("gur", "H")
            self.stamp(5)
            need("q"); tile(0); tile(1, range(0, 3))
            if it == 0: stash(OPT.get("st_a", 0))
            need("h0"); tile(1, range(3, 8))
            if it == 0: only(w3, gu_aug); stash(OPT.get("st_b", 22))
            else:
                st_q += list(range(7, 31))[:OPT.get("st_1", 8)]; stash(24)
            if OPT.get("htouch", 0) > it: touch([("s63", HF, 56)])
            for n in range(OPT.get("pf1", 0) if it else OPT.get("pf0", 0)):
                if n == 0:
                    a("s_and_b32 s40, s16, 1"); a("s_lshl_b32 s41, s6, 1"); a("s_add_u32 s40, s40, s41"); a("s_lshl_b32 s40, s40, 13")
                    a("s_sub_u32 s43, s29, s25"); a("s_add_u32 s43, s43, s40"); a(f"v_lshlrev_b32 v{HT}, 7, v2")
                a(f"s_add_u32 s43, s43, {64*KB}")
                a(f"buffer_load_dword v31, v{HT}, s[8:11], s43 offen"); op(1)
            self.stamp(4)
            if OPT.get("t2e", 1):
                need("wo1"); tile(2); sig("t2_3")
                for p in range(3): self.seen.add(("H", f"t2_{p}"))
                need("xr"); flush(); wdw(range(0, 7))
                need("xch")
            else:
                need("wo"); tile(2, range(0, 2)); sig("t2_0")
                need("xch")
                for p in range(1, 4): tile(2, range(2*p, 2*p + 2)); sig(f"t2_{p}")
            if OPT.get("t3g"): need(f"g{OPT['t3g']}")
            tile(3); sig("t3")
            for p, nm in enumerate(("g8", "g16", "g24", "g32")):
                need(nm); tile(4, range(2*p, 2*p + 2))
            sig("t4")
            tile(5); sig("t5"); tile(6); sig("t6")
            if it == 0: stash(56)
            if it == 1 and OPT.get("wlate", 1): flush()
            need("t3"); wdw(range(7, 15))
            need("t4"); wdw(range(15, 23)); sig("w0")
            need("t5"); wdw(range(23, 31)); sig("w23")
            need("t6"); wdw(range(31, 39)); sig("w31")
            need("d7"); wdw(range(39, 46)); sig("w39"); flush()
            if it == 0:
                need("d15"); restore(RV, range(8))
                need("d23"); restore(RK, range(8))
            need("d33"); wdw(range(46, 56)); sig("w46"); flush()
            if it == 0:
                hpub("nkv")
                need("d39"); restore(RQ, range(2, 8))
                need("d56"); restore(RQ, range(0, 2))
                a("s_mov_b32 s23, 16")
        self.finish()

    def count_poll(self, soff, T):
        a = self.a; l = self.lab(); d = self.lab()
        a("s_mov_b32 s41, 0")
        l0 = self.lab(); a(f"s_branch {l0}"); a(f"{l}:"); a("s_sleep 8"); a(f"{l0}:")
        a(f"buffer_load_dwordx2 {vr(T,2)}, off, s[12:15], {soff} sc1"); a("s_waitcnt vmcnt(0)")
        a(f"v_readfirstlane_b32 s42, v{T}"); a(f"v_readfirstlane_b32 s43, v{T+1}")
        a("s_add_u32 s41, s41, 1"); a(f"s_cmp_gt_u32 s41, {OPT['spin']}"); a(f"s_cbranch_scc1 {d}")
        a("s_add_u32 s40, s42, s43"); a("s_mul_i32 s40, s40, 0x01010101"); a("s_lshr_b32 s40, s40, 24")
        a("s_cmp_lg_u32 s40, 16"); a(f"s_cbranch_scc1 {l}")
        a(f"{d}:")

    def build(self):
        a = self.a
        self.prologue()
        a("s_cmp_ge_u32 s3, 4"); a("s_cbranch_scc1 L_helper")
        self.compute()
        a("L_helper:")
        self.helper()
        assert self.used <= self.seen, self.used - self.seen
        a("L_end:"); a("s_endpgm")
        for x in self.ool: a.raw(x)
        a.raw("L_code_end:"); a.raw("    s_endpgm")
        return a.text()

def build():
    body = Main().build()
    return f"""; generated by dev/gen11.py
; @launch grid=(256,1,1) block=(512,1,1) lds={160*KB}
.amdgcn_target "amdgcn-amd-amdhsa--gfx950"
.text
{body}
.section .rodata,"a"
.p2align 6
.amdhsa_kernel {NAME}
  .amdhsa_next_free_vgpr 256
  .amdhsa_next_free_sgpr 102
  .amdhsa_accum_offset 256
  .amdhsa_group_segment_fixed_size 0
  .amdhsa_kernarg_size 80
  .amdhsa_user_sgpr_count 2
  .amdhsa_user_sgpr_kernarg_segment_ptr 1
  .amdhsa_system_sgpr_workgroup_id_x 1
.end_amdhsa_kernel
"""

if __name__ == "__main__":
    for x in sys.argv[2:]:
        if "=" in x: kk, v = x.split("="); OPT[kk] = int(v)
        else: OPT[x] = True
    open(sys.argv[1], "w").write(build())
```

```python
import sys, struct
from asmlib import *

NAME = "interleave_layers__sliding_block__glu_gated_glu__prompt_kernel"
KB = 1024
MB = 1 << 20
WQP  = 0
CS   = 0x180000
FL   = 0x1A0000
KVFL = 0x1A4000
RF   = 0x1AC000
PFL  = RF + 2048
AR   = RF + 8192
WGU  = 2*MB
STA  = WGU + 3584*KB; STB = STA
XA   = 6*MB; XB = XA
KV   = 8*MB
KVT  = 4608
KVS  = 0
HF   = 8*MB
OF   = HF
WS_USED = 16*MB
ALS  = 128*MB
ITS  = 32*MB
TS   = 0x6000000
WS_BYTES = 0x10000000
LOG2E = 1.4426950408889634
def f32(x): return "0x%08x" % struct.unpack("<I", struct.pack("<f", x))[0]
MF = "v_mfma_f32_32x32x16_bf16"
OPT = dict(stamp=False, force_slow=False, spin=400000, pre=10, cprio=2, fine=0, pf=0, kvflag=24, rot=1, win=6, hsc1=1)

P1, P2, P3, P4, PE, MISC = 0, 32*KB, 64*KB, 96*KB, 128*KB, 156*KB
LK = 108*KB; LV = LK + 12*KB; HS = 24*KB
L_QB = MISC; L_AUG = MISC + 768; L_ONES = MISC + 3328; L_HL = MISC + 3712; L_CP = L_HL + 16; L_MODE = L_HL + 32; L_TAG = L_HL + 40; L_DUMMY = MISC + 3840
DG = [0, 23, 31, 39, 46]
DP = [7, 15, 23, 33, 39, 43, 56]
CSEQ = ["x0", "x", "kv", "kvs", "q", "h0", "att", "wo1", "wo", "xr", "xch", "g8", "g16", "g24", "g32", "t3", "t4", "t5", "t6"] + [f"d{s}" for s in DP] + ["dx"]
HSEQ = ["kv0", "kv1", "kv2", "kv3", "augkv", "wq", "augq", "hl", "wo", "gur", "t2_0", "t2_1", "t2_2", "t2_3", "t3", "t4", "t5", "t6"] + [f"w{s}" for s in DG] + ["nkv"]
CV = {n: i + 1 for i, n in enumerate(CSEQ)}; HV = {n: i + 1 for i, n in enumerate(HSEQ)}
assert max(len(CSEQ), len(HSEQ)) < 64
XCH_WO = PE; XCH_DN = PE
L_X0 = P4
L_REL_ = 0
def wd_slot(s):
    for lo, hi, reg in ((0, 7, PE), (7, 15, P3), (15, 23, P2), (23, 31, P4), (31, 39, P1), (39, 46, PE), (46, 54, P4), (54, 56, P1)):
        if lo <= s < hi: return reg + (s - lo)*4*KB
GU_REG = [P1, P4, P2, P3, P2, P4, P1]
RQ, RK, RV = P1, P2, P3
F_O1, F_O2, F_X1, F_H1, F_H2, F_X2 = 1, 2, 3, 7, 9, 10
STASH = 32

V_LANE16 = 3; V_F0 = 4
V_TQ = 6
V_XOFF = 8
V_RSTD = 10; V_STD = 11; V_C1 = 12; V_TMP = 13; V_TS = 14; V_TS2 = 15
V_XAUG = 16
V_PX = 20; V_PH = 21; V_AUGA = 22; V_OUT = 23
V_RES = 24
V_PUBA = 0; V_FA = 35; V_FLG = 1; V_BASE = 9
V_FW = 32
V_EP = 36
ACC = [40, 56, 72, 88]
WR = 96; NW = 8
XR = 128
T0 = 104

class VM:
    def __init__(self, a): self.a = a; self.q = []
    def issue(self, tag): self.q.append(tag)
    def wait(self, tag):
        idx = max((i for i, t in enumerate(self.q) if t == tag), default=-1)
        if idx < 0: return
        n = len(self.q) - 1 - idx; assert n <= 63
        self.a(f"s_waitcnt vmcnt({n})"); del self.q[:idx + 1]
    def drain(self):
        self.a("s_waitcnt vmcnt(0)"); self.q = []

def stats_calc_list(d0, tmp):
    L = [f"v_mov_b32 v{tmp}, 0", f"v_mov_b32 v{tmp+1}, 0"]
    for i in range(8):
        L.append(f"v_dot2_f32_bf16 v{tmp}, v{d0+i}, s20, v{tmp}")
        L.append(f"v_dot2_f32_bf16 v{tmp+1}, v{d0+i}, v{d0+i}, v{tmp+1}")
    L += ["s_nop 2", f"v_permlane32_swap_b32 v{tmp}, v{tmp+1}", "s_nop 1", f"v_add_f32 v{tmp}, v{tmp}, v{tmp+1}"]
    return L

class Main:
    DBARS = list(range(0, 56, 7))
    def __init__(self):
        self.a = Asm(); self.nl = 0
        self.seen = set(); self.used = set()
        self.role = None; self.pend_stamp = None; self.ool = []; self.nw = NW; self.wr = WR
    def lab(self): self.nl += 1; return f"L{self.nl}"
    def emit(self, x):
        if callable(x): x()
        else: self.a(x)
    def pub(self, name):
        self.a(f"v_add_u32 v{V_TMP}, {CV[name]}, v{V_BASE}"); self.a(f"ds_write_b32 v{V_PUBA}, v{V_TMP}")
        self.seen.add(("C", name))
    def gate_rd(self, src): self.a(f"ds_read_b32 v{V_FLG}, v{V_FA} offset:{0 if src == 'H' else 16}")
    def gate_cmp(self, name, src="H", absval=None):
        a = self.a
        n = (HV if src == "H" else CV)[name]
        if absval is not None: a(f"s_movk_i32 s39, {absval}")
        else: a(f"s_add_u32 s39, s7, {n}")
        a(f"v_cmp_gt_u32 s[30:31], s39, v{V_FLG}")
        self.used.add((src, name))
    def gate_br(self, src="H", redo=[]):
        a = self.a; l1 = self.lab(); l2 = self.lab()
        a("s_cmp_eq_u64 s[30:31], 0"); a(f"s_cbranch_scc1 {l2}")
        a(f"{l1}:")
        if OPT.get("csl"): a(f"s_sleep {OPT['csl']}")
        a("s_add_u32 s38, s38, 1"); a(f"s_cmp_gt_u32 s38, {OPT['spin']*16}"); a(f"s_cbranch_scc1 {l2}")
        a(f"ds_read_b32 v{V_FLG}, v{V_FA} offset:{0 if src == 'H' else 16}")
        for x in redo: a(x)
        a("s_waitcnt lgkmcnt(0)"); a(f"v_cmp_gt_u32 vcc, s39, v{V_FLG}"); a(f"s_cbranch_vccnz {l1}")
        a.pending.pop(l1, None)
        a(f"{l2}:")
    def gate_chk(self, name, src="H", absval=None):
        self.gate_cmp(name, src, absval); self.gate_br(src)
    def gate(self, name, src="H", absval=None):
        self.gate_rd(src); self.a("s_waitcnt lgkmcnt(0)"); self.gate_chk(name, src, absval)
    def stamp(self, i):
        if OPT.get("x_ref", 0) >= 100 and self.role == "C" and i == OPT["x_ref"] - 100:
            l = self.lab(); self.a("s_cmp_lg_u32 s22, 0"); self.a(f"s_cbranch_scc1 {l}"); self.a("s_memrealtime s[100:101]"); self.a(f"{l}:")
        if not OPT["stamp"]: return
        a = self.a
        a("s_memrealtime s[96:97]"); a("s_memtime s[98:99]"); a("s_waitcnt lgkmcnt(0)")
        if OPT.get("cnt"): a("s_lshl_b32 s98, s38, 12"); a("s_add_u32 s98, s98, s5")
        a(f"s_add_u32 s97, s23, {i}"); a(f"s_add_u32 m0, s97, s23"); a("s_nop 3")
        a(f"v_writelane_b32 v{V_TS}, s96, m0"); a(f"v_writelane_b32 v{V_TS2}, s98, m0")
    def store(self, instr, tag="st"):
        l1 = self.lab(); l2 = self.lab(); a = self.a
        if tag[0] == "h" and OPT.get("hsc1") == 1:
            a(instr + " sc1"); self.vm.issue(tag); return
        if tag[0] == "h" and OPT.get("hsc1") == 2:
            a("s_cmp_le_u32 s22, s21"); a(f"s_cbranch_scc1 {l1}"); a(instr); a(f"s_branch {l2}"); a(f"{l1}:"); a(instr + " sc1"); a(f"{l2}:")
            self.vm.issue(tag); return
        a("s_cmp_lg_u32 s21, 0"); a(f"s_cbranch_scc1 {l1}"); a(instr); a(f"{l2}:")
        a.pending.pop(l1, None)
        self.ool += [f"{l1}:", "    " + instr + " sc1", f"    s_branch {l2}"]
        self.vm.issue(tag)
    def flag(self, val, tag="st"):
        a = self.a
        a(f"s_add_u32 s40, s23, {val}"); a(f"v_mov_b32 v{V_TMP}, s40")
        if not OPT.get("x_noack"): self.vm.wait(tag)
        a("s_mov_b64 exec, 1")
        self.store(f"buffer_store_dword v{V_TMP}, off, s[8:11], s24", "fl_st"); a("s_mov_b64 exec, -1")
    def peek(self, voff):
        self.a(f"buffer_load_dword v{V_OUT}, v{voff}, s[8:11], s26 offen sc1"); self.vm.issue("pk")
    def check(self, voff, val):
        a = self.a; d = self.lab()
        a(f"s_add_u32 s61, s23, {val}")
        self.vm.wait("pk")
        a(f"v_cmp_gt_u32 vcc, s61, v{V_OUT}"); a(f"s_cbranch_vccz {d}")
        self.poll(voff, "s26", "s61")
        a(f"{d}:")
    def acquire(self):
        a = self.a; l = self.lab()
        a("s_cmp_eq_u32 s21, 0"); a(f"s_cbranch_scc1 {l}"); a("buffer_inv sc1"); a("s_waitcnt vmcnt(0)"); a(f"{l}:")
    def poll(self, voff, sbase, sval, srd="s[8:11]", sleep=0):
        a = self.a; l = self.lab(); d = self.lab()
        a("s_mov_b32 s41, 0")
        if sleep and OPT.get("pplain", 0):
            l0 = self.lab(); a(f"buffer_load_dword v{V_TMP}, v{voff}, {srd}, {sbase} offen"); a(f"s_branch {l0}"); a(f"{l}:"); a(f"s_sleep {sleep}")
            a(f"buffer_load_dword v{V_TMP}, v{voff}, {srd}, {sbase} offen sc1"); a(f"{l0}:")
        else:
            if sleep:
                l0 = self.lab(); a(f"s_branch {l0}"); a(f"{l}:"); a(f"s_sleep {sleep}"); a(f"{l0}:")
            else: a(f"{l}:")
            a(f"buffer_load_dword v{V_TMP}, v{voff}, {srd}, {sbase} offen sc1")
        if OPT.get("cnt"): a("s_add_u32 s5, s5, 1")
        a("s_add_u32 s41, s41, 1"); a(f"s_cmp_gt_u32 s41, {OPT['spin']}"); a(f"s_cbranch_scc1 {d}")
        a("s_waitcnt vmcnt(0)")
        a(f"v_cmp_gt_u32 vcc, {sval}, v{V_TMP}")
        a(f"s_cbranch_vccnz {l}")
        a(f"{d}:")
    def poll2(self, voff, sbase, sval):
        N = OPT.get("pp", 1)
        if N == 1: return self.poll(voff, sbase, sval)
        a = self.a; l = self.lab(); d = self.lab()
        regs = [ACC[0] + i for i in range(N)]
        ld = lambda r: a(f"buffer_load_dword v{r}, v{voff}, s[8:11], {sbase} offen sc1")
        a("s_mov_b32 s41, 0")
        for n, r in enumerate(regs):
            ld(r)
            if n < N - 1: a(f"s_sleep {OPT.get('ppd', 2)}")
        a(f"{l}:")
        for r in regs:
            a(f"s_waitcnt vmcnt({N-1})"); a(f"v_cmp_gt_u32 vcc, {sval}, v{r}"); a(f"s_cbranch_vccz {d}"); ld(r)
        a("s_add_u32 s41, s41, 1"); a(f"s_cmp_le_u32 s41, {OPT['spin']}"); a(f"s_cbranch_scc1 {l}")
        a.pending.pop(l, None)
        a(f"{d}:")
    def dma(self, sbase, const, lds, voff=V_LANE16, fl="", srd="s[8:11]", sl="s25"):
        a = self.a
        a(f"s_add_u32 s40, {sbase}, {const}")
        a(f"s_add_u32 m0, {sl}, {lds}")
        a(f"buffer_load_dwordx4 v{voff}, {srd}, s40 offen{fl} lds")
    def touch_txt(self, items):
        l = self.lab()
        L = ["s_cmp_lg_u32 s21, 0", f"s_cbranch_scc1 {l}", f"v_lshlrev_b32 v{V_TMP}, 7, v2"]
        for sal, n in items:
            L += sal
            m = (1 << n) - 1
            L += [f"s_mov_b32 exec_lo, {m & 0xffffffff:#x}", f"s_mov_b32 exec_hi, {m >> 32:#x}", f"buffer_load_dword v{V_OUT}, v{V_TMP}, s[8:11], s43 offen sc1"]
        L += ["s_mov_b64 exec, -1", f"{l}:"]
        return "\n".join(L)
    def stream(self, steps, look, fill=None):
        a = self.a
        reads = []; need = []
        for s in steps:
            reads += s["reads"]; need.append(len(reads) - 1)
        per = 2 if any(r["op"].endswith("tr_b16") for r in reads) else 1
        pre_rd = {}; pre_cmp = {}
        for i, r in enumerate(reads):
            if r.get("gate"):
                pre_rd[max(0, i - look - per)] = i; pre_cmp[max(0, i - per)] = i
        ng = sum(1 for r in reads if r.get("gate"))
        assert len(pre_rd) == ng and len(pre_cmp) == ng
        gi = sorted(pre_rd.values())
        assert all(b - a_ > look + per for a_, b in zip(gi, gi[1:])), gi
        nr = 0; q = []; done = [0]; self._q = q
        def wait(tag):
            idx = q.index(tag)
            if idx < done[0]: return
            n = len(q) - 1 - idx; assert n <= 15, n
            a(f"s_waitcnt lgkmcnt({n})"); done[0] = idx + 1
        def issue():
            nonlocal nr
            r = reads[nr]
            if nr in pre_rd: self.gate_rd(reads[pre_rd[nr]].get("gsrc", "H")); q.append(("g", pre_rd[nr]))
            if nr in pre_cmp:
                g = reads[pre_cmp[nr]]
                wait(("g", pre_cmp[nr])); self.gate_cmp(g["gate"], g.get("gsrc", "H"), g.get("absval"))
            if r.get("gate"): self.gate_br(r.get("gsrc", "H"))
            if r.get("vm") is not None: self.vm.wait(r["vm"])
            n = 4 if r["op"] == "ds_read_b128" else 2
            fm = r["fam"]; off = r["off"]
            reg = fm[off >> 16] if isinstance(fm, list) else fm
            a(f"{r['op']} {vr(r['d'], n)}, v{reg} offset:{off & 0xffff}"); q.append(nr)
            if r.get("pub"): self.pub(r["pub"]); q.append(("p", nr))
            nr += 1
        for i, s in enumerate(steps):
            while nr < len(reads) and nr <= need[i] + (look if i == 0 else 0): issue()
            for x in s.get("pre", []): self.emit(x)
            wait(need[i + 1] if (s.get("pair") and i + 1 < len(steps)) else need[i])
            if OPT.get("x_skipmf") and len(steps) > 100 and i % OPT["x_skipmf"] == 1 and not s["mf"].endswith(", 0"): pass
            else: a(s["mf"])
            nxt = need[i + 1] if i + 1 < len(steps) else need[i]
            while nr < len(reads) and nr <= nxt + look: issue()
            for x in s.get("post", []): self.emit(x)
            if fill:
                for f in fill(i): self.emit(f)
            if self.pend_stamp: self.stamp(self.pend_stamp); self.pend_stamp = None
    def rd128(self, w, off, gate=None, pub=None): return [dict(op="ds_read_b128", d=w, fam=[V_F0, V_F0 + 1], off=off, gate=gate, pub=pub)]
    def rdtr(self, w, fam, off, d2, gate=None, pub=None, absval=None):
        return [dict(op="ds_read_b64_tr_b16", d=w, fam=fam, off=off, gate=gate, absval=absval), dict(op="ds_read_b64_tr_b16", d=w + 2, fam=fam, off=off + d2, pub=pub)]
    def tr_addr16(self, dst, t0, t1):
        a = self.a
        a(f"v_lshrrev_b32 v{t0}, 5, v2"); a(f"v_lshlrev_b32 v{dst}, 9, v{t0}")
        a(f"v_bfe_u32 v{t0}, v2, 2, 2"); a(f"v_lshl_add_u32 v{dst}, v{t0}, 6, v{dst}")
        a(f"v_bfe_u32 v{t0}, v2, 4, 1"); a(f"v_lshl_add_u32 v{dst}, v{t0}, 5, v{dst}")
        a(f"v_and_b32 v{t0}, 1, v2"); a(f"v_lshl_add_u32 v{dst}, v{t0}, 4, v{dst}")
        a(f"v_bfe_u32 v{t0}, v2, 1, 1"); a(f"v_lshl_add_u32 v{dst}, v{t0}, 3, v{dst}")

    def prologue(self):
        a = self.a
        a.raw(f".globl {NAME}"); a.raw(".p2align 8"); a.raw(f".type {NAME},@function"); a.raw(f"{NAME}:")
        a(f"s_cmp_ge_u32 s2, {0 if OPT.get('empty') else 256}"); a("s_cbranch_scc1 L_end")
        if OPT["stamp"] or OPT.get("x_dl2"): a("s_memrealtime s[100:101]")
        a("s_load_dwordx4 s[64:67], s[0:1], 0")
        a("s_load_dwordx2 s[8:9], s[0:1], 72")
        a("s_load_dwordx2 s[68:69], s[0:1], 16")
        a("s_load_dwordx8 s[72:79], s[0:1], 32")
        a("s_load_dwordx2 s[70:71], s[0:1], 64")
        a("v_lshrrev_b32 v1, 6, v0"); a("v_and_b32 v2, 63, v0")
        a("v_readfirstlane_b32 s3, v1")
        if OPT.get("codepf", 1):
            a("s_getpc_b64 s[42:43]")
            a.raw("L_pc:")
            a(f"s_sub_u32 s42, s42, L_pc-{NAME}"); a("s_subb_u32 s43, s43, 0")
            a("s_lshr_b32 s40, s2, 3"); a("s_lshl_b32 s40, s40, 11")
            a("v_lshlrev_b32 v10, 7, v2"); a("v_add_u32 v10, s40, v10"); a(f"v_min_u32 v10, L_code_end-{NAME}-4, v10")
            a("v_mov_b32 v11, s43"); a("v_add_co_u32 v10, vcc, s42, v10"); a("v_addc_co_u32 v11, vcc, 0, v11, vcc")
            a("s_cmp_lg_u32 s3, 6"); a("s_cbranch_scc1 L_nopf")
            a("s_mov_b64 exec, 0xffff"); a("global_load_dword v31, v[10:11], off"); a("s_mov_b64 exec, -1")
            a("L_nopf:")
        a(f"s_mov_b32 s10, {WS_BYTES}"); a("s_mov_b32 s11, 0x20000")
        a(f"v_lshlrev_b32 v{V_LANE16}, 4, v2")
        a("s_and_b32 s4, s2, 7"); a("s_lshr_b32 s5, s2, 3"); a("s_and_b32 s6, s3, 3")
        a("s_lshl_b32 s16, s4, 1"); a("s_lshr_b32 s40, s5, 4"); a("s_add_u32 s16, s16, s40")
        a("s_and_b32 s17, s5, 15")
        a("s_lshr_b32 s18, s17, 3"); a("s_and_b32 s19, s17, 7")
        a("s_mov_b32 s20, 0x3f803f80"); a("s_mov_b32 s21, 0"); a("s_mov_b32 s22, 0"); a("s_mov_b32 s23, 0")
        a("s_lshl_b32 s26, s16, 9"); a(f"s_add_u32 s26, s26, {FL}")
        a("s_lshl_b32 s24, s17, 5"); a("s_lshl_b32 s40, s3, 2"); a("s_add_u32 s24, s24, s40"); a("s_add_u32 s24, s24, s26")
        a("s_lshl_b32 s25, s6, 10")
        a("s_lshl_b32 s27, s16, 2"); a("s_add_u32 s27, s27, s6")
        if OPT["rot"]: a("s_add_u32 s28, s16, s17"); a("s_lshl_b32 s28, s28, 2"); a("s_and_b32 s28, s28, 31")
        else: a("s_mov_b32 s28, 0")
        a("s_mov_b32 s35, 0"); a("s_mov_b32 s36, 0")
        if OPT["stamp"]: a(f"v_mov_b32 v{V_TS}, 0"); a(f"v_mov_b32 v{V_TS2}, 0")
        a("s_xor_b32 s40, s3, 4"); a("s_lshl_b32 s40, s40, 2"); a(f"s_add_u32 s40, s40, {L_HL}")
        a(f"v_lshlrev_b32 v{V_PUBA}, 2, v2"); a(f"v_add_u32 v{V_PUBA}, {L_DUMMY}, v{V_PUBA}"); a(f"v_writelane_b32 v{V_PUBA}, s40, 0")
        a(f"v_mov_b32 v{V_BASE}, 0"); a("s_mov_b32 s7, 0"); a("s_mov_b32 s38, 0")
        a(f"ds_write_b32 v{V_PUBA}, v{V_BASE}")
        a("s_waitcnt lgkmcnt(0)")
        if OPT.get("x_ref") == 1: a("s_memrealtime s[100:101]")
        a("s_barrier")
        if OPT.get("wsoff"):
            a(f"s_add_u32 s8, s8, {OPT['wsoff']*MB}"); a("s_addc_u32 s9, s9, 0"); a(f"s_mov_b32 s10, {WS_BYTES - OPT['wsoff']*MB}")

    def attention(self):
        KF = XR + 8; S = [XR + 44, XR + 60, XR + 76]; NM = [XR + 92, XR + 108]; MX = [XR + 124, XR + 125]; T = XR + 126
        O = [ACC[2], ACC[3]]; VA = ACC[1]; KA = VA + 9
        VF = [104, 112]; P = [120, ACC[0] + 8]; BM = ACC[0]; NEG = KA + 2
        t0, t1, t2, t3, t4 = (ACC[0] + 8 + i for i in range(5))
        L = [f"v_and_b32 v{t0}, 31, v2", f"v_lshrrev_b32 v{t1}, 5, v2",
             f"v_and_b32 v{KA}, 0x13, v{t0}", f"v_bfe_u32 v{t2}, v{t0}, 2, 1", f"v_lshl_add_u32 v{KA}, v{t2}, 3, v{KA}",
             f"v_bfe_u32 v{t2}, v{t0}, 3, 1", f"v_lshl_add_u32 v{KA}, v{t2}, 2, v{KA}",
             f"v_lshlrev_b32 v{KA}, 4, v{KA}", f"v_lshl_add_u32 v{KA}, v{t1}, 9, v{KA}",
             f"s_add_u32 s41, s25, {LK}\nv_add_u32 v{KA}, s41, v{KA}",
             f"v_bfe_u32 v{t2}, v2, 2, 2", f"v_lshl_add_u32 v{t2}, v{t1}, 3, v{t2}", f"v_lshlrev_b32 v{t2}, 4, v{t2}",
             f"v_and_b32 v{t3}, 1, v2", f"v_lshl_add_u32 v{t2}, v{t3}, 9, v{t2}",
             f"v_bfe_u32 v{t3}, v2, 1, 1", f"v_lshl_add_u32 v{t2}, v{t3}, 3, v{t2}",
             f"s_add_u32 s41, s25, {LV}\nv_add_u32 v{t2}, s41, v{t2}",
             f"v_bfe_u32 v{t3}, v2, 4, 1", f"v_xor_b32 v{t4}, 1, v{t3}",
             f"v_mul_u32_u24 v{KA+1}, {HS}, v{t4}", f"v_mul_u32_u24 v{VA}, v{t2}, v{t4}", f"v_mul_u32_u24 v{t2}, {L_ONES}, v{t3}", f"v_add_u32 v{VA}, v{VA}, v{t2}",
             f"v_lshlrev_b32 v{t4}, 10, v{t4}"]
        L += [f"v_add_u32 v{VA+i}, v{t4}, v{VA+i-1}" for i in range(1, 9)]
        l = self.lab()
        fx = ["s_cmp_ge_u32 s27, 8", f"s_cbranch_scc1 {l}", "s_sub_i32 s42, 8, s27", f"v_lshlrev_b32 v{t3}, 3, v{t3}"]
        for i in range(8): fx += [f"s_cmp_gt_i32 s42, {i}", "s_cselect_b32 s41, -1, 0", f"v_and_b32 v{t2}, s41, v{t3}", f"v_add_u32 v{VA+i}, v{t2}, v{VA+i}"]
        L.append("\n".join(fx + [f"{l}:"]))
        L += [f"v_mov_b32 v{t0}, 0xffff", f"v_mov_b32 v{t1}, 0xffff0000"]
        for p in range(8):
            L += [f"v_cndmask_b32_e64 v{t2}, v{t0}, 0, s[{64+4*p}:{65+4*p}]", f"v_cndmask_b32_e64 v{t3}, v{t1}, 0, s[{66+4*p}:{67+4*p}]", f"v_or_b32 v{BM+p}, v{t2}, v{t3}"]
        L += [f"v_mov_b32 v{NEG}, {f32(-1e30)}", f"v_mov_b32 v{NEG+1}, {f32(2.0**OPT.get('thr', 40))}", f"v_mov_b32 v{NEG+2}, {f32(2.0**-OPT.get('thr', 40))}"]
        return dict(KF=KF, S=S, NM=NM, O=O, VA=VA, VF=VF, P=P, BM=BM, MX=MX, T=T, KA=KA, NEG=NEG), L

    def attention_run(self, r, halo_k, halo_v, early_a, redo_a):
        a = self.a
        KF, S, NM, O, VA, VF, P, BM, MX, T, KA, NEG = (r[x] for x in "KF S NM O VA VF P BM MX T KA NEG".split())
        def kread(hh, i, d=None): a(f"ds_read_b128 {vr(KF+4*(i if d is None else d),4)}, v{KA} offset:{hh*HS + i*KB}")
        def vrd(reg, vf):
            for t in range(2):
                for u in range(2): a(f"ds_read_b64_tr_b16 {vr(vf+4*t+2*u,2)}, v{reg} offset:{t*256 + u*64}")
        def vread(hh, i, vf):
            vrd(VA + i, vf)
            if hh == 0: a(f"v_add_u32 v{VA+i}, v{KA+1}, v{VA+i}")
        def qk(hh, dst, i, c): a(f"{MF} {vr(dst,16)}, {vr(KF+4*i,4)}, {vr(XR+4*hh,4)}, {c}")
        def pv(hh, vf, p, t, first=False): a(f"{MF} {vr(O[hh],16)}, {vr(vf+4*t,4)}, {vr(p+4*t,4)}, {'0' if first else vr(O[hh],16)}")
        def mx(b, first=False):
            lo = 0
            if first:
                a(f"v_max3_f32 v{MX[0]}, v{b}, v{b+1}, v{b+2}"); a(f"v_max3_f32 v{MX[1]}, v{b+3}, v{b+4}, v{b+5}"); lo = 6
            for n, q in enumerate(range(lo, 16, 2)): a(f"v_max3_f32 v{MX[n%2]}, v{MX[n%2]}, v{b+q}, v{b+q+1}")
        def mxfin(hh):
            a(f"v_max_f32 v{MX[0]}, v{MX[0]}, v{MX[1]}"); a(f"v_mov_b32 v{MX[1]}, v{MX[0]}")
            a(f"v_permlane32_swap_b32 v{MX[0]}, v{MX[1]}"); a("s_nop 1"); a(f"v_max_f32 v{MX[0]}, v{MX[0]}, v{MX[1]}")
            for q in range(16): a(f"v_sub_f32 v{NM[hh]+q}, 0, v{MX[0]}")
        def mask(b, diag):
            for q in range(16):
                a(f"v_cndmask_b32_e64 v{b+q}, v{NEG}, v{b+q}, s[{64+2*q}:{65+2*q}]" if diag else f"v_cndmask_b32_e64 v{b+q}, v{b+q}, v{NEG}, s[{64+2*q}:{65+2*q}]")
        def ex(b, lo, hi):
            for q in range(lo, hi):
                if OPT.get("x_half") and q % 8 >= OPT["x_half"]: continue
                a(f"v_exp_f32 v{b+q}, v{b+q}")
        def cv(p, b, lo, hi):
            for q in range(lo, hi): a(f"v_cvt_pk_bf16_f32 v{p+q}, v{b+2*q}, v{b+2*q+1}")
        def fin(hh, bad=None):
            a(f"v_rcp_f32 v{T}, v{O[hh]+8}")
            if bad:
                a(f"v_med3_f32 v{MX[0]}, v{O[hh]+8}, v{NEG+2}, v{NEG+1}"); a(f"v_cmp_neq_f32 vcc, v{O[hh]+8}, v{MX[0]}")
            for q in range(8): a(f"v_mul_f32 v{O[hh]+q}, v{T}, v{O[hh]+q}")
            if bad and not OPT.get("x_half"): a(f"s_cbranch_vccnz {bad}"); a.pending.pop(bad, None)
            for q in range(4): a(f"v_cvt_pk_bf16_f32 v{V_EP+q}, v{O[hh]+2*q}, v{O[hh]+2*q+1}")
            self.store(f"buffer_store_dwordx4 {vr(V_EP,4)}, v{V_LANE16}, s[8:11], s37 offen offset:{hh*KB}")
        vread(0, 8, VF[0]); vread(1, 8, VF[1])
        qk(0, S[0], 8, "0"); qk(1, S[1], 7, "0")
        halo_v()
        mx(S[0], True); mxfin(0); qk(0, S[0], 8, vr(NM[0], 16))
        mx(S[1], True); mxfin(1); qk(1, S[1], 7, vr(NM[1], 16))
        def diag(hh):
            ex(S[hh], 0, 16); cv(P[hh], S[hh], 0, 8)
            for q in range(8): a(f"v_bfi_b32 v{P[hh]+q}, v{BM+q}, 0, v{P[hh]+q}")
        diag(0)
        a("s_waitcnt lgkmcnt(0)")
        pv(0, VF[0], P[0], 0, True)
        if OPT["fine"] > 2: self.stamp(15)
        halo_k(lambda: pv(0, VF[0], P[0], 1))
        self.gate_rd("C")
        diag(1)
        a("s_waitcnt lgkmcnt(0)"); self.gate_cmp("q", "C")
        order = [7, 6, 5, 4, 3, 2, 1, 0]
        blocks = [(hh, i) for hh in range(2) for i in order]
        krs = [f"ds_read_b128 {vr(KF+4*i,4)}, v{KA} offset:{i*KB}" for i in order[:3]]
        pv(1, VF[1], P[1], 0, True)
        self.gate_br("C")
        self.gate_rd("H")
        for x in krs: a(x)
        pv(1, VF[1], P[1], 1)
        a("s_waitcnt lgkmcnt(3)"); self.gate_cmp("hl"); self.gate_br("H", redo=krs)
        self.stamp(3)
        for i in order[3:]: kread(0, i)
        a("s_waitcnt lgkmcnt(7)"); qk(0, S[0], 7, vr(NM[0], 16))
        a("s_waitcnt lgkmcnt(6)"); qk(0, S[1], 6, vr(NM[0], 16))
        F3 = (lambda i: self.stamp(i)) if OPT["fine"] > 2 else (lambda i: None)
        F3(16)
        kread(1, 7); kread(1, 6)
        pend = None
        for n, (hh, i) in enumerate(blocks):
            b = S[n % 3]; vf = VF[n % 2]; p = P[n % 2]
            ex(b, 0, 4)
            vread(hh, i, vf)
            if pend: pv(*pend)
            ex(b, 4, 10)
            kr = False
            if n + 2 < 16:
                h2, i2 = blocks[n + 2]
                if n == 0: a("s_waitcnt lgkmcnt(6)")
                qk(h2, S[(n + 2) % 3], i2, vr(NM[h2], 16))
                if h2 == 0: kread(1, i2); kr = True
            if n == OPT.get("pk", 15): self.peek(V_PH)
            ex(b, 10, 16)
            if n == 8: F3(17); fin(0, "L_redo0"); self.pub("h0"); F3(18)
            if n == OPT.get("fo1", 11): F3(19); self.flag(F_O1); F3(20)
            cv(p, b, 0, 8)
            if i == 0:
                for q in range(8): a(f"v_and_b32 v{p+q}, v{BM+q}, v{p+q}")
            a("s_waitcnt lgkmcnt(1)" if (kr or n == 8) else "s_waitcnt lgkmcnt(0)")
            pv(hh, vf, p, 0)
            pend = (hh, vf, p, 1)
        pv(*pend)
        fin(1, "L_redo1")
        self.pub("att")
        lb = self.lab(); lj = self.lab()
        a(f"s_add_u32 s61, s23, {F_O1}"); self.vm.wait("pk")
        a(f"v_cmp_gt_u32 vcc, s61, v{V_OUT}"); a(f"s_cbranch_vccz {lb}")
        qs = list(self.vm.q)
        a("L_att_late:")
        self.flag(F_O2); redo_a(a); a("s_waitcnt vmcnt(0)"); a(f"s_branch {lj}")
        a(f"{lb}:")
        self.vm.q = qs
        early_a()
        self.flag(F_O2)
        a(f"{lj}:")
        main = self.a; saved_q = list(self.vm.q)
        self.a = a = Asm(); self.vm.a = a
        def redo(hh):
            a("s_nop 15"); a("s_waitcnt vmcnt(0) lgkmcnt(0)")
            for i in range(9): kread(hh, i)
            a("s_waitcnt lgkmcnt(0)")
            a("s_sub_i32 s42, 8, s27")
            for i in (8, 0, 1, 2, 3, 4, 5, 6, 7):
                sk = self.lab()
                a(f"s_cmp_gt_i32 s42, {i}"); a(f"s_cbranch_scc1 {sk}")
                qk(hh, S[0], i, "0")
                if i in (0, 8): mask(S[0], i == 8)
                mx(S[0], i == 8)
                a(f"{sk}:")
            mxfin(hh)
            for i in (8, 0, 1, 2, 3, 4, 5, 6, 7):
                sk = self.lab()
                a(f"s_cmp_gt_i32 s42, {i}"); a(f"s_cbranch_scc1 {sk}")
                if hh == 0: a(f"v_sub_u32 v{T}, v{VA+i}, v{KA+1}")
                vrd(T if hh == 0 else VA + i, VF[0])
                qk(hh, S[0], i, vr(NM[hh], 16))
                if i in (0, 8): mask(S[0], i == 8)
                ex(S[0], 0, 16); cv(P[0], S[0], 0, 8)
                a("s_waitcnt lgkmcnt(0)")
                pv(hh, VF[0], P[0], 0, i == 8); pv(hh, VF[0], P[0], 1)
                a(f"{sk}:")
            fin(hh)
        a("L_redo0:")
        redo(0); self.pub("h0"); self.vm.q = ["st"]; self.flag(F_O1)
        a("L_redo1:")
        redo(1); self.pub("att")
        a("s_waitcnt vmcnt(0)"); a("s_branch L_att_late")
        self.ool += a.out
        self.a = main; self.vm.a = main; self.vm.q = saved_q

    def ln_stats(self, d):
        L = []
        for n in (8, 4, 2, 1):
            for i in range(n): L.append(f"v_add_f32 v{d+i}, v{d+i}, v{d+i+n}")
        L += [f"v_mov_b32 v{d+1}, v{d}", f"v_permlane32_swap_b32 v{d}, v{d+1}", "s_nop 1",
              f"v_mul_f32 v{d}, {f32(-1.0/512)}, v{d}", f"v_mul_f32 v{d+1}, {f32(1.0/512)}, v{d+1}",
              f"v_fma_f32 v{d+1}, -v{d}, v{d}, v{d+1}", f"v_max_f32 v{d+1}, 0, v{d+1}", f"v_add_f32 v{d+1}, {f32(1e-5)}, v{d+1}",
              f"v_rsq_f32 v{V_RSTD}, v{d+1}", f"v_sqrt_f32 v{V_STD}, v{d+1}",
              f"v_cvt_pk_bf16_f32 v{V_XAUG}, v{d}, v{d}",
              f"v_and_b32 v{d+2}, 0xffff0000, v{V_XAUG}", f"v_sub_f32 v{d+2}, v{d}, v{d+2}", f"v_mov_b32 v{d+3}, 0",
              f"v_cvt_pk_bf16_f32 v{V_XAUG+1}, v{d+2}, v{d+3}",
              f"v_cndmask_b32_e64 v{V_XAUG}, 0, v{V_XAUG}, s[62:63]", f"v_cndmask_b32_e64 v{V_XAUG+1}, 0, v{V_XAUG+1}, s[62:63]",
              f"v_mul_f32 v{V_C1}, {f32(-LOG2E)}, v{V_RSTD}"]
        return L
    def wreg(self):
        w = self.wr + 4 * (self.wc % self.nw); self.wc += 1; return w
    def aug_step(self, acc, augidx, bn=None, look=None):
        w = self.wreg()
        s = dict(reads=[dict(op="ds_read_b64", d=w, fam=V_AUGA, off=augidx * 256, gate=bn)], mf=f"{MF} {vr(acc,16)}, {vr(w,4)}, {vr(V_XAUG,4)}, {vr(acc,16)}")
        return s
    def x_pass1(self, xl, sst, local, wread, augs, augbar, NT=2):
        a = self.a; vm = self.vm
        PRE = OPT["pre"] if NT == 2 else OPT.get("pre3", OPT["pre"]); STD = ACC[NT]
        def X(kc):
            def f(): xl(kc); vm.issue(f"x{kc}")
            return f
        XS = STD + 4
        xslot = lambda p: [L_X0, L_X0 + 16*KB, L_X0 + 32*KB, RQ, RQ + 16*KB][p if p < 5 else p - 5]
        def piece(p):
            a(f"s_add_u32 s41, s28, {4*p}"); a("s_and_b32 s41, s41, 31"); a("s_lshl_b32 s41, s41, 5"); a("s_add_u32 s41, s41, s55")
            for i in range(4): self.dma("s41", i*8*KB, xslot(p) + i*KB, voff=XS + i%2, srd="s[44:47]", sl="s42"); vm.issue(f"pc{p}")
        def dots(lo, hi):
            if OPT.get("x_nodots"): return
            for kc in range(lo, hi):
                for i in range(4):
                    r = XR + 4 * kc + i
                    a(f"v_dot2c_f32_bf16 v{STD + 2*(i%2)}, s20, v{r}"); a(f"v_dot2c_f32_bf16 v{STD + 1 + 2*(i%2)}, v{r}, v{r}")
        def xrd(p): return [dict(op="ds_read_b128", d=XR+16*p+4*q, fam=(XS+2+q if xslot(p) >= L_X0 else XS+6+q), off=(xslot(p) - L_X0 if xslot(p) >= L_X0 else xslot(p) - RQ), vm=(f"pc{p}" if q == 0 else None)) for q in range(4)]
        def piece_part(p, i):
            if i == 0: a(f"s_add_u32 s33, s28, {4*p}"); a("s_and_b32 s33, s33, 31"); a("s_lshl_b32 s33, s33, 5"); a("s_add_u32 s33, s33, s55")
            self.dma("s33", i*8*KB, xslot(p) + i*KB, voff=XS + i%2, srd="s[44:47]", sl="s42"); vm.issue(f"pc{p}")
        def fin0():
            dots(28, 32)
            a(f"v_add_f32 v{STD}, v{STD}, v{STD+2}"); a(f"v_add_f32 v{STD+1}, v{STD+1}, v{STD+3}")
            a(f"v_permlane32_swap_b32 v{STD}, v{STD+1}"); a("s_nop 1"); a(f"v_add_f32 v{STD}, v{STD}, v{STD+1}")
            for x in self.ln_stats(STD)[15:]: a(x)
        if local == "start":
            a(f"v_lshrrev_b32 v{XS+3}, 4, v2"); a(f"v_and_b32 v{XS}, 7, v2"); a(f"v_xor_b32 v{XS}, v{XS+3}, v{XS}"); a(f"v_lshlrev_b32 v{XS}, 4, v{XS}")
            a(f"v_lshrrev_b32 v{XS+3}, 3, v2"); a(f"v_lshl_add_u32 v{XS}, v{XS+3}, 10, v{XS}"); a(f"v_xor_b32 v{XS+1}, 64, v{XS}")
            a("s_lshl_b32 s42, s6, 12")
            a("s_waitcnt lgkmcnt(0)"); a("s_mov_b64 s[44:45], s[64:65]")
            piece(0)
            return
        if local:
            piece(1)
            if not OPT.get("p2l"): piece(2)
            for i in range(4): a(f"v_mov_b32 v{STD+i}, 0")
            a(f"v_bfe_u32 v{XS+2}, v2, 1, 3"); a(f"v_lshrrev_b32 v{XS+3}, 5, v2"); a(f"v_xor_b32 v{XS+2}, v{XS+3}, v{XS+2}"); a(f"v_lshlrev_b32 v{XS+2}, 4, v{XS+2}")
            a(f"v_and_b32 v{XS+3}, 31, v2"); a(f"v_lshl_add_u32 v{XS+2}, v{XS+3}, 7, v{XS+2}")
            a(f"s_add_u32 s41, s42, {L_X0}"); a(f"v_add_u32 v{XS+2}, s41, v{XS+2}")
            for q in range(1, 4): a(f"v_xor_b32 v{XS+2+q}, {32*q}, v{XS+2}")
            for q in range(4): a(f"v_subrev_u32 v{XS+6+q}, {L_X0 - RQ}, v{XS+2+q}")
            for p in range(3, OPT.get("up", 5)): piece(p)
        else:
            SP = OPT.get("sp", 6)
            for kc in range(SP): X(kc)()
            for i in range(4): a(f"buffer_load_dwordx4 {vr(STD+4*i,4)}, v{V_LANE16}, s[8:11], {sst} offen offset:{1024*i} sc1"); vm.issue("stt")
            for kc in range(SP, PRE): X(kc)()
        steps = []
        st = self.ln_stats(STD)
        xn = [PRE]; PMAX = OPT.get("pm3", PRE) if NT == 3 else OPT.get("pm2", PRE)
        for kc in range(32):
            for t in range(NT):
                w = self.wreg()
                s = dict(reads=wread(w, t, kc), mf=f"{MF} {vr(ACC[t],16)}, {vr(w,4)}, {vr(XR+4*kc,4)}, {'0' if kc == 0 else vr(ACC[t],16)}", post=[])
                if local:
                    p = kc // 4
                    if t == 0 and kc % 4 == 0:
                        s["reads"] = xrd(p) + s["reads"]
                        if p: s["pre"] = [lambda p=p: dots(4*p - 4, 4*p)]
                        if OPT["fine"] == 2: s["post"].append(lambda p=p: self.stamp(16 + p))
                    n8 = 2 * (kc % 4) + t
                    sched = {3: {0: (3, 4), 1: (5, 6), 2: (7, None)}, 4: {0: (4, 5), 1: (6, None), 2: (7, None)}, 5: {0: (5, None), 1: (6, None), 2: (7, None)}}[OPT.get("up", 5)].get(p, (None, None))[n8 // 4]
                    if sched is not None: s["post"].append(lambda sched=sched, n8=n8: piece_part(sched, n8 % 4))
                    if n8 == 7 and p == 2: s["post"].append(lambda: self.pub("x0"))
                    if n8 == 0 and p == 4: s["post"].append(lambda: self.pub("x"))
                    if t == 1 and kc == 31: s["post"].append(fin0)
                elif t == 0:
                    s["pre"] = [lambda kc=kc: vm.wait(f"x{kc}")]
                    if xn[0] < 32: s["post"].append(X(xn[0])); xn[0] += 1
                elif t == 1 and xn[0] < min(32, kc + 1 + PMAX):
                    s["post"].append(X(xn[0])); xn[0] += 1
                elif kc >= OPT.get("sp", 6) + 1:
                    s["post"] += st[:3]; st = st[3:]
                steps.append(s)
        assert local or not st
        for t in range(NT): steps.append(self.aug_step(ACC[t], augs[t], augbar if t == 0 else None))
        return steps

    def res_gemm(self, nsteps, slot, areg, aload, pre_issued, PRE, gates, pubs, xch, xpub, pre_x, hooks={}):
        a = self.a; vm = self.vm
        for i in range(8):
            a(f"v_lshlrev_b32 v{ACC[0]+2*i}, 16, v{V_RES+i}"); a(f"v_and_b32 v{ACC[0]+2*i+1}, 0xffff0000, v{V_RES+i}")
        a(f"v_xor_b32 v{V_EP}, 64, v{V_FW}"); a(f"v_add_u32 v{V_EP+1}, 0x10000, v{V_EP}"); a(f"v_add_u32 v{V_EP+2}, 0x20000, v{V_EP}")
        nxt = [pre_issued]
        def upto(n):
            while nxt[0] < min(n, nsteps): aload(nxt[0]); nxt[0] += 1
        steps = []; self.wc = 0; self.wr = WR; self.nw = NW
        fo = [V_FW, V_FW + 1, V_FW + 2]; ft = [V_EP, V_EP + 1, V_EP + 2]
        T = OPT.get("xt", 8)
        order = [(s, t) for s in range(nsteps - T) for t in range(2)] + [(s, 1) for s in range(nsteps - T, nsteps)] + [(s, 0) for s in range(nsteps - T, nsteps)]
        first = {}; last = {}
        for n, (s, t) in enumerate(order): first.setdefault(s, n); last[s] = n
        for n, (s, t) in enumerate(order):
            w = self.wreg()
            c = vr(ACC[t], 16) if (t == 0 or s > 0) else "0"
            st = dict(reads=self.rdtr(w, fo if t == 0 else ft, slot(s), 512, gates.get(s) if first[s] == n else None, pubs.get(s) if last[s] == n else None),
                      mf=f"{MF} {vr(ACC[t],16)}, {vr(w,4)}, {vr(areg(s),4)}, {c}")
            if OPT.get("x_b128") and nsteps == 56:
                r0, r1 = st["reads"]; st["reads"] = [dict(op="ds_read_b128", d=w, fam=[V_F0, V_F0 + 1, V_F0 + 1], off=slot(s) + t*KB, gate=r0.get("gate"), pub=r1.get("pub"))]
            if first[s] == n and s == pre_x[0]: st["reads"][0].update(gate=pre_x[1], gsrc="C")
            if first[s] == n: st["pre"] = ([lambda s=s: hooks[s](upto)] if s in hooks else []) + [lambda s=s: vm.wait(f"a{s}")]
            elif PRE: st["post"] = [lambda s=s: upto(s + 1 + PRE)]
            steps.append(st)
        a(f"s_xor_b32 s40, s6, 1"); a("s_lshl_b32 s40, s40, 12"); a(f"s_add_u32 s40, s40, {xch}"); a(f"v_add_u32 v{V_EP+3}, s40, v{V_LANE16}")
        rds = [f"ds_read_b128 {vr(ACC[2]+4*i,4)}, v{V_EP+3} offset:{i*KB}" for i in range(4)]
        def wr(i):
            a(f"ds_write_b128 v{V_EP+3}, {vr(ACC[1]+4*i,4)} offset:{i*KB}"); self._q.append(("x", i))
            if i == 3: self.pub(xpub); self._q.append(("x", 4)); a(f"v_xor_b32 v{V_EP+3}, 4096, v{V_EP+3}")
        o0 = len(steps) - T
        for i in range(4): steps[o0 + min(T - 1, 2 + i)].setdefault("post", []).append(lambda i=i: wr(i))
        self.stream(steps, look=5 if (OPT.get("x_b128") and nsteps == 56) else 10)
        if OPT["fine"] and nsteps == 56: self.stamp(9)
        self.gate_rd("C")
        for x in rds: a(x)
        a("s_waitcnt lgkmcnt(4)")
        self.gate_cmp(xpub, "C"); self.gate_br("C", redo=rds)
        for i in range(4):
            a(f"s_waitcnt lgkmcnt({3-i})")
            for q in range(4): a(f"v_add_f32 v{ACC[0]+4*i+q}, v{ACC[0]+4*i+q}, v{ACC[2]+4*i+q}")
            for q in range(2): a(f"v_cvt_pk_bf16_f32 v{V_RES+2*i+q}, v{ACC[0]+4*i+2*q}, v{ACC[0]+4*i+2*q+1}")

    def x_store(self, sx, sst, flagval):
        a = self.a; t = ACC[1]
        self.store(f"buffer_store_dwordx4 {vr(V_RES,4)}, v{V_LANE16}, s[8:11], {sx} offen")
        self.store(f"buffer_store_dwordx4 {vr(V_RES+4,4)}, v{V_LANE16}, s[8:11], {sx} offen offset:1024")
        for i in range(2): a(f"v_dot2_f32_bf16 v{t+2*i}, v{V_RES+i}, s20, 0"); a(f"v_dot2_f32_bf16 v{t+2*i+1}, v{V_RES+i}, v{V_RES+i}, 0")
        for i in range(2, 8): a(f"v_dot2_f32_bf16 v{t+2*(i%2)}, v{V_RES+i}, s20, v{t+2*(i%2)}"); a(f"v_dot2_f32_bf16 v{t+2*(i%2)+1}, v{V_RES+i}, v{V_RES+i}, v{t+2*(i%2)+1}")
        a(f"v_add_f32 v{t}, v{t}, v{t+2}"); a(f"v_add_f32 v{t+1}, v{t+1}, v{t+3}")
        a(f"v_permlane32_swap_b32 v{t}, v{t+1}"); a("s_nop 0"); a(f"v_add_f32 v{t}, v{t}, v{t+1}")
        self.store(f"buffer_store_dword v{t}, v{V_LANE16}, s[8:11], {sst} offen")
        self.flag(flagval)

    def compute(self):
        a = self.a; self.role = "C"; self.vm = vm = VM(a)
        a(f"s_setprio {OPT['cprio']}")
        a("v_and_b32 v104, 31, v2"); a("v_lshrrev_b32 v105, 5, v2")
        a(f"v_lshlrev_b32 v{V_XOFF}, 10, v104"); a(f"v_lshl_add_u32 v{V_XOFF}, v105, 4, v{V_XOFF}")
        a("s_lshl_b32 s55, s27, 15")
        a(f"s_mov_b32 s46, {2048*1024}"); a("s_mov_b32 s47, 0x20000")
        self.x_pass1(None, None, "start", None, None, None)
        a(f"s_mov_b32 s14, {2048*1024}"); a("s_mov_b32 s15, 0x20000")
        a("s_lshr_b32 s50, s6, 1"); a("s_and_b32 s51, s6, 1")
        a("s_lshl_b32 s48, s18, 1"); a("s_add_u32 s48, s48, s50"); a("s_mov_b32 s52, s48")
        a("s_lshl_b32 s40, s16, 2"); a("s_add_u32 s48, s48, s40")
        a("s_lshl_b32 s49, s19, 1"); a("s_add_u32 s49, s49, s51")
        a("s_lshl_b32 s53, s48, 15"); a("s_lshl_b32 s40, s49, 11"); a("s_add_u32 s53, s53, s40")
        a("s_lshl_b32 s54, s48, 12"); a("s_lshr_b32 s40, s49, 2"); a("s_lshl_b32 s40, s40, 10"); a("s_add_u32 s54, s54, s40")
        a("s_and_b32 s40, s49, 3"); a("s_lshl_b32 s40, s40, 2"); a("s_add_u32 s54, s54, s40")
        a(f"v_mov_b32 v{V_F0}, v{V_LANE16}"); a(f"v_add_u32 v{V_F0+1}, 0x10000, v{V_LANE16}")
        self.tr_addr16(V_TQ, 106, 107); a(f"v_add_u32 v{V_TQ+1}, 0x10000, v{V_TQ}")
        a(f"v_lshlrev_b32 v{V_FW}, 10, v105"); a("v_bfe_u32 v106, v2, 2, 2"); a(f"v_lshl_add_u32 v{V_FW}, v106, 7, v{V_FW}")
        a("v_bfe_u32 v106, v2, 3, 1"); a("v_xor_b32 v106, s51, v106"); a(f"v_lshl_add_u32 v{V_FW}, v106, 6, v{V_FW}")
        a(f"v_and_b32 v106, 63, v{V_TQ}"); a(f"v_add_u32 v{V_FW}, v106, v{V_FW}")
        a("s_lshl_b32 s40, s51, 11"); a(f"v_add_u32 v{V_FW}, s40, v{V_FW}")
        a(f"v_add_u32 v{V_FW+1}, 0x10000, v{V_FW}"); a(f"v_add_u32 v{V_FW+2}, 0x20000, v{V_FW}")
        a("v_bfe_u32 v106, v2, 1, 3"); a("v_and_b32 v107, 1, v2"); a("v_and_b32 v108, 7, v2")
        a("s_lshl_b32 s40, s50, 8"); a("s_lshl_b32 s41, s51, 3"); a("s_add_u32 s40, s40, s41")
        a(f"v_lshlrev_b32 v{V_PX}, 5, v106"); a(f"v_lshl_add_u32 v{V_PX}, v107, 2, v{V_PX}"); a(f"v_add_u32 v{V_PX}, s40, v{V_PX}")
        a("s_lshl_b32 s40, s51, 8"); a("s_lshl_b32 s41, s52, 2"); a("s_add_u32 s40, s40, s41")
        a(f"v_lshlrev_b32 v{V_PH}, 5, v108"); a(f"v_add_u32 v{V_PH}, s40, v{V_PH}")
        a(f"v_lshlrev_b32 v{V_AUGA}, 3, v104"); a(f"v_add_u32 v{V_AUGA}, {L_AUG}, v{V_AUGA}")
        a(f"v_mov_b32 v{V_XAUG+2}, 0"); a(f"v_mov_b32 v{V_XAUG+3}, 0")
        for r in range(WR, WR + 32, 4): a(f"v_mov_b32 v{r+2}, 0") if False else None
        a("v_cmp_gt_u32 s[62:63], 32, v2")
        a("v_lshlrev_b32 v106, 3, v105"); a("v_sub_u32 v106, v104, v106")
        a("s_mov_b64 s[12:13], s[78:79]")
        if OPT["stamp"]: a(f"v_writelane_b32 v{V_TS}, s100, 31")
        for r in range(16): a(f"v_cmp_le_i32 s[{64+2*r}:{65+2*r}], {16*(r>>3) + (r&7)}, v106")
        a(f"v_and_b32 v{V_FA}, 3, v2"); a(f"v_lshlrev_b32 v{V_FA}, 2, v{V_FA}"); a(f"v_add_u32 v{V_FA}, {L_HL}, v{V_FA}")
        self.stamp(0)
        ftq = [V_TQ, V_TQ + 1]
        self.wc = 0
        steps = self.x_pass1(None, None, True, lambda w, t, kc: self.rdtr(w, ftq, (RK, RV)[t] + kc*KB, 256, f"kv{kc//8}" if (t == 0 and kc % 8 == 0) else None, "kv" if (t == 1 and kc == 31) else None), [1, 2], "augkv")
        self.stream(steps, look=8)
        a(f"v_mov_b32 v{V_TMP}, {L_TAG}"); a(f"ds_read_b64 {vr(V_EP,2)}, v{V_TMP}"); a("s_waitcnt lgkmcnt(0)")
        a(f"v_readfirstlane_b32 s4, v{V_EP}"); a(f"v_readfirstlane_b32 s5, v{V_EP+1}")
        a("s_branch L_c_go")
        a("L_c_loop:")
        self.stamp(0)
        self.poll2(V_PX, "s26", "s57"); vm.q = []
        self.stamp(1)
        def xl(kc):
            if kc % 4 == 0: a(f"s_add_u32 s43, s55, {kc*KB}")
            a(f"buffer_load_dwordx4 {vr(XR+4*kc,4)}, v{V_LANE16}, s[8:11], s43 offen offset:{(kc%4)*KB} sc1")
        self.wc = 0
        steps = self.x_pass1(xl, "s56", False, lambda w, t, kc: self.rdtr(w, ftq, (RK, RV)[t] + kc*KB, 256, "nkv" if (t == 0 and kc == 0) else None,
                                                                          {(1, OPT.get("b1x", 22)): "x", (1, 31): "kv"}.get((t, kc)), HV["nkv"]), [1, 2], None)
        self.stream(steps, look=10)
        a("L_c_go:")
        if OPT["fine"]: self.stamp(14)
        steps = []
        korder = [19, 20, 21, 22, 2, 3, 4, 5, 6, 7, 9, 10] + [k for k in range(32) if k not in (19, 20, 21, 22, 2, 3, 4, 5, 6, 7, 9, 10)]
        for n, kc in enumerate(korder):
            w = self.wreg()
            steps.append(dict(reads=self.rdtr(w, ftq, RQ + kc*KB, 256),
                              mf=f"{MF} {vr(ACC[2],16)}, {vr(w,4)}, {vr(XR+4*kc,4)}, {'0' if n == 0 else vr(ACC[2],16)}"))
        self.gate_rd("H")
        steps.append(None)
        VC8 = ACC[3]; VCK = ACC[3] + 2
        a("s_lshl_b32 s58, s27, 4"); a("s_add_u32 s58, s58, s17"); a(f"s_mul_i32 s58, s58, {7*KB}"); a(f"s_add_u32 s58, s58, {HF + 2*KB}")
        if OPT.get("kv2"): a(f"s_mul_i32 s40, s22, {8*MB}"); a("s_add_u32 s58, s58, s40")
        a(f"s_add_u32 s40, s25, {LK + 8*KB}"); a(f"v_add_u32 v{V_OUT}, s40, v{V_LANE16}")
        a(f"v_lshlrev_b32 v{VC8}, 3, v2"); a(f"v_add_u32 v{VC8}, 4096, v{VC8}"); a(f"v_mov_b32 v{VCK}, s4"); a(f"v_mov_b32 v{VCK+1}, s5")
        def xor16(dst, regs):
            for n in range(0, 16, 2): self.a(f"v_bitop3_b32 v{dst}, v{dst}, v{regs[n]}, v{regs[n+1]} bitop3:0x96")
        F = []
        for t in range(2):
            A0 = ACC[t]
            for hh in range(2):
                F += [f"v_mul_f32 v{A0+r}, v{V_RSTD}, v{A0+r}" for r in range(8*hh, 8*hh + 8)]
                F += [f"v_cvt_pk_bf16_f32 v{A0+r}, v{A0+2*r}, v{A0+2*r+1}" for r in range(4*hh, 4*hh + 4)]
                F += [f"buffer_store_dwordx4 {vr(A0+4*hh,4)}, v{V_LANE16}, s[8:11], s58 offen offset:{(2*t + hh)*KB} sc1"]
                F += [f"v_bitop3_b32 v{VCK}, v{VCK}, v{A0+4*hh+n}, v{A0+4*hh+n+1} bitop3:0x96" for n in (0, 2)]
        F.append(f"buffer_store_dwordx2 {vr(VCK,2)}, v{VC8}, s[8:11], s58 offen sc1")
        NE = OPT.get("ne", 61)
        for x in F[:15]: a(x)
        a("s_waitcnt lgkmcnt(0)"); self.gate_cmp("wq")
        late = self.lab(); join = self.lab()
        a("s_cmp_eq_u64 s[30:31], 0"); a(f"s_cbranch_scc1 {join}")
        for x in F[15:]: a(x)
        self.gate_br("H")
        a("s_mov_b64 s[30:31], -1")
        a(f"{join}:")
        def rest():
            l = self.lab()
            a("s_cmp_lg_u64 s[30:31], 0"); a(f"s_cbranch_scc1 {l}")
            for x in EP2: a(x)
            a(f"{l}:")
        EP2 = F[15:]; F = []
        steps[0]["pre"] = [rest]
        if OPT["fine"] > 2: self.stamp(24)
        def lds(x):
            def f(): a(x); self._q.append(("u", id(f)))
            return f
        for hh in range(2):
            F.append(lds(f"ds_write_b128 v{V_OUT}, {vr(ACC[0]+4*hh,4)} offset:{hh*HS}"))
            F.append(lds(f"ds_write_b128 v{V_OUT}, {vr(ACC[1]+4*hh,4)} offset:{12*KB + hh*HS}"))
        r, SL = self.attention()
        F += [f"v_mov_b32 v{V_EP}, {L_MODE}", lds(f"ds_read_b32 v{V_EP}, v{V_EP}"), f"v_mul_f32 v{V_C1}, {f32(0.25*LOG2E)}, v{V_RSTD}"]
        F += SL[:10] + [lds(f"ds_read_b128 {vr(r['KF']+32,4)}, v{r['KA']} offset:{8*KB}"), lds(f"ds_read_b128 {vr(r['KF']+28,4)}, v{r['KA']} offset:{HS + 8*KB}")] + SL[10:]
        a("s_lshl_b32 s36, s16, 11"); a("s_lshl_b32 s41, s17, 7"); a("s_add_u32 s36, s36, s41"); a("s_lshl_b32 s41, s6, 2"); a("s_add_u32 s36, s36, s41"); a(f"s_add_u32 s36, s36, {KVFL}")
        def fill(i):
            out = []
            for _ in range(OPT.get("f2", 4)):
                if F and not (i < 12 and callable(F[0]) and len(F) <= len(SL) - 10 + 2): out.append(F.pop(0))
            return out
        steps[31]["reads"][1]["pub"] = "q"; steps[OPT.get("hld", 16)]["reads"][1]["pub"] = "kvs"
        XQ = ACC[3] + 4; wq_ = self.wreg()
        steps[-1] = dict(reads=[dict(op="ds_read_b128", d=wq_, fam=V_EP + 1, off=0, gate="augq")], mf=f"{MF} {vr(ACC[2],16)}, {vr(wq_,4)}, {vr(XQ,4)}, {vr(ACC[2],16)}")
        F[4:4] = [f"v_add_u32 v{V_EP+1}, {L_QB}, v{V_LANE16}", f"v_mov_b32 v{XQ}, v{V_XAUG}", f"v_mov_b32 v{XQ+1}, v{V_XAUG+1}", f"v_mov_b32 v{XQ+2}, v{V_XAUG}", f"v_mov_b32 v{XQ+3}, v{V_XAUG+1}",
                  f"v_permlane32_swap_b32 v{XQ}, v{XQ+2}", f"v_permlane32_swap_b32 v{XQ+1}, v{XQ+3}", f"s_nop 0\nv_mov_b32 v{XQ+2}, v{XQ}", f"v_mov_b32 v{XQ+3}, v{XQ+1}"]
        self.stream(steps, look=8, fill=fill)
        for x in F: self.emit(x)
        a("s_waitcnt lgkmcnt(0)")
        a(f"v_readfirstlane_b32 s21, v{V_EP}")
        a(f"s_mul_i32 s34, s21, {ALS}"); a("s_add_u32 s34, s34, s35")
        a(f"s_sub_u32 s37, s58, {2*KB}"); a("s_add_u32 s37, s37, s34")
        if OPT.get("kv2"): a(f"s_mul_i32 s40, s22, {8*MB}"); a("s_sub_u32 s37, s37, s40")
        a(f"s_mul_i32 s60, s48, {112*KB}"); a(f"s_mul_i32 s40, s51, {56*KB}"); a("s_add_u32 s60, s60, s40"); a(f"s_add_u32 s60, s60, {OF}"); a("s_add_u32 s60, s60, s34")
        self.stamp(2)
        for r_ in range(16): a(f"v_mul_f32 v{ACC[2]+r_}, v{V_C1}, v{ACC[2]+r_}")
        for r_ in range(8): a(f"v_cvt_pk_bf16_f32 v{XR+r_}, v{ACC[2]+2*r_}, v{ACC[2]+2*r_+1}")
        def halo_k(mid):
            mid()
        def after_k():
            l = self.lab()
            a("s_cmp_lg_u32 s22, 0"); a(f"s_cbranch_scc1 {l}")
            a("s_lshl_b32 s40, s48, 15"); a("s_lshl_b32 s41, s49, 6"); a("s_add_u32 s40, s40, s41")
            a(f"buffer_load_dwordx4 {vr(V_RES,4)}, v{V_XOFF}, s[44:47], s40 offen")
            a(f"buffer_load_dwordx4 {vr(V_RES+4,4)}, v{V_XOFF}, s[44:47], s40 offen offset:32")
            a(f"{l}:")
        oreg = lambda s: XR + 8 + 4 * s
        def al_o(s):
            a = self.a
            a(f"s_add_u32 s43, s60, {(s % 8)*7*KB}")
            a(f"buffer_load_dwordx4 {vr(oreg(s),4)}, v{V_LANE16}, s[8:11], s43 offen offset:{(s >> 3)*KB} sc1"); vm.issue(f"a{s}")
        def early_a():
            for s_ in range(8): al_o(s_)
        def redo_a(a2):
            a2(f"s_add_u32 s61, s23, {F_O1}"); self.poll(V_PH, "s26", "s61")
            for s_ in range(8): al_o(s_)
        self.attention_run(r, halo_k, after_k, early_a, redo_a)
        self.stamp(4)
        a(f"s_add_u32 s58, s53, {XA}"); a("s_add_u32 s58, s58, s35"); a(f"s_add_u32 s59, s54, {STA}"); a("s_add_u32 s59, s59, s35")
        def h_o(upto):
            self.check(V_PH, F_O2); self.stamp(5); upto(16)
            if OPT.get("wo1l", 1): self.pub("wo1"); self._q.append(("w1", 0))
        self.res_gemm(16, lambda s: RK + s*4*KB, oreg, al_o, 8, 0, {0: "wo"}, {} if OPT.get("wo1l", 1) else {7: "wo1"}, XCH_WO, "wo", (6, "att"),
                      hooks={OPT.get("opeek", 2): lambda u: self.peek(V_PH), 8: h_o})
        self.pub("xr")
        self.x_store("s58", "s59", F_X1)
        self.stamp(6)
        a(f"s_mul_i32 s60, s27, {112*KB}"); a(f"s_mul_i32 s40, s17, {7*KB}"); a("s_add_u32 s60, s60, s40"); a(f"s_add_u32 s60, s60, {HF}"); a("s_add_u32 s60, s60, s35")
        a("s_lshl_b32 s58, s27, 15"); a(f"s_add_u32 s58, s58, {XA}"); a("s_add_u32 s58, s58, s35")
        a("s_lshl_b32 s59, s27, 12"); a(f"s_add_u32 s59, s59, {STA}"); a("s_add_u32 s59, s59, s35")
        a(f"s_mul_i32 s29, s48, {112*KB}"); a(f"s_mul_i32 s40, s51, {56*KB}"); a("s_add_u32 s29, s29, s40"); a(f"s_add_u32 s29, s29, {HF}"); a("s_add_u32 s29, s29, s35")
        a(f"s_add_u32 s61, s23, {F_X1}")
        self.poll2(V_PX, "s26", "s61"); vm.q = []
        self.stamp(7)
        def xl2(kc):
            if kc % 4 == 0: a(f"s_add_u32 s43, s58, {kc*KB}")
            a(f"buffer_load_dwordx4 {vr(XR+4*kc,4)}, v{V_LANE16}, s[8:11], s43 offen offset:{(kc%4)*KB} sc1")
        self.wc = 0; self.wr = 104; self.nw = 6
        steps = self.x_pass1(xl2, "s59", False, lambda w, t, kc: self.rd128(w, GU_REG[t] + kc*KB, f"t2_{kc//8}" if (t == 0 and kc % 8 == 0 and (kc == 0 or not OPT.get("t2e", 1))) else None, f"g{kc+1}" if (t == 2 and kc % 8 == 7) else None), [3, 4, 5], None, NT=3)
        self.pub("xch")
        done = {t: len(steps) - 3 + t for t in range(3)}; start = {}
        accof = {t: ACC[t % 4] for t in range(7)}
        for t in range(3, 7):
            start[t] = len(steps)
            for kc in range(32):
                w = self.wreg()
                steps.append(dict(reads=self.rd128(w, GU_REG[t] + kc*KB, f"t{t}" if kc == 0 else None, f"t{t}" if kc == 31 else None),
                                  mf=f"{MF} {vr(accof[t],16)}, {vr(w,4)}, {vr(XR+4*kc,4)}, {'0' if kc == 0 else vr(accof[t],16)}", pair=(kc % 2 == 0 and OPT.get("pair", 1))))
            steps.append(self.aug_step(accof[t], 3 + t))
            done[t] = len(steps) - 1
        def epi(t):
            A0 = accof[t]; L = []
            if OPT.get("x_nofill"): return [lambda: (a(f"s_add_u32 s43, s60, {t*KB}"), self.store(f"buffer_store_dwordx4 {vr(V_EP,4)}, v{V_LANE16}, s[8:11], s43 offen", f"h{t}"))]
            L += [f"v_mul_f32 v{A0+r}, v{V_C1}, v{A0+r}" for r in range(8)]
            L += [f"v_exp_f32 v{A0+r}, v{A0+r}" for r in range(8)]
            L += [f"v_fma_f32 v{A0+r}, v{A0+r}, v{V_STD}, v{V_STD}" for r in range(8)]
            L += [f"v_rcp_f32 v{A0+r}, v{A0+r}" for r in range(8)]
            L += [f"v_mul_f32 v{A0+r}, v{A0+r}, v{A0+8+r}" for r in range(8)]
            L += [f"v_cvt_pk_bf16_f32 v{V_EP+r}, v{A0+2*r}, v{A0+2*r+1}" for r in range(4)]
            L += [lambda: (a(f"s_add_u32 s43, s60, {t*KB}"), self.store(f"buffer_store_dwordx4 {vr(V_EP,4)}, v{V_LANE16}, s[8:11], s43 offen", f"h{t}"))]
            return L
        hreg = lambda s: XR + 4 * (s % 32)
        def al_h(s):
            t, i = s // 8, s % 8
            if OPT.get("x_noh") and s >= 16: return
            if OPT.get("x_sameh"): t, i = 0, s % 2
            a(f"s_add_u32 s43, s29, {(7*i + t)*KB}"); a(f"buffer_load_dwordx4 {vr(hreg(s),4)}, v{V_LANE16}, s[8:11], s43 offen sc1"); vm.issue(f"a{s}")
        NP = OPT.get("np", 16)
        queue = []; flag_at = {}; T1 = OPT.get('t1', 3)
        def fill2(i):
            for t in range(7):
                if done[t] + 2 == i: queue.extend((x, t) for x in epi(t))
            out = []
            if i == 70:
                def pk2():
                    a(f"v_and_b32 v{V_EP}, 1, v2"); a(f"v_add_u32 v{V_EP}, 1, v{V_EP}"); a("s_sub_u32 s40, 15, s16"); a(f"v_min_u32 v{V_EP}, s40, v{V_EP}"); a(f"v_lshlrev_b32 v{V_EP}, 11, v{V_EP}")
                    a(f"buffer_load_dword v{V_OUT}, v{V_EP}, s[8:11], s36 offen sc1"); vm.issue("pk")
                out.append(pk2)
            if i == done[2] + 4:
                def ck2():
                    d = self.lab()
                    a("s_add_u32 s61, s22, 1"); vm.wait("pk")
                    a(f"v_cmp_gt_u32 vcc, s61, v{V_OUT}"); a(f"s_cbranch_vccz {d}")
                    self.poll(V_EP, "s36", "s61"); a(f"{d}:")
                out.append(ck2)
            if OPT["fine"] and i == done[2]: self.pend_stamp = 12
            if OPT["fine"] and i == done[4]: self.pend_stamp = 13
            for t2, sidx in start.items():
                if sidx == i + 1 and t2 >= 4:
                    while queue and queue[0][1] <= t2 - 4: out.append(queue.pop(0)[0])
            cost = 0; lim = OPT.get("fillc", 3)
            while queue and cost < lim:
                x, t = queue.pop(0); out.append(x)
                cost += 3 if callable(x) else 2 if x.startswith(("v_exp", "v_rcp")) else 1
                if callable(x) and t == T1: flag_at[i + OPT.get("fld", 13)] = (F_H1, t)
                if callable(x) and t == 4 and T1 == 2: flag_at[min(i + OPT.get("fld", 13), len(steps) - 1)] = (8, t)
            if i in flag_at: out.append(lambda v=flag_at[i]: self.flag(v[0], f"h{v[1]}"))
            k6 = i - start[6]
            if k6 == 31 - NP - 14: out.append(lambda: self.peek(V_PH))
            if k6 == 31 - NP: out.append(lambda: self.check(V_PH, F_H1))
            if 31 - NP < k6 <= 31: out.append(lambda s_=k6 - (32 - NP): al_h(s_))
            return out
        self.stream(steps, look=4, fill=fill2)
        assert flag_at and min(flag_at) < start[6], (flag_at, start)
        for x, _ in queue: self.emit(x)
        for x in epi(6): self.emit(x)
        self.stamp(8)
        a(f"s_add_u32 s58, s53, {XB}"); a("s_add_u32 s58, s58, s34"); a(f"s_add_u32 s59, s54, {STB}"); a("s_add_u32 s59, s59, s34")
        PD = OPT.get("pd", 14)
        hooks = {OPT.get("hflag", 5): lambda u: self.flag(F_H2, "h6"), 32 - PD - 8: lambda u: self.peek(V_PH), 32 - PD - 1: lambda u: self.check(V_PH, F_H2)}
        if T1 == 2:
            hooks = {OPT.get("hflag", 5): lambda u: self.flag(F_H2, "h6"), 24 - PD - 7: lambda u: self.peek(V_PH), 24 - PD - 1: lambda u: self.check(V_PH, 8),
                     40 - PD - 8: lambda u: self.peek(V_PH), 40 - PD - 1: lambda u: self.check(V_PH, F_H2)}
            assert len(hooks) == 5
        self.res_gemm(56, wd_slot, hreg, al_h, NP, PD, {s: f"w{s}" for s in DG}, {s - 1: f"d{s}" for s in DP},
                      XCH_DN, "dx", (52, "d43"), hooks=hooks)
        self.stamp(10)
        a("s_cmp_lg_u32 s22, 0"); a("s_cbranch_scc1 L_c_final")
        self.x_store("s58", "s59", F_X2)
        a("s_lshl_b32 s55, s27, 15"); a(f"s_add_u32 s55, s55, {XB}"); a("s_add_u32 s55, s55, s34")
        a("s_lshl_b32 s56, s27, 12"); a(f"s_add_u32 s56, s56, {STB}"); a("s_add_u32 s56, s56, s34")
        a(f"s_mov_b32 s57, {F_X2}")
        self.next_iter()
        a.fence()
        a("s_branch L_c_loop")
        a("L_c_final:")
        a("s_lshl_b32 s40, s48, 15"); a("s_lshl_b32 s41, s49, 6"); a("s_add_u32 s40, s40, s41")
        a(f"buffer_store_dwordx4 {vr(V_RES,4)}, v{V_XOFF}, s[12:15], s40 offen{['', ' sc1', ' nt', ' sc0 sc1'][OPT.get('osc', 0)]}")
        a(f"buffer_store_dwordx4 {vr(V_RES+4,4)}, v{V_XOFF}, s[12:15], s40 offen offset:32{['', ' sc1', ' nt', ' sc0 sc1'][OPT.get('osc', 0)]}")
        self.finish()

    def next_iter(self):
        a = self.a
        a("s_mov_b32 s22, 1"); a("s_mov_b32 s23, 16"); a("s_mov_b32 s7, 64"); a("s_add_u32 s4, s4, 1"); a(f"v_mov_b32 v{V_BASE}, 64")
        a(f"s_mul_i32 s35, s21, {ITS}")
    def finish(self):
        a = self.a
        if OPT.get("x_dl2") and self.role == "C":
            l = self.lab()
            a(f"{l}:"); a("s_memrealtime s[96:97]"); a("s_waitcnt lgkmcnt(0)"); a("s_sub_u32 s96, s96, s100")
            a(f"s_cmp_lt_u32 s96, {OPT['x_dl2']*100}"); a(f"s_cbranch_scc1 {l}")
        if OPT.get("x_deadline") and self.role == "C":
            l = self.lab()
            a(f"{l}:"); a("s_memrealtime s[96:97]"); a("s_waitcnt lgkmcnt(0)"); a("s_lshl_b32 s96, s96, 3"); a("s_sub_u32 s96, s96, s4")
            a(f"s_cmp_lt_u32 s96, {OPT['x_deadline']*800}"); a(f"s_cbranch_scc1 {l}")
        if OPT["stamp"]:
            a("s_waitcnt vmcnt(0)")
            self.stamp(11)
            a("s_lshl_b32 s40, s2, 12"); a("s_lshl_b32 s41, s3, 9"); a("s_add_u32 s40, s40, s41"); a(f"s_add_u32 s40, s40, {TS}")
            if OPT.get("dbgout") and self.role == "C":
                l = self.lab()
                a("s_lshl_b32 s41, s2, 3"); a("s_add_u32 s41, s41, s3"); a(f"s_cmp_lg_u32 s41, {OPT['dbgout']*8}"); a(f"s_cbranch_scc1 {l}")
                a("s_load_dwordx2 s[44:45], s[0:1], 64"); a("s_mov_b32 s46, 256"); a("s_mov_b32 s47, 0x20000")
                a(f"v_readlane_b32 s42, v{V_TS}, 31"); a("v_mov_b32 v41, 0")
                for n, idx in enumerate([0, 14, 3, 4, 7, 8, 10, 32+1, 32+14, 32+3, 32+4, 32+7, 32+8, 32+11]):
                    a(f"v_readlane_b32 s43, v{V_TS}, {idx}"); a("s_sub_u32 s43, s43, s42"); a("s_nop 3"); a(f"v_writelane_b32 v41, s43, {n}")
                a("v_lshlrev_b32 v40, 2, v2"); a("s_waitcnt lgkmcnt(0)"); a("s_mov_b64 exec, 0x3fff")
                a("buffer_store_dword v41, v40, s[44:47], 0 offen offset:8"); a("s_mov_b64 exec, -1")
                a(f"{l}:")
            a("v_lshlrev_b32 v40, 2, v2")
            a(f"buffer_store_dword v{V_TS}, v40, s[8:11], s40 offen"); a(f"buffer_store_dword v{V_TS2}, v40, s[8:11], s40 offen offset:256")
        a("s_endpgm")

    def helper(self):
        a = self.a; self.role = "H"; vm = VM(a)
        HV_QKV = 16; HV_ROW0 = 17; HV_OOB = 18; HV_PK = 19; HV_W = 20; HV_R128 = 23; HV_TQ = 24; HT = 26
        SQ, SO, SD, SG, SX, SDBG = "s[44:47]", "s[48:51]", "s[52:55]", "s[56:59]", "s[60:63]", "s[12:15]"
        HF_ = 25
        W = OPT.get("win", 8)
        st = dict(it=0); outq = []; sigs = []
        cnt = dict(issued=0, done=0)
        def hpub_txt(name):
            self.seen.add(("H", name))
            return [f"v_mov_b32 v{V_TMP}, {64*st['it'] + HV[name]}", f"ds_max_u32 v{V_PUBA}, v{V_TMP}"]
        def hpub(name):
            for x in hpub_txt(name): a(x)
        def retire(n):
            if n > cnt["done"]:
                k = cnt["issued"] - n; assert 0 <= k <= 63
                if cnt.get("ghost") and n <= cnt["ghost"][0]:
                    l = self.lab()
                    a(f"s_waitcnt vmcnt({k + cnt['ghost'][1]})"); a("s_cmp_lg_u32 s87, 0"); a(f"s_cbranch_scc1 {l}"); a(f"s_waitcnt vmcnt({k})"); a(f"{l}:")
                else: a(f"s_waitcnt vmcnt({k})")
                cnt["done"] = n
            last = None
            while sigs and sigs[0][1] <= cnt["done"]: last = sigs.pop(0)[0]; self.seen.add(("H", last))
            if last: hpub(last)
        def op(win=None):
            cnt["issued"] += 1
            retire(max(cnt["done"], cnt["issued"] - (W if win is None else win)))
        def sig(name):
            sigs.append((name, cnt["issued"])); retire(cnt["done"])
        def flush():
            while sigs: retire(sigs[0][1])
        def drain():
            retire(cnt["issued"])
        def need(name, src="C", it=None):
            l1 = self.lab(); l2 = self.lab(); l3 = self.lab()
            val = 64 * (st["it"] if it is None else it) + (CV if src == "C" else HV)[name]
            rd = f"ds_read_b32 v{V_FLG}, v{HF_} offset:{16 if src == 'C' else 0}"
            a(rd); a("s_waitcnt lgkmcnt(0)"); a(f"s_movk_i32 s39, {val}"); a(f"v_cmp_gt_u32 vcc, s39, v{V_FLG}"); a(f"s_cbranch_vccz {l2}")
            for nm, n in sigs:
                a(f"s_waitcnt vmcnt({cnt['issued'] - n})")
                for x in hpub_txt(nm): a(x)
            a(f"{l3}:"); a(f"s_sleep {OPT.get('hsl', 1)}"); a("s_add_u32 s38, s38, 1"); a(f"s_cmp_gt_u32 s38, {OPT['spin']*16}"); a(f"s_cbranch_scc1 {l2}")
            a(rd); a("s_waitcnt lgkmcnt(0)"); a(f"v_cmp_gt_u32 vcc, s39, v{V_FLG}"); a(f"s_cbranch_vccnz {l3}")
            a.pending.pop(l3, None)
            a(f"{l2}:")
            self.used.add((src, name))
        spq = []
        def tile(t, gs=range(8)):
            for g in gs: self.dma("s29", t*32*KB + g*4*KB, GU_REG[t] + g*4*KB, fl="" if OPT.get("wplain") else " sc1"); op()
        def wqkv(which, gs, win=None):
            for g in gs:
                a(f"s_add_u32 s41, s30, {4*g}"); a("s_and_b32 s41, s41, 31"); a("s_mul_i32 s41, s41, 49152"); a("s_add_u32 s41, s41, s31")
                for ci, reg in which:
                    self.dma("s41", ci*1024, reg + g*4*KB, voff=HV_QKV, srd=SQ)
                    if spq and g >= 2 and OPT.get("scoop", 4) in (1, 4):
                        def f():
                            for _ in range(OPT.get("scn", 2)):
                                if spq: a(spq.pop(0))
                        only(["s_cmp_lt_u32 s80, 2"], f)
                    op(win)
                if len(which) == 2 and g % 2 == 1: sig(f"kv{g//2}")
        def wqp(which, gs):
            for g in gs:
                for ci, reg in which: self.dma("s34", ci*32*KB + g*4*KB, reg + g*4*KB, fl="" if OPT.get("wplain") else " sc1"); op()
        WK = (1, RK); WV = (2, RV); WQ = (0, RQ)
        st_order = list(range(0, 7)) + list(range(31, 56)); st_reg = {s_: STASH + 4*n for n, s_ in enumerate(st_order)}
        st_reg.update({s_: 160 + 4*(s_ - 7) for s_ in range(7, 31)})
        st_q = list(st_order)[32 - OPT.get('nst', 32):]; st_idx = {}
        wd_off = lambda s_: (7*(s_ % 8) + s_ // 8)*16*KB
        def stash(n):
            for _ in range(n):
                if not st_q: break
                s_ = st_q.pop(0)
                a(f"s_add_u32 s40, s33, {wd_off(s_)}")
                a(f"buffer_load_dwordx4 {vr(st_reg[s_],4)}, v{HV_R128}, {SD}, s40 offen"); op(); st_idx[s_] = cnt["issued"]
        def wdw(steps):
            for s_ in steps:
                if s_ not in st_idx:
                    self.dma("s33", wd_off(s_), wd_slot(s_), voff=HV_R128, srd=SD); op(); continue
                retire(max(cnt["done"], st_idx[s_]))
                o = wd_slot(s_)
                a(f"ds_write_b128 v{HV_W + (o >> 16)}, {vr(st_reg[s_],4)} offset:{o & 0xffff}")
        SVR = {RK: 160, RV: 192, RQ: 224}
        def save(regs):
            for g in range(8):
                a(f"s_sub_u32 s40, {4*g}, s28"); a("s_and_b32 s40, s40, 31"); a("s_lshl_b32 s40, s40, 10"); a(f"v_add_u32 v{HT}, s40, v{HV_W}")
                if RV in regs: a(f"v_add_u32 v{HT+1}, s40, v{HV_W+1}")
                for r_ in regs: a(f"ds_read_b128 {vr(SVR[r_]+4*g,4)}, v{HT + (r_ >> 16)} offset:{r_ & 0xffff}")
                if g % 4 == 3: a("s_waitcnt lgkmcnt(0)")
        def restore(r_, gs):
            for g in gs:
                o = r_ + g*4*KB
                a(f"ds_write_b128 v{HV_W + (o >> 16)}, {vr(SVR[r_]+4*g,4)} offset:{o & 0xffff}")
        def only(cond_lines, fn):
            l = self.lab()
            for c in cond_lines: a(c)
            a(f"s_cbranch_scc0 {l}"); fn(); a(f"{l}:")
        a(f"v_lshrrev_b32 v{HT}, 2, v2"); a(f"v_mul_u32_u24 v{HV_QKV}, 3072, v{HT}"); a(f"v_and_b32 v{HT}, 3, v2"); a(f"v_lshl_add_u32 v{HV_QKV}, v{HT}, 4, v{HV_QKV}")
        a("s_add_u32 s30, s28, s6"); a("s_lshl_b32 s31, s17, 6")
        if OPT.get("x_full"): a(f"v_mov_b32 v{HV_QKV}, v{V_LANE16}"); a("s_mul_i32 s31, s17, 3072")
        a(f"s_mov_b32 s46, {512*3072}"); a("s_mov_b32 s47, 0x20000")
        a("s_mov_b64 s[44:45], s[66:67]")
        if OPT["stamp"]: a(f"v_writelane_b32 v{V_TS}, s100, 31")
        a("s_mul_i32 s83, s2, 9363"); a("s_lshr_b32 s83, s83, 18")
        a("s_mul_i32 s40, s83, 28"); a("s_sub_u32 s84, s2, s40")
        a("s_mul_i32 s40, s84, 37"); a("s_lshr_b32 s40, s40, 8"); a("s_mul_i32 s41, s40, 7"); a("s_sub_u32 s41, s84, s41")
        a("s_lshl_b32 s41, s41, 3"); a("s_add_u32 s41, s41, s83"); a("s_lshl_b32 s40, s40, 6"); a("s_add_u32 s40, s40, s41"); a("s_lshl_b32 s40, s40, 3"); a(f"s_add_u32 s88, s40, {RF}")
        a("s_cmp_lt_u32 s2, 224"); a("s_cselect_b32 s88, s88, 0x7ff00000")
        def zero():
            def nonce():
                a("s_memrealtime s[42:43]"); a("s_mov_b64 s[12:13], s[70:71]"); a("s_mov_b32 s14, 256"); a("s_mov_b32 s15, 0x20000"); a("s_waitcnt lgkmcnt(0)")
                a("s_lshl_b64 s[42:43], s[42:43], 3"); a("s_or_b32 s43, s43, 0x80000000")
                a("v_mov_b32 v44, s42"); a("v_mov_b32 v45, s43")
                a("s_mov_b64 exec, 1"); a(f"buffer_store_dwordx2 v[44:45], off, {SDBG}, 0 sc1"); a("s_mov_b64 exec, -1")
            only(["s_cmp_eq_u32 s2, 0"], nonce)
            for r in range(4): a(f"v_mov_b32 v{40+r}, 0")
            a("s_sub_u32 s40, s24, 28")
            a("s_lshl_b32 s81, s16, 11"); a("s_lshl_b32 s41, s17, 7"); a("s_add_u32 s81, s81, s41"); a(f"s_add_u32 s81, s81, {KVFL}")
            a("s_mov_b64 exec, 1")
            a("buffer_store_dwordx4 v[40:43], off, s[8:11], s40 sc1"); a("buffer_store_dwordx4 v[40:43], off, s[8:11], s81 sc1")
            a("buffer_store_dwordx2 v[40:41], off, s[8:11], s88 sc1")
            a("s_mov_b64 exec, -1")
        only(["s_cmp_eq_u32 s6, 3"], zero)
        def codepf():
            a("s_mov_b64 exec, 0xffff"); a("global_load_dword v31, v[10:11], off"); a("s_mov_b64 exec, -1")
        def qtouch():
            a(f"v_lshrrev_b32 v{HT}, 3, v2"); a(f"v_mul_u32_u24 v{HT}, 3072, v{HT}"); a(f"v_and_b32 v{HT+1}, 7, v2"); a(f"v_lshl_add_u32 v{HT}, v{HT+1}, 7, v{HT}")
            a("s_mul_i32 s41, s2, 6144"); a("s_mov_b64 exec, 0xffff"); a(f"buffer_load_dword v31, v{HT}, {SQ}, s41 offen"); a("s_mov_b64 exec, -1")
        if not OPT.get("ct0"): only(["s_cmp_eq_u32 s6, 1"], qtouch)
        def c3q():
            a(f"v_and_b32 v{HT}, 15, v2"); a(f"v_mul_u32_u24 v{HT}, 3072, v{HT}"); a(f"v_lshrrev_b32 v{HT+1}, 4, v2"); a(f"v_lshl_add_u32 v{HT}, v{HT+1}, 10, v{HT}")
            a("s_lshr_b32 s41, s2, 3"); a("s_mul_i32 s41, s41, 49152"); a("s_add_u32 s41, s41, 384")
            a("s_mov_b32 exec_hi, 0xffff"); a(f"buffer_load_dword v31, v{HT}, {SQ}, s41 offen"); a("s_mov_b64 exec, -1")
        if OPT.get("c3", 2): only(["s_cmp_eq_u32 s6, 0"], c3q)
        def c3w(srd, n):
            a(f"v_lshlrev_b32 v{HT}, 10, v2"); a("s_lshr_b32 s41, s2, 3"); a(f"s_mul_i32 s41, s41, {n*1024}"); a("s_add_u32 s41, s41, 384")
            m = (1 << n) - 1
            a(f"s_mov_b32 exec_lo, {m & 0xffffffff:#x}"); a(f"s_mov_b32 exec_hi, {m >> 32:#x}"); a(f"buffer_load_dword v31, v{HT}, {srd}, s41 offen"); a("s_mov_b64 exec, -1")
        def tlb():
            st_ = OPT.get("tlbs", 2) * MB // 2
            a("s_mov_b64 s[42:43], s[8:9]")
            for p in range(WS_USED // st_):
                a("s_load_dword s94, s[42:43], 0"); a(f"s_add_u32 s42, s42, {st_}"); a("s_addc_u32 s43, s43, 0")
            for r in (68, 76, 78): a(f"s_load_dword s94, s[{r}:{r+1}], 0")
            a("s_load_dword s94, s[76:77], 0xffff0"); a("s_load_dword s94, s[78:79], 0xffff0")
        wqkv([WK, WV], range(0, 2), win=63)
        if OPT.get("ct0"):
            a(f"v_lshlrev_b32 v{HT}, 7, v2")
            def tw():
                a("s_mul_i32 s41, s2, 6144"); a("s_mov_b32 exec_hi, 0xffff"); a(f"buffer_load_dword v31, v{HT}, {SQ}, s41 offen"); a("s_mov_b64 exec, -1")
            def tx():
                a("s_mov_b64 s[56:57], s[64:65]"); a(f"s_mov_b32 s58, {2048*1024}"); a("s_mov_b32 s59, 0x20000")
                a("s_lshl_b32 s41, s16, 4"); a("s_add_u32 s41, s41, s17"); a("s_lshl_b32 s41, s41, 13"); a(f"buffer_load_dword v31, v{HT}, {SG}, s41 offen")
            only(["s_cmp_eq_u32 s6, 1"], tw); only(["s_cmp_eq_u32 s6, 0"], tx)
        if OPT.get("tlb", 0): only(["s_cmp_eq_u32 s6, 0"], tlb)
        a("s_mov_b64 s[12:13], s[70:71]"); a("s_mov_b32 s14, 256"); a("s_mov_b32 s15, 0x20000")
        a("s_mov_b64 s[48:49], s[68:69]"); a(f"s_mov_b32 s50, {512*1024}"); a("s_mov_b32 s51, 0x20000")
        a("s_mov_b64 s[52:53], s[76:77]"); a(f"s_mov_b32 s54, {1792*1024}"); a("s_mov_b32 s55, 0x20000")
        a(f"v_lshrrev_b32 v{HT}, 3, v2"); a(f"v_bfe_u32 v{HT+1}, v2, 4, 1"); a(f"v_lshlrev_b32 v{HT+1}, 2, v{HT+1}")
        a(f"v_and_b32 v{HT+2}, 7, v2"); a(f"v_xor_b32 v{HT+2}, v{HT+1}, v{HT+2}"); a(f"v_lshlrev_b32 v{HT+2}, 4, v{HT+2}")
        a(f"v_lshl_add_u32 v{HV_R128}, v{HT}, 10, v{HT+2}")
        a(f"v_mul_u32_u24 v{HT+3}, 3584, v{HT}"); a(f"v_add_u32 v{HT+3}, v{HT+3}, v{HT+2}")
        a("s_and_b32 s85, s83, 1"); a("s_lshr_b32 s86, s83, 1")
        if OPT.get("rl2", 0): a("s_add_u32 s80, s6, 3"); a("s_and_b32 s80, s80, 3")
        else: a("s_add_u32 s80, s6, 1"); a("s_cmp_eq_u32 s6, 0"); a("s_cselect_b32 s80, 0, s80"); a("s_cmp_eq_u32 s6, 3"); a("s_cselect_b32 s80, 1, s80")
        a("s_lshl_b32 s86, s86, 1"); a("s_add_u32 s86, s86, s80")
        a("s_cmp_eq_u32 s85, 0"); a("s_cselect_b64 s[56:57], s[72:73], s[74:75]"); a(f"s_mov_b32 s58, {512*3584}"); a("s_mov_b32 s59, 0x20000")
        a("s_cmp_lt_u32 s2, 224"); a("s_cselect_b32 s87, 1, 0"); a("s_cmp_lt_u32 s80, 2"); a("s_cselect_b32 s87, s87, 0")
        def rel_ld():
            if OPT.get("x_norel"): return
            a(f"s_mul_i32 s41, s86, {64*3584}"); a("s_lshl_b32 s40, s84, 7"); a("s_add_u32 s41, s41, s40")
            for o in range(8):
                a(f"buffer_load_dwordx4 {vr(128+4*o,4)}, v{HT+3}, {SG}, s41 offen")
                if o < 7: a(f"s_add_u32 s41, s41, {8*3584}")
        if OPT.get("rele"): only(["s_cmp_gt_u32 s87, 0"], rel_ld); cnt["ghost"] = (cnt["issued"], 8)
        def coop():
            a(f"v_lshlrev_b32 v{HT}, 7, v2"); a("s_lshl_b32 s41, s2, 13")
            only(["s_cmp_eq_u32 s6, 1"], lambda: a(f"buffer_load_dword v31, v{HT}, {SD}, s41 offen"))
            a("s_sub_u32 s41, 255, s2"); a("s_lshl_b32 s41, s41, 13")
            if OPT.get("scoop", 4) != 4: only(["s_cmp_eq_u32 s6, 2"], lambda: a(f"buffer_load_dword v31, v{HT}, {SO}, s41 offen"))
        a("s_lshl_b32 s32, s19, 7"); a("s_and_b32 s40, s6, 1"); a("s_lshl_b32 s40, s40, 13"); a("s_add_u32 s32, s32, s40")
        a("s_lshr_b32 s40, s6, 1"); a(f"s_mul_i32 s33, s40, {56*16*KB}"); a("s_add_u32 s33, s33, s32"); a("s_lshl_b32 s40, s40, 18"); a("s_add_u32 s32, s32, s40")
        a(f"s_mul_i32 s29, s17, {0 if OPT.get('x_samew') else 7*32*KB}"); a(f"s_add_u32 s29, s29, {WGU}"); a("s_add_u32 s29, s29, s25")
        a(f"v_add_u32 v{HV_W}, s25, v{V_LANE16}"); a(f"v_add_u32 v{HV_W+1}, 0x10000, v{HV_W}"); a(f"v_add_u32 v{HV_W+2}, 0x20000, v{HV_W}")
        self.tr_addr16(HV_TQ, HT, HT + 1)
        a("s_lshl_b32 s40, s6, 15"); a(f"v_add_u32 v{HV_TQ}, s40, v{HV_TQ}")
        for r in range(4): a(f"v_mov_b32 v{64+r}, s20")
        a("v_mov_b32 v48, s20"); a("v_mov_b32 v49, s20"); a("v_mov_b32 v50, 0"); a("v_mov_b32 v51, 0"); a(f"v_mov_b32 v52, {L_ONES}")
        for o in (0, 64, 256, 320): a(f"ds_write_b128 v52, v[48:51] offset:{o}")
        def colsum(lo, hi, first, HV_TQ=HV_TQ):
            def rd(kc):
                w = 72 + 4 * (kc % 8)
                a(f"ds_read_b64_tr_b16 {vr(w,2)}, v{HV_TQ} offset:{kc*KB}"); a(f"ds_read_b64_tr_b16 {vr(w+2,2)}, v{HV_TQ} offset:{kc*KB+256}")
            for kc in range(lo, min(hi, lo + 6)): rd(kc)
            for kc in range(lo, hi):
                a(f"s_waitcnt lgkmcnt({2 * (min(hi, kc + 6) - kc - 1)})")
                a(f"{MF} v[112:127], v[64:67], {vr(72+4*(kc%8),4)}, {'0' if (first and kc == lo) else 'v[112:127]'}")
                if kc + 6 < hi: rd(kc + 6)
        def augfin(q4=False):
            a("v_cvt_pk_bf16_f32 v104, v112, v112"); a("v_and_b32 v107, 0xffff, v104")
            a("v_lshlrev_b32 v105, 16, v104"); a("v_sub_f32 v105, v112, v105"); a("v_cvt_pk_bf16_f32 v106, v112, v105")
            if q4: a("s_lshr_b32 s40, s6, 1"); a("s_lshl_b32 s40, s40, 9"); a("s_and_b32 s41, s6, 1"); a("s_lshl_b32 s41, s41, 3"); a("s_add_u32 s40, s40, s41"); a(f"s_add_u32 s40, s40, {L_QB}")
            else: a("s_lshl_b32 s40, s6, 8"); a(f"s_add_u32 s40, s40, {L_AUG}")
            a("v_and_b32 v108, 31, v2"); a(f"v_lshlrev_b32 v108, {4 if q4 else 3}, v108"); a("v_add_u32 v108, s40, v108")
            a("ds_write_b64 v108, v[106:107]"); a("s_waitcnt lgkmcnt(0)")
        kvw = ["s_sub_u32 s40, s6, 1", "s_cmp_lt_u32 s40, 2"]
        qw  = ["s_cmp_eq_u32 s6, 0"]
        w3  = ["s_cmp_eq_u32 s6, 3"]
        def spin_head(loads):
            l = self.lab(); d = self.lab(); l0 = self.lab()
            a("s_mov_b32 s41, 0")
            for x in loads: a(x + ("" if OPT.get("pplain", 0) else " sc1"))
            a(f"s_branch {l0}"); a(f"{l}:"); a("s_sleep 4")
            for x in loads: a(x + " sc1")
            a(f"{l0}:")
            a("s_add_u32 s41, s41, 1"); a(f"s_cmp_gt_u32 s41, {OPT['spin']}"); a(f"s_cbranch_scc1 {d}")
            a("s_waitcnt vmcnt(0)")
            return l, d
        def get_nonce():
            l, d = spin_head([f"buffer_load_dwordx2 {vr(HT,2)}, off, {SDBG}, 0"])
            a(f"v_readfirstlane_b32 s92, v{HT}"); a(f"v_readfirstlane_b32 s93, v{HT+1}")
            a("s_cmp_eq_u32 s93, 0"); a(f"s_cbranch_scc1 {l}"); a(f"{d}:")
        def arrive():
            a("s_waitcnt lgkmcnt(0)")
            only(["s_cmp_eq_u32 s93, 0"], get_nonce)
            a(f"v_mov_b32 v{HT}, s92"); a(f"v_mov_b32 v{HT+1}, s93"); a(f"v_mov_b32 v{HT+2}, {L_TAG}"); a(f"ds_write_b64 v{HT+2}, {vr(HT,2)}")
            a("s_getreg_b32 s40, hwreg(HW_REG_XCC_ID)"); a("s_and_b32 s40, s40, 7"); a("s_or_b32 s91, s40, s92")
            a(f"v_mov_b32 v{HT}, s91"); a(f"v_mov_b32 v{HT+1}, s93")
            a("s_lshl_b32 s40, s16, 7"); a("s_lshl_b32 s41, s17, 3"); a("s_add_u32 s40, s40, s41"); a(f"s_add_u32 s40, s40, {AR}")
            a("s_mov_b64 exec, 1"); a(f"buffer_store_dwordx2 {vr(HT,2)}, off, s[8:11], s40 sc1"); a("s_mov_b64 exec, -1")
        def nbr():
            a("v_lshlrev_b32 v248, 5, v2"); a(f"s_mov_b32 s42, {AR}")
            l, d = spin_head(["buffer_load_dwordx4 v[240:243], v248, s[8:11], s42 offen", "buffer_load_dwordx4 v[244:247], v248, s[8:11], s42 offen offset:16"])
            for q in range(4): a(f"v_xor_b32 v{240+2*q}, s91, v{240+2*q}"); a(f"v_xor_b32 v{241+2*q}, s93, v{241+2*q}")
            a("v_or3_b32 v240, v240, v242, v244"); a("v_or_b32 v240, v240, v246"); a("v_or3_b32 v241, v241, v243, v245"); a("v_and_b32 v249, -8, v240"); a("v_or3_b32 v241, v241, v247, v249")
            a("v_cmp_ne_u32 vcc, 0, v241"); a(f"s_cbranch_vccnz {l}"); a(f"{d}:")
            a("v_cmp_ne_u32 vcc, 0, v240"); a("s_lshl_b32 s40, s16, 2"); a("s_lshr_b64 s[42:43], vcc, s40"); a("s_and_b32 s40, s42, 15"); a("s_cselect_b32 s40, 1, 0")
            if OPT["force_slow"]: a("s_mov_b32 s40, 1")
            a(f"v_mov_b32 v{HT}, s40"); a(f"v_mov_b32 v{HT+1}, {L_MODE}"); a(f"ds_write_b32 v{HT+1}, v{HT}"); a("s_waitcnt lgkmcnt(0)")
        def rel_do():
            if OPT.get("x_norel"): return
            a("s_lshl_b32 s40, s80, 12"); a(f"s_add_u32 s40, s40, {P4 if OPT.get('rl2', 0) else 144*KB}"); a(f"v_add_u32 v45, s40, v{V_LANE16}")
            a(f"v_bfe_u32 v40, v2, 2, 2"); a("v_lshlrev_b32 v41, 7, v40"); a("v_lshrrev_b32 v40, 1, v40"); a("v_lshrrev_b32 v42, 5, v2"); a("v_xor_b32 v40, v40, v42")
            a("v_lshl_add_u32 v41, v40, 6, v41"); a(f"v_and_b32 v40, 63, v{HV_TQ}"); a("v_add_u32 v41, v41, v40"); a("v_add_u32 v41, s40, v41")
            for hf in range(2):
                for o in range(4): a(f"ds_write_b128 v45, {vr(128+16*hf+4*o,4)} offset:{o*KB}")
                for o in range(4):
                    a(f"ds_read_b64_tr_b16 {vr(72+16*hf+4*o,2)}, v41 offset:{o*KB}"); a(f"ds_read_b64_tr_b16 {vr(74+16*hf+4*o,2)}, v41 offset:{o*KB+512}")
                a("s_waitcnt lgkmcnt(0)")
            a("v_lshrrev_b32 v40, 4, v2"); a("v_lshlrev_b32 v40, 15, v40"); a("v_and_b32 v42, 15, v2"); a("v_lshl_add_u32 v40, v42, 4, v40")
            a("s_lshl_b32 s40, s84, 17"); a("s_lshl_b32 s41, s86, 12"); a("s_add_u32 s40, s40, s41"); a("s_lshl_b32 s41, s85, 8"); a("s_add_u32 s40, s40, s41"); a(f"s_add_u32 s40, s40, {WGU}")
            a("v_mov_b32 v43, 0"); a("v_mov_b32 v44, 0")
            a("s_waitcnt lgkmcnt(0)")
            for o in range(8): a(f"buffer_store_dwordx4 {vr(72+4*o,4)}, v40, s[8:11], s40 offen offset:{o*512} sc1")
            for i in range(32): a(f"v_dot2_f32_bf16 v{43+i%2}, v{72+i}, s20, v{43+i%2}")
            a("s_nop 2"); a("v_add_f32 v43, v43, v44")
            a("s_lshl_b32 s40, s86, 1"); a("s_add_u32 s40, s40, s85"); a(f"s_mul_i32 s40, s40, {1792*4}"); a("s_lshl_b32 s41, s84, 8"); a("s_add_u32 s40, s40, s41"); a(f"s_add_u32 s40, s40, {CS}")
            a("v_lshlrev_b32 v42, 2, v2")
            a("buffer_store_dword v43, v42, s[8:11], s40 offen sc1")
        def halo2(it):
            B0 = 40 if it == 0 else 176
            HO = B0 + 72; HA = B0 + 73
            if it == 0:
                a(f"v_mov_b32 v{HT}, {L_TAG}"); a(f"ds_read_b64 {vr(HT,2)}, v{HT}"); a("s_waitcnt lgkmcnt(0)")
                a(f"v_readfirstlane_b32 s92, v{HT}"); a(f"v_readfirstlane_b32 s93, v{HT+1}")
                for d in (1, 2):
                    a(f"s_add_u32 s{93+d}, s63, {HF + 2*KB - 4*d*112*KB}"); a(f"s_cmp_ge_u32 s16, {d}"); a(f"s_cselect_b32 s{93+d}, s{93+d}, 0x7ff00000"); a(f"s_cselect_b32 s{63+d}, -1, 0")
                a("s_lshl_b32 s82, s16, 11"); a("s_lshl_b32 s41, s17, 7"); a("s_add_u32 s82, s82, s41"); a("s_lshl_b32 s41, s6, 2"); a("s_add_u32 s82, s82, s41"); a(f"s_add_u32 s82, s82, {KVFL}")
            else: a("s_add_u32 s92, s92, 1")
            a(f"v_lshlrev_b32 v{HO}, 3, v2"); a(f"v_add_u32 v{HO}, 4096, v{HO}"); a(f"v_add_u32 v{HA}, {LK}, v{HV_W}")
            need("kvs")
            a(f"s_setprio {OPT.get('hp', 3)}")
            NA = OPT.get("na", 1)
            def regs(k): return [B0 + 36*k, B0 + 36*k + 16], [B0 + 36*k + 32, B0 + 36*k + 34]
            def ld(k):
                HB, HC = regs(k)
                for n in range(2):
                    for p in range(4): a(f"buffer_load_dwordx4 {vr(HB[n]+4*p,4)}, v{V_LANE16}, s[8:11], s{94+n} offen offset:{p*KB} sc1")
                    a(f"buffer_load_dwordx2 {vr(HC[n],2)}, v{HO}, s[8:11], s{94+n} offen sc1")
            l = self.lab(); oks = [self.lab() for _ in range(NA)]; done = self.lab()
            a("s_mov_b32 s41, 0")
            ld(0)
            if NA == 2: a(f"s_sleep {OPT.get('nas', 10)}"); ld(1)
            a(f"{l}:")
            for k in range(NA):
                HB, HC = regs(k)
                for n in range(2):
                    a(f"s_waitcnt vmcnt({10*(NA-1) + 5 - 5*n})")
                    for q in range(0, 16, 2): a(f"v_bitop3_b32 v{HC[n]}, v{HC[n]}, v{HB[n]+q}, v{HB[n]+q+1} bitop3:0x96")
                    a(f"v_xor_b32 v{HC[n]}, s92, v{HC[n]}"); a(f"v_xor_b32 v{HC[n]+1}, s93, v{HC[n]+1}")
                    a(f"v_or_b32 v{HC[n]}, v{HC[n]}, v{HC[n]+1}"); a(f"v_and_b32 v{HC[n]}, s{64+n}, v{HC[n]}")
                a(f"v_or_b32 v{HC[0]}, v{HC[0]}, v{HC[1]}"); a(f"v_cmp_ne_u32 vcc, 0, v{HC[0]}"); a(f"s_cbranch_vccz {oks[k]}")
                ld(k)
            a("s_add_u32 s41, s41, 1"); a(f"s_cmp_le_u32 s41, {OPT['spin']}"); a(f"s_cbranch_scc1 {l}"); a.pending.pop(l, None)
            a("s_waitcnt vmcnt(0)")
            for k in range(NA):
                HB, HC = regs(k)
                a(f"{oks[k]}:")
                for p in (0, 2, 1, 3):
                    for n in range(2): a(f"ds_write_b128 v{HA}, {vr(HB[n]+4*p,4)} offset:{(p&1)*HS + (p>>1)*12*KB + (4 - 4*n)*KB}")
                if k < NA - 1: a(f"s_branch {done}")
            a(f"{done}:")
            hpub("hl")
            a(f"v_mov_b32 v{HT}, {it + 1}"); a("s_mov_b64 exec, 1"); a(f"buffer_store_dword v{HT}, off, s[8:11], s82 sc1"); a("s_mov_b64 exec, -1")
            a("s_setprio 0")
            if it == 0 and OPT.get("sv", 0) == 1: save([RK, RV])
            if it == 0: save([RQ])
            need("hl", "H")
        def pack():
            a("s_lshl_b32 s40, s16, 1"); a("s_sub_u32 s41, s40, s28"); a("s_and_b32 s41, s41, 31"); a("s_lshl_b32 s41, s41, 10"); a("s_lshl_b32 s42, s6, 15"); a("s_add_u32 s41, s41, s42")
            a(f"v_add_u32 v160, s41, v{V_LANE16}")
            a("ds_read_b128 v[164:167], v160"); a("ds_read_b128 v[168:171], v160 offset:1024")
            a("s_lshl_b32 s41, s6, 15"); a("s_lshl_b32 s40, s40, 10"); a("s_add_u32 s41, s41, s40")
            a("s_add_u32 s41, s41, s34"); a("s_sub_u32 s41, s41, s25")
            a("s_mov_b32 s90, s41")
            a("s_waitcnt lgkmcnt(0)")
        def pack_st():
            a(f"buffer_store_dwordx4 v[164:167], v{V_LANE16}, s[8:11], s90 offen sc1"); a(f"buffer_store_dwordx4 v[168:171], v{V_LANE16}, s[8:11], s90 offen offset:1024 sc1")
        def rel_sig():
            a("s_lshl_b32 s40, s80, 2"); a("s_add_u32 s40, s40, s88")
            a(f"v_mov_b32 v{HT}, 1"); a("s_mov_b64 exec, 1"); a(f"buffer_store_dword v{HT}, off, s[8:11], s40 sc1"); a("s_mov_b64 exec, -1")
        def gu_ready():
            a("s_lshr_b32 s40, s17, 2"); a("s_lshl_b32 s40, s40, 9"); a(f"s_add_u32 s42, s40, {RF}")
            a(f"v_min_u32 v{HT+2}, 55, v2"); a(f"v_lshlrev_b32 v{HT+2}, 3, v{HT+2}")
            l, d = spin_head([f"buffer_load_dwordx2 {vr(HT,2)}, v{HT+2}, s[8:11], s42 offen"])
            a(f"v_and_b32 v{HT}, v{HT}, v{HT+1}"); a(f"v_cmp_ne_u32 vcc, 1, v{HT}"); a(f"s_cbranch_vccnz {l}"); a(f"{d}:")
        def pack_sig():
            a("s_lshl_b32 s40, s6, 2"); a("s_add_u32 s40, s40, s89")
            a(f"v_mov_b32 v{HT}, 1"); a("s_mov_b64 exec, 1"); a(f"buffer_store_dword v{HT}, off, s[8:11], s40 sc1"); a("s_mov_b64 exec, -1")
        def gu_aug():
            a("v_lshrrev_b32 v144, 5, v2"); a(f"v_mul_u32_u24 v145, {1792*4}, v144"); a("v_and_b32 v146, 31, v2"); a("v_min_u32 v146, 27, v146"); a("v_lshl_add_u32 v145, v146, 4, v145")
            a(f"s_mul_i32 s40, s17, {112*4}"); a(f"s_add_u32 s40, s40, {CS}")
            for p in range(8):
                a(f"buffer_load_dwordx4 {vr(112+4*p,4)}, v145, s[8:11], s40 offen sc1")
                if p < 7: a(f"s_add_u32 s40, s40, {2*1792*4}")
            a("v_lshrrev_b32 v147, 2, v146"); a("v_lshlrev_b32 v147, 8, v147"); a("v_lshl_add_u32 v147, v144, 7, v147"); a("v_and_b32 v148, 3, v146"); a("v_lshl_add_u32 v147, v148, 5, v147")
            a(f"v_add_u32 v147, {L_AUG + 768}, v147")
            a("s_waitcnt vmcnt(0)")
            for p in range(1, 8):
                for c in range(4): a(f"v_add_f32 v{112+c}, v{112+c}, v{112+4*p+c}")
            for c in range(4):
                a(f"v_cvt_pk_bf16_f32 v149, v{112+c}, v{112+c}"); a(f"v_and_b32 v{121+2*c}, 0xffff, v149")
                a("v_lshlrev_b32 v149, 16, v149"); a(f"v_sub_f32 v149, v{112+c}, v149"); a(f"v_cvt_pk_bf16_f32 v{120+2*c}, v{112+c}, v149")
            a("ds_write_b128 v147, v[120:123]"); a("ds_write_b128 v147, v[124:127] offset:16"); a("s_waitcnt lgkmcnt(0)")
        def pack_ready():
            a("s_lshl_b32 s42, s17, 8"); a(f"s_add_u32 s42, s42, {PFL}"); a("s_mov_b32 s43, 1")
            a(f"v_lshlrev_b32 v{HT}, 2, v2"); self.poll(HT, "s42", "s43", sleep=8)
        a(f"v_and_b32 v{HF_}, 3, v2"); a(f"v_lshlrev_b32 v{HF_}, 2, v{HF_}"); a(f"v_add_u32 v{HF_}, {L_HL}, v{HF_}")
        a("s_lshr_b32 s40, s6, 1"); a("s_lshl_b32 s41, s18, 1"); a("s_add_u32 s40, s40, s41"); a("s_lshl_b32 s41, s16, 2"); a("s_add_u32 s40, s40, s41")
        a("s_and_b32 s41, s6, 1"); a("s_lshl_b32 s42, s19, 1"); a("s_add_u32 s41, s41, s42")
        a("s_lshl_b32 s60, s40, 15"); a("s_lshl_b32 s42, s41, 11"); a("s_add_u32 s60, s60, s42")
        a("s_lshl_b32 s61, s40, 12"); a("s_lshr_b32 s42, s41, 2"); a("s_lshl_b32 s42, s42, 10"); a("s_add_u32 s61, s61, s42")
        a(f"s_mul_i32 s63, s27, {112*KB}"); a(f"s_mul_i32 s42, s17, {7*KB}"); a("s_add_u32 s63, s63, s42")
        def touch(items):
            a(self.touch_txt([([f"s_add_u32 s43, {r}, {b}"], n) for r, b, n in items]).replace(f"v{V_OUT},", "v31,"))
        def ext():
            pass
        for it in range(2):
            st["it"] = it
            if it == 0:
                KW = OPT.get("kw", 6); RP = OPT.get("rp", 8)
                if OPT.get("scoop", 4):
                    a("s_and_b32 s40, s80, 1"); a("s_lshl_b32 s40, s40, 6"); a(f"s_mul_i32 s41, s2, {7*KB}"); a("s_add_u32 s41, s41, s40"); a("s_add_u32 s64, s52, s41"); a("s_addc_u32 s65, s53, 0")
                    a("s_lshl_b32 s41, s2, 11"); a("s_add_u32 s41, s41, s40"); a("s_add_u32 s66, s48, s41"); a("s_addc_u32 s67, s49, 0")
                    spq += [f"s_load_dword s95, s[66:67], {q*128}" for q in range(16)] + [f"s_load_dword s95, s[64:65], {q*128}" for q in range(56 if OPT.get("scoop", 4) != 4 else 0)]
                wqkv([WK, WV], range(2, 4), win=KW)
                retire(max(4, cnt["done"]))
                only(w3, lambda: a("s_load_dwordx2 s[92:93], s[70:71], 0"))
                wqkv([WK, WV], range(4, 6), win=KW)
                if not OPT.get("arl", 1): only(w3, arrive)
                wqkv([WK, WV], range(6, RP), win=KW)
                if not OPT.get("rele"): only(["s_cmp_gt_u32 s87, 0"], lambda: (need("x0") if OPT.get("relx", 0) else None, rel_ld())); cnt["ghost"] = (cnt["issued"], 8)
                wqkv([WK, WV], range(RP, 8), win=KW)
                if not OPT.get("cs1", 1): only(kvw, lambda: (need("kv1", "H"), colsum(0, 16, True)))
                flush()
                if OPT.get("coope", 0): coop()
                if OPT.get("arl", 1): only(w3, arrive)
                self.stamp(9)
                RA = ["s_cmp_gt_u32 s87, 0"]; CH = OPT.get("ch", 16)
                if True:
                    a(f"s_setprio {OPT.get('csp', 3)}")
                    only(kvw, lambda: (need("kv3", "H"), colsum(0, CH, True)))
                    only(RA, lambda: (a("s_waitcnt vmcnt(1)"), only(qw, lambda: a("s_waitcnt vmcnt(0)")), rel_do()))
                    self.stamp(10)
                    need("x")
                    wqkv([WQ], range(0, 8), win=63)
                    only(kvw, lambda: (colsum(CH, 32, False), augfin()))
                    hpub("augkv")
                    a("s_setprio 0")
                    only(w3, nbr)
                    only(["s_cmp_lt_u32 s6, 3"], lambda: save([RK, RV]))
                    drain(); hpub("wq")
                    only(w3, lambda: save([RK, RV]))
                    need("wq", "H")
                    only(RA, rel_sig)
                    a(f"s_mul_i32 s40, s6, {24*KB}"); a(f"v_subrev_u32 v109, s40, v{HV_TQ}")
                    a("s_setprio 3"); colsum(0, 8, True, 109); augfin(True); a("s_setprio 0")
                    hpub("augq")
                self.stamp(12)
            else:
                need("x"); hpub("augq")
            if it == 0 and OPT.get("st_e"): coop(); stash(OPT["st_e"])
            self.stamp(14)
            halo2(it)
            self.stamp(2)
            if it == 0:
                a(f"v_mov_b32 v{V_TMP}, {L_MODE}"); a(f"ds_read_b32 v{V_TMP}, v{V_TMP}"); a("s_waitcnt lgkmcnt(0)"); a(f"v_readfirstlane_b32 s21, v{V_TMP}")
            if OPT.get("c3", 2) > 1:
                only(["s_cmp_eq_u32 s6, 2"], lambda: c3w(SO, 16))
                if it == 0: only(["s_cmp_eq_u32 s6, 1"], lambda: c3w(SD, 56))
            if OPT.get("tlate"):
                for g in range(OPT["tlate"]): self.dma("s32", (2*(g%8) + g//8)*16*KB, RK + g*4*KB, voff=HV_R128, srd=SO); op()
            if OPT.get("codepf", 1) > 1 and it == 0: only(["s_cmp_eq_u32 s6, 0"], codepf)
            touch([("s63", OF, 16), ("s60", XA, 16), ("s61", STA, 8)])
            if it == 0 and OPT.get("scoop", 4) in (0, 4) and not OPT.get("coope", 0) and not OPT.get("st_e"): coop()
            assert not spq
            self.stamp(3)
            for g in range(OPT.get("tlate", 0), 16):
                self.dma("s32", (2*(g%8) + g//8)*16*KB, RK + g*4*KB, voff=HV_R128, srd=SO); op()
                if it == 0 and not OPT.get("rel0", 1):
                    if g == 2: only(["s_cmp_gt_u32 s87, 0"], lambda: (a("s_waitcnt vmcnt(3)"), rel_do()))
                    if g == 3 + W: only(["s_cmp_gt_u32 s87, 0"], rel_sig)
            sig("wo")
            if it == 0:
                stash(OPT.get("st_0", 10)); flush()
                only(w3, gu_ready)
                hpub("gur"); need("gur", "H")
            self.stamp(5)
            need("q"); tile(0); tile(1, range(0, 3))
            if it == 0: stash(OPT.get("st_a", 0))
            need("h0"); tile(1, range(3, 8))
            if it == 0: only(w3, gu_aug); stash(OPT.get("st_b", 22))
            else:
                st_q += list(range(7, 31))[:OPT.get("st_1", 8)]; stash(24)
            if OPT.get("htouch", 0) > it: touch([("s63", HF, 56)])
            for n in range(OPT.get("pf1", 0) if it else OPT.get("pf0", 0)):
                if n == 0:
                    a("s_and_b32 s40, s16, 1"); a("s_lshl_b32 s41, s6, 1"); a("s_add_u32 s40, s40, s41"); a("s_lshl_b32 s40, s40, 13")
                    a("s_sub_u32 s43, s29, s25"); a("s_add_u32 s43, s43, s40"); a(f"v_lshlrev_b32 v{HT}, 7, v2")
                a(f"s_add_u32 s43, s43, {64*KB}")
                a(f"buffer_load_dword v31, v{HT}, s[8:11], s43 offen"); op(1)
            self.stamp(4)
            if OPT.get("t2e", 1):
                need("wo1"); tile(2); sig("t2_3")
                for p in range(3): self.seen.add(("H", f"t2_{p}"))
                need("xr"); flush(); wdw(range(0, 7))
                need("xch")
            else:
                need("wo"); tile(2, range(0, 2)); sig("t2_0")
                need("xch")
                for p in range(1, 4): tile(2, range(2*p, 2*p + 2)); sig(f"t2_{p}")
            if OPT.get("t3g"): need(f"g{OPT['t3g']}")
            tile(3); sig("t3")
            for p, nm in enumerate(("g8", "g16", "g24", "g32")):
                need(nm); tile(4, range(2*p, 2*p + 2))
            sig("t4")
            tile(5); sig("t5"); tile(6); sig("t6")
            if it == 0: stash(56)
            if it == 1 and OPT.get("wlate", 1): flush()
            need("t3"); wdw(range(7, 15))
            need("t4"); wdw(range(15, 23)); sig("w0")
            need("t5"); wdw(range(23, 31)); sig("w23")
            need("t6"); wdw(range(31, 39)); sig("w31")
            need("d7"); wdw(range(39, 46)); sig("w39"); flush()
            if it == 0:
                need("d15"); restore(RV, range(8))
                need("d23"); restore(RK, range(8))
            need("d33"); wdw(range(46, 56)); sig("w46"); flush()
            if it == 0:
                hpub("nkv")
                need("d39"); restore(RQ, range(2, 8))
                need("d56"); restore(RQ, range(0, 2))
                a("s_mov_b32 s23, 16")
        self.finish()

    def count_poll(self, soff, T):
        a = self.a; l = self.lab(); d = self.lab()
        a("s_mov_b32 s41, 0")
        l0 = self.lab(); a(f"s_branch {l0}"); a(f"{l}:"); a("s_sleep 8"); a(f"{l0}:")
        a(f"buffer_load_dwordx2 {vr(T,2)}, off, s[12:15], {soff} sc1"); a("s_waitcnt vmcnt(0)")
        a(f"v_readfirstlane_b32 s42, v{T}"); a(f"v_readfirstlane_b32 s43, v{T+1}")
        a("s_add_u32 s41, s41, 1"); a(f"s_cmp_gt_u32 s41, {OPT['spin']}"); a(f"s_cbranch_scc1 {d}")
        a("s_add_u32 s40, s42, s43"); a("s_mul_i32 s40, s40, 0x01010101"); a("s_lshr_b32 s40, s40, 24")
        a("s_cmp_lg_u32 s40, 16"); a(f"s_cbranch_scc1 {l}")
        a(f"{d}:")

    def build(self):
        a = self.a
        self.prologue()
        a("s_cmp_ge_u32 s3, 4"); a("s_cbranch_scc1 L_helper")
        self.compute()
        a("L_helper:")
        self.helper()
        assert self.used <= self.seen, self.used - self.seen
        a("L_end:"); a("s_endpgm")
        for x in self.ool: a.raw(x)
        a.raw("L_code_end:"); a.raw("    s_endpgm")
        return a.text()

def build():
    body = Main().build()
    return f"""; Two transformer-style layer pairs (LN+sliding-window attention+Wo, LN+GLU MLP) in one persistent kernel.
; start-up check of HW_REG_XCC_ID finds them on one XCD, with write-through (sc1) stores otherwise.
; @launch grid=(256,1,1) block=(512,1,1) lds={160*KB}
.amdgcn_target "amdgcn-amd-amdhsa--gfx950"
.text
{body}
.section .rodata,"a"
.p2align 6
.amdhsa_kernel {NAME}
  .amdhsa_next_free_vgpr 256
  .amdhsa_next_free_sgpr 102
  .amdhsa_accum_offset 256
  .amdhsa_group_segment_fixed_size 0
  .amdhsa_kernarg_size 80
  .amdhsa_user_sgpr_count 2
  .amdhsa_user_sgpr_kernarg_segment_ptr 1
  .amdhsa_system_sgpr_workgroup_id_x 1
.end_amdhsa_kernel
"""

if __name__ == "__main__":
    for x in sys.argv[2:]:
        if "=" in x: kk, v = x.split("="); OPT[kk] = int(v)
        else: OPT[x] = True
    open(sys.argv[1], "w").write(build())
```
